```python
import torch

def _softmax(x, axis=-1):
    return torch.softmax(x, dim=axis)
def _gelu(x):
    return torch.nn.functional.gelu(x, approximate="tanh")
def _silu(x):
    return torch.nn.functional.silu(x)
def _sigmoid(x):
    return torch.sigmoid(x)
def _layernorm(x, axis=-1, eps=1e-5):
    m = x.mean(dim=axis, keepdim=True)
    v = x.var(dim=axis, keepdim=True, unbiased=False)
    return (x - m) / torch.sqrt(v + eps)
def _scatter_add(tgt, idx, src, axis=0):
    return tgt.clone().index_add_(axis, idx, src)
def _segment_sum(src, seg, n):
    out = torch.zeros((n,) + src.shape[1:], dtype=src.dtype)
    return out.index_add_(0, seg, src)
def _pad(x, pw):
    flat = tuple(v for pair in reversed(pw) for v in pair)
    return torch.nn.functional.pad(x, flat)

kernel_name = 'recurrent_scan__mha_block_cached__glu_gated_bilinear__prompt'

def setup_inputs():

    _w = (lambda a: (lambda t: t.to(torch.bfloat16) if t.is_floating_point() else t)(torch.as_tensor(a)))
    def _A_setup():
        B, Sq, D = 1, 2048, 512
        H, Sk, Dh = 32, 2048, 128
        return {
            "x": _w((lambda *s: torch.randn(*s, dtype=torch.bfloat16) * 0.05)(B, Sq, D)),
            "k_cache": _w((lambda *s: torch.randn(*s, dtype=torch.bfloat16) * 1.6)(B, H, Sk, Dh)),
            "v_cache": _w((lambda *s: torch.randn(*s, dtype=torch.bfloat16) * 1.6)(B, H, Sk, Dh)),
            "wq": _w((lambda *s: torch.randn(*s, dtype=torch.bfloat16) * 1.6)(D, H * Dh) * (D ** -0.5)),
            "wo": _w((lambda *s: torch.randn(*s, dtype=torch.bfloat16) * 1.6)(H * Dh, D) * ((H * Dh) ** -0.5)),
        }
    _A_in = _A_setup()

    def _B_setup():
        B, S, D, F = 1, 2048, 512, 1792
        return {
            "x": _w((lambda *s: torch.randn(*s, dtype=torch.bfloat16) * 0.05)(B, S, D)),
            "w_gate": _w((lambda *s: torch.randn(*s, dtype=torch.bfloat16) * 0.2)(D, F) * (D ** -0.5)),
            "w_up": _w((lambda *s: torch.randn(*s, dtype=torch.bfloat16) * 0.2)(D, F) * (D ** -0.5)),
            "w_down": _w((lambda *s: torch.randn(*s, dtype=torch.bfloat16) * 0.2)(F, D) * (F ** -0.5)),
        }
    _B_in = _B_setup()

    return {
        "A_x": _A_in["x"],
        "A_k_cache": _A_in["k_cache"],
        "A_v_cache": _A_in["v_cache"],
        "A_wq": _A_in["wq"],
        "A_wo": _A_in["wo"],
        "B_x": _B_in["x"],
        "B_w_gate": _B_in["w_gate"],
        "B_w_up": _B_in["w_up"],
        "B_w_down": _B_in["w_down"],
    }

def reference(A_x, A_k_cache, A_v_cache, A_wq, A_wo, B_x, B_w_gate, B_w_up, B_w_down):
    def _A_ref(x, k_cache, v_cache, wq, wo):
        B, Sq, D = x.shape
        H, Dh = 32, 128
        q = (lambda x, *d: x.permute(*d))((x @ wq).reshape(B, Sq, H, Dh), 0, 2, 1, 3)
        scores = torch.einsum("bhqd,bhkd->bhqk", q, k_cache) * (Dh ** -0.5)
        p = _softmax(scores, axis=-1)
        o = torch.einsum("bhqk,bhkd->bhqd", p, v_cache)
        return (lambda x, *d: x.permute(*d))(o, 0, 2, 1, 3).reshape(B, Sq, H * Dh) @ wo

    def _B_ref(x, w_gate, w_up, w_down):
        g = torch.einsum("bsd,df->bsf", x, w_gate)
        u = torch.einsum("bsd,df->bsf", x, w_up)
        h = g * u
        return torch.einsum("bsf,fd->bsd", h, w_down)

    x = A_x
    xn = _layernorm(x, axis=-1)
    s = _A_ref(xn, A_k_cache, A_v_cache, A_wq, A_wo)
    g = _silu(_B_ref(xn, B_w_gate, B_w_up, B_w_down))
    return x + s * g
```

```python
import re
NAME = 'recurrent_scan__mha_block_cached__glu_gated_bilinear__prompt'

HEADER = """; Kernarg layout for this problem (96 bytes, ptrs only, base s[0:1]):
;   offset  16: d_in[2] A_v_cache  shape=(1, 32, 2048, 128) dtype=bfloat16
"""

VOP3_ONLY = ('v_cvt_pk_bf16_f32', 'v_max3', 'v_min3', 'v_fma_', 'v_pk_', 'v_accvgpr_read', 'v_accvgpr_write', 'v_lshl_add', 'v_add3',
             'v_lshl_or', 'v_and_or', 'v_or3', 'v_bfe', 'v_bfi', 'v_mul_lo', 'v_mul_hi', 'v_mad_', 'v_mfma', 'v_dot2_', 'v_perm_b32',
             'v_add_lshl', 'v_xad', 'v_readlane', 'v_writelane', 'v_mbcnt', 'v_med3', 'v_bitop3', 'v_alignbit', 'v_lshlrev_b64', 'v_cvt_scale')
INLINE_F = {'0.5', '-0.5', '1.0', '-1.0', '2.0', '-2.0', '4.0', '-4.0'}

def _has_literal(ops):
    for o in ops:
        o = o.strip()
        if re.fullmatch(r'-?0x[0-9a-fA-F]+|-?\d+', o):
            v = int(o, 0)
            if not (-16 <= v <= 64):
                return True
        elif re.fullmatch(r'-?\d+\.\d*(e-?\d+)?', o) and o not in INLINE_F:
            return True
    return False

def isize(line):
    s = line.split(';')[0].strip()
    if not s or s.endswith(':') or s.startswith('.'):
        return 0
    m = s.split(None, 1)
    op = m[0]
    ops = m[1].split(',') if len(m) > 1 else []
    if op.startswith(('ds_', 'buffer_', 'global_', 'flat_', 's_load', 's_memtime', 's_memrealtime', 's_atomic', 's_buffer')):
        return 8
    if op.startswith('s_'):
        if op in ('s_waitcnt', 's_nop', 's_barrier', 's_branch', 's_sleep', 's_setprio', 's_endpgm') or op.startswith(('s_cbranch', 's_movk', 's_addk', 's_cmpk', 's_mulk', 's_getreg', 's_call')):
            return 4
        return 8 if _has_literal(ops) else 4
    if op.startswith(VOP3_ONLY) or op.endswith('_e64') or 'dpp' in s or 'sdwa' in s or 'row_' in s:
        return 8
    if op.startswith('v_cmp'):
        if not ops[0].strip() == 'vcc':
            return 8
        if not ops[2].strip().startswith('v'):
            return 8
        return 8 if _has_literal(ops[1:]) else 4
    if op.startswith('v_'):
        if any(o.strip().startswith(('-v', 'abs', '-s', '|')) for o in ops):
            return 8
        if len(ops) >= 3 and not ops[2].strip().startswith('v'):
            return 8
        return 8 if _has_literal(ops[1:]) else 4
    raise ValueError(line)

class A:
    def __init__(self):
        self.lines = []
    def __call__(self, s):
        for l in s.split('\n'):
            l = l.strip()
            if l:
                self.lines.append(l if l.endswith(':') else '    ' + l)
    def label(self, s):
        self.lines.append(s + ':')
    def raw(self, s):
        self.lines.append(s)
    def text(self):
        return '\n'.join(self.lines) + '\n'

def vr(b, n=1):
    return f'v{b}' if n == 1 else f'v[{b}:{b + n - 1}]'
def ar(b, n=1):
    return f'a{b}' if n == 1 else f'a[{b}:{b + n - 1}]'
def sr(b, n=1):
    return f's{b}' if n == 1 else f's[{b}:{b + n - 1}]'

PROMOTABLE = ('v_add_f32', 'v_exp_f32', 'v_mul_f32', 'v_mov_b32', 'v_sub_f32', 'v_max_f32', 'v_add_u32', 'v_lshlrev_b32', 'v_and_b32')
def emit_gaps(a, gaps, align=True):
    carry = 0
    for g in gaps:
        g = list(g)
        tot = carry + sum(isize(x) for x in g)
        if align and tot % 8:
            for i in range(len(g) - 1, -1, -1):
                op = g[i].split()[0]
                if op in PROMOTABLE and isize(g[i]) == 4:
                    g[i] = g[i].replace(op, op + '_e64', 1)
                    tot += 4
                    break
        carry = tot % 8
        for x in g:
            a(x)
    return carry

def kernel_file(body, launch, vgpr=512, accum=256, sgpr=102, name=NAME + '_kernel'):
    return (HEADER + f'; @launch {launch}\n' +
            '.amdgcn_target "amdgcn-amd-amdhsa--gfx950"\n.text\n'
            f'.globl {name}\n.p2align 8\n.type {name},@function\n{name}:\n' + body +
            '.section .rodata,"a"\n.p2align 6\n'
            f'.amdhsa_kernel {name}\n'
            f'  .amdhsa_next_free_vgpr {vgpr}\n  .amdhsa_next_free_sgpr {sgpr}\n  .amdhsa_accum_offset {accum}\n'
            '  .amdhsa_group_segment_fixed_size 0\n  .amdhsa_kernarg_size 96\n  .amdhsa_user_sgpr_count 2\n'
            '  .amdhsa_user_sgpr_kernarg_segment_ptr 1\n  .amdhsa_system_sgpr_workgroup_id_x 1\n'
            '.end_amdhsa_kernel\n')
```

```python
import sys, json, math, struct
sys.path.insert(0, 'gen')
from asmlib import *

def f2u(x): return '0x%08x' % struct.unpack('<I', struct.pack('<f', x))[0]

WS_O = 0; WS_H = 16 << 20; WS_FLAG = 24 << 20; WS_STAMP = 32 << 20
sH = 4; sQB = 5; sW = 6
SRD_K = 8; SRD_V = 12; SRD_WS = 16; SRD_X = 20; SRD_WQ = 24; SRD_WG = 28; SRD_WU = 32; SRD_WO = 36; SRD_WD = 40; SRD_OUT = 44; SRD_DBG = 48
sOK = 52; sOV = 53; sM = 54; sCNT = 55; sT0 = 56; sT1 = 57; sT2 = 58; sT3 = 59
sXO = 60; sQO = 61; sGO = 62; sWB = 63
sW4K = 88; sRB = 89; sCB = 90; sBO = 56; sFL = 91; sWQB = 92; sWGB = 93
sDL = 95
sST = 64
KA = 8; VAA = 16; DK0 = 28; DK1 = 29; DV0 = 30; DV1 = 31; VAB = 244
Q = 32; S = 96; NM = 160; PA = 176; PB = 192; TMP = 200; ST = 204; THR = 220; LANE = 1; LM = 224; RL = 240
O = 0; KF = 128; VF = 160; ONES = 192
STAGE = 16384
AQ = 8; AG = 12; AC = 16; AX = 20; DQ = 22; DG = 23; DX = 24
XF = 32; ACQ = 96; SX = 224; SXX = 240
AGU = 0; AR = 128; ACS = 160; ONE1 = 176
XBUF = 0; WBUF = 65536; CSBUF = 65536
CB = 32
CA = 192
ACF = 128; ACS_ = 0
CAD = 8
CDW = 16
CL16 = 20
CRW = 21; CRR = 22; COUT = 23; CXR = 24

def mf(d, a_, b_, c):
    return f'v_mfma_f32_16x16x32_bf16 {d}, {a_}, {b_}, {c}'

class Gap:
    def __init__(self, m):
        self.m = m; self.pre = []; self.mem = []; self.valu = []; self.post = []
    def ops(self):
        return [self.m] + self.pre + self.mem + self.valu + self.post
    def units(self):
        u = 0
        for x in self.mem: u += 2 if x.startswith('buffer') else 1
        for x in self.valu: u += 2 if x.startswith(('v_exp', 'v_rcp', 'v_log', 'v_rsq')) else 1
        return u

def place(G, ops, lo, hi=None, kind='mem', cap=2):
    g = lo
    for x in ops:
        pre = []
        if isinstance(x, tuple):
            pre, x = list(x[:-1]), x[-1]
        need = 2 if x.startswith('buffer') else 1
        while G[g].units() + need > cap:
            g += 1
        if hi is not None:
            assert g <= hi, (x, g, hi)
        if pre:
            if ' m0,' in pre[-1]:
                pre.append('s_nop 0')
            G[g].pre += pre
        getattr(G[g], kind).append(x)
    return g

def stamp(a, opt, i):
    if opt.get('stamp'):
        a(f's_memtime s[{sST + 4 * i}:{sST + 4 * i + 1}]')
        a(f's_memrealtime s[{sST + 4 * i + 2}:{sST + 4 * i + 3}]')

def srd(a, base, lo, hi, nrec, add=None, sub=None):
    if add is not None:
        a(f's_add_u32 s{base}, s{lo}, {add}')
        a(f's_addc_u32 s{base + 1}, s{hi}, 0')
    else:
        a(f's_mov_b32 s{base}, s{lo}')
        a(f's_mov_b32 s{base + 1}, s{hi}')
    if sub is not None:
        a(f's_sub_u32 s{base}, s{base}, {sub}')
        a(f's_subb_u32 s{base + 1}, s{base + 1}, 0')
    a(f's_mov_b32 s{base + 2}, {nrec}')
    a(f's_mov_b32 s{base + 3}, 0x20000')

def setup(a, opt):
    a(f'''
    s_cmp_ge_u32 s2, 256
    s_cbranch_scc1 L_end
    s_load_dwordx16 s[64:79], s[0:1], 0
    s_load_dwordx8 s[80:87], s[0:1], 64
    v_lshrrev_b32 v4, 6, v0
    v_and_b32 v1, 63, v0
    v_readfirstlane_b32 {sr(sW)}, v4
    s_and_b32 s3, s2, 7
    s_bfe_u32 s7, s2, 0x20003
    s_lshl_b32 s7, s7, 3
    s_add_u32 {sr(sH)}, s3, s7
    s_lshr_b32 {sr(sQB)}, s2, 5
    s_lshl_b32 {sr(sW4K)}, {sr(sW)}, 12
    s_lshr_b32 s7, s2, 6
    s_lshl_b32 s3, s3, 2
    s_add_u32 {sr(sRB)}, s3, s7
    s_bfe_u32 {sr(sCB)}, s2, 0x30003
    v_and_b32 v2, 15, v1                ; r = l&15
    v_lshrrev_b32 v3, 4, v1             ; g = l>>4
    s_waitcnt lgkmcnt(0)
    ''')
    a(f's_lshl_b32 s3, {sr(sQB)}, 18\ns_lshl_b32 s7, {sr(sW)}, 16\ns_add_u32 s3, s3, s7')
    srd(a, SRD_X, 64, 65, 65536, add='s3')
    a(f's_lshl_b32 s3, {sr(sH)}, 8')
    srd(a, SRD_WQ, 70, 71, 511 * 8192 + 256, add='s3')
    a(f's_lshl_b32 s3, {sr(sH)}, 7\ns_cmp_lt_u32 {sr(sH)}, 28\ns_cselect_b32 s3, s3, 0\ns_cselect_b32 s7, {511 * 3584 + 128}, 0')
    srd(a, SRD_WG, 76, 77, 's7', add='s3')
    srd(a, SRD_WU, 78, 79, 's7', add='s3')

def setup2(a, opt):
    a(f's_lshl_b32 s3, {sr(sH)}, 19')
    srd(a, SRD_K, 66, 67, 524288, add='s3')
    srd(a, SRD_V, 68, 69, 524288 + 2048, add='s3', sub=2048)
    srd(a, SRD_WS, 86, 87, 0x10000000)
    a(f's_lshl_b32 s3, {sr(sCB)}, 7')
    srd(a, SRD_WO, 72, 73, 4095 * 1024 + 128, add='s3')
    srd(a, SRD_WD, 80, 81, 1791 * 1024 + 128, add='s3')
    srd(a, SRD_OUT, 82, 83, 2097152)
    srd(a, SRD_DBG, 84, 85, 256)
    a('s_mov_b32 s96, s64\ns_mov_b32 s97, s65')

def a_setup_dma_addr(a):
    a(f'''
    s_lshl_b32 s3, {sr(sW)}, 3
    v_add_u32 v4, s3, v3                 ; row = 8w + (l>>4)
    v_lshlrev_b32 v5, 2, v3
    v_xor_b32 v5, v5, v2
    v_lshlrev_b32 v5, 4, v5
    v_lshl_add_u32 {vr(DQ)}, v4, 13, v5
    v_lshrrev_b32 v4, 3, v1              ; rho = l>>3
    v_and_b32 v5, 3, v4
    v_lshrrev_b32 v6, 5, v1
    v_lshl_add_u32 v5, v6, 3, v5
    s_lshr_b32 s3, {sr(sW)}, 1
    s_lshl_b32 s3, s3, 4
    s_and_b32 s7, {sr(sW)}, 1
    s_lshl_b32 s7, s7, 2
    s_add_u32 s3, s3, s7
    v_add_u32 v5, s3, v5                 ; W row
    v_mul_u32_u24 v5, 3584, v5
    v_lshlrev_b32 v6, 1, v3
    v_and_b32 v7, 7, v1
    v_xor_b32 v6, v6, v7
    v_lshl_add_u32 {vr(DG)}, v6, 4, v5
    v_xor_b32 v6, v3, v7
    v_lshlrev_b32 v6, 4, v6
    v_lshl_add_u32 {vr(DX)}, v4, 10, v6
    v_xor_b32 {vr(DX + 1)}, 64, {vr(DX)}
    ''')

def a_dma_x(j_par):
    ops = []
    for i in range(8):
        pre = []
        if i % 4 == 0:
            pre.append(f's_add_u32 m0, {sr(sT3)}, {XBUF + j_par * 32768 + (i // 4) * 4096}')
        pre.append(f's_add_u32 {sr(sT0 + (i & 1))}, {sr(sXO)}, {i * 8192 - 1024 * (i & 3)}')
        ops.append(tuple(pre) + (f'buffer_load_dwordx4 {vr(DX + (i & 1))}, {sr(SRD_X, 4)}, {sr(sT0 + (i & 1))} offen offset:{1024 * (i & 3)} lds',))
    return ops, f's_add_u32 {sr(sXO)}, {sr(sXO)}, 128'

def a_dma_w():
    ops = []
    for ks in range(2):
        ops.append((f's_add_u32 m0, {sr(sWQB)}, {ks * 16384}', f's_add_u32 {sr(sT0)}, {sr(sQO)}, {ks * 32 * 8192}',
                    f'buffer_load_dwordx4 {vr(DQ)}, {sr(SRD_WQ, 4)}, {sr(sT0)} offen lds'))
        ops.append((f's_add_u32 {sr(sT1)}, {sr(sQO)}, {ks * 32 * 8192 + 4 * 8192 - 1024}',
                    f'buffer_load_dwordx4 {vr(DQ)}, {sr(SRD_WQ, 4)}, {sr(sT1)} offen offset:1024 lds'))
        ops.append((f's_add_u32 m0, {sr(sWGB)}, {ks * 16384}', f's_add_u32 {sr(sT0)}, {sr(sGO)}, {ks * 32 * 3584}',
                    f'buffer_load_dwordx4 {vr(DG)}, {sr(SRD_WG, 4)}, {sr(sT0)} offen lds'))
        ops.append((f's_add_u32 m0, m0, 4096',
                    f'buffer_load_dwordx4 {vr(DG)}, {sr(SRD_WU, 4)}, {sr(sT0)} offen lds'))
    adv = [f's_add_u32 {sr(sQO)}, {sr(sQO)}, {64 * 8192}', f's_add_u32 {sr(sGO)}, {sr(sGO)}, {64 * 3584}',
           f's_add_u32 {sr(sWB)}, {sr(sWB)}, 1', f's_cmp_eq_u32 {sr(sWB)}, 3', f's_cselect_b32 {sr(sT2)}, -2, 1', f's_cselect_b32 {sr(sWB)}, 0, {sr(sWB)}',
           f's_lshl_b32 {sr(sT2)}, {sr(sT2)}, 15', f's_add_u32 {sr(sWQB)}, {sr(sWQB)}, {sr(sT2)}', f's_add_u32 {sr(sWGB)}, {sr(sWGB)}, {sr(sT2)}']
    return ops, adv

def emit_plain(a, ops):
    for x in ops:
        if isinstance(x, tuple):
            for y in x[:-1]: a(y)
            a('s_nop 0')
            a(x[-1])
        else:
            a(x)

def a_setup_read_addr(a):
    a(f'''
    v_bfe_u32 v4, v1, 2, 2               ; r'
    v_and_b32 v5, 3, v1                  ; c'
    v_lshl_add_u32 v6, v3, 3, v4         ; 8g + r'
    v_lshlrev_b32 v6, 8, v6
    v_lshl_add_u32 v6, v4, 6, v6         ; + (r'<<2)*16
    v_lshl_add_u32 v6, v5, 4, v6         ; + c'*16
    v_add_u32 v6, {WBUF}, v6
    ''')
    for sp in range(4):
        a(f'v_xor_b32 {vr(AQ + sp)}, {sp * 64}, v6')
    a(f'''
    v_bfe_u32 v6, v1, 2, 3               ; rho = 4(g&1) + r'
    v_lshrrev_b32 v7, 1, v6              ; key2
    v_lshlrev_b32 v6, 7, v6
    v_lshl_add_u32 v6, v7, 5, v6
    v_lshl_add_u32 v6, v5, 3, v6
    v_lshrrev_b32 v7, 5, v1
    v_lshl_add_u32 v6, v7, 11, v6
    v_add_u32 v6, {WBUF + 8192}, v6
    ''')
    for nb in range(4):
        a(f'v_xor_b32 {vr(AG + nb)}, {nb * 32}, v6')
    a(f's_cmp_eq_u32 {sr(sW)}, 0\ns_cselect_b64 s[98:99], -1, 0\ns_cmp_lt_u32 {sr(sW)}, 2\ns_cselect_b64 s[100:101], -1, 0')
    a(f's_and_b32 s3, {sr(sW)}, 1\ns_lshl_b32 s3, s3, 12')
    for k in range(4):
        a(f'v_cndmask_b32 v4, {vr(AQ + 2 + (k >> 1))}, {vr(AQ + (k >> 1))}, s[98:99]')
        if k & 1:
            a('v_add_u32 v4, 8, v4')
        a(f'v_add_u32 v5, s3, {vr(AG + k)}')
        a(f'v_cndmask_b32 {vr(AC + k)}, v5, v4, s[100:101]')
    a(f'''
    v_lshrrev_b32 v4, 1, v2
    v_xor_b32 v4, v4, v3
    v_lshlrev_b32 v4, 4, v4
    v_lshl_add_u32 v4, v2, 7, v4
    v_add_u32 {vr(AX)}, {sr(sT3)}, v4
    v_xor_b32 {vr(AX + 1)}, 64, {vr(AX)}
    v_mov_b32 v4, 0x3f803f80
    ''')
    for i in range(4):
        a(f'v_accvgpr_write_b32 {ar(ONE1 + i)}, v4')

def Xreg(par, c, ks): return XF + par * 32 + c * 8 + ks * 4
def accA(nb, c):
    return vr(ACQ + (nb * 4 + c) * 4, 4) if nb < 8 else ar(AGU + ((nb - 8) * 4 + c) * 4, 4)
def a_reads(grp):
    out = []
    for ks in range(2):
        for u in range(2):
            off = ks * 16384 + u * 1024
            if grp < 8:
                ad = AQ + (grp >> 1); off += 8 * (grp & 1)
            elif grp < 16:
                ad = AG + (grp & 3); off += 4096 * ((grp - 8) >> 2)
            else:
                ad = AC + grp - 16
            out.append(f'ds_read_b64_tr_b16 {ar(AR + (grp & 3) * 8 + ks * 4 + 2 * u, 2)}, {vr(ad)} offset:{off}')
    return out
def x_reads(par):
    return [f'ds_read_b128 {vr(Xreg(par, c, ks), 4)}, {vr(AX + ks)} offset:{XBUF + par * 32768 + c * 2048}' for c in range(4) for ks in range(2)]

def a_superstep(par, first, tail, kv_ops=None):
    G = []; start = []
    for grp in range(20):
        start.append(len(G))
        sl = AR + (grp & 3) * 8
        if grp < 16:
            for c in range(4):
                for ks in range(2):
                    d = accA(grp, c)
                    G.append(Gap(mf(d, ar(sl + 4 * ks, 4), vr(Xreg(par, c, ks), 4), '0' if first and ks == 0 else d)))
        else:
            k = grp - 16
            for ks in range(2):
                d = ar(ACS + 4 * k, 4)
                G.append(Gap(mf(d, ar(sl + 4 * ks, 4), ar(ONE1, 4), '0' if first and ks == 0 else d)))
            for ks in range(2):
                d = vr(SX + 4 * k, 4)
                G.append(Gap(mf(d, ar(ONE1, 4), vr(Xreg(par, k, ks), 4), '0' if first and ks == 0 else d)))
            for ks in range(2):
                d = vr(SXX + 4 * k, 4)
                G.append(Gap(mf(d, vr(Xreg(par, k, ks), 4), vr(Xreg(par, k, ks), 4), '0' if first and ks == 0 else d)))
    start.append(len(G))
    for grp in range(18):
        place(G, a_reads(grp + 2), start[grp], start[grp] + 2)
    nx = 0
    if tail < 2:
        G[start[12] + 2].pre.append(f's_waitcnt vmcnt({0 if tail else 16})')
        place(G, x_reads(1 - par), start[12] + 3, start[12] + 7)
    for grp in range(1, 20):
        if grp in (18,):
            continue
        n = 4 if grp < 18 else 0
        if grp == 13 and tail < 2: n = 12
        if grp == 19: n = 4 if tail < 2 else 0
        G[start[grp] - 1].pre.append(f's_waitcnt lgkmcnt({n})')
    if tail < 2:
        G[start[18] - 1].pre += ['s_waitcnt lgkmcnt(0)', 's_barrier']
        vu = [f'v_add_u32 {vr(AQ + i)}, {sr(sDL)}, {vr(AQ + i)}' for i in range(12)]
        place(G, vu[:8], start[14] + 3, start[16] + 5, kind='valu')
        place(G, vu[8:], start[18], start[19] + 5, kind='valu')
        place(G, a_reads(0), start[18], start[18] + 3)
        place(G, a_reads(1), start[19], start[19] + 3)
        G[start[20] - 1].pre.append('s_waitcnt lgkmcnt(4)')
        G[start[13] + 1].pre += [f's_add_u32 {sr(sM)}, {sr(sM)}, 1', f's_cmp_eq_u32 {sr(sM)}, 3', f's_cselect_b32 {sr(sDL)}, -2, 1', f's_cselect_b32 {sr(sM)}, 0, {sr(sM)}']
        G[start[13] + 2].pre += [f's_lshl_b32 {sr(sDL)}, {sr(sDL)}, 15']
    else:
        G[start[18] - 1].pre += ['s_waitcnt lgkmcnt(0)']
    if tail == 0:
        wops, wadv = a_dma_w()
        xops, xadv = a_dma_x(par)
        g = place(G, wops, 3, start[6])
        for i in range(3):
            G[g + 1 + i].pre += wadv[:2] if i == 0 else wadv[2:6] if i == 1 else wadv[6:]
        g = place(G, xops, g + 4, start[11])
        G[g + 1].pre.append(xadv)
    if kv_ops:
        place(G, kv_ops, 3, start[17])
    return G

def phase_a(a, opt):
    a(f's_lshl_b32 {sr(sT3)}, {sr(sW)}, 13')
    a_setup_dma_addr(a)
    a(f's_mov_b32 {sr(sXO)}, 0\ns_mov_b32 {sr(sQO)}, 0\ns_mov_b32 {sr(sGO)}, 0\ns_mov_b32 {sr(sWB)}, 0\ns_mov_b32 {sr(sM)}, 0')
    a(f's_lshl_b32 {sr(sWQB)}, {sr(sW)}, 11\ns_add_u32 {sr(sWQB)}, {sr(sWQB)}, {WBUF}\ns_lshl_b32 {sr(sWGB)}, {sr(sW)}, 10\ns_add_u32 {sr(sWGB)}, {sr(sWGB)}, {WBUF + 8192}')
    for j in range(2):
        xops, xadv = a_dma_x(j); wops, wadv = a_dma_w()
        emit_plain(a, xops); a(xadv); emit_plain(a, wops); emit_plain(a, wadv)
    stamp_after = None
    setup2(a, opt)
    stamp(a, opt, 0)
    a_setup_read_addr(a)
    b_setup_dma_addr(a)
    a(f'''
    s_lshl_b32 s3, {sr(sQB)}, 2
    s_add_u32 s3, s3, {sr(sW)}
    s_lshl_b32 s3, s3, 5
    s_add_u32 s3, s3, {sr(sH)}
    s_lshl_b32 s3, s3, 2
    s_add_u32 s94, s3, {WS_FLAG}
    v_mov_b32 v4, 0
    s_mov_b64 exec, 1
    buffer_store_dword v4, v4, {sr(SRD_WS, 4)}, s94 offen sc0 sc1
    s_mov_b64 exec, -1
    s_waitcnt vmcnt(17)
    ''')
    for x in x_reads(0): a(x)
    a('s_waitcnt lgkmcnt(0)\ns_barrier')
    for x in a_reads(0) + a_reads(1): a(x)
    a('s_waitcnt lgkmcnt(4)')
    a.raw('.p2align 3')
    emit_gaps(a, [g.ops() for g in a_superstep(0, True, 0) + a_superstep(1, False, 0)])
    a(f's_mov_b32 {sr(sCNT)}, 2')
    a.raw('.p2align 3')
    a.label('L_a')
    G = a_superstep(0, False, 0) + a_superstep(1, False, 0)
    G[-4].pre.append(f's_sub_u32 {sr(sCNT)}, {sr(sCNT)}, 1')
    G[-2].pre.append(f's_cmp_lg_u32 {sr(sCNT)}, 0')
    G[-1].post.append('s_cbranch_scc1 L_a')
    emit_gaps(a, [g.ops() for g in G])
    a.raw('.p2align 3')
    emit_gaps(a, [g.ops() for g in a_superstep(0, False, 1) + a_superstep(1, False, 2, kv_ops=b_prologue_dma())])
    stamp(a, opt, 1)
    a_epilogue(a, opt)

NMEAN = 8; ALPHA = 12; RS2 = 16
def a_epilogue(a, opt):
    a(f'''
    v_lshlrev_b32 v4, 4, v3
    s_lshl_b32 s3, {sr(sW)}, 8
    v_add_u32 v5, s3, v4
    v_add_u32 v5, {CSBUF}, v5
    v_add_u32 v4, {CSBUF}, v4
    v_cmp_eq_u32 vcc, 0, v2
    s_nop 7
    s_and_saveexec_b64 s[98:99], vcc
    ''')
    for k in range(4):
        a(f'ds_write_b128 v5, {ar(ACS + 4 * k, 4)} offset:{64 * k}')
    a('s_mov_b64 exec, s[98:99]')
    a(f'''
    v_and_b32 v6, 3, v1
    v_cmp_eq_u32 s[98:99], 1, v6
    v_cmp_eq_u32 s[100:101], 2, v6
    v_cmp_eq_u32 vcc, 3, v6
    v_lshrrev_b32 v6, 2, v2
    v_cmp_eq_u32 s[92:93], v6, v3
    ''')
    for c in range(4):
        b = SXX + 4 * c
        a(f'v_cndmask_b32 {vr(b)}, {vr(b)}, {vr(b + 1)}, s[98:99]')
        a(f'v_cndmask_b32 {vr(b)}, {vr(b)}, {vr(b + 2)}, s[100:101]')
        a(f'v_cndmask_b32 {vr(b)}, {vr(b)}, {vr(b + 3)}, vcc')
        a(f'v_cndmask_b32 {vr(b)}, 0, {vr(b)}, s[92:93]')
    for sw in ('v_permlane32_swap_b32', 'v_permlane16_swap_b32'):
        for c in range(4):
            a(f'v_mov_b32 {vr(SXX + 4 * c + 1)}, {vr(SXX + 4 * c)}')
        a('s_nop 0')
        for c in range(4):
            a(f'{sw} {vr(SXX + 4 * c)}, {vr(SXX + 4 * c + 1)}')
        for c in range(4):
            a(f'v_add_f32 {vr(SXX + 4 * c)}, {vr(SXX + 4 * c)}, {vr(SXX + 4 * c + 1)}')
    sc = (128 ** -0.5) * math.log2(math.e)
    for c in range(4):
        a(f'v_mul_f32 {vr(NMEAN + c)}, {f2u(-1 / 512)}, {vr(SX + 4 * c)}')
        a(f'v_mul_f32 {vr(SXX + 4 * c)}, {f2u(1 / 512)}, {vr(SXX + 4 * c)}')
        a(f'v_fma_f32 {vr(SXX + 4 * c)}, -{vr(NMEAN + c)}, {vr(NMEAN + c)}, {vr(SXX + 4 * c)}')
        a(f'v_max_f32 {vr(SXX + 4 * c)}, 0, {vr(SXX + 4 * c)}')
        a(f'v_add_f32 {vr(SXX + 4 * c)}, {f2u(1e-5)}, {vr(SXX + 4 * c)}')
        a(f'v_rsq_f32 {vr(ALPHA + c)}, {vr(SXX + 4 * c)}')
        a(f'v_rcp_f32 {vr(RS2 + c)}, {vr(SXX + 4 * c)}')
    for c in range(4):
        a(f'v_mul_f32 {vr(ALPHA + c)}, {f2u(sc)}, {vr(ALPHA + c)}')
    a('s_waitcnt lgkmcnt(0)\ns_barrier')
    CSR = 224
    for nb in range(8):
        a(f'ds_read_b128 {vr(CSR + 4 * nb, 4)}, v4 offset:{64 * nb}')
    def bc(r):
        e = r & ~1
        return vr(e, 2), (r & 1)
    a('s_waitcnt lgkmcnt(0)')
    for c in range(4):
        nm, nh = bc(NMEAN + c); al, ah = bc(ALPHA + c)
        for nb in range(8):
            b = ACQ + (nb * 4 + c) * 4
            for i in (0, 2):
                a(f'v_pk_fma_f32 {vr(b + i, 2)}, {vr(CSR + 4 * nb + i, 2)}, {nm}, {vr(b + i, 2)} op_sel:[0,{nh},0] op_sel_hi:[1,{nh},1]')
            for i in (0, 2):
                a(f'v_pk_mul_f32 {vr(b + i, 2)}, {vr(b + i, 2)}, {al} op_sel:[0,{ah}] op_sel_hi:[1,{ah}]')
            for i in (0, 2):
                a(f'v_cvt_pk_bf16_f32 {vr(Q + 16 * c + 2 * nb + (i >> 1))}, {vr(b + i)}, {vr(b + i + 1)}')
    for nb in range(8):
        a(f'ds_read_b128 {vr(CSR + 4 * nb, 4)}, v4 offset:{64 * (8 + nb)}')
    a(f'''
    s_lshl_b32 s3, {sr(sQB)}, 4
    s_lshl_b32 s7, {sr(sW)}, 2
    s_add_u32 s3, s3, s7
    s_mul_i32 s3, s3, 57344
    s_lshl_b32 s7, {sr(sH)}, 11
    s_add_u32 s3, s3, s7
    s_add_u32 s3, s3, {WS_H}
    v_lshlrev_b32 v5, 4, v1
    s_cmp_ge_u32 {sr(sH)}, 28
    s_waitcnt lgkmcnt(0)
    s_cbranch_scc1 L_noh
    ''')
    n = 0
    for c in range(4):
        nm, nh = bc(NMEAN + c); rs, rh = bc(RS2 + c)
        for pr in range(2):
            pk = 96 + (n & 7) * 4; n += 1
            for u in range(2):
                nb = 2 * pr + u
                tg = 128 + u * 8; tu = tg + 4
                for i in range(4):
                    a(f'v_accvgpr_read_b32 {vr(tg + i)}, {ar(AGU + (nb * 4 + c) * 4 + i)}')
                    a(f'v_accvgpr_read_b32 {vr(tu + i)}, {ar(AGU + ((nb + 4) * 4 + c) * 4 + i)}')
                for i in (0, 2):
                    a(f'v_pk_fma_f32 {vr(tg + i, 2)}, {vr(CSR + 4 * nb + i, 2)}, {nm}, {vr(tg + i, 2)} op_sel:[0,{nh},0] op_sel_hi:[1,{nh},1]')
                    a(f'v_pk_fma_f32 {vr(tu + i, 2)}, {vr(CSR + 16 + 4 * nb + i, 2)}, {nm}, {vr(tu + i, 2)} op_sel:[0,{nh},0] op_sel_hi:[1,{nh},1]')
                for i in (0, 2):
                    a(f'v_pk_mul_f32 {vr(tg + i, 2)}, {vr(tg + i, 2)}, {rs} op_sel:[0,{rh}] op_sel_hi:[1,{rh}]')
                for i in (0, 2):
                    a(f'v_pk_mul_f32 {vr(tg + i, 2)}, {vr(tg + i, 2)}, {vr(tu + i, 2)}')
                for i in (0, 2):
                    a(f'v_cvt_pk_bf16_f32 {vr(pk + 2 * u + (i >> 1))}, {vr(tg + i)}, {vr(tg + i + 1)}')
            a(f'buffer_store_dwordx4 {vr(pk, 4)}, v5, {sr(SRD_WS, 4)}, s3 offen offset:{1024 * pr} sc0 sc1')
        if c < 3:
            a('s_add_u32 s3, s3, 57344')
    a('s_waitcnt vmcnt(8)\ns_branch L_hdone')
    a.label('L_noh')
    a('s_waitcnt vmcnt(0)')
    a.label('L_hdone')

def Sreg(buf, c, kb=0): return S + buf * 32 + c * 8 + kb * 4
def Qreg(c, s): return Q + c * 16 + s * 4
def Preg(c, par): return (PA + par * 8 + c * 4) if c < 2 else PB + (c - 2) * 4
def Oreg(c, db): return O + c * 32 + db * 4
def LMreg(hf, pp): return LM + hf * 8 + pp * 4
def qk_mfma(buf, c, kb, s, c0=None):
    d = vr(Sreg(buf, c, kb), 4)
    cc = d if s else (c0 if c0 is not None else vr(NM + 4 * c, 4))
    return mf(d, ar(KF + 4 * (kb * 4 + s), 4), vr(Qreg(c, s), 4), cc)
def pv_mfma(c, par, db, c0=None):
    d = ar(Oreg(c, db), 4)
    return mf(d, ar(VF + db * 4, 4), vr(Preg(c, par), 4), d if c0 is None else c0)
def sum_mfma(c, par, pp_in):
    hf = c >> 1
    d = vr(LMreg(hf, 1 - pp_in), 4)
    cc = vr(LMreg(hf, pp_in), 4) if (c & 1) == 0 else d
    return mf(d, ar(ONES + 4 * (c & 1), 4), vr(Preg(c, par), 4), cc)
def k_read(slot, kb, s, base=None):
    if base is not None:
        return f'ds_read_b128 {ar(KF + 4 * (kb * 4 + s), 4)}, {vr(base + s)} offset:{slot * STAGE + kb * 8192}'
    return f'ds_read_b128 {ar(KF + 4 * (kb * 4 + s), 4)}, {vr(KA + 4 * (slot >> 2) + s)} offset:{(slot & 3) * STAGE + kb * 8192}'
def v_read(slot, db, u):
    return f'ds_read_b64_tr_b16 {ar(VF + db * 4 + 2 * u, 2)}, {vr((VAB if slot >= 4 else VAA) + db)} offset:{(slot & 3) * STAGE + u * 8192 + 2048}'
def dma_k(i):
    return f'buffer_load_dwordx4 {vr(DK0 + i)}, {sr(SRD_K, 4)}, {sr(sOK)} offen offset:{1024 * i} lds'
def dma_v(i):
    return f'buffer_load_dwordx4 {vr(DV0 + i)}, {sr(SRD_V, 4)}, {sr(sOV)} offen offset:{2048 + 1024 * i} lds'
def stage_dma(slot, k=True, v=True):
    ops = []
    pre = (f's_add_u32 m0, {sr(sW4K)}, {slot * STAGE}',)
    if k:
        ops += [pre + (f's_add_u32 {sr(sOK)}, {sr(sOK)}, 8192', dma_k(0)), dma_k(1)]; pre = ()
    if v:
        ops += [pre + (f's_add_u32 {sr(sOV)}, {sr(sOV)}, 8192', dma_v(0)), dma_v(1)]
    return ops

def b_setup_dma_addr(a):
    a(f'''
    s_lshl_b32 s3, {sr(sW)}, 3
    v_add_u32 v5, s3, v3          ; row = 8w + (l>>4)
    v_and_b32 v7, 15, v5
    v_xor_b32 v7, v7, v2
    v_lshlrev_b32 v7, 4, v7
    v_lshl_add_u32 {vr(DK0)}, v5, 8, v7
    v_xor_b32 {vr(DK1)}, 64, {vr(DK0)}
    v_lshlrev_b32 v7, 1, v3
    v_xor_b32 v7, v7, v2
    v_lshlrev_b32 v7, 4, v7
    v_lshl_add_u32 {vr(DV0)}, v5, 8, v7
    v_xor_b32 {vr(DV1)}, 128, {vr(DV0)}
    s_mov_b32 {sr(sOK)}, {-8192 & 0xffffffff}
    s_mov_b32 {sr(sOV)}, {-8192 & 0xffffffff}
    ''')

def b_prologue_dma():
    ops = stage_dma(8, v=False) + stage_dma(9, v=False)
    for sl in range(4):
        ops += stage_dma(sl)
    return ops

def b_setup_read_addr(a):
    a(f'''
    v_lshrrev_b32 v4, 3, v2
    v_lshlrev_b32 v4, 12, v4      ; (r>>3)*4096
    v_and_b32 v5, 7, v2
    v_lshl_add_u32 v4, v5, 8, v4  ; + (r&7)*256
    v_xor_b32 v5, v2, v3
    v_lshl_add_u32 v4, v5, 4, v4  ; + (r^g)*16
    ''')
    for s in range(4):
        a(f'v_xor_b32 {vr(KA + s)}, {s * 64}, v4')
        a(f'v_add_u32 {vr(KA + 4 + s)}, 65536, {vr(KA + s)}')
        a(f'v_add_u32 {vr(ST + 8 + s)}, 131072, {vr(KA + s)}')
    a(f'''
    v_bfe_u32 v4, v1, 2, 3        ; row&7
    v_lshlrev_b32 v5, 8, v4
    v_lshl_add_u32 v5, v4, 5, v5
    v_lshrrev_b32 v6, 5, v1
    v_lshl_add_u32 v5, v6, 12, v5
    v_and_b32 v6, 3, v1
    v_lshl_add_u32 v5, v6, 3, v5
    ''')
    for db in range(8):
        a(f'v_xor_b32 {vr(VAA + db)}, {db * 32}, v5')
        a(f'v_add_u32 {vr(VAB + db)}, 65536, {vr(VAA + db)}')
    a(f'''
    v_mov_b32 {vr(THR)}, 0x4e800000      ; 2^30
    v_mov_b32 v4, 0x3f803f80
    v_cmp_gt_u32 vcc, 8, v2
    s_nop 1
    v_cndmask_b32 v5, 0, v4, vcc
    v_xor_b32 v6, v5, v4
    ''')
    for i in range(4):
        a(f'v_accvgpr_write_b32 {ar(ONES + i)}, v5')
        a(f'v_accvgpr_write_b32 {ar(ONES + 4 + i)}, v6')

def xlane(a, op, dst, t2):
    for sw in ('v_permlane32_swap_b32', 'v_permlane16_swap_b32'):
        a(f'v_mov_b32 {vr(t2)}, {vr(dst)}')
        a('s_nop 1')
        a(f'{sw} {vr(dst)}, {vr(t2)}')
        a(f'{op} {vr(dst)}, {vr(dst)}, {vr(t2)}')

def rowmax(a, base, dst, t2):
    a(f'v_max3_f32 {vr(dst)}, {vr(base)}, {vr(base + 1)}, {vr(base + 2)}')
    a(f'v_max3_f32 {vr(dst)}, {vr(dst)}, {vr(base + 3)}, {vr(base + 4)}')
    a(f'v_max3_f32 {vr(dst)}, {vr(dst)}, {vr(base + 5)}, {vr(base + 6)}')
    a(f'v_max_f32 {vr(dst)}, {vr(dst)}, {vr(base + 7)}')
    xlane(a, 'v_max_f32', dst, t2)

def softmax_c(a, sbase, pbase, tb):
    for r in range(4):
        a(f'v_exp_f32 {vr(tb)}, {vr(sbase + 2 * r)}')
        a(f'v_exp_f32 {vr(tb + 1)}, {vr(sbase + 2 * r + 1)}')
        a('s_nop 0')
        a(f'v_cvt_pk_bf16_f32 {vr(pbase + r)}, {vr(tb)}, {vr(tb + 1)}')

def b_prologue(a, opt):
    b_setup_read_addr(a)
    a('s_barrier')
    for kb in range(2):
        for s in range(4):
            a(k_read(0, kb, s, base=ST + 8))
    a(f's_cmp_eq_u32 {sr(sW)}, 0\ns_cselect_b32 {sr(sFL)}, 7, 64')
    for i in range(128):
        a(f'v_accvgpr_write_b32 {ar(O + i)}, 0')
    for i in range(16):
        a(f'v_mov_b32 {vr(LM + i)}, 0')
    a('s_waitcnt lgkmcnt(0)')
    for c in range(4):
        for kb in range(2):
            for s in range(4):
                a(qk_mfma(0, c, kb, s, c0='0'))
    for kb in range(2):
        for s in range(4):
            a(k_read(1, kb, s, base=ST + 8))
    a('s_nop 3')
    for c in range(4):
        rowmax(a, Sreg(0, c), ST, ST + 1)
        for i in range(8):
            a(f'v_sub_f32 {vr(Sreg(0, c) + i)}, {vr(Sreg(0, c) + i)}, {vr(ST)}')
        for i in range(4):
            a(f'v_sub_f32 {vr(NM + 4 * c + i)}, 0, {vr(ST)}')
    for c in range(2):
        softmax_c(a, Sreg(0, c), Preg(c, 0), ST)
    a('s_waitcnt lgkmcnt(0)')

def step_gaps(slot, tag, opt, dma=True, final=False, extra=None):
    p = slot & 1
    qk = [qk_mfma(1 - p, c, kb, s) for c in range(4) for kb in range(2) for s in range(4)]
    pv = [pv_mfma(c, p, db) for c in range(4) for db in range(8)]
    mfs = qk[:4] + [sum_mfma(0, p, p), sum_mfma(1, p, p)] + qk[4:] + pv[:4] + [sum_mfma(2, p, p), sum_mfma(3, p, p)] + pv[4:]
    G = [Gap(m) for m in mfs]
    for hf, g0 in ((1, 0), (0, 34)):
        if final and hf == 0:
            continue
        for e in range(16):
            c = 2 * hf + (e >> 3)
            src = (Sreg(p, 2) if hf else Sreg(1 - p, 0)) + e
            G[g0 + 2 * e].valu.append(f'v_exp_f32 {vr(TMP + (e & 3))}, {vr(src)}')
            if e & 1:
                G[g0 + 2 * e + 1].valu.append(f'v_cvt_pk_bf16_f32 {vr(Preg(c, 1 - p) + ((e & 7) >> 1))}, {vr(TMP + ((e - 1) & 3))}, {vr(TMP + (e & 3))}')
    for hf, g0 in ((0, 0), (1, 34)):
        late = final and hf == 1
        G[g0 + (13 if late else 9)].valu.append(f'v_cmp_nle_f32 vcc, {vr(LMreg(hf, 1 - p))}, {vr(THR)}')
        G[g0 + (16 if late else 15)].post += [f's_cbranch_vccnz L_slow{hf}_{tag}', f'L_back{hf}_{tag}:']
    vplace = [1, 1, 3, 5, 5, 7, 9, 11, 13, 13, 17, 17, 19, 21, 21, 23]
    kplace = [35, 35, 37, 41, 43, 45, 53, 57]
    for g, x in zip(vplace, [v_read(slot, db, u) for db in range(8) for u in range(2)]):
        G[g].mem.append(x)
    if not final:
        for g, x in zip(kplace, [k_read(slot, kb, s) for kb in range(2) for s in range(4)]):
            G[g].mem.append(x)
    G[33].pre.append('s_waitcnt lgkmcnt(0)')
    ops = []
    if dma and (slot & 3) < 2:
        s0 = ((slot & 4) ^ 4) + 2 * (slot & 1)
        ops = stage_dma(s0) + stage_dma(s0 + 1)
    if extra:
        ops = extra
    for g, x in zip([25, 29, 32, 39, 47, 51, 55, 59, 63, 66], ops):
        place(G, [x], g, g)
    if (slot & 3) == 3:
        G[66].pre += ['s_waitcnt vmcnt(0) lgkmcnt(0)', 's_barrier'] if not final else ['s_barrier']
    else:
        G[67].pre.append('s_waitcnt lgkmcnt(0)')
    if final:
        out = []
        for g in G:
            if g.m in qk:
                g.m = 's_nop 0'
            out.append(g)
        return out
    return G

def gapops(G):
    return [[x for x in g.ops() if x is not None] for g in G]

def slow_path(a, p, hf, final=False):
    a.label(f'L_slowfn{hf}_{p}_{int(final)}')
    a('s_nop 15')
    for c in (2 * hf, 2 * hf + 1):
        cur = Sreg(p, c); nxt = Sreg(1 - p, c)
        d = ST + 4 + (c & 1); al = ST + 6 + (c & 1)
        rowmax(a, cur, d, ST + 1)
        a(f'v_max_f32 {vr(d)}, 0, {vr(d)}')
        a(f'v_mov_b32 {vr(ST)}, {vr(LMreg(hf, p))}')
        a(f'v_mov_b32 {vr(ST + 1)}, {vr(LMreg(hf, p))}')
        a('s_nop 1')
        a(f'v_permlane32_swap_b32 {vr(ST)}, {vr(ST + 1)}')
        a(f'v_log_f32 {vr(ST)}, {vr(ST + (c & 1))}')
        a('s_nop 0')
        a(f'v_max_f32 {vr(d)}, {vr(d)}, {vr(ST)}')
        a(f'v_sub_f32 {vr(al)}, 0, {vr(d)}')
        a(f'v_exp_f32 {vr(al)}, {vr(al)}')
        for i in range(8):
            a(f'v_sub_f32 {vr(cur + i)}, {vr(cur + i)}, {vr(d)}')
        if not final:
            for i in range(8):
                a(f'v_sub_f32 {vr(nxt + i)}, {vr(nxt + i)}, {vr(d)}')
        for i in range(4):
            a(f'v_sub_f32 {vr(NM + 4 * c + i)}, {vr(NM + 4 * c + i)}, {vr(d)}')
        for i in range(32):
            a(f'v_accvgpr_read_b32 {vr(ST + 2)}, {ar(Oreg(c, 0) + i)}')
            a(f'v_mul_f32 {vr(ST + 2)}, {vr(ST + 2)}, {vr(al)}')
            a(f'v_accvgpr_write_b32 {ar(Oreg(c, 0) + i)}, {vr(ST + 2)}')
        softmax_c(a, cur, Preg(c, p), ST + 2)
    a(f'v_cmp_gt_u32 vcc, 32, {vr(LANE)}')
    a('s_nop 1')
    a(f'v_cndmask_b32 {vr(ST)}, {vr(ST + 7)}, {vr(ST + 6)}, vcc')
    for i in range(4):
        a(f'v_mul_f32 {vr(LMreg(hf, p) + i)}, {vr(LMreg(hf, p) + i)}, {vr(ST)}')
    a('s_nop 1')
    a(sum_mfma(2 * hf, p, p)); a(sum_mfma(2 * hf + 1, p, p))
    a('s_nop 7')
    a('s_setpc_b64 s[98:99]')

SLOW = []
def phase_b(a, opt):
    b_prologue(a, opt)
    stamp(a, opt, 2)
    a(f's_mov_b32 {sr(sCNT)}, 7')
    a.raw('.p2align 6')
    a.label('L_attn')
    G = []
    for sl in range(8):
        G += step_gaps(sl, f's{sl}', opt); SLOW.append((sl & 1, f's{sl}', False))
    G[4 * 68 + 27].pre.append(f's_cmp_eq_u32 {sr(sCNT)}, {sr(sFL)}')
    G[4 * 68 + 27].post += ['s_cbranch_scc1 L_cnt', 'L_cntback:']
    G[-6].pre.append(f's_sub_u32 {sr(sCNT)}, {sr(sCNT)}, 1')
    G[-4].pre.append(f's_cmp_lg_u32 {sr(sCNT)}, 0')
    G[-1].post.append('s_cbranch_scc1 L_attn')
    emit_gaps(a, gapops(G))
    a.raw('.p2align 3')
    G = []
    for sl in range(8):
        G += step_gaps(sl, f't{sl}', opt, dma=sl < 4, final=sl == 7); SLOW.append((sl & 1, f't{sl}', sl == 7))
    emit_gaps(a, gapops(G))
    stamp(a, opt, 3)

def finalize_o(a, opt):
    a(f'''
    s_lshl_b32 s3, {sr(sQB)}, 4
    s_lshl_b32 s7, {sr(sW)}, 2
    s_add_u32 s3, s3, s7
    s_lshl_b32 s3, s3, 5
    s_add_u32 s3, s3, {sr(sH)}
    s_lshl_b32 s3, s3, 12
    v_lshlrev_b32 {vr(CL16)}, 4, {vr(LANE)}
    s_nop 3
    ''')
    for c in range(4):
        a(f'v_mov_b32 {vr(ST + 2 * c)}, {vr(LMreg(c >> 1, 0))}')
        a(f'v_mov_b32 {vr(ST + 2 * c + 1)}, {vr(LMreg(c >> 1, 0))}')
    for c in range(4):
        a(f'v_permlane32_swap_b32 {vr(ST + 2 * c)}, {vr(ST + 2 * c + 1)}')
    for c in range(4):
        a(f'v_rcp_f32 {vr(RL + c)}, {vr(ST + 2 * c + (c & 1))}')
    n = 0
    for c in range(4):
        e = (RL + c) & ~1; hh = (RL + c) & 1
        for f in range(4):
            tb = 160 + (n & 1) * 8
            pb = 176 + (n & 7) * 4
            n += 1
            for i in range(8):
                a(f'v_accvgpr_read_b32 {vr(tb + i)}, {ar(Oreg(c, 2 * f) + i)}')
            for i in range(0, 8, 2):
                a(f'v_pk_mul_f32 {vr(tb + i, 2)}, {vr(tb + i, 2)}, {vr(e, 2)} op_sel:[0,{hh}] op_sel_hi:[1,{hh}]')
            for i in range(4):
                a(f'v_cvt_pk_bf16_f32 {vr(pb + i)}, {vr(tb + 2 * i)}, {vr(tb + 2 * i + 1)}')
            a(f'buffer_store_dwordx4 {vr(pb, 4)}, {vr(CL16)}, {sr(SRD_WS, 4)}, s3 offen offset:{1024 * f} sc0 sc1')
        if c < 3:
            a(f's_add_u32 s3, s3, {32 * 4096}')

NF = 14; NS = 32; DEPTH = 7
def c_setup(a):
    a(f'''
    v_bfe_u32 v6, v1, 2, 3               ; rho = 4(g&1) + r'
    v_lshrrev_b32 v7, 1, v6              ; key2
    v_lshlrev_b32 v6, 7, v6
    v_lshl_add_u32 v6, v7, 5, v6
    v_and_b32 v5, 3, v1
    v_lshl_add_u32 v6, v5, 3, v6
    v_lshrrev_b32 v7, 5, v1
    v_lshl_add_u32 v6, v7, 10, v6        ; + (g>>1)*1024
    v_add_u32 v6, {sr(sW4K)}, v6
    ''')
    for nb in range(4):
        a(f'v_xor_b32 {vr(CAD + nb)}, {nb * 32}, v6')
        a(f'v_add_u32 {vr(CAD + 4 + nb)}, 65536, {vr(CAD + nb)}')
    a(f'''
    v_lshrrev_b32 v4, 3, v1              ; rho
    v_lshlrev_b32 v6, 1, v3
    v_and_b32 v7, 7, v1
    v_xor_b32 v6, v6, v7
    v_lshlrev_b32 v6, 4, v6
    v_lshl_add_u32 {vr(CDW)}, v4, 10, v6
    ''')
    for i in range(1, 4):
        a(f'v_add_u32 {vr(CDW + i)}, {7168 * i}, {vr(CDW)}')
    for j in range(4):
        a(f'''
        s_add_u32 s3, {sr(sW)}, {j}
        s_and_b32 s3, s3, 3
        s_lshl_b32 s7, {sr(sRB)}, 2
        s_add_u32 s3, s3, s7
        s_mul_i32 s3, s3, 57344
        s_mul_i32 s7, {sr(sW)}, {NF * 1024}
        s_add_u32 s3, s3, s7
        s_add_u32 {sr(sBO + j)}, s3, {WS_H}
        ''')
    a(f's_mul_i32 {sr(sOK)}, {sr(sW)}, {NF * 32768}')

def c_switch_to_s():
    ops = []
    for j in range(4):
        ops += [f's_add_u32 s3, {sr(sW)}, {j}', 's_and_b32 s3, s3, 3', f's_lshl_b32 s7, {sr(sRB)}, 2', 's_add_u32 s3, s3, s7',
                's_lshl_b32 s3, s3, 17', f's_lshl_b32 s7, {sr(sW)}, 15', f's_add_u32 {sr(sBO + j)}, s3, s7']
    ops.append(f's_lshl_b32 {sr(sOK)}, {sr(sW)}, 20')
    return ops

def c_issue(t):
    sl = t & 7
    k = t if t < NF else t - NF
    srdw = SRD_WD if t < NF else SRD_WO
    ops = [f's_add_u32 m0, {sr(sW4K)}, {sl * STAGE}']
    mem = []
    for i in range(4):
        mem.append(f'buffer_load_dwordx4 {vr(CDW + i)}, {sr(srdw, 4)}, {sr(sOK)} offen offset:{1024 * i} lds')
    for j in range(4):
        mem.append(f'buffer_load_dwordx4 {vr(CB + sl * 16 + j * 4, 4)}, {vr(CL16)}, {sr(SRD_WS, 4)}, {sr(sBO + j)} offen offset:{1024 * (k & 3)} sc0 sc1')
    post = [f's_add_u32 {sr(sOK)}, {sr(sOK)}, 32768']
    if (k & 3) == 3:
        post += [f's_add_u32 {sr(sBO + j)}, {sr(sBO + j)}, 4096' for j in range(4)]
    return ops, mem, post

def c_reads(t):
    sl = t & 7
    return [f'ds_read_b64_tr_b16 {ar(CA + (t & 1) * 16 + nb * 4 + 2 * u, 2)}, {vr(CAD + 4 * (sl >> 2) + nb)} offset:{(sl & 3) * STAGE + u * 2048}' for nb in range(4) for u in range(2)]

def poll(a, name, srdreg, soff, voff_setup, nlanes, expect):
    a(f's_mov_b64 exec, {(1 << nlanes) - 1}')
    a.label(name)
    a(f'''
    buffer_load_dword v5, v4, {sr(srdreg, 4)}, {soff} offen sc0 sc1
    s_waitcnt vmcnt(0)
    v_cmp_ne_u32 vcc, {expect}, v5
    s_cbranch_vccz {name}_ok
    s_sleep 1
    s_branch {name}
    {name}_ok:
    s_mov_b64 exec, -1
    ''')

def phase_c(a, opt):
    T = NF + NS
    c_setup(a)
    a(f'v_mov_b32 v4, 0\ns_lshr_b32 s3, {sr(sRB)}, 2\ns_lshl_b32 s3, s3, 2')
    poll(a, 'L_pollh', SRD_DBG, 's3', None, 1, 32)
    finalize_o(a, opt)
    for t in range(DEPTH - 2):
        o, m, p = c_issue(t)
        for x in o: a(x)
        a('s_nop 0')
        for x in m + p: a(x)
    a(f'''
    s_waitcnt vmcnt({8 * (DEPTH - 2)})
    v_mov_b32 v4, 1
    v_mov_b32 v5, 0
    s_mov_b64 exec, 1
    buffer_store_dword v4, v5, {sr(SRD_WS, 4)}, s94 offen sc0 sc1
    s_mov_b64 exec, -1
    ''')
    for t in range(DEPTH - 2, DEPTH):
        o, m, p = c_issue(t)
        for x in o: a(x)
        a('s_nop 0')
        for x in m + p: a(x)
    stamp(a, opt, 4)
    a(f's_waitcnt vmcnt({8 * (DEPTH - 1) + 1})')
    for x in c_reads(0): a(x)
    a.raw('.p2align 3')
    for t in range(T):
        acc = ACF if t < NF else ACS_
        first = t in (0, NF)
        G = []
        for nb in range(4):
            for j in range(4):
                d = ar(acc + (nb * 4 + j) * 4, 4)
                G.append(Gap(mf(d, ar(CA + (t & 1) * 16 + nb * 4, 4), vr(CB + (t & 7) * 16 + j * 4, 4), '0' if first else d)))
        pre = ['s_waitcnt lgkmcnt(0)']
        tn = t + DEPTH
        if tn == NF:
            for x in pre: a(x)
            pre = []
            for x in c_switch_to_s(): a(x)
            a(f's_lshl_b32 s3, {sr(sRB)}, 7\ns_lshl_b32 s7, {sr(sW)}, 5\ns_add_u32 s3, s3, s7\ns_add_u32 s3, s3, {WS_FLAG}\nv_lshlrev_b32 v4, 2, {vr(LANE)}')
            poll(a, 'L_pollo', SRD_WS, 's3', None, 8, 1)
            a.raw('.p2align 3')
        for x in pre: a(x)
        if tn < T:
            o, m, p = c_issue(tn)
            G[0].pre += o
            place(G, m, 1, 8)
            G[9].pre += p
        if t + 1 < T:
            outstanding = min(T - 1, tn) - (t + 1)
            G[9].pre.append(f's_waitcnt vmcnt({8 * outstanding})')
            place(G, c_reads(t + 1), 10, 13)
        if t == T - 8:
            G[14].pre += [f's_lshl_b32 s3, {sr(sRB)}, 16', f's_lshl_b32 s7, {sr(sW)}, 14', 's_add_u32 s3, s3, s7', f's_lshl_b32 s7, {sr(sCB)}, 7', f's_add_u32 {sr(sOV)}, s3, s7']
        emit_gaps(a, gapops(G), align=False)
    stamp(a, opt, 5)
    a(f'''
    s_mov_b32 s{SRD_X}, s96
    s_mov_b32 s{SRD_X + 1}, s97
    s_mov_b32 s{SRD_X + 2}, 2097152
    s_mov_b32 s{SRD_X + 3}, 0x20000
    v_and_b32 v4, 15, {vr(LANE)}
    v_lshrrev_b32 v5, 4, {vr(LANE)}
    v_lshlrev_b32 v5, 3, v5
    v_lshl_add_u32 {vr(COUT)}, v4, 10, v5
    ''')
    for nb in range(4):
        a(f'buffer_load_dwordx2 {vr(CXR + 2 * nb, 2)}, {vr(COUT)}, {sr(SRD_X, 4)}, {sr(sOV)} offen offset:{32 * nb}')
    a('s_barrier')
    for j in range(1, 4):
        a(f's_add_u32 s3, {sr(sW)}, {j}\ns_and_b32 s3, s3, 3\ns_mul_i32 s3, s3, 24576\ns_add_u32 s3, s3, {(j - 1) * 8192}\nv_add_u32 {vr(CRW)}, s3, {vr(CL16)}')
        for ai, acc in enumerate((ACF, ACS_)):
            for nb in range(4):
                a(f'ds_write_b128 {vr(CRW)}, {ar(acc + (nb * 4 + j) * 4, 4)} offset:{ai * 4096 + nb * 1024}')
    a(f's_mul_i32 s3, {sr(sW)}, 24576\nv_add_u32 {vr(CRR)}, s3, {vr(CL16)}')
    for ai, acc in enumerate((ACF, ACS_)):
        for nb in range(4):
            for i in range(4):
                a(f'v_accvgpr_read_b32 {vr(160 + ai * 16 + nb * 4 + i)}, {ar(acc + nb * 16 + i)}')
    a('s_waitcnt lgkmcnt(0)\ns_barrier')
    for r in range(3):
        for k in range(8):
            a(f'ds_read_b128 {vr(32 + r * 32 + k * 4, 4)}, {vr(CRR)} offset:{r * 8192 + k * 1024}')
    for r in range(3):
        a(f's_waitcnt lgkmcnt({min(15, 8 * (2 - r))})' if r < 2 else 's_waitcnt lgkmcnt(0)')
        if r == 0:
            a('s_waitcnt lgkmcnt(8)') if False else None
        for k in range(0, 32, 2):
            a(f'v_pk_add_f32 {vr(160 + k, 2)}, {vr(160 + k, 2)}, {vr(32 + r * 32 + k, 2)}')
    a('s_waitcnt vmcnt(0)')
    for k in range(16):
        a(f'v_mul_f32 {vr(192 + k)}, {f2u(-math.log2(math.e))}, {vr(160 + k)}')
    for k in range(16):
        a(f'v_exp_f32 {vr(192 + k)}, {vr(192 + k)}')
    for k in range(16):
        a(f'v_add_f32 {vr(192 + k)}, 1.0, {vr(192 + k)}')
    for k in range(16):
        a(f'v_rcp_f32 {vr(192 + k)}, {vr(192 + k)}')
    for k in range(0, 16, 2):
        a(f'v_pk_mul_f32 {vr(160 + k, 2)}, {vr(160 + k, 2)}, {vr(192 + k, 2)}')
    for k in range(8):
        a(f'v_lshlrev_b32 {vr(192 + 2 * k)}, 16, {vr(CXR + k)}')
        a(f'v_and_b32 {vr(193 + 2 * k)}, 0xffff0000, {vr(CXR + k)}')
    for k in range(0, 16, 2):
        a(f'v_pk_fma_f32 {vr(160 + k, 2)}, {vr(160 + k, 2)}, {vr(176 + k, 2)}, {vr(192 + k, 2)}')
    for k in range(8):
        a(f'v_cvt_pk_bf16_f32 {vr(CXR + k)}, {vr(160 + 2 * k)}, {vr(161 + 2 * k)}')
    for nb in range(4):
        a(f'buffer_store_dwordx2 {vr(CXR + 2 * nb, 2)}, {vr(COUT)}, {sr(SRD_OUT, 4)}, {sr(sOV)} offen offset:{32 * nb}')

def gen(opt):
    SLOW.clear()
    a = A()
    setup(a, opt)
    phase_a(a, opt)
    phase_b(a, opt)
    phase_c(a, opt)
    if opt.get('stamp'):
        a('s_waitcnt vmcnt(0)\ns_memtime s[8:9]\ns_memrealtime s[10:11]')
        a(f'''
        s_waitcnt lgkmcnt(0)
        s_lshl_b32 s3, s2, 2
        s_add_u32 s3, s3, {sr(sW)}
        s_lshl_b32 s3, s3, 7
        s_add_u32 s3, s3, {WS_STAMP}
        v_mov_b32 v1, 0
        ''')
        for i in range(24): a(f'v_mov_b32 v{4 + i}, s{sST + i}')
        for i in range(4): a(f'v_mov_b32 v{28 + i}, s{8 + i}')
        for i in range(7):
            a(f'buffer_store_dwordx4 v[{4 + 4 * i}:{7 + 4 * i}], v1, {sr(SRD_WS, 4)}, s3 offen offset:{16 * i}')
    a.label('L_end')
    a('s_endpgm')
    a(f'''
    L_cnt:
    v_mov_b32 v4, 1
    v_mov_b32 v5, 0
    s_lshl_b32 s3, {sr(sQB)}, 2
    s_mov_b64 exec, 1
    buffer_atomic_add v4, v5, {sr(SRD_DBG, 4)}, s3 offen sc1
    s_mov_b64 exec, -1
    s_nop 3
    s_branch L_cntback
    ''')
    for p, tag, final in SLOW:
        for hf in range(2):
            a.label(f'L_slow{hf}_{tag}')
            a(f's_call_b64 s[98:99], L_slowfn{hf}_{p}_{int(final)}')
            a(f's_branch L_back{hf}_{tag}')
    for p, final in sorted({(p, f) for p, _, f in SLOW}):
        for hf in range(2):
            slow_path(a, p, hf, final)
    return kernel_file(a.text(), 'grid=(256,1,1) block=(256,1,1) lds=163840')

if __name__ == '__main__':
    opt = json.loads(sys.argv[2]) if len(sys.argv) > 2 else {}
    open(sys.argv[1], 'w').write(gen(opt))
```

```python
import sys, json, math, struct
sys.path.insert(0, 'gen')
from asmlib import *

def f2u(x): return '0x%08x' % struct.unpack('<I', struct.pack('<f', x))[0]

WS_O = 0; WS_H = 17 << 20; WS_FLAG = 24 << 20; WS_WF = 25 << 20; WS_STAMP = 32 << 20
WFS = 184 * 4096
sH = 4; sQB = 5; sW = 6
SRD_K = 8; SRD_V = 12; SRD_WS = 16; SRD_X = 20; SRD_WQ = 24; SRD_WG = 28; SRD_WU = 32; SRD_WO = 36; SRD_WD = 40; SRD_OUT = 44; SRD_DBG = 48
sOK = 52; sOV = 53; sM = 54; sCNT = 55; sT0 = 56; sT1 = 57; sT2 = 58; sT3 = 59
sXO = 60; sQO = 61; sGO = 62; sWB = 63
sW4K = 88; sRB = 89; sCB = 90; sBO = 56; sFL = 91; sWQB = 92; sWGB = 93
sDL = 95
sST = 64
KA = 8; VAA = 16; DK0 = 28; DK1 = 29; DV0 = 30; DV1 = 31; VAB = 244
Q = 32; S = 96; NM = 160; PA = 176; PB = 192; TMP = 200; ST = 204; THR = 220; LANE = 1; LM = 224; RL = 240
O = 0; KF = 128; VF = 160; ONES = (24, 216); WPR = 192
STAGE = 16384
AQ = 8; AG = 12; AC = 16; AX = 20; DQ = 22; DG = 23; DX = 24
XF = 32; ACQ = 96; SX = 224; SXX = 240
AGU = 0; AR = 128; ACS = 160; ONE1 = 176
XBUF = 0; WBUF = 65536; CSBUF = 65536
CB = 32
def CAr(sl): return (192 + sl * 16) if sl < 4 else (sl - 4) * 16
ACF = 128; ACS_ = 64
CL16 = 7
CRW = 8; CRR = 11; COUT = 12; CXR = 16
sAO = 60; POLLV = 6

def OST(): return OPT.get('ost', 135168)
def mf(d, a_, b_, c):
    return f'v_mfma_f32_16x16x32_bf16 {d}, {a_}, {b_}, {c}'

class Gap:
    def __init__(self, m):
        self.m = m; self.pre = []; self.mem = []; self.valu = []; self.post = []
    def ops(self):
        return [self.m] + self.pre + self.mem + self.valu + self.post
    def units(self):
        u = 0
        for x in self.mem: u += 2 if x.startswith('buffer') else 1
        for x in self.valu: u += 2 if x.startswith(('v_exp', 'v_rcp', 'v_log', 'v_rsq')) else 1
        return u

def place(G, ops, lo, hi=None, kind='mem', cap=2):
    g = lo
    for x in ops:
        pre = []
        if isinstance(x, tuple):
            pre, x = list(x[:-1]), x[-1]
        need = 2 if x.startswith('buffer') else 1
        while G[g].units() + need > cap:
            g += 1
        if hi is not None:
            assert g <= hi, (x, g, hi)
        if pre:
            if ' m0,' in pre[-1]:
                pre.append('s_nop 0')
            G[g].pre += pre
        getattr(G[g], kind).append(x)
    return g

STAMPS = []
def stamp_op(name):
    if not OPT.get('stamp') or (OPT.get('only') and name not in OPT['only']):
        return []
    k = len(STAMPS); STAMPS.append(name)
    assert k < 12
    return [f'{"s_memtime" if OPT.get("cyc") else "s_memrealtime"} s[{sST + 2 * k}:{sST + 2 * k + 1}]']
def stamp(a, opt, name):
    for x in stamp_op(name): a(x)

def srd(a, base, lo, hi, nrec, add=None, sub=None):
    if add is not None:
        a(f's_add_u32 s{base}, s{lo}, {add}')
        a(f's_addc_u32 s{base + 1}, s{hi}, 0')
    else:
        a(f's_mov_b32 s{base}, s{lo}')
        a(f's_mov_b32 s{base + 1}, s{hi}')
    if sub is not None:
        a(f's_sub_u32 s{base}, s{base}, {sub}')
        a(f's_subb_u32 s{base + 1}, s{base + 1}, 0')
    a(f's_mov_b32 s{base + 2}, {nrec}')
    a(f's_mov_b32 s{base + 3}, 0x20000')

def setup(a, opt):
    a(f'''
    s_cmp_ge_u32 s2, 256
    s_cbranch_scc1 L_end
    {("s_memtime" if opt.get("cyc") else "s_memrealtime") + " s[98:99]" if opt.get("stamp") else ""}
    s_load_dwordx16 s[64:79], s[0:1], 0
    s_load_dwordx8 s[80:87], s[0:1], 64
    v_lshrrev_b32 v4, 6, v0
    v_and_b32 v1, 63, v0
    v_readfirstlane_b32 {sr(sW)}, v4
    s_and_b32 s3, s2, 7
    s_bfe_u32 s7, s2, 0x20003
    s_lshl_b32 s7, s7, 3
    s_add_u32 {sr(sH)}, s3, s7
    s_lshr_b32 {sr(sQB)}, s2, 5
    s_lshl_b32 {sr(sW4K)}, {sr(sW)}, 12
    s_lshr_b32 s7, s2, 6
    s_lshl_b32 s3, s3, 2
    s_add_u32 {sr(sRB)}, s3, s7
    s_bfe_u32 {sr(sCB)}, s2, 0x30003
    v_and_b32 v2, 15, v1                ; r = l&15
    v_lshrrev_b32 v3, 4, v1             ; g = l>>4
    s_waitcnt lgkmcnt(0)
    ''')
    if opt.get('stamp'): a('v_mov_b32 v0, s98')
    a(f's_lshl_b32 s3, {sr(sQB)}, 18\ns_lshl_b32 s7, {sr(sW)}, 16\ns_add_u32 s3, s3, s7')
    srd(a, SRD_X, 64, 65, 65536, add='s3')
    a(f's_lshl_b32 s3, {sr(sH)}, 8')
    srd(a, SRD_WQ, 70, 71, 511 * 8192 + 256, add='s3')
    a(f's_lshl_b32 s3, {sr(sH)}, 7\ns_cmp_lt_u32 {sr(sH)}, 28\ns_cselect_b32 s3, s3, 0\ns_cselect_b32 s7, {511 * 3584 + 128}, 0')
    srd(a, SRD_WG, 76, 77, 's7', add='s3')
    srd(a, SRD_WU, 78, 79, 's7', add='s3')

def setup2(a, opt):
    a(f's_lshl_b32 s3, {sr(sH)}, 19')
    srd(a, SRD_K, 66, 67, 524288, add='s3')
    srd(a, SRD_V, 68, 69, 524288 + 2048, add='s3', sub=2048)
    srd(a, SRD_WS, 86, 87, 0x10000000)
    a('s_cmp_lt_u32 s2, 128\ns_cselect_b32 s72, s72, s80\ns_cselect_b32 s73, s73, s81\ns_and_b32 s3, s2, 127\ns_lshl_b32 s3, s3, 15')
    a('s_cmp_lt_u32 s2, 184\ns_cselect_b32 s3, s3, 0')
    srd(a, SRD_WO, 72, 73, 32768, add='s3')
    srd(a, SRD_OUT, 82, 83, 2097152)
    srd(a, SRD_DBG, 84, 85, 256)
    a('s_mov_b32 s96, s64\ns_mov_b32 s97, s65')

def a_setup_dma_addr(a):
    a(f'''
    s_lshl_b32 s3, {sr(sW)}, 3
    v_add_u32 v4, s3, v3                 ; row = 8w + (l>>4)
    v_lshlrev_b32 v5, 2, v3
    v_xor_b32 v5, v5, v2
    v_lshlrev_b32 v5, 4, v5
    v_lshl_add_u32 {vr(DQ)}, v4, 13, v5
    v_lshrrev_b32 v4, 3, v1              ; rho = l>>3
    v_and_b32 v5, 3, v4
    v_lshrrev_b32 v6, 5, v1
    v_lshl_add_u32 v5, v6, 3, v5
    s_lshr_b32 s3, {sr(sW)}, 1
    s_lshl_b32 s3, s3, 4
    s_and_b32 s7, {sr(sW)}, 1
    s_lshl_b32 s7, s7, 2
    s_add_u32 s3, s3, s7
    v_add_u32 v5, s3, v5                 ; W row
    v_mul_u32_u24 v5, 3584, v5
    v_lshlrev_b32 v6, 1, v3
    v_and_b32 v7, 7, v1
    v_xor_b32 v6, v6, v7
    v_lshl_add_u32 {vr(DG)}, v6, 4, v5
    v_xor_b32 v6, v3, v7
    v_lshlrev_b32 v6, 4, v6
    v_lshl_add_u32 {vr(DX)}, v4, 10, v6
    v_xor_b32 {vr(DX + 1)}, 64, {vr(DX)}
    ''')

def a_dma_x(j_par):
    ops = []
    for i in range(8):
        pre = []
        if i % 4 == 0:
            pre.append(f's_add_u32 m0, {sr(sT3)}, {XBUF + j_par * 32768 + (i // 4) * 4096}')
        pre.append(f's_add_u32 {sr(sT0 + (i & 1))}, {sr(sXO)}, {i * 8192 - 1024 * (i & 3)}')
        ops.append(tuple(pre) + (f'buffer_load_dwordx4 {vr(DX + (i & 1))}, {sr(SRD_X, 4)}, {sr(sT0 + (i & 1))} offen offset:{1024 * (i & 3)} lds',))
    return ops, [f's_add_u32 {sr(sXO)}, {sr(sXO)}, 128', f's_and_b32 {sr(sXO)}, {sr(sXO)}, 1023']

def a_dma_w():
    ops = []
    for ks in range(2):
        ops.append((f's_add_u32 m0, {sr(sWQB)}, {ks * 16384}', f's_add_u32 {sr(sT0)}, {sr(sQO)}, {ks * 32 * 8192}',
                    f'buffer_load_dwordx4 {vr(DQ)}, {sr(SRD_WQ, 4)}, {sr(sT0)} offen lds'))
        ops.append((f's_add_u32 {sr(sT1)}, {sr(sQO)}, {ks * 32 * 8192 + 4 * 8192 - 1024}',
                    f'buffer_load_dwordx4 {vr(DQ)}, {sr(SRD_WQ, 4)}, {sr(sT1)} offen offset:1024 lds'))
        ops.append((f's_add_u32 m0, {sr(sWGB)}, {ks * 16384}', f's_add_u32 {sr(sT0)}, {sr(sGO)}, {ks * 32 * 3584}',
                    f'buffer_load_dwordx4 {vr(DG)}, {sr(SRD_WG, 4)}, {sr(sT0)} offen lds'))
        ops.append((f's_add_u32 m0, m0, 4096',
                    f'buffer_load_dwordx4 {vr(DG)}, {sr(SRD_WU, 4)}, {sr(sT0)} offen lds'))
    adv = [f's_add_u32 {sr(sQO)}, {sr(sQO)}, {64 * 8192}', f's_and_b32 {sr(sQO)}, {sr(sQO)}, 0x3fffff', f's_lshr_b32 {sr(sGO)}, {sr(sQO)}, 13', f's_mul_i32 {sr(sGO)}, {sr(sGO)}, 3584',
           f's_add_u32 {sr(sWB)}, {sr(sWB)}, 1', f's_cmp_eq_u32 {sr(sWB)}, 3', f's_cselect_b32 {sr(sT2)}, -2, 1', f's_cselect_b32 {sr(sWB)}, 0, {sr(sWB)}',
           f's_lshl_b32 {sr(sT2)}, {sr(sT2)}, 15', f's_add_u32 {sr(sWQB)}, {sr(sWQB)}, {sr(sT2)}', f's_add_u32 {sr(sWGB)}, {sr(sWGB)}, {sr(sT2)}']
    return ops, adv

def emit_plain(a, ops):
    for x in ops:
        if isinstance(x, tuple):
            for y in x[:-1]: a(y)
            a('s_nop 0')
            a(x[-1])
        else:
            a(x)

def a_setup_read_addr(a):
    a(f'''
    v_bfe_u32 v4, v1, 2, 2               ; r'
    v_and_b32 v5, 3, v1                  ; c'
    v_lshl_add_u32 v6, v3, 3, v4         ; 8g + r'
    v_lshlrev_b32 v6, 8, v6
    v_lshl_add_u32 v6, v4, 6, v6         ; + (r'<<2)*16
    v_lshl_add_u32 v6, v5, 4, v6         ; + c'*16
    v_add_u32 v6, {WBUF}, v6
    ''')
    for sp in range(4):
        a(f'v_xor_b32 {vr(AQ + sp)}, {sp * 64}, v6')
    a(f'''
    v_bfe_u32 v6, v1, 2, 3               ; rho = 4(g&1) + r'
    v_lshrrev_b32 v7, 1, v6              ; key2
    v_lshlrev_b32 v6, 7, v6
    v_lshl_add_u32 v6, v7, 5, v6
    v_lshl_add_u32 v6, v5, 3, v6
    v_lshrrev_b32 v7, 5, v1
    v_lshl_add_u32 v6, v7, 11, v6
    v_add_u32 v6, {WBUF + 8192}, v6
    ''')
    for nb in range(4):
        a(f'v_xor_b32 {vr(AG + nb)}, {nb * 32}, v6')
    a(f's_cmp_eq_u32 {sr(sW)}, 0\ns_cselect_b64 s[98:99], -1, 0\ns_cmp_lt_u32 {sr(sW)}, 2\ns_cselect_b64 s[100:101], -1, 0')
    a(f's_and_b32 s3, {sr(sW)}, 1\ns_lshl_b32 s3, s3, 12')
    for k in range(4):
        a(f'v_cndmask_b32 v4, {vr(AQ + 2 + (k >> 1))}, {vr(AQ + (k >> 1))}, s[98:99]')
        if k & 1:
            a('v_add_u32 v4, 8, v4')
        a(f'v_add_u32 v5, s3, {vr(AG + k)}')
        a(f'v_cndmask_b32 {vr(AC + k)}, v5, v4, s[100:101]')
    a(f'''
    v_lshrrev_b32 v4, 1, v2
    v_xor_b32 v4, v4, v3
    v_lshlrev_b32 v4, 4, v4
    v_lshl_add_u32 v4, v2, 7, v4
    v_add_u32 {vr(AX)}, {sr(sT3)}, v4
    v_xor_b32 {vr(AX + 1)}, 64, {vr(AX)}
    v_mov_b32 v4, 0x3f803f80
    ''')
    for i in range(4):
        a(f'v_accvgpr_write_b32 {ar(ONE1 + i)}, v4')

def Xreg(par, c, ks): return XF + par * 32 + c * 8 + ks * 4
def accA(nb, c):
    return vr(ACQ + (nb * 4 + c) * 4, 4) if nb < 8 else ar(AGU + ((nb - 8) * 4 + c) * 4, 4)
def a_reads(grp):
    out = []
    for ks in range(2):
        for u in range(2):
            off = ks * 16384 + u * 1024
            if grp < 8:
                ad = AQ + (grp >> 1); off += 8 * (grp & 1)
            elif grp < 16:
                ad = AG + (grp & 3); off += 4096 * ((grp - 8) >> 2)
            else:
                ad = AC + grp - 16
            out.append(f'ds_read_b64_tr_b16 {ar(AR + (grp & 3) * 8 + ks * 4 + 2 * u, 2)}, {vr(ad)} offset:{off}')
    return out
def x_reads(par):
    return [f'ds_read_b128 {vr(Xreg(par, c, ks), 4)}, {vr(AX + ks)} offset:{XBUF + par * 32768 + c * 2048}' for c in range(4) for ks in range(2)]

def a_superstep(par, first, tail, kv_ops=None, name=None, pre_ops=None, pre_adv=None):
    G = []; start = []
    for grp in range(20):
        start.append(len(G))
        sl = AR + (grp & 3) * 8
        if grp < 16:
            for c in range(4):
                for ks in range(2):
                    d = accA(grp, c)
                    G.append(Gap(mf(d, ar(sl + 4 * ks, 4), vr(Xreg(par, c, ks), 4), '0' if first and ks == 0 else d)))
        else:
            k = grp - 16
            for ks in range(2):
                d = ar(ACS + 4 * k, 4)
                G.append(Gap(mf(d, ar(sl + 4 * ks, 4), ar(ONE1, 4), '0' if first and ks == 0 else d)))
            for ks in range(2):
                d = vr(SX + 4 * k, 4)
                G.append(Gap(mf(d, ar(ONE1, 4), vr(Xreg(par, k, ks), 4), '0' if first and ks == 0 else d)))
            for ks in range(2):
                d = vr(SXX + 4 * k, 4)
                G.append(Gap(mf(d, vr(Xreg(par, k, ks), 4), vr(Xreg(par, k, ks), 4), '0' if first and ks == 0 else d)))
    start.append(len(G))
    def at(g, x, kind='mem'):
        place(G, [x], g, g, kind=kind)
    rp = OPT.get('a_rp', [0, 1, 2, 3])
    for grp in range(18):
        for k, x in zip(rp, a_reads(grp + 2)):
            at(start[grp] + k, x)
    dm = []
    if tail == 0:
        wops, wadv = a_dma_w(); xops, xadv = a_dma_x(par)
        if OPT.get('a_now'): wops = []
        if OPT.get('a_nox'): xops = []
        dm = wops + xops
        if pre_ops:
            dm = pre_ops + dm
    if kv_ops:
        dm = kv_ops
    free = [g for grp in range(18) for g in ((start[grp] + 4, start[grp] + 7) if OPT.get('a_two', len(dm) > 17) and grp < 16 else (start[grp] + 5,))]
    if len(dm) > len(free):
        free = [g for grp in range(16) for g in (start[grp] + 4, start[grp] + 5, start[grp] + 7)]
    pos = free[:len(dm)]
    for g, x in zip(pos, dm):
        at(g, x)
    if tail == 0:
        npre = len(pre_ops) if pre_ops else 0
        if pre_ops:
            for g, adv in pre_adv:
                G[pos[g] + 1].pre += adv
        if wops:
            g = pos[npre + len(wops) - 1]
            G[g + 1].pre += wadv[:4]; G[g + 2].pre += wadv[4:8]; G[g + 3].pre += wadv[8:]
        if xops:
            G[pos[-1] + 1].pre += xadv
    xg = OPT.get('a_xg', 14)
    if tail < 2:
        wg = start[xg] + 3
        npre = len(pre_ops) if pre_ops else 0
        younger = sum(1 for k, g in enumerate(pos) if g < wg and k >= npre)
        assert all(g < wg for g in pos[:npre])
        G[wg].pre.append(f's_waitcnt vmcnt({younger})')
        xr = x_reads(1 - par)
        for k, x in enumerate(xr):
            at(start[xg + k // 4] + 3 + (k % 4) + (1 if G[start[xg + k // 4] + 3 + (k % 4)].units() >= 2 else 0), x) if False else None
        g = wg
        xpos = []
        for x in xr:
            while G[g].units() >= 2 or any(y.startswith('ds_read_b128') for y in G[g].mem): g += 1
            G[g].mem.append(x); xpos.append(g)
        assert xpos[-1] < start[18] - 2, xpos
    seq = [(g, x) for g in range(len(G)) for x in G[g].mem if x.startswith('ds_')]
    for grp in range(2, 20):
        if grp == 18:
            continue
        last = max(k for k, (g, x) in enumerate(seq) if x in a_reads(grp) and start[grp - 2] <= g < start[grp - 1])
        n = sum(1 for k, (g, x) in enumerate(seq) if k > last and g < start[grp] - 1)
        G[start[grp] - 1].pre.append(f's_waitcnt lgkmcnt({min(n, 15)})')
    G[start[1] - 1].pre.append('s_waitcnt lgkmcnt(4)')
    if tail < 2:
        G[start[18] - 1].pre += ['s_waitcnt lgkmcnt(0)', 's_barrier']
        vu = [f'v_add_u32 {vr(AQ + i)}, {sr(sDL)}, {vr(AQ + i)}' for i in range(12)]
        place(G, vu[:8], start[14] + 4, start[17] + 5, kind='valu')
        for k, x in enumerate(a_reads(0)): at(start[18] + k, x)
        for k, x in enumerate(a_reads(1)): at(start[19] + k, x)
        place(G, vu[8:], start[18], start[19] + 5, kind='valu')
        G[start[20] - 1].pre.append('s_waitcnt lgkmcnt(4)')
        G[start[13] + 1].pre += [f's_add_u32 {sr(sM)}, {sr(sM)}, 1', f's_cmp_eq_u32 {sr(sM)}, 3', f's_cselect_b32 {sr(sDL)}, -2, 1', f's_cselect_b32 {sr(sM)}, 0, {sr(sM)}']
        G[start[13] + 2].pre += [f's_lshl_b32 {sr(sDL)}, {sr(sDL)}, 15']
    else:
        G[start[18] - 1].pre += ['s_waitcnt lgkmcnt(0)']
    if name:
        so = stamp_op(name)
        if so:
            G[start[18] - 1].post += so
            G[start[19] - 1].pre.append('s_waitcnt lgkmcnt(0)')
    return G

def phase_a(a, opt):
    a(f's_lshl_b32 {sr(sT3)}, {sr(sW)}, 13')
    a_setup_dma_addr(a)
    a(f's_and_b32 s3, s2, {7 if OPT.get("arot", 0) else 0}\ns_lshl_b32 {sr(sXO)}, s3, 7\ns_lshl_b32 {sr(sQO)}, s3, 19\ns_mul_i32 {sr(sGO)}, s3, {64 * 3584}\ns_mov_b32 {sr(sWB)}, 0\ns_mov_b32 {sr(sM)}, 0')
    a(f's_lshl_b32 {sr(sWQB)}, {sr(sW)}, 11\ns_add_u32 {sr(sWQB)}, {sr(sWQB)}, {WBUF}\ns_lshl_b32 {sr(sWGB)}, {sr(sW)}, 10\ns_add_u32 {sr(sWGB)}, {sr(sWGB)}, {WBUF + 8192}')
    late = OPT.get('a_late', 0)
    for j in range(1 if late else 2):
        xops, xadv = a_dma_x(j); wops, wadv = a_dma_w()
        emit_plain(a, xops); emit_plain(a, xadv); emit_plain(a, wops); emit_plain(a, wadv)
    pre_ops = pre_adv = None
    if late:
        xops, xadv = a_dma_x(1); wops, wadv = a_dma_w()
        pre_ops = wops + xops; pre_adv = [(7, wadv), (15, xadv)]
    setup2(a, opt)
    ntouch = 0
    if OPT.get('touch'):
        sh = OPT['touch']
        a(f'v_lshlrev_b32 v4, {sh}, v1')
        if sh == 7:
            a(f's_and_b32 s3, {sr(sQB)}, 1\ns_lshl_b32 s3, s3, 2\ns_add_u32 s3, s3, {sr(sW)}\ns_lshl_b32 s3, s3, 13')
        else:
            a('s_mov_b32 s3, 0')
        a(f'buffer_load_dword v26, v4, {sr(SRD_K, 4)}, s3 offen')
        a(f'buffer_load_dword v27, v4, {sr(SRD_V, 4)}, s3 offen offset:2048')
        ntouch = 2
    stamp(a, opt, 'issued')
    a_setup_read_addr(a)
    b_setup_dma_addr(a)
    a(f'''
    s_lshl_b32 s3, {sr(sQB)}, 2
    s_add_u32 s3, s3, {sr(sW)}
    s_lshl_b32 s3, s3, 5
    s_add_u32 s3, s3, {sr(sH)}
    s_lshl_b32 s3, s3, 2
    s_add_u32 s94, s3, {WS_FLAG}
    v_mov_b32 v4, 0
    s_mov_b64 exec, 1
    buffer_store_dword v4, v4, {sr(SRD_WS, 4)}, s94 offen sc1
    s_mov_b64 exec, -1
    s_waitcnt vmcnt({(1 if late else 17) + ntouch})
    ''')
    for x in x_reads(0): a(x)
    a('s_waitcnt lgkmcnt(0)\ns_barrier')
    for x in a_reads(0) + a_reads(1): a(x)
    stamp(a, opt, 'A0')
    a('s_waitcnt lgkmcnt(0)' if opt.get('stamp') else 's_waitcnt lgkmcnt(4)')
    a.raw('.p2align 3')
    emit_gaps(a, [g.ops() for g in a_superstep(0, True, 0, name='a0', pre_ops=pre_ops, pre_adv=pre_adv) + a_superstep(1, False, 0, name='a1')])
    a(f's_mov_b32 {sr(sCNT)}, 2')
    a.raw('.p2align 3')
    a.label('L_a')
    G = a_superstep(0, False, 0, name='a4') + a_superstep(1, False, 0, name='a5')
    G[-4].pre.append(f's_sub_u32 {sr(sCNT)}, {sr(sCNT)}, 1')
    G[-2].pre.append(f's_cmp_lg_u32 {sr(sCNT)}, 0')
    G[-1].post.append('s_cbranch_scc1 L_a')
    emit_gaps(a, [g.ops() for g in G])
    a.raw('.p2align 3')
    emit_gaps(a, [g.ops() for g in a_superstep(0, False, 1, name='a6') + a_superstep(1, False, 2, kv_ops=b_prologue_dma())])
    stamp(a, opt, 'Aend')
    a_epilogue(a, opt)

NMEAN = 8; ALPHA = 12; RS2 = 16
def a_epilogue(a, opt):
    a(f'''
    v_lshlrev_b32 v4, 4, v3
    s_lshl_b32 s3, {sr(sW)}, 8
    v_add_u32 v5, s3, v4
    v_add_u32 v5, {CSBUF}, v5
    v_add_u32 v4, {CSBUF}, v4
    v_cmp_eq_u32 vcc, 0, v2
    s_nop 7
    s_and_saveexec_b64 s[98:99], vcc
    ''')
    for k in range(4):
        a(f'ds_write_b128 v5, {ar(ACS + 4 * k, 4)} offset:{64 * k}')
    a('s_mov_b64 exec, s[98:99]')
    a(f'''
    v_and_b32 v6, 3, v1
    v_cmp_eq_u32 s[98:99], 1, v6
    v_cmp_eq_u32 s[100:101], 2, v6
    v_cmp_eq_u32 vcc, 3, v6
    v_lshrrev_b32 v6, 2, v2
    v_cmp_eq_u32 s[92:93], v6, v3
    ''')
    for c in range(4):
        b = SXX + 4 * c
        a(f'v_cndmask_b32 {vr(b)}, {vr(b)}, {vr(b + 1)}, s[98:99]')
        a(f'v_cndmask_b32 {vr(b)}, {vr(b)}, {vr(b + 2)}, s[100:101]')
        a(f'v_cndmask_b32 {vr(b)}, {vr(b)}, {vr(b + 3)}, vcc')
        a(f'v_cndmask_b32 {vr(b)}, 0, {vr(b)}, s[92:93]')
    for sw in ('v_permlane32_swap_b32', 'v_permlane16_swap_b32'):
        for c in range(4):
            a(f'v_mov_b32 {vr(SXX + 4 * c + 1)}, {vr(SXX + 4 * c)}')
        a('s_nop 0')
        for c in range(4):
            a(f'{sw} {vr(SXX + 4 * c)}, {vr(SXX + 4 * c + 1)}')
        for c in range(4):
            a(f'v_add_f32 {vr(SXX + 4 * c)}, {vr(SXX + 4 * c)}, {vr(SXX + 4 * c + 1)}')
    sc = (128 ** -0.5) * math.log2(math.e)
    for c in range(4):
        a(f'v_mul_f32 {vr(NMEAN + c)}, {f2u(-1 / 512)}, {vr(SX + 4 * c)}')
        a(f'v_mul_f32 {vr(SXX + 4 * c)}, {f2u(1 / 512)}, {vr(SXX + 4 * c)}')
        a(f'v_fma_f32 {vr(SXX + 4 * c)}, -{vr(NMEAN + c)}, {vr(NMEAN + c)}, {vr(SXX + 4 * c)}')
        a(f'v_max_f32 {vr(SXX + 4 * c)}, 0, {vr(SXX + 4 * c)}')
        a(f'v_add_f32 {vr(SXX + 4 * c)}, {f2u(1e-5)}, {vr(SXX + 4 * c)}')
        a(f'v_rsq_f32 {vr(ALPHA + c)}, {vr(SXX + 4 * c)}')
        a(f'v_rcp_f32 {vr(RS2 + c)}, {vr(SXX + 4 * c)}')
    for c in range(4):
        a(f'v_mul_f32 {vr(ALPHA + c)}, {f2u(sc)}, {vr(ALPHA + c)}')
    stamp(a, opt, 'e_stat')
    a('s_waitcnt lgkmcnt(0)\ns_barrier')
    CSR = 224
    for nb in range(8):
        a(f'ds_read_b128 {vr(CSR + 4 * nb, 4)}, v4 offset:{64 * nb}')
    def bc(r):
        e = r & ~1
        return vr(e, 2), (r & 1)
    a('s_waitcnt lgkmcnt(0)')
    for c in range(4):
        nm, nh = bc(NMEAN + c); al, ah = bc(ALPHA + c)
        for nb in range(8):
            b = ACQ + (nb * 4 + c) * 4
            for i in (0, 2):
                a(f'v_pk_fma_f32 {vr(b + i, 2)}, {vr(CSR + 4 * nb + i, 2)}, {nm}, {vr(b + i, 2)} op_sel:[0,{nh},0] op_sel_hi:[1,{nh},1]')
            for i in (0, 2):
                a(f'v_pk_mul_f32 {vr(b + i, 2)}, {vr(b + i, 2)}, {al} op_sel:[0,{ah}] op_sel_hi:[1,{ah}]')
            for i in (0, 2):
                a(f'v_cvt_pk_bf16_f32 {vr(Q + 16 * c + 2 * nb + (i >> 1))}, {vr(b + i)}, {vr(b + i + 1)}')
    stamp(a, opt, 'e_q')
    for nb in range(8):
        a(f'ds_read_b128 {vr(CSR + 4 * nb, 4)}, v4 offset:{64 * (8 + nb)}')
    a(f'''
    s_lshl_b32 s3, {sr(sQB)}, 4
    s_lshl_b32 s7, {sr(sW)}, 2
    s_add_u32 s3, s3, s7
    s_mul_i32 s3, s3, 57344
    s_lshl_b32 s7, {sr(sH)}, 11
    s_add_u32 s3, s3, s7
    s_add_u32 s3, s3, {WS_H}
    v_lshlrev_b32 v5, 4, v1
    s_cmp_ge_u32 {sr(sH)}, 28
    s_waitcnt lgkmcnt(0)
    s_cbranch_scc1 L_noh
    ''')
    n = 0
    for c in range(4):
        nm, nh = bc(NMEAN + c); rs, rh = bc(RS2 + c)
        for pr in range(2):
            pk = 96 + (n & 7) * 4; n += 1
            for u in range(2):
                nb = 2 * pr + u
                tg = 128 + u * 8; tu = tg + 4
                for i in range(4):
                    a(f'v_accvgpr_read_b32 {vr(tg + i)}, {ar(AGU + (nb * 4 + c) * 4 + i)}')
                    a(f'v_accvgpr_read_b32 {vr(tu + i)}, {ar(AGU + ((nb + 4) * 4 + c) * 4 + i)}')
                for i in (0, 2):
                    a(f'v_pk_fma_f32 {vr(tg + i, 2)}, {vr(CSR + 4 * nb + i, 2)}, {nm}, {vr(tg + i, 2)} op_sel:[0,{nh},0] op_sel_hi:[1,{nh},1]')
                    a(f'v_pk_fma_f32 {vr(tu + i, 2)}, {vr(CSR + 16 + 4 * nb + i, 2)}, {nm}, {vr(tu + i, 2)} op_sel:[0,{nh},0] op_sel_hi:[1,{nh},1]')
                for i in (0, 2):
                    a(f'v_pk_mul_f32 {vr(tg + i, 2)}, {vr(tg + i, 2)}, {rs} op_sel:[0,{rh}] op_sel_hi:[1,{rh}]')
                for i in (0, 2):
                    a(f'v_pk_mul_f32 {vr(tg + i, 2)}, {vr(tg + i, 2)}, {vr(tu + i, 2)}')
                for i in (0, 2):
                    a(f'v_cvt_pk_bf16_f32 {vr(pk + 2 * u + (i >> 1))}, {vr(tg + i)}, {vr(tg + i + 1)}')
            a(f'buffer_store_dwordx4 {vr(pk, 4)}, v5, {sr(SRD_WS, 4)}, s3 offen offset:{1024 * pr} {OPT.get("stsc", "sc1")}')
        if c < 3:
            a('s_add_u32 s3, s3, 57344')
    a('s_waitcnt vmcnt(8)\ns_branch L_hdone')
    a.label('L_noh')
    a('s_waitcnt vmcnt(0)')
    a.label('L_hdone')

def Sreg(buf, c, kb=0): return S + buf * 32 + c * 8 + kb * 4
def Qreg(c, s): return Q + c * 16 + s * 4
def Preg(c, par): return (PA + par * 8 + c * 4) if c < 2 else PB + (c - 2) * 4
def Oreg(c, db): return O + c * 32 + db * 4
def LMreg(hf, pp): return LM + hf * 8 + pp * 4
def qk_mfma(buf, c, kb, s, c0=None):
    d = vr(Sreg(buf, c, kb), 4)
    cc = d if s else (c0 if c0 is not None else vr(NM + 4 * c, 4))
    return mf(d, ar(KF + 4 * (kb * 4 + s), 4), vr(Qreg(c, s), 4), cc)
def pv_mfma(c, par, db, c0=None):
    d = ar(Oreg(c, db), 4)
    return mf(d, ar(VF + db * 4, 4), vr(Preg(c, par), 4), d if c0 is None else c0)
def sum_mfma(c, par, pp_in):
    hf = c >> 1
    d = vr(LMreg(hf, 1 - pp_in), 4)
    cc = vr(LMreg(hf, pp_in), 4) if (c & 1) == 0 else d
    return mf(d, vr(ONES[c & 1], 4), vr(Preg(c, par), 4), cc)
def k_read(slot, kb, s, base=None):
    if base is not None:
        return f'ds_read_b128 {ar(KF + 4 * (kb * 4 + s), 4)}, {vr(base + s)} offset:{slot * STAGE + kb * 8192}'
    return f'ds_read_b128 {ar(KF + 4 * (kb * 4 + s), 4)}, {vr(KA + 4 * (slot >> 2) + s)} offset:{(slot & 3) * STAGE + kb * 8192}'
def v_read(slot, db, u):
    return f'ds_read_b64_tr_b16 {ar(VF + db * 4 + 2 * u, 2)}, {vr((VAB if slot >= 4 else VAA) + db)} offset:{(slot & 3) * STAGE + u * 8192 + 2048}'
def dma_k(i):
    return f'buffer_load_dwordx4 {vr(DK0 + i)}, {sr(SRD_K, 4)}, {sr(sOK)} offen offset:{1024 * i} lds'
def dma_v(i):
    return f'buffer_load_dwordx4 {vr(DV0 + i)}, {sr(SRD_V, 4)}, {sr(sOV)} offen offset:{2048 + 1024 * i} lds'
def stage_dma(slot, k=True, v=True):
    ops = []
    pre = (f's_add_u32 m0, {sr(sW4K)}, {slot * STAGE}',)
    if k:
        ops += [pre + (f's_add_u32 {sr(sOK)}, {sr(sOK)}, 8192', f's_and_b32 {sr(sOK)}, {sr(sOK)}, 0x7ffff', dma_k(0)), dma_k(1)]; pre = ()
    if v:
        ops += [pre + (f's_add_u32 {sr(sOV)}, {sr(sOV)}, 8192', f's_and_b32 {sr(sOV)}, {sr(sOV)}, 0x7ffff', dma_v(0)), dma_v(1)]
    return ops

def b_setup_dma_addr(a):
    a(f'''
    s_lshl_b32 s3, {sr(sW)}, 3
    v_add_u32 v5, s3, v3          ; row = 8w + (l>>4)
    v_and_b32 v7, 15, v5
    v_xor_b32 v7, v7, v2
    v_lshlrev_b32 v7, 4, v7
    v_lshl_add_u32 {vr(DK0)}, v5, 8, v7
    v_xor_b32 {vr(DK1)}, 64, {vr(DK0)}
    v_lshlrev_b32 v7, 1, v3
    v_xor_b32 v7, v7, v2
    v_lshlrev_b32 v7, 4, v7
    v_lshl_add_u32 {vr(DV0)}, v5, 8, v7
    v_xor_b32 {vr(DV1)}, 128, {vr(DV0)}
    s_mul_i32 {sr(sOK)}, {sr(sH)}, {OPT.get('kvrot', 0)}
    s_sub_u32 {sr(sOK)}, {sr(sOK)}, 8192
    s_mov_b32 {sr(sOV)}, {sr(sOK)}
    ''')

def b_prologue_dma():
    ops = stage_dma(8, v=False) + stage_dma(9, v=False)
    for sl in range(4):
        ops += stage_dma(sl)
    return ops

def b_prologue_dma2():
    return stage_dma(4) + stage_dma(5) if OPT.get('bar', 2) == 2 else []

def b_setup_read_addr(a):
    a(f'''
    v_lshrrev_b32 v4, 3, v2
    v_lshlrev_b32 v4, 12, v4      ; (r>>3)*4096
    v_and_b32 v5, 7, v2
    v_lshl_add_u32 v4, v5, 8, v4  ; + (r&7)*256
    v_xor_b32 v5, v2, v3
    v_lshl_add_u32 v4, v5, 4, v4  ; + (r^g)*16
    ''')
    for s in range(4):
        a(f'v_xor_b32 {vr(KA + s)}, {s * 64}, v4')
        a(f'v_add_u32 {vr(KA + 4 + s)}, 65536, {vr(KA + s)}')
        a(f'v_add_u32 {vr(ST + 8 + s)}, 131072, {vr(KA + s)}')
    a(f'''
    v_bfe_u32 v4, v1, 2, 3        ; row&7
    v_lshlrev_b32 v5, 8, v4
    v_lshl_add_u32 v5, v4, 5, v5
    v_lshrrev_b32 v6, 5, v1
    v_lshl_add_u32 v5, v6, 12, v5
    v_and_b32 v6, 3, v1
    v_lshl_add_u32 v5, v6, 3, v5
    ''')
    for db in range(8):
        a(f'v_xor_b32 {vr(VAA + db)}, {db * 32}, v5')
        a(f'v_add_u32 {vr(VAB + db)}, 65536, {vr(VAA + db)}')
    a(f'''
    v_mov_b32 {vr(THR)}, 0x4e800000      ; 2^30
    v_mov_b32 v4, 0x3f803f80
    v_cmp_gt_u32 vcc, 8, v2
    s_nop 1
    v_cndmask_b32 v5, 0, v4, vcc
    v_xor_b32 v6, v5, v4
    ''')
    for i in range(4):
        a(f'v_mov_b32 {vr(ONES[0] + i)}, v5')
        a(f'v_mov_b32 {vr(ONES[1] + i)}, v6')
    a(f'v_lshlrev_b32 {vr(CL16)}, 4, v1')

def xlane(a, op, dst, t2):
    for sw in ('v_permlane32_swap_b32', 'v_permlane16_swap_b32'):
        a(f'v_mov_b32 {vr(t2)}, {vr(dst)}')
        a('s_nop 1')
        a(f'{sw} {vr(dst)}, {vr(t2)}')
        a(f'{op} {vr(dst)}, {vr(dst)}, {vr(t2)}')

def rowmax(a, base, dst, t2):
    a(f'v_max3_f32 {vr(dst)}, {vr(base)}, {vr(base + 1)}, {vr(base + 2)}')
    a(f'v_max3_f32 {vr(dst)}, {vr(dst)}, {vr(base + 3)}, {vr(base + 4)}')
    a(f'v_max3_f32 {vr(dst)}, {vr(dst)}, {vr(base + 5)}, {vr(base + 6)}')
    a(f'v_max_f32 {vr(dst)}, {vr(dst)}, {vr(base + 7)}')
    xlane(a, 'v_max_f32', dst, t2)

def softmax_c(a, sbase, pbase, tb):
    for r in range(4):
        a(f'v_exp_f32 {vr(tb)}, {vr(sbase + 2 * r)}')
        a(f'v_exp_f32 {vr(tb + 1)}, {vr(sbase + 2 * r + 1)}')
        a('s_nop 0')
        a(f'v_cvt_pk_bf16_f32 {vr(pbase + r)}, {vr(tb)}, {vr(tb + 1)}')

def b_prologue(a, opt):
    b_setup_read_addr(a)
    stamp(a, opt, 'e_h')
    a('s_barrier')
    stamp(a, opt, 'e_bar')
    for kb in range(2):
        for s in range(4):
            a(k_read(0, kb, s, base=ST + 8))
    emit_plain(a, b_prologue_dma2())
    for i in range(16):
        a(f'v_mov_b32 {vr(LM + i)}, 0')
    for i in range(8):
        a(f'v_mfma_f32_32x32x16_bf16 {ar(O + 16 * i, 16)}, {vr(LM, 4)}, {vr(LM, 4)}, 0')
    a('s_waitcnt lgkmcnt(0)')
    for c in range(4):
        for kb in range(2):
            for s in range(4):
                a(qk_mfma(0, c, kb, s, c0='0'))
    for kb in range(2):
        for s in range(4):
            a(k_read(1, kb, s, base=ST + 8))
    a('s_nop 3')
    for c in range(4):
        rowmax(a, Sreg(0, c), ST, ST + 1)
        for i in range(8):
            a(f'v_sub_f32 {vr(Sreg(0, c) + i)}, {vr(Sreg(0, c) + i)}, {vr(ST)}')
        for i in range(4):
            a(f'v_sub_f32 {vr(NM + 4 * c + i)}, 0, {vr(ST)}')
    for c in range(2):
        softmax_c(a, Sreg(0, c), Preg(c, 0), ST)
    a('s_waitcnt lgkmcnt(0)')

def step_gaps(slot, tag, opt, dma=True, final=False, extra=None, vm=0):
    p = slot & 1
    qk = [qk_mfma(1 - p, c, kb, s) for c in range(4) for kb in range(2) for s in range(4)]
    pv = [pv_mfma(c, p, db) for c in range(4) for db in range(8)]
    mfs = qk[:4] + [sum_mfma(0, p, p), sum_mfma(1, p, p)] + qk[4:] + pv[:4] + [sum_mfma(2, p, p), sum_mfma(3, p, p)] + pv[4:]
    G = [Gap(m) for m in mfs]
    for hf, g0 in ((1, 0), (0, 34)):
        if final and hf == 0:
            continue
        for e in range(16):
            c = 2 * hf + (e >> 3)
            src = (Sreg(p, 2) if hf else Sreg(1 - p, 0)) + e
            G[g0 + 2 * e].valu.append(f'v_exp_f32 {vr(TMP + (e & 3))}, {vr(src)}')
            if e & 1:
                G[g0 + 2 * e + 1].valu.append(f'v_cvt_pk_bf16_f32 {vr(Preg(c, 1 - p) + ((e & 7) >> 1))}, {vr(TMP + ((e - 1) & 3))}, {vr(TMP + (e & 3))}')
    for hf, g0 in ((0, 0), (1, 34)):
        late = final and hf == 1
        G[g0 + (13 if late else 9)].valu.append(f'v_cmp_nle_f32 vcc, {vr(LMreg(hf, 1 - p))}, {vr(THR)}')
        G[g0 + (16 if late else 15)].post += [f's_cbranch_vccnz L_slow{hf}_{tag}', f'L_back{hf}_{tag}:']
    vplace = [1, 1, 3, 5, 5, 7, 9, 11, 13, 13, 17, 17, 19, 21, 21, 23]
    kplace = [35, 35, 37, 41, 43, 45, 53, 57]
    for g, x in zip(vplace, [v_read(slot, db, u) for db in range(8) for u in range(2)]):
        G[g].mem.append(x)
    if not final:
        for g, x in zip(kplace, [k_read(slot, kb, s) for kb in range(2) for s in range(4)]):
            G[g].mem.append(x)
    G[33].pre.append('s_waitcnt lgkmcnt(0)')
    ops = []
    bar2 = OPT.get('bar', 2) == 2
    if dma and bar2:
        ops = [None] * 3 + stage_dma((slot + 6) & 7)
    elif dma and (slot & 3) < 2:
        s0 = ((slot & 4) ^ 4) + 2 * (slot & 1)
        ops = stage_dma(s0) + stage_dma(s0 + 1)
    if extra:
        ops = extra
    for g, x in zip([25, 29, 32, 39, 47, 51, 55, 59, 63, 66] if not final else [25, 29, 32, 34, 35, 36, 37, 40, 41, 42], ops):
        if x is not None:
            place(G, [x], g, g)
    if (slot & 3) == 3 or (bar2 and slot & 1):
        G[66].pre += [f's_waitcnt vmcnt({vm}) lgkmcnt(0)', 's_barrier'] if not final else []
    else:
        G[67].pre.append('s_waitcnt lgkmcnt(0)')
    if final:
        out = []
        for g in G:
            if g.m in qk:
                g.m = 's_nop 0'
            out.append(g)
        return out
    return G

def gapops(G):
    return [[x for x in g.ops() if x is not None] for g in G]

def slow_path(a, p, hf, final=False):
    a.label(f'L_slowfn{hf}_{p}_{int(final)}')
    a('s_nop 15')
    for c in (2 * hf, 2 * hf + 1):
        cur = Sreg(p, c); nxt = Sreg(1 - p, c)
        d = ST + 4 + (c & 1); al = ST + 6 + (c & 1)
        rowmax(a, cur, d, ST + 1)
        a(f'v_max_f32 {vr(d)}, 0, {vr(d)}')
        a(f'v_mov_b32 {vr(ST)}, {vr(LMreg(hf, p))}')
        a(f'v_mov_b32 {vr(ST + 1)}, {vr(LMreg(hf, p))}')
        a('s_nop 1')
        a(f'v_permlane32_swap_b32 {vr(ST)}, {vr(ST + 1)}')
        a(f'v_log_f32 {vr(ST)}, {vr(ST + (c & 1))}')
        a('s_nop 0')
        a(f'v_max_f32 {vr(d)}, {vr(d)}, {vr(ST)}')
        a(f'v_sub_f32 {vr(al)}, 0, {vr(d)}')
        a(f'v_exp_f32 {vr(al)}, {vr(al)}')
        for i in range(8):
            a(f'v_sub_f32 {vr(cur + i)}, {vr(cur + i)}, {vr(d)}')
        if not final:
            for i in range(8):
                a(f'v_sub_f32 {vr(nxt + i)}, {vr(nxt + i)}, {vr(d)}')
        for i in range(4):
            a(f'v_sub_f32 {vr(NM + 4 * c + i)}, {vr(NM + 4 * c + i)}, {vr(d)}')
        for i in range(32):
            a(f'v_accvgpr_read_b32 {vr(ST + 2)}, {ar(Oreg(c, 0) + i)}')
            a(f'v_mul_f32 {vr(ST + 2)}, {vr(ST + 2)}, {vr(al)}')
            a(f'v_accvgpr_write_b32 {ar(Oreg(c, 0) + i)}, {vr(ST + 2)}')
        softmax_c(a, cur, Preg(c, p), ST + 2)
    a(f'v_cmp_gt_u32 vcc, 32, {vr(LANE)}')
    a('s_nop 1')
    a(f'v_cndmask_b32 {vr(ST)}, {vr(ST + 7)}, {vr(ST + 6)}, vcc')
    for i in range(4):
        a(f'v_mul_f32 {vr(LMreg(hf, p) + i)}, {vr(LMreg(hf, p) + i)}, {vr(ST)}')
    a('s_nop 1')
    a(sum_mfma(2 * hf, p, p)); a(sum_mfma(2 * hf + 1, p, p))
    a('s_nop 7')
    a('s_setpc_b64 s[98:99]')

SLOW = []
def phase_b(a, opt):
    b_prologue(a, opt)
    stamp(a, opt, 'B0')
    a(f's_mov_b32 {sr(sCNT)}, 7')
    a.raw('.p2align 6')
    a.label('L_attn')
    G = []
    for sl in range(8):
        G += step_gaps(sl, f's{sl}', opt, vm=16 if OPT.get('bar', 2) == 2 else 0); SLOW.append((sl & 1, f's{sl}', False))
    G[6 * 68 + 27].pre.append(f's_cmp_ge_u32 {sr(sCNT)}, 5')
    G[6 * 68 + 27].post += ['s_cbranch_scc1 L_hook', 'L_hookback:']
    G[-6].pre.append(f's_sub_u32 {sr(sCNT)}, {sr(sCNT)}, 1')
    G[-4].pre.append(f's_cmp_lg_u32 {sr(sCNT)}, 0')
    G[-1].post.append('s_cbranch_scc1 L_attn')
    emit_gaps(a, gapops(G))
    a.raw('.p2align 3')
    G = []
    pa = [c_load_a(t, nb) for t in range(4) for nb in range(4)]
    pb = [c_load_b(t, j) for t in range(4) for j in range(4)]
    for t in range(1, 4):
        pa[4 * t] = (f's_add_u32 {sr(sAO)}, {sr(sAO)}, 4096', pa[4 * t])
    extra = {4: pa[:8], 5: pa[8:], 6: [None] * 3 + pb[:6], 7: pb[6:]}
    for sl in range(8):
        b2 = OPT.get('bar', 2) == 2
        g = step_gaps(sl, f't{sl}', opt, dma=sl < (2 if b2 else 4), final=sl == 7, extra=extra.get(sl), vm={1: 16, 3: 0, 5: 16}.get(sl, 0) if b2 else 0); SLOW.append((sl & 1, f't{sl}', sl == 7))
        if sl == 2:
            su = c_setup_scalar()
            for k in range(0, len(su), 2):
                g[2 + k].pre += su[k:k + 2]
            g[63].mem.append(f'buffer_load_dword {vr(POLLV)}, off, {sr(SRD_DBG, 4)}, 0 sc1')
        if sl == 4:
            g[17].valu.append(f'v_cmp_ne_u32 vcc, 0x100, {vr(POLLV)}')
            g[23].post += ['s_cbranch_vccnz L_pollall', 'L_pollall_ok:']
        G += g
    emit_gaps(a, gapops(G))
    stamp(a, opt, 'Bend')

def finalize_o(a, opt):
    a(f'''
    s_lshl_b32 s3, {sr(sQB)}, 4
    s_lshl_b32 s7, {sr(sW)}, 2
    s_add_u32 s3, s3, s7
    s_mul_i32 s3, s3, {OST()}
    s_lshl_b32 s7, {sr(sH)}, 12
    s_add_u32 s3, s3, s7
    s_nop 3
    ''')
    for c in range(4):
        a(f'v_mov_b32 {vr(ST + 2 * c)}, {vr(LMreg(c >> 1, 0))}')
        a(f'v_mov_b32 {vr(ST + 2 * c + 1)}, {vr(LMreg(c >> 1, 0))}')
    for c in range(4):
        a(f'v_permlane32_swap_b32 {vr(ST + 2 * c)}, {vr(ST + 2 * c + 1)}')
    for c in range(4):
        a(f'v_rcp_f32 {vr(RL + c)}, {vr(ST + 2 * c + (c & 1))}')
    n = 0
    for c in range(4):
        e = (RL + c) & ~1; hh = (RL + c) & 1
        for f in range(4):
            tb = 160 + (n & 1) * 8
            pb = 176 + (n & 7) * 4
            n += 1
            for i in range(8):
                a(f'v_accvgpr_read_b32 {vr(tb + i)}, {ar(Oreg(c, 2 * f) + i)}')
            for i in range(0, 8, 2):
                a(f'v_pk_mul_f32 {vr(tb + i, 2)}, {vr(tb + i, 2)}, {vr(e, 2)} op_sel:[0,{hh}] op_sel_hi:[1,{hh}]')
            for i in range(4):
                a(f'v_cvt_pk_bf16_f32 {vr(pb + i)}, {vr(tb + 2 * i)}, {vr(tb + 2 * i + 1)}')
            a(f'buffer_store_dwordx4 {vr(pb, 4)}, {vr(CL16)}, {sr(SRD_WS, 4)}, s3 offen offset:{1024 * f} {OPT.get("stsc", "sc1")}')
        if c < 3:
            a(f's_add_u32 s3, s3, {OST()}')

NF = 14; NS = 32; DEPTH = 7
def c_setup_scalar():
    ops = []
    for j in range(4):
        ops += [f's_add_u32 s3, {sr(sW)}, {j}', 's_and_b32 s3, s3, 3', f's_lshl_b32 s7, {sr(sRB)}, 2', 's_add_u32 s3, s3, s7', 's_mul_i32 s3, s3, 57344',
                f's_mul_i32 s7, {sr(sW)}, {NF * 1024}', 's_add_u32 s3, s3, s7', f's_add_u32 {sr(sBO + j)}, s3, {WS_H}']
    ops += [f's_mul_i32 s3, {sr(sCB)}, {WFS}', f's_mul_i32 s7, {sr(sW)}, {NF * 4096}', 's_add_u32 s3, s3, s7', f's_add_u32 {sr(sAO)}, s3, {WS_WF}']
    return ops

def c_switch_to_s():
    ops = []
    for j in range(4):
        ops += [f's_add_u32 s3, {sr(sW)}, {j}', 's_and_b32 s3, s3, 3', f's_lshl_b32 s7, {sr(sRB)}, 2', 's_add_u32 s3, s3, s7',
                f's_mul_i32 s3, s3, {OST()}', f's_lshl_b32 s7, {sr(sW)}, 15', f's_add_u32 {sr(sBO + j)}, s3, s7']
    ops += [f's_mul_i32 s3, {sr(sCB)}, {WFS}', f's_lshl_b32 s7, {sr(sW)}, 17', 's_add_u32 s3, s3, s7', f's_add_u32 {sr(sAO)}, s3, {WS_WF + 56 * 4096 - 4096}']
    return ops

def c_load_a(t, nb):
    return f'buffer_load_dwordx4 {ar(CAr(t & 7) + nb * 4, 4)}, {vr(CL16)}, {sr(SRD_WS, 4)}, {sr(sAO)} offen offset:{1024 * nb} sc1'
def c_load_b(t, j):
    k = t if t < NF else t - NF
    return f'buffer_load_dwordx4 {vr(CB + (t & 7) * 16 + j * 4, 4)}, {vr(CL16)}, {sr(SRD_WS, 4)}, {sr(sBO + j)} offen offset:{1024 * (k & 3)} sc1'
def c_issue(t):
    k = t if t < NF else t - NF
    pre = [f's_add_u32 {sr(sAO)}, {sr(sAO)}, 4096']
    if (k & 3) == 0 and k:
        pre += [f's_add_u32 {sr(sBO + j)}, {sr(sBO + j)}, 4096' for j in range(4)]
    mem = []
    for i in range(4):
        if not OPT.get('c_now'): mem.append(c_load_a(t, i))
        if not OPT.get('c_nob'): mem.append(c_load_b(t, i))
    return pre, mem
def NOP(): return 4 if OPT.get('c_now') or OPT.get('c_nob') else 8

def poll(a, name, srdreg, soff, nlanes, expect, ret=None):
    a(f's_mov_b64 exec, {(1 << nlanes) - 1}')
    a.label(name + '_l')
    a(f'''
    buffer_load_dword v5, v4, {sr(srdreg, 4)}, {soff} offen sc1
    s_waitcnt vmcnt(0)
    v_cmp_ne_u32 vcc, {expect}, v5
    s_cbranch_vccz {name}_d
    s_sleep 1
    s_branch {name}_l
    {name}_d:
    s_mov_b64 exec, -1
    ''')
    if ret:
        a(f's_nop 3\ns_branch {ret}')

def hooks(a):
    a(f'''
    L_pollall:
    v_mov_b32 v4, 0
    ''')
    poll(a, 'L_pa', SRD_DBG, '0', 1, '0x100', ret='L_pollall_ok')
    T = ST
    a(f'''
    L_hook:
    s_cmp_eq_u32 {sr(sCNT)}, 5
    s_cbranch_scc1 L_hook_cnt
    s_cmp_ge_u32 s2, 184
    s_cbranch_scc1 L_hookback
    s_lshl_b32 s7, {sr(sW)}, 13
    s_add_u32 s7, s7, 131072
    s_cmp_eq_u32 {sr(sCNT)}, 6
    s_cbranch_scc1 L_hook_st
    v_lshlrev_b32 {vr(T)}, 1, v3
    v_xor_b32 {vr(T)}, {vr(T)}, v2
    v_lshlrev_b32 {vr(T)}, 4, {vr(T)}
    v_lshl_add_u32 {vr(T)}, v3, 10, {vr(T)}
    s_lshl_b32 s3, {sr(sW)}, 8
    v_add_u32 {vr(T)}, s3, {vr(T)}
    v_xor_b32 {vr(T + 1)}, 128, {vr(T)}
    ''')
    for i in range(8):
        if i % 4 == 0:
            a(f's_add_u32 m0, s7, {(i // 4) * 4096}')
        a(f's_mov_b32 s3, {i * 4096 - 1024 * (i & 3)}')
        a(f'buffer_load_dwordx4 {vr(T + (i & 1))}, {sr(SRD_WO, 4)}, s3 offen offset:{1024 * (i & 3)} lds')
    a(f'''
    s_branch L_hookback
    L_hook_st:
    v_lshrrev_b32 {vr(T)}, 2, v1
    v_and_b32 {vr(T + 1)}, 7, {vr(T)}
    v_lshlrev_b32 {vr(T)}, 8, {vr(T)}
    v_lshl_add_u32 {vr(T)}, {vr(T + 1)}, 5, {vr(T)}
    v_and_b32 {vr(T + 1)}, 3, v1
    v_lshl_add_u32 {vr(T)}, {vr(T + 1)}, 3, {vr(T)}
    v_add_u32 {vr(T)}, s7, {vr(T)}
    ''')
    for db in range(8):
        a(f'v_xor_b32 {vr(T + 1)}, {db * 32}, {vr(T)}')
        for u in range(2):
            a(f'ds_read_b64_tr_b16 {ar(WPR + db * 4 + 2 * u, 2)}, {vr(T + 1)} offset:{u * 4096}')
    a(f'''
    s_sub_u32 s3, s2, 128
    s_add_u32 s7, s2, 56
    s_cmp_lt_u32 s2, 128
    s_cselect_b32 s3, s7, s3
    s_lshl_b32 s3, s3, 12
    s_mul_i32 s7, {sr(sW)}, {2 * WFS}
    s_add_u32 s3, s3, s7
    s_add_u32 s3, s3, {WS_WF}
    s_add_u32 s7, s3, {WFS}
    s_waitcnt lgkmcnt(0)
    ''')
    for db in range(8):
        a(f'buffer_store_dwordx4 {ar(WPR + db * 4, 4)}, {vr(CL16)}, {sr(SRD_WS, 4)}, {"s3" if db < 4 else "s7"} offen offset:{1024 * (db & 3)} sc1')
    a(f'''
    s_branch L_hookback
    L_hook_cnt:
    s_cmp_lg_u32 {sr(sW)}, 0
    s_cbranch_scc1 L_hookback
    v_mov_b32 {vr(T)}, 1
    s_mov_b64 exec, 1
    buffer_atomic_add {vr(T)}, off, {sr(SRD_DBG, 4)}, 0 sc1
    s_mov_b64 exec, -1
    s_nop 3
    s_branch L_hookback
    ''')

FR = 160
def red_write(acc, j, nb, base): return f'ds_write_b128 {vr(CRW + j - 1)}, {ar(acc + (nb * 4 + j) * 4, 4)} offset:{base + nb * 1024}'
def red_read(r, nb, base): return f'ds_read_b128 {vr(FR + r * 16 + nb * 4, 4)}, {vr(CRR)} offset:{base + r * 4096 + nb * 1024}'

def phase_c(a, opt):
    T = NF + NS
    finalize_o(a, opt)
    stamp(a, opt, 'Ofin')
    for t in range(4, DEPTH):
        p, m = c_issue(t)
        for x in p + m: a(x)
    for j in range(1, 4):
        a(f's_add_u32 s3, {sr(sW)}, {j}\ns_and_b32 s3, s3, 3\ns_mul_i32 s3, s3, 12288\ns_add_u32 s3, s3, {(j - 1) * 4096}\nv_add_u32 {vr(CRW + j - 1)}, s3, {vr(CL16)}')
    a(f'''
    s_mul_i32 s3, {sr(sW)}, 12288
    v_add_u32 {vr(CRR)}, s3, {vr(CL16)}
    s_mov_b32 s{SRD_X}, s96
    s_mov_b32 s{SRD_X + 1}, s97
    s_mov_b32 s{SRD_X + 2}, 2097152
    s_mov_b32 s{SRD_X + 3}, 0x20000
    v_lshlrev_b32 v5, 3, v3
    v_lshl_add_u32 {vr(COUT)}, v2, 10, v5
    s_lshl_b32 s3, {sr(sRB)}, 16
    s_lshl_b32 s7, {sr(sW)}, 14
    s_add_u32 s3, s3, s7
    s_lshl_b32 s7, {sr(sCB)}, 7
    s_add_u32 {sr(sOV)}, s3, s7
    v_mov_b32 v4, 1
    v_mov_b32 v5, 0
    s_waitcnt vmcnt({NOP() * (DEPTH - 4)})
    s_mov_b64 exec, 1
    buffer_store_dword v4, v5, {sr(SRD_WS, 4)}, s94 offen sc1
    s_mov_b64 exec, -1
    ''')
    stamp(a, opt, 'Oflag')
    a.raw('.p2align 3')
    GV = 224
    for t in range(T):
        acc = ACF if t < NF else ACS_
        first = t in (0, NF)
        G = []
        for nb in range(4):
            for j in range(4):
                d = ar(acc + (nb * 4 + j) * 4, 4)
                G.append(Gap(mf(d, ar(CAr(t & 7) + nb * 4, 4), vr(CB + (t & 7) * 16 + j * 4, 4), '0' if first else d)))
        tn = t + DEPTH
        extra = 0
        if tn == NF:
            stamp(a, opt, 'poll0')
            for x in c_switch_to_s(): a(x)
            a(f's_lshl_b32 s3, {sr(sRB)}, 7\ns_lshl_b32 s7, {sr(sW)}, 5\ns_add_u32 s3, s3, s7\ns_add_u32 s3, s3, {WS_FLAG}\nv_lshlrev_b32 v4, 2, {vr(LANE)}')
            poll(a, 'L_po', SRD_WS, 's3', 8, 1)
            stamp(a, opt, 'poll1')
            a.raw('.p2align 3')
        if t == NF: stamp(a, opt, 'fend')
        if tn < T:
            p, m = c_issue(tn)
            G[0].pre += p
            place(G, m, 0, 8)
        if t == T - DEPTH:
            place(G, [f'buffer_load_dwordx2 {vr(CXR + 2 * nb, 2)}, {vr(COUT)}, {sr(SRD_X, 4)}, {sr(sOV)} offen offset:{32 * nb}' for nb in range(4)], 0, 8)
        if t + 1 < T:
            outstanding = NOP() * (min(T - 1, tn) - (t + 1)) + (4 if t >= T - DEPTH else 0)
            G[15].post.append(f's_waitcnt vmcnt({outstanding})')
        if NF + 1 <= t <= NF + 3:
            place(G, [red_write(ACF, t - NF, nb, 0) for nb in range(4)], 9, 15, cap=1)
        if t == NF + 4:
            place(G, [f'v_accvgpr_read_b32 {vr(GV + nb * 4 + i)}, {ar(ACF + nb * 16 + i)}' for nb in range(4) for i in range(4)], 8, 15, kind='valu')
            G[15].post += ['s_waitcnt lgkmcnt(0)', 's_barrier']
        if t == NF + 5:
            place(G, [red_read(r, nb, 0) for r in range(3) for nb in range(4)], 8, 15)
        if t == NF + 6:
            G[7].post.append('s_waitcnt lgkmcnt(0)')
        if NF + 6 <= t <= NF + 8:
            place(G, [f'v_add_f32 {vr(GV + k)}, {vr(GV + k)}, {vr(FR + (t - NF - 6) * 16 + k)}' for k in range(16)], 8, 15, kind='valu')
        if t == NF + 9:
            place(G, [f'v_mul_f32 {vr(FR + k)}, {f2u(-math.log2(math.e))}, {vr(GV + k)}' for k in range(16)], 8, 15, kind='valu')
        if t in (NF + 10, NF + 11):
            for k in range(8): G[8 + k].valu.append(f'v_exp_f32 {vr(FR + (t - NF - 10) * 8 + k)}, {vr(FR + (t - NF - 10) * 8 + k)}')
        if t == NF + 12:
            place(G, [f'v_add_f32 {vr(FR + k)}, 1.0, {vr(FR + k)}' for k in range(16)], 8, 15, kind='valu')
        if t in (NF + 13, NF + 14):
            for k in range(8): G[8 + k].valu.append(f'v_rcp_f32 {vr(FR + (t - NF - 13) * 8 + k)}, {vr(FR + (t - NF - 13) * 8 + k)}')
        if t == NF + 15:
            place(G, [f'v_mul_f32 {vr(GV + k)}, {vr(GV + k)}, {vr(FR + k)}' for k in range(16)], 8, 15, kind='valu')
        emit_gaps(a, gapops(G), align=False)
    stamp(a, opt, 'send')
    a('s_nop 3')
    for k in range(8):
        a(f'v_lshlrev_b32 {vr(32 + 2 * k)}, 16, {vr(CXR + k)}') if False else None
    a('s_nop 3')
    for j in range(1, 4):
        for nb in range(4):
            a(red_write(ACS_, j, nb, 49152))
    SV = 208
    for nb in range(4):
        for i in range(4):
            a(f'v_accvgpr_read_b32 {vr(SV + nb * 4 + i)}, {ar(ACS_ + nb * 16 + i)}')
    a('s_waitcnt vmcnt(0)')
    for k in range(8):
        a(f'v_lshlrev_b32 {vr(32 + 2 * k)}, 16, {vr(CXR + k)}')
        a(f'v_and_b32 {vr(33 + 2 * k)}, 0xffff0000, {vr(CXR + k)}')
    a('s_waitcnt lgkmcnt(0)\ns_barrier')
    for r in range(3):
        for nb in range(4):
            a(red_read(r, nb, 49152))
    for r in range(3):
        a(f's_waitcnt lgkmcnt({4 * (2 - r)})')
        for k in range(0, 16, 2):
            a(f'v_pk_add_f32 {vr(SV + k, 2)}, {vr(SV + k, 2)}, {vr(FR + r * 16 + k, 2)}')
    for k in range(0, 16, 2):
        a(f'v_pk_fma_f32 {vr(SV + k, 2)}, {vr(SV + k, 2)}, {vr(GV + k, 2)}, {vr(32 + k, 2)}')
    for k in range(8):
        a(f'v_cvt_pk_bf16_f32 {vr(CXR + k)}, {vr(SV + 2 * k)}, {vr(SV + 1 + 2 * k)}')
    for nb in range(4):
        a(f'buffer_store_dwordx2 {vr(CXR + 2 * nb, 2)}, {vr(COUT)}, {sr(SRD_OUT, 4)}, {sr(sOV)} offen offset:{32 * nb}')

OPT = {}
def gen(opt):
    OPT.clear(); OPT.update(opt)
    SLOW.clear(); STAMPS.clear()
    a = A()
    setup(a, opt)
    phase_a(a, opt)
    phase_b(a, opt)
    phase_c(a, opt)
    if opt.get('stamp'):
        a('s_waitcnt vmcnt(0)')
        stamp(a, opt, 'end')
        a(f'''
        s_waitcnt lgkmcnt(0)
        s_lshl_b32 s3, s2, 2
        s_add_u32 s3, s3, {sr(sW)}
        s_lshl_b32 s3, s3, 6
        s_add_u32 s3, s3, {WS_STAMP}
        v_mov_b32 v1, 0
        v_mov_b32 v4, v0
        ''')
        for i in range(12): a(f'v_mov_b32 v{5 + i}, s{sST + 2 * i}')
        for i in range(4):
            a(f'buffer_store_dwordx4 v[{4 + 4 * i}:{7 + 4 * i}], v1, {sr(SRD_WS, 4)}, s3 offen offset:{16 * i}')
    a.label('L_end')
    a('s_endpgm')
    hooks(a)
    for p, tag, final in SLOW:
        for hf in range(2):
            a.label(f'L_slow{hf}_{tag}')
            a(f's_call_b64 s[98:99], L_slowfn{hf}_{p}_{int(final)}')
            a(f's_branch L_back{hf}_{tag}')
    for p, final in sorted({(p, f) for p, _, f in SLOW}):
        for hf in range(2):
            slow_path(a, p, hf, final)
    return kernel_file(f'; ost {OST()}\n; stamps entry ' + ' '.join(STAMPS) + '\n' + a.text(), 'grid=(256,1,1) block=(256,1,1) lds=163840')

if __name__ == '__main__':
    opt = json.loads(sys.argv[2]) if len(sys.argv) > 2 else {}
    open(sys.argv[1], 'w').write(gen(opt))
```

```python
import sys, json, math, struct
sys.path.insert(0, 'gen')
from asmlib import *

def f2u(x): return '0x%08x' % struct.unpack('<I', struct.pack('<f', x))[0]

WS_O = 0; WS_H = 17 << 20; WS_FLAG = 24 << 20; WS_WF = 25 << 20; WS_STAMP = 32 << 20
WFS = 184 * 4096
sH = 4; sQB = 5; sW = 6
SRD_K = 8; SRD_V = 12; SRD_WS = 16; SRD_X = 20; SRD_WQ = 24; SRD_WG = 28; SRD_WU = 32; SRD_WO = 36; SRD_WD = 40; SRD_OUT = 44; SRD_DBG = 48
sOK = 52; sOV = 53; sM = 54; sCNT = 55; sT0 = 56; sT1 = 57; sT2 = 58; sT3 = 59
sXO = 60; sQO = 61; sGO = 62; sWB = 63
sW4K = 88; sRB = 89; sCB = 90; sBO = 56; sFL = 91; sWQB = 92; sWGB = 93
sDL = 95
sST = 64
KA = 8; VAA = 16; DK0 = 28; DK1 = 29; DV0 = 30; DV1 = 31; VAB = 244
Q = 32; S = 96; NM = 160; PA = 176; PB = 192; TMP = 200; ST = 204; THR = 220; LANE = 1; LM = 224; RL = 240
O = 0; KF = 128; VF = 160; ONES = (24, 216); WPR = 192
STAGE = 16384
AQ = 8; AG = 12; AC = 16; AX = 20; DQ = 22; DG = 23; DX = 24
XF = 32; ACQ = 96; SX = 224; SXX = 240
AGU = 0; AR = 128; ACS = 160; ONE1 = 176
XBUF = 0; WBUF = 65536; CSBUF = 65536
CB = 32
def CAr(sl): return (192 + sl * 16) if sl < 4 else (sl - 4) * 16
ACF = 128; ACS_ = 64
CL16 = 7
CRW = 8; CRR = 11; COUT = 12; CXR = 16
sAO = 60; POLLV = 6

def OST(): return OPT.get('ost', 135168)
def mf(d, a_, b_, c):
    return f'v_mfma_f32_16x16x32_bf16 {d}, {a_}, {b_}, {c}'

class Gap:
    def __init__(self, m):
        self.m = m; self.pre = []; self.mem = []; self.valu = []; self.post = []
    def ops(self):
        return [self.m] + self.pre + self.mem + self.valu + self.post
    def units(self):
        u = 0
        for x in self.mem: u += 2 if x.startswith('buffer') else 1
        for x in self.valu: u += 2 if x.startswith(('v_exp', 'v_rcp', 'v_log', 'v_rsq')) else 1
        return u

def place(G, ops, lo, hi=None, kind='mem', cap=2):
    g = lo
    for x in ops:
        pre = []
        if isinstance(x, tuple):
            pre, x = list(x[:-1]), x[-1]
        need = 2 if x.startswith('buffer') else 1
        while G[g].units() + need > cap:
            g += 1
        if hi is not None:
            assert g <= hi, (x, g, hi)
        if pre:
            if ' m0,' in pre[-1]:
                pre.append('s_nop 0')
            G[g].pre += pre
        getattr(G[g], kind).append(x)
    return g

STAMPS = []
def stamp_op(name):
    if not OPT.get('stamp') or (OPT.get('only') and name not in OPT['only']):
        return []
    k = len(STAMPS); STAMPS.append(name)
    assert k < 12
    return [f'{"s_memtime" if OPT.get("cyc") else "s_memrealtime"} s[{sST + 2 * k}:{sST + 2 * k + 1}]']
def stamp(a, opt, name):
    for x in stamp_op(name): a(x)

def srd(a, base, lo, hi, nrec, add=None, sub=None):
    if add is not None:
        a(f's_add_u32 s{base}, s{lo}, {add}')
        a(f's_addc_u32 s{base + 1}, s{hi}, 0')
    else:
        a(f's_mov_b32 s{base}, s{lo}')
        a(f's_mov_b32 s{base + 1}, s{hi}')
    if sub is not None:
        a(f's_sub_u32 s{base}, s{base}, {sub}')
        a(f's_subb_u32 s{base + 1}, s{base + 1}, 0')
    a(f's_mov_b32 s{base + 2}, {nrec}')
    a(f's_mov_b32 s{base + 3}, 0x20000')

def setup(a, opt):
    a(f'''
    s_cmp_ge_u32 s2, 256
    s_cbranch_scc1 L_end
    {("s_memtime" if opt.get("cyc") else "s_memrealtime") + " s[98:99]" if opt.get("stamp") else ""}
    s_load_dwordx16 s[64:79], s[0:1], 0
    s_load_dwordx8 s[80:87], s[0:1], 64
    v_lshrrev_b32 v4, 6, v0
    v_and_b32 v1, 63, v0
    v_readfirstlane_b32 {sr(sW)}, v4
    s_and_b32 s3, s2, 7
    s_bfe_u32 s7, s2, 0x20003
    s_lshl_b32 s7, s7, 3
    s_add_u32 {sr(sH)}, s3, s7
    s_lshr_b32 {sr(sQB)}, s2, 5
    s_lshl_b32 {sr(sW4K)}, {sr(sW)}, 12
    s_lshr_b32 s7, s2, 6
    s_lshl_b32 s3, s3, 2
    s_add_u32 {sr(sRB)}, s3, s7
    s_bfe_u32 {sr(sCB)}, s2, 0x30003
    v_and_b32 v2, 15, v1                ; r = l&15
    v_lshrrev_b32 v3, 4, v1             ; g = l>>4
    s_waitcnt lgkmcnt(0)
    ''')
    if opt.get('stamp'): a('v_mov_b32 v0, s98')
    a(f's_lshl_b32 s3, {sr(sQB)}, 18\ns_lshl_b32 s7, {sr(sW)}, 16\ns_add_u32 s3, s3, s7')
    srd(a, SRD_X, 64, 65, 65536, add='s3')
    a(f's_lshl_b32 s3, {sr(sH)}, 8')
    srd(a, SRD_WQ, 70, 71, 511 * 8192 + 256, add='s3')
    a(f's_lshl_b32 s3, {sr(sH)}, 7\ns_cmp_lt_u32 {sr(sH)}, 28\ns_cselect_b32 s3, s3, 0\ns_cselect_b32 s7, {511 * 3584 + 128}, 0')
    srd(a, SRD_WG, 76, 77, 's7', add='s3')
    srd(a, SRD_WU, 78, 79, 's7', add='s3')

def setup2(a, opt):
    a(f's_lshl_b32 s3, {sr(sH)}, 19')
    srd(a, SRD_K, 66, 67, 524288, add='s3')
    srd(a, SRD_V, 68, 69, 524288 + 2048, add='s3', sub=2048)
    srd(a, SRD_WS, 86, 87, 0x10000000)
    a('s_cmp_lt_u32 s2, 128\ns_cselect_b32 s72, s72, s80\ns_cselect_b32 s73, s73, s81\ns_and_b32 s3, s2, 127\ns_lshl_b32 s3, s3, 15')
    a('s_cmp_lt_u32 s2, 184\ns_cselect_b32 s3, s3, 0')
    srd(a, SRD_WO, 72, 73, 32768, add='s3')
    srd(a, SRD_OUT, 82, 83, 2097152)
    srd(a, SRD_DBG, 84, 85, 256)
    a('s_mov_b32 s96, s64\ns_mov_b32 s97, s65')

def a_setup_dma_addr(a):
    a(f'''
    s_lshl_b32 s3, {sr(sW)}, 3
    v_add_u32 v4, s3, v3                 ; row = 8w + (l>>4)
    v_lshlrev_b32 v5, 2, v3
    v_xor_b32 v5, v5, v2
    v_lshlrev_b32 v5, 4, v5
    v_lshl_add_u32 {vr(DQ)}, v4, 13, v5
    v_lshrrev_b32 v4, 3, v1              ; rho = l>>3
    v_and_b32 v5, 3, v4
    v_lshrrev_b32 v6, 5, v1
    v_lshl_add_u32 v5, v6, 3, v5
    s_lshr_b32 s3, {sr(sW)}, 1
    s_lshl_b32 s3, s3, 4
    s_and_b32 s7, {sr(sW)}, 1
    s_lshl_b32 s7, s7, 2
    s_add_u32 s3, s3, s7
    v_add_u32 v5, s3, v5                 ; W row
    v_mul_u32_u24 v5, 3584, v5
    v_lshlrev_b32 v6, 1, v3
    v_and_b32 v7, 7, v1
    v_xor_b32 v6, v6, v7
    v_lshl_add_u32 {vr(DG)}, v6, 4, v5
    v_xor_b32 v6, v3, v7
    v_lshlrev_b32 v6, 4, v6
    v_lshl_add_u32 {vr(DX)}, v4, 10, v6
    v_xor_b32 {vr(DX + 1)}, 64, {vr(DX)}
    ''')

def a_dma_x(j_par):
    ops = []
    for i in range(8):
        pre = []
        if i % 4 == 0:
            pre.append(f's_add_u32 m0, {sr(sT3)}, {XBUF + j_par * 32768 + (i // 4) * 4096}')
        pre.append(f's_add_u32 {sr(sT0 + (i & 1))}, {sr(sXO)}, {i * 8192 - 1024 * (i & 3)}')
        ops.append(tuple(pre) + (f'buffer_load_dwordx4 {vr(DX + (i & 1))}, {sr(SRD_X, 4)}, {sr(sT0 + (i & 1))} offen offset:{1024 * (i & 3)} lds',))
    return ops, [f's_add_u32 {sr(sXO)}, {sr(sXO)}, 128', f's_and_b32 {sr(sXO)}, {sr(sXO)}, 1023']

def a_dma_w():
    ops = []
    for ks in range(2):
        ops.append((f's_add_u32 m0, {sr(sWQB)}, {ks * 16384}', f's_add_u32 {sr(sT0)}, {sr(sQO)}, {ks * 32 * 8192}',
                    f'buffer_load_dwordx4 {vr(DQ)}, {sr(SRD_WQ, 4)}, {sr(sT0)} offen lds'))
        ops.append((f's_add_u32 {sr(sT1)}, {sr(sQO)}, {ks * 32 * 8192 + 4 * 8192 - 1024}',
                    f'buffer_load_dwordx4 {vr(DQ)}, {sr(SRD_WQ, 4)}, {sr(sT1)} offen offset:1024 lds'))
        ops.append((f's_add_u32 m0, {sr(sWGB)}, {ks * 16384}', f's_add_u32 {sr(sT0)}, {sr(sGO)}, {ks * 32 * 3584}',
                    f'buffer_load_dwordx4 {vr(DG)}, {sr(SRD_WG, 4)}, {sr(sT0)} offen lds'))
        ops.append((f's_add_u32 m0, m0, 4096',
                    f'buffer_load_dwordx4 {vr(DG)}, {sr(SRD_WU, 4)}, {sr(sT0)} offen lds'))
    adv = [f's_add_u32 {sr(sQO)}, {sr(sQO)}, {64 * 8192}', f's_and_b32 {sr(sQO)}, {sr(sQO)}, 0x3fffff', f's_lshr_b32 {sr(sGO)}, {sr(sQO)}, 13', f's_mul_i32 {sr(sGO)}, {sr(sGO)}, 3584',
           f's_add_u32 {sr(sWB)}, {sr(sWB)}, 1', f's_cmp_eq_u32 {sr(sWB)}, 3', f's_cselect_b32 {sr(sT2)}, -2, 1', f's_cselect_b32 {sr(sWB)}, 0, {sr(sWB)}',
           f's_lshl_b32 {sr(sT2)}, {sr(sT2)}, 15', f's_add_u32 {sr(sWQB)}, {sr(sWQB)}, {sr(sT2)}', f's_add_u32 {sr(sWGB)}, {sr(sWGB)}, {sr(sT2)}']
    return ops, adv

def emit_plain(a, ops):
    for x in ops:
        if isinstance(x, tuple):
            for y in x[:-1]: a(y)
            a('s_nop 0')
            a(x[-1])
        else:
            a(x)

def a_setup_read_addr(a):
    a(f'''
    v_bfe_u32 v4, v1, 2, 2               ; r'
    v_and_b32 v5, 3, v1                  ; c'
    v_lshl_add_u32 v6, v3, 3, v4         ; 8g + r'
    v_lshlrev_b32 v6, 8, v6
    v_lshl_add_u32 v6, v4, 6, v6         ; + (r'<<2)*16
    v_lshl_add_u32 v6, v5, 4, v6         ; + c'*16
    v_add_u32 v6, {WBUF}, v6
    ''')
    for sp in range(4):
        a(f'v_xor_b32 {vr(AQ + sp)}, {sp * 64}, v6')
    a(f'''
    v_bfe_u32 v6, v1, 2, 3               ; rho = 4(g&1) + r'
    v_lshrrev_b32 v7, 1, v6              ; key2
    v_lshlrev_b32 v6, 7, v6
    v_lshl_add_u32 v6, v7, 5, v6
    v_lshl_add_u32 v6, v5, 3, v6
    v_lshrrev_b32 v7, 5, v1
    v_lshl_add_u32 v6, v7, 11, v6
    v_add_u32 v6, {WBUF + 8192}, v6
    ''')
    for nb in range(4):
        a(f'v_xor_b32 {vr(AG + nb)}, {nb * 32}, v6')
    a(f's_cmp_eq_u32 {sr(sW)}, 0\ns_cselect_b64 s[98:99], -1, 0\ns_cmp_lt_u32 {sr(sW)}, 2\ns_cselect_b64 s[100:101], -1, 0')
    a(f's_and_b32 s3, {sr(sW)}, 1\ns_lshl_b32 s3, s3, 12')
    for k in range(4):
        a(f'v_cndmask_b32 v4, {vr(AQ + 2 + (k >> 1))}, {vr(AQ + (k >> 1))}, s[98:99]')
        if k & 1:
            a('v_add_u32 v4, 8, v4')
        a(f'v_add_u32 v5, s3, {vr(AG + k)}')
        a(f'v_cndmask_b32 {vr(AC + k)}, v5, v4, s[100:101]')
    a(f'''
    v_lshrrev_b32 v4, 1, v2
    v_xor_b32 v4, v4, v3
    v_lshlrev_b32 v4, 4, v4
    v_lshl_add_u32 v4, v2, 7, v4
    v_add_u32 {vr(AX)}, {sr(sT3)}, v4
    v_xor_b32 {vr(AX + 1)}, 64, {vr(AX)}
    v_mov_b32 v4, 0x3f803f80
    ''')
    for i in range(4):
        a(f'v_accvgpr_write_b32 {ar(ONE1 + i)}, v4')

def Xreg(par, c, ks): return XF + par * 32 + c * 8 + ks * 4
def accA(nb, c):
    return vr(ACQ + (nb * 4 + c) * 4, 4) if nb < 8 else ar(AGU + ((nb - 8) * 4 + c) * 4, 4)
def a_reads(grp):
    out = []
    for ks in range(2):
        for u in range(2):
            off = ks * 16384 + u * 1024
            if grp < 8:
                ad = AQ + (grp >> 1); off += 8 * (grp & 1)
            elif grp < 16:
                ad = AG + (grp & 3); off += 4096 * ((grp - 8) >> 2)
            else:
                ad = AC + grp - 16
            out.append(f'ds_read_b64_tr_b16 {ar(AR + (grp & 3) * 8 + ks * 4 + 2 * u, 2)}, {vr(ad)} offset:{off}')
    return out
def x_reads(par):
    return [f'ds_read_b128 {vr(Xreg(par, c, ks), 4)}, {vr(AX + ks)} offset:{XBUF + par * 32768 + c * 2048}' for c in range(4) for ks in range(2)]

def a_superstep(par, first, tail, kv_ops=None, name=None, pre_ops=None, pre_adv=None):
    G = []; start = []
    for grp in range(20):
        start.append(len(G))
        sl = AR + (grp & 3) * 8
        if grp < 16:
            for c in range(4):
                for ks in range(2):
                    d = accA(grp, c)
                    G.append(Gap(mf(d, ar(sl + 4 * ks, 4), vr(Xreg(par, c, ks), 4), '0' if first and ks == 0 else d)))
        else:
            k = grp - 16
            for ks in range(2):
                d = ar(ACS + 4 * k, 4)
                G.append(Gap(mf(d, ar(sl + 4 * ks, 4), ar(ONE1, 4), '0' if first and ks == 0 else d)))
            for ks in range(2):
                d = vr(SX + 4 * k, 4)
                G.append(Gap(mf(d, ar(ONE1, 4), vr(Xreg(par, k, ks), 4), '0' if first and ks == 0 else d)))
            for ks in range(2):
                d = vr(SXX + 4 * k, 4)
                G.append(Gap(mf(d, vr(Xreg(par, k, ks), 4), vr(Xreg(par, k, ks), 4), '0' if first and ks == 0 else d)))
    start.append(len(G))
    def at(g, x, kind='mem'):
        place(G, [x], g, g, kind=kind)
    rp = OPT.get('a_rp', [0, 1, 2, 3])
    for grp in range(18):
        for k, x in zip(rp, a_reads(grp + 2)):
            at(start[grp] + k, x)
    dm = []
    if tail == 0:
        wops, wadv = a_dma_w(); xops, xadv = a_dma_x(par)
        if OPT.get('a_now'): wops = []
        if OPT.get('a_nox'): xops = []
        dm = wops + xops
        if pre_ops:
            dm = pre_ops + dm
    if kv_ops:
        dm = kv_ops
    free = [g for grp in range(18) for g in ((start[grp] + 4, start[grp] + 7) if OPT.get('a_two', len(dm) > 17) and grp < 16 else (start[grp] + 5,))]
    if len(dm) > len(free):
        free = [g for grp in range(16) for g in (start[grp] + 4, start[grp] + 5, start[grp] + 7)]
    pos = free[:len(dm)]
    for g, x in zip(pos, dm):
        at(g, x)
    if tail == 0:
        npre = len(pre_ops) if pre_ops else 0
        if pre_ops:
            for g, adv in pre_adv:
                G[pos[g] + 1].pre += adv
        if wops:
            g = pos[npre + len(wops) - 1]
            G[g + 1].pre += wadv[:4]; G[g + 2].pre += wadv[4:8]; G[g + 3].pre += wadv[8:]
        if xops:
            G[pos[-1] + 1].pre += xadv
    xg = OPT.get('a_xg', 14)
    if tail < 2:
        wg = start[xg] + 3
        npre = len(pre_ops) if pre_ops else 0
        younger = sum(1 for k, g in enumerate(pos) if g < wg and k >= npre)
        assert all(g < wg for g in pos[:npre])
        G[wg].pre.append(f's_waitcnt vmcnt({younger})')
        xr = x_reads(1 - par)
        for k, x in enumerate(xr):
            at(start[xg + k // 4] + 3 + (k % 4) + (1 if G[start[xg + k // 4] + 3 + (k % 4)].units() >= 2 else 0), x) if False else None
        g = wg
        xpos = []
        for x in xr:
            while G[g].units() >= 2 or any(y.startswith('ds_read_b128') for y in G[g].mem): g += 1
            G[g].mem.append(x); xpos.append(g)
        assert xpos[-1] < start[18] - 2, xpos
    seq = [(g, x) for g in range(len(G)) for x in G[g].mem if x.startswith('ds_')]
    for grp in range(2, 20):
        if grp == 18:
            continue
        last = max(k for k, (g, x) in enumerate(seq) if x in a_reads(grp) and start[grp - 2] <= g < start[grp - 1])
        n = sum(1 for k, (g, x) in enumerate(seq) if k > last and g < start[grp] - 1)
        G[start[grp] - 1].pre.append(f's_waitcnt lgkmcnt({min(n, 15)})')
    G[start[1] - 1].pre.append('s_waitcnt lgkmcnt(4)')
    if tail < 2:
        G[start[18] - 1].pre += ['s_waitcnt lgkmcnt(0)', 's_barrier']
        vu = [f'v_add_u32 {vr(AQ + i)}, {sr(sDL)}, {vr(AQ + i)}' for i in range(12)]
        place(G, vu[:8], start[14] + 4, start[17] + 5, kind='valu')
        for k, x in enumerate(a_reads(0)): at(start[18] + k, x)
        for k, x in enumerate(a_reads(1)): at(start[19] + k, x)
        place(G, vu[8:], start[18], start[19] + 5, kind='valu')
        G[start[20] - 1].pre.append('s_waitcnt lgkmcnt(4)')
        G[start[13] + 1].pre += [f's_add_u32 {sr(sM)}, {sr(sM)}, 1', f's_cmp_eq_u32 {sr(sM)}, 3', f's_cselect_b32 {sr(sDL)}, -2, 1', f's_cselect_b32 {sr(sM)}, 0, {sr(sM)}']
        G[start[13] + 2].pre += [f's_lshl_b32 {sr(sDL)}, {sr(sDL)}, 15']
    else:
        G[start[18] - 1].pre += ['s_waitcnt lgkmcnt(0)']
    if name:
        so = stamp_op(name)
        if so:
            G[start[18] - 1].post += so
            G[start[19] - 1].pre.append('s_waitcnt lgkmcnt(0)')
    return G

def phase_a(a, opt):
    a(f's_lshl_b32 {sr(sT3)}, {sr(sW)}, 13')
    a_setup_dma_addr(a)
    a(f's_and_b32 s3, s2, {7 if OPT.get("arot", 0) else 0}\ns_lshl_b32 {sr(sXO)}, s3, 7\ns_lshl_b32 {sr(sQO)}, s3, 19\ns_mul_i32 {sr(sGO)}, s3, {64 * 3584}\ns_mov_b32 {sr(sWB)}, 0\ns_mov_b32 {sr(sM)}, 0')
    a(f's_lshl_b32 {sr(sWQB)}, {sr(sW)}, 11\ns_add_u32 {sr(sWQB)}, {sr(sWQB)}, {WBUF}\ns_lshl_b32 {sr(sWGB)}, {sr(sW)}, 10\ns_add_u32 {sr(sWGB)}, {sr(sWGB)}, {WBUF + 8192}')
    late = OPT.get('a_late', 0)
    for j in range(1 if late else 2):
        xops, xadv = a_dma_x(j); wops, wadv = a_dma_w()
        emit_plain(a, xops); emit_plain(a, xadv); emit_plain(a, wops); emit_plain(a, wadv)
    pre_ops = pre_adv = None
    if late:
        xops, xadv = a_dma_x(1); wops, wadv = a_dma_w()
        pre_ops = wops + xops; pre_adv = [(7, wadv), (15, xadv)]
    setup2(a, opt)
    ntouch = 0
    if OPT.get('touch'):
        sh = OPT['touch']
        a(f'v_lshlrev_b32 v4, {sh}, v1')
        if sh == 7:
            a(f's_and_b32 s3, {sr(sQB)}, 1\ns_lshl_b32 s3, s3, 2\ns_add_u32 s3, s3, {sr(sW)}\ns_lshl_b32 s3, s3, 13')
        else:
            a('s_mov_b32 s3, 0')
        a(f'buffer_load_dword v26, v4, {sr(SRD_K, 4)}, s3 offen')
        a(f'buffer_load_dword v27, v4, {sr(SRD_V, 4)}, s3 offen offset:2048')
        ntouch = 2
    stamp(a, opt, 'issued')
    a_setup_read_addr(a)
    b_setup_dma_addr(a)
    a(f'''
    s_lshl_b32 s3, {sr(sQB)}, 2
    s_add_u32 s3, s3, {sr(sW)}
    s_lshl_b32 s3, s3, 5
    s_add_u32 s3, s3, {sr(sH)}
    s_lshl_b32 s3, s3, 2
    s_add_u32 s94, s3, {WS_FLAG}
    v_mov_b32 v4, 0
    s_mov_b64 exec, 1
    buffer_store_dword v4, v4, {sr(SRD_WS, 4)}, s94 offen sc1
    s_mov_b64 exec, -1
    s_waitcnt vmcnt({(1 if late else 17) + ntouch})
    ''')
    for x in x_reads(0): a(x)
    a('s_waitcnt lgkmcnt(0)\ns_barrier')
    for x in a_reads(0) + a_reads(1): a(x)
    stamp(a, opt, 'A0')
    a('s_waitcnt lgkmcnt(0)' if opt.get('stamp') else 's_waitcnt lgkmcnt(4)')
    a.raw('.p2align 3')
    emit_gaps(a, [g.ops() for g in a_superstep(0, True, 0, name='a0', pre_ops=pre_ops, pre_adv=pre_adv) + a_superstep(1, False, 0, name='a1')])
    a(f's_mov_b32 {sr(sCNT)}, 2')
    a.raw('.p2align 3')
    a.label('L_a')
    G = a_superstep(0, False, 0, name='a4') + a_superstep(1, False, 0, name='a5')
    G[-4].pre.append(f's_sub_u32 {sr(sCNT)}, {sr(sCNT)}, 1')
    G[-2].pre.append(f's_cmp_lg_u32 {sr(sCNT)}, 0')
    G[-1].post.append('s_cbranch_scc1 L_a')
    emit_gaps(a, [g.ops() for g in G])
    a.raw('.p2align 3')
    emit_gaps(a, [g.ops() for g in a_superstep(0, False, 1, name='a6') + a_superstep(1, False, 2, kv_ops=b_prologue_dma())])
    stamp(a, opt, 'Aend')
    a_epilogue(a, opt)

NMEAN = 8; ALPHA = 12; RS2 = 16
def a_epilogue(a, opt):
    a(f'''
    v_lshlrev_b32 v4, 4, v3
    s_lshl_b32 s3, {sr(sW)}, 8
    v_add_u32 v5, s3, v4
    v_add_u32 v5, {CSBUF}, v5
    v_add_u32 v4, {CSBUF}, v4
    v_cmp_eq_u32 vcc, 0, v2
    s_nop 7
    s_and_saveexec_b64 s[98:99], vcc
    ''')
    for k in range(4):
        a(f'ds_write_b128 v5, {ar(ACS + 4 * k, 4)} offset:{64 * k}')
    a('s_mov_b64 exec, s[98:99]')
    a(f'''
    v_and_b32 v6, 3, v1
    v_cmp_eq_u32 s[98:99], 1, v6
    v_cmp_eq_u32 s[100:101], 2, v6
    v_cmp_eq_u32 vcc, 3, v6
    v_lshrrev_b32 v6, 2, v2
    v_cmp_eq_u32 s[92:93], v6, v3
    ''')
    for c in range(4):
        b = SXX + 4 * c
        a(f'v_cndmask_b32 {vr(b)}, {vr(b)}, {vr(b + 1)}, s[98:99]')
        a(f'v_cndmask_b32 {vr(b)}, {vr(b)}, {vr(b + 2)}, s[100:101]')
        a(f'v_cndmask_b32 {vr(b)}, {vr(b)}, {vr(b + 3)}, vcc')
        a(f'v_cndmask_b32 {vr(b)}, 0, {vr(b)}, s[92:93]')
    for sw in ('v_permlane32_swap_b32', 'v_permlane16_swap_b32'):
        for c in range(4):
            a(f'v_mov_b32 {vr(SXX + 4 * c + 1)}, {vr(SXX + 4 * c)}')
        a('s_nop 0')
        for c in range(4):
            a(f'{sw} {vr(SXX + 4 * c)}, {vr(SXX + 4 * c + 1)}')
        for c in range(4):
            a(f'v_add_f32 {vr(SXX + 4 * c)}, {vr(SXX + 4 * c)}, {vr(SXX + 4 * c + 1)}')
    sc = (128 ** -0.5) * math.log2(math.e)
    for c in range(4):
        a(f'v_mul_f32 {vr(NMEAN + c)}, {f2u(-1 / 512)}, {vr(SX + 4 * c)}')
        a(f'v_mul_f32 {vr(SXX + 4 * c)}, {f2u(1 / 512)}, {vr(SXX + 4 * c)}')
        a(f'v_fma_f32 {vr(SXX + 4 * c)}, -{vr(NMEAN + c)}, {vr(NMEAN + c)}, {vr(SXX + 4 * c)}')
        a(f'v_max_f32 {vr(SXX + 4 * c)}, 0, {vr(SXX + 4 * c)}')
        a(f'v_add_f32 {vr(SXX + 4 * c)}, {f2u(1e-5)}, {vr(SXX + 4 * c)}')
        a(f'v_rsq_f32 {vr(ALPHA + c)}, {vr(SXX + 4 * c)}')
        a(f'v_rcp_f32 {vr(RS2 + c)}, {vr(SXX + 4 * c)}')
    for c in range(4):
        a(f'v_mul_f32 {vr(ALPHA + c)}, {f2u(sc)}, {vr(ALPHA + c)}')
    stamp(a, opt, 'e_stat')
    a('s_waitcnt lgkmcnt(0)\ns_barrier')
    CSR = 224
    for nb in range(8):
        a(f'ds_read_b128 {vr(CSR + 4 * nb, 4)}, v4 offset:{64 * nb}')
    def bc(r):
        e = r & ~1
        return vr(e, 2), (r & 1)
    a('s_waitcnt lgkmcnt(0)')
    for c in range(4):
        nm, nh = bc(NMEAN + c); al, ah = bc(ALPHA + c)
        for nb in range(8):
            b = ACQ + (nb * 4 + c) * 4
            for i in (0, 2):
                a(f'v_pk_fma_f32 {vr(b + i, 2)}, {vr(CSR + 4 * nb + i, 2)}, {nm}, {vr(b + i, 2)} op_sel:[0,{nh},0] op_sel_hi:[1,{nh},1]')
            for i in (0, 2):
                a(f'v_pk_mul_f32 {vr(b + i, 2)}, {vr(b + i, 2)}, {al} op_sel:[0,{ah}] op_sel_hi:[1,{ah}]')
            for i in (0, 2):
                a(f'v_cvt_pk_bf16_f32 {vr(Q + 16 * c + 2 * nb + (i >> 1))}, {vr(b + i)}, {vr(b + i + 1)}')
    stamp(a, opt, 'e_q')
    for nb in range(8):
        a(f'ds_read_b128 {vr(CSR + 4 * nb, 4)}, v4 offset:{64 * (8 + nb)}')
    a(f'''
    s_lshl_b32 s3, {sr(sQB)}, 4
    s_lshl_b32 s7, {sr(sW)}, 2
    s_add_u32 s3, s3, s7
    s_mul_i32 s3, s3, 57344
    s_lshl_b32 s7, {sr(sH)}, 11
    s_add_u32 s3, s3, s7
    s_add_u32 s3, s3, {WS_H}
    v_lshlrev_b32 v5, 4, v1
    s_cmp_ge_u32 {sr(sH)}, 28
    s_waitcnt lgkmcnt(0)
    s_cbranch_scc1 L_noh
    ''')
    n = 0
    for c in range(4):
        nm, nh = bc(NMEAN + c); rs, rh = bc(RS2 + c)
        for pr in range(2):
            pk = 96 + (n & 7) * 4; n += 1
            for u in range(2):
                nb = 2 * pr + u
                tg = 128 + u * 8; tu = tg + 4
                for i in range(4):
                    a(f'v_accvgpr_read_b32 {vr(tg + i)}, {ar(AGU + (nb * 4 + c) * 4 + i)}')
                    a(f'v_accvgpr_read_b32 {vr(tu + i)}, {ar(AGU + ((nb + 4) * 4 + c) * 4 + i)}')
                for i in (0, 2):
                    a(f'v_pk_fma_f32 {vr(tg + i, 2)}, {vr(CSR + 4 * nb + i, 2)}, {nm}, {vr(tg + i, 2)} op_sel:[0,{nh},0] op_sel_hi:[1,{nh},1]')
                    a(f'v_pk_fma_f32 {vr(tu + i, 2)}, {vr(CSR + 16 + 4 * nb + i, 2)}, {nm}, {vr(tu + i, 2)} op_sel:[0,{nh},0] op_sel_hi:[1,{nh},1]')
                for i in (0, 2):
                    a(f'v_pk_mul_f32 {vr(tg + i, 2)}, {vr(tg + i, 2)}, {rs} op_sel:[0,{rh}] op_sel_hi:[1,{rh}]')
                for i in (0, 2):
                    a(f'v_pk_mul_f32 {vr(tg + i, 2)}, {vr(tg + i, 2)}, {vr(tu + i, 2)}')
                for i in (0, 2):
                    a(f'v_cvt_pk_bf16_f32 {vr(pk + 2 * u + (i >> 1))}, {vr(tg + i)}, {vr(tg + i + 1)}')
            a(f'buffer_store_dwordx4 {vr(pk, 4)}, v5, {sr(SRD_WS, 4)}, s3 offen offset:{1024 * pr} {OPT.get("stsc", "sc1")}')
        if c < 3:
            a('s_add_u32 s3, s3, 57344')
    a('s_waitcnt vmcnt(8)\ns_branch L_hdone')
    a.label('L_noh')
    a('s_waitcnt vmcnt(0)')
    a.label('L_hdone')

def Sreg(buf, c, kb=0): return S + buf * 32 + c * 8 + kb * 4
def Qreg(c, s): return Q + c * 16 + s * 4
def Preg(c, par): return (PA + par * 8 + c * 4) if c < 2 else PB + (c - 2) * 4
def Oreg(c, db): return O + c * 32 + db * 4
def LMreg(hf, pp): return LM + hf * 8 + pp * 4
def qk_mfma(buf, c, kb, s, c0=None):
    d = vr(Sreg(buf, c, kb), 4)
    cc = d if s else (c0 if c0 is not None else vr(NM + 4 * c, 4))
    return mf(d, ar(KF + 4 * (kb * 4 + s), 4), vr(Qreg(c, s), 4), cc)
def pv_mfma(c, par, db, c0=None):
    d = ar(Oreg(c, db), 4)
    return mf(d, ar(VF + db * 4, 4), vr(Preg(c, par), 4), d if c0 is None else c0)
def sum_mfma(c, par, pp_in):
    hf = c >> 1
    d = vr(LMreg(hf, 1 - pp_in), 4)
    cc = vr(LMreg(hf, pp_in), 4) if (c & 1) == 0 else d
    return mf(d, vr(ONES[c & 1], 4), vr(Preg(c, par), 4), cc)
def k_read(slot, kb, s, base=None):
    if base is not None:
        return f'ds_read_b128 {ar(KF + 4 * (kb * 4 + s), 4)}, {vr(base + s)} offset:{slot * STAGE + kb * 8192}'
    return f'ds_read_b128 {ar(KF + 4 * (kb * 4 + s), 4)}, {vr(KA + 4 * (slot >> 2) + s)} offset:{(slot & 3) * STAGE + kb * 8192}'
def v_read(slot, db, u):
    return f'ds_read_b64_tr_b16 {ar(VF + db * 4 + 2 * u, 2)}, {vr((VAB if slot >= 4 else VAA) + db)} offset:{(slot & 3) * STAGE + u * 8192 + 2048}'
def dma_k(i):
    return f'buffer_load_dwordx4 {vr(DK0 + i)}, {sr(SRD_K, 4)}, {sr(sOK)} offen offset:{1024 * i} lds'
def dma_v(i):
    return f'buffer_load_dwordx4 {vr(DV0 + i)}, {sr(SRD_V, 4)}, {sr(sOV)} offen offset:{2048 + 1024 * i} lds'
def stage_dma(slot, k=True, v=True):
    ops = []
    pre = (f's_add_u32 m0, {sr(sW4K)}, {slot * STAGE}',)
    if k:
        ops += [pre + (f's_add_u32 {sr(sOK)}, {sr(sOK)}, 8192', f's_and_b32 {sr(sOK)}, {sr(sOK)}, 0x7ffff', dma_k(0)), dma_k(1)]; pre = ()
    if v:
        ops += [pre + (f's_add_u32 {sr(sOV)}, {sr(sOV)}, 8192', f's_and_b32 {sr(sOV)}, {sr(sOV)}, 0x7ffff', dma_v(0)), dma_v(1)]
    return ops

def b_setup_dma_addr(a):
    a(f'''
    s_lshl_b32 s3, {sr(sW)}, 3
    v_add_u32 v5, s3, v3          ; row = 8w + (l>>4)
    v_and_b32 v7, 15, v5
    v_xor_b32 v7, v7, v2
    v_lshlrev_b32 v7, 4, v7
    v_lshl_add_u32 {vr(DK0)}, v5, 8, v7
    v_xor_b32 {vr(DK1)}, 64, {vr(DK0)}
    v_lshlrev_b32 v7, 1, v3
    v_xor_b32 v7, v7, v2
    v_lshlrev_b32 v7, 4, v7
    v_lshl_add_u32 {vr(DV0)}, v5, 8, v7
    v_xor_b32 {vr(DV1)}, 128, {vr(DV0)}
    s_mul_i32 {sr(sOK)}, {sr(sH)}, {OPT.get('kvrot', 0)}
    s_sub_u32 {sr(sOK)}, {sr(sOK)}, 8192
    s_mov_b32 {sr(sOV)}, {sr(sOK)}
    ''')

def b_prologue_dma():
    ops = stage_dma(8, v=False) + stage_dma(9, v=False)
    for sl in range(4):
        ops += stage_dma(sl)
    return ops

def b_prologue_dma2():
    return stage_dma(4) + stage_dma(5) if OPT.get('bar', 2) == 2 else []

def b_setup_read_addr(a):
    a(f'''
    v_lshrrev_b32 v4, 3, v2
    v_lshlrev_b32 v4, 12, v4      ; (r>>3)*4096
    v_and_b32 v5, 7, v2
    v_lshl_add_u32 v4, v5, 8, v4  ; + (r&7)*256
    v_xor_b32 v5, v2, v3
    v_lshl_add_u32 v4, v5, 4, v4  ; + (r^g)*16
    ''')
    for s in range(4):
        a(f'v_xor_b32 {vr(KA + s)}, {s * 64}, v4')
        a(f'v_add_u32 {vr(KA + 4 + s)}, 65536, {vr(KA + s)}')
        a(f'v_add_u32 {vr(ST + 8 + s)}, 131072, {vr(KA + s)}')
    a(f'''
    v_bfe_u32 v4, v1, 2, 3        ; row&7
    v_lshlrev_b32 v5, 8, v4
    v_lshl_add_u32 v5, v4, 5, v5
    v_lshrrev_b32 v6, 5, v1
    v_lshl_add_u32 v5, v6, 12, v5
    v_and_b32 v6, 3, v1
    v_lshl_add_u32 v5, v6, 3, v5
    ''')
    for db in range(8):
        a(f'v_xor_b32 {vr(VAA + db)}, {db * 32}, v5')
        a(f'v_add_u32 {vr(VAB + db)}, 65536, {vr(VAA + db)}')
    a(f'''
    v_mov_b32 {vr(THR)}, 0x4e800000      ; 2^30
    v_mov_b32 v4, 0x3f803f80
    v_cmp_gt_u32 vcc, 8, v2
    s_nop 1
    v_cndmask_b32 v5, 0, v4, vcc
    v_xor_b32 v6, v5, v4
    ''')
    for i in range(4):
        a(f'v_mov_b32 {vr(ONES[0] + i)}, v5')
        a(f'v_mov_b32 {vr(ONES[1] + i)}, v6')
    a(f'v_lshlrev_b32 {vr(CL16)}, 4, v1')

def xlane(a, op, dst, t2):
    for sw in ('v_permlane32_swap_b32', 'v_permlane16_swap_b32'):
        a(f'v_mov_b32 {vr(t2)}, {vr(dst)}')
        a('s_nop 1')
        a(f'{sw} {vr(dst)}, {vr(t2)}')
        a(f'{op} {vr(dst)}, {vr(dst)}, {vr(t2)}')

def rowmax(a, base, dst, t2):
    a(f'v_max3_f32 {vr(dst)}, {vr(base)}, {vr(base + 1)}, {vr(base + 2)}')
    a(f'v_max3_f32 {vr(dst)}, {vr(dst)}, {vr(base + 3)}, {vr(base + 4)}')
    a(f'v_max3_f32 {vr(dst)}, {vr(dst)}, {vr(base + 5)}, {vr(base + 6)}')
    a(f'v_max_f32 {vr(dst)}, {vr(dst)}, {vr(base + 7)}')
    xlane(a, 'v_max_f32', dst, t2)

def softmax_c(a, sbase, pbase, tb):
    for r in range(4):
        a(f'v_exp_f32 {vr(tb)}, {vr(sbase + 2 * r)}')
        a(f'v_exp_f32 {vr(tb + 1)}, {vr(sbase + 2 * r + 1)}')
        a('s_nop 0')
        a(f'v_cvt_pk_bf16_f32 {vr(pbase + r)}, {vr(tb)}, {vr(tb + 1)}')

def b_prologue(a, opt):
    b_setup_read_addr(a)
    stamp(a, opt, 'e_h')
    a('s_barrier')
    stamp(a, opt, 'e_bar')
    for kb in range(2):
        for s in range(4):
            a(k_read(0, kb, s, base=ST + 8))
    emit_plain(a, b_prologue_dma2())
    for i in range(16):
        a(f'v_mov_b32 {vr(LM + i)}, 0')
    for i in range(8):
        a(f'v_mfma_f32_32x32x16_bf16 {ar(O + 16 * i, 16)}, {vr(LM, 4)}, {vr(LM, 4)}, 0')
    a('s_waitcnt lgkmcnt(0)')
    for c in range(4):
        for kb in range(2):
            for s in range(4):
                a(qk_mfma(0, c, kb, s, c0='0'))
    for kb in range(2):
        for s in range(4):
            a(k_read(1, kb, s, base=ST + 8))
    a('s_nop 3')
    for c in range(4):
        rowmax(a, Sreg(0, c), ST, ST + 1)
        for i in range(8):
            a(f'v_sub_f32 {vr(Sreg(0, c) + i)}, {vr(Sreg(0, c) + i)}, {vr(ST)}')
        for i in range(4):
            a(f'v_sub_f32 {vr(NM + 4 * c + i)}, 0, {vr(ST)}')
    for c in range(2):
        softmax_c(a, Sreg(0, c), Preg(c, 0), ST)
    a('s_waitcnt lgkmcnt(0)')

def step_gaps(slot, tag, opt, dma=True, final=False, extra=None, vm=0):
    p = slot & 1
    qk = [qk_mfma(1 - p, c, kb, s) for c in range(4) for kb in range(2) for s in range(4)]
    pv = [pv_mfma(c, p, db) for c in range(4) for db in range(8)]
    mfs = qk[:4] + [sum_mfma(0, p, p), sum_mfma(1, p, p)] + qk[4:] + pv[:4] + [sum_mfma(2, p, p), sum_mfma(3, p, p)] + pv[4:]
    G = [Gap(m) for m in mfs]
    for hf, g0 in ((1, 0), (0, 34)):
        if final and hf == 0:
            continue
        for e in range(16):
            c = 2 * hf + (e >> 3)
            src = (Sreg(p, 2) if hf else Sreg(1 - p, 0)) + e
            G[g0 + 2 * e].valu.append(f'v_exp_f32 {vr(TMP + (e & 3))}, {vr(src)}')
            if e & 1:
                G[g0 + 2 * e + 1].valu.append(f'v_cvt_pk_bf16_f32 {vr(Preg(c, 1 - p) + ((e & 7) >> 1))}, {vr(TMP + ((e - 1) & 3))}, {vr(TMP + (e & 3))}')
    for hf, g0 in ((0, 0), (1, 34)):
        late = final and hf == 1
        G[g0 + (13 if late else 9)].valu.append(f'v_cmp_nle_f32 vcc, {vr(LMreg(hf, 1 - p))}, {vr(THR)}')
        G[g0 + (16 if late else 15)].post += [f's_cbranch_vccnz L_slow{hf}_{tag}', f'L_back{hf}_{tag}:']
    vplace = [1, 1, 3, 5, 5, 7, 9, 11, 13, 13, 17, 17, 19, 21, 21, 23]
    kplace = [35, 35, 37, 41, 43, 45, 53, 57]
    for g, x in zip(vplace, [v_read(slot, db, u) for db in range(8) for u in range(2)]):
        G[g].mem.append(x)
    if not final:
        for g, x in zip(kplace, [k_read(slot, kb, s) for kb in range(2) for s in range(4)]):
            G[g].mem.append(x)
    G[33].pre.append('s_waitcnt lgkmcnt(0)')
    ops = []
    bar2 = OPT.get('bar', 2) == 2
    if dma and bar2:
        ops = [None] * 3 + stage_dma((slot + 6) & 7)
    elif dma and (slot & 3) < 2:
        s0 = ((slot & 4) ^ 4) + 2 * (slot & 1)
        ops = stage_dma(s0) + stage_dma(s0 + 1)
    if extra:
        ops = extra
    for g, x in zip([25, 29, 32, 39, 47, 51, 55, 59, 63, 66] if not final else [25, 29, 32, 34, 35, 36, 37, 40, 41, 42], ops):
        if x is not None:
            place(G, [x], g, g)
    if (slot & 3) == 3 or (bar2 and slot & 1):
        G[66].pre += [f's_waitcnt vmcnt({vm}) lgkmcnt(0)', 's_barrier'] if not final else []
    else:
        G[67].pre.append('s_waitcnt lgkmcnt(0)')
    if final:
        out = []
        for g in G:
            if g.m in qk:
                g.m = 's_nop 0'
            out.append(g)
        return out
    return G

def gapops(G):
    return [[x for x in g.ops() if x is not None] for g in G]

def slow_path(a, p, hf, final=False):
    a.label(f'L_slowfn{hf}_{p}_{int(final)}')
    a('s_nop 15')
    for c in (2 * hf, 2 * hf + 1):
        cur = Sreg(p, c); nxt = Sreg(1 - p, c)
        d = ST + 4 + (c & 1); al = ST + 6 + (c & 1)
        rowmax(a, cur, d, ST + 1)
        a(f'v_max_f32 {vr(d)}, 0, {vr(d)}')
        a(f'v_mov_b32 {vr(ST)}, {vr(LMreg(hf, p))}')
        a(f'v_mov_b32 {vr(ST + 1)}, {vr(LMreg(hf, p))}')
        a('s_nop 1')
        a(f'v_permlane32_swap_b32 {vr(ST)}, {vr(ST + 1)}')
        a(f'v_log_f32 {vr(ST)}, {vr(ST + (c & 1))}')
        a('s_nop 0')
        a(f'v_max_f32 {vr(d)}, {vr(d)}, {vr(ST)}')
        a(f'v_sub_f32 {vr(al)}, 0, {vr(d)}')
        a(f'v_exp_f32 {vr(al)}, {vr(al)}')
        for i in range(8):
            a(f'v_sub_f32 {vr(cur + i)}, {vr(cur + i)}, {vr(d)}')
        if not final:
            for i in range(8):
                a(f'v_sub_f32 {vr(nxt + i)}, {vr(nxt + i)}, {vr(d)}')
        for i in range(4):
            a(f'v_sub_f32 {vr(NM + 4 * c + i)}, {vr(NM + 4 * c + i)}, {vr(d)}')
        for i in range(32):
            a(f'v_accvgpr_read_b32 {vr(ST + 2)}, {ar(Oreg(c, 0) + i)}')
            a(f'v_mul_f32 {vr(ST + 2)}, {vr(ST + 2)}, {vr(al)}')
            a(f'v_accvgpr_write_b32 {ar(Oreg(c, 0) + i)}, {vr(ST + 2)}')
        softmax_c(a, cur, Preg(c, p), ST + 2)
    a(f'v_cmp_gt_u32 vcc, 32, {vr(LANE)}')
    a('s_nop 1')
    a(f'v_cndmask_b32 {vr(ST)}, {vr(ST + 7)}, {vr(ST + 6)}, vcc')
    for i in range(4):
        a(f'v_mul_f32 {vr(LMreg(hf, p) + i)}, {vr(LMreg(hf, p) + i)}, {vr(ST)}')
    a('s_nop 1')
    a(sum_mfma(2 * hf, p, p)); a(sum_mfma(2 * hf + 1, p, p))
    a('s_nop 7')
    a('s_setpc_b64 s[98:99]')

SLOW = []
def phase_b(a, opt):
    b_prologue(a, opt)
    stamp(a, opt, 'B0')
    a(f's_mov_b32 {sr(sCNT)}, 7')
    a.raw('.p2align 6')
    a.label('L_attn')
    G = []
    for sl in range(8):
        G += step_gaps(sl, f's{sl}', opt, vm=16 if OPT.get('bar', 2) == 2 else 0); SLOW.append((sl & 1, f's{sl}', False))
    G[6 * 68 + 27].pre.append(f's_cmp_ge_u32 {sr(sCNT)}, 5')
    G[6 * 68 + 27].post += ['s_cbranch_scc1 L_hook', 'L_hookback:']
    G[-6].pre.append(f's_sub_u32 {sr(sCNT)}, {sr(sCNT)}, 1')
    G[-4].pre.append(f's_cmp_lg_u32 {sr(sCNT)}, 0')
    G[-1].post.append('s_cbranch_scc1 L_attn')
    emit_gaps(a, gapops(G))
    a.raw('.p2align 3')
    G = []
    pa = [c_load_a(t, nb) for t in range(4) for nb in range(4)]
    pb = [c_load_b(t, j) for t in range(4) for j in range(4)]
    for t in range(1, 4):
        pa[4 * t] = (f's_add_u32 {sr(sAO)}, {sr(sAO)}, 4096', pa[4 * t])
    extra = {4: pa[:8], 5: pa[8:], 6: [None] * 3 + pb[:6], 7: pb[6:]}
    for sl in range(8):
        b2 = OPT.get('bar', 2) == 2
        g = step_gaps(sl, f't{sl}', opt, dma=sl < (2 if b2 else 4), final=sl == 7, extra=extra.get(sl), vm={1: 16, 3: 0, 5: 16}.get(sl, 0) if b2 else 0); SLOW.append((sl & 1, f't{sl}', sl == 7))
        if sl == 2:
            su = c_setup_scalar()
            for k in range(0, len(su), 2):
                g[2 + k].pre += su[k:k + 2]
            g[63].mem.append(f'buffer_load_dword {vr(POLLV)}, off, {sr(SRD_DBG, 4)}, 0 sc1')
        if sl == 4:
            g[17].valu.append(f'v_cmp_ne_u32 vcc, 0x100, {vr(POLLV)}')
            g[23].post += ['s_cbranch_vccnz L_pollall', 'L_pollall_ok:']
        G += g
    emit_gaps(a, gapops(G))
    stamp(a, opt, 'Bend')

def finalize_o(a, opt):
    a(f'''
    s_lshl_b32 s3, {sr(sQB)}, 4
    s_lshl_b32 s7, {sr(sW)}, 2
    s_add_u32 s3, s3, s7
    s_mul_i32 s3, s3, {OST()}
    s_lshl_b32 s7, {sr(sH)}, 12
    s_add_u32 s3, s3, s7
    s_nop 3
    ''')
    for c in range(4):
        a(f'v_mov_b32 {vr(ST + 2 * c)}, {vr(LMreg(c >> 1, 0))}')
        a(f'v_mov_b32 {vr(ST + 2 * c + 1)}, {vr(LMreg(c >> 1, 0))}')
    for c in range(4):
        a(f'v_permlane32_swap_b32 {vr(ST + 2 * c)}, {vr(ST + 2 * c + 1)}')
    for c in range(4):
        a(f'v_rcp_f32 {vr(RL + c)}, {vr(ST + 2 * c + (c & 1))}')
    n = 0
    for c in range(4):
        e = (RL + c) & ~1; hh = (RL + c) & 1
        for f in range(4):
            tb = 160 + (n & 1) * 8
            pb = 176 + (n & 7) * 4
            n += 1
            for i in range(8):
                a(f'v_accvgpr_read_b32 {vr(tb + i)}, {ar(Oreg(c, 2 * f) + i)}')
            for i in range(0, 8, 2):
                a(f'v_pk_mul_f32 {vr(tb + i, 2)}, {vr(tb + i, 2)}, {vr(e, 2)} op_sel:[0,{hh}] op_sel_hi:[1,{hh}]')
            for i in range(4):
                a(f'v_cvt_pk_bf16_f32 {vr(pb + i)}, {vr(tb + 2 * i)}, {vr(tb + 2 * i + 1)}')
            a(f'buffer_store_dwordx4 {vr(pb, 4)}, {vr(CL16)}, {sr(SRD_WS, 4)}, s3 offen offset:{1024 * f} {OPT.get("stsc", "sc1")}')
        if c < 3:
            a(f's_add_u32 s3, s3, {OST()}')

NF = 14; NS = 32; DEPTH = 7
def c_setup_scalar():
    ops = []
    for j in range(4):
        ops += [f's_add_u32 s3, {sr(sW)}, {j}', 's_and_b32 s3, s3, 3', f's_lshl_b32 s7, {sr(sRB)}, 2', 's_add_u32 s3, s3, s7', 's_mul_i32 s3, s3, 57344',
                f's_mul_i32 s7, {sr(sW)}, {NF * 1024}', 's_add_u32 s3, s3, s7', f's_add_u32 {sr(sBO + j)}, s3, {WS_H}']
    ops += [f's_mul_i32 s3, {sr(sCB)}, {WFS}', f's_mul_i32 s7, {sr(sW)}, {NF * 4096}', 's_add_u32 s3, s3, s7', f's_add_u32 {sr(sAO)}, s3, {WS_WF}']
    return ops

def c_switch_to_s():
    ops = []
    for j in range(4):
        ops += [f's_add_u32 s3, {sr(sW)}, {j}', 's_and_b32 s3, s3, 3', f's_lshl_b32 s7, {sr(sRB)}, 2', 's_add_u32 s3, s3, s7',
                f's_mul_i32 s3, s3, {OST()}', f's_lshl_b32 s7, {sr(sW)}, 15', f's_add_u32 {sr(sBO + j)}, s3, s7']
    ops += [f's_mul_i32 s3, {sr(sCB)}, {WFS}', f's_lshl_b32 s7, {sr(sW)}, 17', 's_add_u32 s3, s3, s7', f's_add_u32 {sr(sAO)}, s3, {WS_WF + 56 * 4096 - 4096}']
    return ops

def c_load_a(t, nb):
    return f'buffer_load_dwordx4 {ar(CAr(t & 7) + nb * 4, 4)}, {vr(CL16)}, {sr(SRD_WS, 4)}, {sr(sAO)} offen offset:{1024 * nb} sc1'
def c_load_b(t, j):
    k = t if t < NF else t - NF
    return f'buffer_load_dwordx4 {vr(CB + (t & 7) * 16 + j * 4, 4)}, {vr(CL16)}, {sr(SRD_WS, 4)}, {sr(sBO + j)} offen offset:{1024 * (k & 3)} sc1'
def c_issue(t):
    k = t if t < NF else t - NF
    pre = [f's_add_u32 {sr(sAO)}, {sr(sAO)}, 4096']
    if (k & 3) == 0 and k:
        pre += [f's_add_u32 {sr(sBO + j)}, {sr(sBO + j)}, 4096' for j in range(4)]
    mem = []
    for i in range(4):
        if not OPT.get('c_now'): mem.append(c_load_a(t, i))
        if not OPT.get('c_nob'): mem.append(c_load_b(t, i))
    return pre, mem
def NOP(): return 4 if OPT.get('c_now') or OPT.get('c_nob') else 8

def poll(a, name, srdreg, soff, nlanes, expect, ret=None):
    a(f's_mov_b64 exec, {(1 << nlanes) - 1}')
    a.label(name + '_l')
    a(f'''
    buffer_load_dword v5, v4, {sr(srdreg, 4)}, {soff} offen sc1
    s_waitcnt vmcnt(0)
    v_cmp_ne_u32 vcc, {expect}, v5
    s_cbranch_vccz {name}_d
    s_sleep 1
    s_branch {name}_l
    {name}_d:
    s_mov_b64 exec, -1
    ''')
    if ret:
        a(f's_nop 3\ns_branch {ret}')

def hooks(a):
    a(f'''
    L_pollall:
    v_mov_b32 v4, 0
    ''')
    poll(a, 'L_pa', SRD_DBG, '0', 1, '0x100', ret='L_pollall_ok')
    T = ST
    a(f'''
    L_hook:
    s_cmp_eq_u32 {sr(sCNT)}, 5
    s_cbranch_scc1 L_hook_cnt
    s_cmp_ge_u32 s2, 184
    s_cbranch_scc1 L_hookback
    s_lshl_b32 s7, {sr(sW)}, 13
    s_add_u32 s7, s7, 131072
    s_cmp_eq_u32 {sr(sCNT)}, 6
    s_cbranch_scc1 L_hook_st
    v_lshlrev_b32 {vr(T)}, 1, v3
    v_xor_b32 {vr(T)}, {vr(T)}, v2
    v_lshlrev_b32 {vr(T)}, 4, {vr(T)}
    v_lshl_add_u32 {vr(T)}, v3, 10, {vr(T)}
    s_lshl_b32 s3, {sr(sW)}, 8
    v_add_u32 {vr(T)}, s3, {vr(T)}
    v_xor_b32 {vr(T + 1)}, 128, {vr(T)}
    ''')
    for i in range(8):
        if i % 4 == 0:
            a(f's_add_u32 m0, s7, {(i // 4) * 4096}')
        a(f's_mov_b32 s3, {i * 4096 - 1024 * (i & 3)}')
        a(f'buffer_load_dwordx4 {vr(T + (i & 1))}, {sr(SRD_WO, 4)}, s3 offen offset:{1024 * (i & 3)} lds')
    a(f'''
    s_branch L_hookback
    L_hook_st:
    v_lshrrev_b32 {vr(T)}, 2, v1
    v_and_b32 {vr(T + 1)}, 7, {vr(T)}
    v_lshlrev_b32 {vr(T)}, 8, {vr(T)}
    v_lshl_add_u32 {vr(T)}, {vr(T + 1)}, 5, {vr(T)}
    v_and_b32 {vr(T + 1)}, 3, v1
    v_lshl_add_u32 {vr(T)}, {vr(T + 1)}, 3, {vr(T)}
    v_add_u32 {vr(T)}, s7, {vr(T)}
    ''')
    for db in range(8):
        a(f'v_xor_b32 {vr(T + 1)}, {db * 32}, {vr(T)}')
        for u in range(2):
            a(f'ds_read_b64_tr_b16 {ar(WPR + db * 4 + 2 * u, 2)}, {vr(T + 1)} offset:{u * 4096}')
    a(f'''
    s_sub_u32 s3, s2, 128
    s_add_u32 s7, s2, 56
    s_cmp_lt_u32 s2, 128
    s_cselect_b32 s3, s7, s3
    s_lshl_b32 s3, s3, 12
    s_mul_i32 s7, {sr(sW)}, {2 * WFS}
    s_add_u32 s3, s3, s7
    s_add_u32 s3, s3, {WS_WF}
    s_add_u32 s7, s3, {WFS}
    s_waitcnt lgkmcnt(0)
    ''')
    for db in range(8):
        a(f'buffer_store_dwordx4 {ar(WPR + db * 4, 4)}, {vr(CL16)}, {sr(SRD_WS, 4)}, {"s3" if db < 4 else "s7"} offen offset:{1024 * (db & 3)} sc1')
    a(f'''
    s_branch L_hookback
    L_hook_cnt:
    s_cmp_lg_u32 {sr(sW)}, 0
    s_cbranch_scc1 L_hookback
    v_mov_b32 {vr(T)}, 1
    s_mov_b64 exec, 1
    buffer_atomic_add {vr(T)}, off, {sr(SRD_DBG, 4)}, 0 sc1
    s_mov_b64 exec, -1
    s_nop 3
    s_branch L_hookback
    ''')

FR = 160
def red_write(acc, j, nb, base): return f'ds_write_b128 {vr(CRW + j - 1)}, {ar(acc + (nb * 4 + j) * 4, 4)} offset:{base + nb * 1024}'
def red_read(r, nb, base): return f'ds_read_b128 {vr(FR + r * 16 + nb * 4, 4)}, {vr(CRR)} offset:{base + r * 4096 + nb * 1024}'

def phase_c(a, opt):
    T = NF + NS
    finalize_o(a, opt)
    stamp(a, opt, 'Ofin')
    for t in range(4, DEPTH):
        p, m = c_issue(t)
        for x in p + m: a(x)
    for j in range(1, 4):
        a(f's_add_u32 s3, {sr(sW)}, {j}\ns_and_b32 s3, s3, 3\ns_mul_i32 s3, s3, 12288\ns_add_u32 s3, s3, {(j - 1) * 4096}\nv_add_u32 {vr(CRW + j - 1)}, s3, {vr(CL16)}')
    a(f'''
    s_mul_i32 s3, {sr(sW)}, 12288
    v_add_u32 {vr(CRR)}, s3, {vr(CL16)}
    s_mov_b32 s{SRD_X}, s96
    s_mov_b32 s{SRD_X + 1}, s97
    s_mov_b32 s{SRD_X + 2}, 2097152
    s_mov_b32 s{SRD_X + 3}, 0x20000
    v_lshlrev_b32 v5, 3, v3
    v_lshl_add_u32 {vr(COUT)}, v2, 10, v5
    s_lshl_b32 s3, {sr(sRB)}, 16
    s_lshl_b32 s7, {sr(sW)}, 14
    s_add_u32 s3, s3, s7
    s_lshl_b32 s7, {sr(sCB)}, 7
    s_add_u32 {sr(sOV)}, s3, s7
    v_mov_b32 v4, 1
    v_mov_b32 v5, 0
    s_waitcnt vmcnt({NOP() * (DEPTH - 4)})
    s_mov_b64 exec, 1
    buffer_store_dword v4, v5, {sr(SRD_WS, 4)}, s94 offen sc1
    s_mov_b64 exec, -1
    ''')
    stamp(a, opt, 'Oflag')
    a.raw('.p2align 3')
    GV = 224
    for t in range(T):
        acc = ACF if t < NF else ACS_
        first = t in (0, NF)
        G = []
        for nb in range(4):
            for j in range(4):
                d = ar(acc + (nb * 4 + j) * 4, 4)
                G.append(Gap(mf(d, ar(CAr(t & 7) + nb * 4, 4), vr(CB + (t & 7) * 16 + j * 4, 4), '0' if first else d)))
        tn = t + DEPTH
        extra = 0
        if tn == NF:
            stamp(a, opt, 'poll0')
            for x in c_switch_to_s(): a(x)
            a(f's_lshl_b32 s3, {sr(sRB)}, 7\ns_lshl_b32 s7, {sr(sW)}, 5\ns_add_u32 s3, s3, s7\ns_add_u32 s3, s3, {WS_FLAG}\nv_lshlrev_b32 v4, 2, {vr(LANE)}')
            poll(a, 'L_po', SRD_WS, 's3', 8, 1)
            stamp(a, opt, 'poll1')
            a.raw('.p2align 3')
        if t == NF: stamp(a, opt, 'fend')
        if tn < T:
            p, m = c_issue(tn)
            G[0].pre += p
            place(G, m, 0, 8)
        if t == T - DEPTH:
            place(G, [f'buffer_load_dwordx2 {vr(CXR + 2 * nb, 2)}, {vr(COUT)}, {sr(SRD_X, 4)}, {sr(sOV)} offen offset:{32 * nb}' for nb in range(4)], 0, 8)
        if t + 1 < T:
            outstanding = NOP() * (min(T - 1, tn) - (t + 1)) + (4 if t >= T - DEPTH else 0)
            G[15].post.append(f's_waitcnt vmcnt({outstanding})')
        if NF + 1 <= t <= NF + 3:
            place(G, [red_write(ACF, t - NF, nb, 0) for nb in range(4)], 9, 15, cap=1)
        if t == NF + 4:
            place(G, [f'v_accvgpr_read_b32 {vr(GV + nb * 4 + i)}, {ar(ACF + nb * 16 + i)}' for nb in range(4) for i in range(4)], 8, 15, kind='valu')
            G[15].post += ['s_waitcnt lgkmcnt(0)', 's_barrier']
        if t == NF + 5:
            place(G, [red_read(r, nb, 0) for r in range(3) for nb in range(4)], 8, 15)
        if t == NF + 6:
            G[7].post.append('s_waitcnt lgkmcnt(0)')
        if NF + 6 <= t <= NF + 8:
            place(G, [f'v_add_f32 {vr(GV + k)}, {vr(GV + k)}, {vr(FR + (t - NF - 6) * 16 + k)}' for k in range(16)], 8, 15, kind='valu')
        if t == NF + 9:
            place(G, [f'v_mul_f32 {vr(FR + k)}, {f2u(-math.log2(math.e))}, {vr(GV + k)}' for k in range(16)], 8, 15, kind='valu')
        if t in (NF + 10, NF + 11):
            for k in range(8): G[8 + k].valu.append(f'v_exp_f32 {vr(FR + (t - NF - 10) * 8 + k)}, {vr(FR + (t - NF - 10) * 8 + k)}')
        if t == NF + 12:
            place(G, [f'v_add_f32 {vr(FR + k)}, 1.0, {vr(FR + k)}' for k in range(16)], 8, 15, kind='valu')
        if t in (NF + 13, NF + 14):
            for k in range(8): G[8 + k].valu.append(f'v_rcp_f32 {vr(FR + (t - NF - 13) * 8 + k)}, {vr(FR + (t - NF - 13) * 8 + k)}')
        if t == NF + 15:
            place(G, [f'v_mul_f32 {vr(GV + k)}, {vr(GV + k)}, {vr(FR + k)}' for k in range(16)], 8, 15, kind='valu')
        emit_gaps(a, gapops(G), align=False)
    stamp(a, opt, 'send')
    a('s_nop 3')
    for k in range(8):
        a(f'v_lshlrev_b32 {vr(32 + 2 * k)}, 16, {vr(CXR + k)}') if False else None
    a('s_nop 3')
    for j in range(1, 4):
        for nb in range(4):
            a(red_write(ACS_, j, nb, 49152))
    SV = 208
    for nb in range(4):
        for i in range(4):
            a(f'v_accvgpr_read_b32 {vr(SV + nb * 4 + i)}, {ar(ACS_ + nb * 16 + i)}')
    a('s_waitcnt vmcnt(0)')
    for k in range(8):
        a(f'v_lshlrev_b32 {vr(32 + 2 * k)}, 16, {vr(CXR + k)}')
        a(f'v_and_b32 {vr(33 + 2 * k)}, 0xffff0000, {vr(CXR + k)}')
    a('s_waitcnt lgkmcnt(0)\ns_barrier')
    for r in range(3):
        for nb in range(4):
            a(red_read(r, nb, 49152))
    for r in range(3):
        a(f's_waitcnt lgkmcnt({4 * (2 - r)})')
        for k in range(0, 16, 2):
            a(f'v_pk_add_f32 {vr(SV + k, 2)}, {vr(SV + k, 2)}, {vr(FR + r * 16 + k, 2)}')
    for k in range(0, 16, 2):
        a(f'v_pk_fma_f32 {vr(SV + k, 2)}, {vr(SV + k, 2)}, {vr(GV + k, 2)}, {vr(32 + k, 2)}')
    for k in range(8):
        a(f'v_cvt_pk_bf16_f32 {vr(CXR + k)}, {vr(SV + 2 * k)}, {vr(SV + 1 + 2 * k)}')
    for nb in range(4):
        a(f'buffer_store_dwordx2 {vr(CXR + 2 * nb, 2)}, {vr(COUT)}, {sr(SRD_OUT, 4)}, {sr(sOV)} offen offset:{32 * nb}')

OPT = {}
def gen(opt):
    OPT.clear(); OPT.update(opt)
    SLOW.clear(); STAMPS.clear()
    a = A()
    setup(a, opt)
    phase_a(a, opt)
    phase_b(a, opt)
    phase_c(a, opt)
    if opt.get('stamp'):
        a('s_waitcnt vmcnt(0)')
        stamp(a, opt, 'end')
        a(f'''
        s_waitcnt lgkmcnt(0)
        s_lshl_b32 s3, s2, 2
        s_add_u32 s3, s3, {sr(sW)}
        s_lshl_b32 s3, s3, 6
        s_add_u32 s3, s3, {WS_STAMP}
        v_mov_b32 v1, 0
        v_mov_b32 v4, v0
        ''')
        if opt.get('dbgstamp'):
            a('v_not_b32 v20, v0\ns_mov_b64 exec, 1')
            a(f'buffer_atomic_umax v20, off, {sr(SRD_DBG, 4)}, 0 offset:4 sc1')
            for i in range(len(STAMPS)):
                a(f'v_mov_b32 v{21 + i}, s{sST + 2 * i}')
                a(f'buffer_atomic_umax v{21 + i}, off, {sr(SRD_DBG, 4)}, 0 offset:{8 + 4 * i} sc1')
            a('s_mov_b64 exec, -1')
        for i in range(12): a(f'v_mov_b32 v{5 + i}, s{sST + 2 * i}')
        for i in range(4):
            a(f'buffer_store_dwordx4 v[{4 + 4 * i}:{7 + 4 * i}], v1, {sr(SRD_WS, 4)}, s3 offen offset:{16 * i}')
    a.label('L_end')
    a('s_endpgm')
    hooks(a)
    for p, tag, final in SLOW:
        for hf in range(2):
            a.label(f'L_slow{hf}_{tag}')
            a(f's_call_b64 s[98:99], L_slowfn{hf}_{p}_{int(final)}')
            a(f's_branch L_back{hf}_{tag}')
    for p, final in sorted({(p, f) for p, _, f in SLOW}):
        for hf in range(2):
            slow_path(a, p, hf, final)
    return kernel_file(f'; ost {OST()}\n; stamps entry ' + ' '.join(STAMPS) + '\n' + a.text(), 'grid=(256,1,1) block=(256,1,1) lds=163840')

if __name__ == '__main__':
    opt = json.loads(sys.argv[2]) if len(sys.argv) > 2 else {}
    open(sys.argv[1], 'w').write(gen(opt))
```

```python
import re
NAME = 'recurrent_scan__mha_block_cached__glu_gated_bilinear__prompt'

HEADER = """; Kernarg layout for this problem (96 bytes, ptrs only, base s[0:1]):
;   offset  16: d_in[2] A_v_cache  shape=(1, 32, 2048, 128) dtype=bfloat16
;
"""

VOP3_ONLY = ('v_cvt_pk_bf16_f32', 'v_max3', 'v_min3', 'v_fma_', 'v_pk_', 'v_accvgpr_read', 'v_accvgpr_write', 'v_lshl_add', 'v_add3',
             'v_lshl_or', 'v_and_or', 'v_or3', 'v_bfe', 'v_bfi', 'v_mul_lo', 'v_mul_hi', 'v_mad_', 'v_mfma', 'v_smfmac', 'v_dot2_', 'v_perm_b32',
             'v_add_lshl', 'v_xad', 'v_readlane', 'v_writelane', 'v_mbcnt', 'v_med3', 'v_bitop3', 'v_alignbit', 'v_lshlrev_b64', 'v_cvt_scale')
INLINE_F = {'0.5', '-0.5', '1.0', '-1.0', '2.0', '-2.0', '4.0', '-4.0'}

def _has_literal(ops):
    for o in ops:
        o = o.strip()
        if re.fullmatch(r'-?0x[0-9a-fA-F]+|-?\d+', o):
            v = int(o, 0)
            if not (-16 <= v <= 64):
                return True
        elif re.fullmatch(r'-?\d+\.\d*(e-?\d+)?', o) and o not in INLINE_F:
            return True
    return False

def isize(line):
    s = line.split(';')[0].strip()
    if not s or s.endswith(':') or s.startswith('.'):
        return 0
    m = s.split(None, 1)
    op = m[0]
    ops = m[1].split(',') if len(m) > 1 else []
    if op.startswith(('ds_', 'buffer_', 'global_', 'flat_', 's_load', 's_memtime', 's_memrealtime', 's_atomic', 's_buffer')):
        return 8
    if op.startswith('s_'):
        if op in ('s_waitcnt', 's_nop', 's_barrier', 's_branch', 's_sleep', 's_setprio', 's_endpgm') or op.startswith(('s_cbranch', 's_movk', 's_addk', 's_cmpk', 's_mulk', 's_getreg', 's_call')):
            return 4
        return 8 if _has_literal(ops) or 'L_' in s else 4
    if op.startswith(VOP3_ONLY) or op.endswith('_e64') or 'dpp' in s or 'sdwa' in s or 'row_' in s:
        return 8
    if op.startswith('v_cndmask') and ops[-1].strip() != 'vcc':
        return 8
    if op.startswith('v_cmp'):
        if not ops[0].strip() == 'vcc':
            return 8
        if not ops[2].strip().startswith('v'):
            return 8
        return 8 if _has_literal(ops[1:]) else 4
    if op.startswith('v_'):
        if any(o.strip().startswith(('-v', 'abs', '-s', '|')) for o in ops):
            return 8
        if len(ops) >= 3 and not ops[2].strip().startswith('v'):
            return 8
        return 8 if _has_literal(ops[1:]) else 4
    raise ValueError(line)

class A:
    def __init__(self):
        self.lines = []
    def __call__(self, s):
        for l in s.split('\n'):
            l = l.strip()
            if l:
                self.lines.append(l if l.endswith(':') else '    ' + l)
    def label(self, s):
        self.lines.append(s + ':')
    def raw(self, s):
        self.lines.append(s)
    def text(self):
        return '\n'.join(self.lines) + '\n'

def vr(b, n=1):
    return f'v{b}' if n == 1 else f'v[{b}:{b + n - 1}]'
def ar(b, n=1):
    return f'a{b}' if n == 1 else f'a[{b}:{b + n - 1}]'
def sr(b, n=1):
    return f's{b}' if n == 1 else f's[{b}:{b + n - 1}]'

PROMOTABLE = ('v_add_f32', 'v_exp_f32', 'v_mul_f32', 'v_mov_b32', 'v_sub_f32', 'v_max_f32', 'v_add_u32', 'v_lshlrev_b32', 'v_and_b32')
def emit_gaps(a, gaps, align=True):
    carry = 0
    for g in gaps:
        g = list(g)
        tot = carry + sum(isize(x) for x in g)
        if align and tot % 8:
            for i in range(len(g) - 1, -1, -1):
                op = g[i].split()[0]
                if op in PROMOTABLE and isize(g[i]) == 4:
                    g[i] = g[i].replace(op, op + '_e64', 1)
                    tot += 4
                    break
        carry = tot % 8
        for x in g:
            a(x)
    return carry

def kernel_file(body, launch, vgpr=512, accum=256, sgpr=102, name=NAME + '_kernel'):
    return (HEADER + f'; @launch {launch}\n' +
            '.amdgcn_target "amdgcn-amd-amdhsa--gfx950"\n.text\n'
            f'.globl {name}\n.p2align 8\n.type {name},@function\n{name}:\n' + body +
            '.section .rodata,"a"\n.p2align 6\n'
            f'.amdhsa_kernel {name}\n'
            f'  .amdhsa_next_free_vgpr {vgpr}\n  .amdhsa_next_free_sgpr {sgpr}\n  .amdhsa_accum_offset {accum}\n'
            '  .amdhsa_group_segment_fixed_size 0\n  .amdhsa_kernarg_size 96\n  .amdhsa_user_sgpr_count 2\n'
            '  .amdhsa_user_sgpr_kernarg_segment_ptr 1\n  .amdhsa_system_sgpr_workgroup_id_x 1\n'
            '.end_amdhsa_kernel\n')
```

```python
import sys, json, math, struct
sys.path.insert(0, 'gen')
from asmlib import *

def f2u(x): return '0x%08x' % struct.unpack('<I', struct.pack('<f', x))[0]

WS_O = 0; WS_H = 17 << 20; WS_FLAG = 24 << 20; WS_WF = 25 << 20; WS_STAMP = 32 << 20
WFS = 184 * 4096
sH = 4; sQB = 5; sW = 6
SRD_K = 8; SRD_V = 12; SRD_WS = 16; SRD_X = 20; SRD_WQ = 24; SRD_WG = 28; SRD_WU = 32; SRD_WO = 36; SRD_WD = 40; SRD_OUT = 44; SRD_DBG = 48
sOK = 52; sOV = 53; sM = 54; sCNT = 55; sT0 = 56; sT1 = 57; sT2 = 58; sT3 = 59
sXO = 60; sQO = 61; sGO = 62; sWB = 63
sW4K = 88; sRB = 89; sCB = 90; sBO = 56; sHO = 91; sWQB = 92; sWGB = 93
sDL = 95
sST = 64
KA = 8; VAA = 16; DK0 = 28; DK1 = 29; DV0 = 30; DV1 = 31; VAB = 244
Q = 32; S = 96; NM = 160; PA = 176; PB = 192; TMP = 200; ST = 204; THR = 220; LANE = 1; LM = 224; RL = 240
O = 0; KF = 128; VF = 160; SIDX = 216; WPR = 224
STAGE = 16384
AQ = 8; AG = 12; AC = 16; AX = 20; DQ = 22; DG = 23; DX = 24
XF = 32; ACQ = 96; SX = 224; CSD = 228; STT = 232; SXX = 240; IDX = 27
AGU = 0; AR = 128; AK = 160
XBUF = 0; WBUF = 65536; CSBUF = 65536
CB = 32
def CAr(sl): return (192 + sl * 16) if sl < 4 else (sl - 4) * 16
ACF = 128; ACS_ = 64
CL16 = 7
CRW = 8; CRR = 11; COUT = 12; CXR = 16
sAO = 61; POLLV = 6; ONEV = 223

def OST(): return OPT.get('ost', 135168)
def mf(d, a_, b_, c):
    return f'v_mfma_f32_16x16x32_bf16 {d}, {a_}, {b_}, {c}'

class Gap:
    def __init__(self, m):
        self.m = m; self.pre = []; self.mem = []; self.valu = []; self.post = []
    def ops(self):
        return [self.m] + self.pre + self.mem + self.valu + self.post
    def units(self):
        u = 0
        for x in self.mem: u += 2 if x.startswith('buffer') else 0 if x.startswith('s_') else 1
        for x in self.valu: u += 2 if x.startswith(('v_exp', 'v_rcp', 'v_log', 'v_rsq', 'v_permlane')) else 1
        return u

def place(G, ops, lo, hi=None, kind='mem', cap=2):
    g = lo
    for x in ops:
        pre = []
        if isinstance(x, tuple):
            pre, x = list(x[:-1]), x[-1]
        need = 2 if x.startswith(('buffer', 'v_exp', 'v_rcp', 'v_rsq', 'v_log', 'v_permlane')) else 1
        need = min(need, cap)
        while G[g].units() + need > cap:
            g += 1
        if hi is not None:
            assert g <= hi, (x, g, hi)
        if pre:
            if g > 0 and not any(y.startswith('buffer') for y in G[g - 1].mem):
                G[g - 1].pre += pre
            else:
                if ' m0,' in pre[-1]:
                    pre.append('s_nop 0')
                G[g].pre += pre
        getattr(G[g], kind).append(x)
    return g

STAMPS = []
def place_some(G, ops, lo, hi):
    g = lo
    for k, x in enumerate(ops):
        need = 2 if x.startswith(('v_exp', 'v_rcp', 'v_rsq', 'v_log', 'v_permlane')) else 1
        while g <= hi and G[g].units() + need > 2: g += 1
        if g > hi: return list(ops[k:])
        G[g].valu.append(x)
    return []

def stamp_op(name):
    if not OPT.get('stamp') or (OPT.get('only') and name not in OPT['only']):
        return []
    k = len(STAMPS); STAMPS.append(name)
    assert k < 12
    return [f'{"s_memtime" if OPT.get("cyc") else "s_memrealtime"} s[{sST + 2 * k}:{sST + 2 * k + 1}]']
def stamp(a, opt, name):
    for x in stamp_op(name): a(x)

def srd(a, base, lo, hi, nrec, add=None, sub=None):
    if add is not None:
        a(f's_add_u32 s{base}, s{lo}, {add}')
        a(f's_addc_u32 s{base + 1}, s{hi}, 0')
    else:
        a(f's_mov_b32 s{base}, s{lo}')
        a(f's_mov_b32 s{base + 1}, s{hi}')
    if sub is not None:
        a(f's_sub_u32 s{base}, s{base}, {sub}')
        a(f's_subb_u32 s{base + 1}, s{base + 1}, 0')
    a(f's_mov_b32 s{base + 2}, {nrec}')
    a(f's_mov_b32 s{base + 3}, 0x20000')

def setup(a, opt):
    a(f'''
    s_cmp_ge_u32 s2, 256
    s_cbranch_scc1 L_end
    {("s_memtime" if opt.get("cyc") else "s_memrealtime") + " s[98:99]" if opt.get("stamp") else ""}
    s_load_dwordx16 s[64:79], s[0:1], 0
    s_load_dwordx8 s[80:87], s[0:1], 64
    v_lshrrev_b32 v4, 6, v0
    v_and_b32 v1, 63, v0
    v_readfirstlane_b32 {sr(sW)}, v4
    s_and_b32 s3, s2, 7
    s_bfe_u32 s7, s2, 0x20003
    s_lshl_b32 s7, s7, 3
    s_add_u32 {sr(sH)}, s3, s7
    s_lshr_b32 {sr(sQB)}, s2, 5
    s_lshl_b32 {sr(sW4K)}, {sr(sW)}, 12
    s_lshr_b32 s7, s2, 6
    s_lshl_b32 s3, s3, 2
    s_add_u32 {sr(sRB)}, s3, s7
    s_bfe_u32 {sr(sCB)}, s2, 0x30003
    v_and_b32 v2, 15, v1                ; r = l&15
    v_lshrrev_b32 v3, 4, v1             ; g = l>>4
    ''')
    if OPT.get('ipf', 1):
        a(f'''
        s_getpc_b64 s[100:101]
        L_pc:
        s_lshr_b32 s3, s2, 3
        s_lshl_b32 s3, s3, 2
        s_add_u32 s3, s3, {sr(sW)}
        s_and_b32 s3, s3, 15
        s_lshl_b32 s3, s3, 13
        s_min_u32 s3, s3, L_codeend-L_pc-8192
        v_lshlrev_b32 v4, 7, v1
        v_add_u32 v4, s3, v4
        global_load_dword v26, v4, s[100:101]
        ''')

def setup_x(a, opt):
    a(f's_lshl_b32 s3, {sr(sQB)}, 18\ns_lshl_b32 s7, {sr(sW)}, 16\ns_add_u32 s3, s3, s7')
    a('s_waitcnt lgkmcnt(0)')
    if opt.get('stamp'): a('v_mov_b32 v0, s98')
    if opt.get('early'): a('s_memrealtime vcc')
    srd(a, SRD_X, 64, 65, 65536, add='s3')

def setup_w(a):
    a(f's_lshl_b32 s3, {sr(sH)}, 8')
    srd(a, SRD_WQ, 70, 71, 511 * 8192 + 256, add='s3')
    a(f's_lshl_b32 s3, {sr(sH)}, 7\ns_cmp_lt_u32 {sr(sH)}, 28\ns_cselect_b32 s3, s3, 0\ns_cselect_b32 s7, {511 * 3584 + 128}, 0')
    srd(a, SRD_WG, 76, 77, 's7', add='s3')
    srd(a, SRD_WU, 78, 79, 's7', add='s3')

def setup_wp(a):
    a('s_cmp_lt_u32 s2, 128\ns_cselect_b32 s72, s72, s80\ns_cselect_b32 s73, s73, s81\ns_and_b32 s3, s2, 127\ns_lshl_b32 s3, s3, 15')
    a('s_cmp_lt_u32 s2, 184\ns_cselect_b32 s3, s3, 0')
    a('s_cselect_b32 s7, 32768, 0\ns_cselect_b32 s74, 0x10000000, 0')
    srd(a, SRD_WO, 72, 73, 's7', add='s3')
    srd(a, SRD_WD, 86, 87, 's74')

def setup2(a, opt):
    a(f's_lshl_b32 s3, {sr(sH)}, 19')
    srd(a, SRD_K, 66, 67, 524288, add='s3')
    srd(a, SRD_V, 68, 69, 524288 + 2048, add='s3', sub=2048)
    srd(a, SRD_WS, 86, 87, 0x10000000)
    srd(a, SRD_OUT, 82, 83, 2097152)
    srd(a, SRD_DBG, 84, 85, 256)
    a('s_mov_b32 s96, s64\ns_mov_b32 s97, s65')

def a_setup_dma_addr(a):
    a(f'''
    s_lshl_b32 s3, {sr(sW)}, 3
    v_add_u32 v4, s3, v3                 ; row = 8w + (l>>4)
    v_lshlrev_b32 v5, 2, v3
    v_xor_b32 v5, v5, v2
    v_lshlrev_b32 v5, 4, v5
    v_lshl_add_u32 {vr(DQ)}, v4, 13, v5
    v_lshrrev_b32 v4, 3, v1              ; rho = l>>3
    v_and_b32 v5, 3, v4
    v_lshrrev_b32 v6, 5, v1
    v_lshl_add_u32 v5, v6, 3, v5
    s_lshr_b32 s3, {sr(sW)}, 1
    s_lshl_b32 s3, s3, 4
    s_and_b32 s7, {sr(sW)}, 1
    s_lshl_b32 s7, s7, 2
    s_add_u32 s3, s3, s7
    v_add_u32 v5, s3, v5                 ; W row
    v_mul_u32_u24 v5, 3584, v5
    v_lshlrev_b32 v6, 1, v3
    v_and_b32 v7, 7, v1
    v_xor_b32 v6, v6, v7
    v_lshl_add_u32 {vr(DG)}, v6, 4, v5
    v_xor_b32 v6, v3, v7
    v_lshlrev_b32 v6, 4, v6
    v_lshl_add_u32 {vr(DX)}, v4, 10, v6
    v_xor_b32 {vr(DX + 1)}, 64, {vr(DX)}
    ''')

def a_dma_x(j_par):
    ops = []
    for i in range(8):
        pre = []
        if i % 4 == 0:
            pre.append(f's_add_u32 m0, {sr(sT3)}, {XBUF + j_par * 32768 + (i // 4) * 4096}')
        pre.append(f's_add_u32 {sr(sT0 + (i & 1))}, {sr(sXO)}, {i * 8192 - 1024 * (i & 3)}')
        ops.append(tuple(pre) + (f'buffer_load_dwordx4 {vr(DX + (i & 1))}, {sr(SRD_X, 4)}, {sr(sT0 + (i & 1))} offen offset:{1024 * (i & 3)} lds',))
    return ops, [f's_add_u32 {sr(sXO)}, {sr(sXO)}, 128', f's_and_b32 {sr(sXO)}, {sr(sXO)}, 1023']

def a_dma_w():
    ops = []
    for ks in range(2):
        ops.append((f's_add_u32 m0, {sr(sWQB)}, {ks * 16384}', f's_add_u32 {sr(sT0)}, {sr(sQO)}, {ks * 32 * 8192}',
                    f'buffer_load_dwordx4 {vr(DQ)}, {sr(SRD_WQ, 4)}, {sr(sT0)} offen lds'))
        ops.append((f's_add_u32 {sr(sT1)}, {sr(sQO)}, {ks * 32 * 8192 + 4 * 8192 - 1024}',
                    f'buffer_load_dwordx4 {vr(DQ)}, {sr(SRD_WQ, 4)}, {sr(sT1)} offen offset:1024 lds'))
        ops.append((f's_add_u32 m0, {sr(sWGB)}, {ks * 16384}', f's_add_u32 {sr(sT0)}, {sr(sGO)}, {ks * 32 * 3584}',
                    f'buffer_load_dwordx4 {vr(DG)}, {sr(SRD_WG, 4)}, {sr(sT0)} offen lds'))
        ops.append((f's_add_u32 m0, m0, 4096',
                    f'buffer_load_dwordx4 {vr(DG)}, {sr(SRD_WU, 4)}, {sr(sT0)} offen lds'))
    adv = [f's_add_u32 {sr(sQO)}, {sr(sQO)}, {64 * 8192}', f's_and_b32 {sr(sQO)}, {sr(sQO)}, 0x3fffff', f's_lshr_b32 {sr(sGO)}, {sr(sQO)}, 13', f's_mul_i32 {sr(sGO)}, {sr(sGO)}, 3584',
           f's_add_u32 {sr(sWB)}, {sr(sWB)}, 1', f's_cmp_eq_u32 {sr(sWB)}, 3', f's_cselect_b32 {sr(sT2)}, -2, 1', f's_cselect_b32 {sr(sWB)}, 0, {sr(sWB)}',
           f's_lshl_b32 {sr(sT2)}, {sr(sT2)}, 15', f's_add_u32 {sr(sWQB)}, {sr(sWQB)}, {sr(sT2)}', f's_add_u32 {sr(sWGB)}, {sr(sWGB)}, {sr(sT2)}']
    return ops, adv

def emit_plain(a, ops):
    for x in ops:
        if isinstance(x, tuple):
            for y in x[:-1]: a(y)
            if ' m0,' in x[-2]: a('s_nop 0')
            a(x[-1])
        else:
            a(x)

def a_setup_read_addr(a):
    a(f'''
    v_bfe_u32 v4, v1, 2, 2               ; r'
    v_and_b32 v5, 3, v1                  ; c'
    v_lshl_add_u32 v6, v3, 3, v4         ; 8g + r'
    v_lshlrev_b32 v6, 8, v6
    v_lshl_add_u32 v6, v4, 6, v6         ; + (r'<<2)*16
    v_lshl_add_u32 v6, v5, 4, v6         ; + c'*16
    v_add_u32 v6, {WBUF}, v6
    ''')
    for sp in range(4):
        a(f'v_xor_b32 {vr(AQ + sp)}, {sp * 64}, v6')
    a(f'''
    v_bfe_u32 v6, v1, 2, 3               ; rho = 4(g&1) + r'
    v_lshrrev_b32 v7, 1, v6              ; key2
    v_lshlrev_b32 v6, 7, v6
    v_lshl_add_u32 v6, v7, 5, v6
    v_lshl_add_u32 v6, v5, 3, v6
    v_lshrrev_b32 v7, 5, v1
    v_lshl_add_u32 v6, v7, 11, v6
    v_add_u32 v6, {WBUF + 8192}, v6
    ''')
    for nb in range(4):
        a(f'v_xor_b32 {vr(AG + nb)}, {nb * 32}, v6')
    a(f's_cmp_eq_u32 {sr(sW)}, 0\ns_cselect_b64 s[98:99], -1, 0\ns_cmp_lt_u32 {sr(sW)}, 2\ns_cselect_b64 s[100:101], -1, 0')
    a(f's_and_b32 s3, {sr(sW)}, 1\ns_lshl_b32 s3, s3, 12')
    for k in range(4):
        a(f'v_cndmask_b32 v4, {vr(AQ + 2 + (k >> 1))}, {vr(AQ + (k >> 1))}, s[98:99]')
        if k & 1:
            a('v_add_u32 v4, 8, v4')
        a(f'v_add_u32 v5, s3, {vr(AG + k)}')
        a(f'v_cndmask_b32 {vr(AC + k)}, v5, v4, s[100:101]')
    a(f'''
    v_lshrrev_b32 v4, 1, v2
    v_xor_b32 v4, v4, v3
    v_lshlrev_b32 v4, 4, v4
    v_lshl_add_u32 v4, v2, 7, v4
    v_add_u32 {vr(AX)}, {sr(sT3)}, v4
    v_xor_b32 {vr(AX + 1)}, 64, {vr(AX)}
    v_mov_b32 v4, 0x3f803f80
    v_and_b32 v5, 3, v1
    v_mov_b32 v6, 0xeeee
    v_and_b32 v7, 4, v1
    v_cmp_eq_u32 vcc, 0, v7
    v_mov_b32 v7, 0x4444
    v_cmp_eq_u32 s[98:99], 0, v5
    v_cndmask_b32 {vr(IDX)}, v6, v7, vcc
    s_nop 0
    ''')
    for k in range(4):
        a(f'v_cndmask_b32 v6, 0, v4, s[98:99]')
        if k < 3: a(f'v_cmp_eq_u32 s[98:99], {k + 1}, v5')
        for i in range(4):
            a(f'v_accvgpr_write_b32 {ar(AK + 4 * k + i)}, v6')

def Xreg(par, c, ks): return XF + par * 32 + c * 8 + ks * 4
def accA(nb, c):
    return vr(ACQ + (nb * 4 + c) * 4, 4) if nb < 8 else ar(AGU + ((nb - 8) * 4 + c) * 4, 4)
ORDER = [16, 17, 18, 19] + list(range(16))
def a_reads(pos):
    grp = ORDER[pos]
    out = []
    for ks in range(2):
        for u in range(2):
            off = ks * 16384 + u * 1024
            if grp < 8:
                ad = AQ + (grp >> 1); off += 8 * (grp & 1)
            elif grp < 16:
                ad = AG + (grp & 3); off += 4096 * ((grp - 8) >> 2)
            else:
                ad = AC + grp - 16
            out.append(f'ds_read_b64_tr_b16 {ar(AR + (pos & 3) * 8 + ks * 4 + 2 * u, 2)}, {vr(ad)} offset:{off}')
    return out
def x_reads(par):
    return [f'ds_read_b128 {vr(Xreg(par, c, ks), 4)}, {vr(AX + ks)} offset:{XBUF + par * 32768 + c * 2048}' for c in range(4) for ks in range(2)]

def a_superstep(par, first, tail, kv_ops=None, name=None, pre_ops=None, pre_adv=None):
    G = []; start = []
    for pos in range(20):
        grp = ORDER[pos]
        start.append(len(G))
        sl = AR + (pos & 3) * 8
        if grp < 16:
            for c in range(4):
                for ks in range(2):
                    d = accA(grp, c)
                    G.append(Gap(mf(d, ar(sl + 4 * ks, 4), vr(Xreg(par, c, ks), 4), '0' if first and ks == 0 else d)))
        else:
            k = grp - 16
            G.append(Gap(f'v_smfmac_f32_16x16x64_bf16 {vr(CSD, 4)}, {ar(AK + 4 * k, 4)}, {ar(sl, 8)}, {vr(IDX)}'))
            G.append(Gap(f'v_smfmac_f32_16x16x64_bf16 {vr(SX, 4)}, {ar(AK + 4 * k, 4)}, {vr(Xreg(par, k, 0), 8)}, {vr(IDX)}'))
            for ks in range(2):
                d = vr(SXX + 4 * k, 4)
                G.append(Gap(mf(d, vr(Xreg(par, k, ks), 4), vr(Xreg(par, k, ks), 4), '0' if first and ks == 0 else d)))
    start.append(len(G))
    def at(g, x, kind='mem'):
        place(G, [x], g, g, kind=kind)
    rp = OPT.get('a_rp', [0, 1, 2, 3])
    for grp in range(18):
        for k, x in zip(rp if grp >= 4 else [0, 0, 1, 2], a_reads(grp + 2)):
            at(start[grp] + k, x)
    dm = []
    if tail == 0:
        wops, wadv = a_dma_w(); xops, xadv = a_dma_x(par)
        if OPT.get('a_now'): wops = []
        if OPT.get('a_nox'): xops = []
        dm = wops + xops
        if pre_ops:
            dm = pre_ops + dm
    if kv_ops:
        dm = kv_ops
    free = [start[p] + (5 if p >= 4 else 3) for p in range(18)]
    if len(dm) > len(free):
        free = [g for p in range(18) for g in ((start[p] + 4, start[p] + 6) if p >= 4 else (start[p] + 3,))]
    pos = free[:len(dm)]
    for g, x in zip(pos, dm):
        if x is not None: at(g, x)
    if tail == 0:
        npre = len(pre_ops) if pre_ops else 0
        if pre_ops:
            for g, adv in pre_adv:
                G[pos[g] + 1].pre += adv
        if wops:
            g = pos[npre + len(wops) - 1]
            G[g + 1].pre += wadv[:4]; G[g + 2].pre += wadv[4:8]; G[g + 3].pre += wadv[8:]
        if xops:
            G[pos[-1] + 1].pre += xadv
    xg = OPT.get('a_xg', 14)
    if tail < 2:
        wg = start[xg] + 3
        npre = len(pre_ops) if pre_ops else 0
        younger = sum(1 for k, g in enumerate(pos) if g < wg and k >= npre and dm[k] is not None)
        assert all(g < wg for g in pos[:npre])
        G[wg].pre.append(f's_waitcnt vmcnt({younger})')
        xr = x_reads(1 - par)
        for k, x in enumerate(xr):
            at(start[xg + k // 4] + 3 + (k % 4) + (1 if G[start[xg + k // 4] + 3 + (k % 4)].units() >= 2 else 0), x) if False else None
        g = wg
        xpos = []
        for x in xr:
            while G[g].units() >= 2 or any(y.startswith('ds_read_b128') for y in G[g].mem): g += 1
            G[g].mem.append(x); xpos.append(g)
        assert xpos[-1] < start[18] - 2, xpos
    if tail == 2:
        w, st, rd = a_stats_ops()
        g = place(G, w[0], start[4] + 5, start[9] + 4, kind='valu')
        place(G, w[1], start[9] + 5, start[10] + 7, cap=1)
        G[start[12] - 1].post += ['s_waitcnt lgkmcnt(4)', 's_barrier']
        place(G, rd, start[14] + 4, start[17] + 7, cap=1)
        rest = place_some(G, st, g, start[20] - 1)
        G[-1].post += ['s_nop 1'] + rest
    seq = [(g, x) for g in range(len(G)) for x in G[g].mem if x.startswith('ds_')]
    for grp in range(2, 20):
        if grp == 18:
            continue
        last = max(k for k, (g, x) in enumerate(seq) if x in a_reads(grp) and start[grp - 2] <= g < start[grp - 1])
        n = sum(1 for k, (g, x) in enumerate(seq) if k > last and g < start[grp] - 1)
        G[start[grp] - 1].pre.append(f's_waitcnt lgkmcnt({min(n, 14)})')
    G[start[1] - 1].pre.append('s_waitcnt lgkmcnt(4)')
    if tail < 2:
        G[start[18] - 1].pre += ['s_waitcnt lgkmcnt(0)', 's_barrier']
        vu = [f'v_add_u32 {vr(AQ + i)}, {sr(sDL)}, {vr(AQ + i)}' for i in range(12)]
        place(G, vu[:4] + vu[8:], start[14], start[17] + 5, kind='valu')
        for k, x in enumerate(a_reads(0)): at(start[18] + k, x)
        for k, x in enumerate(a_reads(1)): at(start[19] + k, x)
        place(G, vu[4:8], start[18], start[19] + 5, kind='valu')
        G[start[20] - 1].pre.append('s_waitcnt lgkmcnt(4)')
        G[start[13] + 1].pre += [f's_add_u32 {sr(sM)}, {sr(sM)}, 1', f's_cmp_eq_u32 {sr(sM)}, 3', f's_cselect_b32 {sr(sDL)}, -2, 1', f's_cselect_b32 {sr(sM)}, 0, {sr(sM)}']
        G[start[13] + 2].pre += [f's_lshl_b32 {sr(sDL)}, {sr(sDL)}, 15']
    else:
        G[start[18] - 1].pre += ['s_waitcnt lgkmcnt(0)']
    if name:
        so = stamp_op(name)
        if so:
            G[start[18] - 1].post += so
            G[start[19] - 1].pre.append('s_waitcnt lgkmcnt(0)')
    return G

WPA = [240, 241, 242, 243, 252, 253, 254, 255]
def wp_addr0():
    return ['v_lshlrev_b32 v4, 1, v3', 'v_xor_b32 v4, v4, v2', 'v_lshlrev_b32 v4, 4, v4', 'v_lshl_add_u32 v4, v3, 10, v4', 'v_xor_b32 v5, 128, v4']
def wp_dma():
    ops = []
    for i in range(8):
        pre = []
        if i == 0: pre += [f's_lshl_b32 {sr(sT2)}, {sr(sW)}, 8']
        pre += [f's_add_u32 m0, {sr(sT3)}, {131072 + i * 1024}', f's_add_u32 {sr(sT0)}, {sr(sT2)}, {i * 4096}']
        ops.append(tuple(pre) + (f'buffer_load_dwordx4 v{4 + (i & 1)}, {sr(SRD_WO, 4)}, {sr(sT0)} offen lds',))
    return ops
def wp_addr1():
    t0, t1 = WPA[0], WPA[1]
    ops = [f'v_lshrrev_b32 {vr(t0)}, 2, v1', f'v_and_b32 {vr(t1)}, 7, {vr(t0)}', f'v_lshlrev_b32 {vr(t0)}, 8, {vr(t0)}', f'v_lshl_add_u32 {vr(t0)}, {vr(t1)}, 5, {vr(t0)}',
           f'v_and_b32 {vr(t1)}, 3, v1', f'v_lshl_add_u32 {vr(t0)}, {vr(t1)}, 3, {vr(t0)}', f'v_add_u32 {vr(t0)}, {sr(sT3)}, {vr(t0)}', f'v_add_u32 {vr(t0)}, 131072, {vr(t0)}']
    ops += [f'v_xor_b32 {vr(WPA[db])}, {db * 32}, {vr(t0)}' for db in range(1, 8)]
    return ops
def wp_reads():
    return [f'ds_read_b64_tr_b16 {ar(WPR + db * 4 + 2 * u, 2)}, {vr(WPA[db])} offset:{u * 4096}' for db in range(8) for u in range(2)]
def wp_stores():
    st = []
    for db in range(8):
        st.append(f'buffer_store_dwordx4 {ar(WPR + db * 4, 4)}, {vr(CL16)}, {sr(SRD_WD, 4)}, {"s3" if db < 4 else "s7"} offen offset:{1024 * (db & 3)} sc1')
    sc = ['s_sub_u32 s3, s2, 128', 's_add_u32 s7, s2, 56', 's_cmp_lt_u32 s2, 128', 's_cselect_b32 s3, s7, s3', 's_lshl_b32 s3, s3, 12',
          f's_mul_i32 s7, {sr(sW)}, {2 * WFS}', 's_add_u32 s3, s3, s7', f's_add_u32 s3, s3, {WS_WF}', f's_add_u32 s7, s3, {WFS}']
    return sc, st

def wp_store_ops():
    sc, st = wp_stores()
    out = []
    for k, x in enumerate(st):
        out += [tuple(sc) + (x,) if k == 0 else x, None]
    return out

def warmup(a):
    if OPT.get('pad', 4096):
        nch = OPT.get('nchain', 4)
        a('s_mov_b64 exec, 0')
        for w in range(nch - 1):
            a(f's_cmp_eq_u32 {sr(sW)}, {w}\ns_cbranch_scc1 L_pad{w}')
        a(f's_branch L_pad{nch - 1}')
        a.raw('.p2align 12')
        a.label('L_warmdone')
        a.label('L_warmret')
        a('s_mov_b64 exec, -1')

def phase_a(a, opt):
    a(f's_lshl_b32 {sr(sT3)}, {sr(sW)}, 13')
    a_setup_dma_addr(a)
    a(f's_and_b32 s3, s2, {7 if OPT.get("arot", 0) else 0}\ns_lshl_b32 {sr(sXO)}, s3, 7\ns_lshl_b32 {sr(sQO)}, s3, 19\ns_mul_i32 {sr(sGO)}, s3, {64 * 3584}\ns_mov_b32 {sr(sWB)}, 0\ns_mov_b32 {sr(sM)}, 0')
    a(f's_lshl_b32 {sr(sWQB)}, {sr(sW)}, 11\ns_add_u32 {sr(sWQB)}, {sr(sWQB)}, {WBUF}\ns_lshl_b32 {sr(sWGB)}, {sr(sW)}, 10\ns_add_u32 {sr(sWGB)}, {sr(sWGB)}, {WBUF + 8192}')
    xops, xadv = a_dma_x(0); wops, wadv = a_dma_w()
    setup_x(a, opt)
    emit_plain(a, xops); emit_plain(a, xadv)
    setup_w(a)
    emit_plain(a, wops); emit_plain(a, wadv)
    if opt.get('early'): a('s_memrealtime s[98:99]')
    wm = OPT.get('warmpos', 1)
    if wm == 1: warmup(a)
    xops, xadv = a_dma_x(1); wops, wadv = a_dma_w()
    b = A()
    for i in range(ACQ, ACQ + 4): b(f'v_mov_b32 {vr(i)}, 0')
    setup2(b, opt); setup_wp(b)
    if opt.get('early'):
        b('s_waitcnt lgkmcnt(0)')
        for nm, r in (('karg', 'vcc_lo'), ('i16', 's98')):
            b(f's_mov_b32 s{sST + 2 * len(STAMPS)}, {r}'); STAMPS.append(nm)
    a_setup_read_addr(b); b_setup_dma_addr(b)
    for i in range(ACQ + 4, 256):
        b(f'v_mov_b32 {vr(i)}, 0')
        if (i - ACQ) % 16 == 8 and (i - ACQ) // 16 < 8:
            b(f'v_mfma_f32_32x32x16_bf16 {ar(AGU + 16 * ((i - ACQ) // 16), 16)}, {vr(ACQ, 4)}, {vr(ACQ, 4)}, 0')
    fill = [l.strip() for l in b.lines]
    per = len(fill) // 15 + 1
    k0 = 0
    for k, x in enumerate(xops + wops):
        emit_plain(a, [x])
        if k == 7: emit_plain(a, xadv)
        k1 = min(len(fill), k0 + per)
        while k1 < len(fill) and fill[k1].startswith(('s_addc', 's_subb', 's_cselect')): k1 += 1
        for y in fill[k0:k1]: a(y)
        k0 = k1
    assert k0 == len(fill)
    emit_plain(a, wadv)
    ntouch = 0
    stamp(a, opt, 'issued')
    a(f'''
    s_lshl_b32 s3, {sr(sQB)}, 2
    s_add_u32 s3, s3, {sr(sW)}
    s_lshl_b32 s3, s3, 5
    s_add_u32 s3, s3, {sr(sH)}
    s_lshl_b32 s3, s3, 2
    s_add_u32 s94, s3, {WS_FLAG}
    v_mov_b32 v4, 0
    s_mov_b64 exec, 1
    buffer_store_dword v4, v4, {sr(SRD_WS, 4)}, s94 offen sc1
    s_mov_b64 exec, -1
    ''')
    if wm == 2: warmup(a)
    a(f's_waitcnt vmcnt({17 + ntouch})')
    for x in x_reads(0): a(x)
    a('s_waitcnt lgkmcnt(0)\ns_barrier')
    for x in a_reads(0) + a_reads(1): a(x)
    stamp(a, opt, 'A0')
    a('s_waitcnt lgkmcnt(0)' if opt.get('stamp') else 's_waitcnt lgkmcnt(4)')
    a.raw('.p2align 3')
    a(f's_mov_b32 {sr(sCNT)}, 3')
    a.raw('.p2align 3')
    a.label('L_a')
    G = a_superstep(0, False, 0, name='a4') + a_superstep(1, False, 0, name='a5')
    G[-4].pre.append(f's_sub_u32 {sr(sCNT)}, {sr(sCNT)}, 1')
    G[-2].pre.append(f's_cmp_lg_u32 {sr(sCNT)}, 0')
    G[-1].post.append('s_cbranch_scc1 L_a')
    emit_gaps(a, [g.ops() for g in G])
    a.raw('.p2align 3')
    emit_gaps(a, [g.ops() for g in a_superstep(0, False, 1, name='a6') + a_superstep(1, False, 2, kv_ops=b_prologue_dma())])
    stamp(a, opt, 'Aend')
    a_epilogue(a, opt)

def NMEAN(c): return SX + c
def ALPHA(c): return STT + c
def RS2(c): return STT + 4 + c
CSQ = 32; CSG = 160; HP = 192; ZQ = 240
def a_stats_ops():
    w0 = ['v_lshlrev_b32 v4, 4, v3', f'v_add_u32 v4, {CSBUF}, v4', 'v_lshlrev_b32 v5, 2, v2', f'v_lshl_add_u32 v5, {sr(sW)}, 8, v5', f'v_add_u32 v5, {CSBUF}, v5']
    w0 += [f'v_mov_b32 {vr(STT + k)}, {vr(CSD + k)}' for k in range(4)]
    w0 += [f'v_permlane16_swap_b32 {vr(CSD + k)}, {vr(STT + k)}' for k in range(4)]
    w0 += [f'v_add_f32 {vr(CSD + k)}, {vr(CSD + k)}, {vr(STT + k)}' for k in range(4)]
    w1 = [f'ds_write_b32 v5, {vr(CSD + k)} offset:{64 * k}' for k in range(4)]
    st = ['v_and_b32 v6, 3, v1', 'v_cmp_eq_u32 s[98:99], 1, v6', 'v_cmp_eq_u32 s[100:101], 2, v6', 'v_cmp_eq_u32 vcc, 3, v6',
          'v_lshrrev_b32 v6, 2, v2', 'v_cmp_eq_u32 s[92:93], v6, v3']
    st += [f'v_mov_b32 {vr(STT + 4 + k)}, {vr(SX + k)}' for k in range(4)]
    st += [f'v_permlane16_swap_b32 {vr(SX + k)}, {vr(STT + 4 + k)}' for k in range(4)]
    st += [f'v_add_f32 {vr(SX + k)}, {vr(SX + k)}, {vr(STT + 4 + k)}' for k in range(4)]
    for c in range(4):
        st.append(f'v_mul_f32 {vr(NMEAN(c))}, {f2u(-1 / 512)}, {vr(SX + c)}')
    for k, m in ((1, 's[98:99]'), (2, 's[100:101]'), (3, 'vcc')):
        for c in range(4):
            b = SXX + 4 * c
            st.append(f'v_cndmask_b32 {vr(b)}, {vr(b)}, {vr(b + k)}, {m}')
    for c in range(4):
        st.append(f'v_cndmask_b32 {vr(SXX + 4 * c)}, 0, {vr(SXX + 4 * c)}, s[92:93]')
    for sw in ('v_permlane32_swap_b32', 'v_permlane16_swap_b32'):
        for c in range(4): st.append(f'v_mov_b32 {vr(SXX + 4 * c + 1)}, {vr(SXX + 4 * c)}')
        for c in range(4): st.append(f'{sw} {vr(SXX + 4 * c)}, {vr(SXX + 4 * c + 1)}')
        for c in range(4): st.append(f'v_add_f32 {vr(SXX + 4 * c)}, {vr(SXX + 4 * c)}, {vr(SXX + 4 * c + 1)}')
    sc = (128 ** -0.5) * math.log2(math.e)
    for c in range(4): st.append(f'v_mul_f32 {vr(SXX + 4 * c)}, {f2u(1 / 512)}, {vr(SXX + 4 * c)}')
    for c in range(4): st.append(f'v_fma_f32 {vr(SXX + 4 * c)}, -{vr(NMEAN(c))}, {vr(NMEAN(c))}, {vr(SXX + 4 * c)}')
    for c in range(4): st.append(f'v_max_f32 {vr(SXX + 4 * c)}, 0, {vr(SXX + 4 * c)}')
    for c in range(4): st.append(f'v_add_f32 {vr(SXX + 4 * c)}, {f2u(1e-5)}, {vr(SXX + 4 * c)}')
    for c in range(4): st.append(f'v_rsq_f32 {vr(ALPHA(c))}, {vr(SXX + 4 * c)}')
    for c in range(4): st.append(f'v_rcp_f32 {vr(RS2(c))}, {vr(SXX + 4 * c)}')
    for c in range(4): st.append(f'v_mul_f32 {vr(ALPHA(c))}, {f2u(sc)}, {vr(ALPHA(c))}')
    for i in range(4): st.append(f'v_mov_b32 {vr(ZQ + i)}, 0')
    rd = [f'ds_read_b128 {vr(CSQ + 4 * nb, 4)}, v4 offset:{64 * nb}' for nb in range(8)]
    return (w0, w1), st, rd

def bc(r):
    return vr(r & ~1, 2), (r & 1)

def a_epilogue(a, opt):
    for c in range(4):
        nm, nh = bc(NMEAN(c))
        for nb in range(8):
            b = ACQ + (nb * 4 + c) * 4
            for i in (0, 2):
                a(f'v_pk_fma_f32 {vr(b + i, 2)}, {vr(CSQ + 4 * nb + i, 2)}, {nm}, {vr(b + i, 2)} op_sel:[0,{nh},0] op_sel_hi:[1,{nh},1]')
    for c in range(4):
        al, ah = bc(ALPHA(c))
        for nb in range(8):
            b = ACQ + (nb * 4 + c) * 4
            for i in (0, 2):
                a(f'v_pk_mul_f32 {vr(b + i, 2)}, {vr(b + i, 2)}, {al} op_sel:[0,{ah}] op_sel_hi:[1,{ah}]')
            for i in (0, 2):
                a(f'v_cvt_pk_bf16_f32 {vr(Q + 16 * c + 2 * nb + (i >> 1))}, {vr(b + i)}, {vr(b + i + 1)}')
    stamp(a, opt, 'e_q')
    for nb in range(8):
        a(f'ds_read_b128 {vr(CSG + 4 * nb, 4)}, v4 offset:{64 * (8 + nb)}')

def h_epilogue(a, mfmas):
    mfmas = list(mfmas)
    for c in range(4):
        nm, nh = bc(NMEAN(c)); rs, rh = bc(RS2(c))
        for pr in range(2):
            for u in range(2):
                nb = 2 * pr + u
                tg = 128 + u * 8; tu = tg + 4; pk = 144 + 2 * u
                for i in range(4):
                    if i % 2 == 0 and mfmas: a(mfmas.pop(0))
                    a(f'v_accvgpr_read_b32 {vr(tg + i)}, {ar(AGU + (nb * 4 + c) * 4 + i)}')
                    a(f'v_accvgpr_read_b32 {vr(tu + i)}, {ar(AGU + ((nb + 4) * 4 + c) * 4 + i)}')
                for i in (0, 2):
                    a(f'v_pk_fma_f32 {vr(tg + i, 2)}, {vr(CSG + 4 * nb + i, 2)}, {nm}, {vr(tg + i, 2)} op_sel:[0,{nh},0] op_sel_hi:[1,{nh},1]')
                    a(f'v_pk_fma_f32 {vr(tu + i, 2)}, {vr(CSG + 16 + 4 * nb + i, 2)}, {nm}, {vr(tu + i, 2)} op_sel:[0,{nh},0] op_sel_hi:[1,{nh},1]')
                for i in (0, 2):
                    a(f'v_pk_mul_f32 {vr(tg + i, 2)}, {vr(tg + i, 2)}, {rs} op_sel:[0,{rh}] op_sel_hi:[1,{rh}]')
                for i in (0, 2):
                    a(f'v_pk_mul_f32 {vr(tg + i, 2)}, {vr(tg + i, 2)}, {vr(tu + i, 2)}')
                for i in (0, 2):
                    a(f'v_cvt_pk_bf16_f32 {vr(pk + (i >> 1))}, {vr(tg + i)}, {vr(tg + i + 1)}')
                for i in (0, 1):
                    a(f'v_accvgpr_write_b32 {ar(HP + (c * 2 + pr) * 4 + 2 * u + i)}, {vr(pk + i)}')
    assert not mfmas

def Sreg(buf, c, kb=0): return S + buf * 32 + c * 8 + kb * 4
def Qreg(c, s): return Q + c * 16 + s * 4
def Preg(c, par): return (PA + par * 8 + c * 4) if c < 2 else PB + (c - 2) * 4
def Oreg(c, db): return O + c * 32 + db * 4
def LMreg(hf): return LM + hf * 4
def LOLD(hf): return LM + 8 + hf
SELA = 24; HL = 33; SL = 66
def qk_mfma(buf, c, kb, s, c0=None):
    d = vr(Sreg(buf, c, kb), 4)
    cc = d if s else (c0 if c0 is not None else vr(NM + 4 * c, 4))
    return mf(d, ar(KF + 4 * (kb * 4 + s), 4), vr(Qreg(c, s), 4), cc)
def pv_mfma(c, par, db, c0=None):
    d = ar(Oreg(c, db), 4)
    return mf(d, ar(VF + db * 4, 4), vr(Preg(c, par), 4), d if c0 is None else c0)
def sum_mfma(hf, par):
    return f'v_smfmac_f32_16x16x64_bf16 {vr(LMreg(hf), 4)}, {vr(SELA, 4)}, {vr(Preg(2 * hf, par), 8)}, {vr(SIDX)}'
def k_read(slot, kb, s, base=None):
    if base is not None:
        return f'ds_read_b128 {ar(KF + 4 * (kb * 4 + s), 4)}, {vr(base + s)} offset:{slot * STAGE + kb * 8192}'
    return f'ds_read_b128 {ar(KF + 4 * (kb * 4 + s), 4)}, {vr(KA + 4 * (slot >> 2) + s)} offset:{(slot & 3) * STAGE + kb * 8192}'
def v_read(slot, db, u):
    return f'ds_read_b64_tr_b16 {ar(VF + db * 4 + 2 * u, 2)}, {vr((VAB if slot >= 4 else VAA) + db)} offset:{(slot & 3) * STAGE + u * 8192 + 2048}'
def dma_k(i):
    return f'buffer_load_dwordx4 {vr(DK0 + i)}, {sr(SRD_K, 4)}, {sr(sOK)} offen offset:{1024 * i} lds'
def dma_v(i):
    return f'buffer_load_dwordx4 {vr(DV0 + i)}, {sr(SRD_V, 4)}, {sr(sOV)} offen offset:{2048 + 1024 * i} lds'
def stage_dma(slot, k=True, v=True):
    ops = []
    pre = (f's_add_u32 m0, {sr(sW4K)}, {slot * STAGE}',)
    if k:
        ops += [pre + (f's_add_u32 {sr(sOK)}, {sr(sOK)}, 8192', f's_and_b32 {sr(sOK)}, {sr(sOK)}, 0x7ffff', dma_k(0)), dma_k(1)]; pre = ()
    if v:
        ops += [pre + (f's_add_u32 {sr(sOV)}, {sr(sOV)}, 8192', f's_and_b32 {sr(sOV)}, {sr(sOV)}, 0x7ffff', dma_v(0)), dma_v(1)]
    return ops

def b_setup_dma_addr(a):
    a(f'''
    s_lshl_b32 s3, {sr(sW)}, 3
    v_add_u32 v5, s3, v3          ; row = 8w + (l>>4)
    v_and_b32 v7, 15, v5
    v_xor_b32 v7, v7, v2
    v_lshlrev_b32 v7, 4, v7
    v_lshl_add_u32 {vr(DK0)}, v5, 8, v7
    v_xor_b32 {vr(DK1)}, 64, {vr(DK0)}
    v_lshlrev_b32 v7, 1, v3
    v_xor_b32 v7, v7, v2
    v_lshlrev_b32 v7, 4, v7
    v_lshl_add_u32 {vr(DV0)}, v5, 8, v7
    v_xor_b32 {vr(DV1)}, 128, {vr(DV0)}
    s_mul_i32 {sr(sOK)}, {sr(sH)}, {OPT.get('kvrot', 0)}
    s_sub_u32 {sr(sOK)}, {sr(sOK)}, 8192
    s_mov_b32 {sr(sOV)}, {sr(sOK)}
    ''')

def b_prologue_dma():
    ops = stage_dma(8, v=False) + stage_dma(9, v=False)
    for sl in range(4):
        ops += stage_dma(sl)
    return ops

def b_prologue_dma2():
    return stage_dma(4) + stage_dma(5) if OPT.get('bar', 2) == 2 else []

def b_setup_read_addr(a):
    a(f'''
    v_lshrrev_b32 v4, 3, v2
    v_lshlrev_b32 v4, 12, v4      ; (r>>3)*4096
    v_and_b32 v5, 7, v2
    v_lshl_add_u32 v4, v5, 8, v4  ; + (r&7)*256
    v_xor_b32 v5, v2, v3
    v_lshl_add_u32 v4, v5, 4, v4  ; + (r^g)*16
    ''')
    for s in range(4):
        a(f'v_xor_b32 {vr(KA + s)}, {s * 64}, v4')
        a(f'v_add_u32 {vr(KA + 4 + s)}, 65536, {vr(KA + s)}')
        a(f'v_add_u32 {vr(ST + 8 + s)}, 131072, {vr(KA + s)}')
    a(f'''
    v_bfe_u32 v4, v1, 2, 3        ; row&7
    v_lshlrev_b32 v5, 8, v4
    v_lshl_add_u32 v5, v4, 5, v5
    v_lshrrev_b32 v6, 5, v1
    v_lshl_add_u32 v5, v6, 12, v5
    v_and_b32 v6, 3, v1
    v_lshl_add_u32 v5, v6, 3, v5
    ''')
    for db in range(8):
        a(f'v_xor_b32 {vr(VAA + db)}, {db * 32}, v5')
        a(f'v_add_u32 {vr(VAB + db)}, 65536, {vr(VAA + db)}')
    a(f'''
    v_mov_b32 {vr(THR)}, 0x4e800000      ; 2^30
    v_mov_b32 {vr(SIDX)}, {vr(IDX)}
    v_lshrrev_b32 v4, 3, v2
    v_lshrrev_b32 v5, 5, v1
    v_and_b32 v6, 3, v1
    v_lshl_add_u32 v4, v6, 1, v4
    v_cmp_eq_u32 vcc, v4, v5
    v_mov_b32 v4, 0x3f803f80
    s_nop 0
    v_cndmask_b32 v5, 0, v4, vcc
    ''')
    for i in range(4):
        a(f'v_mov_b32 {vr(SELA + i)}, v5')
    a(f'v_lshlrev_b32 {vr(CL16)}, 4, v1')

def xlane(a, op, dst, t2):
    for sw in ('v_permlane32_swap_b32', 'v_permlane16_swap_b32'):
        a(f'v_mov_b32 {vr(t2)}, {vr(dst)}')
        a('s_nop 1')
        a(f'{sw} {vr(dst)}, {vr(t2)}')
        a(f'{op} {vr(dst)}, {vr(dst)}, {vr(t2)}')

def rowmax(a, base, dst, t2):
    a(f'v_max3_f32 {vr(dst)}, {vr(base)}, {vr(base + 1)}, {vr(base + 2)}')
    a(f'v_max3_f32 {vr(dst)}, {vr(dst)}, {vr(base + 3)}, {vr(base + 4)}')
    a(f'v_max3_f32 {vr(dst)}, {vr(dst)}, {vr(base + 5)}, {vr(base + 6)}')
    a(f'v_max_f32 {vr(dst)}, {vr(dst)}, {vr(base + 7)}')
    xlane(a, 'v_max_f32', dst, t2)

def softmax_c(a, sbase, pbase, tb):
    for r in range(4):
        a(f'v_exp_f32 {vr(tb)}, {vr(sbase + 2 * r)}')
        a(f'v_exp_f32 {vr(tb + 1)}, {vr(sbase + 2 * r + 1)}')
        a('s_nop 0')
        a(f'v_cvt_pk_bf16_f32 {vr(pbase + r)}, {vr(tb)}, {vr(tb + 1)}')

def b_prologue(a, opt):
    b_setup_read_addr(a)
    a('s_waitcnt vmcnt(0) lgkmcnt(0)')
    stamp(a, opt, 'e_h')
    a('s_barrier')
    for kb in range(2):
        for s in range(4):
            a(k_read(0, kb, s, base=ST + 8))
    emit_plain(a, b_prologue_dma2())
    a(f'''
    s_lshl_b32 s3, {sr(sQB)}, 4
    s_lshl_b32 s7, {sr(sW)}, 2
    s_add_u32 s3, s3, s7
    s_mul_i32 s3, s3, 57344
    s_lshl_b32 s7, {sr(sH)}, 11
    s_add_u32 s3, s3, s7
    s_add_u32 {sr(sHO)}, s3, {WS_H}
    s_mov_b32 s{SRD_WG}, s{SRD_WS}
    s_mov_b32 s{SRD_WG + 1}, s{SRD_WS + 1}
    s_cmp_lt_u32 {sr(sH)}, 28
    s_cselect_b32 s{SRD_WG + 2}, 0x10000000, 0
    s_mov_b32 s{SRD_WU}, s{SRD_DBG}
    s_mov_b32 s{SRD_WU + 1}, s{SRD_DBG + 1}
    s_mov_b32 s{SRD_WU + 2}, 0
    s_cmp_eq_u32 {sr(sW)}, 0
    s_cselect_b32 {sr(sXO)}, 4, 64
    v_mov_b32 {vr(ONEV)}, 1
    s_waitcnt lgkmcnt(0)
    ''')
    h_epilogue(a, [qk_mfma(0, c, kb, s, c0='0') for c in range(4) for kb in range(2) for s in range(4)])
    stamp(a, opt, 'e_h2')
    for kb in range(2):
        for s in range(4):
            a(k_read(1, kb, s, base=ST + 8))
    for i in range(10):
        a(f'v_mov_b32 {vr(LM + i)}, 0')
    for c in range(4):
        a(f'v_mfma_f32_32x32x16_bf16 {ar(O + 32 * c, 16)}, {vr(ZQ, 4)}, {vr(ZQ, 4)}, 0')
        rowmax(a, Sreg(0, c), ST, ST + 1)
        a(f'v_mfma_f32_32x32x16_bf16 {ar(O + 32 * c + 16, 16)}, {vr(ZQ, 4)}, {vr(ZQ, 4)}, 0')
        for i in range(8):
            a(f'v_sub_f32 {vr(Sreg(0, c) + i)}, {vr(Sreg(0, c) + i)}, {vr(ST)}')
        for i in range(4):
            a(f'v_sub_f32 {vr(NM + 4 * c + i)}, 0, {vr(ST)}')
    for c in range(2):
        softmax_c(a, Sreg(0, c), Preg(c, 0), ST)
    a('s_waitcnt lgkmcnt(0)')

BIG = [25, 29, 32, 38, 46, 50, 54, 58, 62]
def step_gaps(slot, tag, opt, dma=True, final=False, extra=None, vm=0, nobar=False):
    p = slot & 1
    qk = [qk_mfma(1 - p, c, kb, s) for c in range(4) for kb in range(2) for s in range(4)]
    pv = [pv_mfma(c, p, db) for c in range(4) for db in range(8)]
    mfs = qk[:4] + [sum_mfma(0, p)] + qk[4:] + pv[:4] + [sum_mfma(1, p)] + pv[4:]
    G = [Gap(m) for m in mfs]
    for hf, g0 in ((1, 0), (0, HL)):
        if final and hf == 0:
            continue
        for e in range(16):
            c = 2 * hf + (e >> 3)
            src = (Sreg(p, 2) if hf else Sreg(1 - p, 0)) + e
            G[g0 + 2 * e].valu.append(f'v_exp_f32 {vr(TMP + (e & 3))}, {vr(src)}')
            if e & 1:
                G[g0 + 2 * e + 1].valu.append(f'v_cvt_pk_bf16_f32 {vr(Preg(c, 1 - p) + ((e & 7) >> 1))}, {vr(TMP + ((e - 1) & 3))}, {vr(TMP + (e & 3))}')
    for hf, g0 in ((0, 0), (1, HL)):
        late = final and hf == 1
        G[g0 + (13 if late else 9)].valu.append(f'v_cmp_nle_f32 vcc, {vr(LMreg(hf))}, {vr(THR)}')
        G[g0 + (16 if late else 15)].post += [f's_cbranch_vccnz L_slow{hf}_{tag}', f'L_back{hf}_{tag}:']
        if not final:
            G[g0 + 27].valu.append(f'v_mov_b32 {vr(LOLD(hf))}, {vr(LMreg(hf))}')
    vplace = [1, 1, 3, 5, 5, 7, 9, 11, 13, 13, 17, 17, 19, 21, 21, 23]
    kplace = [HL + x for x in (1, 1, 3, 7, 9, 11, 19, 23)]
    for g, x in zip(vplace, [v_read(slot, db, u) for db in range(8) for u in range(2)]):
        G[g].mem.append(x)
    if not final:
        for g, x in zip(kplace, [k_read(slot, kb, s) for kb in range(2) for s in range(4)]):
            G[g].mem.append(x)
    G[HL - 1].pre.append('s_waitcnt lgkmcnt(0)')
    ops = []
    if dma:
        ops = [None] * 4 + stage_dma((slot + 6) & 7)
    if extra:
        ops = extra
    for g, x in zip(BIG if not final else [25, 29, 32, 33, 34, 35, 36, 38, 39, 40], ops):
        if x is not None:
            place(G, [x], g, g)
    if slot & 1 and not nobar:
        G[SL - 1].pre += [f's_waitcnt vmcnt({vm}) lgkmcnt(0)', 's_barrier'] if not final else []
    else:
        G[SL - 1].pre.append('s_waitcnt lgkmcnt(0)')
    if final:
        for g in G:
            if g.m in qk:
                g.m = 's_nop 0'
    return G

def gapops(G):
    return [[x for x in g.ops() if x is not None] for g in G]

def slow_path(a, p, hf, final=False):
    a.label(f'L_slowfn{hf}_{p}_{int(final)}')
    a('s_nop 15')
    a(f'v_mov_b32 {vr(ST + 8)}, {vr(LOLD(hf))}\nv_mov_b32 {vr(ST + 9)}, {vr(LOLD(hf))}\ns_nop 1\nv_permlane16_swap_b32 {vr(ST + 8)}, {vr(ST + 9)}\nv_add_f32 {vr(ST + 8)}, {vr(ST + 8)}, {vr(ST + 9)}')
    for c in (2 * hf, 2 * hf + 1):
        cur = Sreg(p, c); nxt = Sreg(1 - p, c)
        d = ST + 4 + (c & 1); al = ST + 6 + (c & 1)
        rowmax(a, cur, d, ST + 1)
        a(f'v_max_f32 {vr(d)}, 0, {vr(d)}')
        a(f'v_mov_b32 {vr(ST)}, {vr(ST + 8)}')
        a(f'v_mov_b32 {vr(ST + 1)}, {vr(ST + 8)}')
        a('s_nop 1')
        a(f'v_permlane32_swap_b32 {vr(ST)}, {vr(ST + 1)}')
        a(f'v_log_f32 {vr(ST)}, {vr(ST + (c & 1))}')
        a('s_nop 0')
        a(f'v_max_f32 {vr(d)}, {vr(d)}, {vr(ST)}')
        a(f'v_sub_f32 {vr(al)}, 0, {vr(d)}')
        a(f'v_exp_f32 {vr(al)}, {vr(al)}')
        for i in range(8):
            a(f'v_sub_f32 {vr(cur + i)}, {vr(cur + i)}, {vr(d)}')
        if not final:
            for i in range(8):
                a(f'v_sub_f32 {vr(nxt + i)}, {vr(nxt + i)}, {vr(d)}')
        for i in range(4):
            a(f'v_sub_f32 {vr(NM + 4 * c + i)}, {vr(NM + 4 * c + i)}, {vr(d)}')
        for i in range(32):
            a(f'v_accvgpr_read_b32 {vr(ST + 2)}, {ar(Oreg(c, 0) + i)}')
            a(f'v_mul_f32 {vr(ST + 2)}, {vr(ST + 2)}, {vr(al)}')
            a(f'v_accvgpr_write_b32 {ar(Oreg(c, 0) + i)}, {vr(ST + 2)}')
        softmax_c(a, cur, Preg(c, p), ST + 2)
    a(f'v_cmp_gt_u32 vcc, 32, {vr(LANE)}')
    a('s_nop 1')
    a(f'v_cndmask_b32 {vr(ST)}, {vr(ST + 7)}, {vr(ST + 6)}, vcc')
    a(f'v_mul_f32 {vr(LMreg(hf))}, {vr(LOLD(hf))}, {vr(ST)}')
    a('s_nop 1')
    a(sum_mfma(hf, p))
    a('s_nop 7')
    a('s_setpc_b64 s[98:99]')

SLOW = []
def is_vm(x): return x.startswith(('buffer_', 'global_'))
def vm_between(G, g0, g1):
    return sum(1 for g in G[g0:g1] for x in g.mem if is_vm(x))

def trace_ops(G, lane, n=8):
    for sl in range(n):
        G[sl * SL + 0].pre += ['s_memtime s[100:101]'] + lane(sl)
        G[sl * SL + 56].valu += ['v_cmp_eq_u32 vcc, s95, v1']
        G[sl * SL + 60].valu += ['v_mov_b32 v222, s100']
        G[sl * SL + 64].valu += ['v_cndmask_b32 v221, v221, v222, vcc']

def first_pass(a, opt):
    G = []
    for st in range(16):
        G += step_gaps(st & 7, f'f{st}', opt, vm='VM'); SLOW.append((st & 1, f'f{st}', False))
    def at(st, g, x): place(G, [x], st * SL + g, st * SL + g)
    h0 = OPT.get('h0', 8)
    for k in range(8):
        x = f'buffer_store_dwordx4 {ar(HP + 4 * k, 4)}, {vr(CL16)}, {sr(SRD_WG, 4)}, {sr(sHO)} offen offset:{1024 * (k & 1)} sc1'
        if k in (2, 4, 6): x = (f's_add_u32 {sr(sHO)}, {sr(sHO)}, 57344', x)
        if not opt.get('nohst'): at(k if h0 == 0 else 2 * k, 62, x)
    place(G, wp_addr0(), SL + 25, SL + 40, kind='valu')
    dpos = [(2, 38), (3, 38), (4, 38), (4, 29), (5, 38), (6, 38), (6, 29), (7, 38)]
    dpos.sort()
    for (st, g), x in zip(dpos, wp_dma()): at(st, g, x)
    place(G, wp_addr1(), 8 * SL + 25, 9 * SL + 40, kind='valu')
    rd = wp_reads()
    sc, stv = wp_stores()
    G[11 * SL + 2].pre += sc[:2]; G[11 * SL + 4].pre += sc[2:6]; G[11 * SL + 6].pre += sc[6:]
    for k in range(4):
        place(G, rd[4 * k:4 * k + 4], (12 + k) * SL + 25, (12 + k) * SL + 29)
        at(12 + k, 38, stv[2 * k])
        at(12 + k, 65 if k & 1 == 0 else 62, stv[2 * k + 1])
    for j in range(1, 16, 2):
        n = vm_between(G, 0 if j < 4 else (j - 4) * SL + 59, j * SL + SL - 1)
        G[j * SL + SL - 1].pre = [x.replace('VM', str(min(n, 63))) for x in G[j * SL + SL - 1].pre]
    if opt.get('trace'): trace_ops(G, lambda st: [f's_mov_b32 s95, {63 - st}'], 16)
    a.raw('.p2align 3')
    emit_gaps(a, gapops(G))

def phase_b(a, opt):
    b_prologue(a, opt)
    stamp(a, opt, 'B0')
    a(f's_mov_b32 {sr(sCNT)}, 5')
    first_pass(a, opt)
    stamp(a, opt, 'B1')
    a.raw('.p2align 6')
    a.label('L_attn')
    G = []
    for sl in range(8):
        G += step_gaps(sl, f's{sl}', opt, vm=16); SLOW.append((sl & 1, f's{sl}', False))
    G[2 * SL + 23].pre += [f's_cmp_eq_u32 {sr(sCNT)}, {sr(sXO)}', f's_cselect_b32 s{SRD_WU + 2}, 4, 0']
    place(G, [f'buffer_atomic_add {vr(ONEV)}, {vr(CL16)}, {sr(SRD_WU, 4)}, 0 offen sc1'], 2 * SL + 25, 2 * SL + 25)
    if opt.get('trace'): trace_ops(G, lambda sl: [f's_lshl_b32 s95, {sr(sCNT)}, 3', f's_add_u32 s95, s95, {7 - sl}'])
    G[-6].pre.append(f's_sub_u32 {sr(sCNT)}, {sr(sCNT)}, 1')
    G[-4].pre.append(f's_cmp_lg_u32 {sr(sCNT)}, 0')
    G[-1].post.append('s_cbranch_scc1 L_attn')
    emit_gaps(a, gapops(G))
    a.raw('.p2align 3')
    G = []
    pa = [c_load_a(t, nb) for t in range(4) for nb in range(4)]
    pb = [c_load_b(t, j) for t in range(4) for j in range(4)]
    for t in range(1, 4):
        pa[4 * t] = (f's_add_u32 {sr(sAO)}, {sr(sAO)}, 4096', pa[4 * t])
    extra = {4: pa[:8], 5: pa[8:], 6: [None] * 3 + pb[:6], 7: pb[6:]}
    for sl in range(8):
        g = step_gaps(sl, f't{sl}', opt, dma=sl < 2, final=sl == 7, extra=extra.get(sl), vm={1: 16, 3: 0}.get(sl, 0), nobar=sl == 5); SLOW.append((sl & 1, f't{sl}', sl == 7))
        if sl == 2:
            su = c_setup_scalar()
            for k in range(0, len(su), 2):
                g[2 + k].pre += su[k:k + 2]
            g[62].mem.append(f'buffer_load_dword {vr(POLLV)}, off, {sr(SRD_DBG, 4)}, 0 sc1')
        if sl == 4:
            g[17].valu.append(f'v_cmp_ne_u32 vcc, 0x100, {vr(POLLV)}')
            g[23].post += ['s_cbranch_vccnz L_pollall', 'L_pollall_ok:']
        G += g
    emit_gaps(a, gapops(G))
    stamp(a, opt, 'Bend')
    if opt.get('trace'): a('v_mov_b32 v252, v221')

def finalize_pre(a):
    a(f'''
    s_lshl_b32 s3, {sr(sQB)}, 4
    s_lshl_b32 s7, {sr(sW)}, 2
    s_add_u32 s3, s3, s7
    s_mul_i32 s3, s3, {OST()}
    s_lshl_b32 s7, {sr(sH)}, 12
    s_add_u32 {sr(sOK)}, s3, s7
    ''')
    for hf in range(2):
        a(f'v_mov_b32 {vr(ST + hf)}, {vr(LMreg(hf))}')
    a('s_nop 0')
    for hf in range(2):
        a(f'v_permlane16_swap_b32 {vr(LMreg(hf))}, {vr(ST + hf)}')
    for hf in range(2):
        a(f'v_add_f32 {vr(ST + 2 + 2 * hf)}, {vr(LMreg(hf))}, {vr(ST + hf)}')
        a(f'v_add_f32 {vr(ST + 3 + 2 * hf)}, {vr(LMreg(hf))}, {vr(ST + hf)}')
    a('s_nop 0')
    for hf in range(2):
        a(f'v_permlane32_swap_b32 {vr(ST + 2 + 2 * hf)}, {vr(ST + 3 + 2 * hf)}')
    for c in range(4):
        a(f'v_rcp_f32 {vr(RL + 2 * c)}, {vr(ST + 2 + c)}')
        a(f'v_rcp_f32 {vr(RL + 2 * c + 1)}, {vr(ST + 2 + c)}')

NF = 14; NS = 32; DEPTH = 7
def c_setup_scalar():
    ops = []
    for j in range(4):
        ops += [f's_add_u32 s3, {sr(sW)}, {j}', 's_and_b32 s3, s3, 3', f's_lshl_b32 s7, {sr(sRB)}, 2', 's_add_u32 s3, s3, s7', 's_mul_i32 s3, s3, 57344',
                f's_mul_i32 s7, {sr(sW)}, {NF * 1024}', 's_add_u32 s3, s3, s7', f's_add_u32 {sr(sBO + j)}, s3, {WS_H}']
    ops += [f's_mul_i32 s3, {sr(sCB)}, {WFS}', f's_mul_i32 s7, {sr(sW)}, {NF * 4096}', 's_add_u32 s3, s3, s7', f's_add_u32 {sr(sAO)}, s3, {WS_WF}']
    return ops

def c_switch_b():
    ops = []
    for j in range(4):
        ops += [f's_add_u32 s3, {sr(sW)}, {j}', 's_and_b32 s3, s3, 3', f's_lshl_b32 s7, {sr(sRB)}, 2', 's_add_u32 s3, s3, s7',
                f's_mul_i32 s3, s3, {OST()}', f's_lshl_b32 s7, {sr(sW)}, 15', f's_add_u32 {sr(sBO + j)}, s3, s7']
    return ops
def c_switch_a():
    return [f's_mul_i32 s3, {sr(sCB)}, {WFS}', f's_lshl_b32 s7, {sr(sW)}, 17', 's_add_u32 s3, s3, s7', f's_add_u32 {sr(sAO)}, s3, {WS_WF + 56 * 4096 - 4096}']

def c_load_a(t, nb):
    return f'buffer_load_dwordx4 {ar(CAr(t & 7) + nb * 4, 4)}, {vr(CL16)}, {sr(SRD_WS, 4)}, {sr(sAO)} offen offset:{1024 * nb} sc1'
def c_load_b(t, j):
    k = t if t < NF else t - NF
    return f'buffer_load_dwordx4 {vr(CB + (t & 7) * 16 + j * 4, 4)}, {vr(CL16)}, {sr(SRD_WS, 4)}, {sr(sBO + j)} offen offset:{1024 * (k & 3)} sc1'
def c_issue(t, what='ab'):
    k = t if t < NF else t - NF
    pre = []
    if 'a' in what: pre += [f's_add_u32 {sr(sAO)}, {sr(sAO)}, 4096']
    if 'b' in what and (k & 3) == 0 and k:
        pre += [f's_add_u32 {sr(sBO + j)}, {sr(sBO + j)}, 4096' for j in range(4)]
    mem = []
    for i in range(4):
        if 'a' in what: mem.append(c_load_a(t, i))
        if 'b' in what: mem.append(c_load_b(t, i))
    return pre, mem

def poll(a, name, srdreg, soff, nlanes, expect, ret=None):
    a(f's_mov_b64 exec, {(1 << nlanes) - 1}')
    a.label(name + '_l')
    a(f'''
    buffer_load_dword v5, v4, {sr(srdreg, 4)}, {soff} offen sc1
    s_waitcnt vmcnt(0)
    v_cmp_ne_u32 vcc, {expect}, v5
    s_cbranch_vccz {name}_d
    s_sleep 1
    s_branch {name}_l
    {name}_d:
    s_mov_b64 exec, -1
    ''')
    if ret:
        a(f's_nop 3\ns_branch {ret}')

def hooks(a):
    a(f'''
    L_pollall:
    v_mov_b32 v4, 0
    ''')
    poll(a, 'L_pa', SRD_DBG, '0', 1, '0x100', ret='L_pollall_ok')
    a(f'''
    L_po:
    s_sleep 1
    buffer_load_dword v5, v4, {sr(SRD_WG, 4)}, 0 offen sc1
    s_waitcnt vmcnt(0)
    v_cmp_ne_u32 vcc, v5, v6
    s_cbranch_vccnz L_po
    s_branch L_po_ok
    ''')

FR = 160
def red_write(acc, j, nb, base): return f'ds_write_b128 {vr(CRW + j - 1)}, {ar(acc + (nb * 4 + j) * 4, 4)} offset:{base + nb * 1024}'
def red_read(r, nb, base): return f'ds_read_b128 {vr(FR + r * 16 + nb * 4, 4)}, {vr(CRR)} offset:{base + r * 4096 + nb * 1024}'

class VM:
    def __init__(self, init): self.ops = list(init); self.done = 0
    def issue(self, tag): self.ops.append(tag); assert len(self.ops) - self.done <= 63, (tag, len(self.ops) - self.done)
    def wait(self, *tags):
        last = max(i for i, t in enumerate(self.ops) if t in tags)
        n = len(self.ops) - 1 - last
        self.done = max(self.done, last + 1)
        return f's_waitcnt vmcnt({n})'

def phase_c(a, opt):
    T = NF + NS
    finalize_pre(a)
    for j in range(1, 4):
        a(f's_add_u32 s3, {sr(sW)}, {j}\ns_and_b32 s3, s3, 3\ns_mul_i32 s3, s3, 12288\ns_add_u32 s3, s3, {(j - 1) * 4096}\nv_add_u32 {vr(CRW + j - 1)}, s3, {vr(CL16)}')
    a(f'''
    s_mul_i32 s3, {sr(sW)}, 12288
    v_add_u32 {vr(CRR)}, s3, {vr(CL16)}
    s_mov_b32 s{SRD_X}, s96
    s_mov_b32 s{SRD_X + 1}, s97
    s_mov_b32 s{SRD_X + 2}, 2097152
    s_mov_b32 s{SRD_X + 3}, 0x20000
    v_lshlrev_b32 v5, 3, v3
    v_lshl_add_u32 {vr(COUT)}, v2, 10, v5
    s_lshl_b32 s3, {sr(sRB)}, 16
    s_lshl_b32 s7, {sr(sW)}, 14
    s_add_u32 s3, s3, s7
    s_lshl_b32 s7, {sr(sCB)}, 7
    s_add_u32 {sr(sOV)}, s3, s7
    s_add_u32 s{SRD_WU}, s{SRD_WS}, s94
    s_addc_u32 s{SRD_WU + 1}, s{SRD_WS + 1}, 0
    s_mov_b32 s{SRD_WU + 2}, 4
    s_lshl_b32 s3, {sr(sRB)}, 7
    s_lshl_b32 s7, {sr(sW)}, 5
    s_add_u32 s3, s3, s7
    s_add_u32 s3, s3, {WS_FLAG}
    s_add_u32 s{SRD_WG}, s{SRD_WS}, s3
    s_addc_u32 s{SRD_WG + 1}, s{SRD_WS + 1}, 0
    s_mov_b32 s{SRD_WG + 2}, 32
    v_lshlrev_b32 v4, 2, v1
    v_cmp_gt_u32 vcc, 8, v1
    s_nop 1
    v_cndmask_b32 v6, 0, 1, vcc
    ''')
    vm = VM([t for t in range(4) for _ in range(4)] + [t for t in range(4) for _ in range(4)])
    a(vm.wait(0))
    a.raw('.p2align 3')
    sched = {0: [4], 1: [5, 6], 2: [7], 3: [8], 4: [9, 10], 5: [11, 12]}
    flag_t = OPT.get('flag_t', 4)
    PT = OPT.get('pt', 10)
    GV = 224
    for t in range(T):
        acc = ACF if t < NF else ACS_
        first = t in (0, NF)
        G = []
        for nb in range(4):
            for j in range(4):
                d = ar(acc + (nb * 4 + j) * 4, 4)
                G.append(Gap(mf(d, ar(CAr(t & 7) + nb * 4, 4), vr(CB + (t & 7) * 16 + j * 4, 4), '0' if first else d)))
        tn = t + DEPTH
        if tn == NF:
            for x in c_switch_a(): a(x)
        if t == PT - 1:
            G[8].mem.append(f'buffer_load_dword v5, v4, {sr(SRD_WG, 4)}, 0 offen sc1')
        if t == PT:
            stamp(a, opt, 'poll0')
            for x in c_switch_b(): a(x)
            a(vm.wait('fl'))
            a('v_cmp_ne_u32 vcc, v5, v6\ns_cbranch_vccnz L_po\nL_po_ok:')
            stamp(a, opt, 'poll1')
            for tt in range(NF, PT + DEPTH):
                p, m = c_issue(tt, 'b')
                for x in p + m: a(x)
                for x in m: vm.issue(tt)
            a.raw('.p2align 3')
        if t == NF: stamp(a, opt, 'fend')
        if t < 4:
            c = t
            for i in range(32):
                G[i // 4].valu.append(f'v_accvgpr_read_b32 {vr(160 + i)}, {ar(Oreg(c, 0) + i)}')
            for i in range(0, 32, 2):
                G[8].valu.append(f'v_pk_mul_f32 {vr(160 + i, 2)}, {vr(160 + i, 2)}, {vr(RL + 2 * c, 2)}')
            G[8].post.append('s_nop 1')
            ld = []
            for tt in sched[t]:
                p, m = c_issue(tt)
                ld += [(tt, p if k == 0 else [], x) for k, x in enumerate(m)]
            per = (len(ld) + 6) // 7
            for g in range(9, 16):
                if 10 <= g <= 13:
                    G[g].mem.append(f'buffer_store_dwordx4 {vr(192 + 4 * (g - 10), 4)}, {vr(CL16)}, {sr(SRD_WS, 4)}, {sr(sOK)} offen offset:{1024 * (g - 10)} sc1')
                    vm.issue('o')
                for tt, p, x in ld[(g - 9) * per:(g - 8) * per]:
                    G[g].mem += p + [x]; vm.issue(tt)
                if g <= 12:
                    for i in range(4):
                        G[g].valu.append(f'v_cvt_pk_bf16_f32 {vr(192 + 4 * (g - 9) + i)}, {vr(160 + 8 * (g - 9) + 2 * i)}, {vr(161 + 8 * (g - 9) + 2 * i)}')
            G[15].post.append(f's_add_u32 {sr(sOK)}, {sr(sOK)}, {OST()}')
        elif tn < T:
            for k, tt in enumerate(sched.get(t, [tn])):
                p, m = c_issue(tt, 'a' if NF <= tt and t < PT else 'ab')
                G[8 * k].pre += p
                place(G, m, 8 * k, 8 * k + 7)
                for x in m: vm.issue(tt)
            if t == PT - 1: vm.issue('fl')
        if t == T - DEPTH:
            place(G, [f'buffer_load_dwordx2 {vr(CXR + 2 * nb, 2)}, {vr(COUT)}, {sr(SRD_X, 4)}, {sr(sOV)} offen offset:{32 * nb}' for nb in range(4)], 0, 8)
            for nb in range(4): vm.issue('x')
        if t == flag_t:
            G[15].post += [vm.wait('o'), f'buffer_store_dword {vr(ONEV)}, {vr(CL16)}, {sr(SRD_WU, 4)}, 0 offen sc1'] + stamp_op('Oflag')
            vm.issue('flag')
        if t + 1 < T:
            G[15].post.append(vm.wait(t + 1))
        if NF + 1 <= t <= NF + 3:
            place(G, [red_write(ACF, t - NF, nb, 0) for nb in range(4)], 9, 15, cap=1)
        if t == NF + 4:
            place(G, [f'v_accvgpr_read_b32 {vr(GV + nb * 4 + i)}, {ar(ACF + nb * 16 + i)}' for nb in range(4) for i in range(4)], 8, 15, kind='valu')
            G[15].post += ['s_waitcnt lgkmcnt(0)', 's_barrier']
        if t == NF + 5:
            place(G, [red_read(r, nb, 0) for r in range(3) for nb in range(4)], 8, 15)
        if t == NF + 6:
            G[7].post.append('s_waitcnt lgkmcnt(0)')
        if NF + 6 <= t <= NF + 8:
            place(G, [f'v_add_f32 {vr(GV + k)}, {vr(GV + k)}, {vr(FR + (t - NF - 6) * 16 + k)}' for k in range(16)], 8, 15, kind='valu')
        if t == NF + 9:
            place(G, [f'v_mul_f32 {vr(FR + k)}, {f2u(-math.log2(math.e))}, {vr(GV + k)}' for k in range(16)], 8, 15, kind='valu')
        if t in (NF + 10, NF + 11):
            for k in range(8): G[8 + k].valu.append(f'v_exp_f32 {vr(FR + (t - NF - 10) * 8 + k)}, {vr(FR + (t - NF - 10) * 8 + k)}')
        if t == NF + 12:
            place(G, [f'v_add_f32 {vr(FR + k)}, 1.0, {vr(FR + k)}' for k in range(16)], 8, 15, kind='valu')
        if t in (NF + 13, NF + 14):
            for k in range(8): G[8 + k].valu.append(f'v_rcp_f32 {vr(FR + (t - NF - 13) * 8 + k)}, {vr(FR + (t - NF - 13) * 8 + k)}')
        if t == NF + 15:
            place(G, [f'v_mul_f32 {vr(GV + k)}, {vr(GV + k)}, {vr(FR + k)}' for k in range(16)], 8, 15, kind='valu')
        emit_gaps(a, gapops(G), align=False)
    stamp(a, opt, 'send')
    a('s_nop 3')
    for k in range(8):
        a(f'v_lshlrev_b32 {vr(32 + 2 * k)}, 16, {vr(CXR + k)}') if False else None
    a('s_nop 3')
    for j in range(1, 4):
        for nb in range(4):
            a(red_write(ACS_, j, nb, 49152))
    SV = 208
    for nb in range(4):
        for i in range(4):
            a(f'v_accvgpr_read_b32 {vr(SV + nb * 4 + i)}, {ar(ACS_ + nb * 16 + i)}')
    a('s_waitcnt vmcnt(0)')
    for k in range(8):
        a(f'v_lshlrev_b32 {vr(32 + 2 * k)}, 16, {vr(CXR + k)}')
        a(f'v_and_b32 {vr(33 + 2 * k)}, 0xffff0000, {vr(CXR + k)}')
    a('s_waitcnt lgkmcnt(0)\ns_barrier')
    for r in range(3):
        for nb in range(4):
            a(red_read(r, nb, 49152))
    for r in range(3):
        a(f's_waitcnt lgkmcnt({4 * (2 - r)})')
        for k in range(0, 16, 2):
            a(f'v_pk_add_f32 {vr(SV + k, 2)}, {vr(SV + k, 2)}, {vr(FR + r * 16 + k, 2)}')
    for k in range(0, 16, 2):
        a(f'v_pk_fma_f32 {vr(SV + k, 2)}, {vr(SV + k, 2)}, {vr(GV + k, 2)}, {vr(32 + k, 2)}')
    for k in range(8):
        a(f'v_cvt_pk_bf16_f32 {vr(CXR + k)}, {vr(SV + 2 * k)}, {vr(SV + 1 + 2 * k)}')
    for nb in range(4):
        a(f'buffer_store_dwordx2 {vr(CXR + 2 * nb, 2)}, {vr(COUT)}, {sr(SRD_OUT, 4)}, {sr(sOV)} offen offset:{32 * nb}')

OPT = {}
def add_pads(a, period, nchain):
    out = []; addr = 0; nxt = None; pads = []
    lines = a.lines
    for k, l in enumerate(lines):
        t = l.strip()
        if t.startswith('.p2align'):
            al = 1 << int(t.split()[1]); addr = (addr + al - 1) // al * al
        if t == 'L_warmdone:': addr = 0; nxt = period - OPT.get('padoff', 0)
        if t == 'L_end:': nxt = None
        if nxt is not None and addr >= nxt and t.startswith(('v_', 'ds_read', 's_add', 's_mov', 's_lshl', 'buffer_load')) and not lines[k - 1].strip().startswith(('.')):
            out.append(f'L_pad{len(pads)}:'); out.append(f'    PAD{len(pads)}'); pads.append(addr)
            addr += 4; nxt += period
            out.append('    s_nop 0'); addr += 4
        out.append(l); addr += isize(l)
    n = len(pads)
    for k, l in enumerate(out):
        if l.startswith('    PAD'):
            i = int(l[7:])
            out[k] = f'    s_cbranch_execz ' + (f'L_pad{i + nchain}' if i + nchain < n else 'L_warmret')
    a.lines = out
    return n

def gen(opt):
    OPT.clear(); OPT.update(opt)
    SLOW.clear(); STAMPS.clear()
    a = A()
    setup(a, opt)
    phase_a(a, opt)
    phase_b(a, opt)
    phase_c(a, opt)
    if opt.get('stamp'):
        a('s_waitcnt vmcnt(0)')
        stamp(a, opt, 'end')
        a(f'''
        s_waitcnt lgkmcnt(0)
        s_lshl_b32 s3, s2, 2
        s_add_u32 s3, s3, {sr(sW)}
        s_lshl_b32 s3, s3, 6
        s_add_u32 s3, s3, {WS_STAMP}
        v_mov_b32 v1, 0
        v_mov_b32 v4, v0
        ''')
        if opt.get('trace'):
            a(f's_lshl_b32 s7, s2, 2\ns_add_u32 s7, s7, {sr(sW)}\ns_lshl_b32 s7, s7, 8\ns_add_u32 s7, s7, {WS_STAMP + (1 << 20)}\nv_lshrrev_b32 v20, 2, v7')
            a(f'buffer_store_dword v252, v20, {sr(SRD_WS, 4)}, s7 offen')
        if opt.get('dbgstamp'):
            a('v_not_b32 v20, v0\ns_mov_b64 exec, 1')
            a(f'buffer_atomic_umax v20, off, {sr(SRD_DBG, 4)}, 0 offset:4 sc1')
            for i in range(len(STAMPS)):
                a(f'v_mov_b32 v{21 + i}, s{sST + 2 * i}')
                a(f'buffer_atomic_umax v{21 + i}, off, {sr(SRD_DBG, 4)}, 0 offset:{8 + 4 * i} sc1')
            a('s_mov_b64 exec, -1')
        for i in range(12): a(f'v_mov_b32 v{5 + i}, s{sST + 2 * i}')
        for i in range(4):
            a(f'buffer_store_dwordx4 v[{4 + 4 * i}:{7 + 4 * i}], v1, {sr(SRD_WS, 4)}, s3 offen offset:{16 * i}')
    a.label('L_end')
    a('s_endpgm')
    hooks(a)
    for p, tag, final in SLOW:
        for hf in range(2):
            a.label(f'L_slow{hf}_{tag}')
            a(f's_call_b64 s[98:99], L_slowfn{hf}_{p}_{int(final)}')
            a(f's_branch L_back{hf}_{tag}')
    for p, final in sorted({(p, f) for p, _, f in SLOW}):
        for hf in range(2):
            slow_path(a, p, hf, final)
    if OPT.get('pad', 4096):
        npad = add_pads(a, OPT.get('pad', 4096), OPT.get('nchain', 4))
        print('pads', npad, file=sys.stderr)
    a.label('L_codeend')
    a('s_endpgm')
    return kernel_file(f'; ost {OST()}\n; stamps entry ' + ' '.join(STAMPS) + '\n' + a.text(), 'grid=(256,1,1) block=(256,1,1) lds=163840')

if __name__ == '__main__':
    opt = json.loads(sys.argv[2]) if len(sys.argv) > 2 else {}
    open(sys.argv[1], 'w').write(gen(opt))
```

```python
import sys, json, math, struct
sys.path.insert(0, 'gen')
from asmlib import *

def f2u(x): return '0x%08x' % struct.unpack('<I', struct.pack('<f', x))[0]

WS_O = 0; WS_H = 17 << 20; WS_FLAG = 24 << 20; WS_WF = 25 << 20; WS_STAMP = 32 << 20
WFS = 184 * 4096
sH = 4; sQB = 5; sW = 6
SRD_K = 8; SRD_V = 12; SRD_WS = 16; SRD_X = 20; SRD_WQ = 24; SRD_WG = 28; SRD_WU = 32; SRD_WO = 36; SRD_WD = 40; SRD_OUT = 44; SRD_DBG = 48
sOK = 52; sOV = 53; sM = 54; sCNT = 55; sT0 = 56; sT1 = 57; sT2 = 58; sT3 = 59
sXO = 60; sQO = 61; sGO = 62; sWB = 63
sW4K = 88; sRB = 89; sCB = 90; sBO = 56; sHO = 91; sWQB = 92; sWGB = 93
sDL = 95
sST = 64
KA = 8; VAA = 16; DK0 = 28; DK1 = 29; DV0 = 30; DV1 = 31; VAB = 244
Q = 32; S = 96; NM = 160; PA = 176; PB = 192; TMP = 200; ST = 204; THR = 220; LANE = 1; LM = 224; RL = 240
O = 0; KF = 128; VF = 160; SIDX = 216; WPR = 224
STAGE = 16384
AQ = 8; AG = 12; AC = 16; AX = 20; DQ = 22; DG = 23; DX = 24
XF = 32; ACQ = 96; SX = 224; CSD = 228; STT = 232; SXX = 240; IDX = 27
AGU = 0; AR = 128; AK = 160
XBUF = 0; WBUF = 65536; CSBUF = 65536
CB = 32
def CAr(sl): return (192 + sl * 16) if sl < 4 else (sl - 4) * 16
ACF = 128; ACS_ = 64
CL16 = 7
CRW = 8; CRR = 11; COUT = 12; CXR = 16
sAO = 61; POLLV = 6; ONEV = 223

def OST(): return OPT.get('ost', 135168)
def mf(d, a_, b_, c):
    return f'v_mfma_f32_16x16x32_bf16 {d}, {a_}, {b_}, {c}'

class Gap:
    def __init__(self, m):
        self.m = m; self.pre = []; self.mem = []; self.valu = []; self.post = []
    def ops(self):
        return [self.m] + self.pre + self.mem + self.valu + self.post
    def units(self):
        u = 0
        for x in self.mem: u += 2 if x.startswith('buffer') else 0 if x.startswith('s_') else 1
        for x in self.valu: u += 2 if x.startswith(('v_exp', 'v_rcp', 'v_log', 'v_rsq', 'v_permlane')) else 1
        return u

def place(G, ops, lo, hi=None, kind='mem', cap=2):
    g = lo
    for x in ops:
        pre = []
        if isinstance(x, tuple):
            pre, x = list(x[:-1]), x[-1]
        need = 2 if x.startswith(('buffer', 'v_exp', 'v_rcp', 'v_rsq', 'v_log', 'v_permlane')) else 1
        need = min(need, cap)
        while G[g].units() + need > cap:
            g += 1
        if hi is not None:
            assert g <= hi, (x, g, hi)
        if pre:
            if g > 0 and not any(y.startswith('buffer') for y in G[g - 1].mem):
                G[g - 1].pre += pre
            else:
                if ' m0,' in pre[-1]:
                    pre.append('s_nop 0')
                G[g].pre += pre
        getattr(G[g], kind).append(x)
    return g

STAMPS = []
def place_some(G, ops, lo, hi):
    g = lo
    for k, x in enumerate(ops):
        need = 2 if x.startswith(('v_exp', 'v_rcp', 'v_rsq', 'v_log', 'v_permlane')) else 1
        while g <= hi and G[g].units() + need > 2: g += 1
        if g > hi: return list(ops[k:])
        G[g].valu.append(x)
    return []

def stamp_op(name):
    if not OPT.get('stamp') or (OPT.get('only') and name not in OPT['only']):
        return []
    k = len(STAMPS); STAMPS.append(name)
    assert k < 12
    return [f'{"s_memtime" if OPT.get("cyc") else "s_memrealtime"} s[{sST + 2 * k}:{sST + 2 * k + 1}]']
def stamp(a, opt, name):
    for x in stamp_op(name): a(x)

def srd(a, base, lo, hi, nrec, add=None, sub=None):
    if add is not None:
        a(f's_add_u32 s{base}, s{lo}, {add}')
        a(f's_addc_u32 s{base + 1}, s{hi}, 0')
    else:
        a(f's_mov_b32 s{base}, s{lo}')
        a(f's_mov_b32 s{base + 1}, s{hi}')
    if sub is not None:
        a(f's_sub_u32 s{base}, s{base}, {sub}')
        a(f's_subb_u32 s{base + 1}, s{base + 1}, 0')
    a(f's_mov_b32 s{base + 2}, {nrec}')
    a(f's_mov_b32 s{base + 3}, 0x20000')

def setup(a, opt):
    a(f'''
    s_cmp_ge_u32 s2, 256
    s_cbranch_scc1 L_end
    {("s_memtime" if opt.get("cyc") else "s_memrealtime") + " s[98:99]" if opt.get("stamp") else ""}
    s_load_dwordx16 s[64:79], s[0:1], 0
    s_load_dwordx8 s[80:87], s[0:1], 64
    v_lshrrev_b32 v4, 6, v0
    v_and_b32 v1, 63, v0
    v_readfirstlane_b32 {sr(sW)}, v4
    s_and_b32 s3, s2, 7
    s_bfe_u32 s7, s2, 0x20003
    s_lshl_b32 s7, s7, 3
    s_add_u32 {sr(sH)}, s3, s7
    s_lshr_b32 {sr(sQB)}, s2, 5
    s_lshl_b32 {sr(sW4K)}, {sr(sW)}, 12
    s_lshr_b32 s7, s2, 6
    s_lshl_b32 s3, s3, 2
    s_add_u32 {sr(sRB)}, s3, s7
    s_bfe_u32 {sr(sCB)}, s2, 0x30003
    v_and_b32 v2, 15, v1                ; r = l&15
    v_lshrrev_b32 v3, 4, v1             ; g = l>>4
    ''')
    if OPT.get('ipf', 1):
        a(f'''
        s_getpc_b64 s[100:101]
        L_pc:
        s_lshr_b32 s3, s2, 3
        s_lshl_b32 s3, s3, 2
        s_add_u32 s3, s3, {sr(sW)}
        s_and_b32 s3, s3, 15
        s_lshl_b32 s3, s3, 13
        s_min_u32 s3, s3, L_codeend-L_pc-8192
        v_lshlrev_b32 v4, 7, v1
        v_add_u32 v4, s3, v4
        global_load_dword v26, v4, s[100:101]
        ''')

def setup_x(a, opt):
    a(f's_lshl_b32 s3, {sr(sQB)}, 18\ns_lshl_b32 s7, {sr(sW)}, 16\ns_add_u32 s3, s3, s7')
    a('s_waitcnt lgkmcnt(0)')
    if opt.get('stamp'): a('v_mov_b32 v0, s98')
    if opt.get('early'): a('s_memrealtime vcc')
    srd(a, SRD_X, 64, 65, 65536, add='s3')

def setup_w(a):
    a(f's_lshl_b32 s3, {sr(sH)}, 8')
    srd(a, SRD_WQ, 70, 71, 511 * 8192 + 256, add='s3')
    a(f's_lshl_b32 s3, {sr(sH)}, 7\ns_cmp_lt_u32 {sr(sH)}, 28\ns_cselect_b32 s3, s3, 0\ns_cselect_b32 s7, {511 * 3584 + 128}, 0')
    srd(a, SRD_WG, 76, 77, 's7', add='s3')
    srd(a, SRD_WU, 78, 79, 's7', add='s3')

def setup_wp(a):
    a('s_cmp_lt_u32 s2, 128\ns_cselect_b32 s72, s72, s80\ns_cselect_b32 s73, s73, s81\ns_and_b32 s3, s2, 127\ns_lshl_b32 s3, s3, 15')
    a('s_cmp_lt_u32 s2, 184\ns_cselect_b32 s3, s3, 0')
    a('s_cselect_b32 s7, 32768, 0\ns_cselect_b32 s74, 0x10000000, 0')
    srd(a, SRD_WO, 72, 73, 's7', add='s3')
    srd(a, SRD_WD, 86, 87, 's74')

def setup2(a, opt):
    a(f's_lshl_b32 s3, {sr(sH)}, 19')
    srd(a, SRD_K, 66, 67, 524288, add='s3')
    srd(a, SRD_V, 68, 69, 524288 + 2048, add='s3', sub=2048)
    srd(a, SRD_WS, 86, 87, 0x10000000)
    srd(a, SRD_OUT, 82, 83, 2097152)
    srd(a, SRD_DBG, 84, 85, 256)
    a('s_mov_b32 s96, s64\ns_mov_b32 s97, s65')

def a_setup_dma_addr(a):
    a(f'''
    s_lshl_b32 s3, {sr(sW)}, 3
    v_add_u32 v4, s3, v3                 ; row = 8w + (l>>4)
    v_lshlrev_b32 v5, 2, v3
    v_xor_b32 v5, v5, v2
    v_lshlrev_b32 v5, 4, v5
    v_lshl_add_u32 {vr(DQ)}, v4, 13, v5
    v_lshrrev_b32 v4, 3, v1              ; rho = l>>3
    v_and_b32 v5, 3, v4
    v_lshrrev_b32 v6, 5, v1
    v_lshl_add_u32 v5, v6, 3, v5
    s_lshr_b32 s3, {sr(sW)}, 1
    s_lshl_b32 s3, s3, 4
    s_and_b32 s7, {sr(sW)}, 1
    s_lshl_b32 s7, s7, 2
    s_add_u32 s3, s3, s7
    v_add_u32 v5, s3, v5                 ; W row
    v_mul_u32_u24 v5, 3584, v5
    v_lshlrev_b32 v6, 1, v3
    v_and_b32 v7, 7, v1
    v_xor_b32 v6, v6, v7
    v_lshl_add_u32 {vr(DG)}, v6, 4, v5
    v_xor_b32 v6, v3, v7
    v_lshlrev_b32 v6, 4, v6
    v_lshl_add_u32 {vr(DX)}, v4, 10, v6
    v_xor_b32 {vr(DX + 1)}, 64, {vr(DX)}
    ''')

def a_dma_x(j_par):
    ops = []
    for i in range(8):
        pre = []
        if i % 4 == 0:
            pre.append(f's_add_u32 m0, {sr(sT3)}, {XBUF + j_par * 32768 + (i // 4) * 4096}')
        pre.append(f's_add_u32 {sr(sT0 + (i & 1))}, {sr(sXO)}, {i * 8192 - 1024 * (i & 3)}')
        ops.append(tuple(pre) + (f'buffer_load_dwordx4 {vr(DX + (i & 1))}, {sr(SRD_X, 4)}, {sr(sT0 + (i & 1))} offen offset:{1024 * (i & 3)} lds',))
    return ops, [f's_add_u32 {sr(sXO)}, {sr(sXO)}, 128', f's_and_b32 {sr(sXO)}, {sr(sXO)}, 1023']

def a_dma_w():
    ops = []
    for ks in range(2):
        ops.append((f's_add_u32 m0, {sr(sWQB)}, {ks * 16384}', f's_add_u32 {sr(sT0)}, {sr(sQO)}, {ks * 32 * 8192}',
                    f'buffer_load_dwordx4 {vr(DQ)}, {sr(SRD_WQ, 4)}, {sr(sT0)} offen lds'))
        ops.append((f's_add_u32 {sr(sT1)}, {sr(sQO)}, {ks * 32 * 8192 + 4 * 8192 - 1024}',
                    f'buffer_load_dwordx4 {vr(DQ)}, {sr(SRD_WQ, 4)}, {sr(sT1)} offen offset:1024 lds'))
        ops.append((f's_add_u32 m0, {sr(sWGB)}, {ks * 16384}', f's_add_u32 {sr(sT0)}, {sr(sGO)}, {ks * 32 * 3584}',
                    f'buffer_load_dwordx4 {vr(DG)}, {sr(SRD_WG, 4)}, {sr(sT0)} offen lds'))
        ops.append((f's_add_u32 m0, m0, 4096',
                    f'buffer_load_dwordx4 {vr(DG)}, {sr(SRD_WU, 4)}, {sr(sT0)} offen lds'))
    adv = [f's_add_u32 {sr(sQO)}, {sr(sQO)}, {64 * 8192}', f's_and_b32 {sr(sQO)}, {sr(sQO)}, 0x3fffff', f's_lshr_b32 {sr(sGO)}, {sr(sQO)}, 13', f's_mul_i32 {sr(sGO)}, {sr(sGO)}, 3584',
           f's_add_u32 {sr(sWB)}, {sr(sWB)}, 1', f's_cmp_eq_u32 {sr(sWB)}, 3', f's_cselect_b32 {sr(sT2)}, -2, 1', f's_cselect_b32 {sr(sWB)}, 0, {sr(sWB)}',
           f's_lshl_b32 {sr(sT2)}, {sr(sT2)}, 15', f's_add_u32 {sr(sWQB)}, {sr(sWQB)}, {sr(sT2)}', f's_add_u32 {sr(sWGB)}, {sr(sWGB)}, {sr(sT2)}']
    return ops, adv

def emit_plain(a, ops):
    for x in ops:
        if isinstance(x, tuple):
            for y in x[:-1]: a(y)
            if ' m0,' in x[-2]: a('s_nop 0')
            a(x[-1])
        else:
            a(x)

def a_setup_read_addr(a):
    a(f'''
    v_bfe_u32 v4, v1, 2, 2               ; r'
    v_and_b32 v5, 3, v1                  ; c'
    v_lshl_add_u32 v6, v3, 3, v4         ; 8g + r'
    v_lshlrev_b32 v6, 8, v6
    v_lshl_add_u32 v6, v4, 6, v6         ; + (r'<<2)*16
    v_lshl_add_u32 v6, v5, 4, v6         ; + c'*16
    v_add_u32 v6, {WBUF}, v6
    ''')
    for sp in range(4):
        a(f'v_xor_b32 {vr(AQ + sp)}, {sp * 64}, v6')
    a(f'''
    v_bfe_u32 v6, v1, 2, 3               ; rho = 4(g&1) + r'
    v_lshrrev_b32 v7, 1, v6              ; key2
    v_lshlrev_b32 v6, 7, v6
    v_lshl_add_u32 v6, v7, 5, v6
    v_lshl_add_u32 v6, v5, 3, v6
    v_lshrrev_b32 v7, 5, v1
    v_lshl_add_u32 v6, v7, 11, v6
    v_add_u32 v6, {WBUF + 8192}, v6
    ''')
    for nb in range(4):
        a(f'v_xor_b32 {vr(AG + nb)}, {nb * 32}, v6')
    a(f's_cmp_eq_u32 {sr(sW)}, 0\ns_cselect_b64 s[98:99], -1, 0\ns_cmp_lt_u32 {sr(sW)}, 2\ns_cselect_b64 s[100:101], -1, 0')
    a(f's_and_b32 s3, {sr(sW)}, 1\ns_lshl_b32 s3, s3, 12')
    for k in range(4):
        a(f'v_cndmask_b32 v4, {vr(AQ + 2 + (k >> 1))}, {vr(AQ + (k >> 1))}, s[98:99]')
        if k & 1:
            a('v_add_u32 v4, 8, v4')
        a(f'v_add_u32 v5, s3, {vr(AG + k)}')
        a(f'v_cndmask_b32 {vr(AC + k)}, v5, v4, s[100:101]')
    a(f'''
    v_lshrrev_b32 v4, 1, v2
    v_xor_b32 v4, v4, v3
    v_lshlrev_b32 v4, 4, v4
    v_lshl_add_u32 v4, v2, 7, v4
    v_add_u32 {vr(AX)}, {sr(sT3)}, v4
    v_xor_b32 {vr(AX + 1)}, 64, {vr(AX)}
    v_mov_b32 v4, 0x3f803f80
    v_and_b32 v5, 3, v1
    v_mov_b32 v6, 0xeeee
    v_and_b32 v7, 4, v1
    v_cmp_eq_u32 vcc, 0, v7
    v_mov_b32 v7, 0x4444
    v_cmp_eq_u32 s[98:99], 0, v5
    v_cndmask_b32 {vr(IDX)}, v6, v7, vcc
    s_nop 0
    ''')
    for k in range(4):
        a(f'v_cndmask_b32 v6, 0, v4, s[98:99]')
        if k < 3: a(f'v_cmp_eq_u32 s[98:99], {k + 1}, v5')
        for i in range(4):
            a(f'v_accvgpr_write_b32 {ar(AK + 4 * k + i)}, v6')

def Xreg(par, c, ks): return XF + par * 32 + c * 8 + ks * 4
def accA(nb, c):
    return vr(ACQ + (nb * 4 + c) * 4, 4) if nb < 8 else ar(AGU + ((nb - 8) * 4 + c) * 4, 4)
ORDER = [16, 17, 18, 19] + list(range(16))
def a_reads(pos):
    grp = ORDER[pos]
    out = []
    for ks in range(2):
        for u in range(2):
            off = ks * 16384 + u * 1024
            if grp < 8:
                ad = AQ + (grp >> 1); off += 8 * (grp & 1)
            elif grp < 16:
                ad = AG + (grp & 3); off += 4096 * ((grp - 8) >> 2)
            else:
                ad = AC + grp - 16
            out.append(f'ds_read_b64_tr_b16 {ar(AR + (pos & 3) * 8 + ks * 4 + 2 * u, 2)}, {vr(ad)} offset:{off}')
    return out
def x_reads(par):
    return [f'ds_read_b128 {vr(Xreg(par, c, ks), 4)}, {vr(AX + ks)} offset:{XBUF + par * 32768 + c * 2048}' for c in range(4) for ks in range(2)]

def a_superstep(par, first, tail, kv_ops=None, name=None, pre_ops=None, pre_adv=None):
    G = []; start = []
    for pos in range(20):
        grp = ORDER[pos]
        start.append(len(G))
        sl = AR + (pos & 3) * 8
        if grp < 16:
            for c in range(4):
                for ks in range(2):
                    d = accA(grp, c)
                    G.append(Gap(mf(d, ar(sl + 4 * ks, 4), vr(Xreg(par, c, ks), 4), '0' if first and ks == 0 else d)))
        else:
            k = grp - 16
            G.append(Gap(f'v_smfmac_f32_16x16x64_bf16 {vr(CSD, 4)}, {ar(AK + 4 * k, 4)}, {ar(sl, 8)}, {vr(IDX)}'))
            G.append(Gap(f'v_smfmac_f32_16x16x64_bf16 {vr(SX, 4)}, {ar(AK + 4 * k, 4)}, {vr(Xreg(par, k, 0), 8)}, {vr(IDX)}'))
            for ks in range(2):
                d = vr(SXX + 4 * k, 4)
                G.append(Gap(mf(d, vr(Xreg(par, k, ks), 4), vr(Xreg(par, k, ks), 4), '0' if first and ks == 0 else d)))
    start.append(len(G))
    def at(g, x, kind='mem'):
        place(G, [x], g, g, kind=kind)
    rp = OPT.get('a_rp', [0, 1, 2, 3])
    for grp in range(18):
        for k, x in zip(rp if grp >= 4 else [0, 0, 1, 2], a_reads(grp + 2)):
            at(start[grp] + k, x)
    dm = []
    if tail == 0:
        wops, wadv = a_dma_w(); xops, xadv = a_dma_x(par)
        if OPT.get('a_now'): wops = []
        if OPT.get('a_nox'): xops = []
        dm = wops + xops
        if pre_ops:
            dm = pre_ops + dm
    if kv_ops:
        dm = kv_ops
    free = [start[p] + (5 if p >= 4 else 3) for p in range(18)]
    if len(dm) > len(free):
        free = [g for p in range(18) for g in ((start[p] + 4, start[p] + 6) if p >= 4 else (start[p] + 3,))]
    pos = free[:len(dm)]
    for g, x in zip(pos, dm):
        if x is not None: at(g, x)
    if tail == 0:
        npre = len(pre_ops) if pre_ops else 0
        if pre_ops:
            for g, adv in pre_adv:
                G[pos[g] + 1].pre += adv
        if wops:
            g = pos[npre + len(wops) - 1]
            G[g + 1].pre += wadv[:4]; G[g + 2].pre += wadv[4:8]; G[g + 3].pre += wadv[8:]
        if xops:
            G[pos[-1] + 1].pre += xadv
    xg = OPT.get('a_xg', 14)
    if tail < 2:
        wg = start[xg] + 3
        npre = len(pre_ops) if pre_ops else 0
        younger = sum(1 for k, g in enumerate(pos) if g < wg and k >= npre and dm[k] is not None)
        assert all(g < wg for g in pos[:npre])
        G[wg].pre.append(f's_waitcnt vmcnt({younger})')
        xr = x_reads(1 - par)
        for k, x in enumerate(xr):
            at(start[xg + k // 4] + 3 + (k % 4) + (1 if G[start[xg + k // 4] + 3 + (k % 4)].units() >= 2 else 0), x) if False else None
        g = wg
        xpos = []
        for x in xr:
            while G[g].units() >= 2 or any(y.startswith('ds_read_b128') for y in G[g].mem): g += 1
            G[g].mem.append(x); xpos.append(g)
        assert xpos[-1] < start[18] - 2, xpos
    if tail == 2:
        w, st, rd = a_stats_ops()
        g = place(G, w[0], start[4] + 5, start[9] + 4, kind='valu')
        place(G, w[1], start[9] + 5, start[10] + 7, cap=1)
        G[start[12] - 1].post += ['s_waitcnt lgkmcnt(4)', 's_barrier']
        place(G, rd, start[14] + 4, start[17] + 7, cap=1)
        rest = place_some(G, st, g, start[20] - 1)
        G[-1].post += ['s_nop 1'] + rest
    seq = [(g, x) for g in range(len(G)) for x in G[g].mem if x.startswith('ds_')]
    for grp in range(2, 20):
        if grp == 18:
            continue
        last = max(k for k, (g, x) in enumerate(seq) if x in a_reads(grp) and start[grp - 2] <= g < start[grp - 1])
        n = sum(1 for k, (g, x) in enumerate(seq) if k > last and g < start[grp] - 1)
        G[start[grp] - 1].pre.append(f's_waitcnt lgkmcnt({min(n, 14)})')
    G[start[1] - 1].pre.append('s_waitcnt lgkmcnt(4)')
    if tail < 2:
        G[start[18] - 1].pre += ['s_waitcnt lgkmcnt(0)', 's_barrier']
        vu = [f'v_add_u32 {vr(AQ + i)}, {sr(sDL)}, {vr(AQ + i)}' for i in range(12)]
        place(G, vu[:4] + vu[8:], start[14], start[17] + 5, kind='valu')
        for k, x in enumerate(a_reads(0)): at(start[18] + k, x)
        for k, x in enumerate(a_reads(1)): at(start[19] + k, x)
        place(G, vu[4:8], start[18], start[19] + 5, kind='valu')
        G[start[20] - 1].pre.append('s_waitcnt lgkmcnt(4)')
        G[start[13] + 1].pre += [f's_add_u32 {sr(sM)}, {sr(sM)}, 1', f's_cmp_eq_u32 {sr(sM)}, 3', f's_cselect_b32 {sr(sDL)}, -2, 1', f's_cselect_b32 {sr(sM)}, 0, {sr(sM)}']
        G[start[13] + 2].pre += [f's_lshl_b32 {sr(sDL)}, {sr(sDL)}, 15']
    else:
        G[start[18] - 1].pre += ['s_waitcnt lgkmcnt(0)']
    if name:
        so = stamp_op(name)
        if so:
            G[start[18] - 1].post += so
            G[start[19] - 1].pre.append('s_waitcnt lgkmcnt(0)')
    return G

WPA = [240, 241, 242, 243, 252, 253, 254, 255]
def wp_addr0():
    return ['v_lshlrev_b32 v4, 1, v3', 'v_xor_b32 v4, v4, v2', 'v_lshlrev_b32 v4, 4, v4', 'v_lshl_add_u32 v4, v3, 10, v4', 'v_xor_b32 v5, 128, v4']
def wp_dma():
    ops = []
    for i in range(8):
        pre = []
        if i == 0: pre += [f's_lshl_b32 {sr(sT2)}, {sr(sW)}, 8']
        pre += [f's_add_u32 m0, {sr(sT3)}, {131072 + i * 1024}', f's_add_u32 {sr(sT0)}, {sr(sT2)}, {i * 4096}']
        ops.append(tuple(pre) + (f'buffer_load_dwordx4 v{4 + (i & 1)}, {sr(SRD_WO, 4)}, {sr(sT0)} offen lds',))
    return ops
def wp_addr1():
    t0, t1 = WPA[0], WPA[1]
    ops = [f'v_lshrrev_b32 {vr(t0)}, 2, v1', f'v_and_b32 {vr(t1)}, 7, {vr(t0)}', f'v_lshlrev_b32 {vr(t0)}, 8, {vr(t0)}', f'v_lshl_add_u32 {vr(t0)}, {vr(t1)}, 5, {vr(t0)}',
           f'v_and_b32 {vr(t1)}, 3, v1', f'v_lshl_add_u32 {vr(t0)}, {vr(t1)}, 3, {vr(t0)}', f'v_add_u32 {vr(t0)}, {sr(sT3)}, {vr(t0)}', f'v_add_u32 {vr(t0)}, 131072, {vr(t0)}']
    ops += [f'v_xor_b32 {vr(WPA[db])}, {db * 32}, {vr(t0)}' for db in range(1, 8)]
    return ops
def wp_reads():
    return [f'ds_read_b64_tr_b16 {ar(WPR + db * 4 + 2 * u, 2)}, {vr(WPA[db])} offset:{u * 4096}' for db in range(8) for u in range(2)]
def wp_stores():
    st = []
    for db in range(8):
        st.append(f'buffer_store_dwordx4 {ar(WPR + db * 4, 4)}, {vr(CL16)}, {sr(SRD_WD, 4)}, {"s3" if db < 4 else "s7"} offen offset:{1024 * (db & 3)} sc1')
    sc = ['s_sub_u32 s3, s2, 128', 's_add_u32 s7, s2, 56', 's_cmp_lt_u32 s2, 128', 's_cselect_b32 s3, s7, s3', 's_lshl_b32 s3, s3, 12',
          f's_mul_i32 s7, {sr(sW)}, {2 * WFS}', 's_add_u32 s3, s3, s7', f's_add_u32 s3, s3, {WS_WF}', f's_add_u32 s7, s3, {WFS}']
    return sc, st

def wp_store_ops():
    sc, st = wp_stores()
    out = []
    for k, x in enumerate(st):
        out += [tuple(sc) + (x,) if k == 0 else x, None]
    return out

def warmup(a):
    if OPT.get('pad', 4096):
        nch = OPT.get('nchain', 4)
        a('s_mov_b64 exec, 0')
        for w in range(nch - 1):
            a(f's_cmp_eq_u32 {sr(sW)}, {w}\ns_cbranch_scc1 L_pad{w}')
        a(f's_branch L_pad{nch - 1}')
        a.raw('.p2align 12')
        a.label('L_warmdone')
        a.label('L_warmret')
        a('s_mov_b64 exec, -1')

def phase_a(a, opt):
    a(f's_lshl_b32 {sr(sT3)}, {sr(sW)}, 13')
    a_setup_dma_addr(a)
    a(f's_and_b32 s3, s2, {7 if OPT.get("arot", 0) else 0}\ns_lshl_b32 {sr(sXO)}, s3, 7\ns_lshl_b32 {sr(sQO)}, s3, 19\ns_mul_i32 {sr(sGO)}, s3, {64 * 3584}\ns_mov_b32 {sr(sWB)}, 0\ns_mov_b32 {sr(sM)}, 0')
    a(f's_lshl_b32 {sr(sWQB)}, {sr(sW)}, 11\ns_add_u32 {sr(sWQB)}, {sr(sWQB)}, {WBUF}\ns_lshl_b32 {sr(sWGB)}, {sr(sW)}, 10\ns_add_u32 {sr(sWGB)}, {sr(sWGB)}, {WBUF + 8192}')
    xops, xadv = a_dma_x(0); wops, wadv = a_dma_w()
    setup_x(a, opt)
    emit_plain(a, xops); emit_plain(a, xadv)
    setup_w(a)
    emit_plain(a, wops); emit_plain(a, wadv)
    if opt.get('early'): a('s_memrealtime s[98:99]')
    wm = OPT.get('warmpos', 1)
    if wm == 1: warmup(a)
    xops, xadv = a_dma_x(1); wops, wadv = a_dma_w()
    b = A()
    for i in range(ACQ, ACQ + 4): b(f'v_mov_b32 {vr(i)}, 0')
    setup2(b, opt); setup_wp(b)
    if opt.get('early'):
        b('s_waitcnt lgkmcnt(0)')
        for nm, r in (('karg', 'vcc_lo'), ('i16', 's98')):
            b(f's_mov_b32 s{sST + 2 * len(STAMPS)}, {r}'); STAMPS.append(nm)
    a_setup_read_addr(b); b_setup_dma_addr(b)
    for i in range(ACQ + 4, 256):
        b(f'v_mov_b32 {vr(i)}, 0')
        if (i - ACQ) % 16 == 8 and (i - ACQ) // 16 < 8:
            b(f'v_mfma_f32_32x32x16_bf16 {ar(AGU + 16 * ((i - ACQ) // 16), 16)}, {vr(ACQ, 4)}, {vr(ACQ, 4)}, 0')
    fill = [l.strip() for l in b.lines]
    per = len(fill) // 15 + 1
    k0 = 0
    for k, x in enumerate(xops + wops):
        emit_plain(a, [x])
        if k == 7: emit_plain(a, xadv)
        k1 = min(len(fill), k0 + per)
        while k1 < len(fill) and fill[k1].startswith(('s_addc', 's_subb', 's_cselect')): k1 += 1
        for y in fill[k0:k1]: a(y)
        k0 = k1
    assert k0 == len(fill)
    emit_plain(a, wadv)
    ntouch = 0
    stamp(a, opt, 'issued')
    a(f'''
    s_lshl_b32 s3, {sr(sQB)}, 2
    s_add_u32 s3, s3, {sr(sW)}
    s_lshl_b32 s3, s3, 5
    s_add_u32 s3, s3, {sr(sH)}
    s_lshl_b32 s3, s3, 2
    s_add_u32 s94, s3, {WS_FLAG}
    v_mov_b32 v4, 0
    s_mov_b64 exec, 1
    buffer_store_dword v4, v4, {sr(SRD_WS, 4)}, s94 offen sc1
    s_mov_b64 exec, -1
    ''')
    if wm == 2: warmup(a)
    a(f's_waitcnt vmcnt({17 + ntouch})')
    for x in x_reads(0): a(x)
    a('s_waitcnt lgkmcnt(0)\ns_barrier')
    for x in a_reads(0) + a_reads(1): a(x)
    stamp(a, opt, 'A0')
    a('s_waitcnt lgkmcnt(0)' if opt.get('stamp') else 's_waitcnt lgkmcnt(4)')
    a.raw('.p2align 3')
    a(f's_mov_b32 {sr(sCNT)}, 3')
    a.raw('.p2align 3')
    a.label('L_a')
    G = a_superstep(0, False, 0, name='a4') + a_superstep(1, False, 0, name='a5')
    G[-4].pre.append(f's_sub_u32 {sr(sCNT)}, {sr(sCNT)}, 1')
    G[-2].pre.append(f's_cmp_lg_u32 {sr(sCNT)}, 0')
    G[-1].post.append('s_cbranch_scc1 L_a')
    emit_gaps(a, [g.ops() for g in G])
    a.raw('.p2align 3')
    emit_gaps(a, [g.ops() for g in a_superstep(0, False, 1, name='a6') + a_superstep(1, False, 2, kv_ops=b_prologue_dma())])
    stamp(a, opt, 'Aend')
    a_epilogue(a, opt)

def NMEAN(c): return SX + c
def ALPHA(c): return STT + c
def RS2(c): return STT + 4 + c
CSQ = 32; CSG = 160; HP = 192; ZQ = 240
def a_stats_ops():
    w0 = ['v_lshlrev_b32 v4, 4, v3', f'v_add_u32 v4, {CSBUF}, v4', 'v_lshlrev_b32 v5, 2, v2', f'v_lshl_add_u32 v5, {sr(sW)}, 8, v5', f'v_add_u32 v5, {CSBUF}, v5']
    w0 += [f'v_mov_b32 {vr(STT + k)}, {vr(CSD + k)}' for k in range(4)]
    w0 += [f'v_permlane16_swap_b32 {vr(CSD + k)}, {vr(STT + k)}' for k in range(4)]
    w0 += [f'v_add_f32 {vr(CSD + k)}, {vr(CSD + k)}, {vr(STT + k)}' for k in range(4)]
    w1 = [f'ds_write_b32 v5, {vr(CSD + k)} offset:{64 * k}' for k in range(4)]
    st = ['v_and_b32 v6, 3, v1', 'v_cmp_eq_u32 s[98:99], 1, v6', 'v_cmp_eq_u32 s[100:101], 2, v6', 'v_cmp_eq_u32 vcc, 3, v6',
          'v_lshrrev_b32 v6, 2, v2', 'v_cmp_eq_u32 s[92:93], v6, v3']
    st += [f'v_mov_b32 {vr(STT + 4 + k)}, {vr(SX + k)}' for k in range(4)]
    st += [f'v_permlane16_swap_b32 {vr(SX + k)}, {vr(STT + 4 + k)}' for k in range(4)]
    st += [f'v_add_f32 {vr(SX + k)}, {vr(SX + k)}, {vr(STT + 4 + k)}' for k in range(4)]
    for c in range(4):
        st.append(f'v_mul_f32 {vr(NMEAN(c))}, {f2u(-1 / 512)}, {vr(SX + c)}')
    for k, m in ((1, 's[98:99]'), (2, 's[100:101]'), (3, 'vcc')):
        for c in range(4):
            b = SXX + 4 * c
            st.append(f'v_cndmask_b32 {vr(b)}, {vr(b)}, {vr(b + k)}, {m}')
    for c in range(4):
        st.append(f'v_cndmask_b32 {vr(SXX + 4 * c)}, 0, {vr(SXX + 4 * c)}, s[92:93]')
    for sw in ('v_permlane32_swap_b32', 'v_permlane16_swap_b32'):
        for c in range(4): st.append(f'v_mov_b32 {vr(SXX + 4 * c + 1)}, {vr(SXX + 4 * c)}')
        for c in range(4): st.append(f'{sw} {vr(SXX + 4 * c)}, {vr(SXX + 4 * c + 1)}')
        for c in range(4): st.append(f'v_add_f32 {vr(SXX + 4 * c)}, {vr(SXX + 4 * c)}, {vr(SXX + 4 * c + 1)}')
    sc = (128 ** -0.5) * math.log2(math.e)
    for c in range(4): st.append(f'v_mul_f32 {vr(SXX + 4 * c)}, {f2u(1 / 512)}, {vr(SXX + 4 * c)}')
    for c in range(4): st.append(f'v_fma_f32 {vr(SXX + 4 * c)}, -{vr(NMEAN(c))}, {vr(NMEAN(c))}, {vr(SXX + 4 * c)}')
    for c in range(4): st.append(f'v_max_f32 {vr(SXX + 4 * c)}, 0, {vr(SXX + 4 * c)}')
    for c in range(4): st.append(f'v_add_f32 {vr(SXX + 4 * c)}, {f2u(1e-5)}, {vr(SXX + 4 * c)}')
    for c in range(4): st.append(f'v_rsq_f32 {vr(ALPHA(c))}, {vr(SXX + 4 * c)}')
    for c in range(4): st.append(f'v_rcp_f32 {vr(RS2(c))}, {vr(SXX + 4 * c)}')
    for c in range(4): st.append(f'v_mul_f32 {vr(ALPHA(c))}, {f2u(sc)}, {vr(ALPHA(c))}')
    for i in range(4): st.append(f'v_mov_b32 {vr(ZQ + i)}, 0')
    rd = [f'ds_read_b128 {vr(CSQ + 4 * nb, 4)}, v4 offset:{64 * nb}' for nb in range(8)]
    return (w0, w1), st, rd

def bc(r):
    return vr(r & ~1, 2), (r & 1)

def a_epilogue(a, opt):
    for c in range(4):
        nm, nh = bc(NMEAN(c))
        for nb in range(8):
            b = ACQ + (nb * 4 + c) * 4
            for i in (0, 2):
                a(f'v_pk_fma_f32 {vr(b + i, 2)}, {vr(CSQ + 4 * nb + i, 2)}, {nm}, {vr(b + i, 2)} op_sel:[0,{nh},0] op_sel_hi:[1,{nh},1]')
    for c in range(4):
        al, ah = bc(ALPHA(c))
        for nb in range(8):
            b = ACQ + (nb * 4 + c) * 4
            for i in (0, 2):
                a(f'v_pk_mul_f32 {vr(b + i, 2)}, {vr(b + i, 2)}, {al} op_sel:[0,{ah}] op_sel_hi:[1,{ah}]')
            for i in (0, 2):
                a(f'v_cvt_pk_bf16_f32 {vr(Q + 16 * c + 2 * nb + (i >> 1))}, {vr(b + i)}, {vr(b + i + 1)}')
    stamp(a, opt, 'e_q')
    for nb in range(8):
        a(f'ds_read_b128 {vr(CSG + 4 * nb, 4)}, v4 offset:{64 * (8 + nb)}')

def h_epilogue(a, mfmas):
    mfmas = list(mfmas)
    for c in range(4):
        nm, nh = bc(NMEAN(c)); rs, rh = bc(RS2(c))
        for pr in range(2):
            for u in range(2):
                nb = 2 * pr + u
                tg = 128 + u * 8; tu = tg + 4; pk = 144 + 2 * u
                for i in range(4):
                    if i % 2 == 0 and mfmas: a(mfmas.pop(0))
                    a(f'v_accvgpr_read_b32 {vr(tg + i)}, {ar(AGU + (nb * 4 + c) * 4 + i)}')
                    a(f'v_accvgpr_read_b32 {vr(tu + i)}, {ar(AGU + ((nb + 4) * 4 + c) * 4 + i)}')
                for i in (0, 2):
                    a(f'v_pk_fma_f32 {vr(tg + i, 2)}, {vr(CSG + 4 * nb + i, 2)}, {nm}, {vr(tg + i, 2)} op_sel:[0,{nh},0] op_sel_hi:[1,{nh},1]')
                    a(f'v_pk_fma_f32 {vr(tu + i, 2)}, {vr(CSG + 16 + 4 * nb + i, 2)}, {nm}, {vr(tu + i, 2)} op_sel:[0,{nh},0] op_sel_hi:[1,{nh},1]')
                for i in (0, 2):
                    a(f'v_pk_mul_f32 {vr(tg + i, 2)}, {vr(tg + i, 2)}, {rs} op_sel:[0,{rh}] op_sel_hi:[1,{rh}]')
                for i in (0, 2):
                    a(f'v_pk_mul_f32 {vr(tg + i, 2)}, {vr(tg + i, 2)}, {vr(tu + i, 2)}')
                for i in (0, 2):
                    a(f'v_cvt_pk_bf16_f32 {vr(pk + (i >> 1))}, {vr(tg + i)}, {vr(tg + i + 1)}')
                for i in (0, 1):
                    a(f'v_accvgpr_write_b32 {ar(HP + (c * 2 + pr) * 4 + 2 * u + i)}, {vr(pk + i)}')
    assert not mfmas

def Sreg(buf, c, kb=0): return S + buf * 32 + c * 8 + kb * 4
def Qreg(c, s): return Q + c * 16 + s * 4
def Preg(c, par): return (PA + par * 8 + c * 4) if c < 2 else PB + (c - 2) * 4
def Oreg(c, db): return O + c * 32 + db * 4
def LMreg(hf): return LM + hf * 4
def LOLD(hf): return LM + 8 + hf
SELA = 24; HL = 33; SL = 66
def qk_mfma(buf, c, kb, s, c0=None):
    d = vr(Sreg(buf, c, kb), 4)
    cc = d if s else (c0 if c0 is not None else vr(NM + 4 * c, 4))
    return mf(d, ar(KF + 4 * (kb * 4 + s), 4), vr(Qreg(c, s), 4), cc)
def pv_mfma(c, par, db, c0=None):
    d = ar(Oreg(c, db), 4)
    return mf(d, ar(VF + db * 4, 4), vr(Preg(c, par), 4), d if c0 is None else c0)
def sum_mfma(hf, par):
    return f'v_smfmac_f32_16x16x64_bf16 {vr(LMreg(hf), 4)}, {vr(SELA, 4)}, {vr(Preg(2 * hf, par), 8)}, {vr(SIDX)}'
def k_read(slot, kb, s, base=None):
    if base is not None:
        return f'ds_read_b128 {ar(KF + 4 * (kb * 4 + s), 4)}, {vr(base + s)} offset:{slot * STAGE + kb * 8192}'
    return f'ds_read_b128 {ar(KF + 4 * (kb * 4 + s), 4)}, {vr(KA + 4 * (slot >> 2) + s)} offset:{(slot & 3) * STAGE + kb * 8192}'
def v_read(slot, db, u):
    return f'ds_read_b64_tr_b16 {ar(VF + db * 4 + 2 * u, 2)}, {vr((VAB if slot >= 4 else VAA) + db)} offset:{(slot & 3) * STAGE + u * 8192 + 2048}'
def dma_k(i):
    return f'buffer_load_dwordx4 {vr(DK0 + i)}, {sr(SRD_K, 4)}, {sr(sOK)} offen offset:{1024 * i} lds'
def dma_v(i):
    return f'buffer_load_dwordx4 {vr(DV0 + i)}, {sr(SRD_V, 4)}, {sr(sOV)} offen offset:{2048 + 1024 * i} lds'
def stage_dma(slot, k=True, v=True):
    ops = []
    pre = (f's_add_u32 m0, {sr(sW4K)}, {slot * STAGE}',)
    if k:
        ops += [pre + (f's_add_u32 {sr(sOK)}, {sr(sOK)}, 8192', f's_and_b32 {sr(sOK)}, {sr(sOK)}, 0x7ffff', dma_k(0)), dma_k(1)]; pre = ()
    if v:
        ops += [pre + (f's_add_u32 {sr(sOV)}, {sr(sOV)}, 8192', f's_and_b32 {sr(sOV)}, {sr(sOV)}, 0x7ffff', dma_v(0)), dma_v(1)]
    return ops

def b_setup_dma_addr(a):
    a(f'''
    s_lshl_b32 s3, {sr(sW)}, 3
    v_add_u32 v5, s3, v3          ; row = 8w + (l>>4)
    v_and_b32 v7, 15, v5
    v_xor_b32 v7, v7, v2
    v_lshlrev_b32 v7, 4, v7
    v_lshl_add_u32 {vr(DK0)}, v5, 8, v7
    v_xor_b32 {vr(DK1)}, 64, {vr(DK0)}
    v_lshlrev_b32 v7, 1, v3
    v_xor_b32 v7, v7, v2
    v_lshlrev_b32 v7, 4, v7
    v_lshl_add_u32 {vr(DV0)}, v5, 8, v7
    v_xor_b32 {vr(DV1)}, 128, {vr(DV0)}
    s_mul_i32 {sr(sOK)}, {sr(sH)}, {OPT.get('kvrot', 0)}
    s_sub_u32 {sr(sOK)}, {sr(sOK)}, 8192
    s_mov_b32 {sr(sOV)}, {sr(sOK)}
    ''')

def b_prologue_dma():
    ops = stage_dma(8, v=False) + stage_dma(9, v=False)
    for sl in range(4):
        ops += stage_dma(sl)
    return ops

def b_prologue_dma2():
    return stage_dma(4) + stage_dma(5) if OPT.get('bar', 2) == 2 else []

def b_setup_read_addr(a):
    a(f'''
    v_lshrrev_b32 v4, 3, v2
    v_lshlrev_b32 v4, 12, v4      ; (r>>3)*4096
    v_and_b32 v5, 7, v2
    v_lshl_add_u32 v4, v5, 8, v4  ; + (r&7)*256
    v_xor_b32 v5, v2, v3
    v_lshl_add_u32 v4, v5, 4, v4  ; + (r^g)*16
    ''')
    for s in range(4):
        a(f'v_xor_b32 {vr(KA + s)}, {s * 64}, v4')
        a(f'v_add_u32 {vr(KA + 4 + s)}, 65536, {vr(KA + s)}')
        a(f'v_add_u32 {vr(ST + 8 + s)}, 131072, {vr(KA + s)}')
    a(f'''
    v_bfe_u32 v4, v1, 2, 3        ; row&7
    v_lshlrev_b32 v5, 8, v4
    v_lshl_add_u32 v5, v4, 5, v5
    v_lshrrev_b32 v6, 5, v1
    v_lshl_add_u32 v5, v6, 12, v5
    v_and_b32 v6, 3, v1
    v_lshl_add_u32 v5, v6, 3, v5
    ''')
    for db in range(8):
        a(f'v_xor_b32 {vr(VAA + db)}, {db * 32}, v5')
        a(f'v_add_u32 {vr(VAB + db)}, 65536, {vr(VAA + db)}')
    a(f'''
    v_mov_b32 {vr(THR)}, 0x4e800000      ; 2^30
    v_mov_b32 {vr(SIDX)}, {vr(IDX)}
    v_lshrrev_b32 v4, 3, v2
    v_lshrrev_b32 v5, 5, v1
    v_and_b32 v6, 3, v1
    v_lshl_add_u32 v4, v6, 1, v4
    v_cmp_eq_u32 vcc, v4, v5
    v_mov_b32 v4, 0x3f803f80
    s_nop 0
    v_cndmask_b32 v5, 0, v4, vcc
    ''')
    for i in range(4):
        a(f'v_mov_b32 {vr(SELA + i)}, v5')
    a(f'v_lshlrev_b32 {vr(CL16)}, 4, v1')

def xlane(a, op, dst, t2):
    for sw in ('v_permlane32_swap_b32', 'v_permlane16_swap_b32'):
        a(f'v_mov_b32 {vr(t2)}, {vr(dst)}')
        a('s_nop 1')
        a(f'{sw} {vr(dst)}, {vr(t2)}')
        a(f'{op} {vr(dst)}, {vr(dst)}, {vr(t2)}')

def rowmax(a, base, dst, t2):
    a(f'v_max3_f32 {vr(dst)}, {vr(base)}, {vr(base + 1)}, {vr(base + 2)}')
    a(f'v_max3_f32 {vr(dst)}, {vr(dst)}, {vr(base + 3)}, {vr(base + 4)}')
    a(f'v_max3_f32 {vr(dst)}, {vr(dst)}, {vr(base + 5)}, {vr(base + 6)}')
    a(f'v_max_f32 {vr(dst)}, {vr(dst)}, {vr(base + 7)}')
    xlane(a, 'v_max_f32', dst, t2)

def softmax_c(a, sbase, pbase, tb):
    for r in range(4):
        a(f'v_exp_f32 {vr(tb)}, {vr(sbase + 2 * r)}')
        a(f'v_exp_f32 {vr(tb + 1)}, {vr(sbase + 2 * r + 1)}')
        a('s_nop 0')
        a(f'v_cvt_pk_bf16_f32 {vr(pbase + r)}, {vr(tb)}, {vr(tb + 1)}')

def b_prologue(a, opt):
    b_setup_read_addr(a)
    a('s_waitcnt vmcnt(0) lgkmcnt(0)')
    stamp(a, opt, 'e_h')
    a('s_barrier')
    for kb in range(2):
        for s in range(4):
            a(k_read(0, kb, s, base=ST + 8))
    emit_plain(a, b_prologue_dma2())
    a(f'''
    s_lshl_b32 s3, {sr(sQB)}, 4
    s_lshl_b32 s7, {sr(sW)}, 2
    s_add_u32 s3, s3, s7
    s_mul_i32 s3, s3, 57344
    s_lshl_b32 s7, {sr(sH)}, 11
    s_add_u32 s3, s3, s7
    s_add_u32 {sr(sHO)}, s3, {WS_H}
    s_mov_b32 s{SRD_WG}, s{SRD_WS}
    s_mov_b32 s{SRD_WG + 1}, s{SRD_WS + 1}
    s_cmp_lt_u32 {sr(sH)}, 28
    s_cselect_b32 s{SRD_WG + 2}, 0x10000000, 0
    s_mov_b32 s{SRD_WU}, s{SRD_DBG}
    s_mov_b32 s{SRD_WU + 1}, s{SRD_DBG + 1}
    s_mov_b32 s{SRD_WU + 2}, 0
    s_cmp_eq_u32 {sr(sW)}, 0
    s_cselect_b32 {sr(sXO)}, 4, 64
    v_mov_b32 {vr(ONEV)}, 1
    s_waitcnt lgkmcnt(0)
    ''')
    h_epilogue(a, [qk_mfma(0, c, kb, s, c0='0') for c in range(4) for kb in range(2) for s in range(4)])
    stamp(a, opt, 'e_h2')
    for kb in range(2):
        for s in range(4):
            a(k_read(1, kb, s, base=ST + 8))
    for i in range(10):
        a(f'v_mov_b32 {vr(LM + i)}, 0')
    for c in range(4):
        a(f'v_mfma_f32_32x32x16_bf16 {ar(O + 32 * c, 16)}, {vr(ZQ, 4)}, {vr(ZQ, 4)}, 0')
        rowmax(a, Sreg(0, c), ST, ST + 1)
        a(f'v_mfma_f32_32x32x16_bf16 {ar(O + 32 * c + 16, 16)}, {vr(ZQ, 4)}, {vr(ZQ, 4)}, 0')
        for i in range(8):
            a(f'v_sub_f32 {vr(Sreg(0, c) + i)}, {vr(Sreg(0, c) + i)}, {vr(ST)}')
        for i in range(4):
            a(f'v_sub_f32 {vr(NM + 4 * c + i)}, 0, {vr(ST)}')
    for c in range(2):
        softmax_c(a, Sreg(0, c), Preg(c, 0), ST)
    a('s_waitcnt lgkmcnt(0)')

BIG = [25, 29, 32, 38, 46, 50, 54, 58, 62]
def step_gaps(slot, tag, opt, dma=True, final=False, extra=None, vm=0, nobar=False):
    p = slot & 1
    qk = [qk_mfma(1 - p, c, kb, s) for c in range(4) for kb in range(2) for s in range(4)]
    pv = [pv_mfma(c, p, db) for c in range(4) for db in range(8)]
    mfs = qk[:4] + [sum_mfma(0, p)] + qk[4:] + pv[:4] + [sum_mfma(1, p)] + pv[4:]
    G = [Gap(m) for m in mfs]
    for hf, g0 in ((1, 0), (0, HL)):
        if final and hf == 0:
            continue
        for e in range(16):
            c = 2 * hf + (e >> 3)
            src = (Sreg(p, 2) if hf else Sreg(1 - p, 0)) + e
            G[g0 + 2 * e].valu.append(f'v_exp_f32 {vr(TMP + (e & 3))}, {vr(src)}')
            if e & 1:
                G[g0 + 2 * e + 1].valu.append(f'v_cvt_pk_bf16_f32 {vr(Preg(c, 1 - p) + ((e & 7) >> 1))}, {vr(TMP + ((e - 1) & 3))}, {vr(TMP + (e & 3))}')
    for hf, g0 in ((0, 0), (1, HL)):
        late = final and hf == 1
        G[g0 + (13 if late else 9)].valu.append(f'v_cmp_nle_f32 vcc, {vr(LMreg(hf))}, {vr(THR)}')
        G[g0 + (16 if late else 15)].post += [f's_cbranch_vccnz L_slow{hf}_{tag}', f'L_back{hf}_{tag}:']
        if not final:
            G[g0 + 27].valu.append(f'v_mov_b32 {vr(LOLD(hf))}, {vr(LMreg(hf))}')
    vplace = [1, 1, 3, 5, 5, 7, 9, 11, 13, 13, 17, 17, 19, 21, 21, 23]
    kplace = [HL + x for x in (1, 1, 3, 7, 9, 11, 19, 23)]
    for g, x in zip(vplace, [v_read(slot, db, u) for db in range(8) for u in range(2)]):
        G[g].mem.append(x)
    if not final:
        for g, x in zip(kplace, [k_read(slot, kb, s) for kb in range(2) for s in range(4)]):
            G[g].mem.append(x)
    G[HL - 1].pre.append('s_waitcnt lgkmcnt(0)')
    ops = []
    if dma:
        ops = [None] * 4 + stage_dma((slot + 6) & 7)
    if extra:
        ops = extra
    for g, x in zip(BIG if not final else [25, 29, 32, 33, 34, 35, 36, 38, 39, 40], ops):
        if x is not None:
            place(G, [x], g, g)
    if slot & 1 and not nobar:
        G[SL - 1].pre += [f's_waitcnt vmcnt({vm}) lgkmcnt(0)', 's_barrier'] if not final else []
    else:
        G[SL - 1].pre.append('s_waitcnt lgkmcnt(0)')
    if final:
        for g in G:
            if g.m in qk:
                g.m = 's_nop 0'
    return G

def gapops(G):
    return [[x for x in g.ops() if x is not None] for g in G]

def slow_path(a, p, hf, final=False):
    a.label(f'L_slowfn{hf}_{p}_{int(final)}')
    a('s_nop 15')
    a(f'v_mov_b32 {vr(ST + 8)}, {vr(LOLD(hf))}\nv_mov_b32 {vr(ST + 9)}, {vr(LOLD(hf))}\ns_nop 1\nv_permlane16_swap_b32 {vr(ST + 8)}, {vr(ST + 9)}\nv_add_f32 {vr(ST + 8)}, {vr(ST + 8)}, {vr(ST + 9)}')
    for c in (2 * hf, 2 * hf + 1):
        cur = Sreg(p, c); nxt = Sreg(1 - p, c)
        d = ST + 4 + (c & 1); al = ST + 6 + (c & 1)
        rowmax(a, cur, d, ST + 1)
        a(f'v_max_f32 {vr(d)}, 0, {vr(d)}')
        a(f'v_mov_b32 {vr(ST)}, {vr(ST + 8)}')
        a(f'v_mov_b32 {vr(ST + 1)}, {vr(ST + 8)}')
        a('s_nop 1')
        a(f'v_permlane32_swap_b32 {vr(ST)}, {vr(ST + 1)}')
        a(f'v_log_f32 {vr(ST)}, {vr(ST + (c & 1))}')
        a('s_nop 0')
        a(f'v_max_f32 {vr(d)}, {vr(d)}, {vr(ST)}')
        a(f'v_sub_f32 {vr(al)}, 0, {vr(d)}')
        a(f'v_exp_f32 {vr(al)}, {vr(al)}')
        for i in range(8):
            a(f'v_sub_f32 {vr(cur + i)}, {vr(cur + i)}, {vr(d)}')
        if not final:
            for i in range(8):
                a(f'v_sub_f32 {vr(nxt + i)}, {vr(nxt + i)}, {vr(d)}')
        for i in range(4):
            a(f'v_sub_f32 {vr(NM + 4 * c + i)}, {vr(NM + 4 * c + i)}, {vr(d)}')
        for i in range(32):
            a(f'v_accvgpr_read_b32 {vr(ST + 2)}, {ar(Oreg(c, 0) + i)}')
            a(f'v_mul_f32 {vr(ST + 2)}, {vr(ST + 2)}, {vr(al)}')
            a(f'v_accvgpr_write_b32 {ar(Oreg(c, 0) + i)}, {vr(ST + 2)}')
        softmax_c(a, cur, Preg(c, p), ST + 2)
    a(f'v_cmp_gt_u32 vcc, 32, {vr(LANE)}')
    a('s_nop 1')
    a(f'v_cndmask_b32 {vr(ST)}, {vr(ST + 7)}, {vr(ST + 6)}, vcc')
    a(f'v_mul_f32 {vr(LMreg(hf))}, {vr(LOLD(hf))}, {vr(ST)}')
    a('s_nop 1')
    a(sum_mfma(hf, p))
    a('s_nop 7')
    a('s_setpc_b64 s[98:99]')

SLOW = []
def is_vm(x): return x.startswith(('buffer_', 'global_'))
def vm_between(G, g0, g1):
    return sum(1 for g in G[g0:g1] for x in g.mem if is_vm(x))

def trace_ops(G, lane, n=8):
    for sl in range(n):
        G[sl * SL + 0].pre += ['s_memtime s[100:101]'] + lane(sl)
        G[sl * SL + 56].valu += ['v_cmp_eq_u32 vcc, s95, v1']
        G[sl * SL + 60].valu += ['v_mov_b32 v222, s100']
        G[sl * SL + 64].valu += ['v_cndmask_b32 v221, v221, v222, vcc']

def first_pass(a, opt):
    G = []
    for st in range(16):
        G += step_gaps(st & 7, f'f{st}', opt, vm='VM'); SLOW.append((st & 1, f'f{st}', False))
    def at(st, g, x): place(G, [x], st * SL + g, st * SL + g)
    h0 = OPT.get('h0', 8)
    for k in range(8):
        x = f'buffer_store_dwordx4 {ar(HP + 4 * k, 4)}, {vr(CL16)}, {sr(SRD_WG, 4)}, {sr(sHO)} offen offset:{1024 * (k & 1)} sc1'
        if k in (2, 4, 6): x = (f's_add_u32 {sr(sHO)}, {sr(sHO)}, 57344', x)
        if not opt.get('nohst'): at(k if h0 == 0 else 2 * k, 62, x)
    place(G, wp_addr0(), SL + 25, SL + 40, kind='valu')
    dpos = [(2, 38), (3, 38), (4, 38), (4, 29), (5, 38), (6, 38), (6, 29), (7, 38)]
    dpos.sort()
    for (st, g), x in zip(dpos, wp_dma()): at(st, g, x)
    place(G, wp_addr1(), 8 * SL + 25, 9 * SL + 40, kind='valu')
    rd = wp_reads()
    sc, stv = wp_stores()
    G[11 * SL + 2].pre += sc[:2]; G[11 * SL + 4].pre += sc[2:6]; G[11 * SL + 6].pre += sc[6:]
    for k in range(4):
        place(G, rd[4 * k:4 * k + 4], (12 + k) * SL + 25, (12 + k) * SL + 29)
        at(12 + k, 38, stv[2 * k])
        at(12 + k, 65 if k & 1 == 0 else 62, stv[2 * k + 1])
    for j in range(1, 16, 2):
        n = vm_between(G, 0 if j < 4 else (j - 4) * SL + 59, j * SL + SL - 1)
        G[j * SL + SL - 1].pre = [x.replace('VM', str(min(n, 63))) for x in G[j * SL + SL - 1].pre]
    if opt.get('trace'): trace_ops(G, lambda st: [f's_mov_b32 s95, {63 - st}'], 16)
    a.raw('.p2align 3')
    emit_gaps(a, gapops(G))

def phase_b(a, opt):
    b_prologue(a, opt)
    stamp(a, opt, 'B0')
    a(f's_mov_b32 {sr(sCNT)}, 5')
    first_pass(a, opt)
    stamp(a, opt, 'B1')
    a.raw('.p2align 6')
    a.label('L_attn')
    G = []
    for sl in range(8):
        G += step_gaps(sl, f's{sl}', opt, vm=16); SLOW.append((sl & 1, f's{sl}', False))
    G[2 * SL + 23].pre += [f's_cmp_eq_u32 {sr(sCNT)}, {sr(sXO)}', f's_cselect_b32 s{SRD_WU + 2}, 4, 0']
    place(G, [f'buffer_atomic_add {vr(ONEV)}, {vr(CL16)}, {sr(SRD_WU, 4)}, 0 offen sc1'], 2 * SL + 25, 2 * SL + 25)
    if opt.get('trace'): trace_ops(G, lambda sl: [f's_lshl_b32 s95, {sr(sCNT)}, 3', f's_add_u32 s95, s95, {7 - sl}'])
    G[-6].pre.append(f's_sub_u32 {sr(sCNT)}, {sr(sCNT)}, 1')
    G[-4].pre.append(f's_cmp_lg_u32 {sr(sCNT)}, 0')
    G[-1].post.append('s_cbranch_scc1 L_attn')
    emit_gaps(a, gapops(G))
    a.raw('.p2align 3')
    G = []
    pa = [c_load_a(t, nb) for t in range(4) for nb in range(4)]
    pb = [c_load_b(t, j) for t in range(4) for j in range(4)]
    for t in range(1, 4):
        pa[4 * t] = (f's_add_u32 {sr(sAO)}, {sr(sAO)}, 4096', pa[4 * t])
    extra = {4: pa[:8], 5: pa[8:], 6: [None] * 3 + pb[:6], 7: pb[6:]}
    for sl in range(8):
        g = step_gaps(sl, f't{sl}', opt, dma=sl < 2, final=sl == 7, extra=extra.get(sl), vm={1: 16, 3: 0}.get(sl, 0), nobar=sl == 5); SLOW.append((sl & 1, f't{sl}', sl == 7))
        if sl == 2:
            su = c_setup_scalar()
            for k in range(0, len(su), 2):
                g[2 + k].pre += su[k:k + 2]
            g[62].mem.append(f'buffer_load_dword {vr(POLLV)}, off, {sr(SRD_DBG, 4)}, 0 sc1')
        if sl == 4:
            g[17].valu.append(f'v_cmp_ne_u32 vcc, 0x100, {vr(POLLV)}')
            g[23].post += ['s_cbranch_vccnz L_pollall', 'L_pollall_ok:']
        G += g
    emit_gaps(a, gapops(G))
    stamp(a, opt, 'Bend')
    if opt.get('trace'): a('v_mov_b32 v252, v221')

def finalize_pre(a):
    a(f'''
    s_lshl_b32 s3, {sr(sQB)}, 4
    s_lshl_b32 s7, {sr(sW)}, 2
    s_add_u32 s3, s3, s7
    s_mul_i32 s3, s3, {OST()}
    s_lshl_b32 s7, {sr(sH)}, 12
    s_add_u32 {sr(sOK)}, s3, s7
    ''')
    for hf in range(2):
        a(f'v_mov_b32 {vr(ST + hf)}, {vr(LMreg(hf))}')
    a('s_nop 0')
    for hf in range(2):
        a(f'v_permlane16_swap_b32 {vr(LMreg(hf))}, {vr(ST + hf)}')
    for hf in range(2):
        a(f'v_add_f32 {vr(ST + 2 + 2 * hf)}, {vr(LMreg(hf))}, {vr(ST + hf)}')
        a(f'v_add_f32 {vr(ST + 3 + 2 * hf)}, {vr(LMreg(hf))}, {vr(ST + hf)}')
    a('s_nop 0')
    for hf in range(2):
        a(f'v_permlane32_swap_b32 {vr(ST + 2 + 2 * hf)}, {vr(ST + 3 + 2 * hf)}')
    for c in range(4):
        a(f'v_rcp_f32 {vr(RL + 2 * c)}, {vr(ST + 2 + c)}')
        a(f'v_rcp_f32 {vr(RL + 2 * c + 1)}, {vr(ST + 2 + c)}')

NF = 14; NS = 32; DEPTH = 7
def c_setup_scalar():
    ops = []
    for j in range(4):
        ops += [f's_add_u32 s3, {sr(sW)}, {j}', 's_and_b32 s3, s3, 3', f's_lshl_b32 s7, {sr(sRB)}, 2', 's_add_u32 s3, s3, s7', 's_mul_i32 s3, s3, 57344',
                f's_mul_i32 s7, {sr(sW)}, {NF * 1024}', 's_add_u32 s3, s3, s7', f's_add_u32 {sr(sBO + j)}, s3, {WS_H}']
    ops += [f's_mul_i32 s3, {sr(sCB)}, {WFS}', f's_mul_i32 s7, {sr(sW)}, {NF * 4096}', 's_add_u32 s3, s3, s7', f's_add_u32 {sr(sAO)}, s3, {WS_WF}']
    return ops

def c_switch_b():
    ops = []
    for j in range(4):
        ops += [f's_add_u32 s3, {sr(sW)}, {j}', 's_and_b32 s3, s3, 3', f's_lshl_b32 s7, {sr(sRB)}, 2', 's_add_u32 s3, s3, s7',
                f's_mul_i32 s3, s3, {OST()}', f's_lshl_b32 s7, {sr(sW)}, 15', f's_add_u32 {sr(sBO + j)}, s3, s7']
    return ops
def c_switch_a():
    return [f's_mul_i32 s3, {sr(sCB)}, {WFS}', f's_lshl_b32 s7, {sr(sW)}, 17', 's_add_u32 s3, s3, s7', f's_add_u32 {sr(sAO)}, s3, {WS_WF + 56 * 4096 - 4096}']

def c_load_a(t, nb):
    return f'buffer_load_dwordx4 {ar(CAr(t & 7) + nb * 4, 4)}, {vr(CL16)}, {sr(SRD_WS, 4)}, {sr(sAO)} offen offset:{1024 * nb} sc1'
def c_load_b(t, j):
    k = t if t < NF else t - NF
    return f'buffer_load_dwordx4 {vr(CB + (t & 7) * 16 + j * 4, 4)}, {vr(CL16)}, {sr(SRD_WS, 4)}, {sr(sBO + j)} offen offset:{1024 * (k & 3)} sc1'
def c_issue(t, what='ab'):
    k = t if t < NF else t - NF
    pre = []
    if 'a' in what: pre += [f's_add_u32 {sr(sAO)}, {sr(sAO)}, 4096']
    if 'b' in what and (k & 3) == 0 and k:
        pre += [f's_add_u32 {sr(sBO + j)}, {sr(sBO + j)}, 4096' for j in range(4)]
    mem = []
    for i in range(4):
        if 'a' in what: mem.append(c_load_a(t, i))
        if 'b' in what: mem.append(c_load_b(t, i))
    return pre, mem

def poll(a, name, srdreg, soff, nlanes, expect, ret=None):
    a(f's_mov_b64 exec, {(1 << nlanes) - 1}')
    a.label(name + '_l')
    a(f'''
    buffer_load_dword v5, v4, {sr(srdreg, 4)}, {soff} offen sc1
    s_waitcnt vmcnt(0)
    v_cmp_ne_u32 vcc, {expect}, v5
    s_cbranch_vccz {name}_d
    s_sleep 1
    s_branch {name}_l
    {name}_d:
    s_mov_b64 exec, -1
    ''')
    if ret:
        a(f's_nop 3\ns_branch {ret}')

def hooks(a):
    a(f'''
    L_pollall:
    v_mov_b32 v4, 0
    ''')
    poll(a, 'L_pa', SRD_DBG, '0', 1, '0x100', ret='L_pollall_ok')
    a(f'''
    L_po:
    s_sleep 1
    buffer_load_dword v5, v4, {sr(SRD_WG, 4)}, 0 offen sc1
    s_waitcnt vmcnt(0)
    v_cmp_ne_u32 vcc, v5, v6
    s_cbranch_vccnz L_po
    s_branch L_po_ok
    ''')

FR = 160
def red_write(acc, j, nb, base): return f'ds_write_b128 {vr(CRW + j - 1)}, {ar(acc + (nb * 4 + j) * 4, 4)} offset:{base + nb * 1024}'
def red_read(r, nb, base): return f'ds_read_b128 {vr(FR + r * 16 + nb * 4, 4)}, {vr(CRR)} offset:{base + r * 4096 + nb * 1024}'

class VM:
    def __init__(self, init): self.ops = list(init); self.done = 0
    def issue(self, tag): self.ops.append(tag); assert len(self.ops) - self.done <= 63, (tag, len(self.ops) - self.done)
    def wait(self, *tags):
        last = max(i for i, t in enumerate(self.ops) if t in tags)
        n = len(self.ops) - 1 - last
        self.done = max(self.done, last + 1)
        return f's_waitcnt vmcnt({n})'

def phase_c(a, opt):
    T = NF + NS
    finalize_pre(a)
    for j in range(1, 4):
        a(f's_add_u32 s3, {sr(sW)}, {j}\ns_and_b32 s3, s3, 3\ns_mul_i32 s3, s3, 12288\ns_add_u32 s3, s3, {(j - 1) * 4096}\nv_add_u32 {vr(CRW + j - 1)}, s3, {vr(CL16)}')
    a(f'''
    s_mul_i32 s3, {sr(sW)}, 12288
    v_add_u32 {vr(CRR)}, s3, {vr(CL16)}
    s_mov_b32 s{SRD_X}, s96
    s_mov_b32 s{SRD_X + 1}, s97
    s_mov_b32 s{SRD_X + 2}, 2097152
    s_mov_b32 s{SRD_X + 3}, 0x20000
    v_lshlrev_b32 v5, 3, v3
    v_lshl_add_u32 {vr(COUT)}, v2, 10, v5
    s_lshl_b32 s3, {sr(sRB)}, 16
    s_lshl_b32 s7, {sr(sW)}, 14
    s_add_u32 s3, s3, s7
    s_lshl_b32 s7, {sr(sCB)}, 7
    s_add_u32 {sr(sOV)}, s3, s7
    s_add_u32 s{SRD_WU}, s{SRD_WS}, s94
    s_addc_u32 s{SRD_WU + 1}, s{SRD_WS + 1}, 0
    s_mov_b32 s{SRD_WU + 2}, 4
    s_lshl_b32 s3, {sr(sRB)}, 7
    s_lshl_b32 s7, {sr(sW)}, 5
    s_add_u32 s3, s3, s7
    s_add_u32 s3, s3, {WS_FLAG}
    s_add_u32 s{SRD_WG}, s{SRD_WS}, s3
    s_addc_u32 s{SRD_WG + 1}, s{SRD_WS + 1}, 0
    s_mov_b32 s{SRD_WG + 2}, 32
    v_lshlrev_b32 v4, 2, v1
    v_cmp_gt_u32 vcc, 8, v1
    s_nop 1
    v_cndmask_b32 v6, 0, 1, vcc
    ''')
    vm = VM([t for t in range(4) for _ in range(4)] + [t for t in range(4) for _ in range(4)])
    a(vm.wait(0))
    a.raw('.p2align 3')
    sched = {0: [4], 1: [5, 6], 2: [7], 3: [8], 4: [9, 10], 5: [11, 12]}
    flag_t = OPT.get('flag_t', 4)
    PT = OPT.get('pt', 10)
    GV = 224
    for t in range(T):
        acc = ACF if t < NF else ACS_
        first = t in (0, NF)
        G = []
        for nb in range(4):
            for j in range(4):
                d = ar(acc + (nb * 4 + j) * 4, 4)
                G.append(Gap(mf(d, ar(CAr(t & 7) + nb * 4, 4), vr(CB + (t & 7) * 16 + j * 4, 4), '0' if first else d)))
        tn = t + DEPTH
        if tn == NF:
            for x in c_switch_a(): a(x)
        if t == PT - 1:
            G[8].mem.append(f'buffer_load_dword v5, v4, {sr(SRD_WG, 4)}, 0 offen sc1')
        if t == PT:
            stamp(a, opt, 'poll0')
            for x in c_switch_b(): a(x)
            a(vm.wait('fl'))
            a('v_cmp_ne_u32 vcc, v5, v6\ns_cbranch_vccnz L_po\nL_po_ok:')
            stamp(a, opt, 'poll1')
            for tt in range(NF, PT + DEPTH):
                p, m = c_issue(tt, 'b')
                for x in p + m: a(x)
                for x in m: vm.issue(tt)
            a.raw('.p2align 3')
        if t == NF: stamp(a, opt, 'fend')
        if t < 4:
            c = t
            for i in range(32):
                G[i // 4].valu.append(f'v_accvgpr_read_b32 {vr(160 + i)}, {ar(Oreg(c, 0) + i)}')
            for i in range(0, 32, 2):
                G[8].valu.append(f'v_pk_mul_f32 {vr(160 + i, 2)}, {vr(160 + i, 2)}, {vr(RL + 2 * c, 2)}')
            G[8].post.append('s_nop 1')
            ld = []
            for tt in sched[t]:
                p, m = c_issue(tt)
                ld += [(tt, p if k == 0 else [], x) for k, x in enumerate(m)]
            per = (len(ld) + 6) // 7
            for g in range(9, 16):
                if 10 <= g <= 13:
                    G[g].mem.append(f'buffer_store_dwordx4 {vr(192 + 4 * (g - 10), 4)}, {vr(CL16)}, {sr(SRD_WS, 4)}, {sr(sOK)} offen offset:{1024 * (g - 10)} sc1')
                    vm.issue('o')
                for tt, p, x in ld[(g - 9) * per:(g - 8) * per]:
                    G[g].mem += p + [x]; vm.issue(tt)
                if g <= 12:
                    for i in range(4):
                        G[g].valu.append(f'v_cvt_pk_bf16_f32 {vr(192 + 4 * (g - 9) + i)}, {vr(160 + 8 * (g - 9) + 2 * i)}, {vr(161 + 8 * (g - 9) + 2 * i)}')
            G[15].post.append(f's_add_u32 {sr(sOK)}, {sr(sOK)}, {OST()}')
        elif tn < T:
            for k, tt in enumerate(sched.get(t, [tn])):
                p, m = c_issue(tt, 'a' if NF <= tt and t < PT else 'ab')
                G[8 * k].pre += p
                place(G, m, 8 * k, 8 * k + 7)
                for x in m: vm.issue(tt)
            if t == PT - 1: vm.issue('fl')
        if t == T - DEPTH:
            place(G, [f'buffer_load_dwordx2 {vr(CXR + 2 * nb, 2)}, {vr(COUT)}, {sr(SRD_X, 4)}, {sr(sOV)} offen offset:{32 * nb}' for nb in range(4)], 0, 8)
            for nb in range(4): vm.issue('x')
        if t == flag_t:
            G[15].post += [vm.wait('o'), f'buffer_store_dword {vr(ONEV)}, {vr(CL16)}, {sr(SRD_WU, 4)}, 0 offen sc1'] + stamp_op('Oflag')
            vm.issue('flag')
        if t + 1 < T:
            G[15].post.append(vm.wait(t + 1))
        if NF + 1 <= t <= NF + 3:
            place(G, [red_write(ACF, t - NF, nb, 0) for nb in range(4)], 9, 15, cap=1)
        if t == NF + 4:
            place(G, [f'v_accvgpr_read_b32 {vr(GV + nb * 4 + i)}, {ar(ACF + nb * 16 + i)}' for nb in range(4) for i in range(4)], 8, 15, kind='valu')
            G[15].post += ['s_waitcnt lgkmcnt(0)', 's_barrier']
        if t == NF + 5:
            place(G, [red_read(r, nb, 0) for r in range(3) for nb in range(4)], 8, 15)
        if t == NF + 6:
            G[7].post.append('s_waitcnt lgkmcnt(0)')
        if NF + 6 <= t <= NF + 8:
            place(G, [f'v_add_f32 {vr(GV + k)}, {vr(GV + k)}, {vr(FR + (t - NF - 6) * 16 + k)}' for k in range(16)], 8, 15, kind='valu')
        if t == NF + 9:
            place(G, [f'v_mul_f32 {vr(FR + k)}, {f2u(-math.log2(math.e))}, {vr(GV + k)}' for k in range(16)], 8, 15, kind='valu')
        if t in (NF + 10, NF + 11):
            for k in range(8): G[8 + k].valu.append(f'v_exp_f32 {vr(FR + (t - NF - 10) * 8 + k)}, {vr(FR + (t - NF - 10) * 8 + k)}')
        if t == NF + 12:
            place(G, [f'v_add_f32 {vr(FR + k)}, 1.0, {vr(FR + k)}' for k in range(16)], 8, 15, kind='valu')
        if t in (NF + 13, NF + 14):
            for k in range(8): G[8 + k].valu.append(f'v_rcp_f32 {vr(FR + (t - NF - 13) * 8 + k)}, {vr(FR + (t - NF - 13) * 8 + k)}')
        if t == NF + 15:
            place(G, [f'v_mul_f32 {vr(GV + k)}, {vr(GV + k)}, {vr(FR + k)}' for k in range(16)], 8, 15, kind='valu')
        emit_gaps(a, gapops(G), align=False)
    stamp(a, opt, 'send')
    a('s_nop 3')
    for k in range(8):
        a(f'v_lshlrev_b32 {vr(32 + 2 * k)}, 16, {vr(CXR + k)}') if False else None
    a('s_nop 3')
    for j in range(1, 4):
        for nb in range(4):
            a(red_write(ACS_, j, nb, 49152))
    SV = 208
    for nb in range(4):
        for i in range(4):
            a(f'v_accvgpr_read_b32 {vr(SV + nb * 4 + i)}, {ar(ACS_ + nb * 16 + i)}')
    a('s_waitcnt vmcnt(0)')
    for k in range(8):
        a(f'v_lshlrev_b32 {vr(32 + 2 * k)}, 16, {vr(CXR + k)}')
        a(f'v_and_b32 {vr(33 + 2 * k)}, 0xffff0000, {vr(CXR + k)}')
    a('s_waitcnt lgkmcnt(0)\ns_barrier')
    for r in range(3):
        for nb in range(4):
            a(red_read(r, nb, 49152))
    for r in range(3):
        a(f's_waitcnt lgkmcnt({4 * (2 - r)})')
        for k in range(0, 16, 2):
            a(f'v_pk_add_f32 {vr(SV + k, 2)}, {vr(SV + k, 2)}, {vr(FR + r * 16 + k, 2)}')
    for k in range(0, 16, 2):
        a(f'v_pk_fma_f32 {vr(SV + k, 2)}, {vr(SV + k, 2)}, {vr(GV + k, 2)}, {vr(32 + k, 2)}')
    for k in range(8):
        a(f'v_cvt_pk_bf16_f32 {vr(CXR + k)}, {vr(SV + 2 * k)}, {vr(SV + 1 + 2 * k)}')
    for nb in range(4):
        a(f'buffer_store_dwordx2 {vr(CXR + 2 * nb, 2)}, {vr(COUT)}, {sr(SRD_OUT, 4)}, {sr(sOV)} offen offset:{32 * nb}')

OPT = {}
def add_pads(a, period, nchain):
    out = []; addr = 0; nxt = None; pads = []
    lines = a.lines
    for k, l in enumerate(lines):
        t = l.strip()
        if t.startswith('.p2align'):
            al = 1 << int(t.split()[1]); addr = (addr + al - 1) // al * al
        if t == 'L_warmdone:': addr = 0; nxt = period - OPT.get('padoff', 0)
        if t == 'L_end:': nxt = None
        if nxt is not None and addr >= nxt and t.startswith(('v_', 'ds_read', 's_add', 's_mov', 's_lshl', 'buffer_load')) and not lines[k - 1].strip().startswith(('.')):
            out.append(f'L_pad{len(pads)}:'); out.append(f'    PAD{len(pads)}'); pads.append(addr)
            addr += 4; nxt += period
            out.append('    s_nop 0'); addr += 4
        out.append(l); addr += isize(l)
    n = len(pads)
    for k, l in enumerate(out):
        if l.startswith('    PAD'):
            i = int(l[7:])
            out[k] = f'    s_cbranch_execz ' + (f'L_pad{i + nchain}' if i + nchain < n else 'L_warmret')
    a.lines = out
    return n

def gen(opt):
    OPT.clear(); OPT.update(opt)
    SLOW.clear(); STAMPS.clear()
    a = A()
    setup(a, opt)
    phase_a(a, opt)
    phase_b(a, opt)
    phase_c(a, opt)
    if opt.get('stamp'):
        a('s_waitcnt vmcnt(0)')
        stamp(a, opt, 'end')
        a(f'''
        s_waitcnt lgkmcnt(0)
        s_lshl_b32 s3, s2, 2
        s_add_u32 s3, s3, {sr(sW)}
        s_lshl_b32 s3, s3, 6
        s_add_u32 s3, s3, {WS_STAMP}
        v_mov_b32 v1, 0
        v_mov_b32 v4, v0
        ''')
        if opt.get('trace'):
            a(f's_lshl_b32 s7, s2, 2\ns_add_u32 s7, s7, {sr(sW)}\ns_lshl_b32 s7, s7, 8\ns_add_u32 s7, s7, {WS_STAMP + (1 << 20)}\nv_lshrrev_b32 v20, 2, v7')
            a(f'buffer_store_dword v252, v20, {sr(SRD_WS, 4)}, s7 offen')
        if opt.get('dbgstamp'):
            a(f's_cmp_lg_u32 {sr(sW)}, 0\ns_cbranch_scc1 L_nodbg')
            a('v_not_b32 v20, v0\ns_mov_b64 exec, 1')
            a(f'v_mov_b32 v21, s{sST + 2 * (len(STAMPS) - 1)}')
            a(f'buffer_atomic_umax v20, off, {sr(SRD_DBG, 4)}, 0 offset:56 sc1')
            a(f'buffer_atomic_umax v21, off, {sr(SRD_DBG, 4)}, 0 offset:60 sc1')
            a(f's_cmp_lg_u32 s2, {opt["dbgstamp"]}\ns_cbranch_scc1 L_nodbg')
            for i in range(len(STAMPS)):
                a(f'v_sub_u32 v{22 + i}, s{sST + 2 * i}, v0')
                a(f'buffer_store_dword v{22 + i}, off, {sr(SRD_DBG, 4)}, 0 offset:{4 + 4 * i} sc1')
            a('L_nodbg:\ns_mov_b64 exec, -1')
        for i in range(12): a(f'v_mov_b32 v{5 + i}, s{sST + 2 * i}')
        for i in range(4):
            a(f'buffer_store_dwordx4 v[{4 + 4 * i}:{7 + 4 * i}], v1, {sr(SRD_WS, 4)}, s3 offen offset:{16 * i}')
    a.label('L_end')
    a('s_endpgm')
    hooks(a)
    for p, tag, final in SLOW:
        for hf in range(2):
            a.label(f'L_slow{hf}_{tag}')
            a(f's_call_b64 s[98:99], L_slowfn{hf}_{p}_{int(final)}')
            a(f's_branch L_back{hf}_{tag}')
    for p, final in sorted({(p, f) for p, _, f in SLOW}):
        for hf in range(2):
            slow_path(a, p, hf, final)
    if OPT.get('pad', 4096):
        npad = add_pads(a, OPT.get('pad', 4096), OPT.get('nchain', 4))
        print('pads', npad, file=sys.stderr)
    a.label('L_codeend')
    a('s_endpgm')
    return kernel_file(f'; ost {OST()}\n; stamps entry ' + ' '.join(STAMPS) + '\n' + a.text(), 'grid=(256,1,1) block=(256,1,1) lds=163840')

if __name__ == '__main__':
    opt = json.loads(sys.argv[2]) if len(sys.argv) > 2 else {}
    open(sys.argv[1], 'w').write(gen(opt))
```

```python
import sys, json, math, struct
sys.path.insert(0, 'gen')
from asmlib import *

def f2u(x): return '0x%08x' % struct.unpack('<I', struct.pack('<f', x))[0]

WS_O = 0; WS_H = 17 << 20; WS_FLAG = 25 << 20; WS_WF = (25 << 20) + 65536; WS_STAMP = 32 << 20; WS_XF = 34 << 20; WS_XS = 41 << 20; WS_FF = (25 << 20) + 8192
WFS = 184 * 4096
sH = 4; sQB = 5; sW = 6
SRD_K = 8; SRD_V = 12; SRD_WS = 16; SRD_X = 20; SRD_WQ = 24; SRD_WG = 28; SRD_WU = 32; SRD_WO = 36; SRD_WD = 40; SRD_OUT = 44; SRD_DBG = 48
sOK = 52; sOV = 53; sM = 54; sCNT = 55; sT0 = 56; sT1 = 57; sT2 = 58; sT3 = 59
sXO = 60; sQO = 61; sGO = 62; sWB = 63
sW4K = 88; sRB = 89; sCB = 90; sBO = 56; sHO = 91; sWQB = 92; sWGB = 93
sDL = 95
sST = 64
KA = 8; VAA = 16; DK0 = 28; DK1 = 29; DV0 = 30; DV1 = 31; VAB = 244
Q = 32; S = 96; NM = 160; PA = 176; PB = 192; TMP = 200; ST = 204; THR = 220; LANE = 1; LM = 224; RL = 240
O = 0; KF = 128; VF = 160; SIDX = 216; WPR = 224
STAGE = 16384
AQ = 8; AG = 12; AC = 16; AX = 20; DQ = 22; DG = 23; DX = 24
XF = 32; ACQ = 96; SX = 224; CSD = 228; STT = 232; SXX = 240; IDX = 27
AGU = 0; AR = 128; AK = 160
XBUF = 0; WBUF = 65536; CSBUF = 81920
CB = 32
def CAop(sl, nb):
    return ar(192 + sl * 16 + 4 * nb, 4) if sl < 4 else vr(96 + 32 * (sl - 4) + 4 * nb, 4) if sl < 6 else vr(208 + 4 * nb, 4) if sl == 6 else ar(4 * nb, 4)
def CBop(sl, j):
    return vr(32 + sl * 16 + 4 * j, 4) if sl < 4 else vr(112 + 32 * (sl - 4) + 4 * j, 4) if sl < 6 else vr(224 + 4 * j, 4) if sl == 6 else ar(16 + 4 * j, 4)
ACF = 128; ACS_ = 64
CL16 = 7
CRW = 8; CRR = 11; COUT = 12; CXR = 16
sAO = 61; POLLV = 6; ONEV = 223

def OST(): return OPT.get('ost', 136192)
def HST(): return OPT.get('hst', 58368)
XIN = ['s92', 's93', 's62']
def TW(r):
    return f's_lshl_b32 {r}, {sr(sRB)}, 2\ns_add_u32 {r}, {r}, {sr(sCB)}\ns_lshl_b32 {r}, {r}, 2\ns_add_u32 {r}, {r}, {sr(sW)}'
def mf(d, a_, b_, c):
    return f'v_mfma_f32_16x16x32_bf16 {d}, {a_}, {b_}, {c}'

class Gap:
    def __init__(self, m):
        self.m = m; self.pre = []; self.mem = []; self.valu = []; self.post = []
    def ops(self):
        return [self.m] + self.pre + self.mem + self.valu + self.post
    def units(self):
        u = 0
        for x in self.mem: u += 2 if x.startswith('buffer') else 0 if x.startswith('s_') else 1
        for x in self.valu: u += 2 if x.startswith(('v_exp', 'v_rcp', 'v_log', 'v_rsq', 'v_permlane')) else 1
        return u

def place(G, ops, lo, hi=None, kind='mem', cap=2):
    g = lo
    for x in ops:
        pre = []
        if isinstance(x, tuple):
            pre, x = list(x[:-1]), x[-1]
        need = 2 if x.startswith(('buffer', 'v_exp', 'v_rcp', 'v_rsq', 'v_log', 'v_permlane')) else 1
        need = min(need, cap)
        while G[g].units() + need > cap:
            g += 1
        if hi is not None:
            assert g <= hi, (x, g, hi)
        if pre:
            if g > 0 and not any(y.startswith('buffer') for y in G[g - 1].mem):
                G[g - 1].pre += pre
            else:
                if ' m0,' in pre[-1]:
                    pre.append('s_nop 0')
                G[g].pre += pre
        getattr(G[g], kind).append(x)
    return g

STAMPS = []
def place_some(G, ops, lo, hi):
    g = lo
    for k, x in enumerate(ops):
        need = 2 if x.startswith(('v_exp', 'v_rcp', 'v_rsq', 'v_log', 'v_permlane')) else 1
        while g <= hi and G[g].units() + need > 2: g += 1
        if g > hi: return list(ops[k:])
        G[g].valu.append(x)
    return []

def stamp_op(name):
    if not OPT.get('stamp') or (OPT.get('only') and name not in OPT['only']):
        return []
    k = len(STAMPS); STAMPS.append(name)
    assert k < 12
    return [f'{"s_memtime" if OPT.get("cyc") else "s_memrealtime"} s[{sST + 2 * k}:{sST + 2 * k + 1}]']
def stamp(a, opt, name):
    for x in stamp_op(name): a(x)

def srd(a, base, lo, hi, nrec, add=None, sub=None):
    if add is not None:
        a(f's_add_u32 s{base}, s{lo}, {add}')
        a(f's_addc_u32 s{base + 1}, s{hi}, 0')
    else:
        a(f's_mov_b32 s{base}, s{lo}')
        a(f's_mov_b32 s{base + 1}, s{hi}')
    if sub is not None:
        a(f's_sub_u32 s{base}, s{base}, {sub}')
        a(f's_subb_u32 s{base + 1}, s{base + 1}, 0')
    a(f's_mov_b32 s{base + 2}, {nrec}')
    a(f's_mov_b32 s{base + 3}, 0x20000')

def setup(a, opt):
    a(f'''
    s_cmp_ge_u32 s2, 256
    s_cbranch_scc1 L_end
    {("s_memtime" if opt.get("cyc") else "s_memrealtime") + " s[98:99]" if opt.get("stamp") else ""}
    s_load_dwordx16 s[64:79], s[0:1], 0
    s_load_dwordx8 s[80:87], s[0:1], 64
    v_lshrrev_b32 v4, 6, v0
    v_and_b32 v1, 63, v0
    v_readfirstlane_b32 {sr(sW)}, v4
    s_and_b32 s3, s2, 7
    s_bfe_u32 s7, s2, 0x20003
    s_lshl_b32 s3, s3, 2
    s_add_u32 {sr(sH)}, s3, s7
    s_lshr_b32 {sr(sQB)}, s2, 5
    s_lshl_b32 {sr(sW4K)}, {sr(sW)}, 12
    s_and_b32 s3, s2, 1
    s_lshl_b32 s3, s3, 3
    s_add_u32 {sr(sRB)}, s3, {sr(sQB)}
    s_bfe_u32 {sr(sCB)}, s2, 0x20003
    {"s_mov_b32 s89, 0" if opt.get("x_rb") else ""}
    {"s_mov_b32 s90, 0" if opt.get("x_cb") else ""}
    v_and_b32 v2, 15, v1                ; r = l&15
    v_lshrrev_b32 v3, 4, v1             ; g = l>>4
    ''')
    if OPT.get('ipf', 1):
        a(f'''
        s_getpc_b64 s[100:101]
        L_pc:
        s_lshr_b32 s3, s2, 3
        s_lshl_b32 s3, s3, 2
        s_add_u32 s3, s3, {sr(sW)}
        s_and_b32 s3, s3, 15
        s_lshl_b32 s3, s3, 13
        s_min_u32 s3, s3, L_codeend-L_pc-8192
        v_lshlrev_b32 v4, 7, v1
        v_add_u32 v4, s3, v4
        global_load_dword v26, v4, s[100:101]
        ''')

def setup_x(a, opt):
    a(f's_lshl_b32 s3, {sr(sQB)}, 18\ns_lshl_b32 s7, {sr(sW)}, 16\ns_add_u32 s3, s3, s7')
    a('s_waitcnt lgkmcnt(0)')
    if opt.get('stamp'): a('v_mov_b32 v0, s98')
    if opt.get('early'): a('s_memrealtime vcc')
    srd(a, SRD_X, 64, 65, 65536, add='s3')

def setup_w(a):
    a(f's_lshl_b32 s3, {sr(sH)}, 8')
    srd(a, SRD_WQ, 70, 71, 511 * 8192 + 256, add='s3')
    a(f's_lshl_b32 s3, {sr(sH)}, 7\ns_cmp_lt_u32 {sr(sH)}, 28\ns_cselect_b32 s3, s3, 0\ns_cselect_b32 s7, {511 * 3584 + 128}, 0')
    srd(a, SRD_WG, 76, 77, 's7', add='s3')
    srd(a, SRD_WU, 78, 79, 's7', add='s3')

def setup_wp(a):
    a('s_cmp_lt_u32 s2, 128\ns_cselect_b32 s72, s72, s80\ns_cselect_b32 s73, s73, s81\ns_and_b32 s3, s2, 127\ns_lshl_b32 s3, s3, 15')
    a('s_cmp_lt_u32 s2, 184\ns_cselect_b32 s3, s3, 0')
    a('s_cselect_b32 s7, 32768, 0\ns_cselect_b32 s74, 0x10000000, 0')
    srd(a, SRD_WO, 72, 73, 's7', add='s3')
    srd(a, SRD_WD, 86, 87, 's74')

def setup2(a, opt):
    a(f's_lshl_b32 s3, {sr(sH)}, 19')
    srd(a, SRD_K, 66, 67, 524288, add='s3')
    srd(a, SRD_V, 68, 69, 524288 + 2048, add='s3', sub=2048)
    srd(a, SRD_WS, 86, 87, 0x10000000)
    srd(a, SRD_OUT, 82, 83, 2097152)
    srd(a, SRD_DBG, 84, 85, 256)
    a('s_mov_b32 s96, s64\ns_mov_b32 s97, s65')

def a_setup_dma_addr(a):
    a(f'''
    s_lshl_b32 s3, {sr(sW)}, 3
    v_add_u32 v4, s3, v3                 ; row = 8w + (l>>4)
    v_lshlrev_b32 v5, 2, v3
    v_xor_b32 v5, v5, v2
    v_lshlrev_b32 v5, 4, v5
    v_lshl_add_u32 {vr(DQ)}, v4, 13, v5
    v_lshrrev_b32 v4, 3, v1              ; rho = l>>3
    v_and_b32 v5, 3, v4
    v_lshrrev_b32 v6, 5, v1
    v_lshl_add_u32 v5, v6, 3, v5
    s_lshr_b32 s3, {sr(sW)}, 1
    s_lshl_b32 s3, s3, 4
    s_and_b32 s7, {sr(sW)}, 1
    s_lshl_b32 s7, s7, 2
    s_add_u32 s3, s3, s7
    v_add_u32 v5, s3, v5                 ; W row
    v_mul_u32_u24 v5, 3584, v5
    v_lshlrev_b32 v6, 1, v3
    v_and_b32 v7, 7, v1
    v_xor_b32 v6, v6, v7
    v_lshl_add_u32 {vr(DG)}, v6, 4, v5
    v_xor_b32 v6, v3, v7
    v_lshlrev_b32 v6, 4, v6
    v_lshl_add_u32 {vr(DX)}, v4, 10, v6
    v_xor_b32 {vr(DX + 1)}, 64, {vr(DX)}
    ''')

def a_dma_x(j_par):
    ops = []
    for i in range(8):
        pre = []
        if i % 4 == 0:
            pre.append(f's_add_u32 m0, {sr(sT3)}, {XBUF + j_par * 32768 + (i // 4) * 4096}')
        pre.append(f's_add_u32 {sr(sT0 + (i & 1))}, {sr(sXO)}, {i * 8192 - 1024 * (i & 3)}')
        ops.append(tuple(pre) + (f'buffer_load_dwordx4 {vr(DX + (i & 1))}, {sr(SRD_X, 4)}, {sr(sT0 + (i & 1))} offen offset:{1024 * (i & 3)} lds',))
    return ops, [f's_add_u32 {sr(sXO)}, {sr(sXO)}, 128', f's_and_b32 {sr(sXO)}, {sr(sXO)}, 1023']

def a_dma_w():
    ops = []
    for ks in range(2):
        ops.append((f's_add_u32 m0, {sr(sWQB)}, {ks * 16384}', f's_add_u32 {sr(sT0)}, {sr(sQO)}, {ks * 32 * 8192}',
                    f'buffer_load_dwordx4 {vr(DQ)}, {sr(SRD_WQ, 4)}, {sr(sT0)} offen lds'))
        ops.append((f's_add_u32 {sr(sT1)}, {sr(sQO)}, {ks * 32 * 8192 + 4 * 8192 - 1024}',
                    f'buffer_load_dwordx4 {vr(DQ)}, {sr(SRD_WQ, 4)}, {sr(sT1)} offen offset:1024 lds'))
        ops.append((f's_add_u32 m0, {sr(sWGB)}, {ks * 16384}', f's_add_u32 {sr(sT0)}, {sr(sGO)}, {ks * 32 * 3584}',
                    f'buffer_load_dwordx4 {vr(DG)}, {sr(SRD_WG, 4)}, {sr(sT0)} offen lds'))
        ops.append((f's_add_u32 m0, m0, 4096',
                    f'buffer_load_dwordx4 {vr(DG)}, {sr(SRD_WU, 4)}, {sr(sT0)} offen lds'))
    adv = [f's_add_u32 {sr(sQO)}, {sr(sQO)}, {64 * 8192}', f's_and_b32 {sr(sQO)}, {sr(sQO)}, 0x3fffff', f's_lshr_b32 {sr(sGO)}, {sr(sQO)}, 13', f's_mul_i32 {sr(sGO)}, {sr(sGO)}, 3584',
           f's_add_u32 {sr(sWB)}, {sr(sWB)}, 1', f's_cmp_eq_u32 {sr(sWB)}, 3', f's_cselect_b32 {sr(sT2)}, -2, 1', f's_cselect_b32 {sr(sWB)}, 0, {sr(sWB)}',
           f's_lshl_b32 {sr(sT2)}, {sr(sT2)}, 15', f's_add_u32 {sr(sWQB)}, {sr(sWQB)}, {sr(sT2)}', f's_add_u32 {sr(sWGB)}, {sr(sWGB)}, {sr(sT2)}']
    return ops, adv

def emit_plain(a, ops):
    for x in ops:
        if isinstance(x, tuple):
            for y in x[:-1]: a(y)
            if ' m0,' in x[-2]: a('s_nop 0')
            a(x[-1])
        else:
            a(x)

def a_setup_read_addr(a):
    a(f'''
    v_bfe_u32 v4, v1, 2, 2               ; r'
    v_and_b32 v5, 3, v1                  ; c'
    v_lshl_add_u32 v6, v3, 3, v4         ; 8g + r'
    v_lshlrev_b32 v6, 8, v6
    v_lshl_add_u32 v6, v4, 6, v6         ; + (r'<<2)*16
    v_lshl_add_u32 v6, v5, {3 if OPT.get('a_noconf') else 4}, v6         ; + c'*16
    {"v_and_b32 v7, 16, v1" if OPT.get('a_noconf') else ""}
    {"v_lshl_add_u32 v6, v7, 1, v6" if OPT.get('a_noconf') else ""}
    v_add_u32 v6, {WBUF}, v6
    ''')
    for sp in range(4):
        a(f'v_xor_b32 {vr(AQ + sp)}, {sp * 64}, v6')
    a(f'''
    v_bfe_u32 v6, v1, 2, 3               ; rho = 4(g&1) + r'
    v_lshrrev_b32 v7, 1, v6              ; key2
    v_lshlrev_b32 v6, 7, v6
    v_lshl_add_u32 v6, v7, 5, v6
    v_lshl_add_u32 v6, v5, 3, v6
    v_lshrrev_b32 v7, 5, v1
    v_lshl_add_u32 v6, v7, 11, v6
    v_add_u32 v6, {WBUF + 8192}, v6
    ''')
    for nb in range(4):
        a(f'v_xor_b32 {vr(AG + nb)}, {nb * 32}, v6')
    a(f's_cmp_eq_u32 {sr(sW)}, 0\ns_cselect_b64 s[98:99], -1, 0\ns_cmp_lt_u32 {sr(sW)}, 2\ns_cselect_b64 s[100:101], -1, 0')
    a(f's_and_b32 s3, {sr(sW)}, 1\ns_lshl_b32 s3, s3, 12')
    for k in range(4):
        a(f'v_cndmask_b32 v4, {vr(AQ + 2 + (k >> 1))}, {vr(AQ + (k >> 1))}, s[98:99]')
        if k & 1:
            a('v_add_u32 v4, 8, v4')
        a(f'v_add_u32 v5, s3, {vr(AG + k)}')
        a(f'v_cndmask_b32 {vr(AC + k)}, v5, v4, s[100:101]')
    a(f'''
    v_lshrrev_b32 v4, 1, v2
    v_xor_b32 v4, v4, v3
    v_lshlrev_b32 v4, 4, v4
    v_lshl_add_u32 v4, v2, 7, v4
    v_add_u32 {vr(AX)}, {sr(sT3)}, v4
    v_xor_b32 {vr(AX + 1)}, 64, {vr(AX)}
    v_mov_b32 v4, 0x3f803f80
    v_and_b32 v5, 3, v1
    v_mov_b32 v6, 0xeeee
    v_and_b32 v7, 4, v1
    v_cmp_eq_u32 vcc, 0, v7
    v_mov_b32 v7, 0x4444
    v_cmp_eq_u32 s[98:99], 0, v5
    v_cndmask_b32 {vr(IDX)}, v6, v7, vcc
    s_nop 0
    ''')
    for k in range(4):
        a(f'v_cndmask_b32 v6, 0, v4, s[98:99]')
        if k < 3: a(f'v_cmp_eq_u32 s[98:99], {k + 1}, v5')
        for i in range(4):
            a(f'v_accvgpr_write_b32 {ar(AK + 4 * k + i)}, v6')

def Xreg(par, c, ks): return XF + par * 32 + c * 8 + ks * 4
def accA(nb, c):
    return vr(ACQ + (nb * 4 + c) * 4, 4) if nb < 8 else ar(AGU + ((nb - 8) * 4 + c) * 4, 4)
ORDER = [16, 17, 18, 19] + list(range(16))
def a_reads(pos):
    grp = ORDER[pos]
    out = []
    for ks in range(2):
        for u in range(2):
            off = ks * 16384 + u * 1024
            if grp < 8:
                ad = AQ + (grp >> 1); off += 8 * (grp & 1)
            elif grp < 16:
                ad = AG + (grp & 3); off += 4096 * ((grp - 8) >> 2)
            else:
                ad = AC + grp - 16
            out.append(f'ds_read_b64_tr_b16 {ar(AR + (pos & 3) * 8 + ks * 4 + 2 * u, 2)}, {vr(ad)} offset:{off}')
    return out
def x_reads(par):
    return [f'ds_read_b128 {vr(Xreg(par, c, ks), 4)}, {vr(AX + ks)} offset:{XBUF + par * 32768 + c * 2048}' for c in range(4) for ks in range(2)]

def a_superstep(par, first, tail, kv_ops=None, name=None, pre_ops=None, pre_adv=None):
    G = []; start = []
    for pos in range(20):
        grp = ORDER[pos]
        start.append(len(G))
        sl = AR + (pos & 3) * 8
        if grp < 16:
            for c in range(4):
                for ks in range(2):
                    d = accA(grp, c)
                    G.append(Gap(mf(d, ar(sl + 4 * ks, 4), vr(Xreg(par, c, ks), 4), '0' if first and ks == 0 else d)))
        else:
            k = grp - 16
            G.append(Gap(f'v_smfmac_f32_16x16x64_bf16 {vr(CSD, 4)}, {ar(AK + 4 * k, 4)}, {ar(sl, 8)}, {vr(IDX)}'))
            G.append(Gap(f'v_smfmac_f32_16x16x64_bf16 {vr(SX, 4)}, {ar(AK + 4 * k, 4)}, {vr(Xreg(par, k, 0), 8)}, {vr(IDX)}'))
            for ks in range(2):
                d = vr(SXX + 4 * k, 4)
                G.append(Gap(mf(d, vr(Xreg(par, k, ks), 4), vr(Xreg(par, k, ks), 4), '0' if first and ks == 0 else d)))
    start.append(len(G))
    def at(g, x, kind='mem'):
        place(G, [x], g, g, kind=kind)
    rp = OPT.get('a_rp', [0, 1, 2, 3])
    for grp in range(18):
        for k, x in zip(rp if grp >= 4 else [0, 0, 1, 2], a_reads(grp + 2)):
            at(start[grp] + k, x)
    dm = []
    if tail == 0:
        wops, wadv = a_dma_w(); xops, xadv = a_dma_x(par)
        if OPT.get('a_now'): wops = []
        if OPT.get('a_nox'): xops = []
        dm = wops + xops
        if pre_ops:
            dm = pre_ops + dm
    if kv_ops:
        dm = kv_ops
    free = [start[p] + (5 if p >= 4 else 3) for p in range(18)]
    if len(dm) > len(free):
        free = [g for p in range(18) for g in ((start[p] + 4, start[p] + 6) if p >= 4 else (start[p] + 3,))]
    pos = free[:len(dm)]
    for g, x in zip(pos, dm):
        if x is not None: at(g, x)
    if tail == 0:
        npre = len(pre_ops) if pre_ops else 0
        if pre_ops:
            for g, adv in pre_adv:
                G[pos[g] + 1].pre += adv
        if wops:
            g = pos[npre + len(wops) - 1]
            G[g + 1].pre += wadv[:4]; G[g + 2].pre += wadv[4:8]; G[g + 3].pre += wadv[8:]
        if xops:
            G[pos[-1] + 1].pre += xadv
    xg = OPT.get('a_xg', 14)
    if tail < 2:
        wg = start[xg] + 3
        npre = len(pre_ops) if pre_ops else 0
        younger = sum(1 for k, g in enumerate(pos) if g < wg and k >= npre and dm[k] is not None)
        assert all(g < wg for g in pos[:npre])
        G[wg].pre.append(f's_waitcnt vmcnt({younger})')
        xr = x_reads(1 - par)
        for k, x in enumerate(xr):
            at(start[xg + k // 4] + 3 + (k % 4) + (1 if G[start[xg + k // 4] + 3 + (k % 4)].units() >= 2 else 0), x) if False else None
        g = wg
        xpos = []
        for x in xr:
            while G[g].units() >= 2 or any(y.startswith('ds_read_b128') for y in G[g].mem): g += 1
            G[g].mem.append(x); xpos.append(g)
        assert xpos[-1] < start[18] - 2, xpos
    if tail == 2:
        w, st, rd = a_stats_ops()
        g = place(G, w[0], start[4] + 5, start[9] + 4, kind='valu')
        place(G, w[1], start[9] + 5, start[10] + 7, cap=1)
        G[start[12] - 1].post += ['s_waitcnt lgkmcnt(4)', 's_barrier']
        place(G, rd, start[14] + 4, start[17] + 7, cap=1)
        rest = place_some(G, st, g, start[20] - 1)
        G[-1].post += ['s_nop 1'] + rest
    seq = [(g, x) for g in range(len(G)) for x in G[g].mem if x.startswith('ds_')]
    for grp in range(2, 20):
        if grp == 18:
            continue
        last = max(k for k, (g, x) in enumerate(seq) if x in a_reads(grp) and start[grp - 2] <= g < start[grp - 1])
        n = sum(1 for k, (g, x) in enumerate(seq) if k > last and g < start[grp] - 1)
        G[start[grp] - 1].pre.append(f's_waitcnt lgkmcnt({min(n, 14)})')
    G[start[1] - 1].pre.append('s_waitcnt lgkmcnt(4)')
    if tail < 2:
        G[start[18] - 1].pre += ['s_waitcnt lgkmcnt(0)', 's_barrier']
        vu = [f'v_add_u32 {vr(AQ + i)}, {sr(sDL)}, {vr(AQ + i)}' for i in range(12)]
        place(G, vu[:4] + vu[8:], start[14], start[17] + 5, kind='valu')
        for k, x in enumerate(a_reads(0)): at(start[18] + k, x)
        for k, x in enumerate(a_reads(1)): at(start[19] + k, x)
        place(G, vu[4:8], start[18], start[19] + 5, kind='valu')
        G[start[20] - 1].pre.append('s_waitcnt lgkmcnt(4)')
        G[start[13] + 1].pre += [f's_add_u32 {sr(sM)}, {sr(sM)}, 1', f's_cmp_eq_u32 {sr(sM)}, 3', f's_cselect_b32 {sr(sDL)}, -2, 1', f's_cselect_b32 {sr(sM)}, 0, {sr(sM)}']
        G[start[13] + 2].pre += [f's_lshl_b32 {sr(sDL)}, {sr(sDL)}, 15']
    else:
        G[start[18] - 1].pre += ['s_waitcnt lgkmcnt(0)']
    if OPT.get('a_nobar'):
        for g in G: g.pre = [x for x in g.pre if x != 's_barrier']
    if OPT.get('a_nowait'):
        for g in G: g.pre = [x for x in g.pre if not x.startswith('s_waitcnt lgkmcnt')]
    if OPT.get('a_novm'):
        for g in G: g.pre = [x for x in g.pre if not x.startswith('s_waitcnt vmcnt')]
    if OPT.get('a_nords'):
        for g in G: g.mem = [x for x in g.mem if not x.startswith('ds_read_b64')]
    if name:
        so = stamp_op(name)
        if so:
            G[start[18] - 1].post += so
            G[start[19] - 1].pre.append('s_waitcnt lgkmcnt(0)')
    return G

WPA = [240, 241, 242, 243, 252, 253, 254, 255]
def wp_addr0():
    return ['v_lshlrev_b32 v4, 1, v3', 'v_xor_b32 v4, v4, v2', 'v_lshlrev_b32 v4, 4, v4', 'v_lshl_add_u32 v4, v3, 10, v4', 'v_xor_b32 v5, 128, v4']
def wp_dma():
    ops = []
    for i in range(8):
        pre = []
        if i == 0: pre += [f's_lshl_b32 {sr(sT2)}, {sr(sW)}, 8']
        pre += [f's_add_u32 m0, {sr(sT3)}, {131072 + i * 1024}', f's_add_u32 {sr(sT0)}, {sr(sT2)}, {i * 4096}']
        ops.append(tuple(pre) + (f'buffer_load_dwordx4 v{4 + (i & 1)}, {sr(SRD_WO, 4)}, {sr(sT0)} offen lds',))
    return ops
def wp_addr1():
    t0, t1 = WPA[0], WPA[1]
    ops = [f'v_lshrrev_b32 {vr(t0)}, 2, v1', f'v_and_b32 {vr(t1)}, 7, {vr(t0)}', f'v_lshlrev_b32 {vr(t0)}, 8, {vr(t0)}', f'v_lshl_add_u32 {vr(t0)}, {vr(t1)}, 5, {vr(t0)}',
           f'v_and_b32 {vr(t1)}, 3, v1', f'v_lshl_add_u32 {vr(t0)}, {vr(t1)}, 3, {vr(t0)}', f'v_add_u32 {vr(t0)}, {sr(sT3)}, {vr(t0)}', f'v_add_u32 {vr(t0)}, 131072, {vr(t0)}']
    ops += [f'v_xor_b32 {vr(WPA[db])}, {db * 32}, {vr(t0)}' for db in range(1, 8)]
    return ops
def wp_reads():
    return [f'ds_read_b64_tr_b16 {ar(WPR + db * 4 + 2 * u, 2)}, {vr(WPA[db])} offset:{u * 4096}' for db in range(8) for u in range(2)]
def wp_stores():
    st = []
    for db in range(8):
        st.append(f'buffer_store_dwordx4 {ar(WPR + db * 4, 4)}, {vr(CL16)}, {sr(SRD_WD, 4)}, {"s3" if db < 4 else "s7"} offen offset:{1024 * (db & 3)} sc1')
    sc = ['s_sub_u32 s3, s2, 128', 's_add_u32 s7, s2, 56', 's_cmp_lt_u32 s2, 128', 's_cselect_b32 s3, s7, s3', 's_lshl_b32 s3, s3, 12',
          f's_mul_i32 s7, {sr(sW)}, {2 * WFS}', 's_add_u32 s3, s3, s7', f's_add_u32 s3, s3, {WS_WF}', f's_add_u32 s7, s3, {WFS}']
    return sc, st

def wp_store_ops():
    sc, st = wp_stores()
    out = []
    for k, x in enumerate(st):
        out += [tuple(sc) + (x,) if k == 0 else x, None]
    return out

def warmup(a):
    if OPT.get('pad', 4096):
        nch = OPT.get('nchain', 4)
        a('s_mov_b64 exec, 0')
        for w in range(nch - 1):
            a(f's_cmp_eq_u32 {sr(sW)}, {w}\ns_cbranch_scc1 L_pad{w}')
        a(f's_branch L_pad{nch - 1}')
        a.raw('.p2align 12')
        a.label('L_warmdone')
        a.label('L_warmret')
        a('s_mov_b64 exec, -1')

def phase_a(a, opt):
    a(f's_lshl_b32 {sr(sT3)}, {sr(sW)}, 13')
    a_setup_dma_addr(a)
    a(f's_and_b32 s3, s2, {7 if OPT.get("arot", 0) else 0}\ns_lshl_b32 {sr(sXO)}, s3, 7\ns_lshl_b32 {sr(sQO)}, s3, 19\ns_mul_i32 {sr(sGO)}, s3, {64 * 3584}\ns_mov_b32 {sr(sWB)}, 0\ns_mov_b32 {sr(sM)}, 0')
    a(f's_lshl_b32 {sr(sWQB)}, {sr(sW)}, 11\ns_add_u32 {sr(sWQB)}, {sr(sWQB)}, {WBUF}\ns_lshl_b32 {sr(sWGB)}, {sr(sW)}, 10\ns_add_u32 {sr(sWGB)}, {sr(sWGB)}, {WBUF + 8192}')
    xops, xadv = a_dma_x(0); wops, wadv = a_dma_w()
    setup_x(a, opt)
    emit_plain(a, xops); emit_plain(a, xadv)
    setup_w(a)
    emit_plain(a, wops); emit_plain(a, wadv)
    if opt.get('early'): a('s_memrealtime s[98:99]')
    wm = OPT.get('warmpos', 1)
    if wm == 1: warmup(a)
    xops, xadv = a_dma_x(1); wops, wadv = a_dma_w()
    b = A()
    for i in range(ACQ, ACQ + 4): b(f'v_mov_b32 {vr(i)}, 0')
    setup2(b, opt); setup_wp(b)
    if opt.get('early'):
        b('s_waitcnt lgkmcnt(0)')
        for nm, r in (('karg', 'vcc_lo'), ('i16', 's98')):
            b(f's_mov_b32 s{sST + 2 * len(STAMPS)}, {r}'); STAMPS.append(nm)
    a_setup_read_addr(b); b_setup_dma_addr(b)
    for i in range(ACQ + 4, 256):
        b(f'v_mov_b32 {vr(i)}, 0')
        if (i - ACQ) % 16 == 8 and (i - ACQ) // 16 < 8:
            b(f'v_mfma_f32_32x32x16_bf16 {ar(AGU + 16 * ((i - ACQ) // 16), 16)}, {vr(ACQ, 4)}, {vr(ACQ, 4)}, 0')
    fill = [l.strip() for l in b.lines]
    per = len(fill) // 15 + 1
    k0 = 0
    for k, x in enumerate(xops + wops):
        emit_plain(a, [x])
        if k == 7: emit_plain(a, xadv)
        k1 = min(len(fill), k0 + per)
        while k1 < len(fill) and fill[k1].startswith(('s_addc', 's_subb', 's_cselect')): k1 += 1
        for y in fill[k0:k1]: a(y)
        k0 = k1
    assert k0 == len(fill)
    emit_plain(a, wadv)
    ntouch = 0
    stamp(a, opt, 'issued')
    a(f'''
    s_lshl_b32 s3, {sr(sQB)}, 2
    s_add_u32 s3, s3, {sr(sW)}
    s_lshl_b32 s3, s3, 5
    s_add_u32 s3, s3, {sr(sH)}
    s_lshl_b32 s3, s3, 2
    s_add_u32 s94, s3, {WS_FLAG}
    v_mov_b32 v4, 0
    s_mov_b64 exec, 1
    buffer_store_dword v4, v4, {sr(SRD_WS, 4)}, s94 offen sc1
    {TW('s3')}
    s_lshl_b32 s3, s3, 4
    s_bfe_u32 s7, s2, 0x20001
    s_add_u32 s3, s3, s7
    s_lshl_b32 s3, s3, 2
    s_add_u32 s3, s3, {WS_FF}
    buffer_store_dword v4, v4, {sr(SRD_WS, 4)}, s3 offen sc1
    buffer_store_dword v4, v4, {sr(SRD_WS, 4)}, s3 offen offset:16 sc1
    s_mov_b64 exec, -1
    ''')
    if wm == 2: warmup(a)
    a(f's_waitcnt vmcnt({19 + ntouch})')
    for x in x_reads(0): a(x)
    a('s_waitcnt lgkmcnt(0)\ns_barrier')
    for x in a_reads(0) + a_reads(1): a(x)
    stamp(a, opt, 'A0')
    a('s_waitcnt lgkmcnt(0)' if opt.get('stamp') else 's_waitcnt lgkmcnt(4)')
    a.raw('.p2align 3')
    a(f's_mov_b32 {sr(sCNT)}, 3')
    a.raw('.p2align 3')
    a.label('L_a')
    G = a_superstep(0, False, 0, name='a4') + a_superstep(1, False, 0, name='a5')
    G[-4].pre.append(f's_sub_u32 {sr(sCNT)}, {sr(sCNT)}, 1')
    G[-2].pre.append(f's_cmp_lg_u32 {sr(sCNT)}, 0')
    G[-1].post.append('s_cbranch_scc1 L_a')
    emit_gaps(a, [g.ops() for g in G])
    a.raw('.p2align 3')
    emit_gaps(a, [g.ops() for g in a_superstep(0, False, 1, name='a6', kv_ops=b_prologue_dma()[:12]) + a_superstep(1, False, 2, kv_ops=b_prologue_dma()[12:])])
    stamp(a, opt, 'Aend')
    a_epilogue(a, opt)

def NMEAN(c): return SX + c
def ALPHA(c): return STT + c
def RS2(c): return STT + 4 + c
CSQ = 32; CSG = 160; HP = 192; ZQ = 240
def a_stats_ops():
    w0 = ['v_lshlrev_b32 v4, 4, v3', f'v_add_u32 v4, {CSBUF}, v4', 'v_lshlrev_b32 v5, 2, v2', f'v_lshl_add_u32 v5, {sr(sW)}, 8, v5', f'v_add_u32 v5, {CSBUF}, v5']
    w0 += [f'v_mov_b32 {vr(STT + k)}, {vr(CSD + k)}' for k in range(4)]
    w0 += [f'v_permlane16_swap_b32 {vr(CSD + k)}, {vr(STT + k)}' for k in range(4)]
    w0 += [f'v_add_f32 {vr(CSD + k)}, {vr(CSD + k)}, {vr(STT + k)}' for k in range(4)]
    w1 = [f'ds_write_b32 v5, {vr(CSD + k)} offset:{64 * k}' for k in range(4)]
    st = ['v_and_b32 v6, 3, v1', 'v_cmp_eq_u32 s[98:99], 1, v6', 'v_cmp_eq_u32 s[100:101], 2, v6', 'v_cmp_eq_u32 vcc, 3, v6',
          'v_lshrrev_b32 v6, 2, v2', 'v_cmp_eq_u32 s[92:93], v6, v3']
    st += [f'v_mov_b32 {vr(STT + 4 + k)}, {vr(SX + k)}' for k in range(4)]
    st += [f'v_permlane16_swap_b32 {vr(SX + k)}, {vr(STT + 4 + k)}' for k in range(4)]
    st += [f'v_add_f32 {vr(SX + k)}, {vr(SX + k)}, {vr(STT + 4 + k)}' for k in range(4)]
    for c in range(4):
        st.append(f'v_mul_f32 {vr(NMEAN(c))}, {f2u(-1 / 512)}, {vr(SX + c)}')
    for k, m in ((1, 's[98:99]'), (2, 's[100:101]'), (3, 'vcc')):
        for c in range(4):
            b = SXX + 4 * c
            st.append(f'v_cndmask_b32 {vr(b)}, {vr(b)}, {vr(b + k)}, {m}')
    for c in range(4):
        st.append(f'v_cndmask_b32 {vr(SXX + 4 * c)}, 0, {vr(SXX + 4 * c)}, s[92:93]')
    for sw in ('v_permlane32_swap_b32', 'v_permlane16_swap_b32'):
        for c in range(4): st.append(f'v_mov_b32 {vr(SXX + 4 * c + 1)}, {vr(SXX + 4 * c)}')
        for c in range(4): st.append(f'{sw} {vr(SXX + 4 * c)}, {vr(SXX + 4 * c + 1)}')
        for c in range(4): st.append(f'v_add_f32 {vr(SXX + 4 * c)}, {vr(SXX + 4 * c)}, {vr(SXX + 4 * c + 1)}')
    sc = (128 ** -0.5) * math.log2(math.e)
    for c in range(4): st.append(f'v_mul_f32 {vr(SXX + 4 * c)}, {f2u(1 / 512)}, {vr(SXX + 4 * c)}')
    for c in range(4): st.append(f'v_fma_f32 {vr(SXX + 4 * c)}, -{vr(NMEAN(c))}, {vr(NMEAN(c))}, {vr(SXX + 4 * c)}')
    for c in range(4): st.append(f'v_max_f32 {vr(SXX + 4 * c)}, 0, {vr(SXX + 4 * c)}')
    for c in range(4): st.append(f'v_add_f32 {vr(SXX + 4 * c)}, {f2u(1e-5)}, {vr(SXX + 4 * c)}')
    for c in range(4): st.append(f'v_rsq_f32 {vr(ALPHA(c))}, {vr(SXX + 4 * c)}')
    for c in range(4): st.append(f'v_rcp_f32 {vr(RS2(c))}, {vr(SXX + 4 * c)}')
    for c in range(4): st.append(f'v_mul_f32 {vr(ALPHA(c))}, {f2u(sc)}, {vr(ALPHA(c))}')
    for i in range(4): st.append(f'v_mov_b32 {vr(ZQ + i)}, 0')
    rd = [f'ds_read_b128 {vr(CSQ + 4 * nb, 4)}, v4 offset:{64 * nb}' for nb in range(8)]
    return (w0, w1), st, rd

def bc(r):
    return vr(r & ~1, 2), (r & 1)

def a_epilogue(a, opt):
    for c in range(4):
        nm, nh = bc(NMEAN(c))
        for nb in range(8):
            b = ACQ + (nb * 4 + c) * 4
            for i in (0, 2):
                a(f'v_pk_fma_f32 {vr(b + i, 2)}, {vr(CSQ + 4 * nb + i, 2)}, {nm}, {vr(b + i, 2)} op_sel:[0,{nh},0] op_sel_hi:[1,{nh},1]')
    for c in range(4):
        al, ah = bc(ALPHA(c))
        for nb in range(8):
            b = ACQ + (nb * 4 + c) * 4
            for i in (0, 2):
                a(f'v_pk_mul_f32 {vr(b + i, 2)}, {vr(b + i, 2)}, {al} op_sel:[0,{ah}] op_sel_hi:[1,{ah}]')
            for i in (0, 2):
                a(f'v_cvt_pk_bf16_f32 {vr(Q + 16 * c + 2 * nb + (i >> 1))}, {vr(b + i)}, {vr(b + i + 1)}')
    stamp(a, opt, 'e_q')
    for nb in range(8):
        a(f'ds_read_b128 {vr(CSG + 4 * nb, 4)}, v4 offset:{64 * (8 + nb)}')

def h_epilogue(a, mfmas, vmem):
    mfmas = list(mfmas)
    for c in range(4):
        nm, nh = bc(NMEAN(c)); rs, rh = bc(RS2(c))
        tg = 128; tu = 144
        emit_plain(a, vmem[c:c + 1])
        for k in range(16):
            if k % 2 == 0: a(mfmas.pop(0))
            a(f'v_accvgpr_read_b32 {vr(tg + k)}, {ar(AGU + ((k >> 2) * 4 + c) * 4 + (k & 3))}')
            a(f'v_accvgpr_read_b32 {vr(tu + k)}, {ar(AGU + (((k >> 2) + 4) * 4 + c) * 4 + (k & 3))}')
        for k in range(0, 16, 2):
            a(f'v_pk_fma_f32 {vr(tg + k, 2)}, {vr(CSG + k, 2)}, {nm}, {vr(tg + k, 2)} op_sel:[0,{nh},0] op_sel_hi:[1,{nh},1]')
        for k in range(0, 16, 2):
            a(f'v_pk_fma_f32 {vr(tu + k, 2)}, {vr(CSG + 16 + k, 2)}, {nm}, {vr(tu + k, 2)} op_sel:[0,{nh},0] op_sel_hi:[1,{nh},1]')
        for k in range(0, 16, 2):
            a(f'v_pk_mul_f32 {vr(tg + k, 2)}, {vr(tg + k, 2)}, {rs} op_sel:[0,{rh}] op_sel_hi:[1,{rh}]')
        for k in range(0, 16, 2):
            a(f'v_pk_mul_f32 {vr(tg + k, 2)}, {vr(tg + k, 2)}, {vr(tu + k, 2)}')
        for k in range(8):
            a(f'v_cvt_pk_bf16_f32 {vr(tu + k)}, {vr(tg + 2 * k)}, {vr(tg + 2 * k + 1)}')
        for k in range(8):
            a(f'v_accvgpr_write_b32 {ar(HP + c * 8 + k)}, {vr(tu + k)}')
    assert not mfmas

def Sreg(buf, c, kb=0): return S + buf * 32 + c * 8 + kb * 4
def Qreg(c, s): return Q + c * 16 + s * 4
def Preg(c, par): return (PA + par * 8 + c * 4) if c < 2 else PB + (c - 2) * 4
def Oreg(c, db): return O + c * 32 + db * 4
def LMreg(hf): return LM + hf * 4
def LOLD(hf): return LM + 8 + hf
SELA = 24; HL = 33; SL = 66
def qk_mfma(buf, c, kb, s, c0=None):
    d = vr(Sreg(buf, c, kb), 4)
    cc = d if s else (c0 if c0 is not None else vr(NM + 4 * c, 4))
    return mf(d, ar(KF + 4 * (kb * 4 + s), 4), vr(Qreg(c, s), 4), cc)
def pv_mfma(c, par, db, c0=None):
    d = ar(Oreg(c, db), 4)
    return mf(d, ar(VF + db * 4, 4), vr(Preg(c, par), 4), d if c0 is None else c0)
def sum_mfma(hf, par):
    return f'v_smfmac_f32_16x16x64_bf16 {vr(LMreg(hf), 4)}, {vr(SELA, 4)}, {vr(Preg(2 * hf, par), 8)}, {vr(SIDX)}'
def k_read(slot, kb, s, base=None):
    if base is not None:
        return f'ds_read_b128 {ar(KF + 4 * (kb * 4 + s), 4)}, {vr(base + s)} offset:{slot * STAGE + kb * 8192}'
    return f'ds_read_b128 {ar(KF + 4 * (kb * 4 + s), 4)}, {vr(KA + 4 * (slot >> 2) + s)} offset:{(slot & 3) * STAGE + kb * 8192}'
def v_read(slot, db, u):
    return f'ds_read_b64_tr_b16 {ar(VF + db * 4 + 2 * u, 2)}, {vr((VAB if slot >= 4 else VAA) + db)} offset:{(slot & 3) * STAGE + u * 8192 + 2048}'
def dma_k(i):
    return f'buffer_load_dwordx4 {vr(DK0 + i)}, {sr(SRD_K, 4)}, {sr(sOK)} offen offset:{1024 * i}{OPT.get("kvsc", "")} lds'
def dma_v(i):
    return f'buffer_load_dwordx4 {vr(DV0 + i)}, {sr(SRD_V, 4)}, {sr(sOV)} offen offset:{2048 + 1024 * i}{OPT.get("kvsc", "")} lds'
def stage_dma(slot, k=True, v=True):
    ops = []
    pre = (f's_add_u32 m0, {sr(sW4K)}, {slot * STAGE}',)
    if k:
        ops += [pre + (f's_add_u32 {sr(sOK)}, {sr(sOK)}, 8192', f's_and_b32 {sr(sOK)}, {sr(sOK)}, 0x7ffff', dma_k(0)), dma_k(1)]; pre = ()
    if v:
        ops += [pre + (f's_add_u32 {sr(sOV)}, {sr(sOV)}, 8192', f's_and_b32 {sr(sOV)}, {sr(sOV)}, 0x7ffff', dma_v(0)), dma_v(1)]
    return ops

def b_setup_dma_addr(a):
    a(f'''
    s_lshl_b32 s3, {sr(sW)}, 3
    v_add_u32 v5, s3, v3          ; row = 8w + (l>>4)
    v_and_b32 v7, 15, v5
    v_xor_b32 v7, v7, v2
    v_lshlrev_b32 v7, 4, v7
    v_lshl_add_u32 {vr(DK0)}, v5, 8, v7
    v_xor_b32 {vr(DK1)}, 64, {vr(DK0)}
    v_lshlrev_b32 v7, 1, v3
    v_xor_b32 v7, v7, v2
    v_lshlrev_b32 v7, 4, v7
    v_lshl_add_u32 {vr(DV0)}, v5, 8, v7
    v_xor_b32 {vr(DV1)}, 128, {vr(DV0)}
    s_mul_i32 {sr(sOK)}, {sr(sH)}, {OPT.get('kvrot', 0)}
    s_sub_u32 {sr(sOK)}, {sr(sOK)}, 8192
    s_mov_b32 {sr(sOV)}, {sr(sOK)}
    ''')

def b_prologue_dma():
    ops = stage_dma(8, v=False) + stage_dma(9, v=False)
    for sl in range(5):
        ops += stage_dma(sl)
    return ops

def b_prologue_dma2():
    return stage_dma(5)

def b_setup_read_addr(a):
    a(f'''
    v_lshrrev_b32 v4, 3, v2
    v_lshlrev_b32 v4, 12, v4      ; (r>>3)*4096
    v_and_b32 v5, 7, v2
    v_lshl_add_u32 v4, v5, 8, v4  ; + (r&7)*256
    v_xor_b32 v5, v2, v3
    v_lshl_add_u32 v4, v5, 4, v4  ; + (r^g)*16
    ''')
    for s in range(4):
        a(f'v_xor_b32 {vr(KA + s)}, {s * 64}, v4')
        a(f'v_add_u32 {vr(KA + 4 + s)}, 65536, {vr(KA + s)}')
        a(f'v_add_u32 {vr(ST + 8 + s)}, 131072, {vr(KA + s)}')
    a(f'''
    v_bfe_u32 v4, v1, 2, 3        ; row&7
    v_lshlrev_b32 v5, 8, v4
    v_lshl_add_u32 v5, v4, 5, v5
    v_lshrrev_b32 v6, 5, v1
    v_lshl_add_u32 v5, v6, 12, v5
    v_and_b32 v6, 3, v1
    v_lshl_add_u32 v5, v6, 3, v5
    ''')
    for db in range(8):
        a(f'v_xor_b32 {vr(VAA + db)}, {db * 32}, v5')
        a(f'v_add_u32 {vr(VAB + db)}, 65536, {vr(VAA + db)}')
    a(f'''
    v_mov_b32 {vr(THR)}, 0x4e800000      ; 2^30
    v_mov_b32 {vr(SIDX)}, {vr(IDX)}
    v_lshrrev_b32 v4, 3, v2
    v_lshrrev_b32 v5, 5, v1
    v_and_b32 v6, 3, v1
    v_lshl_add_u32 v4, v6, 1, v4
    v_cmp_eq_u32 vcc, v4, v5
    v_mov_b32 v4, 0x3f803f80
    s_nop 0
    v_cndmask_b32 v5, 0, v4, vcc
    ''')
    for i in range(4):
        a(f'v_mov_b32 {vr(SELA + i)}, v5')
    a(f'v_lshlrev_b32 {vr(CL16)}, 4, v1')

def xlane(a, op, dst, t2):
    for sw in ('v_permlane32_swap_b32', 'v_permlane16_swap_b32'):
        a(f'v_mov_b32 {vr(t2)}, {vr(dst)}')
        a('s_nop 1')
        a(f'{sw} {vr(dst)}, {vr(t2)}')
        a(f'{op} {vr(dst)}, {vr(dst)}, {vr(t2)}')

def rowmax(a, base, dst, t2):
    a(f'v_max3_f32 {vr(dst)}, {vr(base)}, {vr(base + 1)}, {vr(base + 2)}')
    a(f'v_max3_f32 {vr(dst)}, {vr(dst)}, {vr(base + 3)}, {vr(base + 4)}')
    a(f'v_max3_f32 {vr(dst)}, {vr(dst)}, {vr(base + 5)}, {vr(base + 6)}')
    a(f'v_max_f32 {vr(dst)}, {vr(dst)}, {vr(base + 7)}')
    xlane(a, 'v_max_f32', dst, t2)

def softmax_c(a, sbase, pbase, tb):
    for r in range(4):
        a(f'v_exp_f32 {vr(tb)}, {vr(sbase + 2 * r)}')
        a(f'v_exp_f32 {vr(tb + 1)}, {vr(sbase + 2 * r + 1)}')
        a('s_nop 0')
        a(f'v_cvt_pk_bf16_f32 {vr(pbase + r)}, {vr(tb)}, {vr(tb + 1)}')

def b_prologue(a, opt):
    b_setup_read_addr(a)
    a('s_waitcnt vmcnt(0) lgkmcnt(0)')
    stamp(a, opt, 'e_h')
    a('s_barrier')
    for kb in range(2):
        for s in range(4):
            a(k_read(0, kb, s, base=ST + 8))
    a(f'''
    s_lshl_b32 s3, {sr(sQB)}, 4
    s_lshl_b32 s7, {sr(sW)}, 2
    s_add_u32 s3, s3, s7
    s_mul_i32 s3, s3, {HST()}
    s_lshl_b32 s7, {sr(sH)}, 11
    s_add_u32 s3, s3, s7
    s_add_u32 {sr(sHO)}, s3, {WS_H}
    s_mov_b32 s{SRD_WG}, s{SRD_WS}
    s_mov_b32 s{SRD_WG + 1}, s{SRD_WS + 1}
    s_cmp_lt_u32 {sr(sH)}, 28
    s_cselect_b32 s{SRD_WG + 2}, 0x10000000, 0
    s_mov_b32 s{SRD_WU}, s{SRD_DBG}
    s_mov_b32 s{SRD_WU + 1}, s{SRD_DBG + 1}
    s_mov_b32 s{SRD_WU + 2}, 0
    s_cmp_eq_u32 {sr(sW)}, 0
    s_cselect_b32 {sr(sXO)}, 4, 64
    v_mov_b32 {vr(ONEV)}, 1
    {TW('s54')}
    s_lshl_b32 s3, s54, 2
    s_bfe_u32 s7, s2, 0x20001
    s_add_u32 s3, s3, s7
    s_mul_i32 s3, s3, 12288
    s_add_u32 s92, s3, {WS_XF}
    s_add_u32 s93, s92, 4096
    s_add_u32 s62, s92, 8192
    s_waitcnt lgkmcnt(0)
    ''')
    h_epilogue(a, [qk_mfma(0, c, kb, s, c0='0') for c in range(4) for kb in range(2) for s in range(4)], b_prologue_dma2())
    stamp(a, opt, 'e_h2')
    for kb in range(2):
        for s in range(4):
            a(k_read(1, kb, s, base=ST + 8))
    for i in range(10):
        a(f'v_mov_b32 {vr(LM + i)}, 0')
    zm = [f'v_mfma_f32_32x32x16_bf16 {ar(O + 16 * i, 16)}, {vr(ZQ, 4)}, {vr(ZQ, 4)}, 0' for i in range(8)]
    m = [ST + c for c in range(4)]; t2 = [ST + 4 + c for c in range(4)]
    for k in range(4):
        a(zm.pop())
        for c in range(4):
            b = Sreg(0, c)
            a([f'v_max3_f32 {vr(m[c])}, {vr(b)}, {vr(b + 1)}, {vr(b + 2)}', f'v_max3_f32 {vr(m[c])}, {vr(m[c])}, {vr(b + 3)}, {vr(b + 4)}',
               f'v_max3_f32 {vr(m[c])}, {vr(m[c])}, {vr(b + 5)}, {vr(b + 6)}', f'v_max_f32 {vr(m[c])}, {vr(m[c])}, {vr(b + 7)}'][k])
    for sw in ('v_permlane32_swap_b32', 'v_permlane16_swap_b32'):
        for c in range(4): a(f'v_mov_b32 {vr(t2[c])}, {vr(m[c])}')
        a(zm.pop())
        for c in range(4): a(f'{sw} {vr(m[c])}, {vr(t2[c])}')
        a(zm.pop())
        for c in range(4): a(f'v_max_f32 {vr(m[c])}, {vr(m[c])}, {vr(t2[c])}')
    for c in range(4):
        for i in range(8):
            a(f'v_sub_f32 {vr(Sreg(0, c) + i)}, {vr(Sreg(0, c) + i)}, {vr(m[c])}')
        for i in range(4):
            a(f'v_sub_f32 {vr(NM + 4 * c + i)}, 0, {vr(m[c])}')
    for e in range(16):
        a(f'v_exp_f32 {vr(128 + e)}, {vr(Sreg(0, 0) + e)}')
    for r in range(8):
        a(f'v_cvt_pk_bf16_f32 {vr(Preg(0, 0) + r)}, {vr(128 + 2 * r)}, {vr(129 + 2 * r)}')
    a('s_waitcnt lgkmcnt(0)')

BIG = [25, 29, 32, 38, 46, 50, 54, 58, 62]
def step_gaps(slot, tag, opt, dma=True, final=False, extra=None, vm=0, nobar=False):
    p = slot & 1
    qk = [qk_mfma(1 - p, c, kb, s) for c in range(4) for kb in range(2) for s in range(4)]
    pv = [pv_mfma(c, p, db) for c in range(4) for db in range(8)]
    mfs = qk[:4] + [sum_mfma(0, p)] + qk[4:] + pv[:4] + [sum_mfma(1, p)] + pv[4:]
    G = [Gap(m) for m in mfs]
    for hf, g0 in ((1, 0), (0, HL)):
        if final and hf == 0:
            continue
        for e in range(16):
            c = 2 * hf + (e >> 3)
            src = (Sreg(p, 2) if hf else Sreg(1 - p, 0)) + e
            G[g0 + 2 * e].valu.append(f'v_exp_f32 {vr(TMP + (e & 3))}, {vr(src)}')
            if e & 1:
                G[g0 + 2 * e + 1].valu.append(f'v_cvt_pk_bf16_f32 {vr(Preg(c, 1 - p) + ((e & 7) >> 1))}, {vr(TMP + ((e - 1) & 3))}, {vr(TMP + (e & 3))}')
    for hf, g0 in ((0, 0), (1, HL)):
        late = final and hf == 1
        G[g0 + (13 if late else 9)].valu.append(f'v_cmp_nle_f32 vcc, {vr(LMreg(hf))}, {vr(THR)}')
        G[g0 + (16 if late else 15)].post += [f's_cbranch_vccnz L_slow{hf}_{tag}', f'L_back{hf}_{tag}:']
        if not final:
            G[g0 + 27].valu.append(f'v_mov_b32 {vr(LOLD(hf))}, {vr(LMreg(hf))}')
    vplace = [1, 1, 3, 5, 5, 7, 9, 11, 13, 13, 17, 17, 19, 21, 21, 23]
    kplace = [HL + x for x in (1, 1, 3, 7, 9, 11, 19, 23)]
    for g, x in zip(vplace, [v_read(slot, db, u) for db in range(8) for u in range(2)]):
        G[g].mem.append(x)
    if not final:
        for g, x in zip(kplace, [k_read(slot, kb, s) for kb in range(2) for s in range(4)]):
            G[g].mem.append(x)
    G[HL - 1].pre.append('s_waitcnt lgkmcnt(0)')
    ops = []
    if dma:
        ops = [None] * 4 + stage_dma((slot + 6) & 7)
    if extra:
        ops = extra
    for g, x in zip(BIG if not final else [25, 29, 33, 38, 42, 47, 52, 56, 60, 64], ops):
        if x is not None:
            place(G, [x], g, g)
    if slot & 1 and not nobar:
        G[SL - 1].pre += [f's_waitcnt vmcnt({vm}) lgkmcnt(0)', 's_barrier'] if not final else []
    else:
        G[SL - 1].pre.append('s_waitcnt lgkmcnt(0)')
    if final:
        for g in G:
            if g.m in qk:
                g.m = 's_nop 0'
    return G

def gapops(G):
    return [[x for x in g.ops() if x is not None] for g in G]

def slow_path(a, p, hf, final=False):
    a.label(f'L_slowfn{hf}_{p}_{int(final)}')
    a('s_nop 15')
    a(f'v_mov_b32 {vr(ST + 8)}, {vr(LOLD(hf))}\nv_mov_b32 {vr(ST + 9)}, {vr(LOLD(hf))}\ns_nop 1\nv_permlane16_swap_b32 {vr(ST + 8)}, {vr(ST + 9)}\nv_add_f32 {vr(ST + 8)}, {vr(ST + 8)}, {vr(ST + 9)}')
    for c in (2 * hf, 2 * hf + 1):
        cur = Sreg(p, c); nxt = Sreg(1 - p, c)
        d = ST + 4 + (c & 1); al = ST + 6 + (c & 1)
        rowmax(a, cur, d, ST + 1)
        a(f'v_max_f32 {vr(d)}, 0, {vr(d)}')
        a(f'v_mov_b32 {vr(ST)}, {vr(ST + 8)}')
        a(f'v_mov_b32 {vr(ST + 1)}, {vr(ST + 8)}')
        a('s_nop 1')
        a(f'v_permlane32_swap_b32 {vr(ST)}, {vr(ST + 1)}')
        a(f'v_log_f32 {vr(ST)}, {vr(ST + (c & 1))}')
        a('s_nop 0')
        a(f'v_max_f32 {vr(d)}, {vr(d)}, {vr(ST)}')
        a(f'v_sub_f32 {vr(al)}, 0, {vr(d)}')
        a(f'v_exp_f32 {vr(al)}, {vr(al)}')
        for i in range(8):
            a(f'v_sub_f32 {vr(cur + i)}, {vr(cur + i)}, {vr(d)}')
        if not final:
            for i in range(8):
                a(f'v_sub_f32 {vr(nxt + i)}, {vr(nxt + i)}, {vr(d)}')
        for i in range(4):
            a(f'v_sub_f32 {vr(NM + 4 * c + i)}, {vr(NM + 4 * c + i)}, {vr(d)}')
        for i in range(32):
            a(f'v_accvgpr_read_b32 {vr(ST + 2)}, {ar(Oreg(c, 0) + i)}')
            a(f'v_mul_f32 {vr(ST + 2)}, {vr(ST + 2)}, {vr(al)}')
            a(f'v_accvgpr_write_b32 {ar(Oreg(c, 0) + i)}, {vr(ST + 2)}')
        softmax_c(a, cur, Preg(c, p), ST + 2)
    a(f'v_cmp_gt_u32 vcc, 32, {vr(LANE)}')
    a('s_nop 1')
    a(f'v_cndmask_b32 {vr(ST)}, {vr(ST + 7)}, {vr(ST + 6)}, vcc')
    a(f'v_mul_f32 {vr(LMreg(hf))}, {vr(LOLD(hf))}, {vr(ST)}')
    a('s_nop 1')
    a(sum_mfma(hf, p))
    a('s_nop 7')
    a('s_setpc_b64 s[98:99]')

SLOW = []; PFX = []
def is_vm(x): return x.startswith(('buffer_', 'global_'))
def vm_between(G, g0, g1):
    return sum(1 for g in G[g0:g1] for x in g.mem if is_vm(x))

def trace_ops(G, lane, n=8):
    for sl in range(n):
        G[sl * SL + 0].pre += ['s_memtime s[100:101]'] + lane(sl)
        G[sl * SL + 56].valu += ['v_cmp_eq_u32 vcc, s95, v1']
        G[sl * SL + 60].valu += ['v_mov_b32 v222, s100']
        G[sl * SL + 64].valu += ['v_cndmask_b32 v221, v221, v222, vcc']

def first_pass(a, opt):
    G = []
    for st in range(16):
        G += step_gaps(st & 7, f'f{st}', opt, vm='VM'); SLOW.append((st & 1, f'f{st}', False))
    def at(st, g, x): place(G, [x], st * SL + g, st * SL + g)
    h0 = OPT.get('h0', 8)
    for k in range(8):
        x = f'buffer_store_dwordx4 {ar(HP + 4 * k, 4)}, {vr(CL16)}, {sr(SRD_WG, 4)}, {sr(sHO)} offen offset:{1024 * (k & 1)} sc1'
        if k in (2, 4, 6): x = (f's_add_u32 {sr(sHO)}, {sr(sHO)}, {HST()}', x)
        if not opt.get('nohst'): at(k if h0 == 0 else 2 * k, 62, x)
    place(G, wp_addr0(), SL + 27, SL + 61, kind='valu')
    dpos = [(2, 38), (3, 38), (4, 38), (4, 29), (5, 38), (6, 38), (6, 29), (7, 38)]
    dpos.sort()
    for (st, g), x in zip(dpos, wp_dma()): at(st, g, x)
    place(G, wp_addr1(), 8 * SL + 25, 9 * SL + 40, kind='valu')
    rd = wp_reads()
    sc, stv = wp_stores()
    G[11 * SL + 2].pre += sc[:2]; G[11 * SL + 4].pre += sc[2:6]; G[11 * SL + 6].pre += sc[6:]
    for k in range(4):
        place(G, rd[4 * k:4 * k + 4], (12 + k) * SL + 25, (12 + k) * SL + 29)
        at(12 + k, 38, stv[2 * k])
        at(12 + k, 65 if k & 1 == 0 else 62, stv[2 * k + 1])
    for j in range(1, 16, 2):
        n = vm_between(G, 0 if j < 4 else (j - 4) * SL + 59, j * SL + SL - 1)
        G[j * SL + SL - 1].pre = [x.replace('VM', str(min(n, 63))) for x in G[j * SL + SL - 1].pre]
    if opt.get('trace'): trace_ops(G, lambda st: [f's_mov_b32 s95, {63 - st}'], 16)
    a.raw('.p2align 3')
    emit_gaps(a, gapops(G))

def phase_b(a, opt):
    b_prologue(a, opt)
    stamp(a, opt, 'B0')
    a(f's_mov_b32 {sr(sCNT)}, 5')
    first_pass(a, opt)
    stamp(a, opt, 'B1')
    a.raw('.p2align 6')
    a.label('L_attn')
    G = []
    for sl in range(8):
        G += step_gaps(sl, f's{sl}', opt, vm=16); SLOW.append((sl & 1, f's{sl}', False))
    G[2 * SL + 23].pre += [f's_cmp_eq_u32 {sr(sCNT)}, {sr(sXO)}', f's_cselect_b32 s{SRD_WU + 2}, 4, 0']
    place(G, [f'buffer_atomic_add {vr(ONEV)}, {vr(CL16)}, {sr(SRD_WU, 4)}, 0 offen sc1'], 2 * SL + 25, 2 * SL + 25)
    if opt.get('trace'): trace_ops(G, lambda sl: [f's_lshl_b32 s95, {sr(sCNT)}, 3', f's_add_u32 s95, s95, {7 - sl}'])
    G[-6].pre.append(f's_sub_u32 {sr(sCNT)}, {sr(sCNT)}, 1')
    G[-4].pre.append(f's_cmp_lg_u32 {sr(sCNT)}, 0')
    G[-1].post.append('s_cbranch_scc1 L_attn')
    emit_gaps(a, gapops(G))
    a.raw('.p2align 3')
    G = []
    pf = [x for t in range(8) for x in c_dma(t)]
    extra = {4: pf[:8], 5: pf[8:16], 6: pf[16:24], 7: pf[24:]}
    for sl in range(8):
        g = step_gaps(sl, f't{sl}', opt, dma=sl < 2, final=sl == 7, extra=extra.get(sl), vm={1: 16, 3: 0, 5: 63}.get(sl, 0)); SLOW.append((sl & 1, f't{sl}', sl == 7))
        if sl == 0 and OPT.get('npf', 1):
            g[2].pre += ['s_lshr_b32 s3, s2, 3', 's_lshl_b32 s3, s3, 2', f's_add_u32 s3, s3, {sr(sW)}']
            g[4].pre += ['s_lshr_b32 s7, s3, 4', f's_mul_i32 s7, s7, {WFS}', 's_and_b32 s3, s3, 15']
            g[6].pre += ['s_lshl_b32 s3, s3, 13', 's_add_u32 s3, s3, s7', 's_bfe_u32 s7, s2, 0x20001']
            g[8].pre += ['s_lshl_b32 s7, s7, 17', 's_add_u32 s3, s3, s7', f's_add_u32 s58, s3, {WS_WF + 56 * 4096}']
            g[25].valu.append('v_lshlrev_b32 v4, 7, v1')
        if sl == 4 and OPT.get('npf', 1):
            PFX.append(f'buffer_load_dword v5, v4, {sr(SRD_WS, 4)}, s58 offen sc1')
            g[62].mem.append(PFX[-1])
        if sl == 2:
            su = c_setup_scalar()
            for k in range(0, len(su), 2):
                g[2 + k].pre += su[k:k + 2]
            g[25].mem.append(f'buffer_load_dword {vr(POLLV)}, off, {sr(SRD_DBG, 4)}, 0 sc1')
        if sl == 4:
            g[17].valu.append(f'v_cmp_ne_u32 vcc, 0x100, {vr(POLLV)}')
            g[23].post += ['s_cbranch_vccnz L_pollall', 'L_pollall_ok:']
        G += g
    emit_gaps(a, gapops(G))
    stamp(a, opt, 'Bend')
    if opt.get('trace'): a('v_mov_b32 v252, v221')

def finalize_pre(a):
    a(f'''
    s_lshl_b32 s3, {sr(sQB)}, 4
    s_lshl_b32 s7, {sr(sW)}, 2
    s_add_u32 s3, s3, s7
    s_mul_i32 s3, s3, {OST()}
    s_lshl_b32 s7, {sr(sH)}, 12
    s_add_u32 {sr(sOK)}, s3, s7
    ''')
    for hf in range(2):
        a(f'v_mov_b32 {vr(ST + hf)}, {vr(LMreg(hf))}')
    a('s_nop 0')
    for hf in range(2):
        a(f'v_permlane16_swap_b32 {vr(LMreg(hf))}, {vr(ST + hf)}')
    for hf in range(2):
        a(f'v_add_f32 {vr(ST + 2 + 2 * hf)}, {vr(LMreg(hf))}, {vr(ST + hf)}')
        a(f'v_add_f32 {vr(ST + 3 + 2 * hf)}, {vr(LMreg(hf))}, {vr(ST + hf)}')
    a('s_nop 0')
    for hf in range(2):
        a(f'v_permlane32_swap_b32 {vr(ST + 2 + 2 * hf)}, {vr(ST + 3 + 2 * hf)}')
    for c in range(4):
        a(f'v_rcp_f32 {vr(RL + 2 * c)}, {vr(ST + 2 + c)}')
        a(f'v_rcp_f32 {vr(RL + 2 * c + 1)}, {vr(ST + 2 + c)}')

NF = 14; NS = 32
BLK = [0, 1, 2, 3, 8, 9, 4, 5, 6, 7]
sB0 = 56; sB1 = 57
BAD = 8; AAD = 20; CA2 = 192; CB2 = 224
def c_stream(kind):
    st, base, k0, nk, ka = (HST(), WS_H, 0, NF, 0) if kind[0] == 'f' else (OST(), WS_O, 0, NS, 56)
    ops = []
    if 'b' in kind:
        ops += [f's_lshl_b32 s3, {sr(sRB)}, 2', f's_add_u32 s3, s3, {sr(sW)}', f's_mul_i32 s3, s3, {2 * st}', 's_bfe_u32 s7, s2, 0x20001', f's_mul_i32 s7, s7, {nk * 1024}',
                's_add_u32 s3, s3, s7', f's_add_u32 {sr(sB0)}, s3, {(base - 1024) & 0xffffffff}', f's_add_u32 {sr(sB1)}, {sr(sB0)}, {st - 1024}']
    if 'a' in kind:
        ops += [f's_lshl_b32 s3, {sr(sCB)}, 1', f's_lshr_b32 s7, {sr(sW)}, 1', 's_add_u32 s3, s3, s7', f's_mul_i32 s3, s3, {WFS}', 's_bfe_u32 s7, s2, 0x20001', f's_mul_i32 s7, s7, {nk * 4096}',
                's_add_u32 s3, s3, s7', f's_and_b32 s7, {sr(sW)}, 1', 's_lshl_b32 s7, s7, 11', 's_add_u32 s3, s3, s7', f's_add_u32 {sr(sAO)}, s3, {WS_WF + ka * 4096 - 2048 - 4096}']
    return ops
def c_setup_scalar(): return c_stream('fab')
def c_dma(t, what='ab'):
    ops = []
    pre = (f's_add_u32 m0, {sr(sW4K)}, {BLK[t % 10] * STAGE}',)
    if 'b' in what:
        ops += [pre + (f's_add_u32 {sr(sB0)}, {sr(sB0)}, 1024', f'buffer_load_dwordx4 {vr(CL16)}, {sr(SRD_WS, 4)}, {sr(sB0)} offen sc1 lds'),
                (f's_add_u32 {sr(sB1)}, {sr(sB1)}, 1024', f'buffer_load_dwordx4 {vr(CL16)}, {sr(SRD_WS, 4)}, {sr(sB1)} offen offset:1024 sc1 lds')]
        pre = ()
    if 'a' in what:
        ops += [pre + (f's_add_u32 {sr(sAO)}, {sr(sAO)}, 4096', f'buffer_load_dwordx4 {vr(CL16)}, {sr(SRD_WS, 4)}, {sr(sAO)} offen offset:2048 sc1 lds'),
                f'buffer_load_dwordx4 {vr(CL16)}, {sr(SRD_WS, 4)}, {sr(sAO)} offen offset:3072 sc1 lds']
    return ops
def c_reads(t):
    b = BLK[t % 10]; off = (b & 3) * STAGE; st = b >> 2
    out = []
    for k in range(4):
        out.append(f'ds_read_b128 {ar(CA2 + (t & 1) * 16 + 4 * k, 4)}, {vr(AAD + st)} offset:{off + (k >> 1) * 4096 + (k & 1) * 1024}')
        out.append(f'ds_read_b128 {ar(CB2 + (t & 1) * 16 + 4 * k, 4)}, {vr(BAD + 4 * st + k)} offset:{off}')
    return out

def poll(a, name, srdreg, soff, nlanes, expect, ret=None):
    a(f's_mov_b64 exec, {(1 << nlanes) - 1}')
    a.label(name + '_l')
    a(f'''
    buffer_load_dword v5, v4, {sr(srdreg, 4)}, {soff} offen sc1
    s_waitcnt vmcnt(0)
    v_cmp_ne_u32 vcc, {expect}, v5
    s_cbranch_vccz {name}_d
    s_sleep 1
    s_branch {name}_l
    {name}_d:
    s_mov_b64 exec, -1
    ''')
    if ret:
        a(f's_nop 3\ns_branch {ret}')

def hooks(a):
    a(f'''
    L_pollall:
    v_mov_b32 v4, 0
    ''')
    poll(a, 'L_pa', SRD_DBG, '0', 1, '0x100', ret='L_pollall_ok')
    a(f'''
    L_po:
    s_sleep {OPT.get('posleep', 4)}
    buffer_load_dword v5, v4, {sr(SRD_WG, 4)}, 0 offen sc1
    s_waitcnt vmcnt(0)
    v_cmp_ne_u32 vcc, v5, v6
    s_cbranch_vccnz L_po
    s_branch L_po_ok
    ''')
    a(f'''
    L_pf:
    s_sleep 1
    buffer_load_dword v5, v4, {sr(SRD_WD, 4)}, 0 offen sc1
    s_waitcnt vmcnt(0)
    v_cmp_ne_u32 vcc, v5, v6
    s_cbranch_vccnz L_pf
    s_branch L_pf_ok
    ''')

class VM:
    def __init__(self, init): self.ops = list(init); self.done = 0
    def issue(self, tag): self.ops.append(tag); assert len(self.ops) - self.done <= 63, (tag, len(self.ops) - self.done)
    def wait(self, *tags):
        last = max(i for i, t in enumerate(self.ops) if t in tags)
        n = len(self.ops) - 1 - last
        self.done = max(self.done, last + 1)
        return f's_waitcnt vmcnt({n})'

def x_pack(acc, j, tb=160, pb=176):
    rd = [f'v_accvgpr_read_b32 {vr(tb + 4 * nb + i)}, {ar(acc + (nb * 4 + j) * 4 + i)}' for nb in range(4) for i in range(4)]
    cv = [f'v_cvt_pk_bf16_f32 {vr(pb + k)}, {vr(tb + 2 * k)}, {vr(tb + 2 * k + 1)}' for k in range(8)]
    return rd, cv
def x_dest(j, base, r):
    return ['s_bfe_u32 s7, s2, 0x20001', f's_add_u32 s7, s7, {j}', 's_and_b32 s7, s7, 3', 's_lshl_b32 s3, s54, 2', 's_add_u32 s3, s3, s7', 's_mul_i32 s3, s3, 12288',
            f's_add_u32 {r}, s3, {base + (j - 1) * 2048}']
def x_loads(part, reg):
    return [f'buffer_load_dwordx4 {vr(reg + 4 * k, 4)}, {vr(CL16)}, {sr(SRD_WS, 4)}, {XIN[(6 * part + k) >> 2]} offen offset:{1024 * ((6 * part + k) & 3)} sc1' for k in range(6)]
def x_check(a, reg, retry):
    a(f'''
    v_max3_u32 v14, {vr(reg)}, {vr(reg + 4)}, {vr(reg + 8)}
    v_max3_u32 v14, v14, {vr(reg + 12)}, {vr(reg + 16)}
    v_max_u32 v14, v14, {vr(reg + 20)}
    v_cmp_eq_u32 vcc, -1, v14
    s_cbranch_vccnz {retry}
    ''')
def x_add(a, dst, reg):
    for r in range(3):
        for k in range(8):
            a(f'v_lshlrev_b32 {vr(96 + 2 * k)}, 16, {vr(reg + 8 * r + k)}')
            a(f'v_and_b32 {vr(97 + 2 * k)}, 0xffff0000, {vr(reg + 8 * r + k)}')
        for k in range(0, 16, 2):
            a(f'v_pk_add_f32 {vr(dst + k, 2)}, {vr(dst + k, 2)}, {vr(96 + k, 2)}')
def x_accum(dst, src):
    ops = []
    for k in range(8):
        ops += [f'v_lshlrev_b32 v200, 16, {vr(src + k)}', f'v_and_b32 v201, 0xffff0000, {vr(src + k)}',
                f'v_add_f32 {vr(dst + 2 * k)}, {vr(dst + 2 * k)}, v200', f'v_add_f32 {vr(dst + 2 * k + 1)}, {vr(dst + 2 * k + 1)}, v201']
    return ops

def phase_c(a, opt):
    T = NF + NS
    COUT = 23; CXR = 24; GV = 240; XR = 32; SV = 224
    finalize_pre(a)
    NPRE = OPT.get('npre', 4)
    for c in range(NPRE):
        for i in range(32): a(f'v_accvgpr_read_b32 {vr(160 + i)}, {ar(Oreg(c, 0) + i)}')
        for f in range(4):
            for i in range(0, 8, 2): a(f'v_pk_mul_f32 {vr(160 + 8 * f + i, 2)}, {vr(160 + 8 * f + i, 2)}, {vr(RL + 2 * c, 2)}')
            for i in range(4): a(f'v_cvt_pk_bf16_f32 {vr(192 + 4 * f + i)}, {vr(160 + 8 * f + 2 * i)}, {vr(161 + 8 * f + 2 * i)}')
            a(f'buffer_store_dwordx4 {vr(192 + 4 * f, 4)}, {vr(CL16)}, {sr(SRD_WS, 4)}, {sr(sOK)} offen offset:{1024 * f} sc1')
        a(f's_add_u32 {sr(sOK)}, {sr(sOK)}, {OST()}')
    a(f'''
    s_lshr_b32 s7, {sr(sW)}, 1
    s_lshl_b32 s58, s7, 13               ; mh*8192
    s_and_b32 s7, {sr(sW)}, 1
    s_lshl_b32 s7, s7, 13
    s_add_u32 s7, s7, 2048
    v_add_u32 {vr(AAD)}, s7, {vr(CL16)}
    v_add_u32 {vr(AAD + 1)}, 65536, {vr(AAD)}
    v_add_u32 {vr(AAD + 2)}, 131072, {vr(AAD)}
    ''')
    for j in range(4):
        a(f'''
        s_bfe_u32 s3, s2, 0x20001
        s_add_u32 s3, s3, {j}
        s_and_b32 s7, s3, 1
        s_and_b32 s3, s3, 2
        s_lshl_b32 s3, s3, 11
        s_lshl_b32 s7, s7, 10
        s_add_u32 s3, s3, s7
        s_add_u32 s3, s3, s58
        v_add_u32 {vr(BAD + j)}, s3, {vr(CL16)}
        v_add_u32 {vr(BAD + 4 + j)}, 65536, {vr(BAD + j)}
        v_add_u32 {vr(BAD + 8 + j)}, 131072, {vr(BAD + j)}
        ''')
    vm = VM([0] * 4 + [1] * 4 + ['pf'] * len(PFX[-1:]) + [t for t in range(2, 8) for _ in range(4)] + ['o'] * (4 * NPRE))
    a(vm.wait(2))
    a('s_barrier')
    for x in c_reads(0): a(x)
    a(f'''
    s_mov_b32 s{SRD_X}, s96
    s_mov_b32 s{SRD_X + 1}, s97
    s_mov_b32 s{SRD_X + 2}, 2097152
    s_mov_b32 s{SRD_X + 3}, 0x20000
    v_lshlrev_b32 v5, 3, v3
    v_lshl_add_u32 {vr(COUT)}, v2, 10, v5
    s_lshl_b32 s3, {sr(sRB)}, 17
    s_lshl_b32 s7, s58, 3
    s_add_u32 s3, s3, s7
    s_bfe_u32 s7, s2, 0x20001
    s_lshl_b32 s7, s7, 14
    s_add_u32 s3, s3, s7
    s_lshl_b32 s7, {sr(sCB)}, 8
    s_add_u32 s3, s3, s7
    s_and_b32 s7, {sr(sW)}, 1
    s_lshl_b32 s7, s7, 7
    s_add_u32 {sr(sOV)}, s3, s7
    s_add_u32 s{SRD_WU}, s{SRD_WS}, s94
    s_addc_u32 s{SRD_WU + 1}, s{SRD_WS + 1}, 0
    s_mov_b32 s{SRD_WU + 2}, 4
    s_lshl_b32 s3, {sr(sRB)}, 8
    s_lshr_b32 s7, s58, 6
    s_add_u32 s3, s3, s7                 ; flag line of row block 2*RB + mh
    s_bfe_u32 s7, s2, 0x20001
    s_lshl_b32 s7, s7, 5
    s_add_u32 s3, s3, s7
    s_add_u32 s3, s3, {WS_FLAG}
    s_add_u32 s{SRD_WG}, s{SRD_WS}, s3
    s_addc_u32 s{SRD_WG + 1}, s{SRD_WS + 1}, 0
    s_mov_b32 s{SRD_WG + 2}, 32
    s_lshl_b32 s3, s54, 6
    s_add_u32 s3, s3, {WS_FF}
    s_add_u32 s{SRD_WD}, s{SRD_WS}, s3
    s_addc_u32 s{SRD_WD + 1}, s{SRD_WS + 1}, 0
    s_mov_b32 s{SRD_WD + 2}, 16
    s_bfe_u32 s7, s2, 0x20001
    s_lshl_b32 s7, s7, 2
    s_add_u32 s{SRD_WO}, s{SRD_WD}, s7
    s_addc_u32 s{SRD_WO + 1}, s{SRD_WD + 1}, 0
    s_mov_b32 s{SRD_WO + 2}, 4
    v_lshlrev_b32 v4, 2, v1
    v_cmp_gt_u32 vcc, 8, v1
    v_mov_b32 v0, 1
    s_nop 0
    v_cndmask_b32 v6, 0, 1, vcc
    s_waitcnt lgkmcnt(0)
    '''.replace('v_mov_b32 v0, 1', f'v_mov_b32 {vr(ONEV)}, 1'))
    a.raw('.p2align 3')
    NFS = OPT.get('nfs', 4)
    PT = OPT.get('pt', 14)
    flag_t = OPT.get('flag_t', 5)
    for t in range(T):
        acc = ACF if t < NF else ACS_
        first = t in (0, NF)
        u = t - NF
        G = []
        for nb, j in ([(nb, j) for nb in range(4) for j in range(4)] if t < T - 1 else [(nb, j) for j in (1, 2, 3, 0) for nb in range(4)]):
            if True:
                d = ar(acc + (nb * 4 + j) * 4, 4)
                G.append(Gap(mf(d, ar(CA2 + (t & 1) * 16 + 4 * nb, 4), ar(CB2 + (t & 1) * 16 + 4 * j, 4), '0' if first else d)))
        def vmem(g, x, tag):
            place(G, [x], g, None, cap=9); vm.issue(tag)
        if t == PT:
            if PT == NF:
                a(f'buffer_load_dword v5, v4, {sr(SRD_WG, 4)}, 0 offen sc1'); vm.issue('fl')
                for j in range(1, 4):
                    rd, cv = x_pack(ACF, j, 160, 176 + 8 * (j - 1))
                    for x in (['s_nop 4'] if j == 1 else []) + rd + cv: a(x)
            for x in c_stream('sb'): a(x)
            a(vm.wait('fl'))
            a('v_cmp_ne_u32 vcc, v5, v6\ns_cbranch_vccnz L_po\nL_po_ok:')
            stamp(a, opt, 'poll1')
            for tt in range(NF, PT + 8):
                emit_plain(a, c_dma(tt, 'b'))
                for k in range(2): vm.issue(tt)
            a('v_cmp_gt_u32 vcc, 4, v1\ns_nop 1\nv_cndmask_b32 v6, 0, 1, vcc')
            a.raw('.p2align 3')
        if t == NF:
            stamp(a, opt, 'fend')
            fxl = OPT.get('fxlate', 0)
            for j in range(1, 4) if not fxl else []:
                if PT != NF:
                    rd, cv = x_pack(ACF, j, 160, 176 + 8 * (j - 1))
                    for x in (['s_nop 6'] if j == 1 else []) + rd + cv: a(x)
                for x in x_dest(j, WS_XF, 's58'): a(x)
                for k in range(2):
                    a(f'buffer_store_dwordx4 {vr(176 + 8 * (j - 1) + 4 * k, 4)}, {vr(CL16)}, {sr(SRD_WS, 4)}, s58 offen offset:{1024 * k} sc1'); vm.issue('fx')
            a(vm.wait(NF, NF + 1, NF + 2))
            a('s_barrier')
            for x in c_reads(NF): a(x)
            a('s_waitcnt lgkmcnt(0)')
            stamp(a, opt, 's0')
            a.raw('.p2align 3')
        if t + 1 < T and t + 1 != NF:
            for k, x in zip([0, 1, 3, 4, 5, 7, 8, 9], c_reads(t + 1)): G[k].mem.append(x)
        stores = []
        if t < 4 - NPRE:
            nf = 4
            c = t + NPRE; f0 = 0
            for i in range(8 * nf):
                G[i // nf].valu.append(f'v_accvgpr_read_b32 {vr(160 + i)}, {ar(Oreg(c, 2 * f0) + i)}')
            for i in range(0, 8 * nf, 2):
                G[8].valu.append(f'v_pk_mul_f32 {vr(160 + i, 2)}, {vr(160 + i, 2)}, {vr(RL + 2 * c, 2)}')
            G[8].post.append('s_nop 1')
            for f in range(nf):
                for i in range(4):
                    G[9 + f].valu.append(f'v_cvt_pk_bf16_f32 {vr(192 + 4 * f + i)}, {vr(160 + 8 * f + 2 * i)}, {vr(161 + 8 * f + 2 * i)}')
                stores.append((10 + f, f'buffer_store_dwordx4 {vr(192 + 4 * f, 4)}, {vr(CL16)}, {sr(SRD_WS, 4)}, {sr(sOK)} offen offset:{1024 * (f0 + f)} sc1', 'o'))
            if f0 + nf == 4: G[15].post.append(f's_add_u32 {sr(sOK)}, {sr(sOK)}, {OST()}')
        todo = []
        tn = t + 8
        if tn < T:
            d = c_dma(tn, 'a' if NF <= tn and t < PT else 'ab')
            if tn == NF:
                G[0].pre += c_stream('sa')
            todo += list(zip([2, 6, 10, 14], d, [tn] * 4))
        if t == PT - 1 and PT != NF:
            stores += [(15, f'buffer_load_dword v5, v4, {sr(SRD_WG, 4)}, 0 offen sc1', 'fl')]
        fx0 = OPT.get('fxlate', 0)
        if fx0 and fx0 <= u < fx0 + 6 and (u - fx0) % 2 == 0:
            j = (u - fx0) // 2 + 1
            rd, cv = x_pack(ACF, j)
            for k, x in enumerate(rd): G[k // 2].valu.append(x)
            for k, x in enumerate(cv): G[8 + k // 2].valu.append(x)
            G[11].pre += x_dest(j, WS_XF, 's58')
            stores += [(15, f'buffer_store_dwordx4 {vr(176, 4)}, {vr(CL16)}, {sr(SRD_WS, 4)}, s58 offen offset:0 sc1', 'fx')]
        if fx0 and fx0 <= u < fx0 + 6 and (u - fx0) % 2 == 1:
            stores += [(15, f'buffer_store_dwordx4 {vr(180, 4)}, {vr(CL16)}, {sr(SRD_WS, 4)}, s58 offen offset:1024 sc1', 'fx')]
        if u == 23:
            stores += [(15, f'buffer_load_dword v5, v4, {sr(SRD_WD, 4)}, 0 offen sc1', 'ff')]
        if u == 24:
            stores += [(10 + nb, f'buffer_load_dwordx2 {vr(CXR + 2 * nb, 2)}, {vr(COUT)}, {sr(SRD_X, 4)}, {sr(sOV)} offen offset:{32 * nb}', 'x') for nb in range(4)]
        if u == 26:
            stores += [(2 * k, x, 'fx2') for k, x in enumerate(x_loads(0, XR))]
        for g, x, tag in sorted(todo + stores, key=lambda z: z[0]):
            vmem(g, x, tag)
        if u == 30:
            for j in range(1, 4): G[4 * j].pre += x_dest(j, WS_XF + 6144, f's{55 + j}')
        if t == flag_t:
            G[15].post += [vm.wait('o'), f'buffer_store_dword {vr(ONEV)}, {vr(CL16)}, {sr(SRD_WU, 4)}, 0 offen sc1'] + stamp_op('Oflag'); vm.issue('flag')
        if u == OPT.get('fflag', 8):
            G[15].post += [vm.wait('fx'), f'buffer_store_dword {vr(ONEV)}, {vr(CL16)}, {sr(SRD_WO, 4)}, 0 offen sc1']; vm.issue('flag2')
        if u == 20:
            G[4].pre += [f's_add_u32 s{SRD_WO}, s{SRD_WO}, 16', f's_addc_u32 s{SRD_WO + 1}, s{SRD_WO + 1}, 0']
        if u == 22:
            for k in range(16): G[k].valu.append(f'v_accvgpr_read_b32 {vr(GV + k)}, {ar(ACF + (k >> 2) * 16 + (k & 3))}')
        if u == 25:
            G[15].post += [vm.wait('ff'), 'v_cmp_ne_u32 vcc, v5, v6', 's_cbranch_vccnz L_pf', 'L_pf_ok:']
        if u == 27:
            G[4].pre += [f's_add_u32 s{SRD_WD}, s{SRD_WD}, 16', f's_addc_u32 s{SRD_WD + 1}, s{SRD_WD + 1}, 0']
        if u == 28:
            G[15].post.append(vm.wait('fx2'))
        if 29 <= u <= 31:
            for k, x in enumerate(x_accum(GV, XR + 8 * (u - 29))): G[k // 2].valu.append(x)
        if t + 1 < T and t + 1 != NF:
            if (t + 1) % 2 == 0:
                need = [x for x in (t + 2, t + 3) if x < T and not (t + 1 < NF <= x)]
                w = vm.wait(*need) + ' lgkmcnt(0)' if need else 's_waitcnt lgkmcnt(0)'
                G[15].post += [w, 's_barrier']
            else:
                G[15].post.append('s_waitcnt lgkmcnt(0)')
        if opt.get('ctrace'):
            G[0].pre.append(f's_memtime s[100:101]')
            G[14].valu.append(f'v_writelane_b32 v222, s100, {63 - t}')
        emit_gaps(a, gapops(G), align=False)
    stamp(a, opt, 'send')
    for j in range(1, 4):
        rd, cv = x_pack(ACS_, j, 160, 176 + 8 * (j - 1))
        for x in rd + cv: a(x)
        for k in range(2):
            a(f'buffer_store_dwordx4 {vr(176 + 8 * (j - 1) + 4 * k, 4)}, {vr(CL16)}, {sr(SRD_WS, 4)}, s{55 + j} offen offset:{1024 * k} sc1')
    stamp(a, opt, 'xst')
    for k in range(16):
        a(f'v_accvgpr_read_b32 {vr(SV + k)}, {ar(ACS_ + (k >> 2) * 16 + (k & 3))}')
    for k in range(8):
        a(f'v_lshlrev_b32 {vr(64 + 2 * k)}, 16, {vr(CXR + k)}')
        a(f'v_and_b32 {vr(65 + 2 * k)}, 0xffff0000, {vr(CXR + k)}')
    for k in range(16): a(f'v_mul_f32 {vr(144 + k)}, {f2u(-math.log2(math.e))}, {vr(GV + k)}')
    for k in range(16): a(f'v_exp_f32 {vr(144 + k)}, {vr(144 + k)}')
    for k in range(16): a(f'v_add_f32 {vr(112 + k)}, 1.0, {vr(144 + k)}')
    for k in range(16): a(f'v_rcp_f32 {vr(112 + k)}, {vr(112 + k)}')
    for k in range(0, 16, 2): a(f'v_pk_mul_f32 {vr(GV + k, 2)}, {vr(GV + k, 2)}, {vr(112 + k, 2)}')
    a(f'''
    s_waitcnt vmcnt(0)
    buffer_store_dword {vr(ONEV)}, {vr(CL16)}, {sr(SRD_WO, 4)}, 0 offen sc1
    {''.join(stamp_op('xack'))}
    L_ps:
    s_sleep {OPT.get('pssleep', 12)}
    buffer_load_dword v5, v4, {sr(SRD_WD, 4)}, 0 offen sc1
    s_waitcnt vmcnt(0)
    v_cmp_ne_u32 vcc, v5, v6
    s_cbranch_vccnz L_ps
    ''')
    stamp(a, opt, 'xf')
    XS = 32
    for x in x_loads(1, XS): a(x)
    for r in range(3):
        a(f's_waitcnt vmcnt({4 - 2 * r})')
        if r == 2: stamp(a, opt, 'xld')
        for k in range(8):
            a(f'v_lshlrev_b32 {vr(96 + 2 * k)}, 16, {vr(XS + 8 * r + k)}')
            a(f'v_and_b32 {vr(97 + 2 * k)}, 0xffff0000, {vr(XS + 8 * r + k)}')
        for k in range(0, 16, 2):
            a(f'v_pk_add_f32 {vr(SV + k, 2)}, {vr(SV + k, 2)}, {vr(96 + k, 2)}')
    for k in range(0, 16, 2):
        a(f'v_pk_fma_f32 {vr(SV + k, 2)}, {vr(SV + k, 2)}, {vr(GV + k, 2)}, {vr(64 + k, 2)}')
    for k in range(8):
        a(f'v_cvt_pk_bf16_f32 {vr(CXR + k)}, {vr(SV + 2 * k)}, {vr(SV + 1 + 2 * k)}')
    for nb in range(4):
        a(f'buffer_store_dwordx2 {vr(CXR + 2 * nb, 2)}, {vr(COUT)}, {sr(SRD_OUT, 4)}, {sr(sOV)} offen offset:{32 * nb}')

OPT = {}
def add_pads(a, period, nchain):
    out = []; addr = 0; nxt = None; pads = []
    lines = a.lines
    for k, l in enumerate(lines):
        t = l.strip()
        if t.startswith('.p2align'):
            al = 1 << int(t.split()[1]); addr = (addr + al - 1) // al * al
        if t == 'L_warmdone:': addr = 0; nxt = period - OPT.get('padoff', 0)
        if t == 'L_end:': nxt = None
        if nxt is not None and addr >= nxt and t.startswith(('v_', 'ds_read', 's_add', 's_mov', 's_lshl', 'buffer_load')) and not lines[k - 1].strip().startswith(('.')):
            out.append(f'L_pad{len(pads)}:'); out.append(f'    PAD{len(pads)}'); pads.append(addr)
            addr += 4; nxt += period
            out.append('    s_nop 0'); addr += 4
        out.append(l); addr += isize(l)
    n = len(pads)
    for k, l in enumerate(out):
        if l.startswith('    PAD'):
            i = int(l[7:])
            out[k] = f'    s_cbranch_execz ' + (f'L_pad{i + nchain}' if i + nchain < n else 'L_warmret')
    a.lines = out
    return n

def gen(opt):
    OPT.clear(); OPT.update(opt)
    SLOW.clear(); STAMPS.clear(); PFX.clear()
    a = A()
    setup(a, opt)
    phase_a(a, opt)
    phase_b(a, opt)
    phase_c(a, opt)
    if opt.get('stamp'):
        a('s_waitcnt vmcnt(0)')
        stamp(a, opt, 'end')
        a(f'''
        s_waitcnt lgkmcnt(0)
        s_lshl_b32 s3, s2, 2
        s_add_u32 s3, s3, {sr(sW)}
        s_lshl_b32 s3, s3, 6
        s_add_u32 s3, s3, {WS_STAMP}
        v_mov_b32 v1, 0
        v_mov_b32 v4, v0
        ''')
        if opt.get('ctrace'): a('v_mov_b32 v252, v222\n; v_cndmask_b32 v221')
        if opt.get('trace') or opt.get('ctrace'):
            a(f's_lshl_b32 s7, s2, 2\ns_add_u32 s7, s7, {sr(sW)}\ns_lshl_b32 s7, s7, 8\ns_add_u32 s7, s7, {WS_STAMP + (1 << 20)}\nv_lshrrev_b32 v20, 2, v7')
            a(f'buffer_store_dword v252, v20, {sr(SRD_WS, 4)}, s7 offen')
        if opt.get('dbgstamp'):
            a(f's_cmp_lg_u32 {sr(sW)}, 0\ns_cbranch_scc1 L_nodbg')
            a('v_not_b32 v20, v0\ns_mov_b64 exec, 1')
            a(f'v_mov_b32 v21, s{sST + 2 * (len(STAMPS) - 1)}')
            a(f'buffer_atomic_umax v20, off, {sr(SRD_DBG, 4)}, 0 offset:56 sc1')
            a(f'buffer_atomic_umax v21, off, {sr(SRD_DBG, 4)}, 0 offset:60 sc1')
            a(f's_cmp_lg_u32 s2, {opt["dbgstamp"]}\ns_cbranch_scc1 L_nodbg')
            for i in range(len(STAMPS)):
                a(f'v_sub_u32 v{22 + i}, s{sST + 2 * i}, v0')
                a(f'buffer_store_dword v{22 + i}, off, {sr(SRD_DBG, 4)}, 0 offset:{4 + 4 * i} sc1')
            a('L_nodbg:\ns_mov_b64 exec, -1')
        for i in range(12): a(f'v_mov_b32 v{5 + i}, s{sST + 2 * i}')
        for i in range(4):
            a(f'buffer_store_dwordx4 v[{4 + 4 * i}:{7 + 4 * i}], v1, {sr(SRD_WS, 4)}, s3 offen offset:{16 * i}')
    a.label('L_end')
    a('s_endpgm')
    hooks(a)
    for p, tag, final in SLOW:
        for hf in range(2):
            a.label(f'L_slow{hf}_{tag}')
            a(f's_call_b64 s[98:99], L_slowfn{hf}_{p}_{int(final)}')
            a(f's_branch L_back{hf}_{tag}')
    for p, final in sorted({(p, f) for p, _, f in SLOW}):
        for hf in range(2):
            slow_path(a, p, hf, final)
    if OPT.get('pad', 4096):
        npad = add_pads(a, OPT.get('pad', 4096), OPT.get('nchain', 4))
        print('pads', npad, file=sys.stderr)
    a.label('L_codeend')
    a('s_endpgm')
    return kernel_file(f'; ost {OST()} hst {HST()}\n; stamps entry ' + ' '.join(STAMPS) + '\n' + a.text(), 'grid=(256,1,1) block=(256,1,1) lds=163840')

if __name__ == '__main__':
    opt = json.loads(sys.argv[2]) if len(sys.argv) > 2 else {}
    open(sys.argv[1], 'w').write(gen(opt))
```

```python
import sys, json, math, struct
sys.path.insert(0, 'gen')
from asmlib import *

def f2u(x): return '0x%08x' % struct.unpack('<I', struct.pack('<f', x))[0]

WS_O = 0; WS_H = 17 << 20; WS_FLAG = 25 << 20; WS_WF = (25 << 20) + 65536; WS_STAMP = 32 << 20; WS_XF = 34 << 20; WS_XS = 41 << 20; WS_FF = 47 << 20
WFS = 184 * 4096
sH = 4; sQB = 5; sW = 6
SRD_K = 8; SRD_V = 12; SRD_WS = 16; SRD_X = 20; SRD_WQ = 24; SRD_WG = 28; SRD_WU = 32; SRD_WO = 36; SRD_WD = 40; SRD_OUT = 44; SRD_DBG = 48
sOK = 52; sOV = 53; sM = 54; sCNT = 55; sT0 = 56; sT1 = 57; sT2 = 58; sT3 = 59
sXO = 60; sQO = 61; sGO = 62; sWB = 63
sW4K = 88; sRB = 89; sCB = 90; sBO = 56; sHO = 91; sWQB = 92; sWGB = 93
sDL = 95
sST = 64
KA = 8; VAA = 16; DK0 = 28; DK1 = 29; DV0 = 30; DV1 = 31; VAB = 244
Q = 32; S = 96; NM = 160; PA = 176; PB = 192; TMP = 200; ST = 204; THR = 220; LANE = 1; LM = 224; RL = 240
O = 0; KF = 128; VF = 160; SIDX = 216; WPR = 224
STAGE = 16384
AQ = 8; AG = 12; AC = 16; AX = 20; DQ = 22; DG = 23; DX = 24
XF = 32; ACQ = 96; SX = 224; CSD = 228; STT = 232; SXX = 240; IDX = 27
AGU = 0; AR = 128; AK = 160
XBUF = 0; WBUF = 65536; CSBUF = 81920
CB = 32
def CAop(sl, nb):
    return ar(192 + sl * 16 + 4 * nb, 4) if sl < 4 else vr(96 + 32 * (sl - 4) + 4 * nb, 4) if sl < 6 else vr(208 + 4 * nb, 4) if sl == 6 else ar(4 * nb, 4)
def CBop(sl, j):
    return vr(32 + sl * 16 + 4 * j, 4) if sl < 4 else vr(112 + 32 * (sl - 4) + 4 * j, 4) if sl < 6 else vr(224 + 4 * j, 4) if sl == 6 else ar(16 + 4 * j, 4)
ACF = 128; ACS_ = 64
CL16 = 7
CRW = 8; CRR = 11; COUT = 12; CXR = 16
sAO = 61; POLLV = 6; ONEV = 223

def OST(): return OPT.get('ost', 136192)
def HST(): return OPT.get('hst', 58368)
XIN = ['s92', 's93', 's62']
def TW(r):
    return f's_lshl_b32 {r}, {sr(sRB)}, 2\ns_add_u32 {r}, {r}, {sr(sCB)}\ns_lshl_b32 {r}, {r}, 2\ns_add_u32 {r}, {r}, {sr(sW)}'
def mf(d, a_, b_, c):
    return f'v_mfma_f32_16x16x32_bf16 {d}, {a_}, {b_}, {c}'

class Gap:
    def __init__(self, m):
        self.m = m; self.pre = []; self.mem = []; self.valu = []; self.post = []
    def ops(self):
        return [self.m] + self.pre + self.mem + self.valu + self.post
    def units(self):
        u = 0
        for x in self.mem: u += 2 if x.startswith('buffer') else 0 if x.startswith('s_') else 1
        for x in self.valu: u += 2 if x.startswith(('v_exp', 'v_rcp', 'v_log', 'v_rsq', 'v_permlane')) else 1
        return u

def place(G, ops, lo, hi=None, kind='mem', cap=2):
    g = lo
    for x in ops:
        pre = []
        if isinstance(x, tuple):
            pre, x = list(x[:-1]), x[-1]
        need = 2 if x.startswith(('buffer', 'v_exp', 'v_rcp', 'v_rsq', 'v_log', 'v_permlane')) else 1
        need = min(need, cap)
        while G[g].units() + need > cap:
            g += 1
        if hi is not None:
            assert g <= hi, (x, g, hi)
        if pre:
            if g > 0 and not any(y.startswith('buffer') for y in G[g - 1].mem):
                G[g - 1].pre += pre
            else:
                if ' m0,' in pre[-1]:
                    pre.append('s_nop 0')
                G[g].pre += pre
        getattr(G[g], kind).append(x)
    return g

STAMPS = []
def place_some(G, ops, lo, hi):
    g = lo
    for k, x in enumerate(ops):
        need = 2 if x.startswith(('v_exp', 'v_rcp', 'v_rsq', 'v_log', 'v_permlane')) else 1
        while g <= hi and G[g].units() + need > 2: g += 1
        if g > hi: return list(ops[k:])
        G[g].valu.append(x)
    return []

def stamp_op(name):
    if not OPT.get('stamp') or (OPT.get('only') and name not in OPT['only']):
        return []
    k = len(STAMPS); STAMPS.append(name)
    assert k < 12
    return [f'{"s_memtime" if OPT.get("cyc") else "s_memrealtime"} s[{sST + 2 * k}:{sST + 2 * k + 1}]']
def stamp(a, opt, name):
    for x in stamp_op(name): a(x)

def srd(a, base, lo, hi, nrec, add=None, sub=None):
    if add is not None:
        a(f's_add_u32 s{base}, s{lo}, {add}')
        a(f's_addc_u32 s{base + 1}, s{hi}, 0')
    else:
        a(f's_mov_b32 s{base}, s{lo}')
        a(f's_mov_b32 s{base + 1}, s{hi}')
    if sub is not None:
        a(f's_sub_u32 s{base}, s{base}, {sub}')
        a(f's_subb_u32 s{base + 1}, s{base + 1}, 0')
    a(f's_mov_b32 s{base + 2}, {nrec}')
    a(f's_mov_b32 s{base + 3}, 0x20000')

def setup(a, opt):
    a(f'''
    s_cmp_ge_u32 s2, 256
    s_cbranch_scc1 L_end
    {("s_memtime" if opt.get("cyc") else "s_memrealtime") + " s[98:99]" if opt.get("stamp") else ""}
    s_load_dwordx16 s[64:79], s[0:1], 0
    s_load_dwordx8 s[80:87], s[0:1], 64
    v_lshrrev_b32 v4, 6, v0
    v_and_b32 v1, 63, v0
    v_readfirstlane_b32 {sr(sW)}, v4
    s_and_b32 s3, s2, 7
    s_bfe_u32 s7, s2, 0x20003
    s_lshl_b32 s3, s3, 2
    s_add_u32 {sr(sH)}, s3, s7
    s_lshr_b32 {sr(sQB)}, s2, 5
    s_lshl_b32 {sr(sW4K)}, {sr(sW)}, 12
    s_and_b32 s3, s2, 1
    s_lshl_b32 s3, s3, 3
    s_add_u32 {sr(sRB)}, s3, {sr(sQB)}
    s_bfe_u32 {sr(sCB)}, s2, 0x20003
    {"s_mov_b32 s89, 0" if opt.get("x_rb") else ""}
    {"s_mov_b32 s90, 0" if opt.get("x_cb") else ""}
    v_and_b32 v2, 15, v1                ; r = l&15
    v_lshrrev_b32 v3, 4, v1             ; g = l>>4
    ''')
    if OPT.get('ipf', 1):
        a(f'''
        s_getpc_b64 s[100:101]
        L_pc:
        s_lshr_b32 s3, s2, 3
        s_lshl_b32 s3, s3, 2
        s_add_u32 s3, s3, {sr(sW)}
        s_and_b32 s3, s3, 15
        s_lshl_b32 s3, s3, 13
        s_min_u32 s3, s3, L_codeend-L_pc-8192
        v_lshlrev_b32 v4, 7, v1
        v_add_u32 v4, s3, v4
        global_load_dword v26, v4, s[100:101]
        ''')

def setup_x(a, opt):
    a(f's_lshl_b32 s3, {sr(sQB)}, 18\ns_lshl_b32 s7, {sr(sW)}, 16\ns_add_u32 s3, s3, s7')
    a('s_waitcnt lgkmcnt(0)')
    if opt.get('stamp'): a('v_mov_b32 v0, s98')
    if opt.get('early'): a('s_memrealtime vcc')
    srd(a, SRD_X, 64, 65, 65536, add='s3')

def setup_w(a):
    a(f's_lshl_b32 s3, {sr(sH)}, 8')
    srd(a, SRD_WQ, 70, 71, 511 * 8192 + 256, add='s3')
    a(f's_lshl_b32 s3, {sr(sH)}, 7\ns_cmp_lt_u32 {sr(sH)}, 28\ns_cselect_b32 s3, s3, 0\ns_cselect_b32 s7, {511 * 3584 + 128}, 0')
    srd(a, SRD_WG, 76, 77, 's7', add='s3')
    srd(a, SRD_WU, 78, 79, 's7', add='s3')

def setup_wp(a):
    a('s_cmp_lt_u32 s2, 128\ns_cselect_b32 s72, s72, s80\ns_cselect_b32 s73, s73, s81\ns_and_b32 s3, s2, 127\ns_lshl_b32 s3, s3, 15')
    a('s_cmp_lt_u32 s2, 184\ns_cselect_b32 s3, s3, 0')
    a('s_cselect_b32 s7, 32768, 0\ns_cselect_b32 s74, 0x10000000, 0')
    srd(a, SRD_WO, 72, 73, 's7', add='s3')
    srd(a, SRD_WD, 86, 87, 's74')

def setup2(a, opt):
    a(f's_lshl_b32 s3, {sr(sH)}, 19')
    srd(a, SRD_K, 66, 67, 524288, add='s3')
    srd(a, SRD_V, 68, 69, 524288 + 2048, add='s3', sub=2048)
    srd(a, SRD_WS, 86, 87, 0x10000000)
    srd(a, SRD_OUT, 82, 83, 2097152)
    srd(a, SRD_DBG, 84, 85, 256)
    a('s_mov_b32 s96, s64\ns_mov_b32 s97, s65')

def a_setup_dma_addr(a):
    a(f'''
    s_lshl_b32 s3, {sr(sW)}, 3
    v_add_u32 v4, s3, v3                 ; row = 8w + (l>>4)
    v_lshlrev_b32 v5, 2, v3
    v_xor_b32 v5, v5, v2
    v_lshlrev_b32 v5, 4, v5
    v_lshl_add_u32 {vr(DQ)}, v4, 13, v5
    v_lshrrev_b32 v4, 3, v1              ; rho = l>>3
    v_and_b32 v5, 3, v4
    v_lshrrev_b32 v6, 5, v1
    v_lshl_add_u32 v5, v6, 3, v5
    s_lshr_b32 s3, {sr(sW)}, 1
    s_lshl_b32 s3, s3, 4
    s_and_b32 s7, {sr(sW)}, 1
    s_lshl_b32 s7, s7, 2
    s_add_u32 s3, s3, s7
    v_add_u32 v5, s3, v5                 ; W row
    v_mul_u32_u24 v5, 3584, v5
    v_lshlrev_b32 v6, 1, v3
    v_and_b32 v7, 7, v1
    v_xor_b32 v6, v6, v7
    v_lshl_add_u32 {vr(DG)}, v6, 4, v5
    v_xor_b32 v6, v3, v7
    v_lshlrev_b32 v6, 4, v6
    v_lshl_add_u32 {vr(DX)}, v4, 10, v6
    v_xor_b32 {vr(DX + 1)}, 64, {vr(DX)}
    ''')

def a_dma_x(j_par):
    ops = []
    for i in range(8):
        pre = []
        if i % 4 == 0:
            pre.append(f's_add_u32 m0, {sr(sT3)}, {XBUF + j_par * 32768 + (i // 4) * 4096}')
        pre.append(f's_add_u32 {sr(sT0 + (i & 1))}, {sr(sXO)}, {i * 8192 - 1024 * (i & 3)}')
        ops.append(tuple(pre) + (f'buffer_load_dwordx4 {vr(DX + (i & 1))}, {sr(SRD_X, 4)}, {sr(sT0 + (i & 1))} offen offset:{1024 * (i & 3)} lds',))
    return ops, [f's_add_u32 {sr(sXO)}, {sr(sXO)}, 128', f's_and_b32 {sr(sXO)}, {sr(sXO)}, 1023']

def a_dma_w():
    ops = []
    for ks in range(2):
        ops.append((f's_add_u32 m0, {sr(sWQB)}, {ks * 16384}', f's_add_u32 {sr(sT0)}, {sr(sQO)}, {ks * 32 * 8192}',
                    f'buffer_load_dwordx4 {vr(DQ)}, {sr(SRD_WQ, 4)}, {sr(sT0)} offen lds'))
        ops.append((f's_add_u32 {sr(sT1)}, {sr(sQO)}, {ks * 32 * 8192 + 4 * 8192 - 1024}',
                    f'buffer_load_dwordx4 {vr(DQ)}, {sr(SRD_WQ, 4)}, {sr(sT1)} offen offset:1024 lds'))
        ops.append((f's_add_u32 m0, {sr(sWGB)}, {ks * 16384}', f's_add_u32 {sr(sT0)}, {sr(sGO)}, {ks * 32 * 3584}',
                    f'buffer_load_dwordx4 {vr(DG)}, {sr(SRD_WG, 4)}, {sr(sT0)} offen lds'))
        ops.append((f's_add_u32 m0, m0, 4096',
                    f'buffer_load_dwordx4 {vr(DG)}, {sr(SRD_WU, 4)}, {sr(sT0)} offen lds'))
    adv = [f's_add_u32 {sr(sQO)}, {sr(sQO)}, {64 * 8192}', f's_and_b32 {sr(sQO)}, {sr(sQO)}, 0x3fffff', f's_lshr_b32 {sr(sGO)}, {sr(sQO)}, 13', f's_mul_i32 {sr(sGO)}, {sr(sGO)}, 3584',
           f's_add_u32 {sr(sWB)}, {sr(sWB)}, 1', f's_cmp_eq_u32 {sr(sWB)}, 3', f's_cselect_b32 {sr(sT2)}, -2, 1', f's_cselect_b32 {sr(sWB)}, 0, {sr(sWB)}',
           f's_lshl_b32 {sr(sT2)}, {sr(sT2)}, 15', f's_add_u32 {sr(sWQB)}, {sr(sWQB)}, {sr(sT2)}', f's_add_u32 {sr(sWGB)}, {sr(sWGB)}, {sr(sT2)}']
    return ops, adv

def emit_plain(a, ops):
    for x in ops:
        if isinstance(x, tuple):
            for y in x[:-1]: a(y)
            if ' m0,' in x[-2]: a('s_nop 0')
            a(x[-1])
        else:
            a(x)

def a_setup_read_addr(a):
    a(f'''
    v_bfe_u32 v4, v1, 2, 2               ; r'
    v_and_b32 v5, 3, v1                  ; c'
    v_lshl_add_u32 v6, v3, 3, v4         ; 8g + r'
    v_lshlrev_b32 v6, 8, v6
    v_lshl_add_u32 v6, v4, 6, v6         ; + (r'<<2)*16
    v_lshl_add_u32 v6, v5, {3 if OPT.get('a_noconf') else 4}, v6         ; + c'*16
    {"v_and_b32 v7, 16, v1" if OPT.get('a_noconf') else ""}
    {"v_lshl_add_u32 v6, v7, 1, v6" if OPT.get('a_noconf') else ""}
    v_add_u32 v6, {WBUF}, v6
    ''')
    for sp in range(4):
        a(f'v_xor_b32 {vr(AQ + sp)}, {sp * 64}, v6')
    a(f'''
    v_bfe_u32 v6, v1, 2, 3               ; rho = 4(g&1) + r'
    v_lshrrev_b32 v7, 1, v6              ; key2
    v_lshlrev_b32 v6, 7, v6
    v_lshl_add_u32 v6, v7, 5, v6
    v_lshl_add_u32 v6, v5, 3, v6
    v_lshrrev_b32 v7, 5, v1
    v_lshl_add_u32 v6, v7, 11, v6
    v_add_u32 v6, {WBUF + 8192}, v6
    ''')
    for nb in range(4):
        a(f'v_xor_b32 {vr(AG + nb)}, {nb * 32}, v6')
    a(f's_cmp_eq_u32 {sr(sW)}, 0\ns_cselect_b64 s[98:99], -1, 0\ns_cmp_lt_u32 {sr(sW)}, 2\ns_cselect_b64 s[100:101], -1, 0')
    a(f's_and_b32 s3, {sr(sW)}, 1\ns_lshl_b32 s3, s3, 12')
    for k in range(4):
        a(f'v_cndmask_b32 v4, {vr(AQ + 2 + (k >> 1))}, {vr(AQ + (k >> 1))}, s[98:99]')
        if k & 1:
            a('v_add_u32 v4, 8, v4')
        a(f'v_add_u32 v5, s3, {vr(AG + k)}')
        a(f'v_cndmask_b32 {vr(AC + k)}, v5, v4, s[100:101]')
    a(f'''
    v_lshrrev_b32 v4, 1, v2
    v_xor_b32 v4, v4, v3
    v_lshlrev_b32 v4, 4, v4
    v_lshl_add_u32 v4, v2, 7, v4
    v_add_u32 {vr(AX)}, {sr(sT3)}, v4
    v_xor_b32 {vr(AX + 1)}, 64, {vr(AX)}
    v_mov_b32 v4, 0x3f803f80
    v_and_b32 v5, 3, v1
    v_mov_b32 v6, 0xeeee
    v_and_b32 v7, 4, v1
    v_cmp_eq_u32 vcc, 0, v7
    v_mov_b32 v7, 0x4444
    v_cmp_eq_u32 s[98:99], 0, v5
    v_cndmask_b32 {vr(IDX)}, v6, v7, vcc
    s_nop 0
    ''')
    for k in range(4):
        a(f'v_cndmask_b32 v6, 0, v4, s[98:99]')
        if k < 3: a(f'v_cmp_eq_u32 s[98:99], {k + 1}, v5')
        for i in range(4):
            a(f'v_accvgpr_write_b32 {ar(AK + 4 * k + i)}, v6')

def Xreg(par, c, ks): return XF + par * 32 + c * 8 + ks * 4
def accA(nb, c):
    return vr(ACQ + (nb * 4 + c) * 4, 4) if nb < 8 else ar(AGU + ((nb - 8) * 4 + c) * 4, 4)
ORDER = [16, 17, 18, 19] + list(range(16))
def a_reads(pos):
    grp = ORDER[pos]
    out = []
    for ks in range(2):
        for u in range(2):
            off = ks * 16384 + u * 1024
            if grp < 8:
                ad = AQ + (grp >> 1); off += 8 * (grp & 1)
            elif grp < 16:
                ad = AG + (grp & 3); off += 4096 * ((grp - 8) >> 2)
            else:
                ad = AC + grp - 16
            out.append(f'ds_read_b64_tr_b16 {ar(AR + (pos & 3) * 8 + ks * 4 + 2 * u, 2)}, {vr(ad)} offset:{off}')
    return out
def x_reads(par):
    return [f'ds_read_b128 {vr(Xreg(par, c, ks), 4)}, {vr(AX + ks)} offset:{XBUF + par * 32768 + c * 2048}' for c in range(4) for ks in range(2)]

def a_superstep(par, first, tail, kv_ops=None, name=None, pre_ops=None, pre_adv=None):
    G = []; start = []
    for pos in range(20):
        grp = ORDER[pos]
        start.append(len(G))
        sl = AR + (pos & 3) * 8
        if grp < 16:
            for c in range(4):
                for ks in range(2):
                    d = accA(grp, c)
                    G.append(Gap(mf(d, ar(sl + 4 * ks, 4), vr(Xreg(par, c, ks), 4), '0' if first and ks == 0 else d)))
        else:
            k = grp - 16
            G.append(Gap(f'v_smfmac_f32_16x16x64_bf16 {vr(CSD, 4)}, {ar(AK + 4 * k, 4)}, {ar(sl, 8)}, {vr(IDX)}'))
            G.append(Gap(f'v_smfmac_f32_16x16x64_bf16 {vr(SX, 4)}, {ar(AK + 4 * k, 4)}, {vr(Xreg(par, k, 0), 8)}, {vr(IDX)}'))
            for ks in range(2):
                d = vr(SXX + 4 * k, 4)
                G.append(Gap(mf(d, vr(Xreg(par, k, ks), 4), vr(Xreg(par, k, ks), 4), '0' if first and ks == 0 else d)))
    start.append(len(G))
    def at(g, x, kind='mem'):
        place(G, [x], g, g, kind=kind)
    rp = OPT.get('a_rp', [0, 1, 2, 3])
    for grp in range(18):
        for k, x in zip(rp if grp >= 4 else [0, 0, 1, 2], a_reads(grp + 2)):
            at(start[grp] + k, x)
    dm = []
    if tail == 0:
        wops, wadv = a_dma_w(); xops, xadv = a_dma_x(par)
        if OPT.get('a_now'): wops = []
        if OPT.get('a_nox'): xops = []
        dm = wops + xops
        if pre_ops:
            dm = pre_ops + dm
    if kv_ops:
        dm = kv_ops
    free = [start[p] + (5 if p >= 4 else 3) for p in range(18)]
    if len(dm) > len(free):
        free = [g for p in range(18) for g in ((start[p] + 4, start[p] + 6) if p >= 4 else (start[p] + 3,))]
    pos = free[:len(dm)]
    for g, x in zip(pos, dm):
        if x is not None: at(g, x)
    if tail == 0:
        npre = len(pre_ops) if pre_ops else 0
        if pre_ops:
            for g, adv in pre_adv:
                G[pos[g] + 1].pre += adv
        if wops:
            g = pos[npre + len(wops) - 1]
            G[g + 1].pre += wadv[:4]; G[g + 2].pre += wadv[4:8]; G[g + 3].pre += wadv[8:]
        if xops:
            G[pos[-1] + 1].pre += xadv
    xg = OPT.get('a_xg', 14)
    if tail < 2:
        wg = start[xg] + 3
        npre = len(pre_ops) if pre_ops else 0
        younger = sum(1 for k, g in enumerate(pos) if g < wg and k >= npre and dm[k] is not None)
        assert all(g < wg for g in pos[:npre])
        G[wg].pre.append(f's_waitcnt vmcnt({younger})')
        xr = x_reads(1 - par)
        for k, x in enumerate(xr):
            at(start[xg + k // 4] + 3 + (k % 4) + (1 if G[start[xg + k // 4] + 3 + (k % 4)].units() >= 2 else 0), x) if False else None
        g = wg
        xpos = []
        for x in xr:
            while G[g].units() >= 2 or any(y.startswith('ds_read_b128') for y in G[g].mem): g += 1
            G[g].mem.append(x); xpos.append(g)
        assert xpos[-1] < start[18] - 2, xpos
    if tail == 2:
        w, st, rd = a_stats_ops()
        g = place(G, w[0], start[4] + 5, start[9] + 4, kind='valu')
        place(G, w[1], start[9] + 5, start[10] + 7, cap=1)
        G[start[12] - 1].post += ['s_waitcnt lgkmcnt(4)', 's_barrier']
        place(G, rd, start[14] + 4, start[17] + 7, cap=1)
        rest = place_some(G, st, g, start[20] - 1)
        G[-1].post += ['s_nop 1'] + rest
    seq = [(g, x) for g in range(len(G)) for x in G[g].mem if x.startswith('ds_')]
    for grp in range(2, 20):
        if grp == 18:
            continue
        last = max(k for k, (g, x) in enumerate(seq) if x in a_reads(grp) and start[grp - 2] <= g < start[grp - 1])
        n = sum(1 for k, (g, x) in enumerate(seq) if k > last and g < start[grp] - 1)
        G[start[grp] - 1].pre.append(f's_waitcnt lgkmcnt({min(n, 14)})')
    G[start[1] - 1].pre.append('s_waitcnt lgkmcnt(4)')
    if tail < 2:
        G[start[18] - 1].pre += ['s_waitcnt lgkmcnt(0)', 's_barrier']
        vu = [f'v_add_u32 {vr(AQ + i)}, {sr(sDL)}, {vr(AQ + i)}' for i in range(12)]
        place(G, vu[:4] + vu[8:], start[14], start[17] + 5, kind='valu')
        for k, x in enumerate(a_reads(0)): at(start[18] + k, x)
        for k, x in enumerate(a_reads(1)): at(start[19] + k, x)
        place(G, vu[4:8], start[18], start[19] + 5, kind='valu')
        G[start[20] - 1].pre.append('s_waitcnt lgkmcnt(4)')
        G[start[13] + 1].pre += [f's_add_u32 {sr(sM)}, {sr(sM)}, 1', f's_cmp_eq_u32 {sr(sM)}, 3', f's_cselect_b32 {sr(sDL)}, -2, 1', f's_cselect_b32 {sr(sM)}, 0, {sr(sM)}']
        G[start[13] + 2].pre += [f's_lshl_b32 {sr(sDL)}, {sr(sDL)}, 15']
    else:
        G[start[18] - 1].pre += ['s_waitcnt lgkmcnt(0)']
    if OPT.get('a_nobar'):
        for g in G: g.pre = [x for x in g.pre if x != 's_barrier']
    if OPT.get('a_nowait'):
        for g in G: g.pre = [x for x in g.pre if not x.startswith('s_waitcnt lgkmcnt')]
    if OPT.get('a_novm'):
        for g in G: g.pre = [x for x in g.pre if not x.startswith('s_waitcnt vmcnt')]
    if OPT.get('a_nords'):
        for g in G: g.mem = [x for x in g.mem if not x.startswith('ds_read_b64')]
    if name:
        so = stamp_op(name)
        if so:
            G[start[18] - 1].post += so
            G[start[19] - 1].pre.append('s_waitcnt lgkmcnt(0)')
    return G

WPA = [240, 241, 242, 243, 252, 253, 254, 255]
def wp_addr0():
    return ['v_lshlrev_b32 v4, 1, v3', 'v_xor_b32 v4, v4, v2', 'v_lshlrev_b32 v4, 4, v4', 'v_lshl_add_u32 v4, v3, 10, v4', 'v_xor_b32 v5, 128, v4']
def wp_dma():
    ops = []
    for i in range(8):
        pre = []
        if i == 0: pre += [f's_lshl_b32 {sr(sT2)}, {sr(sW)}, 8']
        pre += [f's_add_u32 m0, {sr(sT3)}, {131072 + i * 1024}', f's_add_u32 {sr(sT0)}, {sr(sT2)}, {i * 4096}']
        ops.append(tuple(pre) + (f'buffer_load_dwordx4 v{4 + (i & 1)}, {sr(SRD_WO, 4)}, {sr(sT0)} offen lds',))
    return ops
def wp_addr1():
    t0, t1 = WPA[0], WPA[1]
    ops = [f'v_lshrrev_b32 {vr(t0)}, 2, v1', f'v_and_b32 {vr(t1)}, 7, {vr(t0)}', f'v_lshlrev_b32 {vr(t0)}, 8, {vr(t0)}', f'v_lshl_add_u32 {vr(t0)}, {vr(t1)}, 5, {vr(t0)}',
           f'v_and_b32 {vr(t1)}, 3, v1', f'v_lshlrev_b32 {vr(t1)}, 5, {vr(t1)}', f'v_xor_b32 {vr(t0)}, {vr(t1)}, {vr(t0)}', f'v_add_u32 {vr(t0)}, {sr(sT3)}, {vr(t0)}', f'v_add_u32 {vr(t0)}, 131072, {vr(t0)}']
    ops += [f'v_xor_b32 {vr(WPA[db])}, {(db >> 2) * 128 + (db & 3) * 8}, {vr(t0)}' for db in range(1, 8)]
    return ops
def wp_reads():
    return [f'ds_read_b64_tr_b16 {ar(WPR + db * 4 + 2 * u, 2)}, {vr(WPA[db])} offset:{u * 4096}' for db in range(8) for u in range(2)]
def wp_stores():
    st = []
    for db in range(8):
        st.append(f'buffer_store_dwordx4 {ar(WPR + db * 4, 4)}, {vr(CL16)}, {sr(SRD_WD, 4)}, {"s3" if db < 4 else "s7"} offen offset:{1024 * (db & 3)} sc1')
    sc = ['s_sub_u32 s3, s2, 128', 's_add_u32 s7, s2, 56', 's_cmp_lt_u32 s2, 128', 's_cselect_b32 s3, s7, s3', 's_lshl_b32 s3, s3, 12',
          f's_mul_i32 s7, {sr(sW)}, {2 * WFS}', 's_add_u32 s3, s3, s7', f's_add_u32 s3, s3, {WS_WF}', f's_add_u32 s7, s3, {WFS}']
    return sc, st

def wp_store_ops():
    sc, st = wp_stores()
    out = []
    for k, x in enumerate(st):
        out += [tuple(sc) + (x,) if k == 0 else x, None]
    return out

def warmup(a):
    if OPT.get('pad', 4096):
        nch = OPT.get('nchain', 4)
        a('s_mov_b64 exec, 0')
        for w in range(nch - 1):
            a(f's_cmp_eq_u32 {sr(sW)}, {w}\ns_cbranch_scc1 L_pad{w}')
        a(f's_branch L_pad{nch - 1}')
        a.raw('.p2align 12')
        a.label('L_warmdone')
        a.label('L_warmret')
        a('s_mov_b64 exec, -1')

def phase_a(a, opt):
    a(f's_lshl_b32 {sr(sT3)}, {sr(sW)}, 13')
    a_setup_dma_addr(a)
    a(f's_and_b32 s3, s2, {7 if OPT.get("arot", 0) else 0}\ns_lshl_b32 {sr(sXO)}, s3, 7\ns_lshl_b32 {sr(sQO)}, s3, 19\ns_mul_i32 {sr(sGO)}, s3, {64 * 3584}\ns_mov_b32 {sr(sWB)}, 0\ns_mov_b32 {sr(sM)}, 0')
    a(f's_lshl_b32 {sr(sWQB)}, {sr(sW)}, 11\ns_add_u32 {sr(sWQB)}, {sr(sWQB)}, {WBUF}\ns_lshl_b32 {sr(sWGB)}, {sr(sW)}, 10\ns_add_u32 {sr(sWGB)}, {sr(sWGB)}, {WBUF + 8192}')
    xops, xadv = a_dma_x(0); wops, wadv = a_dma_w()
    setup_x(a, opt)
    emit_plain(a, xops); emit_plain(a, xadv)
    setup_w(a)
    emit_plain(a, wops); emit_plain(a, wadv)
    if opt.get('early'): a('s_memrealtime s[98:99]')
    wm = OPT.get('warmpos', 1)
    if wm == 1: warmup(a)
    xops, xadv = a_dma_x(1); wops, wadv = a_dma_w()
    b = A()
    for i in range(ACQ, ACQ + 4): b(f'v_mov_b32 {vr(i)}, 0')
    setup2(b, opt); setup_wp(b)
    if opt.get('early'):
        b('s_waitcnt lgkmcnt(0)')
        for nm, r in (('karg', 'vcc_lo'), ('i16', 's98')):
            b(f's_mov_b32 s{sST + 2 * len(STAMPS)}, {r}'); STAMPS.append(nm)
    a_setup_read_addr(b); b_setup_dma_addr(b)
    for i in range(ACQ + 4, 256):
        b(f'v_mov_b32 {vr(i)}, 0')
        if (i - ACQ) % 16 == 8 and (i - ACQ) // 16 < 8:
            b(f'v_mfma_f32_32x32x16_bf16 {ar(AGU + 16 * ((i - ACQ) // 16), 16)}, {vr(ACQ, 4)}, {vr(ACQ, 4)}, 0')
    fill = [l.strip() for l in b.lines]
    per = len(fill) // 15 + 1
    k0 = 0
    for k, x in enumerate(xops + wops):
        emit_plain(a, [x])
        if k == 7: emit_plain(a, xadv)
        k1 = min(len(fill), k0 + per)
        while k1 < len(fill) and fill[k1].startswith(('s_addc', 's_subb', 's_cselect')): k1 += 1
        for y in fill[k0:k1]: a(y)
        k0 = k1
    assert k0 == len(fill)
    emit_plain(a, wadv)
    ntouch = 0
    stamp(a, opt, 'issued')
    a(f'''
    s_lshl_b32 s3, {sr(sQB)}, 2
    s_add_u32 s3, s3, {sr(sW)}
    s_lshl_b32 s3, s3, 2
    s_lshr_b32 s7, {sr(sH)}, 3
    s_add_u32 s3, s3, s7
    s_lshl_b32 s3, s3, 5
    s_and_b32 s7, {sr(sH)}, 7
    s_add_u32 s3, s3, s7
    s_lshl_b32 s3, s3, 2
    s_add_u32 s94, s3, {WS_FLAG}
    v_mov_b32 v4, 0
    s_mov_b64 exec, 1
    buffer_store_dword v4, v4, {sr(SRD_WS, 4)}, s94 offen sc1
    {TW('s3')}
    s_lshl_b32 s3, s3, 6
    s_bfe_u32 s7, s2, 0x20001
    s_add_u32 s3, s3, s7
    s_lshl_b32 s3, s3, 2
    s_add_u32 s3, s3, {WS_FF}
    buffer_store_dword v4, v4, {sr(SRD_WS, 4)}, s3 offen sc1
    buffer_store_dword v4, v4, {sr(SRD_WS, 4)}, s3 offen offset:128 sc1
    s_mov_b64 exec, -1
    ''')
    if wm == 2: warmup(a)
    a(f's_waitcnt vmcnt({19 + ntouch})')
    for x in x_reads(0): a(x)
    a('s_waitcnt lgkmcnt(0)\ns_barrier')
    for x in a_reads(0) + a_reads(1): a(x)
    stamp(a, opt, 'A0')
    a('s_waitcnt lgkmcnt(0)' if opt.get('stamp') else 's_waitcnt lgkmcnt(4)')
    a.raw('.p2align 3')
    a(f's_mov_b32 {sr(sCNT)}, 3')
    a.raw('.p2align 3')
    a.label('L_a')
    G = a_superstep(0, False, 0, name='a4') + a_superstep(1, False, 0, name='a5')
    G[-4].pre.append(f's_sub_u32 {sr(sCNT)}, {sr(sCNT)}, 1')
    G[-2].pre.append(f's_cmp_lg_u32 {sr(sCNT)}, 0')
    G[-1].post.append('s_cbranch_scc1 L_a')
    emit_gaps(a, [g.ops() for g in G])
    a.raw('.p2align 3')
    emit_gaps(a, [g.ops() for g in a_superstep(0, False, 1, name='a6', kv_ops=b_prologue_dma()[:12]) + a_superstep(1, False, 2, kv_ops=b_prologue_dma()[12:])])
    stamp(a, opt, 'Aend')
    a_epilogue(a, opt)

def NMEAN(c): return SX + c
def ALPHA(c): return STT + c
def RS2(c): return STT + 4 + c
CSQ = 32; CSG = 160; HP = 192; ZQ = 240
def a_stats_ops():
    w0 = ['v_lshlrev_b32 v4, 4, v3', f'v_add_u32 v4, {CSBUF}, v4', 'v_lshlrev_b32 v5, 2, v2', f'v_lshl_add_u32 v5, {sr(sW)}, 8, v5', f'v_add_u32 v5, {CSBUF}, v5']
    w0 += [f'v_mov_b32 {vr(STT + k)}, {vr(CSD + k)}' for k in range(4)]
    w0 += [f'v_permlane16_swap_b32 {vr(CSD + k)}, {vr(STT + k)}' for k in range(4)]
    w0 += [f'v_add_f32 {vr(CSD + k)}, {vr(CSD + k)}, {vr(STT + k)}' for k in range(4)]
    w1 = [f'ds_write_b32 v5, {vr(CSD + k)} offset:{64 * k}' for k in range(4)]
    st = ['v_and_b32 v6, 3, v1', 'v_cmp_eq_u32 s[98:99], 1, v6', 'v_cmp_eq_u32 s[100:101], 2, v6', 'v_cmp_eq_u32 vcc, 3, v6',
          'v_lshrrev_b32 v6, 2, v2', 'v_cmp_eq_u32 s[92:93], v6, v3']
    st += [f'v_mov_b32 {vr(STT + 4 + k)}, {vr(SX + k)}' for k in range(4)]
    st += [f'v_permlane16_swap_b32 {vr(SX + k)}, {vr(STT + 4 + k)}' for k in range(4)]
    st += [f'v_add_f32 {vr(SX + k)}, {vr(SX + k)}, {vr(STT + 4 + k)}' for k in range(4)]
    for c in range(4):
        st.append(f'v_mul_f32 {vr(NMEAN(c))}, {f2u(-1 / 512)}, {vr(SX + c)}')
    for k, m in ((1, 's[98:99]'), (2, 's[100:101]'), (3, 'vcc')):
        for c in range(4):
            b = SXX + 4 * c
            st.append(f'v_cndmask_b32 {vr(b)}, {vr(b)}, {vr(b + k)}, {m}')
    for c in range(4):
        st.append(f'v_cndmask_b32 {vr(SXX + 4 * c)}, 0, {vr(SXX + 4 * c)}, s[92:93]')
    for sw in ('v_permlane32_swap_b32', 'v_permlane16_swap_b32'):
        for c in range(4): st.append(f'v_mov_b32 {vr(SXX + 4 * c + 1)}, {vr(SXX + 4 * c)}')
        for c in range(4): st.append(f'{sw} {vr(SXX + 4 * c)}, {vr(SXX + 4 * c + 1)}')
        for c in range(4): st.append(f'v_add_f32 {vr(SXX + 4 * c)}, {vr(SXX + 4 * c)}, {vr(SXX + 4 * c + 1)}')
    sc = (128 ** -0.5) * math.log2(math.e)
    for c in range(4): st.append(f'v_mul_f32 {vr(SXX + 4 * c)}, {f2u(1 / 512)}, {vr(SXX + 4 * c)}')
    for c in range(4): st.append(f'v_fma_f32 {vr(SXX + 4 * c)}, -{vr(NMEAN(c))}, {vr(NMEAN(c))}, {vr(SXX + 4 * c)}')
    for c in range(4): st.append(f'v_max_f32 {vr(SXX + 4 * c)}, 0, {vr(SXX + 4 * c)}')
    for c in range(4): st.append(f'v_add_f32 {vr(SXX + 4 * c)}, {f2u(1e-5)}, {vr(SXX + 4 * c)}')
    for c in range(4): st.append(f'v_rsq_f32 {vr(ALPHA(c))}, {vr(SXX + 4 * c)}')
    for c in range(4): st.append(f'v_rcp_f32 {vr(RS2(c))}, {vr(SXX + 4 * c)}')
    for c in range(4): st.append(f'v_mul_f32 {vr(ALPHA(c))}, {f2u(sc)}, {vr(ALPHA(c))}')
    for i in range(4): st.append(f'v_mov_b32 {vr(ZQ + i)}, 0')
    rd = [f'ds_read_b128 {vr(CSQ + 4 * nb, 4)}, v4 offset:{64 * nb}' for nb in range(8)]
    return (w0, w1), st, rd

def bc(r):
    return vr(r & ~1, 2), (r & 1)

def a_epilogue(a, opt):
    for c in range(4):
        nm, nh = bc(NMEAN(c))
        for nb in range(8):
            b = ACQ + (nb * 4 + c) * 4
            for i in (0, 2):
                a(f'v_pk_fma_f32 {vr(b + i, 2)}, {vr(CSQ + 4 * nb + i, 2)}, {nm}, {vr(b + i, 2)} op_sel:[0,{nh},0] op_sel_hi:[1,{nh},1]')
    for c in range(4):
        al, ah = bc(ALPHA(c))
        for nb in range(8):
            b = ACQ + (nb * 4 + c) * 4
            for i in (0, 2):
                a(f'v_pk_mul_f32 {vr(b + i, 2)}, {vr(b + i, 2)}, {al} op_sel:[0,{ah}] op_sel_hi:[1,{ah}]')
            for i in (0, 2):
                a(f'v_cvt_pk_bf16_f32 {vr(Q + 16 * c + 2 * nb + (i >> 1))}, {vr(b + i)}, {vr(b + i + 1)}')
    stamp(a, opt, 'e_q')
    for nb in range(8):
        a(f'ds_read_b128 {vr(CSG + 4 * nb, 4)}, v4 offset:{64 * (8 + nb)}')

def h_epilogue(a, mfmas, vmem):
    mfmas = list(mfmas)
    for c in range(4):
        nm, nh = bc(NMEAN(c)); rs, rh = bc(RS2(c))
        tg = 128; tu = 144
        emit_plain(a, vmem[c:c + 1])
        for k in range(16):
            if k % 2 == 0: a(mfmas.pop(0))
            a(f'v_accvgpr_read_b32 {vr(tg + k)}, {ar(AGU + ((k >> 2) * 4 + c) * 4 + (k & 3))}')
            a(f'v_accvgpr_read_b32 {vr(tu + k)}, {ar(AGU + (((k >> 2) + 4) * 4 + c) * 4 + (k & 3))}')
        for k in range(0, 16, 2):
            a(f'v_pk_fma_f32 {vr(tg + k, 2)}, {vr(CSG + k, 2)}, {nm}, {vr(tg + k, 2)} op_sel:[0,{nh},0] op_sel_hi:[1,{nh},1]')
        for k in range(0, 16, 2):
            a(f'v_pk_fma_f32 {vr(tu + k, 2)}, {vr(CSG + 16 + k, 2)}, {nm}, {vr(tu + k, 2)} op_sel:[0,{nh},0] op_sel_hi:[1,{nh},1]')
        for k in range(0, 16, 2):
            a(f'v_pk_mul_f32 {vr(tg + k, 2)}, {vr(tg + k, 2)}, {rs} op_sel:[0,{rh}] op_sel_hi:[1,{rh}]')
        for k in range(0, 16, 2):
            a(f'v_pk_mul_f32 {vr(tg + k, 2)}, {vr(tg + k, 2)}, {vr(tu + k, 2)}')
        for k in range(8):
            a(f'v_cvt_pk_bf16_f32 {vr(tu + k)}, {vr(tg + 2 * k)}, {vr(tg + 2 * k + 1)}')
        for k in range(8):
            a(f'v_accvgpr_write_b32 {ar(HP + c * 8 + k)}, {vr(tu + k)}')
    assert not mfmas

def Sreg(buf, c, kb=0): return S + buf * 32 + c * 8 + kb * 4
def Qreg(c, s): return Q + c * 16 + s * 4
def Preg(c, par): return (PA + par * 8 + c * 4) if c < 2 else PB + (c - 2) * 4
def Oreg(c, db): return O + c * 32 + db * 4
def LMreg(hf): return LM + hf * 4
def LOLD(hf): return LM + 8 + hf
SELA = 24; HL = 33; SL = 66
def qk_mfma(buf, c, kb, s, c0=None):
    d = vr(Sreg(buf, c, kb), 4)
    cc = d if s else (c0 if c0 is not None else vr(NM + 4 * c, 4))
    return mf(d, ar(KF + 4 * (kb * 4 + s), 4), vr(Qreg(c, s), 4), cc)
def pv_mfma(c, par, db, c0=None):
    d = ar(Oreg(c, db), 4)
    return mf(d, ar(VF + db * 4, 4), vr(Preg(c, par), 4), d if c0 is None else c0)
def sum_mfma(hf, par):
    return f'v_smfmac_f32_16x16x64_bf16 {vr(LMreg(hf), 4)}, {vr(SELA, 4)}, {vr(Preg(2 * hf, par), 8)}, {vr(SIDX)}'
def k_read(slot, kb, s, base=None):
    if base is not None:
        return f'ds_read_b128 {ar(KF + 4 * (kb * 4 + s), 4)}, {vr(base + s)} offset:{slot * STAGE + kb * 8192}'
    return f'ds_read_b128 {ar(KF + 4 * (kb * 4 + s), 4)}, {vr(KA + 4 * (slot >> 2) + s)} offset:{(slot & 3) * STAGE + kb * 8192}'
def v_read(slot, db, u):
    return f'ds_read_b64_tr_b16 {ar(VF + db * 4 + 2 * u, 2)}, {vr((VAB if slot >= 4 else VAA) + db)} offset:{(slot & 3) * STAGE + u * 8192 + 2048}'
def dma_k(i):
    return f'buffer_load_dwordx4 {vr(DK0 + i)}, {sr(SRD_K, 4)}, {sr(sOK)} offen offset:{1024 * i}{OPT.get("kvsc", "")} lds'
def dma_v(i):
    return f'buffer_load_dwordx4 {vr(DV0 + i)}, {sr(SRD_V, 4)}, {sr(sOV)} offen offset:{2048 + 1024 * i}{OPT.get("kvsc", "")} lds'
def stage_dma(slot, k=True, v=True):
    ops = []
    pre = (f's_add_u32 m0, {sr(sW4K)}, {slot * STAGE}',)
    if k:
        ops += [pre + (f's_add_u32 {sr(sOK)}, {sr(sOK)}, 8192', f's_and_b32 {sr(sOK)}, {sr(sOK)}, 0x7ffff', dma_k(0)), dma_k(1)]; pre = ()
    if v:
        ops += [pre + (f's_add_u32 {sr(sOV)}, {sr(sOV)}, 8192', f's_and_b32 {sr(sOV)}, {sr(sOV)}, 0x7ffff', dma_v(0)), dma_v(1)]
    return ops

def b_setup_dma_addr(a):
    a(f'''
    s_lshl_b32 s3, {sr(sW)}, 3
    v_add_u32 v5, s3, v3          ; row = 8w + (l>>4)
    v_and_b32 v7, 15, v5
    v_xor_b32 v7, v7, v2
    v_lshlrev_b32 v7, 4, v7
    v_lshl_add_u32 {vr(DK0)}, v5, 8, v7
    v_xor_b32 {vr(DK1)}, 64, {vr(DK0)}
    v_lshlrev_b32 v7, 1, v3
    v_xor_b32 v7, v7, v2
    v_lshlrev_b32 v7, 4, v7
    v_lshl_add_u32 {vr(DV0)}, v5, 8, v7
    v_xor_b32 {vr(DV1)}, 128, {vr(DV0)}
    s_mul_i32 {sr(sOK)}, {sr(sH)}, {OPT.get('kvrot', 0)}
    s_sub_u32 {sr(sOK)}, {sr(sOK)}, 8192
    s_mov_b32 {sr(sOV)}, {sr(sOK)}
    ''')

def b_prologue_dma():
    ops = stage_dma(8, v=False) + stage_dma(9, v=False)
    for sl in range(5):
        ops += stage_dma(sl)
    return ops

def b_prologue_dma2():
    return stage_dma(5)

def b_setup_read_addr(a):
    a(f'''
    v_lshrrev_b32 v4, 3, v2
    v_lshlrev_b32 v4, 12, v4      ; (r>>3)*4096
    v_and_b32 v5, 7, v2
    v_lshl_add_u32 v4, v5, 8, v4  ; + (r&7)*256
    v_xor_b32 v5, v2, v3
    v_lshl_add_u32 v4, v5, 4, v4  ; + (r^g)*16
    ''')
    for s in range(4):
        a(f'v_xor_b32 {vr(KA + s)}, {s * 64}, v4')
        a(f'v_add_u32 {vr(KA + 4 + s)}, 65536, {vr(KA + s)}')
        a(f'v_add_u32 {vr(ST + 8 + s)}, 131072, {vr(KA + s)}')
    a(f'''
    v_bfe_u32 v4, v1, 2, 3        ; row&7
    v_lshlrev_b32 v5, 8, v4
    v_lshl_add_u32 v5, v4, 5, v5
    v_lshrrev_b32 v6, 5, v1
    v_lshl_add_u32 v5, v6, 12, v5
    v_and_b32 v6, 3, v1
    v_lshl_add_u32 v5, v6, 3, v5
    ''')
    for db in range(8):
        a(f'v_xor_b32 {vr(VAA + db)}, {db * 32}, v5')
        a(f'v_add_u32 {vr(VAB + db)}, 65536, {vr(VAA + db)}')
    a(f'''
    v_mov_b32 {vr(THR)}, 0x4e800000      ; 2^30
    v_mov_b32 {vr(SIDX)}, {vr(IDX)}
    v_lshrrev_b32 v4, 3, v2
    v_lshrrev_b32 v5, 5, v1
    v_and_b32 v6, 3, v1
    v_lshl_add_u32 v4, v6, 1, v4
    v_cmp_eq_u32 vcc, v4, v5
    v_mov_b32 v4, 0x3f803f80
    s_nop 0
    v_cndmask_b32 v5, 0, v4, vcc
    ''')
    for i in range(4):
        a(f'v_mov_b32 {vr(SELA + i)}, v5')
    a(f'v_lshlrev_b32 {vr(CL16)}, 4, v1')

def xlane(a, op, dst, t2):
    for sw in ('v_permlane32_swap_b32', 'v_permlane16_swap_b32'):
        a(f'v_mov_b32 {vr(t2)}, {vr(dst)}')
        a('s_nop 1')
        a(f'{sw} {vr(dst)}, {vr(t2)}')
        a(f'{op} {vr(dst)}, {vr(dst)}, {vr(t2)}')

def rowmax(a, base, dst, t2):
    a(f'v_max3_f32 {vr(dst)}, {vr(base)}, {vr(base + 1)}, {vr(base + 2)}')
    a(f'v_max3_f32 {vr(dst)}, {vr(dst)}, {vr(base + 3)}, {vr(base + 4)}')
    a(f'v_max3_f32 {vr(dst)}, {vr(dst)}, {vr(base + 5)}, {vr(base + 6)}')
    a(f'v_max_f32 {vr(dst)}, {vr(dst)}, {vr(base + 7)}')
    xlane(a, 'v_max_f32', dst, t2)

def softmax_c(a, sbase, pbase, tb):
    for r in range(4):
        a(f'v_exp_f32 {vr(tb)}, {vr(sbase + 2 * r)}')
        a(f'v_exp_f32 {vr(tb + 1)}, {vr(sbase + 2 * r + 1)}')
        a('s_nop 0')
        a(f'v_cvt_pk_bf16_f32 {vr(pbase + r)}, {vr(tb)}, {vr(tb + 1)}')

def b_prologue(a, opt):
    b_setup_read_addr(a)
    a('s_waitcnt vmcnt(0) lgkmcnt(0)')
    stamp(a, opt, 'e_h')
    a('s_barrier')
    for kb in range(2):
        for s in range(4):
            a(k_read(0, kb, s, base=ST + 8))
    a(f'''
    s_lshl_b32 s3, {sr(sQB)}, 4
    s_lshl_b32 s7, {sr(sW)}, 2
    s_add_u32 s3, s3, s7
    s_mul_i32 s3, s3, {HST()}
    s_lshl_b32 s7, {sr(sH)}, 11
    s_add_u32 s3, s3, s7
    s_add_u32 {sr(sHO)}, s3, {WS_H}
    s_mov_b32 s{SRD_WG}, s{SRD_WS}
    s_mov_b32 s{SRD_WG + 1}, s{SRD_WS + 1}
    s_cmp_lt_u32 {sr(sH)}, 28
    s_cselect_b32 s{SRD_WG + 2}, 0x10000000, 0
    s_mov_b32 s{SRD_WU}, s{SRD_DBG}
    s_mov_b32 s{SRD_WU + 1}, s{SRD_DBG + 1}
    s_mov_b32 s{SRD_WU + 2}, 0
    s_cmp_eq_u32 {sr(sW)}, 0
    s_cselect_b32 {sr(sXO)}, 4, 64
    v_mov_b32 {vr(ONEV)}, 1
    {TW('s54')}
    s_lshl_b32 s3, s54, 2
    s_bfe_u32 s7, s2, 0x20001
    s_add_u32 s3, s3, s7
    s_mul_i32 s3, s3, 12288
    s_add_u32 s92, s3, {WS_XF}
    s_add_u32 s93, s92, 4096
    s_add_u32 s62, s92, 8192
    s_waitcnt lgkmcnt(0)
    ''')
    h_epilogue(a, [qk_mfma(0, c, kb, s, c0='0') for c in range(4) for kb in range(2) for s in range(4)], b_prologue_dma2())
    stamp(a, opt, 'e_h2')
    for kb in range(2):
        for s in range(4):
            a(k_read(1, kb, s, base=ST + 8))
    for i in range(10):
        a(f'v_mov_b32 {vr(LM + i)}, 0')
    zm = [f'v_mfma_f32_32x32x16_bf16 {ar(O + 16 * i, 16)}, {vr(ZQ, 4)}, {vr(ZQ, 4)}, 0' for i in range(8)]
    m = [ST + c for c in range(4)]; t2 = [ST + 4 + c for c in range(4)]
    for k in range(4):
        a(zm.pop())
        for c in range(4):
            b = Sreg(0, c)
            a([f'v_max3_f32 {vr(m[c])}, {vr(b)}, {vr(b + 1)}, {vr(b + 2)}', f'v_max3_f32 {vr(m[c])}, {vr(m[c])}, {vr(b + 3)}, {vr(b + 4)}',
               f'v_max3_f32 {vr(m[c])}, {vr(m[c])}, {vr(b + 5)}, {vr(b + 6)}', f'v_max_f32 {vr(m[c])}, {vr(m[c])}, {vr(b + 7)}'][k])
    for sw in ('v_permlane32_swap_b32', 'v_permlane16_swap_b32'):
        for c in range(4): a(f'v_mov_b32 {vr(t2[c])}, {vr(m[c])}')
        a(zm.pop())
        for c in range(4): a(f'{sw} {vr(m[c])}, {vr(t2[c])}')
        a(zm.pop())
        for c in range(4): a(f'v_max_f32 {vr(m[c])}, {vr(m[c])}, {vr(t2[c])}')
    for c in range(4):
        for i in range(8):
            a(f'v_sub_f32 {vr(Sreg(0, c) + i)}, {vr(Sreg(0, c) + i)}, {vr(m[c])}')
        for i in range(4):
            a(f'v_sub_f32 {vr(NM + 4 * c + i)}, 0, {vr(m[c])}')
    for e in range(16):
        a(f'v_exp_f32 {vr(128 + e)}, {vr(Sreg(0, 0) + e)}')
    for r in range(8):
        a(f'v_cvt_pk_bf16_f32 {vr(Preg(0, 0) + r)}, {vr(128 + 2 * r)}, {vr(129 + 2 * r)}')
    a('s_waitcnt lgkmcnt(0)')

BIG = [25, 29, 32, 38, 46, 50, 54, 58, 62]
def step_gaps(slot, tag, opt, dma=True, final=False, extra=None, vm=0, nobar=False):
    p = slot & 1
    qk = [qk_mfma(1 - p, c, kb, s) for c in range(4) for kb in range(2) for s in range(4)]
    pv = [pv_mfma(c, p, db) for c in range(4) for db in range(8)]
    mfs = qk[:4] + [sum_mfma(0, p)] + qk[4:] + pv[:4] + [sum_mfma(1, p)] + pv[4:]
    G = [Gap(m) for m in mfs]
    for hf, g0 in ((1, 0), (0, HL)):
        if final and hf == 0:
            continue
        for e in range(16):
            c = 2 * hf + (e >> 3)
            src = (Sreg(p, 2) if hf else Sreg(1 - p, 0)) + e
            G[g0 + 2 * e].valu.append(f'v_exp_f32 {vr(TMP + (e & 3))}, {vr(src)}')
            if e & 1:
                G[g0 + 2 * e + 1].valu.append(f'v_cvt_pk_bf16_f32 {vr(Preg(c, 1 - p) + ((e & 7) >> 1))}, {vr(TMP + ((e - 1) & 3))}, {vr(TMP + (e & 3))}')
    for hf, g0 in ((0, 0), (1, HL)):
        late = final and hf == 1
        G[g0 + (13 if late else 9)].valu.append(f'v_cmp_nle_f32 vcc, {vr(LMreg(hf))}, {vr(THR)}')
        G[g0 + (16 if late else 15)].post += [f's_cbranch_vccnz L_slow{hf}_{tag}', f'L_back{hf}_{tag}:']
        if not final:
            G[g0 + 27].valu.append(f'v_mov_b32 {vr(LOLD(hf))}, {vr(LMreg(hf))}')
    vplace = [1, 1, 3, 5, 5, 7, 9, 11, 13, 13, 17, 17, 19, 21, 21, 23]
    kplace = [HL + x for x in (1, 1, 3, 7, 9, 11, 19, 23)]
    for g, x in zip(vplace, [v_read(slot, db, u) for db in range(8) for u in range(2)]):
        G[g].mem.append(x)
    if not final:
        for g, x in zip(kplace, [k_read(slot, kb, s) for kb in range(2) for s in range(4)]):
            G[g].mem.append(x)
    G[HL - 1].pre.append('s_waitcnt lgkmcnt(0)')
    ops = []
    if dma:
        ops = [None] * 4 + stage_dma((slot + 6) & 7)
    if extra:
        ops = extra
    for g, x in zip(BIG if not final else [25, 29, 33, 38, 42, 47, 52, 56, 60, 64], ops):
        if x is not None:
            place(G, [x], g, g)
    if slot & 1 and not nobar:
        G[SL - 1].pre += [f's_waitcnt vmcnt({vm}) lgkmcnt(0)', 's_barrier'] if not final else []
    else:
        G[SL - 1].pre.append('s_waitcnt lgkmcnt(0)')
    if final:
        for g in G:
            if g.m in qk:
                g.m = 's_nop 0'
    return G

def gapops(G):
    return [[x for x in g.ops() if x is not None] for g in G]

def slow_path(a, p, hf, final=False):
    a.label(f'L_slowfn{hf}_{p}_{int(final)}')
    a('s_nop 15')
    a(f'v_mov_b32 {vr(ST + 8)}, {vr(LOLD(hf))}\nv_mov_b32 {vr(ST + 9)}, {vr(LOLD(hf))}\ns_nop 1\nv_permlane16_swap_b32 {vr(ST + 8)}, {vr(ST + 9)}\nv_add_f32 {vr(ST + 8)}, {vr(ST + 8)}, {vr(ST + 9)}')
    for c in (2 * hf, 2 * hf + 1):
        cur = Sreg(p, c); nxt = Sreg(1 - p, c)
        d = ST + 4 + (c & 1); al = ST + 6 + (c & 1)
        rowmax(a, cur, d, ST + 1)
        a(f'v_max_f32 {vr(d)}, 0, {vr(d)}')
        a(f'v_mov_b32 {vr(ST)}, {vr(ST + 8)}')
        a(f'v_mov_b32 {vr(ST + 1)}, {vr(ST + 8)}')
        a('s_nop 1')
        a(f'v_permlane32_swap_b32 {vr(ST)}, {vr(ST + 1)}')
        a(f'v_log_f32 {vr(ST)}, {vr(ST + (c & 1))}')
        a('s_nop 0')
        a(f'v_max_f32 {vr(d)}, {vr(d)}, {vr(ST)}')
        a(f'v_sub_f32 {vr(al)}, 0, {vr(d)}')
        a(f'v_exp_f32 {vr(al)}, {vr(al)}')
        for i in range(8):
            a(f'v_sub_f32 {vr(cur + i)}, {vr(cur + i)}, {vr(d)}')
        if not final:
            for i in range(8):
                a(f'v_sub_f32 {vr(nxt + i)}, {vr(nxt + i)}, {vr(d)}')
        for i in range(4):
            a(f'v_sub_f32 {vr(NM + 4 * c + i)}, {vr(NM + 4 * c + i)}, {vr(d)}')
        for i in range(32):
            a(f'v_accvgpr_read_b32 {vr(ST + 2)}, {ar(Oreg(c, 0) + i)}')
            a(f'v_mul_f32 {vr(ST + 2)}, {vr(ST + 2)}, {vr(al)}')
            a(f'v_accvgpr_write_b32 {ar(Oreg(c, 0) + i)}, {vr(ST + 2)}')
        softmax_c(a, cur, Preg(c, p), ST + 2)
    a(f'v_cmp_gt_u32 vcc, 32, {vr(LANE)}')
    a('s_nop 1')
    a(f'v_cndmask_b32 {vr(ST)}, {vr(ST + 7)}, {vr(ST + 6)}, vcc')
    a(f'v_mul_f32 {vr(LMreg(hf))}, {vr(LOLD(hf))}, {vr(ST)}')
    a('s_nop 1')
    a(sum_mfma(hf, p))
    a('s_nop 7')
    a('s_setpc_b64 s[98:99]')

SLOW = []; PFX = []
def is_vm(x): return x.startswith(('buffer_', 'global_'))
def vm_between(G, g0, g1):
    return sum(1 for g in G[g0:g1] for x in g.mem if is_vm(x))

def trace_ops(G, lane, n=8):
    for sl in range(n):
        G[sl * SL + 0].pre += ['s_memtime s[100:101]'] + lane(sl)
        G[sl * SL + 56].valu += ['v_cmp_eq_u32 vcc, s95, v1']
        G[sl * SL + 60].valu += ['v_mov_b32 v222, s100']
        G[sl * SL + 64].valu += ['v_cndmask_b32 v221, v221, v222, vcc']

def ALIGN(): return OPT.get('align', False)
def first_pass(a, opt):
    G = []
    for st in range(16):
        G += step_gaps(st & 7, f'f{st}', opt, vm='VM'); SLOW.append((st & 1, f'f{st}', False))
    def at(st, g, x): place(G, [x], st * SL + g, st * SL + g)
    h0 = OPT.get('h0', 8)
    for k in range(8):
        x = f'buffer_store_dwordx4 {ar(HP + 4 * k, 4)}, {vr(CL16)}, {sr(SRD_WG, 4)}, {sr(sHO)} offen offset:{1024 * (k & 1)} sc1'
        if k in (2, 4, 6): x = (f's_add_u32 {sr(sHO)}, {sr(sHO)}, {HST()}', x)
        if not opt.get('nohst'): at(k if h0 == 0 else 2 * k, 62, x)
    place(G, wp_addr0(), SL + 27, SL + 61, kind='valu')
    dpos = [(2, 38), (3, 38), (4, 38), (4, 29), (5, 38), (6, 38), (6, 29), (7, 38)]
    dpos.sort()
    for (st, g), x in zip(dpos, wp_dma()): at(st, g, x)
    place(G, wp_addr1(), 8 * SL + 25, 9 * SL + 40, kind='valu')
    rd = wp_reads()
    sc, stv = wp_stores()
    G[11 * SL + 2].pre += sc[:2]; G[11 * SL + 4].pre += sc[2:6]; G[11 * SL + 6].pre += sc[6:]
    for k in range(4):
        place(G, rd[4 * k:4 * k + 4], (12 + k) * SL + 25, (12 + k) * SL + 29)
        at(12 + k, 38, stv[2 * k])
        at(12 + k, 65 if k & 1 == 0 else 62, stv[2 * k + 1])
    for j in range(1, 16, 2):
        n = vm_between(G, 0 if j < 4 else (j - 4) * SL + 59, j * SL + SL - 1)
        G[j * SL + SL - 1].pre = [x.replace('VM', str(min(n, 63))) for x in G[j * SL + SL - 1].pre]
    if opt.get('trace'): trace_ops(G, lambda st: [f's_mov_b32 s95, {63 - st}'], 16)
    a.raw('.p2align 3')
    emit_gaps(a, gapops(G), align=ALIGN())

def phase_b(a, opt):
    b_prologue(a, opt)
    stamp(a, opt, 'B0')
    a(f's_mov_b32 {sr(sCNT)}, 5')
    first_pass(a, opt)
    stamp(a, opt, 'B1')
    a.raw('.p2align 6')
    a.label('L_attn')
    G = []
    for sl in range(8):
        G += step_gaps(sl, f's{sl}', opt, vm=16); SLOW.append((sl & 1, f's{sl}', False))
    G[2 * SL + 23].pre += [f's_cmp_eq_u32 {sr(sCNT)}, {sr(sXO)}', f's_cselect_b32 s{SRD_WU + 2}, 4, 0']
    place(G, [f'buffer_atomic_add {vr(ONEV)}, {vr(CL16)}, {sr(SRD_WU, 4)}, 0 offen sc1'], 2 * SL + 25, 2 * SL + 25)
    if opt.get('trace'): trace_ops(G, lambda sl: [f's_lshl_b32 s95, {sr(sCNT)}, 3', f's_add_u32 s95, s95, {7 - sl}'])
    G[-6].pre.append(f's_sub_u32 {sr(sCNT)}, {sr(sCNT)}, 1')
    G[-4].pre.append(f's_cmp_lg_u32 {sr(sCNT)}, 0')
    G[-1].post.append('s_cbranch_scc1 L_attn')
    emit_gaps(a, gapops(G), align=ALIGN())
    a.raw('.p2align 3')
    G = []
    pf = [x for t in range(8) for x in c_dma(t)]
    extra = {4: pf[:8], 5: pf[8:16], 6: pf[16:24], 7: pf[24:]}
    for sl in range(8):
        g = step_gaps(sl, f't{sl}', opt, dma=sl < 2, final=sl == 7, extra=extra.get(sl), vm={1: 16, 3: 0, 5: 63}.get(sl, 0)); SLOW.append((sl & 1, f't{sl}', sl == 7))
        if sl == 0 and OPT.get('npf', 1):
            g[2].pre += ['s_lshr_b32 s3, s2, 3', 's_lshl_b32 s3, s3, 2', f's_add_u32 s3, s3, {sr(sW)}']
            g[4].pre += ['s_lshr_b32 s7, s3, 4', f's_mul_i32 s7, s7, {WFS}', 's_and_b32 s3, s3, 15']
            g[6].pre += ['s_lshl_b32 s3, s3, 13', 's_add_u32 s3, s3, s7', 's_bfe_u32 s7, s2, 0x20001']
            g[8].pre += ['s_lshl_b32 s7, s7, 17', 's_add_u32 s3, s3, s7', f's_add_u32 s58, s3, {WS_WF + 56 * 4096}']
            g[25].valu.append('v_lshlrev_b32 v4, 7, v1')
        if sl == 4 and OPT.get('npf', 1):
            PFX.append(f'buffer_load_dword v5, v4, {sr(SRD_WS, 4)}, s58 offen sc1')
            g[62].mem.append(PFX[-1])
        if sl == 2:
            su = c_setup_scalar()
            for k in range(0, len(su), 2):
                g[2 + k].pre += su[k:k + 2]
            g[25].mem.append(f'buffer_load_dword {vr(POLLV)}, off, {sr(SRD_DBG, 4)}, 0 sc1')
        if sl == 4:
            g[17].valu.append(f'v_cmp_gt_u32 vcc, 0x100, {vr(POLLV)}')
            g[23].post += ['s_cbranch_vccnz L_pollall', 'L_pollall_ok:']
        G += g
    emit_gaps(a, gapops(G), align=ALIGN())
    stamp(a, opt, 'Bend')
    if opt.get('trace'): a('v_mov_b32 v252, v221')

def finalize_pre(a):
    a(f'''
    s_lshl_b32 s3, {sr(sQB)}, 4
    s_lshl_b32 s7, {sr(sW)}, 2
    s_add_u32 s3, s3, s7
    s_mul_i32 s3, s3, {OST()}
    s_lshl_b32 s7, {sr(sH)}, 12
    s_add_u32 {sr(sOK)}, s3, s7
    ''')
    for hf in range(2):
        a(f'v_mov_b32 {vr(ST + hf)}, {vr(LMreg(hf))}')
    a('s_nop 0')
    for hf in range(2):
        a(f'v_permlane16_swap_b32 {vr(LMreg(hf))}, {vr(ST + hf)}')
    for hf in range(2):
        a(f'v_add_f32 {vr(ST + 2 + 2 * hf)}, {vr(LMreg(hf))}, {vr(ST + hf)}')
        a(f'v_add_f32 {vr(ST + 3 + 2 * hf)}, {vr(LMreg(hf))}, {vr(ST + hf)}')
    a('s_nop 0')
    for hf in range(2):
        a(f'v_permlane32_swap_b32 {vr(ST + 2 + 2 * hf)}, {vr(ST + 3 + 2 * hf)}')
    for c in range(4):
        a(f'v_rcp_f32 {vr(RL + 2 * c)}, {vr(ST + 2 + c)}')
        a(f'v_rcp_f32 {vr(RL + 2 * c + 1)}, {vr(ST + 2 + c)}')

NF = 14; NS = 32
BLK = [0, 1, 2, 3, 8, 9, 4, 5, 6, 7]
sB0 = 56; sB1 = 57
BAD = 8; AAD = 20; CA2 = 192; CB2 = 224
def c_stream(kind):
    st, base, k0, nk, ka = (HST(), WS_H, 0, NF, 0) if kind[0] == 'f' else (OST(), WS_O, 0, NS, 56)
    ops = []
    if 'b' in kind:
        ops += [f's_lshl_b32 s3, {sr(sRB)}, 2', f's_add_u32 s3, s3, {sr(sW)}', f's_mul_i32 s3, s3, {2 * st}', 's_bfe_u32 s7, s2, 0x20001', f's_mul_i32 s7, s7, {nk * 1024}',
                's_add_u32 s3, s3, s7', f's_add_u32 {sr(sB0)}, s3, {(base - 1024) & 0xffffffff}', f's_add_u32 {sr(sB1)}, {sr(sB0)}, {st - 1024}']
    if 'a' in kind:
        ops += [f's_lshl_b32 s3, {sr(sCB)}, 1', f's_lshr_b32 s7, {sr(sW)}, 1', 's_add_u32 s3, s3, s7', f's_mul_i32 s3, s3, {WFS}', 's_bfe_u32 s7, s2, 0x20001', f's_mul_i32 s7, s7, {nk * 4096}',
                's_add_u32 s3, s3, s7', f's_and_b32 s7, {sr(sW)}, 1', 's_lshl_b32 s7, s7, 11', 's_add_u32 s3, s3, s7', f's_add_u32 {sr(sAO)}, s3, {WS_WF + ka * 4096 - 2048 - 4096}']
    return ops
def c_setup_scalar(): return c_stream('fab')
def c_dma(t, what='ab'):
    ops = []
    pre = (f's_add_u32 m0, {sr(sW4K)}, {BLK[t % 10] * STAGE}',)
    if 'b' in what:
        ops += [pre + (f's_add_u32 {sr(sB0)}, {sr(sB0)}, 1024', f'buffer_load_dwordx4 {vr(CL16)}, {sr(SRD_WS, 4)}, {sr(sB0)} offen sc1 lds'),
                (f's_add_u32 {sr(sB1)}, {sr(sB1)}, 1024', f'buffer_load_dwordx4 {vr(CL16)}, {sr(SRD_WS, 4)}, {sr(sB1)} offen offset:1024 sc1 lds')]
        pre = ()
    if 'a' in what:
        ops += [pre + (f's_add_u32 {sr(sAO)}, {sr(sAO)}, 4096', f'buffer_load_dwordx4 {vr(CL16)}, {sr(SRD_WS, 4)}, {sr(sAO)} offen offset:2048 sc1 lds'),
                f'buffer_load_dwordx4 {vr(CL16)}, {sr(SRD_WS, 4)}, {sr(sAO)} offen offset:3072 sc1 lds']
    return ops
def c_reads(t):
    b = BLK[t % 10]; off = (b & 3) * STAGE; st = b >> 2
    out = []
    for k in range(4):
        out.append(f'ds_read_b128 {ar(CA2 + (t & 1) * 16 + 4 * k, 4)}, {vr(AAD + st)} offset:{off + (k >> 1) * 4096 + (k & 1) * 1024}')
        out.append(f'ds_read_b128 {ar(CB2 + (t & 1) * 16 + 4 * k, 4)}, {vr(BAD + 4 * st + k)} offset:{off}')
    return out

def spin(a, name, sleep, body):
    a.label(name)
    a('s_mov_b32 s63, 0x20000')
    a.label(name + '_l')
    a(f's_sub_u32 s63, s63, 1\ns_cbranch_scc1 {name}_ok')
    if sleep: a(f's_sleep {sleep}')
    body(name + '_l')
    a(f's_branch {name}_ok')

def hooks(a):
    def flag(srd_):
        def body(l):
            a(f'buffer_load_dword v5, v4, {sr(srd_, 4)}, 0 offen sc1\ns_waitcnt vmcnt(0)\nv_cmp_ne_u32 vcc, v5, v6\ns_cbranch_vccnz {l}')
        return body
    def cnt(l):
        a(f'buffer_load_dword {vr(POLLV)}, off, {sr(SRD_DBG, 4)}, 0 sc1\ns_waitcnt vmcnt(0)\nv_cmp_gt_u32 vcc, 0x100, {vr(POLLV)}\ns_cbranch_vccnz {l}')
    spin(a, 'L_pollall', 8, cnt)
    spin(a, 'L_po', OPT.get('posleep', 8), flag(SRD_WG))
    spin(a, 'L_pf', 8, flag(SRD_WD))
    spin(a, 'L_ps', OPT.get('pssleep', 12), flag(SRD_WD))

class VM:
    def __init__(self, init): self.ops = list(init); self.done = 0
    def issue(self, tag): self.ops.append(tag); assert len(self.ops) - self.done <= 63, (tag, len(self.ops) - self.done)
    def wait(self, *tags):
        last = max(i for i, t in enumerate(self.ops) if t in tags)
        n = len(self.ops) - 1 - last
        self.done = max(self.done, last + 1)
        return f's_waitcnt vmcnt({n})'

def x_pack(acc, j, tb=160, pb=176):
    rd = [f'v_accvgpr_read_b32 {vr(tb + 4 * nb + i)}, {ar(acc + (nb * 4 + j) * 4 + i)}' for nb in range(4) for i in range(4)]
    cv = [f'v_cvt_pk_bf16_f32 {vr(pb + k)}, {vr(tb + 2 * k)}, {vr(tb + 2 * k + 1)}' for k in range(8)]
    return rd, cv
def x_dest(j, base, r):
    return ['s_bfe_u32 s7, s2, 0x20001', f's_add_u32 s7, s7, {j}', 's_and_b32 s7, s7, 3', 's_lshl_b32 s3, s54, 2', 's_add_u32 s3, s3, s7', 's_mul_i32 s3, s3, 12288',
            f's_add_u32 {r}, s3, {base + (j - 1) * 2048}']
def x_loads(part, reg):
    return [f'buffer_load_dwordx4 {vr(reg + 4 * k, 4)}, {vr(CL16)}, {sr(SRD_WS, 4)}, {XIN[(6 * part + k) >> 2]} offen offset:{1024 * ((6 * part + k) & 3)} sc1' for k in range(6)]
def x_check(a, reg, retry):
    a(f'''
    v_max3_u32 v14, {vr(reg)}, {vr(reg + 4)}, {vr(reg + 8)}
    v_max3_u32 v14, v14, {vr(reg + 12)}, {vr(reg + 16)}
    v_max_u32 v14, v14, {vr(reg + 20)}
    v_cmp_eq_u32 vcc, -1, v14
    s_cbranch_vccnz {retry}
    ''')
def x_add(a, dst, reg):
    for r in range(3):
        for k in range(8):
            a(f'v_lshlrev_b32 {vr(96 + 2 * k)}, 16, {vr(reg + 8 * r + k)}')
            a(f'v_and_b32 {vr(97 + 2 * k)}, 0xffff0000, {vr(reg + 8 * r + k)}')
        for k in range(0, 16, 2):
            a(f'v_pk_add_f32 {vr(dst + k, 2)}, {vr(dst + k, 2)}, {vr(96 + k, 2)}')
def x_accum(dst, src):
    ops = []
    for k in range(8):
        ops += [f'v_lshlrev_b32 v200, 16, {vr(src + k)}', f'v_and_b32 v201, 0xffff0000, {vr(src + k)}',
                f'v_add_f32 {vr(dst + 2 * k)}, {vr(dst + 2 * k)}, v200', f'v_add_f32 {vr(dst + 2 * k + 1)}, {vr(dst + 2 * k + 1)}, v201']
    return ops

def phase_c(a, opt):
    T = NF + NS
    COUT = 23; CXR = 24; GV = 240; XR = 32; SV = 224
    finalize_pre(a)
    NPRE = OPT.get('npre', 4)
    for c in range(NPRE):
        for i in range(32): a(f'v_accvgpr_read_b32 {vr(160 + i)}, {ar(Oreg(c, 0) + i)}')
        for f in range(4):
            for i in range(0, 8, 2): a(f'v_pk_mul_f32 {vr(160 + 8 * f + i, 2)}, {vr(160 + 8 * f + i, 2)}, {vr(RL + 2 * c, 2)}')
            for i in range(4): a(f'v_cvt_pk_bf16_f32 {vr(192 + 4 * f + i)}, {vr(160 + 8 * f + 2 * i)}, {vr(161 + 8 * f + 2 * i)}')
            a(f'buffer_store_dwordx4 {vr(192 + 4 * f, 4)}, {vr(CL16)}, {sr(SRD_WS, 4)}, {sr(sOK)} offen offset:{1024 * f} sc1')
        a(f's_add_u32 {sr(sOK)}, {sr(sOK)}, {OST()}')
    a(f'''
    s_lshr_b32 s7, {sr(sW)}, 1
    s_lshl_b32 s58, s7, 13               ; mh*8192
    s_and_b32 s7, {sr(sW)}, 1
    s_lshl_b32 s7, s7, 13
    s_add_u32 s7, s7, 2048
    v_add_u32 {vr(AAD)}, s7, {vr(CL16)}
    v_add_u32 {vr(AAD + 1)}, 65536, {vr(AAD)}
    v_add_u32 {vr(AAD + 2)}, 131072, {vr(AAD)}
    ''')
    for j in range(4):
        a(f'''
        s_bfe_u32 s3, s2, 0x20001
        s_add_u32 s3, s3, {j}
        s_and_b32 s7, s3, 1
        s_and_b32 s3, s3, 2
        s_lshl_b32 s3, s3, 11
        s_lshl_b32 s7, s7, 10
        s_add_u32 s3, s3, s7
        s_add_u32 s3, s3, s58
        v_add_u32 {vr(BAD + j)}, s3, {vr(CL16)}
        v_add_u32 {vr(BAD + 4 + j)}, 65536, {vr(BAD + j)}
        v_add_u32 {vr(BAD + 8 + j)}, 131072, {vr(BAD + j)}
        ''')
    vm = VM([0] * 4 + [1] * 4 + ['pf'] * len(PFX[-1:]) + [t for t in range(2, 8) for _ in range(4)] + ['o'] * (4 * NPRE))
    a(vm.wait(2))
    a('s_barrier')
    for x in c_reads(0): a(x)
    a(f'''
    s_mov_b32 s{SRD_X}, s96
    s_mov_b32 s{SRD_X + 1}, s97
    s_mov_b32 s{SRD_X + 2}, 2097152
    s_mov_b32 s{SRD_X + 3}, 0x20000
    v_lshlrev_b32 v5, 5, v3
    v_lshl_add_u32 {vr(COUT)}, v2, 10, v5
    s_lshl_b32 s3, {sr(sRB)}, 17
    s_lshl_b32 s7, s58, 3
    s_add_u32 s3, s3, s7
    s_bfe_u32 s7, s2, 0x20001
    s_lshl_b32 s7, s7, 14
    s_add_u32 s3, s3, s7
    s_lshl_b32 s7, {sr(sCB)}, 8
    s_add_u32 s3, s3, s7
    s_and_b32 s7, {sr(sW)}, 1
    s_lshl_b32 s7, s7, 7
    s_add_u32 {sr(sOV)}, s3, s7
    s_add_u32 s{SRD_WU}, s{SRD_WS}, s94
    s_addc_u32 s{SRD_WU + 1}, s{SRD_WS + 1}, 0
    s_mov_b32 s{SRD_WU + 2}, 4
    s_lshl_b32 s3, {sr(sRB)}, 10
    s_lshr_b32 s7, s58, 4
    s_add_u32 s3, s3, s7                 ; flag lines of row block 2*RB + mh
    s_bfe_u32 s7, s2, 0x20001
    s_lshl_b32 s7, s7, 7
    s_add_u32 s3, s3, s7
    s_add_u32 s3, s3, {WS_FLAG}
    s_add_u32 s{SRD_WG}, s{SRD_WS}, s3
    s_addc_u32 s{SRD_WG + 1}, s{SRD_WS + 1}, 0
    s_mov_b32 s{SRD_WG + 2}, 32
    s_lshl_b32 s3, s54, 8
    s_add_u32 s3, s3, {WS_FF}
    s_add_u32 s{SRD_WD}, s{SRD_WS}, s3
    s_addc_u32 s{SRD_WD + 1}, s{SRD_WS + 1}, 0
    s_mov_b32 s{SRD_WD + 2}, 16
    s_bfe_u32 s7, s2, 0x20001
    s_lshl_b32 s7, s7, 2
    s_add_u32 s{SRD_WO}, s{SRD_WD}, s7
    s_addc_u32 s{SRD_WO + 1}, s{SRD_WD + 1}, 0
    s_mov_b32 s{SRD_WO + 2}, 4
    v_lshlrev_b32 v4, 2, v1
    v_cmp_gt_u32 vcc, 8, v1
    v_mov_b32 v0, 1
    s_nop 0
    v_cndmask_b32 v6, 0, 1, vcc
    s_waitcnt lgkmcnt(0)
    '''.replace('v_mov_b32 v0, 1', f'v_mov_b32 {vr(ONEV)}, 1'))
    a.raw('.p2align 3')
    NFS = OPT.get('nfs', 4)
    PT = OPT.get('pt', 10)
    flag_t = OPT.get('flag_t', 0)
    U0 = OPT.get('u0', 20)
    cont = OPT.get('cont', 1) and PT <= 10
    if cont: OPT.setdefault('fxlate', 1); OPT.setdefault('fflag', 6 * OPT.get('fsp', 1) + 6)
    for t in range(T):
        acc = ACF if t < NF else ACS_
        first = t in (0, NF)
        u = t - NF
        G = []
        for nb, j in ([(nb, j) for nb in range(4) for j in range(4)] if t < T - 1 else [(nb, j) for j in (1, 2, 3, 0) for nb in range(4)]):
            if True:
                d = ar(acc + (nb * 4 + j) * 4, 4)
                G.append(Gap(mf(d, ar(CA2 + (t & 1) * 16 + 4 * nb, 4), ar(CB2 + (t & 1) * 16 + 4 * j, 4), '0' if first else d)))
        def vmem(g, x, tag):
            place(G, [x], g, None, cap=9); vm.issue(tag)
        if t == PT:
            if PT == NF:
                a(f'buffer_load_dword v5, v4, {sr(SRD_WG, 4)}, 0 offen sc1'); vm.issue('fl')
                for j in range(1, 4):
                    rd, cv = x_pack(ACF, j, 160, 176 + 8 * (j - 1))
                    for x in (['s_nop 4'] if j == 1 else []) + rd + cv: a(x)
            for x in c_stream('sb'): a(x)
            a(vm.wait('fl'))
            a('v_cmp_ne_u32 vcc, v5, v6\ns_cbranch_vccnz L_po\nL_po_ok:')
            stamp(a, opt, 'poll1')
            for tt in range(NF, PT + 8):
                emit_plain(a, c_dma(tt, 'b'))
                for k in range(2): vm.issue(tt)
            a('v_cmp_gt_u32 vcc, 4, v1\ns_nop 1\nv_cndmask_b32 v6, 0, 1, vcc')
            a.raw('.p2align 3')
        if t == NF and cont:
            stamp(a, opt, 's0')
        if t == NF and not cont:
            stamp(a, opt, 'fend')
            fxl = OPT.get('fxlate', 0)
            for j in range(1, 4) if not fxl else []:
                if PT != NF:
                    rd, cv = x_pack(ACF, j, 160, 176 + 8 * (j - 1))
                    for x in (['s_nop 6'] if j == 1 else []) + rd + cv: a(x)
                for x in x_dest(j, WS_XF, 's58'): a(x)
                for k in range(2):
                    a(f'buffer_store_dwordx4 {vr(176 + 8 * (j - 1) + 4 * k, 4)}, {vr(CL16)}, {sr(SRD_WS, 4)}, s58 offen offset:{1024 * k} sc1'); vm.issue('fx')
            a(vm.wait(NF, NF + 1, NF + 2))
            a('s_barrier')
            for x in c_reads(NF): a(x)
            a('s_waitcnt lgkmcnt(0)')
            stamp(a, opt, 's0')
            a.raw('.p2align 3')
        if t + 1 < T and (t + 1 != NF or cont):
            for k, x in zip([0, 1, 3, 4, 5, 7, 8, 9], c_reads(t + 1)): G[k].mem.append(x)
        stores = []
        nf = OPT.get('nf', 4)
        if t < (16 - 4 * NPRE) // nf:
            c = (t * nf + 4 * NPRE) >> 2; f0 = (t * nf) & 3
            for i in range(8 * nf):
                G[i // nf].valu.append(f'v_accvgpr_read_b32 {vr(160 + i)}, {ar(Oreg(c, 2 * f0) + i)}')
            for i in range(0, 8 * nf, 2):
                G[8].valu.append(f'v_pk_mul_f32 {vr(160 + i, 2)}, {vr(160 + i, 2)}, {vr(RL + 2 * c, 2)}')
            G[8].post.append('s_nop 1')
            for f in range(nf):
                for i in range(4):
                    G[9 + f].valu.append(f'v_cvt_pk_bf16_f32 {vr(192 + 4 * f + i)}, {vr(160 + 8 * f + 2 * i)}, {vr(161 + 8 * f + 2 * i)}')
                stores.append((10 + f if nf == 4 else 11 + 4 * f, f'buffer_store_dwordx4 {vr(192 + 4 * f, 4)}, {vr(CL16)}, {sr(SRD_WS, 4)}, {sr(sOK)} offen offset:{1024 * (f0 + f)} sc1', 'o'))
            if f0 + nf == 4: G[15].post.append(f's_add_u32 {sr(sOK)}, {sr(sOK)}, {OST()}')
        todo = []
        tn = t + 8
        if tn < T:
            d = c_dma(tn, 'a' if NF <= tn and t < PT else 'ab')
            if tn == NF:
                G[0].pre += c_stream('sa')
            todo += list(zip([2, 6, 10, 14], d, [tn] * 4))
        if t == PT - OPT.get('pback', 2) and PT != NF:
            stores += [(0, f'buffer_load_dword v5, v4, {sr(SRD_WG, 4)}, 0 offen sc1', 'fl')]
        fx0 = OPT.get('fxlate', 0)
        fsp = OPT.get('fsp', 1)
        if fx0 and fx0 <= u < fx0 + 6 * fsp and (u - fx0) % (2 * fsp) == 0:
            j = (u - fx0) // (2 * fsp) + 1
            rd, cv = x_pack(ACF, j)
            for k, x in enumerate(rd): G[k // 2].valu.append(x)
            for k, x in enumerate(cv): G[8 + k // 2].valu.append(x)
            G[11].pre += x_dest(j, WS_XF, 's58')
            stores += [(15, f'buffer_store_dwordx4 {vr(176, 4)}, {vr(CL16)}, {sr(SRD_WS, 4)}, s58 offen offset:0 sc1', 'fx')]
        if fx0 and fx0 <= u < fx0 + 6 * fsp and (u - fx0) % (2 * fsp) == fsp:
            stores += [(15, f'buffer_store_dwordx4 {vr(180, 4)}, {vr(CL16)}, {sr(SRD_WS, 4)}, s58 offen offset:1024 sc1', 'fx')]
        if u == U0:
            stores += [(15, f'buffer_load_dword v5, v4, {sr(SRD_WD, 4)}, 0 offen sc1', 'ff')]
        if u == 26:
            stores += [(4 + 6 * k, f'buffer_load_dwordx4 {vr(CXR + 4 * k, 4)}, {vr(COUT)}, {sr(SRD_X, 4)}, {sr(sOV)} offen offset:{16 * k}', 'x') for k in range(2)]
        if u == U0 + 3 + (U0 < 23):
            stores += [(2 * k + (U0 < 21), x, 'fx2') for k, x in enumerate(x_loads(0, XR))]
        for g, x, tag in sorted(todo + stores, key=lambda z: z[0]):
            vmem(g, x, tag)
        if u == 30:
            for j in range(1, 4): G[4 * j].pre += x_dest(j, WS_XF + 6144, f's{55 + j}')
        if t == flag_t:
            G[15].post += [vm.wait('o'), f'buffer_store_dword {vr(ONEV)}, {vr(CL16)}, {sr(SRD_WU, 4)}, 0 offen sc1'] + stamp_op('Oflag'); vm.issue('flag')
        if u == OPT.get('fflag', 8):
            G[15].post += [vm.wait('fx'), f'buffer_store_dword {vr(ONEV)}, {vr(CL16)}, {sr(SRD_WO, 4)}, 0 offen sc1']; vm.issue('flag2')
        if u == 28:
            G[4].pre += [f's_add_u32 s{SRD_WO}, s{SRD_WO}, 128', f's_addc_u32 s{SRD_WO + 1}, s{SRD_WO + 1}, 0']
        if u == 22:
            for k in range(16): G[k].valu.append(f'v_accvgpr_read_b32 {vr(GV + k)}, {ar(ACF + (k >> 2) * 16 + (k & 3))}')
        if u == U0 + 2 + (U0 < 23):
            G[15].post += [vm.wait('ff'), 'v_cmp_ne_u32 vcc, v5, v6', 's_cbranch_vccnz L_pf', 'L_pf_ok:']
        if u == 27:
            G[4].pre += [f's_add_u32 s{SRD_WD}, s{SRD_WD}, 128', f's_addc_u32 s{SRD_WD + 1}, s{SRD_WD + 1}, 0']
        if u == 28:
            G[15].post.append(vm.wait('fx2'))
        if 29 <= u <= 31:
            for k, x in enumerate(x_accum(GV, XR + 8 * (u - 29))): G[k // 2].valu.append(x)
        if t + 1 < T and (t + 1 != NF or cont):
            if (t + 1) % 2 == 0:
                need = [x for x in (t + 2, t + 3) if x < T and (cont or not (t + 1 < NF <= x))]
                w = vm.wait(*need) + ' lgkmcnt(0)' if need else 's_waitcnt lgkmcnt(0)'
                G[15].post += [w, 's_barrier']
            else:
                G[15].post.append('s_waitcnt lgkmcnt(0)')
        if opt.get('ctrace'):
            G[0].pre.append(f's_memtime s[100:101]')
            G[14].valu.append(f'v_writelane_b32 v222, s100, {63 - t}')
        emit_gaps(a, gapops(G), align=False)
    stamp(a, opt, 'send')
    for j in range(1, 4):
        rd, cv = x_pack(ACS_, j, 160, 176 + 8 * (j - 1))
        for x in rd + cv: a(x)
        for k in range(2):
            a(f'buffer_store_dwordx4 {vr(176 + 8 * (j - 1) + 4 * k, 4)}, {vr(CL16)}, {sr(SRD_WS, 4)}, s{55 + j} offen offset:{1024 * k} sc1')
    stamp(a, opt, 'xst')
    for k in range(16):
        a(f'v_accvgpr_read_b32 {vr(SV + k)}, {ar(ACS_ + (k >> 2) * 16 + (k & 3))}')
    a('s_waitcnt vmcnt(6)')
    for k in range(8):
        a(f'v_lshlrev_b32 {vr(64 + 2 * k)}, 16, {vr(CXR + k)}')
        a(f'v_and_b32 {vr(65 + 2 * k)}, 0xffff0000, {vr(CXR + k)}')
    for k in range(16): a(f'v_mul_f32 {vr(144 + k)}, {f2u(-math.log2(math.e))}, {vr(GV + k)}')
    for k in range(16): a(f'v_exp_f32 {vr(144 + k)}, {vr(144 + k)}')
    for k in range(16): a(f'v_add_f32 {vr(112 + k)}, 1.0, {vr(144 + k)}')
    for k in range(16): a(f'v_rcp_f32 {vr(112 + k)}, {vr(112 + k)}')
    for k in range(0, 16, 2): a(f'v_pk_mul_f32 {vr(GV + k, 2)}, {vr(GV + k, 2)}, {vr(112 + k, 2)}')
    a(f'''
    s_waitcnt vmcnt(0)
    buffer_store_dword {vr(ONEV)}, {vr(CL16)}, {sr(SRD_WO, 4)}, 0 offen sc1
    {''.join(stamp_op('xack'))}
    s_branch L_ps
    L_ps_ok:
    ''')
    stamp(a, opt, 'xf')
    XS = 32
    for x in x_loads(1, XS): a(x)
    for r in range(3):
        a(f's_waitcnt vmcnt({4 - 2 * r})')
        if r == 2: stamp(a, opt, 'xld')
        for k in range(8):
            a(f'v_lshlrev_b32 {vr(96 + 2 * k)}, 16, {vr(XS + 8 * r + k)}')
            a(f'v_and_b32 {vr(97 + 2 * k)}, 0xffff0000, {vr(XS + 8 * r + k)}')
        for k in range(0, 16, 2):
            a(f'v_pk_add_f32 {vr(SV + k, 2)}, {vr(SV + k, 2)}, {vr(96 + k, 2)}')
    for k in range(0, 16, 2):
        a(f'v_pk_fma_f32 {vr(SV + k, 2)}, {vr(SV + k, 2)}, {vr(GV + k, 2)}, {vr(64 + k, 2)}')
    for k in range(8):
        a(f'v_cvt_pk_bf16_f32 {vr(CXR + k)}, {vr(SV + 2 * k)}, {vr(SV + 1 + 2 * k)}')
    for k in range(2):
        a(f'buffer_store_dwordx4 {vr(CXR + 4 * k, 4)}, {vr(COUT)}, {sr(SRD_OUT, 4)}, {sr(sOV)} offen offset:{16 * k}{OPT.get("outsc", "")}')

OPT = {}
def add_pads(a, period, nchain):
    out = []; addr = 0; nxt = None; pads = []
    lines = a.lines
    for k, l in enumerate(lines):
        t = l.strip()
        if t.startswith('.p2align'):
            al = 1 << int(t.split()[1]); addr = (addr + al - 1) // al * al
        if t == 'L_warmdone:': addr = 0; nxt = period - OPT.get('padoff', 0)
        if t == 'L_end:': nxt = None
        if nxt is not None and addr >= nxt and t.startswith(('v_', 'ds_read', 's_add', 's_mov', 's_lshl', 'buffer_load')) and not lines[k - 1].strip().startswith(('.')):
            out.append(f'L_pad{len(pads)}:'); out.append(f'    PAD{len(pads)}'); pads.append(addr)
            addr += 4; nxt += period
            out.append('    s_nop 0'); addr += 4
        out.append(l); addr += isize(l)
    n = len(pads)
    for k, l in enumerate(out):
        if l.startswith('    PAD'):
            i = int(l[7:])
            out[k] = f'    s_cbranch_execz ' + (f'L_pad{i + nchain}' if i + nchain < n else 'L_warmret')
    a.lines = out
    return n

def gen(opt):
    OPT.clear(); OPT.update(opt)
    SLOW.clear(); STAMPS.clear(); PFX.clear()
    a = A()
    setup(a, opt)
    phase_a(a, opt)
    phase_b(a, opt)
    phase_c(a, opt)
    if opt.get('stamp'):
        a('s_waitcnt vmcnt(0)')
        stamp(a, opt, 'end')
        a(f'''
        s_waitcnt lgkmcnt(0)
        s_lshl_b32 s3, s2, 2
        s_add_u32 s3, s3, {sr(sW)}
        s_lshl_b32 s3, s3, 6
        s_add_u32 s3, s3, {WS_STAMP}
        v_mov_b32 v1, 0
        v_mov_b32 v4, v0
        ''')
        if opt.get('ctrace'): a('v_mov_b32 v252, v222\n; v_cndmask_b32 v221')
        if opt.get('trace') or opt.get('ctrace'):
            a(f's_lshl_b32 s7, s2, 2\ns_add_u32 s7, s7, {sr(sW)}\ns_lshl_b32 s7, s7, 8\ns_add_u32 s7, s7, {WS_STAMP + (1 << 20)}\nv_lshrrev_b32 v20, 2, v7')
            a(f'buffer_store_dword v252, v20, {sr(SRD_WS, 4)}, s7 offen')
        if opt.get('dbgstamp'):
            a(f's_cmp_lg_u32 {sr(sW)}, 0\ns_cbranch_scc1 L_nodbg')
            a('v_not_b32 v20, v0\ns_mov_b64 exec, 1')
            a(f'v_mov_b32 v21, s{sST + 2 * (len(STAMPS) - 1)}')
            a(f'buffer_atomic_umax v20, off, {sr(SRD_DBG, 4)}, 0 offset:56 sc1')
            a(f'buffer_atomic_umax v21, off, {sr(SRD_DBG, 4)}, 0 offset:60 sc1')
            a(f's_cmp_lg_u32 s2, {opt["dbgstamp"]}\ns_cbranch_scc1 L_nodbg')
            for i in range(len(STAMPS)):
                a(f'v_sub_u32 v{22 + i}, s{sST + 2 * i}, v0')
                a(f'buffer_store_dword v{22 + i}, off, {sr(SRD_DBG, 4)}, 0 offset:{4 + 4 * i} sc1')
            a('L_nodbg:\ns_mov_b64 exec, -1')
        for i in range(12): a(f'v_mov_b32 v{5 + i}, s{sST + 2 * i}')
        for i in range(4):
            a(f'buffer_store_dwordx4 v[{4 + 4 * i}:{7 + 4 * i}], v1, {sr(SRD_WS, 4)}, s3 offen offset:{16 * i}')
    a.label('L_end')
    a('s_endpgm')
    hooks(a)
    for p, tag, final in SLOW:
        for hf in range(2):
            a.label(f'L_slow{hf}_{tag}')
            a(f's_call_b64 s[98:99], L_slowfn{hf}_{p}_{int(final)}')
            a(f's_branch L_back{hf}_{tag}')
    for p, final in sorted({(p, f) for p, _, f in SLOW}):
        for hf in range(2):
            slow_path(a, p, hf, final)
    if OPT.get('pad', 4096):
        npad = add_pads(a, OPT.get('pad', 4096), OPT.get('nchain', 4))
        print('pads', npad, file=sys.stderr)
    a.label('L_codeend')
    a('s_endpgm')
    return kernel_file(f'; ost {OST()} hst {HST()}\n; stamps entry ' + ' '.join(STAMPS) + '\n' + a.text(), 'grid=(256,1,1) block=(256,1,1) lds=163840')

if __name__ == '__main__':
    opt = json.loads(sys.argv[2]) if len(sys.argv) > 2 else {}
    open(sys.argv[1], 'w').write(gen(opt))
```

```python
import sys, json, math, struct
sys.path.insert(0, 'gen')
from asmlib import *

def f2u(x): return '0x%08x' % struct.unpack('<I', struct.pack('<f', x))[0]

WS_O = 0; WS_H = 17 << 20; WS_FLAG = 25 << 20; WS_WF = (25 << 20) + 65536; WS_STAMP = 32 << 20; WS_XF = 34 << 20; WS_XS = 41 << 20; WS_FF = 47 << 20
WFS = 184 * 4096
sH = 4; sQB = 5; sW = 6
SRD_K = 8; SRD_V = 12; SRD_WS = 16; SRD_X = 20; SRD_WQ = 24; SRD_WG = 28; SRD_WU = 32; SRD_WO = 36; SRD_WD = 40; SRD_OUT = 44; SRD_DBG = 48
sOK = 52; sOV = 53; sM = 54; sCNT = 55; sT0 = 56; sT1 = 57; sT2 = 58; sT3 = 59
sXO = 60; sQO = 61; sGO = 62; sWB = 63
sW4K = 88; sRB = 89; sCB = 90; sBO = 56; sHO = 91; sWQB = 92; sWGB = 93
sDL = 95
sST = 64
KA = 8; VAA = 16; DK0 = 28; DK1 = 29; DV0 = 30; DV1 = 31; VAB = 244
Q = 32; S = 96; NM = 160; PA = 176; PB = 192; TMP = 200; ST = 204; THR = 220; LANE = 1; LM = 224; RL = 240
O = 0; KF = 128; VF = 160; SIDX = 216; WPR = 224
STAGE = 16384
AQ = 8; AG = 12; AC = 16; AX = 20; DQ = 22; DG = 23; DX = 24
XF = 32; ACQ = 96; SX = 224; CSD = 228; STT = 232; SXX = 240; IDX = 27
AGU = 0; AR = 128; AK = 160
XBUF = 0; WBUF = 65536; CSBUF = 81920
CB = 32
def CAop(sl, nb):
    return ar(192 + sl * 16 + 4 * nb, 4) if sl < 4 else vr(96 + 32 * (sl - 4) + 4 * nb, 4) if sl < 6 else vr(208 + 4 * nb, 4) if sl == 6 else ar(4 * nb, 4)
def CBop(sl, j):
    return vr(32 + sl * 16 + 4 * j, 4) if sl < 4 else vr(112 + 32 * (sl - 4) + 4 * j, 4) if sl < 6 else vr(224 + 4 * j, 4) if sl == 6 else ar(16 + 4 * j, 4)
ACF = 128; ACS_ = 64
CL16 = 7
CRW = 8; CRR = 11; COUT = 12; CXR = 16
sAO = 61; POLLV = 6; ONEV = 223

def OST(): return OPT.get('ost', 136192)
def HST(): return OPT.get('hst', 58368)
XIN = ['s92', 's93', 's62']
def TW(r):
    return f's_lshl_b32 {r}, {sr(sRB)}, 2\ns_add_u32 {r}, {r}, {sr(sCB)}\ns_lshl_b32 {r}, {r}, 2\ns_add_u32 {r}, {r}, {sr(sW)}'
def mf(d, a_, b_, c):
    return f'v_mfma_f32_16x16x32_bf16 {d}, {a_}, {b_}, {c}'

class Gap:
    def __init__(self, m):
        self.m = m; self.pre = []; self.mem = []; self.valu = []; self.post = []
    def ops(self):
        return [self.m] + self.pre + self.mem + self.valu + self.post
    def units(self):
        u = 0
        for x in self.mem: u += 2 if x.startswith('buffer') else 0 if x.startswith('s_') else 1
        for x in self.valu: u += 2 if x.startswith(('v_exp', 'v_rcp', 'v_log', 'v_rsq', 'v_permlane')) else 1
        return u

def place(G, ops, lo, hi=None, kind='mem', cap=2):
    g = lo
    for x in ops:
        pre = []
        if isinstance(x, tuple):
            pre, x = list(x[:-1]), x[-1]
        need = 2 if x.startswith(('buffer', 'v_exp', 'v_rcp', 'v_rsq', 'v_log', 'v_permlane')) else 1
        need = min(need, cap)
        while G[g].units() + need > cap:
            g += 1
        if hi is not None:
            assert g <= hi, (x, g, hi)
        if pre:
            if g > 0 and not any(y.startswith('buffer') for y in G[g - 1].mem):
                G[g - 1].pre += pre
            else:
                if ' m0,' in pre[-1]:
                    pre.append('s_nop 0')
                G[g].pre += pre
        getattr(G[g], kind).append(x)
    return g

STAMPS = []
def place_some(G, ops, lo, hi):
    g = lo
    for k, x in enumerate(ops):
        need = 2 if x.startswith(('v_exp', 'v_rcp', 'v_rsq', 'v_log', 'v_permlane')) else 1
        while g <= hi and G[g].units() + need > 2: g += 1
        if g > hi: return list(ops[k:])
        G[g].valu.append(x)
    return []

def stamp_op(name):
    if not OPT.get('stamp') or (OPT.get('only') and name not in OPT['only']):
        return []
    k = len(STAMPS); STAMPS.append(name)
    assert k < 12
    return [f'{"s_memtime" if OPT.get("cyc") else "s_memrealtime"} s[{sST + 2 * k}:{sST + 2 * k + 1}]']
def stamp(a, opt, name):
    for x in stamp_op(name): a(x)

def srd(a, base, lo, hi, nrec, add=None, sub=None):
    if add is not None:
        a(f's_add_u32 s{base}, s{lo}, {add}')
        a(f's_addc_u32 s{base + 1}, s{hi}, 0')
    else:
        a(f's_mov_b32 s{base}, s{lo}')
        a(f's_mov_b32 s{base + 1}, s{hi}')
    if sub is not None:
        a(f's_sub_u32 s{base}, s{base}, {sub}')
        a(f's_subb_u32 s{base + 1}, s{base + 1}, 0')
    a(f's_mov_b32 s{base + 2}, {nrec}')
    a(f's_mov_b32 s{base + 3}, 0x20000')

def HOP(k):
    if not OPT.get('hop'): return ''
    if k == 0:
        return ('s_mov_b64 exec, 0\ns_nop 1\n' + ''.join(f's_cmp_eq_u32 s6, {w}\ns_cbranch_scc1 L_hop{w + 1}\n' for w in range(3)) +
                's_branch L_hop4\nL_hopret:\ns_mov_b64 exec, -1')
    return f'L_hop{k}:\ns_cbranch_execz L_hopret'

def setup(a, opt):
    a(f'''
    s_cmp_ge_u32 s2, 256
    s_cbranch_scc1 L_end
    {("s_memtime" if opt.get("cyc") else "s_memrealtime") + " s[98:99]" if opt.get("stamp") else ""}
    s_load_dwordx16 s[64:79], s[0:1], 0
    s_load_dwordx8 s[80:87], s[0:1], 64
    v_lshrrev_b32 v4, 6, v0
    v_and_b32 v1, 63, v0
    v_readfirstlane_b32 {sr(sW)}, v4
    {HOP(0)}
    s_and_b32 s3, s2, 7
    s_bfe_u32 s7, s2, 0x20003
    s_lshl_b32 s3, s3, 2
    s_add_u32 {sr(sH)}, s3, s7
    s_lshr_b32 {sr(sQB)}, s2, 5
    s_lshl_b32 {sr(sW4K)}, {sr(sW)}, 12
    s_and_b32 s3, s2, 1
    s_lshl_b32 s3, s3, 3
    s_add_u32 {sr(sRB)}, s3, {sr(sQB)}
    s_bfe_u32 {sr(sCB)}, s2, 0x20003
    {"s_mov_b32 s89, 0" if opt.get("x_rb") else ""}
    {"s_mov_b32 s90, 0" if opt.get("x_cb") else ""}
    v_and_b32 v2, 15, v1                ; r = l&15
    v_lshrrev_b32 v3, 4, v1             ; g = l>>4
    ''')
    if OPT.get('ipf', 1):
        a(f'''
        s_getpc_b64 s[100:101]
        L_pc:
        s_lshr_b32 s3, s2, 3
        s_lshl_b32 s3, s3, 2
        s_add_u32 s3, s3, {sr(sW)}
        s_and_b32 s3, s3, 15
        s_lshl_b32 s3, s3, 13
        s_min_u32 s3, s3, L_codeend-L_pc-8192
        v_lshlrev_b32 v4, 7, v1
        v_add_u32 v4, s3, v4
        global_load_dword v26, v4, s[100:101]
        ''')

def setup_x(a, opt):
    a(f's_lshl_b32 s3, {sr(sQB)}, 18\ns_lshl_b32 s7, {sr(sW)}, 16\ns_add_u32 s3, s3, s7')
    a('s_waitcnt lgkmcnt(0)')
    if opt.get('stamp'): a('v_mov_b32 v0, s98')
    if opt.get('early'): a('s_memrealtime vcc')
    if OPT.get('tlb'):
        lst = OPT['tlb']
        a('s_lshr_b32 s7, s2, 3\ns_and_b32 s7, s7, 7\ns_mov_b64 s[100:101], s[64:65]\nv_mov_b32 v4, 0')
        for k, (r, off) in enumerate(lst):
            a(f's_cmp_eq_u32 s7, {k + 1}\ns_cselect_b64 s[100:101], s[{r}:{r + 1}], s[100:101]')
            if off: a(f's_cselect_b32 s8, {off}, 0\nv_max_u32 v4, s8, v4')
        a('global_load_dword v26, v4, s[100:101]')
    srd(a, SRD_X, 64, 65, 65536, add='s3')

def setup_w(a):
    a(f's_lshl_b32 s3, {sr(sH)}, 8')
    srd(a, SRD_WQ, 70, 71, 511 * 8192 + 256, add='s3')
    a(f's_lshl_b32 s3, {sr(sH)}, 7\ns_cmp_lt_u32 {sr(sH)}, 28\ns_cselect_b32 s3, s3, 0\ns_cselect_b32 s7, {511 * 3584 + 128}, 0')
    srd(a, SRD_WG, 76, 77, 's7', add='s3')
    srd(a, SRD_WU, 78, 79, 's7', add='s3')

def setup_wp(a):
    a('s_cmp_lt_u32 s2, 128\ns_cselect_b32 s72, s72, s80\ns_cselect_b32 s73, s73, s81\ns_and_b32 s3, s2, 127\ns_lshl_b32 s3, s3, 15')
    a('s_cmp_lt_u32 s2, 184\ns_cselect_b32 s3, s3, 0')
    a('s_cselect_b32 s7, 32768, 0\ns_cselect_b32 s74, 0x10000000, 0')
    srd(a, SRD_WO, 72, 73, 's7', add='s3')
    srd(a, SRD_WD, 86, 87, 's74')

def setup2(a, opt):
    a(f's_lshl_b32 s3, {sr(sH)}, 19')
    srd(a, SRD_K, 66, 67, 524288, add='s3')
    srd(a, SRD_V, 68, 69, 524288 + 2048 + 16384, add='s3', sub=2048 + 16384)
    srd(a, SRD_WS, 86, 87, 0x10000000)
    srd(a, SRD_OUT, 82, 83, 2097152)
    srd(a, SRD_DBG, 84, 85, 256)
    a('s_mov_b32 s96, s64\ns_mov_b32 s97, s65')

def a_setup_dma_addr(a):
    a(f'''
    s_lshl_b32 s3, {sr(sW)}, 3
    v_add_u32 v4, s3, v3                 ; row = 8w + (l>>4)
    v_lshlrev_b32 v5, 2, v3
    v_xor_b32 v5, v5, v2
    v_lshlrev_b32 v5, 4, v5
    v_lshl_add_u32 {vr(DQ)}, v4, 13, v5
    v_lshrrev_b32 v4, 3, v1              ; rho = l>>3
    v_and_b32 v5, 3, v4
    v_lshrrev_b32 v6, 5, v1
    v_lshl_add_u32 v5, v6, 3, v5
    s_lshr_b32 s3, {sr(sW)}, 1
    s_lshl_b32 s3, s3, 4
    s_and_b32 s7, {sr(sW)}, 1
    s_lshl_b32 s7, s7, 2
    s_add_u32 s3, s3, s7
    v_add_u32 v5, s3, v5                 ; W row
    v_mul_u32_u24 v5, 3584, v5
    v_lshlrev_b32 v6, 1, v3
    v_and_b32 v7, 7, v1
    v_xor_b32 v6, v6, v7
    v_lshl_add_u32 {vr(DG)}, v6, 4, v5
    v_xor_b32 v6, v3, v7
    v_lshlrev_b32 v6, 4, v6
    v_lshl_add_u32 {vr(DX)}, v4, 10, v6
    v_xor_b32 {vr(DX + 1)}, 64, {vr(DX)}
    ''')

def a_dma_x(j_par):
    ops = []
    for i in range(8):
        pre = []
        if i % 4 == 0:
            pre.append(f's_add_u32 m0, {sr(sT3)}, {XBUF + j_par * 32768 + (i // 4) * 4096}')
        pre.append(f's_add_u32 {sr(sT0 + (i & 1))}, {sr(sXO)}, {i * 8192 - 1024 * (i & 3)}')
        ops.append(tuple(pre) + (f'buffer_load_dwordx4 {vr(DX + (i & 1))}, {sr(SRD_X, 4)}, {sr(sT0 + (i & 1))} offen offset:{1024 * (i & 3)} lds',))
    return ops, [f's_add_u32 {sr(sXO)}, {sr(sXO)}, 128', f's_and_b32 {sr(sXO)}, {sr(sXO)}, 1023']

def a_dma_w():
    ops = []
    for ks in range(2):
        ops.append((f's_add_u32 m0, {sr(sWQB)}, {ks * 16384}', f's_add_u32 {sr(sT0)}, {sr(sQO)}, {ks * 32 * 8192}',
                    f'buffer_load_dwordx4 {vr(DQ)}, {sr(SRD_WQ, 4)}, {sr(sT0)} offen lds'))
        ops.append((f's_add_u32 {sr(sT1)}, {sr(sQO)}, {ks * 32 * 8192 + 4 * 8192 - 1024}',
                    f'buffer_load_dwordx4 {vr(DQ)}, {sr(SRD_WQ, 4)}, {sr(sT1)} offen offset:1024 lds'))
        ops.append((f's_add_u32 m0, {sr(sWGB)}, {ks * 16384}', f's_add_u32 {sr(sT0)}, {sr(sGO)}, {ks * 32 * 3584}',
                    f'buffer_load_dwordx4 {vr(DG)}, {sr(SRD_WG, 4)}, {sr(sT0)} offen lds'))
        ops.append((f's_add_u32 m0, m0, 4096',
                    f'buffer_load_dwordx4 {vr(DG)}, {sr(SRD_WU, 4)}, {sr(sT0)} offen lds'))
    adv = [f's_add_u32 {sr(sQO)}, {sr(sQO)}, {64 * 8192}', f's_and_b32 {sr(sQO)}, {sr(sQO)}, 0x3fffff', f's_lshr_b32 {sr(sGO)}, {sr(sQO)}, 13', f's_mul_i32 {sr(sGO)}, {sr(sGO)}, 3584',
           f's_add_u32 {sr(sWB)}, {sr(sWB)}, 1', f's_cmp_eq_u32 {sr(sWB)}, 3', f's_cselect_b32 {sr(sT2)}, -2, 1', f's_cselect_b32 {sr(sWB)}, 0, {sr(sWB)}',
           f's_lshl_b32 {sr(sT2)}, {sr(sT2)}, 15', f's_add_u32 {sr(sWQB)}, {sr(sWQB)}, {sr(sT2)}', f's_add_u32 {sr(sWGB)}, {sr(sWGB)}, {sr(sT2)}']
    return ops, adv

def emit_plain(a, ops):
    for x in ops:
        if isinstance(x, tuple):
            for y in x[:-1]: a(y)
            if ' m0,' in x[-2]: a('s_nop 0')
            a(x[-1])
        else:
            a(x)

def a_setup_read_addr(a):
    a(f'''
    v_bfe_u32 v4, v1, 2, 2               ; r'
    v_and_b32 v5, 3, v1                  ; c'
    v_lshl_add_u32 v6, v3, 3, v4         ; 8g + r'
    v_lshlrev_b32 v6, 8, v6
    v_lshl_add_u32 v6, v4, 6, v6         ; + (r'<<2)*16
    v_lshl_add_u32 v6, v5, {3 if OPT.get('a_noconf') else 4}, v6         ; + c'*16
    {"v_and_b32 v7, 16, v1" if OPT.get('a_noconf') else ""}
    {"v_lshl_add_u32 v6, v7, 1, v6" if OPT.get('a_noconf') else ""}
    v_add_u32 v6, {WBUF}, v6
    ''')
    for sp in range(4):
        a(f'v_xor_b32 {vr(AQ + sp)}, {sp * 64}, v6')
    a(f'''
    v_bfe_u32 v6, v1, 2, 3               ; rho = 4(g&1) + r'
    v_lshrrev_b32 v7, 1, v6              ; key2
    v_lshlrev_b32 v6, 7, v6
    v_lshl_add_u32 v6, v7, 5, v6
    v_lshl_add_u32 v6, v5, 3, v6
    v_lshrrev_b32 v7, 5, v1
    v_lshl_add_u32 v6, v7, 11, v6
    v_add_u32 v6, {WBUF + 8192}, v6
    ''')
    for nb in range(4):
        a(f'v_xor_b32 {vr(AG + nb)}, {nb * 32}, v6')
    a(f's_cmp_eq_u32 {sr(sW)}, 0\ns_cselect_b64 s[98:99], -1, 0\ns_cmp_lt_u32 {sr(sW)}, 2\ns_cselect_b64 s[100:101], -1, 0')
    a(f's_and_b32 s3, {sr(sW)}, 1\ns_lshl_b32 s3, s3, 12')
    for k in range(4):
        a(f'v_cndmask_b32 v4, {vr(AQ + 2 + (k >> 1))}, {vr(AQ + (k >> 1))}, s[98:99]')
        if k & 1:
            a('v_add_u32 v4, 8, v4')
        a(f'v_add_u32 v5, s3, {vr(AG + k)}')
        a(f'v_cndmask_b32 {vr(AC + k)}, v5, v4, s[100:101]')
    a(f'''
    v_lshrrev_b32 v4, 1, v2
    v_xor_b32 v4, v4, v3
    v_lshlrev_b32 v4, 4, v4
    v_lshl_add_u32 v4, v2, 7, v4
    v_add_u32 {vr(AX)}, {sr(sT3)}, v4
    v_xor_b32 {vr(AX + 1)}, 64, {vr(AX)}
    v_mov_b32 v4, 0x3f803f80
    v_and_b32 v5, 3, v1
    v_mov_b32 v6, 0xeeee
    v_and_b32 v7, 4, v1
    v_cmp_eq_u32 vcc, 0, v7
    v_mov_b32 v7, 0x4444
    v_cmp_eq_u32 s[98:99], 0, v5
    v_cndmask_b32 {vr(IDX)}, v6, v7, vcc
    s_nop 0
    ''')
    for k in range(4):
        a(f'v_cndmask_b32 v6, 0, v4, s[98:99]')
        if k < 3: a(f'v_cmp_eq_u32 s[98:99], {k + 1}, v5')
        for i in range(4):
            a(f'v_accvgpr_write_b32 {ar(AK + 4 * k + i)}, v6')

def Xreg(par, c, ks): return XF + par * 32 + c * 8 + ks * 4
def accA(nb, c):
    return vr(ACQ + (nb * 4 + c) * 4, 4) if nb < 8 else ar(AGU + ((nb - 8) * 4 + c) * 4, 4)
ORDER = [16, 17, 18, 19] + list(range(16))
def a_reads(pos):
    grp = ORDER[pos]
    out = []
    for ks in range(2):
        for u in range(2):
            off = ks * 16384 + u * 1024
            if grp < 8:
                ad = AQ + (grp >> 1); off += 8 * (grp & 1)
            elif grp < 16:
                ad = AG + (grp & 3); off += 4096 * ((grp - 8) >> 2)
            else:
                ad = AC + grp - 16
            out.append(f'ds_read_b64_tr_b16 {ar(AR + (pos & 3) * 8 + ks * 4 + 2 * u, 2)}, {vr(ad)} offset:{off}')
    return out
def x_reads(par):
    return [f'ds_read_b128 {vr(Xreg(par, c, ks), 4)}, {vr(AX + ks)} offset:{XBUF + par * 32768 + c * 2048}' for c in range(4) for ks in range(2)]

def a_superstep(par, first, tail, kv_ops=None, name=None, pre_ops=None, pre_adv=None):
    G = []; start = []
    for pos in range(20):
        grp = ORDER[pos]
        start.append(len(G))
        sl = AR + (pos & 3) * 8
        if grp < 16:
            for c in range(4):
                for ks in range(2):
                    d = accA(grp, c)
                    G.append(Gap(mf(d, ar(sl + 4 * ks, 4), vr(Xreg(par, c, ks), 4), '0' if first and ks == 0 else d)))
        else:
            k = grp - 16
            G.append(Gap(f'v_smfmac_f32_16x16x64_bf16 {vr(CSD, 4)}, {ar(AK + 4 * k, 4)}, {ar(sl, 8)}, {vr(IDX)}'))
            G.append(Gap(f'v_smfmac_f32_16x16x64_bf16 {vr(SX, 4)}, {ar(AK + 4 * k, 4)}, {vr(Xreg(par, k, 0), 8)}, {vr(IDX)}'))
            for ks in range(2):
                d = vr(SXX + 4 * k, 4)
                G.append(Gap(mf(d, vr(Xreg(par, k, ks), 4), vr(Xreg(par, k, ks), 4), '0' if first and ks == 0 else d)))
    start.append(len(G))
    def at(g, x, kind='mem'):
        place(G, [x], g, g, kind=kind)
    rp = OPT.get('a_rp', [0, 1, 2, 3])
    for grp in range(18):
        for k, x in zip(rp if grp >= 4 else [0, 0, 1, 2], a_reads(grp + 2)):
            at(start[grp] + k, x)
    dm = []
    if tail == 0:
        wops, wadv = a_dma_w(); xops, xadv = a_dma_x(par)
        if OPT.get('a_now'): wops = []
        if OPT.get('a_nox'): xops = []
        dm = wops + xops
        if pre_ops:
            dm = pre_ops + dm
    if kv_ops:
        dm = kv_ops
    free = [start[p] + (5 if p >= 4 else 3) for p in range(18)]
    if len(dm) > len(free):
        free = [g for p in range(18) for g in ((start[p] + 4, start[p] + 6) if p >= 4 else (start[p] + 3,))]
    pos = free[:len(dm)]
    for g, x in zip(pos, dm):
        if x is not None: at(g, x)
    if tail == 0:
        npre = len(pre_ops) if pre_ops else 0
        if pre_ops:
            for g, adv in pre_adv:
                G[pos[g] + 1].pre += adv
        if wops:
            g = pos[npre + len(wops) - 1]
            G[g + 1].pre += wadv[:4]; G[g + 2].pre += wadv[4:8]; G[g + 3].pre += wadv[8:]
        if xops:
            G[pos[-1] + 1].pre += xadv
    xg = OPT.get('a_xg', 14)
    if tail < 2:
        wg = start[xg] + 3
        npre = len(pre_ops) if pre_ops else 0
        younger = sum(1 for k, g in enumerate(pos) if g < wg and k >= npre and dm[k] is not None)
        assert all(g < wg for g in pos[:npre])
        G[wg].pre.append(f's_waitcnt vmcnt({younger})')
        xr = x_reads(1 - par)
        for k, x in enumerate(xr):
            at(start[xg + k // 4] + 3 + (k % 4) + (1 if G[start[xg + k // 4] + 3 + (k % 4)].units() >= 2 else 0), x) if False else None
        g = wg
        xpos = []
        for x in xr:
            while G[g].units() >= 2 or any(y.startswith('ds_read_b128') for y in G[g].mem): g += 1
            G[g].mem.append(x); xpos.append(g)
        assert xpos[-1] < start[18] - 2, xpos
    if tail == 2:
        w, st, rd = a_stats_ops()
        g = place(G, w[0], start[4] + 5, start[9] + 4, kind='valu')
        place(G, w[1], start[9] + 5, start[10] + 7, cap=1)
        G[start[12] - 1].post += ['s_waitcnt lgkmcnt(4)', 's_barrier']
        place(G, rd, start[14] + 4, start[17] + 7, cap=1)
        rest = place_some(G, st, g, start[20] - 1)
        G[-1].post += ['s_nop 1'] + rest
    seq = [(g, x) for g in range(len(G)) for x in G[g].mem if x.startswith('ds_')]
    for grp in range(2, 20):
        if grp == 18:
            continue
        last = max(k for k, (g, x) in enumerate(seq) if x in a_reads(grp) and start[grp - 2] <= g < start[grp - 1])
        n = sum(1 for k, (g, x) in enumerate(seq) if k > last and g < start[grp] - 1)
        G[start[grp] - 1].pre.append(f's_waitcnt lgkmcnt({min(n, 14)})')
    G[start[1] - 1].pre.append('s_waitcnt lgkmcnt(4)')
    if tail < 2:
        G[start[18] - 1].pre += ['s_waitcnt lgkmcnt(0)', 's_barrier']
        vu = [f'v_add_u32 {vr(AQ + i)}, {sr(sDL)}, {vr(AQ + i)}' for i in range(12)]
        place(G, vu[:4] + vu[8:], start[14], start[17] + 5, kind='valu')
        for k, x in enumerate(a_reads(0)): at(start[18] + k, x)
        for k, x in enumerate(a_reads(1)): at(start[19] + k, x)
        place(G, vu[4:8], start[18], start[19] + 5, kind='valu')
        G[start[20] - 1].pre.append('s_waitcnt lgkmcnt(4)')
        G[start[13] + 1].pre += [f's_add_u32 {sr(sM)}, {sr(sM)}, 1', f's_cmp_eq_u32 {sr(sM)}, 3', f's_cselect_b32 {sr(sDL)}, -2, 1', f's_cselect_b32 {sr(sM)}, 0, {sr(sM)}']
        G[start[13] + 2].pre += [f's_lshl_b32 {sr(sDL)}, {sr(sDL)}, 15']
    else:
        G[start[18] - 1].pre += ['s_waitcnt lgkmcnt(0)']
    if OPT.get('a_nobar'):
        for g in G: g.pre = [x for x in g.pre if x != 's_barrier']
    if OPT.get('a_nowait'):
        for g in G: g.pre = [x for x in g.pre if not x.startswith('s_waitcnt lgkmcnt')]
    if OPT.get('a_novm'):
        for g in G: g.pre = [x for x in g.pre if not x.startswith('s_waitcnt vmcnt')]
    if OPT.get('a_nords'):
        for g in G: g.mem = [x for x in g.mem if not x.startswith('ds_read_b64')]
    if name:
        so = stamp_op(name)
        if so:
            G[start[18] - 1].post += so
            G[start[19] - 1].pre.append('s_waitcnt lgkmcnt(0)')
    return G

WPA = [240, 241, 242, 243, 252, 253, 254, 255]
def wp_addr0():
    return ['v_lshlrev_b32 v4, 1, v3', 'v_xor_b32 v4, v4, v2', 'v_lshlrev_b32 v4, 4, v4', 'v_lshl_add_u32 v4, v3, 10, v4', 'v_xor_b32 v5, 128, v4']
def wp_dma():
    ops = []
    for i in range(8):
        pre = []
        if i == 0: pre += [f's_lshl_b32 {sr(sT2)}, {sr(sW)}, 8']
        pre += [f's_add_u32 m0, {sr(sT3)}, {131072 + i * 1024}', f's_add_u32 {sr(sT0)}, {sr(sT2)}, {i * 4096}']
        ops.append(tuple(pre) + (f'buffer_load_dwordx4 v{4 + (i & 1)}, {sr(SRD_WO, 4)}, {sr(sT0)} offen lds',))
    return ops
def wp_addr1():
    t0, t1 = WPA[0], WPA[1]
    ops = [f'v_lshrrev_b32 {vr(t0)}, 2, v1', f'v_and_b32 {vr(t1)}, 7, {vr(t0)}', f'v_lshlrev_b32 {vr(t0)}, 8, {vr(t0)}', f'v_lshl_add_u32 {vr(t0)}, {vr(t1)}, 5, {vr(t0)}',
           f'v_and_b32 {vr(t1)}, 3, v1', f'v_lshlrev_b32 {vr(t1)}, 5, {vr(t1)}', f'v_xor_b32 {vr(t0)}, {vr(t1)}, {vr(t0)}', f'v_add_u32 {vr(t0)}, {sr(sT3)}, {vr(t0)}', f'v_add_u32 {vr(t0)}, 131072, {vr(t0)}']
    ops += [f'v_xor_b32 {vr(WPA[db])}, {(db >> 2) * 128 + (db & 3) * 8}, {vr(t0)}' for db in range(1, 8)]
    return ops
def wp_reads():
    return [f'ds_read_b64_tr_b16 {ar(WPR + db * 4 + 2 * u, 2)}, {vr(WPA[db])} offset:{u * 4096}' for db in range(8) for u in range(2)]
def wp_stores():
    st = []
    for db in range(8):
        st.append(f'buffer_store_dwordx4 {ar(WPR + db * 4, 4)}, {vr(CL16)}, {sr(SRD_WD, 4)}, {"s3" if db < 4 else "s7"} offen offset:{1024 * (db & 3)} sc1')
    sc = ['s_sub_u32 s3, s2, 128', 's_add_u32 s7, s2, 56', 's_cmp_lt_u32 s2, 128', 's_cselect_b32 s3, s7, s3', 's_lshl_b32 s3, s3, 12',
          f's_mul_i32 s7, {sr(sW)}, {2 * WFS}', 's_add_u32 s3, s3, s7', f's_add_u32 s3, s3, {WS_WF}', f's_add_u32 s7, s3, {WFS}']
    return sc, st

def wp_store_ops():
    sc, st = wp_stores()
    out = []
    for k, x in enumerate(st):
        out += [tuple(sc) + (x,) if k == 0 else x, None]
    return out

def warmup(a):
    if OPT.get('pad', 4096):
        nch = OPT.get('nchain', 4)
        a('s_mov_b64 exec, 0')
        for w in range(nch - 1):
            a(f's_cmp_eq_u32 {sr(sW)}, {w}\ns_cbranch_scc1 L_pad{w}')
        a(f's_branch L_pad{nch - 1}')
        a.raw('.p2align 12')
        a.label('L_warmdone')
        a.label('L_warmret')
        a('s_mov_b64 exec, -1')

def phase_a(a, opt):
    a(f's_lshl_b32 {sr(sT3)}, {sr(sW)}, 13')
    a_setup_dma_addr(a)
    a(f's_and_b32 s3, s2, {7 if OPT.get("arot", 0) else 0}\ns_lshl_b32 {sr(sXO)}, s3, 7\ns_lshl_b32 {sr(sQO)}, s3, 19\ns_mul_i32 {sr(sGO)}, s3, {64 * 3584}\ns_mov_b32 {sr(sWB)}, 0\ns_mov_b32 {sr(sM)}, 0')
    a(f's_lshl_b32 {sr(sWQB)}, {sr(sW)}, 11\ns_add_u32 {sr(sWQB)}, {sr(sWQB)}, {WBUF}\ns_lshl_b32 {sr(sWGB)}, {sr(sW)}, 10\ns_add_u32 {sr(sWGB)}, {sr(sWGB)}, {WBUF + 8192}')
    xops, xadv = a_dma_x(0); wops, wadv = a_dma_w()
    setup_x(a, opt)
    if OPT.get('b1', 0):
        emit_plain(a, xops[:1])
        setup_w(a)
        w0 = [wops[0], wops[2], wops[3]]
        emit_plain(a, w0)
        emit_plain(a, [(xops[0][0],) + xops[1]] + xops[2:]); emit_plain(a, xadv)
        emit_plain(a, [(wops[0][0],) + wops[1]] + wops[4:]); emit_plain(a, wadv)
    else:
        emit_plain(a, xops); emit_plain(a, xadv)
        setup_w(a)
        emit_plain(a, wops); emit_plain(a, wadv)
    if opt.get('early') and not opt.get('early2'): a('s_memrealtime s[98:99]')
    wm = OPT.get('warmpos', 1)
    if wm == 1: warmup(a)
    xops, xadv = a_dma_x(1); wops, wadv = a_dma_w()
    b = A()
    for i in range(ACQ, ACQ + 4): b(f'v_mov_b32 {vr(i)}, 0')
    setup2(b, opt); setup_wp(b)
    if opt.get('early'):
        b('s_waitcnt lgkmcnt(0)')
        for nm, r in (('karg', 'vcc_lo'), ('i16', 's98')):
            b(f's_mov_b32 s{sST + 2 * len(STAMPS)}, {r}'); STAMPS.append(nm)
    a_setup_read_addr(b); b_setup_dma_addr(b)
    for i in range(ACQ + 4, 256):
        b(f'v_mov_b32 {vr(i)}, 0')
        if (i - ACQ) % 16 == 8 and (i - ACQ) // 16 < 8:
            b(f'v_mfma_f32_32x32x16_bf16 {ar(AGU + 16 * ((i - ACQ) // 16), 16)}, {vr(ACQ, 4)}, {vr(ACQ, 4)}, 0')
    fill = [l.strip() for l in b.lines]
    per = len(fill) // 15 + 1
    k0 = 0
    for k, x in enumerate(xops + wops):
        emit_plain(a, [x])
        if k == 7: emit_plain(a, xadv)
        k1 = min(len(fill), k0 + per)
        while k1 < len(fill) and fill[k1].startswith(('s_addc', 's_subb', 's_cselect')): k1 += 1
        for y in fill[k0:k1]: a(y)
        k0 = k1
    assert k0 == len(fill)
    emit_plain(a, wadv)
    ntouch = 0
    stamp(a, opt, 'issued')
    a(f'''
    s_lshl_b32 s3, {sr(sQB)}, 2
    s_add_u32 s3, s3, {sr(sW)}
    s_lshl_b32 s3, s3, 2
    s_lshr_b32 s7, {sr(sH)}, 3
    s_add_u32 s3, s3, s7
    s_lshl_b32 s3, s3, 5
    s_and_b32 s7, {sr(sH)}, 7
    s_add_u32 s3, s3, s7
    s_lshl_b32 s3, s3, 2
    s_add_u32 s94, s3, {WS_FLAG}
    v_mov_b32 v4, 0
    s_mov_b64 exec, 1
    buffer_store_dword v4, v4, {sr(SRD_WS, 4)}, s94 offen sc1
    {TW('s3')}
    s_lshl_b32 s3, s3, 6
    s_bfe_u32 s7, s2, 0x20001
    s_add_u32 s3, s3, s7
    s_lshl_b32 s3, s3, 2
    s_add_u32 s3, s3, {WS_FF}
    buffer_store_dword v4, v4, {sr(SRD_WS, 4)}, s3 offen sc1
    buffer_store_dword v4, v4, {sr(SRD_WS, 4)}, s3 offen offset:128 sc1
    s_mov_b64 exec, -1
    ''')
    if wm == 2: warmup(a)
    a(f's_waitcnt vmcnt({19 + ntouch})')
    for x in x_reads(0): a(x)
    a('s_waitcnt lgkmcnt(0)\ns_barrier')
    for x in a_reads(0) + a_reads(1): a(x)
    stamp(a, opt, 'A0')
    a('s_waitcnt lgkmcnt(0)' if opt.get('stamp') else 's_waitcnt lgkmcnt(4)')
    a.raw('.p2align 3')
    a(f's_mov_b32 {sr(sCNT)}, 3')
    a.raw('.p2align 3')
    a.label('L_a')
    G = a_superstep(0, False, 0, name='a4') + a_superstep(1, False, 0, name='a5')
    G[-4].pre.append(f's_sub_u32 {sr(sCNT)}, {sr(sCNT)}, 1')
    G[-2].pre.append(f's_cmp_lg_u32 {sr(sCNT)}, 0')
    G[-1].post.append('s_cbranch_scc1 L_a')
    emit_gaps(a, [g.ops() for g in G])
    a.raw('.p2align 3')
    emit_gaps(a, [g.ops() for g in a_superstep(0, False, 1, name='a6', kv_ops=b_prologue_dma()[:12]) + a_superstep(1, False, 2, kv_ops=b_prologue_dma()[12:])])
    stamp(a, opt, 'Aend')
    a_epilogue(a, opt)

def NMEAN(c): return SX + c
def ALPHA(c): return STT + c
def RS2(c): return STT + 4 + c
CSQ = 32; CSG = 160; HP = 192; ZQ = 240
def a_stats_ops():
    w0 = ['v_lshlrev_b32 v4, 4, v3', f'v_add_u32 v4, {CSBUF}, v4', 'v_lshlrev_b32 v5, 2, v2', f'v_lshl_add_u32 v5, {sr(sW)}, 8, v5', f'v_add_u32 v5, {CSBUF}, v5']
    w0 += [f'v_mov_b32 {vr(STT + k)}, {vr(CSD + k)}' for k in range(4)]
    w0 += [f'v_permlane16_swap_b32 {vr(CSD + k)}, {vr(STT + k)}' for k in range(4)]
    w0 += [f'v_add_f32 {vr(CSD + k)}, {vr(CSD + k)}, {vr(STT + k)}' for k in range(4)]
    w1 = [f'ds_write_b32 v5, {vr(CSD + k)} offset:{64 * k}' for k in range(4)]
    st = ['v_and_b32 v6, 3, v1', 'v_cmp_eq_u32 s[98:99], 1, v6', 'v_cmp_eq_u32 s[100:101], 2, v6', 'v_cmp_eq_u32 vcc, 3, v6',
          'v_lshrrev_b32 v6, 2, v2', 'v_cmp_eq_u32 s[92:93], v6, v3']
    st += [f'v_mov_b32 {vr(STT + 4 + k)}, {vr(SX + k)}' for k in range(4)]
    st += [f'v_permlane16_swap_b32 {vr(SX + k)}, {vr(STT + 4 + k)}' for k in range(4)]
    st += [f'v_add_f32 {vr(SX + k)}, {vr(SX + k)}, {vr(STT + 4 + k)}' for k in range(4)]
    for c in range(4):
        st.append(f'v_mul_f32 {vr(NMEAN(c))}, {f2u(-1 / 512)}, {vr(SX + c)}')
    for k, m in ((1, 's[98:99]'), (2, 's[100:101]'), (3, 'vcc')):
        for c in range(4):
            b = SXX + 4 * c
            st.append(f'v_cndmask_b32 {vr(b)}, {vr(b)}, {vr(b + k)}, {m}')
    for c in range(4):
        st.append(f'v_cndmask_b32 {vr(SXX + 4 * c)}, 0, {vr(SXX + 4 * c)}, s[92:93]')
    for sw in ('v_permlane32_swap_b32', 'v_permlane16_swap_b32'):
        for c in range(4): st.append(f'v_mov_b32 {vr(SXX + 4 * c + 1)}, {vr(SXX + 4 * c)}')
        for c in range(4): st.append(f'{sw} {vr(SXX + 4 * c)}, {vr(SXX + 4 * c + 1)}')
        for c in range(4): st.append(f'v_add_f32 {vr(SXX + 4 * c)}, {vr(SXX + 4 * c)}, {vr(SXX + 4 * c + 1)}')
    sc = (128 ** -0.5) * math.log2(math.e)
    for c in range(4): st.append(f'v_mul_f32 {vr(SXX + 4 * c)}, {f2u(1 / 512)}, {vr(SXX + 4 * c)}')
    for c in range(4): st.append(f'v_fma_f32 {vr(SXX + 4 * c)}, -{vr(NMEAN(c))}, {vr(NMEAN(c))}, {vr(SXX + 4 * c)}')
    for c in range(4): st.append(f'v_max_f32 {vr(SXX + 4 * c)}, 0, {vr(SXX + 4 * c)}')
    for c in range(4): st.append(f'v_add_f32 {vr(SXX + 4 * c)}, {f2u(1e-5)}, {vr(SXX + 4 * c)}')
    for c in range(4): st.append(f'v_rsq_f32 {vr(ALPHA(c))}, {vr(SXX + 4 * c)}')
    for c in range(4): st.append(f'v_rcp_f32 {vr(RS2(c))}, {vr(SXX + 4 * c)}')
    for c in range(4): st.append(f'v_mul_f32 {vr(ALPHA(c))}, {f2u(sc)}, {vr(ALPHA(c))}')
    for i in range(4): st.append(f'v_mov_b32 {vr(ZQ + i)}, 0')
    rd = [f'ds_read_b128 {vr(CSQ + 4 * nb, 4)}, v4 offset:{64 * nb}' for nb in range(8)]
    return (w0, w1), st, rd

def bc(r):
    return vr(r & ~1, 2), (r & 1)

def a_epilogue(a, opt):
    for c in range(4):
        nm, nh = bc(NMEAN(c))
        for nb in range(8):
            b = ACQ + (nb * 4 + c) * 4
            for i in (0, 2):
                a(f'v_pk_fma_f32 {vr(b + i, 2)}, {vr(CSQ + 4 * nb + i, 2)}, {nm}, {vr(b + i, 2)} op_sel:[0,{nh},0] op_sel_hi:[1,{nh},1]')
    for c in range(4):
        al, ah = bc(ALPHA(c))
        for nb in range(8):
            b = ACQ + (nb * 4 + c) * 4
            for i in (0, 2):
                a(f'v_pk_mul_f32 {vr(b + i, 2)}, {vr(b + i, 2)}, {al} op_sel:[0,{ah}] op_sel_hi:[1,{ah}]')
            for i in (0, 2):
                a(f'v_cvt_pk_bf16_f32 {vr(Q + 16 * c + 2 * nb + (i >> 1))}, {vr(b + i)}, {vr(b + i + 1)}')
    stamp(a, opt, 'e_q')
    for nb in range(8):
        a(f'ds_read_b128 {vr(CSG + 4 * nb, 4)}, v4 offset:{64 * (8 + nb)}')

def h_epilogue(a, mfmas, vmem):
    mfmas = list(mfmas)
    for c in range(4):
        nm, nh = bc(NMEAN(c)); rs, rh = bc(RS2(c))
        tg = 128; tu = 144
        emit_plain(a, vmem[c:c + 1])
        for k in range(16):
            if k % 2 == 0: a(mfmas.pop(0))
            a(f'v_accvgpr_read_b32 {vr(tg + k)}, {ar(AGU + ((k >> 2) * 4 + c) * 4 + (k & 3))}')
            a(f'v_accvgpr_read_b32 {vr(tu + k)}, {ar(AGU + (((k >> 2) + 4) * 4 + c) * 4 + (k & 3))}')
        for k in range(0, 16, 2):
            a(f'v_pk_fma_f32 {vr(tg + k, 2)}, {vr(CSG + k, 2)}, {nm}, {vr(tg + k, 2)} op_sel:[0,{nh},0] op_sel_hi:[1,{nh},1]')
        for k in range(0, 16, 2):
            a(f'v_pk_fma_f32 {vr(tu + k, 2)}, {vr(CSG + 16 + k, 2)}, {nm}, {vr(tu + k, 2)} op_sel:[0,{nh},0] op_sel_hi:[1,{nh},1]')
        for k in range(0, 16, 2):
            a(f'v_pk_mul_f32 {vr(tg + k, 2)}, {vr(tg + k, 2)}, {rs} op_sel:[0,{rh}] op_sel_hi:[1,{rh}]')
        for k in range(0, 16, 2):
            a(f'v_pk_mul_f32 {vr(tg + k, 2)}, {vr(tg + k, 2)}, {vr(tu + k, 2)}')
        for k in range(8):
            a(f'v_cvt_pk_bf16_f32 {vr(tu + k)}, {vr(tg + 2 * k)}, {vr(tg + 2 * k + 1)}')
        for k in range(8):
            a(f'v_accvgpr_write_b32 {ar(HP + c * 8 + k)}, {vr(tu + k)}')
    assert not mfmas

def Sreg(buf, c, kb=0): return S + buf * 32 + c * 8 + kb * 4
def Qreg(c, s): return Q + c * 16 + s * 4
def Preg(c, par): return (PA + par * 8 + c * 4) if c < 2 else PB + (c - 2) * 4
def Oreg(c, db): return O + c * 32 + db * 4
def LMreg(hf): return LM + hf * 4
def LOLD(hf): return LM + 8 + hf
SELA = 24; HL = 33; SL = 66
def qk_mfma(buf, c, kb, s, c0=None):
    d = vr(Sreg(buf, c, kb), 4)
    cc = d if s else (c0 if c0 is not None else vr(NM + 4 * c, 4))
    return mf(d, ar(KF + 4 * (kb * 4 + s), 4), vr(Qreg(c, s), 4), cc)
def pv_mfma(c, par, db, c0=None):
    d = ar(Oreg(c, db), 4)
    return mf(d, ar(VF + db * 4, 4), vr(Preg(c, par), 4), d if c0 is None else c0)
def sum_mfma(hf, par):
    return f'v_smfmac_f32_16x16x64_bf16 {vr(LMreg(hf), 4)}, {vr(SELA, 4)}, {vr(Preg(2 * hf, par), 8)}, {vr(SIDX)}'
def k_read(slot, kb, s, base=None):
    if base is not None:
        return f'ds_read_b128 {ar(KF + 4 * (kb * 4 + s), 4)}, {vr(base + s)} offset:{slot * STAGE + kb * 8192}'
    return f'ds_read_b128 {ar(KF + 4 * (kb * 4 + s), 4)}, {vr(KA + 4 * (slot >> 2) + s)} offset:{(slot & 3) * STAGE + kb * 8192}'
def v_read(slot, db, u):
    return f'ds_read_b64_tr_b16 {ar(VF + db * 4 + 2 * u, 2)}, {vr((VAB if slot >= 4 else VAA) + db)} offset:{(slot & 3) * STAGE + u * 8192 + 2048}'
def dma_k(i):
    return f'buffer_load_dwordx4 {vr(DK0 + i)}, {sr(SRD_K, 4)}, {sr(sOK)} offen offset:{1024 * i}{OPT.get("kvsc", "")} lds'
def dma_v(i):
    return f'buffer_load_dwordx4 {vr(DV0 + i)}, {sr(SRD_V, 4)}, {sr(sOK)} offen offset:{2048 + 1024 * i}{OPT.get("kvsc", "")} lds'
def stage_dma(slot, k=True, v=True):
    ops = ([dma_k(0), dma_k(1)] if k else []) + ([dma_v(0), dma_v(1)] if v else [])
    ops[0] = (f's_add_u32 m0, {sr(sW4K)}, {slot * STAGE}', f's_add_u32 {sr(sOK)}, {sr(sOK)}, 8192', ops[0])
    return ops

def b_setup_dma_addr(a):
    a(f'''
    s_lshl_b32 s3, {sr(sW)}, 3
    v_add_u32 v5, s3, v3          ; row = 8w + (l>>4)
    v_and_b32 v7, 15, v5
    v_xor_b32 v7, v7, v2
    v_lshlrev_b32 v7, 4, v7
    v_lshl_add_u32 {vr(DK0)}, v5, 8, v7
    v_xor_b32 {vr(DK1)}, 64, {vr(DK0)}
    v_lshlrev_b32 v7, 1, v3
    v_xor_b32 v7, v7, v2
    v_lshlrev_b32 v7, 4, v7
    v_lshl_add_u32 {vr(DV0)}, v5, 8, v7
    v_xor_b32 {vr(DV1)}, 128, {vr(DV0)}
    s_mov_b32 {sr(sOK)}, {-8192 & 0xffffffff}
    ''')

def b_prologue_dma():
    ops = stage_dma(8, v=False) + stage_dma(9, v=False)
    for sl in range(5):
        ops += stage_dma(sl)
    return ops

def b_prologue_dma2():
    return stage_dma(5)

def b_setup_read_addr(a):
    a(f'''
    v_lshrrev_b32 v4, 3, v2
    v_lshlrev_b32 v4, 12, v4      ; (r>>3)*4096
    v_and_b32 v5, 7, v2
    v_lshl_add_u32 v4, v5, 8, v4  ; + (r&7)*256
    v_xor_b32 v5, v2, v3
    v_lshl_add_u32 v4, v5, 4, v4  ; + (r^g)*16
    ''')
    for s in range(4):
        a(f'v_xor_b32 {vr(KA + s)}, {s * 64}, v4')
        a(f'v_add_u32 {vr(KA + 4 + s)}, 65536, {vr(KA + s)}')
        a(f'v_add_u32 {vr(ST + 8 + s)}, 131072, {vr(KA + s)}')
    a(f'''
    v_bfe_u32 v4, v1, 2, 3        ; row&7
    v_lshlrev_b32 v5, 8, v4
    v_lshl_add_u32 v5, v4, 5, v5
    v_lshrrev_b32 v6, 5, v1
    v_lshl_add_u32 v5, v6, 12, v5
    v_and_b32 v6, 3, v1
    v_lshl_add_u32 v5, v6, 3, v5
    ''')
    for db in range(8):
        a(f'v_xor_b32 {vr(VAA + db)}, {db * 32}, v5')
        a(f'v_add_u32 {vr(VAB + db)}, 65536, {vr(VAA + db)}')
    a(f'''
    v_mov_b32 {vr(THR)}, 0x4e800000      ; 2^30
    v_mov_b32 {vr(SIDX)}, {vr(IDX)}
    v_lshrrev_b32 v4, 3, v2
    v_lshrrev_b32 v5, 5, v1
    v_and_b32 v6, 3, v1
    v_lshl_add_u32 v4, v6, 1, v4
    v_cmp_eq_u32 vcc, v4, v5
    v_mov_b32 v4, 0x3f803f80
    s_nop 0
    v_cndmask_b32 v5, 0, v4, vcc
    ''')
    for i in range(4):
        a(f'v_mov_b32 {vr(SELA + i)}, v5')
    a(f'v_lshlrev_b32 {vr(CL16)}, 4, v1')

def xlane(a, op, dst, t2):
    for sw in ('v_permlane32_swap_b32', 'v_permlane16_swap_b32'):
        a(f'v_mov_b32 {vr(t2)}, {vr(dst)}')
        a('s_nop 1')
        a(f'{sw} {vr(dst)}, {vr(t2)}')
        a(f'{op} {vr(dst)}, {vr(dst)}, {vr(t2)}')

def rowmax(a, base, dst, t2):
    a(f'v_max3_f32 {vr(dst)}, {vr(base)}, {vr(base + 1)}, {vr(base + 2)}')
    a(f'v_max3_f32 {vr(dst)}, {vr(dst)}, {vr(base + 3)}, {vr(base + 4)}')
    a(f'v_max3_f32 {vr(dst)}, {vr(dst)}, {vr(base + 5)}, {vr(base + 6)}')
    a(f'v_max_f32 {vr(dst)}, {vr(dst)}, {vr(base + 7)}')
    xlane(a, 'v_max_f32', dst, t2)

def softmax_c(a, sbase, pbase, tb):
    for r in range(4):
        a(f'v_exp_f32 {vr(tb)}, {vr(sbase + 2 * r)}')
        a(f'v_exp_f32 {vr(tb + 1)}, {vr(sbase + 2 * r + 1)}')
        a('s_nop 0')
        a(f'v_cvt_pk_bf16_f32 {vr(pbase + r)}, {vr(tb)}, {vr(tb + 1)}')

def b_prologue(a, opt):
    b_setup_read_addr(a)
    a('s_waitcnt vmcnt(0) lgkmcnt(0)')
    stamp(a, opt, 'e_h')
    a('s_barrier')
    for kb in range(2):
        for s in range(4):
            a(k_read(0, kb, s, base=ST + 8))
    a(f'''
    s_lshl_b32 s3, {sr(sQB)}, 4
    s_lshl_b32 s7, {sr(sW)}, 2
    s_add_u32 s3, s3, s7
    s_mul_i32 s3, s3, {HST()}
    s_lshl_b32 s7, {sr(sH)}, 11
    s_add_u32 s3, s3, s7
    s_add_u32 {sr(sHO)}, s3, {WS_H}
    s_mov_b32 s{SRD_WG}, s{SRD_WS}
    s_mov_b32 s{SRD_WG + 1}, s{SRD_WS + 1}
    s_cmp_lt_u32 {sr(sH)}, 28
    s_cselect_b32 s{SRD_WG + 2}, 0x10000000, 0
    s_mov_b32 s{SRD_WU}, s{SRD_DBG}
    s_mov_b32 s{SRD_WU + 1}, s{SRD_DBG + 1}
    s_mov_b32 s{SRD_WU + 2}, 0
    s_cmp_eq_u32 {sr(sW)}, 0
    s_cselect_b32 {sr(sXO)}, 4, 64
    v_mov_b32 {vr(ONEV)}, 1
    {TW('s54')}
    s_lshl_b32 s3, s54, 2
    s_bfe_u32 s7, s2, 0x20001
    s_add_u32 s3, s3, s7
    s_mul_i32 s3, s3, 12288
    s_add_u32 s92, s3, {WS_XF}
    s_add_u32 s93, s92, 4096
    s_add_u32 s62, s92, 8192
    s_waitcnt lgkmcnt(0)
    ''')
    h_epilogue(a, [qk_mfma(0, c, kb, s, c0='0') for c in range(4) for kb in range(2) for s in range(4)], b_prologue_dma2())
    stamp(a, opt, 'e_h2')
    for kb in range(2):
        for s in range(4):
            a(k_read(1, kb, s, base=ST + 8))
    for i in range(10):
        a(f'v_mov_b32 {vr(LM + i)}, 0')
    zm = [f'v_mfma_f32_32x32x16_bf16 {ar(O + 16 * i, 16)}, {vr(ZQ, 4)}, {vr(ZQ, 4)}, 0' for i in range(8)]
    m = [ST + c for c in range(4)]; t2 = [ST + 4 + c for c in range(4)]
    for k in range(4):
        a(zm.pop())
        for c in range(4):
            b = Sreg(0, c)
            a([f'v_max3_f32 {vr(m[c])}, {vr(b)}, {vr(b + 1)}, {vr(b + 2)}', f'v_max3_f32 {vr(m[c])}, {vr(m[c])}, {vr(b + 3)}, {vr(b + 4)}',
               f'v_max3_f32 {vr(m[c])}, {vr(m[c])}, {vr(b + 5)}, {vr(b + 6)}', f'v_max_f32 {vr(m[c])}, {vr(m[c])}, {vr(b + 7)}'][k])
    for sw in ('v_permlane32_swap_b32', 'v_permlane16_swap_b32'):
        for c in range(4): a(f'v_mov_b32 {vr(t2[c])}, {vr(m[c])}')
        a(zm.pop())
        for c in range(4): a(f'{sw} {vr(m[c])}, {vr(t2[c])}')
        a(zm.pop())
        for c in range(4): a(f'v_max_f32 {vr(m[c])}, {vr(m[c])}, {vr(t2[c])}')
    for c in range(4):
        for i in range(8):
            a(f'v_sub_f32 {vr(Sreg(0, c) + i)}, {vr(Sreg(0, c) + i)}, {vr(m[c])}')
        for i in range(4):
            a(f'v_sub_f32 {vr(NM + 4 * c + i)}, 0, {vr(m[c])}')
    for e in range(16):
        a(f'v_exp_f32 {vr(128 + e)}, {vr(Sreg(0, 0) + e)}')
    for r in range(8):
        a(f'v_cvt_pk_bf16_f32 {vr(Preg(0, 0) + r)}, {vr(128 + 2 * r)}, {vr(129 + 2 * r)}')
    a('s_waitcnt lgkmcnt(0)')

BIG = [25, 29, 32, 38, 46, 50, 54, 58, 62]
def step_gaps(slot, tag, opt, dma=True, final=False, extra=None, vm=0, nobar=False):
    p = slot & 1
    qk = [qk_mfma(1 - p, c, kb, s) for c in range(4) for kb in range(2) for s in range(4)]
    pv = [pv_mfma(c, p, db) for c in range(4) for db in range(8)]
    mfs = qk[:4] + [sum_mfma(0, p)] + qk[4:] + pv[:4] + [sum_mfma(1, p)] + pv[4:]
    G = [Gap(m) for m in mfs]
    for hf, g0 in ((1, 0), (0, HL)):
        if final and hf == 0:
            continue
        for e in range(16):
            c = 2 * hf + (e >> 3)
            src = (Sreg(p, 2) if hf else Sreg(1 - p, 0)) + e
            G[g0 + 2 * e].valu.append(f'v_exp_f32 {vr(TMP + (e & 3))}, {vr(src)}')
            if e & 1:
                G[g0 + 2 * e + 1].valu.append(f'v_cvt_pk_bf16_f32 {vr(Preg(c, 1 - p) + ((e & 7) >> 1))}, {vr(TMP + ((e - 1) & 3))}, {vr(TMP + (e & 3))}')
    for hf, g0 in ((0, 0), (1, HL)):
        late = final and hf == 1
        G[g0 + (13 if late else 9)].valu.append(f'v_cmp_nle_f32 vcc, {vr(LMreg(hf))}, {vr(THR)}')
        G[g0 + (16 if late else 15)].post += [f's_cbranch_vccnz L_slow{hf}_{tag}', f'L_back{hf}_{tag}:']
        if not final:
            G[g0 + 27].valu.append(f'v_mov_b32 {vr(LOLD(hf))}, {vr(LMreg(hf))}')
    vplace = OPT.get('vplace', [1, 1, 3, 5, 5, 7, 9, 11, 13, 13, 17, 17, 19, 21, 21, 23])
    kplace = [HL + x for x in OPT.get('kplace', (1, 1, 3, 7, 9, 11, 19, 23))]
    for g, x in zip(vplace, [v_read(slot, db, u) for db in range(8) for u in range(2)]):
        G[g].mem.append(x)
    if not final:
        for g, x in zip(kplace, [k_read(slot, kb, s) for kb in range(2) for s in range(4)]):
            G[g].mem.append(x)
    G[HL - 1].pre.append('s_waitcnt lgkmcnt(0)')
    ops = []
    if dma:
        ops = [None] * 4 + stage_dma((slot + 6) & 7, k=dma != 'v')
        if OPT.get('spl', 1):
            G[BIG[4] - 3].pre.append(ops[4][1]); ops[4] = (ops[4][0], ops[4][2])
    if extra:
        ops = extra
    for g, x in zip(BIG if not final else [25, 29, 33, 38, 42, 47, 52, 56, 60, 64], ops):
        if x is not None:
            place(G, [x], g, g)
    if slot & 1 and not nobar:
        G[SL - 1].pre += [f's_waitcnt vmcnt({vm}) lgkmcnt(0)', 's_barrier'] if not final else []
    else:
        G[SL - 1].pre.append('s_waitcnt lgkmcnt(0)')
    if tag[0] == 's':
        for g in G:
            if OPT.get('b_nobar'): g.pre = [x for x in g.pre if x != 's_barrier']
            if OPT.get('b_nodma'): g.mem = [x for x in g.mem if not x.startswith('buffer')]
            if OPT.get('b_nochk'): g.valu = [x for x in g.valu if not x.startswith(('v_cmp', 'v_mov'))]; g.post = [x for x in g.post if x.endswith(':')]
            if OPT.get('b_nowait'): g.pre = [x for x in g.pre if not x.startswith('s_waitcnt')]
    if final:
        for g in G:
            if g.m in qk:
                g.m = 's_nop 0'
    return G

def gapops(G):
    return [[x for x in g.ops() if x is not None] for g in G]

def slow_path(a, p, hf, final=False):
    a.label(f'L_slowfn{hf}_{p}_{int(final)}')
    a('s_nop 15')
    a(f'v_mov_b32 {vr(ST + 8)}, {vr(LOLD(hf))}\nv_mov_b32 {vr(ST + 9)}, {vr(LOLD(hf))}\ns_nop 1\nv_permlane16_swap_b32 {vr(ST + 8)}, {vr(ST + 9)}\nv_add_f32 {vr(ST + 8)}, {vr(ST + 8)}, {vr(ST + 9)}')
    for c in (2 * hf, 2 * hf + 1):
        cur = Sreg(p, c); nxt = Sreg(1 - p, c)
        d = ST + 4 + (c & 1); al = ST + 6 + (c & 1)
        rowmax(a, cur, d, ST + 1)
        a(f'v_max_f32 {vr(d)}, 0, {vr(d)}')
        a(f'v_mov_b32 {vr(ST)}, {vr(ST + 8)}')
        a(f'v_mov_b32 {vr(ST + 1)}, {vr(ST + 8)}')
        a('s_nop 1')
        a(f'v_permlane32_swap_b32 {vr(ST)}, {vr(ST + 1)}')
        a(f'v_log_f32 {vr(ST)}, {vr(ST + (c & 1))}')
        a('s_nop 0')
        a(f'v_max_f32 {vr(d)}, {vr(d)}, {vr(ST)}')
        a(f'v_sub_f32 {vr(al)}, 0, {vr(d)}')
        a(f'v_exp_f32 {vr(al)}, {vr(al)}')
        for i in range(8):
            a(f'v_sub_f32 {vr(cur + i)}, {vr(cur + i)}, {vr(d)}')
        if not final:
            for i in range(8):
                a(f'v_sub_f32 {vr(nxt + i)}, {vr(nxt + i)}, {vr(d)}')
        for i in range(4):
            a(f'v_sub_f32 {vr(NM + 4 * c + i)}, {vr(NM + 4 * c + i)}, {vr(d)}')
        for i in range(32):
            a(f'v_accvgpr_read_b32 {vr(ST + 2)}, {ar(Oreg(c, 0) + i)}')
            a(f'v_mul_f32 {vr(ST + 2)}, {vr(ST + 2)}, {vr(al)}')
            a(f'v_accvgpr_write_b32 {ar(Oreg(c, 0) + i)}, {vr(ST + 2)}')
        softmax_c(a, cur, Preg(c, p), ST + 2)
    a(f'v_cmp_gt_u32 vcc, 32, {vr(LANE)}')
    a('s_nop 1')
    a(f'v_cndmask_b32 {vr(ST)}, {vr(ST + 7)}, {vr(ST + 6)}, vcc')
    a(f'v_mul_f32 {vr(LMreg(hf))}, {vr(LOLD(hf))}, {vr(ST)}')
    a('s_nop 1')
    a(sum_mfma(hf, p))
    a('s_nop 7')
    a('s_setpc_b64 s[98:99]')

SLOW = []; PFX = []
def is_vm(x): return x.startswith(('buffer_', 'global_'))
def vm_between(G, g0, g1):
    return sum(1 for g in G[g0:g1] for x in g.mem if is_vm(x))

def trace_ops(G, lane, n=8):
    for sl in range(n):
        G[sl * SL + 0].pre += ['s_memtime s[100:101]'] + lane(sl)
        G[sl * SL + 56].valu += ['v_cmp_eq_u32 vcc, s95, v1']
        G[sl * SL + 60].valu += ['v_mov_b32 v222, s100']
        G[sl * SL + 64].valu += ['v_cndmask_b32 v221, v221, v222, vcc']

def ALIGN(): return OPT.get('align', False)
def first_pass(a, opt):
    G = []
    for st in range(16):
        G += step_gaps(st & 7, f'f{st}', opt, vm='VM'); SLOW.append((st & 1, f'f{st}', False))
    def at(st, g, x): place(G, [x], st * SL + g, st * SL + g)
    hs = OPT.get('hs', [(0, 62), (1, 62), (6, 62), (7, 62), (8, 62), (9, 62), (14, 65), (15, 65)])
    for k in range(8):
        x = f'buffer_store_dwordx4 {ar(HP + 4 * k, 4)}, {vr(CL16)}, {sr(SRD_WG, 4)}, {sr(sHO)} offen offset:{1024 * (k & 1)} sc1'
        if k in (2, 4, 6): x = (f's_add_u32 {sr(sHO)}, {sr(sHO)}, {HST()}', x)
        if not opt.get('nohst'): at(hs[k][0], hs[k][1], x)
    place(G, wp_addr0(), SL + 25, SL + 45, kind='valu')
    dpos = OPT.get('dpos', [(2, 32), (2, 38), (3, 32), (3, 38), (4, 32), (4, 38), (5, 32), (5, 38)])
    for (st, g), x in zip(dpos, wp_dma()): at(st, g, x)
    place(G, wp_addr1(), 7 * SL + 25, 8 * SL + 45, kind='valu')
    r0 = OPT.get('r0', 10)
    assert r0 % 2 == 0 and dpos[-1][0] <= r0 - 5
    rd = wp_reads()
    sc, stv = wp_stores()
    G[9 * SL + 2].pre += sc[:2]; G[9 * SL + 4].pre += sc[2:6]; G[9 * SL + 6].pre += sc[6:]
    spos = OPT.get('spos', [(10, 62), (10, 65), (11, 62), (12, 62), (12, 65), (13, 62), (14, 62), (15, 62)])
    for k in range(4):
        place(G, rd[4 * k:4 * k + 4], (r0 + k) * SL + 25, (r0 + k) * SL + 29)
    for k, (st, g) in enumerate(spos):
        assert st >= r0 + k // 2
        at(st, g, stv[k])
    for j in range(1, 16, 2):
        n = vm_between(G, 0 if j < 4 else (j - 4) * SL + 59, j * SL + SL - 1)
        G[j * SL + SL - 1].pre = [x.replace('VM', str(min(n, 63))) for x in G[j * SL + SL - 1].pre]
    if opt.get('trace'): trace_ops(G, lambda st: [f's_mov_b32 s95, {63 - st}'], 16)
    a.raw('.p2align 3')
    emit_gaps(a, gapops(G), align=ALIGN())

def phase_b(a, opt):
    b_prologue(a, opt)
    stamp(a, opt, 'B0')
    a(f's_mov_b32 {sr(sCNT)}, 5')
    first_pass(a, opt)
    stamp(a, opt, 'B1')
    a.raw('.p2align 6')
    a.label('L_attn')
    G = []
    for sl in range(8):
        G += step_gaps(sl, f's{sl}', opt, vm=16); SLOW.append((sl & 1, f's{sl}', False))
    G[2 * SL + 23].pre += [f's_cmp_eq_u32 {sr(sCNT)}, {sr(sXO)}', f's_cselect_b32 s{SRD_WU + 2}, 4, 0']
    place(G, [f'buffer_atomic_add {vr(ONEV)}, {vr(CL16)}, {sr(SRD_WU, 4)}, 0 offen sc1'], 2 * SL + 25, 2 * SL + 25)
    if opt.get('trace'): trace_ops(G, lambda sl: [f's_lshl_b32 s95, {sr(sCNT)}, 3', f's_add_u32 s95, s95, {7 - sl}'])
    G[-6].pre.append(f's_sub_u32 {sr(sCNT)}, {sr(sCNT)}, 1')
    G[-4].pre.append(f's_cmp_lg_u32 {sr(sCNT)}, 0')
    G[-1].post.append('s_cbranch_scc1 L_attn')
    emit_gaps(a, gapops(G), align=ALIGN())
    a.raw('.p2align 3')
    G = []
    pf = [x for t in range(8) for x in c_dma(t)]
    extra = {4: pf[:8], 5: pf[8:16], 6: pf[16:24], 7: pf[24:]} if not OPT.get('nopf') else {}
    for sl in range(8):
        g = step_gaps(sl, f't{sl}', opt, dma='v' if sl < 2 else False, final=sl == 7, extra=extra.get(sl), vm={1: 12, 3: 0, 5: 63}.get(sl, 0)); SLOW.append((sl & 1, f't{sl}', sl == 7))
        if sl == 0 and OPT.get('npf', 1):
            g[2].pre += ['s_lshr_b32 s3, s2, 3', 's_lshl_b32 s3, s3, 2', f's_add_u32 s3, s3, {sr(sW)}']
            g[4].pre += ['s_lshr_b32 s7, s3, 4', f's_mul_i32 s7, s7, {WFS}', 's_and_b32 s3, s3, 15']
            g[6].pre += ['s_lshl_b32 s3, s3, 13', 's_add_u32 s3, s3, s7', 's_bfe_u32 s7, s2, 0x20001']
            g[8].pre += ['s_lshl_b32 s7, s7, 17', 's_add_u32 s3, s3, s7', f's_add_u32 s58, s3, {WS_WF + 56 * 4096}']
            g[25].valu.append('v_lshlrev_b32 v4, 7, v1')
        if sl == 4 and OPT.get('npf', 1):
            PFX.append(f'buffer_load_dword v5, v4, {sr(SRD_WS, 4)}, s58 offen sc1')
            g[62].mem.append(PFX[-1])
        if sl == 2:
            su = c_setup_scalar()
            for k in range(0, len(su), 2):
                g[2 + k].pre += su[k:k + 2]
            g[25].mem.append(f'buffer_load_dword {vr(POLLV)}, off, {sr(SRD_DBG, 4)}, 0 sc1')
        if sl == 4:
            g[17].valu.append(f'v_cmp_gt_u32 vcc, 0x100, {vr(POLLV)}')
            g[23].post += ['s_cbranch_vccnz L_pollall', 'L_pollall_ok:']
        G += g
    if opt.get('trace'): trace_ops(G, lambda sl: [f's_mov_b32 s95, {7 - sl}'])
    emit_gaps(a, gapops(G), align=ALIGN())
    stamp(a, opt, 'Bend')
    if opt.get('trace'): a('v_mov_b32 v63, v221')

def finalize_pre(a):
    a(f'''
    s_lshl_b32 s3, {sr(sQB)}, 4
    s_lshl_b32 s7, {sr(sW)}, 2
    s_add_u32 s3, s3, s7
    s_mul_i32 s3, s3, {OST()}
    s_lshl_b32 s7, {sr(sH)}, 12
    s_add_u32 {sr(sOK)}, s3, s7
    ''')
    for hf in range(2):
        a(f'v_mov_b32 {vr(ST + hf)}, {vr(LMreg(hf))}')
    a('s_nop 0')
    for hf in range(2):
        a(f'v_permlane16_swap_b32 {vr(LMreg(hf))}, {vr(ST + hf)}')
    for hf in range(2):
        a(f'v_add_f32 {vr(ST + 2 + 2 * hf)}, {vr(LMreg(hf))}, {vr(ST + hf)}')
        a(f'v_add_f32 {vr(ST + 3 + 2 * hf)}, {vr(LMreg(hf))}, {vr(ST + hf)}')
    a('s_nop 0')
    for hf in range(2):
        a(f'v_permlane32_swap_b32 {vr(ST + 2 + 2 * hf)}, {vr(ST + 3 + 2 * hf)}')
    for c in range(4):
        a(f'v_rcp_f32 {vr(RL + 2 * c)}, {vr(ST + 2 + c)}')
        a(f'v_rcp_f32 {vr(RL + 2 * c + 1)}, {vr(ST + 2 + c)}')

NF = 14; NS = 32
BLK = [0, 1, 2, 3, 8, 9, 4, 5, 6, 7]
sB0 = 56; sB1 = 57
BAD = 8; AAD = 20; CA2 = 192; CB2 = 224
def c_stream(kind):
    st, base, k0, nk, ka = (HST(), WS_H, 0, NF, 0) if kind[0] == 'f' else (OST(), WS_O, 0, NS, 56)
    ops = []
    if 'b' in kind:
        ops += [f's_lshl_b32 s3, {sr(sRB)}, 2', f's_add_u32 s3, s3, {sr(sW)}', f's_mul_i32 s3, s3, {2 * st}', 's_bfe_u32 s7, s2, 0x20001', f's_mul_i32 s7, s7, {nk * 1024}',
                's_add_u32 s3, s3, s7', f's_add_u32 {sr(sB0)}, s3, {(base - 1024) & 0xffffffff}', f's_add_u32 {sr(sB1)}, {sr(sB0)}, {st - 1024}']
    if 'a' in kind:
        ops += [f's_lshl_b32 s3, {sr(sCB)}, 1', f's_lshr_b32 s7, {sr(sW)}, 1', 's_add_u32 s3, s3, s7', f's_mul_i32 s3, s3, {WFS}', 's_bfe_u32 s7, s2, 0x20001', f's_mul_i32 s7, s7, {nk * 4096}',
                's_add_u32 s3, s3, s7', f's_and_b32 s7, {sr(sW)}, 1', 's_lshl_b32 s7, s7, 11', 's_add_u32 s3, s3, s7', f's_add_u32 {sr(sAO)}, s3, {WS_WF + ka * 4096 - 2048 - 4096}']
    return ops
def c_setup_scalar(): return c_stream('fab')
def c_dma(t, what='ab'):
    ops = []
    pre = (f's_add_u32 m0, {sr(sW4K)}, {BLK[t % 10] * STAGE}',)
    if 'b' in what:
        ops += [pre + (f's_add_u32 {sr(sB0)}, {sr(sB0)}, 1024', f'buffer_load_dwordx4 {vr(CL16)}, {sr(SRD_WS, 4)}, {sr(sB0)} offen sc1 lds'),
                (f's_add_u32 {sr(sB1)}, {sr(sB1)}, 1024', f'buffer_load_dwordx4 {vr(CL16)}, {sr(SRD_WS, 4)}, {sr(sB1)} offen offset:1024 sc1 lds')]
        pre = ()
    if 'a' in what:
        ops += [pre + (f's_add_u32 {sr(sAO)}, {sr(sAO)}, 4096', f'buffer_load_dwordx4 {vr(CL16)}, {sr(SRD_WS, 4)}, {sr(sAO)} offen offset:2048 sc1 lds'),
                f'buffer_load_dwordx4 {vr(CL16)}, {sr(SRD_WS, 4)}, {sr(sAO)} offen offset:3072 sc1 lds']
    return ops
def c_reads(t):
    b = BLK[t % 10]; off = (b & 3) * STAGE; st = b >> 2
    out = []
    for k in range(4):
        out.append(f'ds_read_b128 {ar(CA2 + (t & 1) * 16 + 4 * k, 4)}, {vr(AAD + st)} offset:{off + (k >> 1) * 4096 + (k & 1) * 1024}')
        out.append(f'ds_read_b128 {ar(CB2 + (t & 1) * 16 + 4 * k, 4)}, {vr(BAD + 4 * st + k)} offset:{off}')
    return out

def spin(a, name, sleep, body):
    a.label(name)
    a('s_mov_b32 s63, 0x20000')
    a.label(name + '_l')
    a(f's_sub_u32 s63, s63, 1\ns_cbranch_scc1 {name}_ok')
    if sleep: a(f's_sleep {sleep}')
    body(name + '_l')
    a(f's_branch {name}_ok')

def hooks(a):
    def flag(srd_):
        def body(l):
            a(f'buffer_load_dword v5, v4, {sr(srd_, 4)}, 0 offen sc1\ns_waitcnt vmcnt(0)\nv_cmp_ne_u32 vcc, v5, v6\ns_cbranch_vccnz {l}')
        return body
    def cnt(l):
        a(f'buffer_load_dword {vr(POLLV)}, off, {sr(SRD_DBG, 4)}, 0 sc1\ns_waitcnt vmcnt(0)\nv_cmp_gt_u32 vcc, 0x100, {vr(POLLV)}\ns_cbranch_vccnz {l}')
    spin(a, 'L_pollall', 8, cnt)
    spin(a, 'L_po', OPT.get('posleep', 8), flag(SRD_WG))
    spin(a, 'L_pf', 8, flag(SRD_WD))
    spin(a, 'L_ps', OPT.get('pssleep', 12), flag(SRD_WD))

class VM:
    def __init__(self, init): self.ops = list(init); self.done = 0
    def issue(self, tag): self.ops.append(tag); assert len(self.ops) - self.done <= 63, (tag, len(self.ops) - self.done)
    def wait(self, *tags):
        last = max(i for i, t in enumerate(self.ops) if t in tags)
        n = len(self.ops) - 1 - last
        self.done = max(self.done, last + 1)
        return f's_waitcnt vmcnt({n})'

def x_pack(acc, j, tb=160, pb=176):
    rd = [f'v_accvgpr_read_b32 {vr(tb + 4 * nb + i)}, {ar(acc + (nb * 4 + j) * 4 + i)}' for nb in range(4) for i in range(4)]
    cv = [f'v_cvt_pk_bf16_f32 {vr(pb + k)}, {vr(tb + 2 * k)}, {vr(tb + 2 * k + 1)}' for k in range(8)]
    return rd, cv
def x_dest(j, base, r):
    return ['s_bfe_u32 s7, s2, 0x20001', f's_add_u32 s7, s7, {j}', 's_and_b32 s7, s7, 3', 's_lshl_b32 s3, s54, 2', 's_add_u32 s3, s3, s7', 's_mul_i32 s3, s3, 12288',
            f's_add_u32 {r}, s3, {base + (j - 1) * 2048}']
def x_loads(part, reg):
    return [f'buffer_load_dwordx4 {vr(reg + 4 * k, 4)}, {vr(CL16)}, {sr(SRD_WS, 4)}, {XIN[(6 * part + k) >> 2]} offen offset:{1024 * ((6 * part + k) & 3)} sc1' for k in range(6)]
def x_check(a, reg, retry):
    a(f'''
    v_max3_u32 v14, {vr(reg)}, {vr(reg + 4)}, {vr(reg + 8)}
    v_max3_u32 v14, v14, {vr(reg + 12)}, {vr(reg + 16)}
    v_max_u32 v14, v14, {vr(reg + 20)}
    v_cmp_eq_u32 vcc, -1, v14
    s_cbranch_vccnz {retry}
    ''')
def x_add(a, dst, reg):
    for r in range(3):
        for k in range(8):
            a(f'v_lshlrev_b32 {vr(96 + 2 * k)}, 16, {vr(reg + 8 * r + k)}')
            a(f'v_and_b32 {vr(97 + 2 * k)}, 0xffff0000, {vr(reg + 8 * r + k)}')
        for k in range(0, 16, 2):
            a(f'v_pk_add_f32 {vr(dst + k, 2)}, {vr(dst + k, 2)}, {vr(96 + k, 2)}')
def x_accum(dst, src):
    ops = []
    for k in range(8):
        ops += [f'v_lshlrev_b32 v200, 16, {vr(src + k)}', f'v_and_b32 v201, 0xffff0000, {vr(src + k)}',
                f'v_add_f32 {vr(dst + 2 * k)}, {vr(dst + 2 * k)}, v200', f'v_add_f32 {vr(dst + 2 * k + 1)}, {vr(dst + 2 * k + 1)}, v201']
    return ops

def phase_c(a, opt):
    T = NF + NS
    COUT = 23; CXR = 24; GV = 240; XR = 32; SV = 224
    finalize_pre(a)
    NPRE = OPT.get('npre', 4)
    for c in range(NPRE):
        for i in range(32): a(f'v_accvgpr_read_b32 {vr(160 + i)}, {ar(Oreg(c, 0) + i)}')
        for f in range(4):
            for i in range(0, 8, 2): a(f'v_pk_mul_f32 {vr(160 + 8 * f + i, 2)}, {vr(160 + 8 * f + i, 2)}, {vr(RL + 2 * c, 2)}')
            for i in range(4): a(f'v_cvt_pk_bf16_f32 {vr(192 + 4 * f + i)}, {vr(160 + 8 * f + 2 * i)}, {vr(161 + 8 * f + 2 * i)}')
            a(f'buffer_store_dwordx4 {vr(192 + 4 * f, 4)}, {vr(CL16)}, {sr(SRD_WS, 4)}, {sr(sOK)} offen offset:{1024 * f} sc1')
        a(f's_add_u32 {sr(sOK)}, {sr(sOK)}, {OST()}')
    a(f'''
    s_lshr_b32 s7, {sr(sW)}, 1
    s_lshl_b32 s58, s7, 13               ; mh*8192
    s_and_b32 s7, {sr(sW)}, 1
    s_lshl_b32 s7, s7, 13
    s_add_u32 s7, s7, 2048
    v_add_u32 {vr(AAD)}, s7, {vr(CL16)}
    v_add_u32 {vr(AAD + 1)}, 65536, {vr(AAD)}
    v_add_u32 {vr(AAD + 2)}, 131072, {vr(AAD)}
    ''')
    for j in range(4):
        a(f'''
        s_bfe_u32 s3, s2, 0x20001
        s_add_u32 s3, s3, {j}
        s_and_b32 s7, s3, 1
        s_and_b32 s3, s3, 2
        s_lshl_b32 s3, s3, 11
        s_lshl_b32 s7, s7, 10
        s_add_u32 s3, s3, s7
        s_add_u32 s3, s3, s58
        v_add_u32 {vr(BAD + j)}, s3, {vr(CL16)}
        v_add_u32 {vr(BAD + 4 + j)}, 65536, {vr(BAD + j)}
        v_add_u32 {vr(BAD + 8 + j)}, 131072, {vr(BAD + j)}
        ''')
    vm = VM([0] * 4 + [1] * 4 + ['pf'] * len(PFX[-1:]) + [t for t in range(2, 8) for _ in range(4)] + ['o'] * (4 * NPRE))
    a(vm.wait(2))
    a('s_barrier')
    for x in c_reads(0): a(x)
    a(f'''
    s_mov_b32 s{SRD_X}, s96
    s_mov_b32 s{SRD_X + 1}, s97
    s_mov_b32 s{SRD_X + 2}, 2097152
    s_mov_b32 s{SRD_X + 3}, 0x20000
    v_lshlrev_b32 v5, 5, v3
    v_lshl_add_u32 {vr(COUT)}, v2, 10, v5
    s_lshl_b32 s3, {sr(sRB)}, 17
    s_lshl_b32 s7, s58, 3
    s_add_u32 s3, s3, s7
    s_bfe_u32 s7, s2, 0x20001
    s_lshl_b32 s7, s7, 14
    s_add_u32 s3, s3, s7
    s_lshl_b32 s7, {sr(sCB)}, 8
    s_add_u32 s3, s3, s7
    s_and_b32 s7, {sr(sW)}, 1
    s_lshl_b32 s7, s7, 7
    s_add_u32 {sr(sOV)}, s3, s7
    s_add_u32 s{SRD_WU}, s{SRD_WS}, s94
    s_addc_u32 s{SRD_WU + 1}, s{SRD_WS + 1}, 0
    s_mov_b32 s{SRD_WU + 2}, 4
    s_lshl_b32 s3, {sr(sRB)}, 10
    s_lshr_b32 s7, s58, 4
    s_add_u32 s3, s3, s7                 ; flag lines of row block 2*RB + mh
    s_bfe_u32 s7, s2, 0x20001
    s_lshl_b32 s7, s7, 7
    s_add_u32 s3, s3, s7
    s_add_u32 s3, s3, {WS_FLAG}
    s_add_u32 s{SRD_WG}, s{SRD_WS}, s3
    s_addc_u32 s{SRD_WG + 1}, s{SRD_WS + 1}, 0
    s_mov_b32 s{SRD_WG + 2}, 32
    s_lshl_b32 s3, s54, 8
    s_add_u32 s3, s3, {WS_FF}
    s_add_u32 s{SRD_WD}, s{SRD_WS}, s3
    s_addc_u32 s{SRD_WD + 1}, s{SRD_WS + 1}, 0
    s_mov_b32 s{SRD_WD + 2}, 16
    s_bfe_u32 s7, s2, 0x20001
    s_lshl_b32 s7, s7, 2
    s_add_u32 s{SRD_WO}, s{SRD_WD}, s7
    s_addc_u32 s{SRD_WO + 1}, s{SRD_WD + 1}, 0
    s_mov_b32 s{SRD_WO + 2}, 4
    v_lshlrev_b32 v4, 2, v1
    v_cmp_gt_u32 vcc, 8, v1
    v_mov_b32 v0, 1
    s_nop 0
    v_cndmask_b32 v6, 0, 1, vcc
    s_waitcnt lgkmcnt(0)
    '''.replace('v_mov_b32 v0, 1', f'v_mov_b32 {vr(ONEV)}, 1'))
    a.raw('.p2align 3')
    NFS = OPT.get('nfs', 4)
    PT = OPT.get('pt', 10)
    flag_t = OPT.get('flag_t', 0)
    U0 = OPT.get('u0', 20)
    cont = OPT.get('cont', 1) and PT <= 10
    if cont: OPT.setdefault('fxlate', 1); OPT.setdefault('fflag', 6 * OPT.get('fsp', 1) + 6)
    for t in range(T):
        acc = ACF if t < NF else ACS_
        first = t in (0, NF)
        u = t - NF
        G = []
        for nb, j in ([(nb, j) for nb in range(4) for j in range(4)] if t < T - 1 else [(nb, j) for j in (1, 2, 3, 0) for nb in range(4)]):
            if True:
                d = ar(acc + (nb * 4 + j) * 4, 4)
                G.append(Gap(mf(d, ar(CA2 + (t & 1) * 16 + 4 * nb, 4), ar(CB2 + (t & 1) * 16 + 4 * j, 4), '0' if first else d)))
        def vmem(g, x, tag):
            place(G, [x], g, None, cap=9); vm.issue(tag)
        if t == PT:
            if PT == NF:
                a(f'buffer_load_dword v5, v4, {sr(SRD_WG, 4)}, 0 offen sc1'); vm.issue('fl')
                for j in range(1, 4):
                    rd, cv = x_pack(ACF, j, 160, 176 + 8 * (j - 1))
                    for x in (['s_nop 4'] if j == 1 else []) + rd + cv: a(x)
            for x in c_stream('sb'): a(x)
            a(vm.wait('fl'))
            a('v_cmp_ne_u32 vcc, v5, v6\ns_cbranch_vccnz L_po\nL_po_ok:')
            stamp(a, opt, 'poll1')
            for tt in range(NF, PT + 8):
                emit_plain(a, c_dma(tt, 'b'))
                for k in range(2): vm.issue(tt)
            a('v_cmp_gt_u32 vcc, 4, v1\ns_nop 1\nv_cndmask_b32 v6, 0, 1, vcc')
            a.raw('.p2align 3')
        if t == NF and cont:
            stamp(a, opt, 's0')
        if t == NF and not cont:
            stamp(a, opt, 'fend')
            fxl = OPT.get('fxlate', 0)
            for j in range(1, 4) if not fxl else []:
                if PT != NF:
                    rd, cv = x_pack(ACF, j, 160, 176 + 8 * (j - 1))
                    for x in (['s_nop 6'] if j == 1 else []) + rd + cv: a(x)
                for x in x_dest(j, WS_XF, 's58'): a(x)
                for k in range(2):
                    a(f'buffer_store_dwordx4 {vr(176 + 8 * (j - 1) + 4 * k, 4)}, {vr(CL16)}, {sr(SRD_WS, 4)}, s58 offen offset:{1024 * k} sc1'); vm.issue('fx')
            a(vm.wait(NF, NF + 1, NF + 2))
            a('s_barrier')
            for x in c_reads(NF): a(x)
            a('s_waitcnt lgkmcnt(0)')
            stamp(a, opt, 's0')
            a.raw('.p2align 3')
        if t + 1 < T and (t + 1 != NF or cont):
            for k, x in zip([0, 1, 3, 4, 5, 7, 8, 9], c_reads(t + 1)): G[k].mem.append(x)
        stores = []
        nf = OPT.get('nf', 4)
        if t < (16 - 4 * NPRE) // nf:
            c = (t * nf + 4 * NPRE) >> 2; f0 = (t * nf) & 3
            for i in range(8 * nf):
                G[i // nf].valu.append(f'v_accvgpr_read_b32 {vr(160 + i)}, {ar(Oreg(c, 2 * f0) + i)}')
            for i in range(0, 8 * nf, 2):
                G[8].valu.append(f'v_pk_mul_f32 {vr(160 + i, 2)}, {vr(160 + i, 2)}, {vr(RL + 2 * c, 2)}')
            G[8].post.append('s_nop 1')
            for f in range(nf):
                for i in range(4):
                    G[9 + f].valu.append(f'v_cvt_pk_bf16_f32 {vr(192 + 4 * f + i)}, {vr(160 + 8 * f + 2 * i)}, {vr(161 + 8 * f + 2 * i)}')
                stores.append((10 + f if nf == 4 else 11 + 4 * f, f'buffer_store_dwordx4 {vr(192 + 4 * f, 4)}, {vr(CL16)}, {sr(SRD_WS, 4)}, {sr(sOK)} offen offset:{1024 * (f0 + f)} sc1', 'o'))
            if f0 + nf == 4: G[15].post.append(f's_add_u32 {sr(sOK)}, {sr(sOK)}, {OST()}')
        todo = []
        tn = t + 8
        if tn < T:
            d = c_dma(tn, 'a' if NF <= tn and t < PT else 'ab')
            if tn == NF:
                G[0].pre += c_stream('sa')
            todo += list(zip([2, 6, 10, 14], d, [tn] * 4))
        if t == PT - OPT.get('pback', 2) and PT != NF:
            stores += [(0, f'buffer_load_dword v5, v4, {sr(SRD_WG, 4)}, 0 offen sc1', 'fl')]
        fx0 = OPT.get('fxlate', 0)
        fsp = OPT.get('fsp', 1)
        if fx0 and fx0 <= u < fx0 + 6 * fsp and (u - fx0) % (2 * fsp) == 0:
            j = (u - fx0) // (2 * fsp) + 1
            rd, cv = x_pack(ACF, j)
            for k, x in enumerate(rd): G[k // 2].valu.append(x)
            for k, x in enumerate(cv): G[8 + k // 2].valu.append(x)
            G[11].pre += x_dest(j, WS_XF, 's58')
            stores += [(15, f'buffer_store_dwordx4 {vr(176, 4)}, {vr(CL16)}, {sr(SRD_WS, 4)}, s58 offen offset:0 sc1', 'fx')]
        if fx0 and fx0 <= u < fx0 + 6 * fsp and (u - fx0) % (2 * fsp) == fsp:
            stores += [(15, f'buffer_store_dwordx4 {vr(180, 4)}, {vr(CL16)}, {sr(SRD_WS, 4)}, s58 offen offset:1024 sc1', 'fx')]
        if u == U0:
            stores += [(15, f'buffer_load_dword v5, v4, {sr(SRD_WD, 4)}, 0 offen sc1', 'ff')]
        if u == 26:
            stores += [(4 + 6 * k, f'buffer_load_dwordx4 {vr(CXR + 4 * k, 4)}, {vr(COUT)}, {sr(SRD_X, 4)}, {sr(sOV)} offen offset:{16 * k}', 'x') for k in range(2)]
        if u == U0 + 3 + (U0 < 23):
            stores += [(2 * k + (U0 < 21), x, 'fx2') for k, x in enumerate(x_loads(0, XR))]
        for g, x, tag in sorted(todo + stores, key=lambda z: z[0]):
            vmem(g, x, tag)
        if u == 30:
            for j in range(1, 4): G[4 * j].pre += x_dest(j, WS_XF + 6144, f's{55 + j}')
        if t == flag_t:
            G[15].post += [vm.wait('o'), f'buffer_store_dword {vr(ONEV)}, {vr(CL16)}, {sr(SRD_WU, 4)}, 0 offen sc1'] + stamp_op('Oflag'); vm.issue('flag')
        if u == OPT.get('fflag', 8):
            G[15].post += [vm.wait('fx'), f'buffer_store_dword {vr(ONEV)}, {vr(CL16)}, {sr(SRD_WO, 4)}, 0 offen sc1']; vm.issue('flag2')
        if u == 28:
            G[4].pre += [f's_add_u32 s{SRD_WO}, s{SRD_WO}, 128', f's_addc_u32 s{SRD_WO + 1}, s{SRD_WO + 1}, 0']
        if u == 22:
            for k in range(16): G[k].valu.append(f'v_accvgpr_read_b32 {vr(GV + k)}, {ar(ACF + (k >> 2) * 16 + (k & 3))}')
        if u == U0 + 2 + (U0 < 23):
            G[15].post += [vm.wait('ff'), 'v_cmp_ne_u32 vcc, v5, v6', 's_cbranch_vccnz L_pf', 'L_pf_ok:']
        if u == 27:
            G[4].pre += [f's_add_u32 s{SRD_WD}, s{SRD_WD}, 128', f's_addc_u32 s{SRD_WD + 1}, s{SRD_WD + 1}, 0']
        if u == 28:
            G[15].post.append(vm.wait('fx2'))
        if 29 <= u <= 31:
            for k, x in enumerate(x_accum(GV, XR + 8 * (u - 29))): G[k // 2].valu.append(x)
        if t + 1 < T and (t + 1 != NF or cont):
            if (t + 1) % 2 == 0:
                need = [x for x in (t + 2, t + 3) if x < T and (cont or not (t + 1 < NF <= x))]
                w = vm.wait(*need) + ' lgkmcnt(0)' if need else 's_waitcnt lgkmcnt(0)'
                G[15].post += [w, 's_barrier']
            else:
                G[15].post.append('s_waitcnt lgkmcnt(0)')
        if opt.get('ctrace'):
            G[0].pre.append(f's_memtime s[100:101]')
            G[14].valu.append(f'v_writelane_b32 v222, s100, {63 - t}')
        emit_gaps(a, gapops(G), align=False)
    stamp(a, opt, 'send')
    for j in range(1, 4):
        rd, cv = x_pack(ACS_, j, 160, 176 + 8 * (j - 1))
        for x in rd + cv: a(x)
        for k in range(2):
            a(f'buffer_store_dwordx4 {vr(176 + 8 * (j - 1) + 4 * k, 4)}, {vr(CL16)}, {sr(SRD_WS, 4)}, s{55 + j} offen offset:{1024 * k} sc1')
    stamp(a, opt, 'xst')
    for k in range(16):
        a(f'v_accvgpr_read_b32 {vr(SV + k)}, {ar(ACS_ + (k >> 2) * 16 + (k & 3))}')
    a('s_waitcnt vmcnt(6)')
    for k in range(8):
        a(f'v_lshlrev_b32 {vr(64 + 2 * k)}, 16, {vr(CXR + k)}')
        a(f'v_and_b32 {vr(65 + 2 * k)}, 0xffff0000, {vr(CXR + k)}')
    for k in range(16): a(f'v_mul_f32 {vr(144 + k)}, {f2u(-math.log2(math.e))}, {vr(GV + k)}')
    for k in range(16): a(f'v_exp_f32 {vr(144 + k)}, {vr(144 + k)}')
    for k in range(16): a(f'v_add_f32 {vr(112 + k)}, 1.0, {vr(144 + k)}')
    for k in range(16): a(f'v_rcp_f32 {vr(112 + k)}, {vr(112 + k)}')
    for k in range(0, 16, 2): a(f'v_pk_mul_f32 {vr(GV + k, 2)}, {vr(GV + k, 2)}, {vr(112 + k, 2)}')
    a(f'''
    s_waitcnt vmcnt(0)
    buffer_store_dword {vr(ONEV)}, {vr(CL16)}, {sr(SRD_WO, 4)}, 0 offen sc1
    {''.join(stamp_op('xack'))}
    s_branch L_ps
    L_ps_ok:
    ''')
    stamp(a, opt, 'xf')
    XS = 32
    for x in x_loads(1, XS): a(x)
    for r in range(3):
        a(f's_waitcnt vmcnt({4 - 2 * r})')
        if r == 2: stamp(a, opt, 'xld')
        for k in range(8):
            a(f'v_lshlrev_b32 {vr(96 + 2 * k)}, 16, {vr(XS + 8 * r + k)}')
            a(f'v_and_b32 {vr(97 + 2 * k)}, 0xffff0000, {vr(XS + 8 * r + k)}')
        for k in range(0, 16, 2):
            a(f'v_pk_add_f32 {vr(SV + k, 2)}, {vr(SV + k, 2)}, {vr(96 + k, 2)}')
    for k in range(0, 16, 2):
        a(f'v_pk_fma_f32 {vr(SV + k, 2)}, {vr(SV + k, 2)}, {vr(GV + k, 2)}, {vr(64 + k, 2)}')
    for k in range(8):
        a(f'v_cvt_pk_bf16_f32 {vr(CXR + k)}, {vr(SV + 2 * k)}, {vr(SV + 1 + 2 * k)}')
    for k in range(2):
        a(f'buffer_store_dwordx4 {vr(CXR + 4 * k, 4)}, {vr(COUT)}, {sr(SRD_OUT, 4)}, {sr(sOV)} offen offset:{16 * k}{OPT.get("outsc", "")}')

OPT = {}
def add_pads(a, period, nchain):
    out = []; addr = 0; nxt = None; pads = []
    lines = a.lines
    for k, l in enumerate(lines):
        t = l.strip()
        if t.startswith('.p2align'):
            al = 1 << int(t.split()[1]); addr = (addr + al - 1) // al * al
        if t == 'L_warmdone:': addr = 0; nxt = period - OPT.get('padoff', 0)
        if t == 'L_end:': nxt = None
        if nxt is not None and addr >= nxt and t.startswith(('v_', 'ds_read', 's_add', 's_mov', 's_lshl', 'buffer_load')) and not lines[k - 1].strip().startswith(('.')):
            out.append(f'L_pad{len(pads)}:'); out.append(f'    PAD{len(pads)}'); pads.append(addr)
            addr += 4; nxt += period
            out.append('    s_nop 0'); addr += 4
        out.append(l); addr += isize(l)
    n = len(pads)
    for k, l in enumerate(out):
        if l.startswith('    PAD'):
            i = int(l[7:])
            out[k] = f'    s_cbranch_execz ' + (f'L_pad{i + nchain}' if i + nchain < n else 'L_warmret')
    a.lines = out
    return n

def gen(opt):
    OPT.clear(); OPT.update(opt)
    SLOW.clear(); STAMPS.clear(); PFX.clear()
    a = A()
    setup(a, opt)
    phase_a(a, opt)
    phase_b(a, opt)
    phase_c(a, opt)
    if opt.get('stamp'):
        a('s_waitcnt vmcnt(0)')
        stamp(a, opt, 'end')
        a(f'''
        s_waitcnt lgkmcnt(0)
        s_lshl_b32 s3, s2, 2
        s_add_u32 s3, s3, {sr(sW)}
        s_lshl_b32 s3, s3, 6
        s_add_u32 s3, s3, {WS_STAMP}
        v_mov_b32 v1, 0
        v_mov_b32 v4, v0
        ''')
        if opt.get('ctrace'): a('v_mov_b32 v63, v222\n; v_cndmask_b32 v221')
        if opt.get('trace') or opt.get('ctrace'):
            a(f's_lshl_b32 s7, s2, 2\ns_add_u32 s7, s7, {sr(sW)}\ns_lshl_b32 s7, s7, 8\ns_add_u32 s7, s7, {WS_STAMP + (1 << 20)}\nv_lshrrev_b32 v20, 2, v7')
            a(f'buffer_store_dword v63, v20, {sr(SRD_WS, 4)}, s7 offen')
        if opt.get('dbgstamp'):
            a(f's_cmp_lg_u32 {sr(sW)}, 0\ns_cbranch_scc1 L_nodbg')
            a('v_not_b32 v20, v0\ns_mov_b64 exec, 1')
            a(f'v_mov_b32 v21, s{sST + 2 * (len(STAMPS) - 1)}')
            a(f'buffer_atomic_umax v20, off, {sr(SRD_DBG, 4)}, 0 offset:56 sc1')
            a(f'buffer_atomic_umax v21, off, {sr(SRD_DBG, 4)}, 0 offset:60 sc1')
            a(f's_cmp_lg_u32 s2, {opt["dbgstamp"]}\ns_cbranch_scc1 L_nodbg')
            for i in range(len(STAMPS)):
                a(f'v_sub_u32 v{22 + i}, s{sST + 2 * i}, v0')
                a(f'buffer_store_dword v{22 + i}, off, {sr(SRD_DBG, 4)}, 0 offset:{4 + 4 * i} sc1')
            a('L_nodbg:\ns_mov_b64 exec, -1')
        for i in range(12): a(f'v_mov_b32 v{5 + i}, s{sST + 2 * i}')
        for i in range(4):
            a(f'buffer_store_dwordx4 v[{4 + 4 * i}:{7 + 4 * i}], v1, {sr(SRD_WS, 4)}, s3 offen offset:{16 * i}')
    a.label('L_end')
    a('s_endpgm')
    hooks(a)
    for p, tag, final in SLOW:
        for hf in range(2):
            a.label(f'L_slow{hf}_{tag}')
            a(f's_call_b64 s[98:99], L_slowfn{hf}_{p}_{int(final)}')
            a(f's_branch L_back{hf}_{tag}')
    for p, final in sorted({(p, f) for p, _, f in SLOW}):
        for hf in range(2):
            slow_path(a, p, hf, final)
    if OPT.get('pad', 4096):
        npad = add_pads(a, OPT.get('pad', 4096), OPT.get('nchain', 4))
        print('pads', npad, file=sys.stderr)
    a.label('L_codeend')
    a('s_endpgm')
    return kernel_file(f'; ost {OST()} hst {HST()}\n; stamps entry ' + ' '.join(STAMPS) + '\n' + a.text(), 'grid=(256,1,1) block=(256,1,1) lds=163840')

if __name__ == '__main__':
    opt = json.loads(sys.argv[2]) if len(sys.argv) > 2 else {}
    open(sys.argv[1], 'w').write(gen(opt))
```

```python
import sys, json, math, struct
sys.path.insert(0, 'gen')
from asmlib import *

def f2u(x): return '0x%08x' % struct.unpack('<I', struct.pack('<f', x))[0]

WS_O = 0; WS_H = 17 << 20; WS_FLAG = 25 << 20; WS_WF = (25 << 20) + 65536; WS_STAMP = 32 << 20; WS_XF = 34 << 20; WS_XS = 41 << 20; WS_FF = 47 << 20
WFS = 184 * 4096
sH = 4; sQB = 5; sW = 6
SRD_K = 8; SRD_V = 12; SRD_WS = 16; SRD_X = 20; SRD_WQ = 24; SRD_WG = 28; SRD_WU = 32; SRD_WO = 36; SRD_WD = 40; SRD_OUT = 44; SRD_DBG = 48
sOK = 52; sOV = 53; sM = 54; sCNT = 55; sT0 = 56; sT1 = 57; sT2 = 58; sT3 = 59
sXO = 60; sQO = 61; sGO = 62; sWB = 63
sW4K = 88; sRB = 89; sCB = 90; sBO = 56; sHO = 91; sWQB = 92; sWGB = 93
sDL = 95
sST = 64
KA = 8; VAA = 16; DK0 = 28; DK1 = 29; DV0 = 30; DV1 = 31; VAB = 244
Q = 32; S = 96; NM = 160; PA = 176; PB = 192; TMP = 200; ST = 204; THR = 220; LANE = 1; LM = 224; RL = 240
O = 0; KF = 128; VF = 160; SIDX = 216; WPR = 224
STAGE = 16384
AQ = 8; AG = 12; AC = 16; AX = 20; DQ = 22; DG = 23; DX = 24
XF = 32; ACQ = 96; SX = 224; CSD = 228; STT = 232; SXX = 240; IDX = 27
AGU = 0; AR = 128; AK = 160
XBUF = 0; WBUF = 65536; CSBUF = 81920
CB = 32
def CAop(sl, nb):
    return ar(192 + sl * 16 + 4 * nb, 4) if sl < 4 else vr(96 + 32 * (sl - 4) + 4 * nb, 4) if sl < 6 else vr(208 + 4 * nb, 4) if sl == 6 else ar(4 * nb, 4)
def CBop(sl, j):
    return vr(32 + sl * 16 + 4 * j, 4) if sl < 4 else vr(112 + 32 * (sl - 4) + 4 * j, 4) if sl < 6 else vr(224 + 4 * j, 4) if sl == 6 else ar(16 + 4 * j, 4)
ACF = 128; ACS_ = 64
CL16 = 7
CRW = 8; CRR = 11; COUT = 12; CXR = 16
sAO = 61; POLLV = 6; ONEV = 223

def OST(): return OPT.get('ost', 136192)
def HST(): return OPT.get('hst', 58368)
XIN = ['s92', 's93', 's62']
def TW(r):
    return f's_lshl_b32 {r}, {sr(sRB)}, 2\ns_add_u32 {r}, {r}, {sr(sCB)}\ns_lshl_b32 {r}, {r}, 2\ns_add_u32 {r}, {r}, {sr(sW)}'
def mf(d, a_, b_, c):
    return f'v_mfma_f32_16x16x32_bf16 {d}, {a_}, {b_}, {c}'

class Gap:
    def __init__(self, m):
        self.m = m; self.pre = []; self.mem = []; self.valu = []; self.post = []
    def ops(self):
        return [self.m] + self.pre + self.mem + self.valu + self.post
    def units(self):
        u = 0
        for x in self.mem: u += 2 if x.startswith('buffer') else 0 if x.startswith('s_') else 1
        for x in self.valu: u += 2 if x.startswith(('v_exp', 'v_rcp', 'v_log', 'v_rsq', 'v_permlane')) else 1
        return u

def place(G, ops, lo, hi=None, kind='mem', cap=2):
    g = lo
    for x in ops:
        pre = []
        if isinstance(x, tuple):
            pre, x = list(x[:-1]), x[-1]
        need = 2 if x.startswith(('buffer', 'v_exp', 'v_rcp', 'v_rsq', 'v_log', 'v_permlane')) else 1
        need = min(need, cap)
        while G[g].units() + need > cap:
            g += 1
        if hi is not None:
            assert g <= hi, (x, g, hi)
        if pre:
            if g > 0 and not any(y.startswith('buffer') for y in G[g - 1].mem):
                G[g - 1].pre += pre
            else:
                if ' m0,' in pre[-1]:
                    pre.append('s_nop 0')
                G[g].pre += pre
        getattr(G[g], kind).append(x)
    return g

STAMPS = []
def place_some(G, ops, lo, hi):
    g = lo
    for k, x in enumerate(ops):
        need = 2 if x.startswith(('v_exp', 'v_rcp', 'v_rsq', 'v_log', 'v_permlane')) else 1
        while g <= hi and G[g].units() + need > 2: g += 1
        if g > hi: return list(ops[k:])
        G[g].valu.append(x)
    return []

def stamp_op(name):
    if not OPT.get('stamp') or (OPT.get('only') and name not in OPT['only']):
        return []
    k = len(STAMPS); STAMPS.append(name)
    assert k < 12
    return [f'{"s_memtime" if OPT.get("cyc") else "s_memrealtime"} s[{sST + 2 * k}:{sST + 2 * k + 1}]']
def stamp(a, opt, name):
    for x in stamp_op(name): a(x)

def srd(a, base, lo, hi, nrec, add=None, sub=None):
    if add is not None:
        a(f's_add_u32 s{base}, s{lo}, {add}')
        a(f's_addc_u32 s{base + 1}, s{hi}, 0')
    else:
        a(f's_mov_b32 s{base}, s{lo}')
        a(f's_mov_b32 s{base + 1}, s{hi}')
    if sub is not None:
        a(f's_sub_u32 s{base}, s{base}, {sub}')
        a(f's_subb_u32 s{base + 1}, s{base + 1}, 0')
    a(f's_mov_b32 s{base + 2}, {nrec}')
    a(f's_mov_b32 s{base + 3}, 0x20000')

def HOP(k):
    if not OPT.get('hop'): return ''
    if k == 0:
        return ('s_mov_b64 exec, 0\ns_nop 1\n' + ''.join(f's_cmp_eq_u32 s6, {w}\ns_cbranch_scc1 L_hop{w + 1}\n' for w in range(3)) +
                's_branch L_hop4\nL_hopret:\ns_mov_b64 exec, -1')
    return f'L_hop{k}:\ns_cbranch_execz L_hopret'

def setup(a, opt):
    a(f'''
    s_cmp_ge_u32 s2, 256
    s_cbranch_scc1 L_end
    {("s_memtime" if opt.get("cyc") else "s_memrealtime") + " s[98:99]" if opt.get("stamp") else ""}
    s_load_dwordx16 s[64:79], s[0:1], 0
    s_load_dwordx8 s[80:87], s[0:1], 64
    v_lshrrev_b32 v4, 6, v0
    v_and_b32 v1, 63, v0
    v_readfirstlane_b32 {sr(sW)}, v4
    {HOP(0)}
    s_and_b32 s3, s2, 7
    s_bfe_u32 s7, s2, 0x20003
    s_lshl_b32 s3, s3, 2
    s_add_u32 {sr(sH)}, s3, s7
    s_lshr_b32 {sr(sQB)}, s2, 5
    s_lshl_b32 {sr(sW4K)}, {sr(sW)}, 12
    s_and_b32 s3, s2, 1
    s_lshl_b32 s3, s3, 3
    s_add_u32 {sr(sRB)}, s3, {sr(sQB)}
    s_bfe_u32 {sr(sCB)}, s2, 0x20003
    {"s_mov_b32 s89, 0" if opt.get("x_rb") else ""}
    {"s_mov_b32 s90, 0" if opt.get("x_cb") else ""}
    v_and_b32 v2, 15, v1                ; r = l&15
    v_lshrrev_b32 v3, 4, v1             ; g = l>>4
    ''')
    if OPT.get('ipf', 1):
        a(f'''
        s_getpc_b64 s[100:101]
        L_pc:
        s_lshr_b32 s3, s2, 3
        s_lshl_b32 s3, s3, 2
        s_add_u32 s3, s3, {sr(sW)}
        s_and_b32 s3, s3, 15
        s_lshl_b32 s3, s3, 13
        s_min_u32 s3, s3, L_codeend-L_pc-8192
        v_lshlrev_b32 v4, 7, v1
        v_add_u32 v4, s3, v4
        global_load_dword v26, v4, s[100:101]
        ''')

def setup_x(a, opt):
    a(f's_lshl_b32 s3, {sr(sQB)}, 18\ns_lshl_b32 s7, {sr(sW)}, 16\ns_add_u32 s3, s3, s7')
    a('s_waitcnt lgkmcnt(0)')
    if opt.get('stamp'): a('v_mov_b32 v0, s98')
    if opt.get('early'): a('s_memrealtime vcc')
    if OPT.get('tlb'):
        lst = OPT['tlb']
        a('s_lshr_b32 s7, s2, 3\ns_and_b32 s7, s7, 7\ns_mov_b64 s[100:101], s[64:65]\nv_mov_b32 v4, 0')
        for k, (r, off) in enumerate(lst):
            a(f's_cmp_eq_u32 s7, {k + 1}\ns_cselect_b64 s[100:101], s[{r}:{r + 1}], s[100:101]')
            if off: a(f's_cselect_b32 s8, {off}, 0\nv_max_u32 v4, s8, v4')
        a('global_load_dword v26, v4, s[100:101]')
    srd(a, SRD_X, 64, 65, 65536, add='s3')

def setup_w(a):
    a(f's_lshl_b32 s3, {sr(sH)}, 8')
    srd(a, SRD_WQ, 70, 71, 511 * 8192 + 256, add='s3')
    a(f's_lshl_b32 s3, {sr(sH)}, 7\ns_cmp_lt_u32 {sr(sH)}, 28\ns_cselect_b32 s3, s3, 0\ns_cselect_b32 s7, {511 * 3584 + 128}, 0')
    srd(a, SRD_WG, 76, 77, 's7', add='s3')
    srd(a, SRD_WU, 78, 79, 's7', add='s3')

def setup_wp(a):
    a('s_cmp_lt_u32 s2, 128\ns_cselect_b32 s72, s72, s80\ns_cselect_b32 s73, s73, s81\ns_and_b32 s3, s2, 127\ns_lshl_b32 s3, s3, 15')
    a('s_cmp_lt_u32 s2, 184\ns_cselect_b32 s3, s3, 0')
    a('s_cselect_b32 s7, 32768, 0\ns_cselect_b32 s74, 0x10000000, 0')
    srd(a, SRD_WO, 72, 73, 's7', add='s3')
    srd(a, SRD_WD, 86, 87, 's74')

def setup2(a, opt):
    a(f's_lshl_b32 s3, {sr(sH)}, 19')
    srd(a, SRD_K, 66, 67, 524288, add='s3')
    srd(a, SRD_V, 68, 69, 524288 + 2048 + 16384, add='s3', sub=2048 + 16384)
    srd(a, SRD_WS, 86, 87, 0x10000000)
    srd(a, SRD_OUT, 82, 83, 2097152)
    srd(a, SRD_DBG, 84, 85, 256)
    a('s_mov_b32 s96, s64\ns_mov_b32 s97, s65')

def a_setup_dma_addr(a):
    a(f'''
    s_lshl_b32 s3, {sr(sW)}, 3
    v_add_u32 v4, s3, v3                 ; row = 8w + (l>>4)
    v_lshlrev_b32 v5, 2, v3
    v_xor_b32 v5, v5, v2
    v_lshlrev_b32 v5, 4, v5
    v_lshl_add_u32 {vr(DQ)}, v4, 13, v5
    v_lshrrev_b32 v4, 3, v1              ; rho = l>>3
    v_and_b32 v5, 3, v4
    v_lshrrev_b32 v6, 5, v1
    v_lshl_add_u32 v5, v6, 3, v5
    s_lshr_b32 s3, {sr(sW)}, 1
    s_lshl_b32 s3, s3, 4
    s_and_b32 s7, {sr(sW)}, 1
    s_lshl_b32 s7, s7, 2
    s_add_u32 s3, s3, s7
    v_add_u32 v5, s3, v5                 ; W row
    v_mul_u32_u24 v5, 3584, v5
    v_lshlrev_b32 v6, 1, v3
    v_and_b32 v7, 7, v1
    v_xor_b32 v6, v6, v7
    v_lshl_add_u32 {vr(DG)}, v6, 4, v5
    v_xor_b32 v6, v3, v7
    v_lshlrev_b32 v6, 4, v6
    v_lshl_add_u32 {vr(DX)}, v4, 10, v6
    v_xor_b32 {vr(DX + 1)}, 64, {vr(DX)}
    ''')

def a_dma_x(j_par):
    ops = []
    for i in range(8):
        pre = []
        if i % 4 == 0:
            pre.append(f's_add_u32 m0, {sr(sT3)}, {XBUF + j_par * 32768 + (i // 4) * 4096}')
        pre.append(f's_add_u32 {sr(sT0 + (i & 1))}, {sr(sXO)}, {i * 8192 - 1024 * (i & 3)}')
        ops.append(tuple(pre) + (f'buffer_load_dwordx4 {vr(DX + (i & 1))}, {sr(SRD_X, 4)}, {sr(sT0 + (i & 1))} offen offset:{1024 * (i & 3)} lds',))
    return ops, [f's_add_u32 {sr(sXO)}, {sr(sXO)}, 128', f's_and_b32 {sr(sXO)}, {sr(sXO)}, 1023']

def a_dma_w():
    ops = []
    for ks in range(2):
        ops.append((f's_add_u32 m0, {sr(sWQB)}, {ks * 16384}', f's_add_u32 {sr(sT0)}, {sr(sQO)}, {ks * 32 * 8192}',
                    f'buffer_load_dwordx4 {vr(DQ)}, {sr(SRD_WQ, 4)}, {sr(sT0)} offen lds'))
        ops.append((f's_add_u32 {sr(sT1)}, {sr(sQO)}, {ks * 32 * 8192 + 4 * 8192 - 1024}',
                    f'buffer_load_dwordx4 {vr(DQ)}, {sr(SRD_WQ, 4)}, {sr(sT1)} offen offset:1024 lds'))
        ops.append((f's_add_u32 m0, {sr(sWGB)}, {ks * 16384}', f's_add_u32 {sr(sT0)}, {sr(sGO)}, {ks * 32 * 3584}',
                    f'buffer_load_dwordx4 {vr(DG)}, {sr(SRD_WG, 4)}, {sr(sT0)} offen lds'))
        ops.append((f's_add_u32 m0, m0, 4096',
                    f'buffer_load_dwordx4 {vr(DG)}, {sr(SRD_WU, 4)}, {sr(sT0)} offen lds'))
    adv = [f's_add_u32 {sr(sQO)}, {sr(sQO)}, {64 * 8192}', f's_and_b32 {sr(sQO)}, {sr(sQO)}, 0x3fffff', f's_lshr_b32 {sr(sGO)}, {sr(sQO)}, 13', f's_mul_i32 {sr(sGO)}, {sr(sGO)}, 3584',
           f's_add_u32 {sr(sWB)}, {sr(sWB)}, 1', f's_cmp_eq_u32 {sr(sWB)}, 3', f's_cselect_b32 {sr(sT2)}, -2, 1', f's_cselect_b32 {sr(sWB)}, 0, {sr(sWB)}',
           f's_lshl_b32 {sr(sT2)}, {sr(sT2)}, 15', f's_add_u32 {sr(sWQB)}, {sr(sWQB)}, {sr(sT2)}', f's_add_u32 {sr(sWGB)}, {sr(sWGB)}, {sr(sT2)}']
    return ops, adv

def emit_plain(a, ops):
    for x in ops:
        if isinstance(x, tuple):
            for y in x[:-1]: a(y)
            if ' m0,' in x[-2]: a('s_nop 0')
            a(x[-1])
        else:
            a(x)

def a_setup_read_addr(a):
    a(f'''
    v_bfe_u32 v4, v1, 2, 2               ; r'
    v_and_b32 v5, 3, v1                  ; c'
    v_lshl_add_u32 v6, v3, 3, v4         ; 8g + r'
    v_lshlrev_b32 v6, 8, v6
    v_lshl_add_u32 v6, v4, 6, v6         ; + (r'<<2)*16
    v_lshl_add_u32 v6, v5, {3 if OPT.get('a_noconf') else 4}, v6         ; + c'*16
    {"v_and_b32 v7, 16, v1" if OPT.get('a_noconf') else ""}
    {"v_lshl_add_u32 v6, v7, 1, v6" if OPT.get('a_noconf') else ""}
    v_add_u32 v6, {WBUF}, v6
    ''')
    for sp in range(4):
        a(f'v_xor_b32 {vr(AQ + sp)}, {sp * 64}, v6')
    a(f'''
    v_bfe_u32 v6, v1, 2, 3               ; rho = 4(g&1) + r'
    v_lshrrev_b32 v7, 1, v6              ; key2
    v_lshlrev_b32 v6, 7, v6
    v_lshl_add_u32 v6, v7, 5, v6
    v_lshl_add_u32 v6, v5, 3, v6
    v_lshrrev_b32 v7, 5, v1
    v_lshl_add_u32 v6, v7, 11, v6
    v_add_u32 v6, {WBUF + 8192}, v6
    ''')
    for nb in range(4):
        a(f'v_xor_b32 {vr(AG + nb)}, {nb * 32}, v6')
    a(f's_cmp_eq_u32 {sr(sW)}, 0\ns_cselect_b64 s[98:99], -1, 0\ns_cmp_lt_u32 {sr(sW)}, 2\ns_cselect_b64 s[100:101], -1, 0')
    a(f's_and_b32 s3, {sr(sW)}, 1\ns_lshl_b32 s3, s3, 12')
    for k in range(4):
        a(f'v_cndmask_b32 v4, {vr(AQ + 2 + (k >> 1))}, {vr(AQ + (k >> 1))}, s[98:99]')
        if k & 1:
            a('v_add_u32 v4, 8, v4')
        a(f'v_add_u32 v5, s3, {vr(AG + k)}')
        a(f'v_cndmask_b32 {vr(AC + k)}, v5, v4, s[100:101]')
    a(f'''
    v_lshrrev_b32 v4, 1, v2
    v_xor_b32 v4, v4, v3
    v_lshlrev_b32 v4, 4, v4
    v_lshl_add_u32 v4, v2, 7, v4
    v_add_u32 {vr(AX)}, {sr(sT3)}, v4
    v_xor_b32 {vr(AX + 1)}, 64, {vr(AX)}
    v_mov_b32 v4, 0x3f803f80
    v_and_b32 v5, 3, v1
    v_mov_b32 v6, 0xeeee
    v_and_b32 v7, 4, v1
    v_cmp_eq_u32 vcc, 0, v7
    v_mov_b32 v7, 0x4444
    v_cmp_eq_u32 s[98:99], 0, v5
    v_cndmask_b32 {vr(IDX)}, v6, v7, vcc
    s_nop 0
    ''')
    for k in range(4):
        a(f'v_cndmask_b32 v6, 0, v4, s[98:99]')
        if k < 3: a(f'v_cmp_eq_u32 s[98:99], {k + 1}, v5')
        for i in range(4):
            a(f'v_accvgpr_write_b32 {ar(AK + 4 * k + i)}, v6')

def Xreg(par, c, ks): return XF + par * 32 + c * 8 + ks * 4
def accA(nb, c):
    return vr(ACQ + (nb * 4 + c) * 4, 4) if nb < 8 else ar(AGU + ((nb - 8) * 4 + c) * 4, 4)
ORDER = [16, 17, 18, 19] + list(range(16))
def a_reads(pos):
    grp = ORDER[pos]
    out = []
    for ks in range(2):
        for u in range(2):
            off = ks * 16384 + u * 1024
            if grp < 8:
                ad = AQ + (grp >> 1); off += 8 * (grp & 1)
            elif grp < 16:
                ad = AG + (grp & 3); off += 4096 * ((grp - 8) >> 2)
            else:
                ad = AC + grp - 16
            out.append(f'ds_read_b64_tr_b16 {ar(AR + (pos & 3) * 8 + ks * 4 + 2 * u, 2)}, {vr(ad)} offset:{off}')
    return out
def x_reads(par):
    return [f'ds_read_b128 {vr(Xreg(par, c, ks), 4)}, {vr(AX + ks)} offset:{XBUF + par * 32768 + c * 2048}' for c in range(4) for ks in range(2)]

def a_superstep(par, first, tail, kv_ops=None, name=None, pre_ops=None, pre_adv=None):
    G = []; start = []
    for pos in range(20):
        grp = ORDER[pos]
        start.append(len(G))
        sl = AR + (pos & 3) * 8
        if grp < 16:
            for c in range(4):
                for ks in range(2):
                    d = accA(grp, c)
                    G.append(Gap(mf(d, ar(sl + 4 * ks, 4), vr(Xreg(par, c, ks), 4), '0' if first and ks == 0 else d)))
        else:
            k = grp - 16
            G.append(Gap(f'v_smfmac_f32_16x16x64_bf16 {vr(CSD, 4)}, {ar(AK + 4 * k, 4)}, {ar(sl, 8)}, {vr(IDX)}'))
            G.append(Gap(f'v_smfmac_f32_16x16x64_bf16 {vr(SX, 4)}, {ar(AK + 4 * k, 4)}, {vr(Xreg(par, k, 0), 8)}, {vr(IDX)}'))
            for ks in range(2):
                d = vr(SXX + 4 * k, 4)
                G.append(Gap(mf(d, vr(Xreg(par, k, ks), 4), vr(Xreg(par, k, ks), 4), '0' if first and ks == 0 else d)))
    start.append(len(G))
    def at(g, x, kind='mem'):
        place(G, [x], g, g, kind=kind)
    rp = OPT.get('a_rp', [0, 1, 2, 3])
    for grp in range(18):
        for k, x in zip(rp if grp >= 4 else [0, 0, 1, 2], a_reads(grp + 2)):
            at(start[grp] + k, x)
    dm = []
    if tail == 0:
        wops, wadv = a_dma_w(); xops, xadv = a_dma_x(par)
        if OPT.get('a_now'): wops = []
        if OPT.get('a_nox'): xops = []
        dm = wops + xops
        if pre_ops:
            dm = pre_ops + dm
    if kv_ops:
        dm = kv_ops
    free = [start[p] + (5 if p >= 4 else 3) for p in range(18)]
    if len(dm) > len(free):
        free = [g for p in range(18) for g in ((start[p] + 4, start[p] + 6) if p >= 4 else (start[p] + 3,))]
    pos = free[:len(dm)]
    for g, x in zip(pos, dm):
        if x is not None: at(g, x)
    if tail == 0:
        npre = len(pre_ops) if pre_ops else 0
        if pre_ops:
            for g, adv in pre_adv:
                G[pos[g] + 1].pre += adv
        if wops:
            g = pos[npre + len(wops) - 1]
            G[g + 1].pre += wadv[:4]; G[g + 2].pre += wadv[4:8]; G[g + 3].pre += wadv[8:]
        if xops:
            G[pos[-1] + 1].pre += xadv
    xg = OPT.get('a_xg', 14)
    if tail < 2:
        wg = start[xg] + 3
        npre = len(pre_ops) if pre_ops else 0
        younger = sum(1 for k, g in enumerate(pos) if g < wg and k >= npre and dm[k] is not None)
        assert all(g < wg for g in pos[:npre])
        G[wg].pre.append(f's_waitcnt vmcnt({younger})')
        xr = x_reads(1 - par)
        for k, x in enumerate(xr):
            at(start[xg + k // 4] + 3 + (k % 4) + (1 if G[start[xg + k // 4] + 3 + (k % 4)].units() >= 2 else 0), x) if False else None
        g = wg
        xpos = []
        for x in xr:
            while G[g].units() >= 2 or any(y.startswith('ds_read_b128') for y in G[g].mem): g += 1
            G[g].mem.append(x); xpos.append(g)
        assert xpos[-1] < start[18] - 2, xpos
    if tail == 2:
        w, st, rd = a_stats_ops()
        g = place(G, w[0], start[4] + 5, start[9] + 4, kind='valu')
        place(G, w[1], start[9] + 5, start[10] + 7, cap=1)
        G[start[12] - 1].post += ['s_waitcnt lgkmcnt(4)', 's_barrier']
        place(G, rd, start[14] + 4, start[17] + 7, cap=1)
        rest = place_some(G, st, g, start[20] - 1)
        G[-1].post += ['s_nop 1'] + rest
    seq = [(g, x) for g in range(len(G)) for x in G[g].mem if x.startswith('ds_')]
    for grp in range(2, 20):
        if grp == 18:
            continue
        last = max(k for k, (g, x) in enumerate(seq) if x in a_reads(grp) and start[grp - 2] <= g < start[grp - 1])
        n = sum(1 for k, (g, x) in enumerate(seq) if k > last and g < start[grp] - 1)
        G[start[grp] - 1].pre.append(f's_waitcnt lgkmcnt({min(n, 14)})')
    G[start[1] - 1].pre.append('s_waitcnt lgkmcnt(4)')
    if tail < 2:
        G[start[18] - 1].pre += ['s_waitcnt lgkmcnt(0)', 's_barrier']
        vu = [f'v_add_u32 {vr(AQ + i)}, {sr(sDL)}, {vr(AQ + i)}' for i in range(12)]
        place(G, vu[:4] + vu[8:], start[14], start[17] + 5, kind='valu')
        for k, x in enumerate(a_reads(0)): at(start[18] + k, x)
        for k, x in enumerate(a_reads(1)): at(start[19] + k, x)
        place(G, vu[4:8], start[18], start[19] + 5, kind='valu')
        G[start[20] - 1].pre.append('s_waitcnt lgkmcnt(4)')
        G[start[13] + 1].pre += [f's_add_u32 {sr(sM)}, {sr(sM)}, 1', f's_cmp_eq_u32 {sr(sM)}, 3', f's_cselect_b32 {sr(sDL)}, -2, 1', f's_cselect_b32 {sr(sM)}, 0, {sr(sM)}']
        G[start[13] + 2].pre += [f's_lshl_b32 {sr(sDL)}, {sr(sDL)}, 15']
    else:
        G[start[18] - 1].pre += ['s_waitcnt lgkmcnt(0)']
    if OPT.get('a_nobar'):
        for g in G: g.pre = [x for x in g.pre if x != 's_barrier']
    if OPT.get('a_nowait'):
        for g in G: g.pre = [x for x in g.pre if not x.startswith('s_waitcnt lgkmcnt')]
    if OPT.get('a_novm'):
        for g in G: g.pre = [x for x in g.pre if not x.startswith('s_waitcnt vmcnt')]
    if OPT.get('a_nords'):
        for g in G: g.mem = [x for x in g.mem if not x.startswith('ds_read_b64')]
    if name:
        so = stamp_op(name)
        if so:
            G[start[18] - 1].post += so
            G[start[19] - 1].pre.append('s_waitcnt lgkmcnt(0)')
    return G

WPA = [240, 241, 242, 243, 252, 253, 254, 255]
def wp_addr0():
    return ['v_lshlrev_b32 v4, 1, v3', 'v_xor_b32 v4, v4, v2', 'v_lshlrev_b32 v4, 4, v4', 'v_lshl_add_u32 v4, v3, 10, v4', 'v_xor_b32 v5, 128, v4']
def wp_dma():
    ops = []
    for i in range(8):
        pre = []
        if i == 0: pre += [f's_lshl_b32 {sr(sT2)}, {sr(sW)}, 8']
        pre += [f's_add_u32 m0, {sr(sT3)}, {131072 + i * 1024}', f's_add_u32 {sr(sT0)}, {sr(sT2)}, {i * 4096}']
        ops.append(tuple(pre) + (f'buffer_load_dwordx4 v{4 + (i & 1)}, {sr(SRD_WO, 4)}, {sr(sT0)} offen lds',))
    return ops
def wp_addr1():
    t0, t1 = WPA[0], WPA[1]
    ops = [f'v_lshrrev_b32 {vr(t0)}, 2, v1', f'v_and_b32 {vr(t1)}, 7, {vr(t0)}', f'v_lshlrev_b32 {vr(t0)}, 8, {vr(t0)}', f'v_lshl_add_u32 {vr(t0)}, {vr(t1)}, 5, {vr(t0)}',
           f'v_and_b32 {vr(t1)}, 3, v1', f'v_lshlrev_b32 {vr(t1)}, 5, {vr(t1)}', f'v_xor_b32 {vr(t0)}, {vr(t1)}, {vr(t0)}', f'v_add_u32 {vr(t0)}, {sr(sT3)}, {vr(t0)}', f'v_add_u32 {vr(t0)}, 131072, {vr(t0)}']
    ops += [f'v_xor_b32 {vr(WPA[db])}, {(db >> 2) * 128 + (db & 3) * 8}, {vr(t0)}' for db in range(1, 8)]
    return ops
def wp_reads():
    return [f'ds_read_b64_tr_b16 {ar(WPR + db * 4 + 2 * u, 2)}, {vr(WPA[db])} offset:{u * 4096}' for db in range(8) for u in range(2)]
def wp_stores():
    st = []
    for db in range(8):
        st.append(f'buffer_store_dwordx4 {ar(WPR + db * 4, 4)}, {vr(CL16)}, {sr(SRD_WD, 4)}, {"s3" if db < 4 else "s7"} offen offset:{1024 * (db & 3)} sc1')
    sc = ['s_sub_u32 s3, s2, 128', 's_add_u32 s7, s2, 56', 's_cmp_lt_u32 s2, 128', 's_cselect_b32 s3, s7, s3', 's_lshl_b32 s3, s3, 12',
          f's_mul_i32 s7, {sr(sW)}, {2 * WFS}', 's_add_u32 s3, s3, s7', f's_add_u32 s3, s3, {WS_WF}', f's_add_u32 s7, s3, {WFS}']
    return sc, st

def wp_store_ops():
    sc, st = wp_stores()
    out = []
    for k, x in enumerate(st):
        out += [tuple(sc) + (x,) if k == 0 else x, None]
    return out

def warmup(a):
    if OPT.get('pad', 4096):
        nch = OPT.get('nchain', 4)
        a('s_mov_b64 exec, 0')
        for w in range(nch - 1):
            a(f's_cmp_eq_u32 {sr(sW)}, {w}\ns_cbranch_scc1 L_pad{w}')
        a(f's_branch L_pad{nch - 1}')
        a.raw('.p2align 12')
        a.label('L_warmdone')
        a.label('L_warmret')
        a('s_mov_b64 exec, -1')

def phase_a(a, opt):
    a(f's_lshl_b32 {sr(sT3)}, {sr(sW)}, 13')
    a_setup_dma_addr(a)
    a(f's_and_b32 s3, s2, {7 if OPT.get("arot", 0) else 0}\ns_lshl_b32 {sr(sXO)}, s3, 7\ns_lshl_b32 {sr(sQO)}, s3, 19\ns_mul_i32 {sr(sGO)}, s3, {64 * 3584}\ns_mov_b32 {sr(sWB)}, 0\ns_mov_b32 {sr(sM)}, 0')
    a(f's_lshl_b32 {sr(sWQB)}, {sr(sW)}, 11\ns_add_u32 {sr(sWQB)}, {sr(sWQB)}, {WBUF}\ns_lshl_b32 {sr(sWGB)}, {sr(sW)}, 10\ns_add_u32 {sr(sWGB)}, {sr(sWGB)}, {WBUF + 8192}')
    xops, xadv = a_dma_x(0); wops, wadv = a_dma_w()
    setup_x(a, opt)
    if OPT.get('b1', 0):
        emit_plain(a, xops[:1])
        setup_w(a)
        w0 = [wops[0], wops[2], wops[3]]
        emit_plain(a, w0)
        emit_plain(a, [(xops[0][0],) + xops[1]] + xops[2:]); emit_plain(a, xadv)
        emit_plain(a, [(wops[0][0],) + wops[1]] + wops[4:]); emit_plain(a, wadv)
    else:
        emit_plain(a, xops); emit_plain(a, xadv)
        setup_w(a)
        emit_plain(a, wops); emit_plain(a, wadv)
    if opt.get('early') and not opt.get('early2'): a('s_memrealtime s[98:99]')
    wm = OPT.get('warmpos', 1)
    if wm == 1: warmup(a)
    xops, xadv = a_dma_x(1); wops, wadv = a_dma_w()
    b = A()
    for i in range(ACQ, ACQ + 4): b(f'v_mov_b32 {vr(i)}, 0')
    setup2(b, opt); setup_wp(b)
    if opt.get('early'):
        b('s_waitcnt lgkmcnt(0)')
        for nm, r in (('karg', 'vcc_lo'), ('i16', 's98')):
            b(f's_mov_b32 s{sST + 2 * len(STAMPS)}, {r}'); STAMPS.append(nm)
    a_setup_read_addr(b); b_setup_dma_addr(b)
    for i in range(ACQ + 4, 256):
        b(f'v_mov_b32 {vr(i)}, 0')
        if (i - ACQ) % 16 == 8 and (i - ACQ) // 16 < 8:
            b(f'v_mfma_f32_32x32x16_bf16 {ar(AGU + 16 * ((i - ACQ) // 16), 16)}, {vr(ACQ, 4)}, {vr(ACQ, 4)}, 0')
    fill = [l.strip() for l in b.lines]
    per = len(fill) // 15 + 1
    k0 = 0
    for k, x in enumerate(xops + wops):
        emit_plain(a, [x])
        if k == 7: emit_plain(a, xadv)
        k1 = min(len(fill), k0 + per)
        while k1 < len(fill) and fill[k1].startswith(('s_addc', 's_subb', 's_cselect')): k1 += 1
        for y in fill[k0:k1]: a(y)
        k0 = k1
    assert k0 == len(fill)
    emit_plain(a, wadv)
    ntouch = 0
    stamp(a, opt, 'issued')
    a(f'''
    s_lshl_b32 s3, {sr(sQB)}, 2
    s_add_u32 s3, s3, {sr(sW)}
    s_lshl_b32 s3, s3, 2
    s_lshr_b32 s7, {sr(sH)}, 3
    s_add_u32 s3, s3, s7
    s_lshl_b32 s3, s3, 5
    s_and_b32 s7, {sr(sH)}, 7
    s_add_u32 s3, s3, s7
    s_lshl_b32 s3, s3, 2
    s_add_u32 s94, s3, {WS_FLAG}
    v_mov_b32 v4, 0
    s_mov_b64 exec, 1
    buffer_store_dword v4, v4, {sr(SRD_WS, 4)}, s94 offen sc1
    {TW('s3')}
    s_lshl_b32 s3, s3, 6
    s_bfe_u32 s7, s2, 0x20001
    s_add_u32 s3, s3, s7
    s_lshl_b32 s3, s3, 2
    s_add_u32 s3, s3, {WS_FF}
    buffer_store_dword v4, v4, {sr(SRD_WS, 4)}, s3 offen sc1
    buffer_store_dword v4, v4, {sr(SRD_WS, 4)}, s3 offen offset:128 sc1
    s_mov_b64 exec, -1
    ''')
    if wm == 2: warmup(a)
    a(f's_waitcnt vmcnt({19 + ntouch})')
    for x in x_reads(0): a(x)
    a('s_waitcnt lgkmcnt(0)\ns_barrier')
    for x in a_reads(0) + a_reads(1): a(x)
    stamp(a, opt, 'A0')
    a('s_waitcnt lgkmcnt(0)' if opt.get('stamp') else 's_waitcnt lgkmcnt(4)')
    a.raw('.p2align 3')
    a(f's_mov_b32 {sr(sCNT)}, 3')
    a.raw('.p2align 3')
    a.label('L_a')
    G = a_superstep(0, False, 0, name='a4') + a_superstep(1, False, 0, name='a5')
    G[-4].pre.append(f's_sub_u32 {sr(sCNT)}, {sr(sCNT)}, 1')
    G[-2].pre.append(f's_cmp_lg_u32 {sr(sCNT)}, 0')
    G[-1].post.append('s_cbranch_scc1 L_a')
    emit_gaps(a, [g.ops() for g in G])
    a.raw('.p2align 3')
    emit_gaps(a, [g.ops() for g in a_superstep(0, False, 1, name='a6', kv_ops=b_prologue_dma()[:12]) + a_superstep(1, False, 2, kv_ops=b_prologue_dma()[12:])])
    stamp(a, opt, 'Aend')
    a_epilogue(a, opt)

def NMEAN(c): return SX + c
def ALPHA(c): return STT + c
def RS2(c): return STT + 4 + c
CSQ = 32; CSG = 160; HP = 192; ZQ = 240
def a_stats_ops():
    w0 = ['v_lshlrev_b32 v4, 4, v3', f'v_add_u32 v4, {CSBUF}, v4', 'v_lshlrev_b32 v5, 2, v2', f'v_lshl_add_u32 v5, {sr(sW)}, 8, v5', f'v_add_u32 v5, {CSBUF}, v5']
    w0 += [f'v_mov_b32 {vr(STT + k)}, {vr(CSD + k)}' for k in range(4)]
    w0 += [f'v_permlane16_swap_b32 {vr(CSD + k)}, {vr(STT + k)}' for k in range(4)]
    w0 += [f'v_add_f32 {vr(CSD + k)}, {vr(CSD + k)}, {vr(STT + k)}' for k in range(4)]
    w1 = [f'ds_write_b32 v5, {vr(CSD + k)} offset:{64 * k}' for k in range(4)]
    st = ['v_and_b32 v6, 3, v1', 'v_cmp_eq_u32 s[98:99], 1, v6', 'v_cmp_eq_u32 s[100:101], 2, v6', 'v_cmp_eq_u32 vcc, 3, v6',
          'v_lshrrev_b32 v6, 2, v2', 'v_cmp_eq_u32 s[92:93], v6, v3']
    st += [f'v_mov_b32 {vr(STT + 4 + k)}, {vr(SX + k)}' for k in range(4)]
    st += [f'v_permlane16_swap_b32 {vr(SX + k)}, {vr(STT + 4 + k)}' for k in range(4)]
    st += [f'v_add_f32 {vr(SX + k)}, {vr(SX + k)}, {vr(STT + 4 + k)}' for k in range(4)]
    for c in range(4):
        st.append(f'v_mul_f32 {vr(NMEAN(c))}, {f2u(-1 / 512)}, {vr(SX + c)}')
    for k, m in ((1, 's[98:99]'), (2, 's[100:101]'), (3, 'vcc')):
        for c in range(4):
            b = SXX + 4 * c
            st.append(f'v_cndmask_b32 {vr(b)}, {vr(b)}, {vr(b + k)}, {m}')
    for c in range(4):
        st.append(f'v_cndmask_b32 {vr(SXX + 4 * c)}, 0, {vr(SXX + 4 * c)}, s[92:93]')
    for sw in ('v_permlane32_swap_b32', 'v_permlane16_swap_b32'):
        for c in range(4): st.append(f'v_mov_b32 {vr(SXX + 4 * c + 1)}, {vr(SXX + 4 * c)}')
        for c in range(4): st.append(f'{sw} {vr(SXX + 4 * c)}, {vr(SXX + 4 * c + 1)}')
        for c in range(4): st.append(f'v_add_f32 {vr(SXX + 4 * c)}, {vr(SXX + 4 * c)}, {vr(SXX + 4 * c + 1)}')
    sc = (128 ** -0.5) * math.log2(math.e)
    for c in range(4): st.append(f'v_mul_f32 {vr(SXX + 4 * c)}, {f2u(1 / 512)}, {vr(SXX + 4 * c)}')
    for c in range(4): st.append(f'v_fma_f32 {vr(SXX + 4 * c)}, -{vr(NMEAN(c))}, {vr(NMEAN(c))}, {vr(SXX + 4 * c)}')
    for c in range(4): st.append(f'v_max_f32 {vr(SXX + 4 * c)}, 0, {vr(SXX + 4 * c)}')
    for c in range(4): st.append(f'v_add_f32 {vr(SXX + 4 * c)}, {f2u(1e-5)}, {vr(SXX + 4 * c)}')
    for c in range(4): st.append(f'v_rsq_f32 {vr(ALPHA(c))}, {vr(SXX + 4 * c)}')
    for c in range(4): st.append(f'v_rcp_f32 {vr(RS2(c))}, {vr(SXX + 4 * c)}')
    for c in range(4): st.append(f'v_mul_f32 {vr(ALPHA(c))}, {f2u(sc)}, {vr(ALPHA(c))}')
    for i in range(4): st.append(f'v_mov_b32 {vr(ZQ + i)}, 0')
    rd = [f'ds_read_b128 {vr(CSQ + 4 * nb, 4)}, v4 offset:{64 * nb}' for nb in range(8)]
    return (w0, w1), st, rd

def bc(r):
    return vr(r & ~1, 2), (r & 1)

def a_epilogue(a, opt):
    for c in range(4):
        nm, nh = bc(NMEAN(c))
        for nb in range(8):
            b = ACQ + (nb * 4 + c) * 4
            for i in (0, 2):
                a(f'v_pk_fma_f32 {vr(b + i, 2)}, {vr(CSQ + 4 * nb + i, 2)}, {nm}, {vr(b + i, 2)} op_sel:[0,{nh},0] op_sel_hi:[1,{nh},1]')
    for c in range(4):
        al, ah = bc(ALPHA(c))
        for nb in range(8):
            b = ACQ + (nb * 4 + c) * 4
            for i in (0, 2):
                a(f'v_pk_mul_f32 {vr(b + i, 2)}, {vr(b + i, 2)}, {al} op_sel:[0,{ah}] op_sel_hi:[1,{ah}]')
            for i in (0, 2):
                a(f'v_cvt_pk_bf16_f32 {vr(Q + 16 * c + 2 * nb + (i >> 1))}, {vr(b + i)}, {vr(b + i + 1)}')
    stamp(a, opt, 'e_q')
    for nb in range(8):
        a(f'ds_read_b128 {vr(CSG + 4 * nb, 4)}, v4 offset:{64 * (8 + nb)}')

def h_epilogue(a, mfmas, vmem):
    mfmas = list(mfmas)
    for c in range(4):
        nm, nh = bc(NMEAN(c)); rs, rh = bc(RS2(c))
        tg = 128; tu = 144
        emit_plain(a, vmem[c:c + 1])
        for k in range(16):
            if k % 2 == 0: a(mfmas.pop(0))
            a(f'v_accvgpr_read_b32 {vr(tg + k)}, {ar(AGU + ((k >> 2) * 4 + c) * 4 + (k & 3))}')
            a(f'v_accvgpr_read_b32 {vr(tu + k)}, {ar(AGU + (((k >> 2) + 4) * 4 + c) * 4 + (k & 3))}')
        for k in range(0, 16, 2):
            a(f'v_pk_fma_f32 {vr(tg + k, 2)}, {vr(CSG + k, 2)}, {nm}, {vr(tg + k, 2)} op_sel:[0,{nh},0] op_sel_hi:[1,{nh},1]')
        for k in range(0, 16, 2):
            a(f'v_pk_fma_f32 {vr(tu + k, 2)}, {vr(CSG + 16 + k, 2)}, {nm}, {vr(tu + k, 2)} op_sel:[0,{nh},0] op_sel_hi:[1,{nh},1]')
        for k in range(0, 16, 2):
            a(f'v_pk_mul_f32 {vr(tg + k, 2)}, {vr(tg + k, 2)}, {rs} op_sel:[0,{rh}] op_sel_hi:[1,{rh}]')
        for k in range(0, 16, 2):
            a(f'v_pk_mul_f32 {vr(tg + k, 2)}, {vr(tg + k, 2)}, {vr(tu + k, 2)}')
        for k in range(8):
            a(f'v_cvt_pk_bf16_f32 {vr(tu + k)}, {vr(tg + 2 * k)}, {vr(tg + 2 * k + 1)}')
        for k in range(8):
            a(f'v_accvgpr_write_b32 {ar(HP + c * 8 + k)}, {vr(tu + k)}')
    assert not mfmas

def Sreg(buf, c, kb=0): return S + buf * 32 + c * 8 + kb * 4
def Qreg(c, s): return Q + c * 16 + s * 4
def Preg(c, par): return (PA + par * 8 + c * 4) if c < 2 else PB + (c - 2) * 4
def Oreg(c, db): return O + c * 32 + db * 4
def LMreg(hf): return LM + hf * 4
def LOLD(hf): return LM + 8 + hf
SELA = 24; HL = 33; SL = 66
def qk_mfma(buf, c, kb, s, c0=None):
    d = vr(Sreg(buf, c, kb), 4)
    cc = d if s else (c0 if c0 is not None else vr(NM + 4 * c, 4))
    return mf(d, ar(KF + 4 * (kb * 4 + s), 4), vr(Qreg(c, s), 4), cc)
def pv_mfma(c, par, db, c0=None):
    d = ar(Oreg(c, db), 4)
    return mf(d, ar(VF + db * 4, 4), vr(Preg(c, par), 4), d if c0 is None else c0)
def sum_mfma(hf, par):
    return f'v_smfmac_f32_16x16x64_bf16 {vr(LMreg(hf), 4)}, {vr(SELA, 4)}, {vr(Preg(2 * hf, par), 8)}, {vr(SIDX)}'
def k_read(slot, kb, s, base=None):
    if base is not None:
        return f'ds_read_b128 {ar(KF + 4 * (kb * 4 + s), 4)}, {vr(base + s)} offset:{slot * STAGE + kb * 8192}'
    return f'ds_read_b128 {ar(KF + 4 * (kb * 4 + s), 4)}, {vr(KA + 4 * (slot >> 2) + s)} offset:{(slot & 3) * STAGE + kb * 8192}'
def v_read(slot, db, u):
    return f'ds_read_b64_tr_b16 {ar(VF + db * 4 + 2 * u, 2)}, {vr((VAB if slot >= 4 else VAA) + db)} offset:{(slot & 3) * STAGE + u * 8192 + 2048}'
def dma_k(i):
    return f'buffer_load_dwordx4 {vr(DK0 + i)}, {sr(SRD_K, 4)}, {sr(sOK)} offen offset:{1024 * i}{OPT.get("kvsc", "")} lds'
def dma_v(i):
    return f'buffer_load_dwordx4 {vr(DV0 + i)}, {sr(SRD_V, 4)}, {sr(sOK)} offen offset:{2048 + 1024 * i}{OPT.get("kvsc", "")} lds'
def stage_dma(slot, k=True, v=True):
    ops = ([dma_k(0), dma_k(1)] if k else []) + ([dma_v(0), dma_v(1)] if v else [])
    ops[0] = (f's_add_u32 m0, {sr(sW4K)}, {slot * STAGE}', f's_add_u32 {sr(sOK)}, {sr(sOK)}, 8192', ops[0])
    return ops

def b_setup_dma_addr(a):
    a(f'''
    s_lshl_b32 s3, {sr(sW)}, 3
    v_add_u32 v5, s3, v3          ; row = 8w + (l>>4)
    v_and_b32 v7, 15, v5
    v_xor_b32 v7, v7, v2
    v_lshlrev_b32 v7, 4, v7
    v_lshl_add_u32 {vr(DK0)}, v5, 8, v7
    v_xor_b32 {vr(DK1)}, 64, {vr(DK0)}
    v_lshlrev_b32 v7, 1, v3
    v_xor_b32 v7, v7, v2
    v_lshlrev_b32 v7, 4, v7
    v_lshl_add_u32 {vr(DV0)}, v5, 8, v7
    v_xor_b32 {vr(DV1)}, 128, {vr(DV0)}
    s_mov_b32 {sr(sOK)}, {-8192 & 0xffffffff}
    ''')

def b_prologue_dma():
    ops = stage_dma(8, v=False) + stage_dma(9, v=False)
    for sl in range(5):
        ops += stage_dma(sl)
    return ops

def b_prologue_dma2():
    return stage_dma(5)

def b_setup_read_addr(a):
    a(f'''
    v_lshrrev_b32 v4, 3, v2
    v_lshlrev_b32 v4, 12, v4      ; (r>>3)*4096
    v_and_b32 v5, 7, v2
    v_lshl_add_u32 v4, v5, 8, v4  ; + (r&7)*256
    v_xor_b32 v5, v2, v3
    v_lshl_add_u32 v4, v5, 4, v4  ; + (r^g)*16
    ''')
    for s in range(4):
        a(f'v_xor_b32 {vr(KA + s)}, {s * 64}, v4')
        a(f'v_add_u32 {vr(KA + 4 + s)}, 65536, {vr(KA + s)}')
        a(f'v_add_u32 {vr(ST + 8 + s)}, 131072, {vr(KA + s)}')
    a(f'''
    v_bfe_u32 v4, v1, 2, 3        ; row&7
    v_lshlrev_b32 v5, 8, v4
    v_lshl_add_u32 v5, v4, 5, v5
    v_lshrrev_b32 v6, 5, v1
    v_lshl_add_u32 v5, v6, 12, v5
    v_and_b32 v6, 3, v1
    v_lshl_add_u32 v5, v6, 3, v5
    ''')
    for db in range(8):
        a(f'v_xor_b32 {vr(VAA + db)}, {db * 32}, v5')
        a(f'v_add_u32 {vr(VAB + db)}, 65536, {vr(VAA + db)}')
    a(f'''
    v_mov_b32 {vr(THR)}, 0x4e800000      ; 2^30
    v_mov_b32 {vr(SIDX)}, {vr(IDX)}
    v_lshrrev_b32 v4, 3, v2
    v_lshrrev_b32 v5, 5, v1
    v_and_b32 v6, 3, v1
    v_lshl_add_u32 v4, v6, 1, v4
    v_cmp_eq_u32 vcc, v4, v5
    v_mov_b32 v4, 0x3f803f80
    s_nop 0
    v_cndmask_b32 v5, 0, v4, vcc
    ''')
    for i in range(4):
        a(f'v_mov_b32 {vr(SELA + i)}, v5')
    a(f'v_lshlrev_b32 {vr(CL16)}, 4, v1')

def xlane(a, op, dst, t2):
    for sw in ('v_permlane32_swap_b32', 'v_permlane16_swap_b32'):
        a(f'v_mov_b32 {vr(t2)}, {vr(dst)}')
        a('s_nop 1')
        a(f'{sw} {vr(dst)}, {vr(t2)}')
        a(f'{op} {vr(dst)}, {vr(dst)}, {vr(t2)}')

def rowmax(a, base, dst, t2):
    a(f'v_max3_f32 {vr(dst)}, {vr(base)}, {vr(base + 1)}, {vr(base + 2)}')
    a(f'v_max3_f32 {vr(dst)}, {vr(dst)}, {vr(base + 3)}, {vr(base + 4)}')
    a(f'v_max3_f32 {vr(dst)}, {vr(dst)}, {vr(base + 5)}, {vr(base + 6)}')
    a(f'v_max_f32 {vr(dst)}, {vr(dst)}, {vr(base + 7)}')
    xlane(a, 'v_max_f32', dst, t2)

def softmax_c(a, sbase, pbase, tb):
    for r in range(4):
        a(f'v_exp_f32 {vr(tb)}, {vr(sbase + 2 * r)}')
        a(f'v_exp_f32 {vr(tb + 1)}, {vr(sbase + 2 * r + 1)}')
        a('s_nop 0')
        a(f'v_cvt_pk_bf16_f32 {vr(pbase + r)}, {vr(tb)}, {vr(tb + 1)}')

def b_prologue(a, opt):
    b_setup_read_addr(a)
    a('s_waitcnt vmcnt(0) lgkmcnt(0)')
    stamp(a, opt, 'e_h')
    a('s_barrier')
    for kb in range(2):
        for s in range(4):
            a(k_read(0, kb, s, base=ST + 8))
    a(f'''
    s_lshl_b32 s3, {sr(sQB)}, 4
    s_lshl_b32 s7, {sr(sW)}, 2
    s_add_u32 s3, s3, s7
    s_mul_i32 s3, s3, {HST()}
    s_lshl_b32 s7, {sr(sH)}, 11
    s_add_u32 s3, s3, s7
    s_add_u32 {sr(sHO)}, s3, {WS_H}
    s_mov_b32 s{SRD_WG}, s{SRD_WS}
    s_mov_b32 s{SRD_WG + 1}, s{SRD_WS + 1}
    s_cmp_lt_u32 {sr(sH)}, 28
    s_cselect_b32 s{SRD_WG + 2}, 0x10000000, 0
    s_mov_b32 s{SRD_WU}, s{SRD_DBG}
    s_mov_b32 s{SRD_WU + 1}, s{SRD_DBG + 1}
    s_mov_b32 s{SRD_WU + 2}, 0
    s_cmp_eq_u32 {sr(sW)}, 0
    s_cselect_b32 {sr(sXO)}, 4, 64
    v_mov_b32 {vr(ONEV)}, 1
    {TW('s54')}
    s_lshl_b32 s3, s54, 2
    s_bfe_u32 s7, s2, 0x20001
    s_add_u32 s3, s3, s7
    s_mul_i32 s3, s3, 12288
    s_add_u32 s92, s3, {WS_XF}
    s_add_u32 s93, s92, 4096
    s_add_u32 s62, s92, 8192
    s_waitcnt lgkmcnt(0)
    ''')
    h_epilogue(a, [qk_mfma(0, c, kb, s, c0='0') for c in range(4) for kb in range(2) for s in range(4)], b_prologue_dma2())
    stamp(a, opt, 'e_h2')
    for kb in range(2):
        for s in range(4):
            a(k_read(1, kb, s, base=ST + 8))
    for i in range(10):
        a(f'v_mov_b32 {vr(LM + i)}, 0')
    zm = [f'v_mfma_f32_32x32x16_bf16 {ar(O + 16 * i, 16)}, {vr(ZQ, 4)}, {vr(ZQ, 4)}, 0' for i in range(8)]
    m = [ST + c for c in range(4)]; t2 = [ST + 4 + c for c in range(4)]
    for k in range(4):
        a(zm.pop())
        for c in range(4):
            b = Sreg(0, c)
            a([f'v_max3_f32 {vr(m[c])}, {vr(b)}, {vr(b + 1)}, {vr(b + 2)}', f'v_max3_f32 {vr(m[c])}, {vr(m[c])}, {vr(b + 3)}, {vr(b + 4)}',
               f'v_max3_f32 {vr(m[c])}, {vr(m[c])}, {vr(b + 5)}, {vr(b + 6)}', f'v_max_f32 {vr(m[c])}, {vr(m[c])}, {vr(b + 7)}'][k])
    for sw in ('v_permlane32_swap_b32', 'v_permlane16_swap_b32'):
        for c in range(4): a(f'v_mov_b32 {vr(t2[c])}, {vr(m[c])}')
        a(zm.pop())
        for c in range(4): a(f'{sw} {vr(m[c])}, {vr(t2[c])}')
        a(zm.pop())
        for c in range(4): a(f'v_max_f32 {vr(m[c])}, {vr(m[c])}, {vr(t2[c])}')
    for c in range(4):
        for i in range(8):
            a(f'v_sub_f32 {vr(Sreg(0, c) + i)}, {vr(Sreg(0, c) + i)}, {vr(m[c])}')
        for i in range(4):
            a(f'v_sub_f32 {vr(NM + 4 * c + i)}, 0, {vr(m[c])}')
    for e in range(16):
        a(f'v_exp_f32 {vr(128 + e)}, {vr(Sreg(0, 0) + e)}')
    for r in range(8):
        a(f'v_cvt_pk_bf16_f32 {vr(Preg(0, 0) + r)}, {vr(128 + 2 * r)}, {vr(129 + 2 * r)}')
    a('s_waitcnt lgkmcnt(0)')

BIG = [25, 29, 32, 38, 46, 50, 54, 58, 62]
def step_gaps(slot, tag, opt, dma=True, final=False, extra=None, vm=0, nobar=False):
    p = slot & 1
    qk = [qk_mfma(1 - p, c, kb, s) for c in range(4) for kb in range(2) for s in range(4)]
    pv = [pv_mfma(c, p, db) for c in range(4) for db in range(8)]
    mfs = qk[:4] + [sum_mfma(0, p)] + qk[4:] + pv[:4] + [sum_mfma(1, p)] + pv[4:]
    G = [Gap(m) for m in mfs]
    for hf, g0 in ((1, 0), (0, HL)):
        if final and hf == 0:
            continue
        for e in range(16):
            c = 2 * hf + (e >> 3)
            src = (Sreg(p, 2) if hf else Sreg(1 - p, 0)) + e
            G[g0 + 2 * e].valu.append(f'v_exp_f32 {vr(TMP + (e & 3))}, {vr(src)}')
            if e & 1:
                G[g0 + 2 * e + 1].valu.append(f'v_cvt_pk_bf16_f32 {vr(Preg(c, 1 - p) + ((e & 7) >> 1))}, {vr(TMP + ((e - 1) & 3))}, {vr(TMP + (e & 3))}')
    for hf, g0 in ((0, 0), (1, HL)):
        late = final and hf == 1
        G[g0 + (13 if late else 9)].valu.append(f'v_cmp_nle_f32 vcc, {vr(LMreg(hf))}, {vr(THR)}')
        G[g0 + (16 if late else 15)].post += [f's_cbranch_vccnz L_slow{hf}_{tag}', f'L_back{hf}_{tag}:']
        if not final:
            G[g0 + 27].valu.append(f'v_mov_b32 {vr(LOLD(hf))}, {vr(LMreg(hf))}')
    vplace = OPT.get('vplace', [1, 1, 3, 5, 5, 7, 9, 11, 13, 13, 17, 17, 19, 21, 21, 23])
    kplace = [HL + x for x in OPT.get('kplace', (1, 1, 3, 7, 9, 11, 19, 23))]
    for g, x in zip(vplace, [v_read(slot, db, u) for db in range(8) for u in range(2)]):
        G[g].mem.append(x)
    if not final:
        for g, x in zip(kplace, [k_read(slot, kb, s) for kb in range(2) for s in range(4)]):
            G[g].mem.append(x)
    G[HL - 1].pre.append('s_waitcnt lgkmcnt(0)')
    ops = []
    if dma:
        ops = [None] * 4 + stage_dma((slot + 6) & 7, k=dma != 'v')
        if OPT.get('spl', 1):
            G[BIG[4] - 3].pre.append(ops[4][1]); ops[4] = (ops[4][0], ops[4][2])
    if extra:
        ops = extra
    for g, x in zip(BIG if not final else ([25, 29, 33, 38, 42, 47, 52, 56, 60, 64] if len(ops) <= 10 else [3, 7, 11, 15, 19, 23, 27, 30, 34, 38, 42, 47, 51, 55, 59, 63]), ops):
        if x is not None:
            place(G, [x], g, g, cap=9 if final else 2)
    if final and len(ops) > 10:
        G[HL - 1].pre.append('s_barrier')
    if slot & 1 and not nobar:
        G[SL - 1].pre += [f's_waitcnt vmcnt({vm}) lgkmcnt(0)', 's_barrier'] if not final else []
    else:
        G[SL - 1].pre.append('s_waitcnt lgkmcnt(0)')
    if tag[0] == 's':
        for g in G:
            if OPT.get('b_nobar'): g.pre = [x for x in g.pre if x != 's_barrier']
            if OPT.get('b_nodma'): g.mem = [x for x in g.mem if not x.startswith('buffer')]
            if OPT.get('b_nochk'): g.valu = [x for x in g.valu if not x.startswith(('v_cmp', 'v_mov'))]; g.post = [x for x in g.post if x.endswith(':')]
            if OPT.get('b_nowait'): g.pre = [x for x in g.pre if not x.startswith('s_waitcnt')]
    if final:
        for g in G:
            if g.m in qk:
                g.m = 's_nop 0'
    return G

def gapops(G):
    return [[x for x in g.ops() if x is not None] for g in G]

def slow_path(a, p, hf, final=False):
    a.label(f'L_slowfn{hf}_{p}_{int(final)}')
    a('s_nop 15')
    a(f'v_mov_b32 {vr(ST + 8)}, {vr(LOLD(hf))}\nv_mov_b32 {vr(ST + 9)}, {vr(LOLD(hf))}\ns_nop 1\nv_permlane16_swap_b32 {vr(ST + 8)}, {vr(ST + 9)}\nv_add_f32 {vr(ST + 8)}, {vr(ST + 8)}, {vr(ST + 9)}')
    for c in (2 * hf, 2 * hf + 1):
        cur = Sreg(p, c); nxt = Sreg(1 - p, c)
        d = ST + 4 + (c & 1); al = ST + 6 + (c & 1)
        rowmax(a, cur, d, ST + 1)
        a(f'v_max_f32 {vr(d)}, 0, {vr(d)}')
        a(f'v_mov_b32 {vr(ST)}, {vr(ST + 8)}')
        a(f'v_mov_b32 {vr(ST + 1)}, {vr(ST + 8)}')
        a('s_nop 1')
        a(f'v_permlane32_swap_b32 {vr(ST)}, {vr(ST + 1)}')
        a(f'v_log_f32 {vr(ST)}, {vr(ST + (c & 1))}')
        a('s_nop 0')
        a(f'v_max_f32 {vr(d)}, {vr(d)}, {vr(ST)}')
        a(f'v_sub_f32 {vr(al)}, 0, {vr(d)}')
        a(f'v_exp_f32 {vr(al)}, {vr(al)}')
        for i in range(8):
            a(f'v_sub_f32 {vr(cur + i)}, {vr(cur + i)}, {vr(d)}')
        if not final:
            for i in range(8):
                a(f'v_sub_f32 {vr(nxt + i)}, {vr(nxt + i)}, {vr(d)}')
        for i in range(4):
            a(f'v_sub_f32 {vr(NM + 4 * c + i)}, {vr(NM + 4 * c + i)}, {vr(d)}')
        for i in range(32):
            a(f'v_accvgpr_read_b32 {vr(ST + 2)}, {ar(Oreg(c, 0) + i)}')
            a(f'v_mul_f32 {vr(ST + 2)}, {vr(ST + 2)}, {vr(al)}')
            a(f'v_accvgpr_write_b32 {ar(Oreg(c, 0) + i)}, {vr(ST + 2)}')
        softmax_c(a, cur, Preg(c, p), ST + 2)
    a(f'v_cmp_gt_u32 vcc, 32, {vr(LANE)}')
    a('s_nop 1')
    a(f'v_cndmask_b32 {vr(ST)}, {vr(ST + 7)}, {vr(ST + 6)}, vcc')
    a(f'v_mul_f32 {vr(LMreg(hf))}, {vr(LOLD(hf))}, {vr(ST)}')
    a('s_nop 1')
    a(sum_mfma(hf, p))
    a('s_nop 7')
    a('s_setpc_b64 s[98:99]')

SLOW = []; PFX = []
def is_vm(x): return x.startswith(('buffer_', 'global_'))
def vm_between(G, g0, g1):
    return sum(1 for g in G[g0:g1] for x in g.mem if is_vm(x))

def trace_ops(G, lane, n=8):
    for sl in range(n):
        G[sl * SL + 0].pre += ['s_memtime s[100:101]'] + lane(sl)
        G[sl * SL + 56].valu += ['v_cmp_eq_u32 vcc, s95, v1']
        G[sl * SL + 60].valu += ['v_mov_b32 v222, s100']
        G[sl * SL + 64].valu += ['v_cndmask_b32 v221, v221, v222, vcc']

def ALIGN(): return OPT.get('align', False)
def first_pass(a, opt):
    G = []
    for st in range(16):
        G += step_gaps(st & 7, f'f{st}', opt, vm='VM'); SLOW.append((st & 1, f'f{st}', False))
    def at(st, g, x): place(G, [x], st * SL + g, st * SL + g)
    hs = OPT.get('hs', [(0, 62), (1, 62), (6, 62), (7, 62), (8, 62), (9, 62), (14, 65), (15, 65)])
    for k in range(8):
        x = f'buffer_store_dwordx4 {ar(HP + 4 * k, 4)}, {vr(CL16)}, {sr(SRD_WG, 4)}, {sr(sHO)} offen offset:{1024 * (k & 1)} sc1'
        if k in (2, 4, 6): x = (f's_add_u32 {sr(sHO)}, {sr(sHO)}, {HST()}', x)
        if not opt.get('nohst'): at(hs[k][0], hs[k][1], x)
    place(G, wp_addr0(), SL + 25, SL + 45, kind='valu')
    dpos = OPT.get('dpos', [(2, 32), (2, 38), (3, 32), (3, 38), (4, 32), (4, 38), (5, 32), (5, 38)])
    for (st, g), x in zip(dpos, wp_dma()): at(st, g, x)
    place(G, wp_addr1(), 7 * SL + 25, 8 * SL + 45, kind='valu')
    r0 = OPT.get('r0', 10)
    assert r0 % 2 == 0 and dpos[-1][0] <= r0 - 5
    rd = wp_reads()
    sc, stv = wp_stores()
    G[9 * SL + 2].pre += sc[:2]; G[9 * SL + 4].pre += sc[2:6]; G[9 * SL + 6].pre += sc[6:]
    spos = OPT.get('spos', [(10, 62), (10, 65), (11, 62), (12, 62), (12, 65), (13, 62), (14, 62), (15, 62)])
    for k in range(4):
        place(G, rd[4 * k:4 * k + 4], (r0 + k) * SL + 25, (r0 + k) * SL + 29)
    for k, (st, g) in enumerate(spos):
        assert st >= r0 + k // 2
        at(st, g, stv[k])
    for j in range(1, 16, 2):
        n = vm_between(G, 0 if j < 4 else (j - 4) * SL + 59, j * SL + SL - 1)
        G[j * SL + SL - 1].pre = [x.replace('VM', str(min(n, 63))) for x in G[j * SL + SL - 1].pre]
    if opt.get('trace'): trace_ops(G, lambda st: [f's_mov_b32 s95, {63 - st}'], 16)
    a.raw('.p2align 3')
    emit_gaps(a, gapops(G), align=ALIGN())

def phase_b(a, opt):
    b_prologue(a, opt)
    stamp(a, opt, 'B0')
    a(f's_mov_b32 {sr(sCNT)}, 5')
    first_pass(a, opt)
    stamp(a, opt, 'B1')
    a.raw('.p2align 6')
    a.label('L_attn')
    G = []
    for sl in range(8):
        G += step_gaps(sl, f's{sl}', opt, vm=16); SLOW.append((sl & 1, f's{sl}', False))
    G[2 * SL + 23].pre += [f's_cmp_eq_u32 {sr(sCNT)}, {sr(sXO)}', f's_cselect_b32 s{SRD_WU + 2}, 4, 0']
    place(G, [f'buffer_atomic_add {vr(ONEV)}, {vr(CL16)}, {sr(SRD_WU, 4)}, 0 offen sc1'], 2 * SL + 25, 2 * SL + 25)
    if opt.get('trace'): trace_ops(G, lambda sl: [f's_lshl_b32 s95, {sr(sCNT)}, 3', f's_add_u32 s95, s95, {7 - sl}'])
    G[-6].pre.append(f's_sub_u32 {sr(sCNT)}, {sr(sCNT)}, 1')
    G[-4].pre.append(f's_cmp_lg_u32 {sr(sCNT)}, 0')
    G[-1].post.append('s_cbranch_scc1 L_attn')
    emit_gaps(a, gapops(G), align=ALIGN())
    a.raw('.p2align 3')
    G = []
    NPF = OPT.get('npfs', 8)
    pf = [x for t in range(NPF) for x in c_dma(t)]
    extra = {4: pf[:8], 5: pf[8:16], 6: pf[16:24], 7: pf[24:]}
    for sl in range(8):
        g = step_gaps(sl, f't{sl}', opt, dma='v' if sl < 2 else False, final=sl == 7, extra=extra.get(sl), vm={1: 12, 3: 0, 5: 63}.get(sl, 0)); SLOW.append((sl & 1, f't{sl}', sl == 7))
        if sl == 0 and OPT.get('npf', 1):
            g[2].pre += ['s_lshr_b32 s3, s2, 3', 's_lshl_b32 s3, s3, 2', f's_add_u32 s3, s3, {sr(sW)}']
            g[4].pre += ['s_lshr_b32 s7, s3, 4', f's_mul_i32 s7, s7, {WFS}', 's_and_b32 s3, s3, 15']
            g[6].pre += ['s_lshl_b32 s3, s3, 13', 's_add_u32 s3, s3, s7', 's_bfe_u32 s7, s2, 0x20001']
            g[8].pre += ['s_lshl_b32 s7, s7, 17', 's_add_u32 s3, s3, s7', f's_add_u32 s58, s3, {WS_WF + 56 * 4096}']
            g[25].valu.append('v_lshlrev_b32 v4, 7, v1')
        if sl == 4 and OPT.get('npf', 1):
            PFX.append(f'buffer_load_dword v5, v4, {sr(SRD_WS, 4)}, s58 offen sc1')
            g[62].mem.append(PFX[-1])
        if sl == 2:
            su = c_setup_scalar()
            for k in range(0, len(su), 2):
                g[2 + k].pre += su[k:k + 2]
            g[25].mem.append(f'buffer_load_dword {vr(POLLV)}, off, {sr(SRD_DBG, 4)}, 0 sc1')
        if sl == 4:
            g[17].valu.append(f'v_cmp_gt_u32 vcc, 0x100, {vr(POLLV)}')
            g[23].post += ['s_cbranch_vccnz L_pollall', 'L_pollall_ok:']
        G += g
    if opt.get('trace'): trace_ops(G, lambda sl: [f's_mov_b32 s95, {7 - sl}'])
    emit_gaps(a, gapops(G), align=ALIGN())
    stamp(a, opt, 'Bend')
    if opt.get('trace'): a('v_mov_b32 v63, v221')

def finalize_pre(a):
    a(f'''
    s_lshl_b32 s3, {sr(sQB)}, 4
    s_lshl_b32 s7, {sr(sW)}, 2
    s_add_u32 s3, s3, s7
    s_mul_i32 s3, s3, {OST()}
    s_lshl_b32 s7, {sr(sH)}, 12
    s_add_u32 {sr(sOK)}, s3, s7
    ''')
    for hf in range(2):
        a(f'v_mov_b32 {vr(ST + hf)}, {vr(LMreg(hf))}')
    a('s_nop 0')
    for hf in range(2):
        a(f'v_permlane16_swap_b32 {vr(LMreg(hf))}, {vr(ST + hf)}')
    for hf in range(2):
        a(f'v_add_f32 {vr(ST + 2 + 2 * hf)}, {vr(LMreg(hf))}, {vr(ST + hf)}')
        a(f'v_add_f32 {vr(ST + 3 + 2 * hf)}, {vr(LMreg(hf))}, {vr(ST + hf)}')
    a('s_nop 0')
    for hf in range(2):
        a(f'v_permlane32_swap_b32 {vr(ST + 2 + 2 * hf)}, {vr(ST + 3 + 2 * hf)}')
    for c in range(4):
        a(f'v_rcp_f32 {vr(RL + 2 * c)}, {vr(ST + 2 + c)}')
        a(f'v_rcp_f32 {vr(RL + 2 * c + 1)}, {vr(ST + 2 + c)}')

NF = 14; NS = 32
BLK = [0, 1, 2, 3, 8, 9, 4, 5, 6, 7]
sB0 = 56; sB1 = 57
BAD = 8; AAD = 20; CA2 = 192; CB2 = 224
def c_stream(kind):
    st, base, k0, nk, ka = (HST(), WS_H, 0, NF, 0) if kind[0] == 'f' else (OST(), WS_O, 0, NS, 56)
    ops = []
    if 'b' in kind:
        ops += [f's_lshl_b32 s3, {sr(sRB)}, 2', f's_add_u32 s3, s3, {sr(sW)}', f's_mul_i32 s3, s3, {2 * st}', 's_bfe_u32 s7, s2, 0x20001', f's_mul_i32 s7, s7, {nk * 1024}',
                's_add_u32 s3, s3, s7', f's_add_u32 {sr(sB0)}, s3, {(base - 1024) & 0xffffffff}', f's_add_u32 {sr(sB1)}, {sr(sB0)}, {st - 1024}']
    if 'a' in kind:
        ops += [f's_lshl_b32 s3, {sr(sCB)}, 1', f's_lshr_b32 s7, {sr(sW)}, 1', 's_add_u32 s3, s3, s7', f's_mul_i32 s3, s3, {WFS}', 's_bfe_u32 s7, s2, 0x20001', f's_mul_i32 s7, s7, {nk * 4096}',
                's_add_u32 s3, s3, s7', f's_and_b32 s7, {sr(sW)}, 1', 's_lshl_b32 s7, s7, 11', 's_add_u32 s3, s3, s7', f's_add_u32 {sr(sAO)}, s3, {WS_WF + ka * 4096 - 2048 - 4096}']
    return ops
def c_setup_scalar(): return c_stream('fab')
def c_dma(t, what='ab'):
    ops = []
    pre = (f's_add_u32 m0, {sr(sW4K)}, {BLK[t % 10] * STAGE}',)
    if 'b' in what:
        ops += [pre + (f's_add_u32 {sr(sB0)}, {sr(sB0)}, 1024', f'buffer_load_dwordx4 {vr(CL16)}, {sr(SRD_WS, 4)}, {sr(sB0)} offen sc1 lds'),
                (f's_add_u32 {sr(sB1)}, {sr(sB1)}, 1024', f'buffer_load_dwordx4 {vr(CL16)}, {sr(SRD_WS, 4)}, {sr(sB1)} offen offset:1024 sc1 lds')]
        pre = ()
    if 'a' in what:
        ops += [pre + (f's_add_u32 {sr(sAO)}, {sr(sAO)}, 4096', f'buffer_load_dwordx4 {vr(CL16)}, {sr(SRD_WS, 4)}, {sr(sAO)} offen offset:2048 sc1 lds'),
                f'buffer_load_dwordx4 {vr(CL16)}, {sr(SRD_WS, 4)}, {sr(sAO)} offen offset:3072 sc1 lds']
    return ops
def c_reads(t):
    b = BLK[t % 10]; off = (b & 3) * STAGE; st = b >> 2
    out = []
    for k in range(4):
        out.append(f'ds_read_b128 {ar(CA2 + (t & 1) * 16 + 4 * k, 4)}, {vr(AAD + st)} offset:{off + (k >> 1) * 4096 + (k & 1) * 1024}')
        out.append(f'ds_read_b128 {ar(CB2 + (t & 1) * 16 + 4 * k, 4)}, {vr(BAD + 4 * st + k)} offset:{off}')
    return out

def spin(a, name, sleep, body):
    a.label(name)
    a('s_mov_b32 s63, 0x20000')
    a.label(name + '_l')
    a(f's_sub_u32 s63, s63, 1\ns_cbranch_scc1 {name}_ok')
    if sleep: a(f's_sleep {sleep}')
    body(name + '_l')
    a(f's_branch {name}_ok')

def hooks(a):
    def flag(srd_):
        def body(l):
            a(f'buffer_load_dword v5, v4, {sr(srd_, 4)}, 0 offen sc1\ns_waitcnt vmcnt(0)\nv_cmp_ne_u32 vcc, v5, v6\ns_cbranch_vccnz {l}')
        return body
    def cnt(l):
        a(f'buffer_load_dword {vr(POLLV)}, off, {sr(SRD_DBG, 4)}, 0 sc1\ns_waitcnt vmcnt(0)\nv_cmp_gt_u32 vcc, 0x100, {vr(POLLV)}\ns_cbranch_vccnz {l}')
    spin(a, 'L_pollall', 8, cnt)
    spin(a, 'L_po', OPT.get('posleep', 8), flag(SRD_WG))
    spin(a, 'L_pf', 8, flag(SRD_WD))
    spin(a, 'L_ps', OPT.get('pssleep', 12), flag(SRD_WD))

class VM:
    def __init__(self, init): self.ops = list(init); self.done = 0
    def issue(self, tag): self.ops.append(tag); assert len(self.ops) - self.done <= 63, (tag, len(self.ops) - self.done)
    def wait(self, *tags):
        last = max(i for i, t in enumerate(self.ops) if t in tags)
        n = len(self.ops) - 1 - last
        self.done = max(self.done, last + 1)
        return f's_waitcnt vmcnt({n})'

def x_pack(acc, j, tb=160, pb=176):
    rd = [f'v_accvgpr_read_b32 {vr(tb + 4 * nb + i)}, {ar(acc + (nb * 4 + j) * 4 + i)}' for nb in range(4) for i in range(4)]
    cv = [f'v_cvt_pk_bf16_f32 {vr(pb + k)}, {vr(tb + 2 * k)}, {vr(tb + 2 * k + 1)}' for k in range(8)]
    return rd, cv
def x_dest(j, base, r):
    return ['s_bfe_u32 s7, s2, 0x20001', f's_add_u32 s7, s7, {j}', 's_and_b32 s7, s7, 3', 's_lshl_b32 s3, s54, 2', 's_add_u32 s3, s3, s7', 's_mul_i32 s3, s3, 12288',
            f's_add_u32 {r}, s3, {base + (j - 1) * 2048}']
def x_loads(part, reg):
    return [f'buffer_load_dwordx4 {vr(reg + 4 * k, 4)}, {vr(CL16)}, {sr(SRD_WS, 4)}, {XIN[(6 * part + k) >> 2]} offen offset:{1024 * ((6 * part + k) & 3)} sc1' for k in range(6)]
def x_check(a, reg, retry):
    a(f'''
    v_max3_u32 v14, {vr(reg)}, {vr(reg + 4)}, {vr(reg + 8)}
    v_max3_u32 v14, v14, {vr(reg + 12)}, {vr(reg + 16)}
    v_max_u32 v14, v14, {vr(reg + 20)}
    v_cmp_eq_u32 vcc, -1, v14
    s_cbranch_vccnz {retry}
    ''')
def x_add(a, dst, reg):
    for r in range(3):
        for k in range(8):
            a(f'v_lshlrev_b32 {vr(96 + 2 * k)}, 16, {vr(reg + 8 * r + k)}')
            a(f'v_and_b32 {vr(97 + 2 * k)}, 0xffff0000, {vr(reg + 8 * r + k)}')
        for k in range(0, 16, 2):
            a(f'v_pk_add_f32 {vr(dst + k, 2)}, {vr(dst + k, 2)}, {vr(96 + k, 2)}')
def x_accum(dst, src):
    ops = []
    for k in range(8):
        ops += [f'v_lshlrev_b32 v200, 16, {vr(src + k)}', f'v_and_b32 v201, 0xffff0000, {vr(src + k)}',
                f'v_add_f32 {vr(dst + 2 * k)}, {vr(dst + 2 * k)}, v200', f'v_add_f32 {vr(dst + 2 * k + 1)}, {vr(dst + 2 * k + 1)}, v201']
    return ops

def phase_c(a, opt):
    T = NF + NS
    COUT = 23; CXR = 24; GV = 240; XR = 32; SV = 224
    finalize_pre(a)
    NPRE = OPT.get('npre', 4)
    for c in range(NPRE):
        for i in range(32): a(f'v_accvgpr_read_b32 {vr(160 + i)}, {ar(Oreg(c, 0) + i)}')
        for f in range(4):
            for i in range(0, 8, 2): a(f'v_pk_mul_f32 {vr(160 + 8 * f + i, 2)}, {vr(160 + 8 * f + i, 2)}, {vr(RL + 2 * c, 2)}')
            for i in range(4): a(f'v_cvt_pk_bf16_f32 {vr(192 + 4 * f + i)}, {vr(160 + 8 * f + 2 * i)}, {vr(161 + 8 * f + 2 * i)}')
            a(f'buffer_store_dwordx4 {vr(192 + 4 * f, 4)}, {vr(CL16)}, {sr(SRD_WS, 4)}, {sr(sOK)} offen offset:{1024 * f} sc1')
        a(f's_add_u32 {sr(sOK)}, {sr(sOK)}, {OST()}')
    a(f'''
    s_lshr_b32 s7, {sr(sW)}, 1
    s_lshl_b32 s58, s7, 13               ; mh*8192
    s_and_b32 s7, {sr(sW)}, 1
    s_lshl_b32 s7, s7, 13
    s_add_u32 s7, s7, 2048
    v_add_u32 {vr(AAD)}, s7, {vr(CL16)}
    v_add_u32 {vr(AAD + 1)}, 65536, {vr(AAD)}
    v_add_u32 {vr(AAD + 2)}, 131072, {vr(AAD)}
    ''')
    for j in range(4):
        a(f'''
        s_bfe_u32 s3, s2, 0x20001
        s_add_u32 s3, s3, {j}
        s_and_b32 s7, s3, 1
        s_and_b32 s3, s3, 2
        s_lshl_b32 s3, s3, 11
        s_lshl_b32 s7, s7, 10
        s_add_u32 s3, s3, s7
        s_add_u32 s3, s3, s58
        v_add_u32 {vr(BAD + j)}, s3, {vr(CL16)}
        v_add_u32 {vr(BAD + 4 + j)}, 65536, {vr(BAD + j)}
        v_add_u32 {vr(BAD + 8 + j)}, 131072, {vr(BAD + j)}
        ''')
    vm = VM([0] * 4 + [1] * 4 + ['pf'] * len(PFX[-1:]) + [t for t in range(2, OPT.get('npfs', 8)) for _ in range(4)] + ['o'] * (4 * NPRE))
    a(vm.wait(2))
    a('s_barrier')
    for x in c_reads(0): a(x)
    a(f'''
    s_mov_b32 s{SRD_X}, s96
    s_mov_b32 s{SRD_X + 1}, s97
    s_mov_b32 s{SRD_X + 2}, 2097152
    s_mov_b32 s{SRD_X + 3}, 0x20000
    v_lshlrev_b32 v5, 5, v3
    v_lshl_add_u32 {vr(COUT)}, v2, 10, v5
    s_lshl_b32 s3, {sr(sRB)}, 17
    s_lshl_b32 s7, s58, 3
    s_add_u32 s3, s3, s7
    s_bfe_u32 s7, s2, 0x20001
    s_lshl_b32 s7, s7, 14
    s_add_u32 s3, s3, s7
    s_lshl_b32 s7, {sr(sCB)}, 8
    s_add_u32 s3, s3, s7
    s_and_b32 s7, {sr(sW)}, 1
    s_lshl_b32 s7, s7, 7
    s_add_u32 {sr(sOV)}, s3, s7
    s_add_u32 s{SRD_WU}, s{SRD_WS}, s94
    s_addc_u32 s{SRD_WU + 1}, s{SRD_WS + 1}, 0
    s_mov_b32 s{SRD_WU + 2}, 4
    s_lshl_b32 s3, {sr(sRB)}, 10
    s_lshr_b32 s7, s58, 4
    s_add_u32 s3, s3, s7                 ; flag lines of row block 2*RB + mh
    s_bfe_u32 s7, s2, 0x20001
    s_lshl_b32 s7, s7, 7
    s_add_u32 s3, s3, s7
    s_add_u32 s3, s3, {WS_FLAG}
    s_add_u32 s{SRD_WG}, s{SRD_WS}, s3
    s_addc_u32 s{SRD_WG + 1}, s{SRD_WS + 1}, 0
    s_mov_b32 s{SRD_WG + 2}, 32
    s_lshl_b32 s3, s54, 8
    s_add_u32 s3, s3, {WS_FF}
    s_add_u32 s{SRD_WD}, s{SRD_WS}, s3
    s_addc_u32 s{SRD_WD + 1}, s{SRD_WS + 1}, 0
    s_mov_b32 s{SRD_WD + 2}, 16
    s_bfe_u32 s7, s2, 0x20001
    s_lshl_b32 s7, s7, 2
    s_add_u32 s{SRD_WO}, s{SRD_WD}, s7
    s_addc_u32 s{SRD_WO + 1}, s{SRD_WD + 1}, 0
    s_mov_b32 s{SRD_WO + 2}, 4
    v_lshlrev_b32 v4, 2, v1
    v_cmp_gt_u32 vcc, 8, v1
    v_mov_b32 v0, 1
    s_nop 0
    v_cndmask_b32 v6, 0, 1, vcc
    s_waitcnt lgkmcnt(0)
    '''.replace('v_mov_b32 v0, 1', f'v_mov_b32 {vr(ONEV)}, 1'))
    a.raw('.p2align 3')
    NFS = OPT.get('nfs', 4)
    PT = OPT.get('pt', 10)
    flag_t = OPT.get('flag_t', 0)
    U0 = OPT.get('u0', 20)
    cont = OPT.get('cont', 1) and PT <= 10
    if cont: OPT.setdefault('fxlate', 1); OPT.setdefault('fflag', 6 * OPT.get('fsp', 1) + 6)
    for t in range(T):
        acc = ACF if t < NF else ACS_
        first = t in (0, NF)
        u = t - NF
        G = []
        for nb, j in ([(nb, j) for nb in range(4) for j in range(4)] if t < T - 1 else [(nb, j) for j in (1, 2, 3, 0) for nb in range(4)]):
            if True:
                d = ar(acc + (nb * 4 + j) * 4, 4)
                G.append(Gap(mf(d, ar(CA2 + (t & 1) * 16 + 4 * nb, 4), ar(CB2 + (t & 1) * 16 + 4 * j, 4), '0' if first else d)))
        def vmem(g, x, tag):
            place(G, [x], g, None, cap=9); vm.issue(tag)
        if t == PT:
            if PT == NF:
                a(f'buffer_load_dword v5, v4, {sr(SRD_WG, 4)}, 0 offen sc1'); vm.issue('fl')
                for j in range(1, 4):
                    rd, cv = x_pack(ACF, j, 160, 176 + 8 * (j - 1))
                    for x in (['s_nop 4'] if j == 1 else []) + rd + cv: a(x)
            for x in c_stream('sb'): a(x)
            a(vm.wait('fl'))
            a('v_cmp_ne_u32 vcc, v5, v6\ns_cbranch_vccnz L_po\nL_po_ok:')
            stamp(a, opt, 'poll1')
            for tt in range(NF, PT + 8):
                emit_plain(a, c_dma(tt, 'b'))
                for k in range(2): vm.issue(tt)
            a('v_cmp_gt_u32 vcc, 4, v1\ns_nop 1\nv_cndmask_b32 v6, 0, 1, vcc')
            a.raw('.p2align 3')
        if t == NF and cont:
            stamp(a, opt, 's0')
        if t == NF and not cont:
            stamp(a, opt, 'fend')
            fxl = OPT.get('fxlate', 0)
            for j in range(1, 4) if not fxl else []:
                if PT != NF:
                    rd, cv = x_pack(ACF, j, 160, 176 + 8 * (j - 1))
                    for x in (['s_nop 6'] if j == 1 else []) + rd + cv: a(x)
                for x in x_dest(j, WS_XF, 's58'): a(x)
                for k in range(2):
                    a(f'buffer_store_dwordx4 {vr(176 + 8 * (j - 1) + 4 * k, 4)}, {vr(CL16)}, {sr(SRD_WS, 4)}, s58 offen offset:{1024 * k} sc1'); vm.issue('fx')
            a(vm.wait(NF, NF + 1, NF + 2))
            a('s_barrier')
            for x in c_reads(NF): a(x)
            a('s_waitcnt lgkmcnt(0)')
            stamp(a, opt, 's0')
            a.raw('.p2align 3')
        if t + 1 < T and (t + 1 != NF or cont):
            for k, x in zip([0, 1, 3, 4, 5, 7, 8, 9], c_reads(t + 1)): G[k].mem.append(x)
        stores = []
        nf = OPT.get('nf', 4)
        if t < (16 - 4 * NPRE) // nf:
            c = (t * nf + 4 * NPRE) >> 2; f0 = (t * nf) & 3
            for i in range(8 * nf):
                G[i // nf].valu.append(f'v_accvgpr_read_b32 {vr(160 + i)}, {ar(Oreg(c, 2 * f0) + i)}')
            for i in range(0, 8 * nf, 2):
                G[8].valu.append(f'v_pk_mul_f32 {vr(160 + i, 2)}, {vr(160 + i, 2)}, {vr(RL + 2 * c, 2)}')
            G[8].post.append('s_nop 1')
            for f in range(nf):
                for i in range(4):
                    G[9 + f].valu.append(f'v_cvt_pk_bf16_f32 {vr(192 + 4 * f + i)}, {vr(160 + 8 * f + 2 * i)}, {vr(161 + 8 * f + 2 * i)}')
                stores.append((10 + f if nf == 4 else 11 + 4 * f, f'buffer_store_dwordx4 {vr(192 + 4 * f, 4)}, {vr(CL16)}, {sr(SRD_WS, 4)}, {sr(sOK)} offen offset:{1024 * (f0 + f)} sc1', 'o'))
            if f0 + nf == 4: G[15].post.append(f's_add_u32 {sr(sOK)}, {sr(sOK)}, {OST()}')
        todo = []
        ds = {int(k): v for k, v in OPT.get('dsched', {}).items()}
        d = []
        for tn in ds.get(t, [t + 8] if t + 8 < T else []):
            dd = c_dma(tn, 'a' if NF <= tn and t < PT else 'ab')
            if tn == NF:
                dd[0] = tuple(c_stream('sa')) + dd[0]
            d += [(x, tn) for x in dd]
        dp = [2, 6, 10, 14] if len(d) <= 4 else [k * 16 // len(d) for k in range(len(d))]
        if t in ds and t < 8: dp = [0, 2, 4, 6, 8, 9, 10, 12][:len(d)]
        todo += [(g, x, tn) for g, (x, tn) in zip(dp, d)]
        if t == PT - OPT.get('pback', 2) and PT != NF:
            stores += [(0, f'buffer_load_dword v5, v4, {sr(SRD_WG, 4)}, 0 offen sc1', 'fl')]
        fx0 = OPT.get('fxlate', 0)
        fsp = OPT.get('fsp', 1)
        if fx0 and fx0 <= u < fx0 + 6 * fsp and (u - fx0) % (2 * fsp) == 0:
            j = (u - fx0) // (2 * fsp) + 1
            rd, cv = x_pack(ACF, j)
            for k, x in enumerate(rd): G[k // 2].valu.append(x)
            for k, x in enumerate(cv): G[8 + k // 2].valu.append(x)
            G[11].pre += x_dest(j, WS_XF, 's58')
            stores += [(15, f'buffer_store_dwordx4 {vr(176, 4)}, {vr(CL16)}, {sr(SRD_WS, 4)}, s58 offen offset:0 sc1', 'fx')]
        if fx0 and fx0 <= u < fx0 + 6 * fsp and (u - fx0) % (2 * fsp) == fsp:
            stores += [(15, f'buffer_store_dwordx4 {vr(180, 4)}, {vr(CL16)}, {sr(SRD_WS, 4)}, s58 offen offset:1024 sc1', 'fx')]
        if u == U0:
            stores += [(15, f'buffer_load_dword v5, v4, {sr(SRD_WD, 4)}, 0 offen sc1', 'ff')]
        if u == 26:
            stores += [(4 + 6 * k, f'buffer_load_dwordx4 {vr(CXR + 4 * k, 4)}, {vr(COUT)}, {sr(SRD_X, 4)}, {sr(sOV)} offen offset:{16 * k}', 'x') for k in range(2)]
        if u == U0 + 3 + (U0 < 23):
            stores += [(2 * k + (U0 < 21), x, 'fx2') for k, x in enumerate(x_loads(0, XR))]
        for g, x, tag in sorted(todo + stores, key=lambda z: z[0]):
            vmem(g, x, tag)
        if u == 30:
            for j in range(1, 4): G[4 * j].pre += x_dest(j, WS_XF + 6144, f's{55 + j}')
        if t == flag_t:
            G[15].post += [vm.wait('o'), f'buffer_store_dword {vr(ONEV)}, {vr(CL16)}, {sr(SRD_WU, 4)}, 0 offen sc1'] + stamp_op('Oflag'); vm.issue('flag')
        if u == OPT.get('fflag', 8):
            G[15].post += [vm.wait('fx'), f'buffer_store_dword {vr(ONEV)}, {vr(CL16)}, {sr(SRD_WO, 4)}, 0 offen sc1']; vm.issue('flag2')
        if u == 28:
            G[4].pre += [f's_add_u32 s{SRD_WO}, s{SRD_WO}, 128', f's_addc_u32 s{SRD_WO + 1}, s{SRD_WO + 1}, 0']
        if u == 22:
            for k in range(16): G[k].valu.append(f'v_accvgpr_read_b32 {vr(GV + k)}, {ar(ACF + (k >> 2) * 16 + (k & 3))}')
        if u == U0 + 2 + (U0 < 23):
            G[15].post += [vm.wait('ff'), 'v_cmp_ne_u32 vcc, v5, v6', 's_cbranch_vccnz L_pf', 'L_pf_ok:']
        if u == 27:
            G[4].pre += [f's_add_u32 s{SRD_WD}, s{SRD_WD}, 128', f's_addc_u32 s{SRD_WD + 1}, s{SRD_WD + 1}, 0']
        if u == 28:
            G[15].post.append(vm.wait('fx2'))
        if 29 <= u <= 31:
            for k, x in enumerate(x_accum(GV, XR + 8 * (u - 29))): G[k // 2].valu.append(x)
        if t + 1 < T and (t + 1 != NF or cont):
            if (t + 1) % 2 == 0:
                need = [x for x in (t + 2, t + 3) if x < T and (cont or not (t + 1 < NF <= x))]
                assert all(x in vm.ops for x in need), (t, need)
                w = vm.wait(*need) + ' lgkmcnt(0)' if need else 's_waitcnt lgkmcnt(0)'
                G[15].post += [w, 's_barrier']
            else:
                G[15].post.append('s_waitcnt lgkmcnt(0)')
        if opt.get('ctrace'):
            G[0].pre.append(f's_memtime s[100:101]')
            G[14].valu.append(f'v_writelane_b32 v222, s100, {63 - t}')
        emit_gaps(a, gapops(G), align=False)
    stamp(a, opt, 'send')
    for j in range(1, 4):
        rd, cv = x_pack(ACS_, j, 160, 176 + 8 * (j - 1))
        for x in rd + cv: a(x)
        for k in range(2):
            a(f'buffer_store_dwordx4 {vr(176 + 8 * (j - 1) + 4 * k, 4)}, {vr(CL16)}, {sr(SRD_WS, 4)}, s{55 + j} offen offset:{1024 * k} sc1')
    stamp(a, opt, 'xst')
    for k in range(16):
        a(f'v_accvgpr_read_b32 {vr(SV + k)}, {ar(ACS_ + (k >> 2) * 16 + (k & 3))}')
    a('s_waitcnt vmcnt(6)')
    for k in range(8):
        a(f'v_lshlrev_b32 {vr(64 + 2 * k)}, 16, {vr(CXR + k)}')
        a(f'v_and_b32 {vr(65 + 2 * k)}, 0xffff0000, {vr(CXR + k)}')
    for k in range(16): a(f'v_mul_f32 {vr(144 + k)}, {f2u(-math.log2(math.e))}, {vr(GV + k)}')
    for k in range(16): a(f'v_exp_f32 {vr(144 + k)}, {vr(144 + k)}')
    for k in range(16): a(f'v_add_f32 {vr(112 + k)}, 1.0, {vr(144 + k)}')
    for k in range(16): a(f'v_rcp_f32 {vr(112 + k)}, {vr(112 + k)}')
    for k in range(0, 16, 2): a(f'v_pk_mul_f32 {vr(GV + k, 2)}, {vr(GV + k, 2)}, {vr(112 + k, 2)}')
    a(f'''
    s_waitcnt vmcnt(0)
    buffer_store_dword {vr(ONEV)}, {vr(CL16)}, {sr(SRD_WO, 4)}, 0 offen sc1
    {''.join(stamp_op('xack'))}
    s_branch L_ps
    L_ps_ok:
    ''')
    stamp(a, opt, 'xf')
    XS = 32
    for x in x_loads(1, XS): a(x)
    for r in range(3):
        a(f's_waitcnt vmcnt({4 - 2 * r})')
        if r == 2: stamp(a, opt, 'xld')
        for k in range(8):
            a(f'v_lshlrev_b32 {vr(96 + 2 * k)}, 16, {vr(XS + 8 * r + k)}')
            a(f'v_and_b32 {vr(97 + 2 * k)}, 0xffff0000, {vr(XS + 8 * r + k)}')
        for k in range(0, 16, 2):
            a(f'v_pk_add_f32 {vr(SV + k, 2)}, {vr(SV + k, 2)}, {vr(96 + k, 2)}')
    for k in range(0, 16, 2):
        a(f'v_pk_fma_f32 {vr(SV + k, 2)}, {vr(SV + k, 2)}, {vr(GV + k, 2)}, {vr(64 + k, 2)}')
    for k in range(8):
        a(f'v_cvt_pk_bf16_f32 {vr(CXR + k)}, {vr(SV + 2 * k)}, {vr(SV + 1 + 2 * k)}')
    for k in range(2):
        a(f'buffer_store_dwordx4 {vr(CXR + 4 * k, 4)}, {vr(COUT)}, {sr(SRD_OUT, 4)}, {sr(sOV)} offen offset:{16 * k}{OPT.get("outsc", "")}')

OPT = {}
def add_pads(a, period, nchain):
    out = []; addr = 0; nxt = None; pads = []
    lines = a.lines
    for k, l in enumerate(lines):
        t = l.strip()
        if t.startswith('.p2align'):
            al = 1 << int(t.split()[1]); addr = (addr + al - 1) // al * al
        if t == 'L_warmdone:': addr = 0; nxt = period - OPT.get('padoff', 0)
        if t == 'L_end:': nxt = None
        if nxt is not None and addr >= nxt and t.startswith(('v_', 'ds_read', 's_add', 's_mov', 's_lshl', 'buffer_load')) and not lines[k - 1].strip().startswith(('.')):
            out.append(f'L_pad{len(pads)}:'); out.append(f'    PAD{len(pads)}'); pads.append(addr)
            addr += 4; nxt += period
            if ALIGN():
                out.append('    s_nop 0'); addr += 4
        out.append(l); addr += isize(l)
    n = len(pads)
    for k, l in enumerate(out):
        if l.startswith('    PAD'):
            i = int(l[7:])
            out[k] = f'    s_cbranch_execz ' + (f'L_pad{i + nchain}' if i + nchain < n else 'L_warmret')
    a.lines = out
    return n

def gen(opt):
    OPT.clear(); OPT.update(opt)
    SLOW.clear(); STAMPS.clear(); PFX.clear()
    a = A()
    setup(a, opt)
    phase_a(a, opt)
    phase_b(a, opt)
    phase_c(a, opt)
    if opt.get('stamp'):
        a('s_waitcnt vmcnt(0)')
        stamp(a, opt, 'end')
        a(f'''
        s_waitcnt lgkmcnt(0)
        s_lshl_b32 s3, s2, 2
        s_add_u32 s3, s3, {sr(sW)}
        s_lshl_b32 s3, s3, 6
        s_add_u32 s3, s3, {WS_STAMP}
        v_mov_b32 v1, 0
        v_mov_b32 v4, v0
        ''')
        if opt.get('ctrace'): a('v_mov_b32 v63, v222\n; v_cndmask_b32 v221')
        if opt.get('trace') or opt.get('ctrace'):
            a(f's_lshl_b32 s7, s2, 2\ns_add_u32 s7, s7, {sr(sW)}\ns_lshl_b32 s7, s7, 8\ns_add_u32 s7, s7, {WS_STAMP + (1 << 20)}\nv_lshrrev_b32 v20, 2, v7')
            a(f'buffer_store_dword v63, v20, {sr(SRD_WS, 4)}, s7 offen')
        if opt.get('dbgstamp'):
            a(f's_cmp_lg_u32 {sr(sW)}, 0\ns_cbranch_scc1 L_nodbg')
            a('v_not_b32 v20, v0\ns_mov_b64 exec, 1')
            a(f'v_mov_b32 v21, s{sST + 2 * (len(STAMPS) - 1)}')
            a(f'buffer_atomic_umax v20, off, {sr(SRD_DBG, 4)}, 0 offset:56 sc1')
            a(f'buffer_atomic_umax v21, off, {sr(SRD_DBG, 4)}, 0 offset:60 sc1')
            a(f's_cmp_lg_u32 s2, {opt["dbgstamp"]}\ns_cbranch_scc1 L_nodbg')
            for i in range(len(STAMPS)):
                a(f'v_sub_u32 v{22 + i}, s{sST + 2 * i}, v0')
                a(f'buffer_store_dword v{22 + i}, off, {sr(SRD_DBG, 4)}, 0 offset:{4 + 4 * i} sc1')
            a('L_nodbg:\ns_mov_b64 exec, -1')
        for i in range(12): a(f'v_mov_b32 v{5 + i}, s{sST + 2 * i}')
        for i in range(4):
            a(f'buffer_store_dwordx4 v[{4 + 4 * i}:{7 + 4 * i}], v1, {sr(SRD_WS, 4)}, s3 offen offset:{16 * i}')
    a.label('L_end')
    a('s_endpgm')
    hooks(a)
    for p, tag, final in SLOW:
        for hf in range(2):
            a.label(f'L_slow{hf}_{tag}')
            a(f's_call_b64 s[98:99], L_slowfn{hf}_{p}_{int(final)}')
            a(f's_branch L_back{hf}_{tag}')
    for p, final in sorted({(p, f) for p, _, f in SLOW}):
        for hf in range(2):
            slow_path(a, p, hf, final)
    if OPT.get('pad', 4096):
        npad = add_pads(a, OPT.get('pad', 4096), OPT.get('nchain', 4))
        print('pads', npad, file=sys.stderr)
    a.label('L_codeend')
    a('s_endpgm')
    return kernel_file(f'; ost {OST()} hst {HST()}\n; stamps entry ' + ' '.join(STAMPS) + '\n' + a.text(), 'grid=(256,1,1) block=(256,1,1) lds=163840')

if __name__ == '__main__':
    opt = json.loads(sys.argv[2]) if len(sys.argv) > 2 else {}
    open(sys.argv[1], 'w').write(gen(opt))
```

```python
import sys, json, math, struct
sys.path.insert(0, 'gen')
from asmlib import *

def f2u(x): return '0x%08x' % struct.unpack('<I', struct.pack('<f', x))[0]

WS_O = 0; WS_H = 17 << 20; WS_FLAG = 25 << 20; WS_WF = (25 << 20) + 65536; WS_STAMP = 32 << 20; WS_XF = 34 << 20; WS_XS = 41 << 20; WS_FF = 47 << 20
WFS = 184 * 4096
sH = 4; sQB = 5; sW = 6
SRD_K = 8; SRD_V = 12; SRD_WS = 16; SRD_X = 20; SRD_WQ = 24; SRD_WG = 28; SRD_WU = 32; SRD_WO = 36; SRD_WD = 40; SRD_OUT = 44; SRD_DBG = 48
sOK = 52; sOV = 53; sM = 54; sCNT = 55; sT0 = 56; sT1 = 57; sT2 = 58; sT3 = 59
sXO = 60; sQO = 61; sGO = 62; sWB = 63
sW4K = 88; sRB = 89; sCB = 90; sBO = 56; sHO = 91; sWQB = 92; sWGB = 93
sDL = 95
sST = 64
KA = 8; VAA = 16; DK0 = 28; DK1 = 29; DV0 = 30; DV1 = 31; VAB = 244
Q = 32; S = 96; NM = 160; PA = 176; PB = 192; TMP = 200; ST = 204; THR = 220; LANE = 1; LM = 224; RL = 240
O = 0; KF = 128; VF = 160; SIDX = 216; WPR = 224
STAGE = 16384
AQ = 8; AG = 12; AC = 16; AX = 20; DQ = 22; DG = 23; DX = 24
XF = 32; ACQ = 96; SX = 224; CSD = 228; STT = 232; SXX = 240; IDX = 27
AGU = 0; AR = 128; AK = 160
XBUF = 0; WBUF = 65536; CSBUF = 81920
CB = 32
def CAop(sl, nb):
    return ar(192 + sl * 16 + 4 * nb, 4) if sl < 4 else vr(96 + 32 * (sl - 4) + 4 * nb, 4) if sl < 6 else vr(208 + 4 * nb, 4) if sl == 6 else ar(4 * nb, 4)
def CBop(sl, j):
    return vr(32 + sl * 16 + 4 * j, 4) if sl < 4 else vr(112 + 32 * (sl - 4) + 4 * j, 4) if sl < 6 else vr(224 + 4 * j, 4) if sl == 6 else ar(16 + 4 * j, 4)
ACF = 128; ACS_ = 64
CL16 = 7
CRW = 8; CRR = 11; COUT = 12; CXR = 16
sAO = 61; POLLV = 6; ONEV = 223

def OST(): return OPT.get('ost', 136192)
def HST(): return OPT.get('hst', 58368)
XIN = ['s92', 's93', 's62']
def FB(r, t):
    if OPT.get('fbspread', 1): return f's_lshr_b32 {t}, {sr(sH)}, 3\ns_sub_u32 {r}, {sr(sH)}, {t}'
    return f's_mov_b32 {r}, {sr(sH)}'
def FBOK(t):
    if OPT.get('fbspread', 1): return f's_and_b32 {t}, {sr(sH)}, 7\ns_cmp_lg_u32 {t}, 7'
    return f's_cmp_lt_u32 {sr(sH)}, 28'
def TW(r):
    return f's_lshl_b32 {r}, {sr(sRB)}, 2\ns_add_u32 {r}, {r}, {sr(sCB)}\ns_lshl_b32 {r}, {r}, 2\ns_add_u32 {r}, {r}, {sr(sW)}'
def mf(d, a_, b_, c):
    return f'v_mfma_f32_16x16x32_bf16 {d}, {a_}, {b_}, {c}'

class Gap:
    def __init__(self, m):
        self.m = m; self.pre = []; self.mem = []; self.valu = []; self.post = []
    def ops(self):
        return [self.m] + self.pre + self.mem + self.valu + self.post
    def units(self):
        u = 0
        for x in self.mem: u += 2 if x.startswith('buffer') else 0 if x.startswith('s_') else 1
        for x in self.valu: u += 2 if x.startswith(('v_exp', 'v_rcp', 'v_log', 'v_rsq', 'v_permlane')) else 1
        return u

def place(G, ops, lo, hi=None, kind='mem', cap=2):
    g = lo
    for x in ops:
        pre = []
        if isinstance(x, tuple):
            pre, x = list(x[:-1]), x[-1]
        need = 2 if x.startswith(('buffer', 'v_exp', 'v_rcp', 'v_rsq', 'v_log', 'v_permlane')) else 1
        need = min(need, cap)
        while G[g].units() + need > cap:
            g += 1
        if hi is not None:
            assert g <= hi, (x, g, hi)
        if pre:
            if g > 0 and not any(y.startswith('buffer') for y in G[g - 1].mem):
                G[g - 1].pre += pre
            else:
                if ' m0,' in pre[-1]:
                    pre.append('s_nop 0')
                G[g].pre += pre
        getattr(G[g], kind).append(x)
    return g

STAMPS = []
def place_some(G, ops, lo, hi):
    g = lo
    for k, x in enumerate(ops):
        need = 2 if x.startswith(('v_exp', 'v_rcp', 'v_rsq', 'v_log', 'v_permlane')) else 1
        while g <= hi and G[g].units() + need > 2: g += 1
        if g > hi: return list(ops[k:])
        G[g].valu.append(x)
    return []

def stamp_op(name):
    if not OPT.get('stamp') or (OPT.get('only') and name not in OPT['only']):
        return []
    k = len(STAMPS); STAMPS.append(name)
    assert k < 12
    return [f'{"s_memtime" if OPT.get("cyc") else "s_memrealtime"} s[{sST + 2 * k}:{sST + 2 * k + 1}]']
def stamp(a, opt, name):
    for x in stamp_op(name): a(x)

def srd(a, base, lo, hi, nrec, add=None, sub=None):
    if add is not None:
        a(f's_add_u32 s{base}, s{lo}, {add}')
        a(f's_addc_u32 s{base + 1}, s{hi}, 0')
    else:
        a(f's_mov_b32 s{base}, s{lo}')
        a(f's_mov_b32 s{base + 1}, s{hi}')
    if sub is not None:
        a(f's_sub_u32 s{base}, s{base}, {sub}')
        a(f's_subb_u32 s{base + 1}, s{base + 1}, 0')
    a(f's_mov_b32 s{base + 2}, {nrec}')
    a(f's_mov_b32 s{base + 3}, 0x20000')

def HOP(k):
    if not OPT.get('hop'): return ''
    if k == 0:
        return ('s_mov_b64 exec, 0\ns_nop 1\n' + ''.join(f's_cmp_eq_u32 s6, {w}\ns_cbranch_scc1 L_hop{w + 1}\n' for w in range(3)) +
                's_branch L_hop4\nL_hopret:\ns_mov_b64 exec, -1')
    return f'L_hop{k}:\ns_cbranch_execz L_hopret'

def setup(a, opt):
    a(f'''
    s_cmp_ge_u32 s2, 256
    s_cbranch_scc1 L_end
    {("s_memtime" if opt.get("cyc") else "s_memrealtime") + " s[98:99]" if opt.get("stamp") else ""}
    s_load_dwordx16 s[64:79], s[0:1], 0
    s_load_dwordx8 s[80:87], s[0:1], 64
    v_lshrrev_b32 v4, 6, v0
    v_and_b32 v1, 63, v0
    v_readfirstlane_b32 {sr(sW)}, v4
    {HOP(0)}
    s_and_b32 s3, s2, 7
    s_bfe_u32 s7, s2, 0x20003
    s_lshl_b32 s3, s3, 2
    s_add_u32 {sr(sH)}, s3, s7
    s_lshr_b32 {sr(sQB)}, s2, 5
    s_lshl_b32 {sr(sW4K)}, {sr(sW)}, 12
    s_and_b32 s3, s2, 1
    s_lshl_b32 s3, s3, 3
    s_add_u32 {sr(sRB)}, s3, {sr(sQB)}
    s_bfe_u32 {sr(sCB)}, s2, 0x20003
    {"s_mov_b32 s89, 0" if opt.get("x_rb") else ""}
    {"s_mov_b32 s90, 0" if opt.get("x_cb") else ""}
    v_and_b32 v2, 15, v1                ; r = l&15
    v_lshrrev_b32 v3, 4, v1             ; g = l>>4
    ''')
    if OPT.get('ipf', 1):
        a(f'''
        s_getpc_b64 s[100:101]
        L_pc:
        s_lshr_b32 s3, s2, 3
        s_lshl_b32 s3, s3, 2
        s_add_u32 s3, s3, {sr(sW)}
        s_and_b32 s3, s3, 15
        s_lshl_b32 s3, s3, 13
        s_min_u32 s3, s3, L_codeend-L_pc-8192
        v_lshlrev_b32 v4, 7, v1
        v_add_u32 v4, s3, v4
        global_load_dword v26, v4, s[100:101]
        ''')

def setup_x(a, opt):
    a(f's_lshl_b32 s3, {sr(sQB)}, 18\ns_lshl_b32 s7, {sr(sW)}, 16\ns_add_u32 s3, s3, s7')
    a('s_waitcnt lgkmcnt(0)')
    if opt.get('stamp'): a('v_mov_b32 v0, s98')
    if opt.get('early'): a('s_memrealtime vcc')
    if OPT.get('tlb'):
        lst = OPT['tlb']
        a('s_lshr_b32 s7, s2, 3\ns_and_b32 s7, s7, 7\ns_mov_b64 s[100:101], s[64:65]\nv_mov_b32 v4, 0')
        for k, (r, off) in enumerate(lst):
            a(f's_cmp_eq_u32 s7, {k + 1}\ns_cselect_b64 s[100:101], s[{r}:{r + 1}], s[100:101]')
            if off: a(f's_cselect_b32 s8, {off}, 0\nv_max_u32 v4, s8, v4')
        a('global_load_dword v26, v4, s[100:101]')
    srd(a, SRD_X, 64, 65, 65536, add='s3')

def setup_w(a):
    a(f's_lshl_b32 s3, {sr(sH)}, 8')
    srd(a, SRD_WQ, 70, 71, 511 * 8192 + 256, add='s3')
    a(FB('s3', 's7') + f'\ns_lshl_b32 s3, s3, 7\n' + FBOK('s7') + f'\ns_cselect_b32 s3, s3, 0\ns_cselect_b32 s7, {511 * 3584 + 128}, 0')
    srd(a, SRD_WG, 76, 77, 's7', add='s3')
    srd(a, SRD_WU, 78, 79, 's7', add='s3')

def setup_wp(a):
    a('s_cmp_lt_u32 s2, 128\ns_cselect_b32 s72, s72, s80\ns_cselect_b32 s73, s73, s81\ns_and_b32 s3, s2, 127\ns_lshl_b32 s3, s3, 15')
    a('s_cmp_lt_u32 s2, 184\ns_cselect_b32 s3, s3, 0')
    a('s_cselect_b32 s7, 32768, 0\ns_cselect_b32 s74, 0x10000000, 0')
    srd(a, SRD_WO, 72, 73, 's7', add='s3')
    srd(a, SRD_WD, 86, 87, 's74')

def setup2(a, opt):
    a(f's_lshl_b32 s3, {sr(sH)}, 19')
    srd(a, SRD_K, 66, 67, 524288, add='s3')
    srd(a, SRD_V, 68, 69, 524288 + 2048 + 16384, add='s3', sub=2048 + 16384)
    srd(a, SRD_WS, 86, 87, 0x10000000)
    srd(a, SRD_OUT, 82, 83, 2097152)
    srd(a, SRD_DBG, 84, 85, 256)
    a('s_mov_b32 s96, s64\ns_mov_b32 s97, s65')

def a_setup_dma_addr(a):
    a(f'''
    s_lshl_b32 s3, {sr(sW)}, 3
    v_add_u32 v4, s3, v3                 ; row = 8w + (l>>4)
    v_lshlrev_b32 v5, 2, v3
    v_xor_b32 v5, v5, v2
    v_lshlrev_b32 v5, 4, v5
    v_lshl_add_u32 {vr(DQ)}, v4, 13, v5
    v_lshrrev_b32 v4, 3, v1              ; rho = l>>3
    v_and_b32 v5, 3, v4
    v_lshrrev_b32 v6, 5, v1
    v_lshl_add_u32 v5, v6, 3, v5
    s_lshr_b32 s3, {sr(sW)}, 1
    s_lshl_b32 s3, s3, 4
    s_and_b32 s7, {sr(sW)}, 1
    s_lshl_b32 s7, s7, 2
    s_add_u32 s3, s3, s7
    v_add_u32 v5, s3, v5                 ; W row
    v_mul_u32_u24 v5, 3584, v5
    v_lshlrev_b32 v6, 1, v3
    v_and_b32 v7, 7, v1
    v_xor_b32 v6, v6, v7
    v_lshl_add_u32 {vr(DG)}, v6, 4, v5
    v_xor_b32 v6, v3, v7
    v_lshlrev_b32 v6, 4, v6
    v_lshl_add_u32 {vr(DX)}, v4, 10, v6
    v_xor_b32 {vr(DX + 1)}, 64, {vr(DX)}
    ''')

def a_dma_x(j_par):
    ops = []
    for i in range(8):
        pre = []
        if i % 4 == 0:
            pre.append(f's_add_u32 m0, {sr(sT3)}, {XBUF + j_par * 32768 + (i // 4) * 4096}')
        pre.append(f's_add_u32 {sr(sT0 + (i & 1))}, {sr(sXO)}, {i * 8192 - 1024 * (i & 3)}')
        ops.append(tuple(pre) + (f'buffer_load_dwordx4 {vr(DX + (i & 1))}, {sr(SRD_X, 4)}, {sr(sT0 + (i & 1))} offen offset:{1024 * (i & 3)} lds',))
    return ops, [f's_add_u32 {sr(sXO)}, {sr(sXO)}, 128', f's_and_b32 {sr(sXO)}, {sr(sXO)}, 1023']

def a_dma_w():
    ops = []
    for ks in range(2):
        ops.append((f's_add_u32 m0, {sr(sWQB)}, {ks * 16384}', f's_add_u32 {sr(sT0)}, {sr(sQO)}, {ks * 32 * 8192}',
                    f'buffer_load_dwordx4 {vr(DQ)}, {sr(SRD_WQ, 4)}, {sr(sT0)} offen lds'))
        ops.append((f's_add_u32 {sr(sT1)}, {sr(sQO)}, {ks * 32 * 8192 + 4 * 8192 - 1024}',
                    f'buffer_load_dwordx4 {vr(DQ)}, {sr(SRD_WQ, 4)}, {sr(sT1)} offen offset:1024 lds'))
        ops.append((f's_add_u32 m0, {sr(sWGB)}, {ks * 16384}', f's_add_u32 {sr(sT0)}, {sr(sGO)}, {ks * 32 * 3584}',
                    f'buffer_load_dwordx4 {vr(DG)}, {sr(SRD_WG, 4)}, {sr(sT0)} offen lds'))
        ops.append((f's_add_u32 m0, m0, 4096',
                    f'buffer_load_dwordx4 {vr(DG)}, {sr(SRD_WU, 4)}, {sr(sT0)} offen lds'))
    adv = [f's_add_u32 {sr(sQO)}, {sr(sQO)}, {64 * 8192}', f's_and_b32 {sr(sQO)}, {sr(sQO)}, 0x3fffff', f's_lshr_b32 {sr(sGO)}, {sr(sQO)}, 13', f's_mul_i32 {sr(sGO)}, {sr(sGO)}, 3584',
           f's_add_u32 {sr(sWB)}, {sr(sWB)}, 1', f's_cmp_eq_u32 {sr(sWB)}, 3', f's_cselect_b32 {sr(sT2)}, -2, 1', f's_cselect_b32 {sr(sWB)}, 0, {sr(sWB)}',
           f's_lshl_b32 {sr(sT2)}, {sr(sT2)}, 15', f's_add_u32 {sr(sWQB)}, {sr(sWQB)}, {sr(sT2)}', f's_add_u32 {sr(sWGB)}, {sr(sWGB)}, {sr(sT2)}']
    return ops, adv

def emit_plain(a, ops):
    for x in ops:
        if isinstance(x, tuple):
            for y in x[:-1]: a(y)
            if ' m0,' in x[-2]: a('s_nop 0')
            a(x[-1])
        else:
            a(x)

def a_setup_read_addr(a):
    a(f'''
    v_bfe_u32 v4, v1, 2, 2               ; r'
    v_and_b32 v5, 3, v1                  ; c'
    v_lshl_add_u32 v6, v3, 3, v4         ; 8g + r'
    v_lshlrev_b32 v6, 8, v6
    v_lshl_add_u32 v6, v4, 6, v6         ; + (r'<<2)*16
    v_lshl_add_u32 v6, v5, {3 if OPT.get('a_noconf') else 4}, v6         ; + c'*16
    {"v_and_b32 v7, 16, v1" if OPT.get('a_noconf') else ""}
    {"v_lshl_add_u32 v6, v7, 1, v6" if OPT.get('a_noconf') else ""}
    v_add_u32 v6, {WBUF}, v6
    ''')
    for sp in range(4):
        a(f'v_xor_b32 {vr(AQ + sp)}, {sp * 64}, v6')
    a(f'''
    v_bfe_u32 v6, v1, 2, 3               ; rho = 4(g&1) + r'
    v_lshrrev_b32 v7, 1, v6              ; key2
    v_lshlrev_b32 v6, 7, v6
    v_lshl_add_u32 v6, v7, 5, v6
    v_lshl_add_u32 v6, v5, 3, v6
    v_lshrrev_b32 v7, 5, v1
    v_lshl_add_u32 v6, v7, 11, v6
    v_add_u32 v6, {WBUF + 8192}, v6
    ''')
    for nb in range(4):
        a(f'v_xor_b32 {vr(AG + nb)}, {nb * 32}, v6')
    a(f's_cmp_eq_u32 {sr(sW)}, 0\ns_cselect_b64 s[98:99], -1, 0\ns_cmp_lt_u32 {sr(sW)}, 2\ns_cselect_b64 s[100:101], -1, 0')
    a(f's_and_b32 s3, {sr(sW)}, 1\ns_lshl_b32 s3, s3, 12')
    for k in range(4):
        a(f'v_cndmask_b32 v4, {vr(AQ + 2 + (k >> 1))}, {vr(AQ + (k >> 1))}, s[98:99]')
        if k & 1:
            a('v_add_u32 v4, 8, v4')
        a(f'v_add_u32 v5, s3, {vr(AG + k)}')
        a(f'v_cndmask_b32 {vr(AC + k)}, v5, v4, s[100:101]')
    a(f'''
    v_lshrrev_b32 v4, 1, v2
    v_xor_b32 v4, v4, v3
    v_lshlrev_b32 v4, 4, v4
    v_lshl_add_u32 v4, v2, 7, v4
    v_add_u32 {vr(AX)}, {sr(sT3)}, v4
    v_xor_b32 {vr(AX + 1)}, 64, {vr(AX)}
    v_mov_b32 v4, 0x3f803f80
    v_and_b32 v5, 3, v1
    v_mov_b32 v6, 0xeeee
    v_and_b32 v7, 4, v1
    v_cmp_eq_u32 vcc, 0, v7
    v_mov_b32 v7, 0x4444
    v_cmp_eq_u32 s[98:99], 0, v5
    v_cndmask_b32 {vr(IDX)}, v6, v7, vcc
    s_nop 0
    ''')
    for k in range(4):
        a(f'v_cndmask_b32 v6, 0, v4, s[98:99]')
        if k < 3: a(f'v_cmp_eq_u32 s[98:99], {k + 1}, v5')
        for i in range(4):
            a(f'v_accvgpr_write_b32 {ar(AK + 4 * k + i)}, v6')

def Xreg(par, c, ks): return XF + par * 32 + c * 8 + ks * 4
def accA(nb, c):
    return vr(ACQ + (nb * 4 + c) * 4, 4) if nb < 8 else ar(AGU + ((nb - 8) * 4 + c) * 4, 4)
ORDER = [16, 17, 18, 19] + list(range(16))
def a_reads(pos):
    grp = ORDER[pos]
    out = []
    for ks in range(2):
        for u in range(2):
            off = ks * 16384 + u * 1024
            if grp < 8:
                ad = AQ + (grp >> 1); off += 8 * (grp & 1)
            elif grp < 16:
                ad = AG + (grp & 3); off += 4096 * ((grp - 8) >> 2)
            else:
                ad = AC + grp - 16
            out.append(f'ds_read_b64_tr_b16 {ar(AR + (pos & 3) * 8 + ks * 4 + 2 * u, 2)}, {vr(ad)} offset:{off}')
    return out
def x_reads(par):
    return [f'ds_read_b128 {vr(Xreg(par, c, ks), 4)}, {vr(AX + ks)} offset:{XBUF + par * 32768 + c * 2048}' for c in range(4) for ks in range(2)]

def a_superstep(par, first, tail, kv_ops=None, name=None, pre_ops=None, pre_adv=None):
    G = []; start = []
    small = OPT.get('small', 1)
    if small:
        cs = [f'v_smfmac_f32_16x16x64_bf16 {vr(CSD, 4)}, {ar(AK + 4 * k, 4)}, {ar(AR + k * 8, 8)}, {vr(IDX)}' for k in range(4)]
        xs = [f'v_smfmac_f32_16x16x64_bf16 {vr(SX, 4)}, {ar(AK + 4 * k, 4)}, {vr(Xreg(par, k, 0), 8)}, {vr(IDX)}' for k in range(4)]
        sm = [f'v_mfma_f32_4x4x4_16b_bf16 {vr(SXX + 4 * c, 4)}, {vr(Xreg(par, c, 0) + 2 * i, 2)}, {vr(Xreg(par, c, 0) + 2 * i, 2)}, {vr(SXX + 4 * c, 4)}' for i in range(4) for c in range(4)]
        G = [Gap(m) for m in xs[:2] + cs[:2] + sm + xs[2:] + cs[2:]]
        start = [0, 4, 20, 22]
    for pos in range(4 if small else 0, 20):
        grp = ORDER[pos]
        start.append(len(G))
        sl = AR + (pos & 3) * 8
        if grp < 16:
            for c in range(4):
                for ks in range(2):
                    d = accA(grp, c)
                    G.append(Gap(mf(d, ar(sl + 4 * ks, 4), vr(Xreg(par, c, ks), 4), '0' if first and ks == 0 else d)))
        else:
            k = grp - 16
            G.append(Gap(f'v_smfmac_f32_16x16x64_bf16 {vr(CSD, 4)}, {ar(AK + 4 * k, 4)}, {ar(sl, 8)}, {vr(IDX)}'))
            G.append(Gap(f'v_smfmac_f32_16x16x64_bf16 {vr(SX, 4)}, {ar(AK + 4 * k, 4)}, {vr(Xreg(par, k, 0), 8)}, {vr(IDX)}'))
            for ks in range(2):
                d = vr(SXX + 4 * k, 4)
                G.append(Gap(mf(d, vr(Xreg(par, k, ks), 4), vr(Xreg(par, k, ks), 4), '0' if first and ks == 0 else d)))
    start.append(len(G))
    def at(g, x, kind='mem'):
        place(G, [x], g, g, kind=kind)
    rp = OPT.get('a_rp', [0, 1, 2, 3])
    if small:
        for k, x in enumerate(a_reads(2) + a_reads(3) + a_reads(4) + a_reads(5)): at(4 + k, x)
    for grp in range(4 if small else 0, 18):
        for k, x in zip(rp if grp >= 4 else [0, 0, 1, 2], a_reads(grp + 2)):
            at(start[grp] + k, x)
    dm = []
    if tail == 0:
        wops, wadv = a_dma_w(); xops, xadv = a_dma_x(par)
        if OPT.get('a_now'): wops = []
        if OPT.get('a_nox'): xops = []
        dm = wops + xops
        if pre_ops:
            dm = pre_ops + dm
    if kv_ops:
        dm = kv_ops
    free = [start[p] + (5 if p >= 4 else 3) for p in range(18)]
    if small: free = [0, 20] + free[4:]
    if len(dm) > len(free):
        free = [g for p in range(18) for g in ((start[p] + 4, start[p] + 6) if p >= 4 else (start[p] + 3,))]
    pos = free[:len(dm)]
    for g, x in zip(pos, dm):
        if x is not None: at(g, x)
    if tail == 0:
        npre = len(pre_ops) if pre_ops else 0
        if pre_ops:
            for g, adv in pre_adv:
                G[pos[g] + 1].pre += adv
        if wops:
            g = pos[npre + len(wops) - 1]
            G[g + 1].pre += wadv[:4]; G[g + 2].pre += wadv[4:8]; G[g + 3].pre += wadv[8:]
        if xops:
            G[pos[-1] + 1].pre += xadv
    xg = OPT.get('a_xg', 14)
    if tail < 2:
        wg = start[xg] + 3
        npre = len(pre_ops) if pre_ops else 0
        younger = sum(1 for k, g in enumerate(pos) if g < wg and k >= npre and dm[k] is not None)
        assert all(g < wg for g in pos[:npre])
        G[wg].pre.append(f's_waitcnt vmcnt({younger})')
        xr = x_reads(1 - par)
        for k, x in enumerate(xr):
            at(start[xg + k // 4] + 3 + (k % 4) + (1 if G[start[xg + k // 4] + 3 + (k % 4)].units() >= 2 else 0), x) if False else None
        g = wg
        xpos = []
        for x in xr:
            while G[g].units() >= 2 or any(y.startswith('ds_read_b128') for y in G[g].mem): g += 1
            G[g].mem.append(x); xpos.append(g)
        assert xpos[-1] < start[18] - 2, xpos
    if tail == 2:
        w, st, rd = a_stats_ops()
        g = place(G, w[0], start[4] + 5, start[9] + 4, kind='valu')
        place(G, w[1], start[9] + 5, start[10] + 7, cap=1)
        G[start[12] - 1].post += ['s_waitcnt lgkmcnt(4)', 's_barrier']
        place(G, rd, start[14] + 4, start[17] + 7, cap=1)
        rest = place_some(G, st, g, start[20] - 1)
        G[-1].post += ['s_nop 1'] + rest
    seq = [(g, x) for g in range(len(G)) for x in G[g].mem if x.startswith('ds_')]
    if small:
        G[1].pre.append('s_waitcnt lgkmcnt(0)'); G[21].pre.append('s_waitcnt lgkmcnt(8)'); G[23].pre.append('s_waitcnt lgkmcnt(4)')
        G[start[5] - 1].pre.append('s_waitcnt lgkmcnt(4)')
    for grp in range(6 if small else 2, 20):
        if grp == 18:
            continue
        last = max(k for k, (g, x) in enumerate(seq) if x in a_reads(grp) and start[grp - 2] <= g < start[grp - 1])
        n = sum(1 for k, (g, x) in enumerate(seq) if k > last and g < start[grp] - 1)
        G[start[grp] - 1].pre.append(f's_waitcnt lgkmcnt({min(n, 14)})')
    if not small: G[start[1] - 1].pre.append('s_waitcnt lgkmcnt(4)')
    if tail < 2:
        G[start[18] - 1].pre += ['s_waitcnt lgkmcnt(0)', 's_barrier']
        vu = [f'v_add_u32 {vr(AQ + i)}, {sr(sDL)}, {vr(AQ + i)}' for i in range(12)]
        place(G, vu[:4] + vu[8:], start[14], start[17] + 5, kind='valu')
        for k, x in enumerate(a_reads(0)): at(start[18] + k, x)
        for k, x in enumerate(a_reads(1)): at(start[19] + k, x)
        place(G, vu[4:8], start[18], start[19] + 5, kind='valu')
        if not small: G[start[20] - 1].pre.append('s_waitcnt lgkmcnt(4)')
        G[start[13] + 1].pre += [f's_add_u32 {sr(sM)}, {sr(sM)}, 1', f's_cmp_eq_u32 {sr(sM)}, 3', f's_cselect_b32 {sr(sDL)}, -2, 1', f's_cselect_b32 {sr(sM)}, 0, {sr(sM)}']
        G[start[13] + 2].pre += [f's_lshl_b32 {sr(sDL)}, {sr(sDL)}, 15']
    else:
        G[start[18] - 1].pre += ['s_waitcnt lgkmcnt(0)']
    if OPT.get('a_nobar'):
        for g in G: g.pre = [x for x in g.pre if x != 's_barrier']
    if OPT.get('a_nowait'):
        for g in G: g.pre = [x for x in g.pre if not x.startswith('s_waitcnt lgkmcnt')]
    if OPT.get('a_novm'):
        for g in G: g.pre = [x for x in g.pre if not x.startswith('s_waitcnt vmcnt')]
    if OPT.get('a_nords'):
        for g in G: g.mem = [x for x in g.mem if not x.startswith('ds_read_b64')]
    if name:
        so = stamp_op(name)
        if so:
            G[start[18] - 1].post += so
            G[start[19] - 1].pre.append('s_waitcnt lgkmcnt(0)')
    return G

WPA = [240, 241, 242, 243, 252, 253, 254, 255]
def wp_addr0():
    return ['v_lshlrev_b32 v4, 1, v3', 'v_xor_b32 v4, v4, v2', 'v_lshlrev_b32 v4, 4, v4', 'v_lshl_add_u32 v4, v3, 10, v4', 'v_xor_b32 v5, 128, v4']
def wp_dma():
    ops = []
    for i in range(8):
        pre = []
        if i == 0: pre += [f's_lshl_b32 {sr(sT2)}, {sr(sW)}, 8']
        pre += [f's_add_u32 m0, {sr(sT3)}, {131072 + i * 1024}', f's_add_u32 {sr(sT0)}, {sr(sT2)}, {i * 4096}']
        ops.append(tuple(pre) + (f'buffer_load_dwordx4 v{4 + (i & 1)}, {sr(SRD_WO, 4)}, {sr(sT0)} offen lds',))
    return ops
def wp_addr1():
    t0, t1 = WPA[0], WPA[1]
    ops = [f'v_lshrrev_b32 {vr(t0)}, 2, v1', f'v_and_b32 {vr(t1)}, 7, {vr(t0)}', f'v_lshlrev_b32 {vr(t0)}, 8, {vr(t0)}', f'v_lshl_add_u32 {vr(t0)}, {vr(t1)}, 5, {vr(t0)}',
           f'v_and_b32 {vr(t1)}, 3, v1', f'v_lshlrev_b32 {vr(t1)}, 5, {vr(t1)}', f'v_xor_b32 {vr(t0)}, {vr(t1)}, {vr(t0)}', f'v_add_u32 {vr(t0)}, {sr(sT3)}, {vr(t0)}', f'v_add_u32 {vr(t0)}, 131072, {vr(t0)}']
    ops += [f'v_xor_b32 {vr(WPA[db])}, {(db >> 2) * 128 + (db & 3) * 8}, {vr(t0)}' for db in range(1, 8)]
    return ops
def wp_reads():
    return [f'ds_read_b64_tr_b16 {ar(WPR + db * 4 + 2 * u, 2)}, {vr(WPA[db])} offset:{u * 4096}' for db in range(8) for u in range(2)]
def wp_stores():
    st = []
    for db in range(8):
        st.append(f'buffer_store_dwordx4 {ar(WPR + db * 4, 4)}, {vr(CL16)}, {sr(SRD_WD, 4)}, {"s3" if db < 4 else "s7"} offen offset:{1024 * (db & 3)} sc1')
    sc = ['s_sub_u32 s3, s2, 128', 's_add_u32 s7, s2, 56', 's_cmp_lt_u32 s2, 128', 's_cselect_b32 s3, s7, s3', 's_lshl_b32 s3, s3, 12',
          f's_mul_i32 s7, {sr(sW)}, {2 * WFS}', 's_add_u32 s3, s3, s7', f's_add_u32 s3, s3, {WS_WF}', f's_add_u32 s7, s3, {WFS}']
    return sc, st

def wp_store_ops():
    sc, st = wp_stores()
    out = []
    for k, x in enumerate(st):
        out += [tuple(sc) + (x,) if k == 0 else x, None]
    return out

def warmup(a):
    if OPT.get('pad', 4096):
        nch = OPT.get('nchain', 4)
        a('s_mov_b64 exec, 0')
        for w in range(nch - 1):
            a(f's_cmp_eq_u32 {sr(sW)}, {w}\ns_cbranch_scc1 L_pad{w}')
        a(f's_branch L_pad{nch - 1}')
        a.raw('.p2align 12')
        a.label('L_warmdone')
        a.label('L_warmret')
        a('s_mov_b64 exec, -1')

def phase_a(a, opt):
    a(f's_lshl_b32 {sr(sT3)}, {sr(sW)}, 13')
    a_setup_dma_addr(a)
    a(f's_and_b32 s3, s2, {7 if OPT.get("arot", 0) else 0}\ns_lshl_b32 {sr(sXO)}, s3, 7\ns_lshl_b32 {sr(sQO)}, s3, 19\ns_mul_i32 {sr(sGO)}, s3, {64 * 3584}\ns_mov_b32 {sr(sWB)}, 0\ns_mov_b32 {sr(sM)}, 0')
    a(f's_lshl_b32 {sr(sWQB)}, {sr(sW)}, 11\ns_add_u32 {sr(sWQB)}, {sr(sWQB)}, {WBUF}\ns_lshl_b32 {sr(sWGB)}, {sr(sW)}, 10\ns_add_u32 {sr(sWGB)}, {sr(sWGB)}, {WBUF + 8192}')
    xops, xadv = a_dma_x(0); wops, wadv = a_dma_w()
    setup_x(a, opt)
    if OPT.get('b1', 0):
        emit_plain(a, xops[:1])
        setup_w(a)
        w0 = [wops[0], wops[2], wops[3]]
        emit_plain(a, w0)
        emit_plain(a, [(xops[0][0],) + xops[1]] + xops[2:]); emit_plain(a, xadv)
        emit_plain(a, [(wops[0][0],) + wops[1]] + wops[4:]); emit_plain(a, wadv)
    else:
        emit_plain(a, xops); emit_plain(a, xadv)
        setup_w(a)
        emit_plain(a, wops); emit_plain(a, wadv)
    if opt.get('early') and not opt.get('early2'): a('s_memrealtime s[98:99]')
    wm = OPT.get('warmpos', 1)
    if wm == 1: warmup(a)
    xops, xadv = a_dma_x(1); wops, wadv = a_dma_w()
    b = A()
    for i in range(ACQ, ACQ + 4): b(f'v_mov_b32 {vr(i)}, 0')
    setup2(b, opt); setup_wp(b)
    if opt.get('early'):
        b('s_waitcnt lgkmcnt(0)')
        for nm, r in (('karg', 'vcc_lo'), ('i16', 's98')):
            b(f's_mov_b32 s{sST + 2 * len(STAMPS)}, {r}'); STAMPS.append(nm)
    a_setup_read_addr(b); b_setup_dma_addr(b)
    for i in range(ACQ + 4, 256):
        b(f'v_mov_b32 {vr(i)}, 0')
        if (i - ACQ) % 16 == 8 and (i - ACQ) // 16 < 8:
            b(f'v_mfma_f32_32x32x16_bf16 {ar(AGU + 16 * ((i - ACQ) // 16), 16)}, {vr(ACQ, 4)}, {vr(ACQ, 4)}, 0')
    fill = [l.strip() for l in b.lines]
    per = len(fill) // 15 + 1
    k0 = 0
    for k, x in enumerate(xops + wops):
        emit_plain(a, [x])
        if k == 7: emit_plain(a, xadv)
        k1 = min(len(fill), k0 + per)
        while k1 < len(fill) and fill[k1].startswith(('s_addc', 's_subb', 's_cselect')): k1 += 1
        for y in fill[k0:k1]: a(y)
        k0 = k1
    assert k0 == len(fill)
    emit_plain(a, wadv)
    ntouch = 0
    stamp(a, opt, 'issued')
    a(f'''
    s_lshl_b32 s3, {sr(sQB)}, 2
    s_add_u32 s3, s3, {sr(sW)}
    s_lshl_b32 s3, s3, 2
    s_lshr_b32 s7, {sr(sH)}, 3
    s_add_u32 s3, s3, s7
    s_lshl_b32 s3, s3, 5
    s_and_b32 s7, {sr(sH)}, 7
    s_add_u32 s3, s3, s7
    s_lshl_b32 s3, s3, 2
    s_add_u32 s94, s3, {WS_FLAG}
    v_mov_b32 v4, 0
    s_mov_b64 exec, 1
    buffer_store_dword v4, v4, {sr(SRD_WS, 4)}, s94 offen sc1
    {TW('s3')}
    s_lshl_b32 s3, s3, 6
    s_bfe_u32 s7, s2, 0x20001
    s_add_u32 s3, s3, s7
    s_lshl_b32 s3, s3, 2
    s_add_u32 s3, s3, {WS_FF}
    buffer_store_dword v4, v4, {sr(SRD_WS, 4)}, s3 offen sc1
    buffer_store_dword v4, v4, {sr(SRD_WS, 4)}, s3 offen offset:128 sc1
    s_mov_b64 exec, -1
    ''')
    if wm == 2: warmup(a)
    a(f's_waitcnt vmcnt({19 + ntouch})')
    for x in x_reads(0): a(x)
    a('s_waitcnt lgkmcnt(0)\ns_barrier')
    for x in a_reads(0) + a_reads(1): a(x)
    stamp(a, opt, 'A0')
    a('s_waitcnt lgkmcnt(0)' if opt.get('stamp') else 's_waitcnt lgkmcnt(4)')
    a.raw('.p2align 3')
    a(f's_mov_b32 {sr(sCNT)}, 3')
    a.raw('.p2align 3')
    a.label('L_a')
    G = a_superstep(0, False, 0, name='a4') + a_superstep(1, False, 0, name='a5')
    G[-4].pre.append(f's_sub_u32 {sr(sCNT)}, {sr(sCNT)}, 1')
    G[-2].pre.append(f's_cmp_lg_u32 {sr(sCNT)}, 0')
    G[-1].post.append('s_cbranch_scc1 L_a')
    emit_gaps(a, [g.ops() for g in G])
    a.raw('.p2align 3')
    emit_gaps(a, [g.ops() for g in a_superstep(0, False, 1, name='a6', kv_ops=b_prologue_dma()[:12]) + a_superstep(1, False, 2, kv_ops=b_prologue_dma()[12:])])
    stamp(a, opt, 'Aend')
    a_epilogue(a, opt)

def NMEAN(c): return SX + c
def ALPHA(c): return STT + c
def RS2(c): return STT + 4 + c
CSQ = 32; CSG = 160; HP = 192; ZQ = 240
def a_stats_ops():
    w0 = ['v_lshlrev_b32 v4, 4, v3', f'v_add_u32 v4, {CSBUF}, v4', 'v_lshlrev_b32 v5, 2, v2', f'v_lshl_add_u32 v5, {sr(sW)}, 8, v5', f'v_add_u32 v5, {CSBUF}, v5']
    w0 += [f'v_mov_b32 {vr(STT + k)}, {vr(CSD + k)}' for k in range(4)]
    w0 += [f'v_permlane16_swap_b32 {vr(CSD + k)}, {vr(STT + k)}' for k in range(4)]
    w0 += [f'v_add_f32 {vr(CSD + k)}, {vr(CSD + k)}, {vr(STT + k)}' for k in range(4)]
    w1 = [f'ds_write_b32 v5, {vr(CSD + k)} offset:{64 * k}' for k in range(4)]
    st = ['v_and_b32 v6, 3, v1', 'v_cmp_eq_u32 s[98:99], 1, v6', 'v_cmp_eq_u32 s[100:101], 2, v6', 'v_cmp_eq_u32 vcc, 3, v6',
          ] + (['v_lshrrev_b32 v6, 2, v2', 'v_cmp_eq_u32 s[92:93], v6, v3'] if not OPT.get('small', 1) else [])
    st += [f'v_mov_b32 {vr(STT + 4 + k)}, {vr(SX + k)}' for k in range(4)]
    st += [f'v_permlane16_swap_b32 {vr(SX + k)}, {vr(STT + 4 + k)}' for k in range(4)]
    st += [f'v_add_f32 {vr(SX + k)}, {vr(SX + k)}, {vr(STT + 4 + k)}' for k in range(4)]
    for c in range(4):
        st.append(f'v_mul_f32 {vr(NMEAN(c))}, {f2u(-1 / 512)}, {vr(SX + c)}')
    for k, m in ((1, 's[98:99]'), (2, 's[100:101]'), (3, 'vcc')):
        for c in range(4):
            b = SXX + 4 * c
            st.append(f'v_cndmask_b32 {vr(b)}, {vr(b)}, {vr(b + k)}, {m}')
    for c in range(4 if not OPT.get('small', 1) else 0):
        st.append(f'v_cndmask_b32 {vr(SXX + 4 * c)}, 0, {vr(SXX + 4 * c)}, s[92:93]')
    for sw in ('v_permlane32_swap_b32', 'v_permlane16_swap_b32'):
        for c in range(4): st.append(f'v_mov_b32 {vr(SXX + 4 * c + 1)}, {vr(SXX + 4 * c)}')
        for c in range(4): st.append(f'{sw} {vr(SXX + 4 * c)}, {vr(SXX + 4 * c + 1)}')
        for c in range(4): st.append(f'v_add_f32 {vr(SXX + 4 * c)}, {vr(SXX + 4 * c)}, {vr(SXX + 4 * c + 1)}')
    sc = (128 ** -0.5) * math.log2(math.e)
    for c in range(4): st.append(f'v_mul_f32 {vr(SXX + 4 * c)}, {f2u(1 / 512)}, {vr(SXX + 4 * c)}')
    for c in range(4): st.append(f'v_fma_f32 {vr(SXX + 4 * c)}, -{vr(NMEAN(c))}, {vr(NMEAN(c))}, {vr(SXX + 4 * c)}')
    for c in range(4): st.append(f'v_max_f32 {vr(SXX + 4 * c)}, 0, {vr(SXX + 4 * c)}')
    for c in range(4): st.append(f'v_add_f32 {vr(SXX + 4 * c)}, {f2u(1e-5)}, {vr(SXX + 4 * c)}')
    for c in range(4): st.append(f'v_rsq_f32 {vr(ALPHA(c))}, {vr(SXX + 4 * c)}')
    for c in range(4): st.append(f'v_rcp_f32 {vr(RS2(c))}, {vr(SXX + 4 * c)}')
    for c in range(4): st.append(f'v_mul_f32 {vr(ALPHA(c))}, {f2u(sc)}, {vr(ALPHA(c))}')
    for i in range(4): st.append(f'v_mov_b32 {vr(ZQ + i)}, 0')
    rd = [f'ds_read_b128 {vr(CSQ + 4 * nb, 4)}, v4 offset:{64 * nb}' for nb in range(8)]
    return (w0, w1), st, rd

def bc(r):
    return vr(r & ~1, 2), (r & 1)

def a_epilogue(a, opt):
    for c in range(4):
        nm, nh = bc(NMEAN(c))
        for nb in range(8):
            b = ACQ + (nb * 4 + c) * 4
            for i in (0, 2):
                a(f'v_pk_fma_f32 {vr(b + i, 2)}, {vr(CSQ + 4 * nb + i, 2)}, {nm}, {vr(b + i, 2)} op_sel:[0,{nh},0] op_sel_hi:[1,{nh},1]')
    for c in range(4):
        al, ah = bc(ALPHA(c))
        for nb in range(8):
            b = ACQ + (nb * 4 + c) * 4
            for i in (0, 2):
                a(f'v_pk_mul_f32 {vr(b + i, 2)}, {vr(b + i, 2)}, {al} op_sel:[0,{ah}] op_sel_hi:[1,{ah}]')
            for i in (0, 2):
                a(f'v_cvt_pk_bf16_f32 {vr(Q + 16 * c + 2 * nb + (i >> 1))}, {vr(b + i)}, {vr(b + i + 1)}')
    stamp(a, opt, 'e_q')
    for nb in range(8):
        a(f'ds_read_b128 {vr(CSG + 4 * nb, 4)}, v4 offset:{64 * (8 + nb)}')

def h_epilogue(a, mfmas, vmem):
    mfmas = list(mfmas)
    for c in range(4):
        nm, nh = bc(NMEAN(c)); rs, rh = bc(RS2(c))
        tg = 128; tu = 144
        emit_plain(a, vmem[c:c + 1])
        for k in range(16):
            if k % 2 == 0: a(mfmas.pop(0))
            a(f'v_accvgpr_read_b32 {vr(tg + k)}, {ar(AGU + ((k >> 2) * 4 + c) * 4 + (k & 3))}')
            a(f'v_accvgpr_read_b32 {vr(tu + k)}, {ar(AGU + (((k >> 2) + 4) * 4 + c) * 4 + (k & 3))}')
        for k in range(0, 16, 2):
            a(f'v_pk_fma_f32 {vr(tg + k, 2)}, {vr(CSG + k, 2)}, {nm}, {vr(tg + k, 2)} op_sel:[0,{nh},0] op_sel_hi:[1,{nh},1]')
        for k in range(0, 16, 2):
            a(f'v_pk_fma_f32 {vr(tu + k, 2)}, {vr(CSG + 16 + k, 2)}, {nm}, {vr(tu + k, 2)} op_sel:[0,{nh},0] op_sel_hi:[1,{nh},1]')
        for k in range(0, 16, 2):
            a(f'v_pk_mul_f32 {vr(tg + k, 2)}, {vr(tg + k, 2)}, {rs} op_sel:[0,{rh}] op_sel_hi:[1,{rh}]')
        for k in range(0, 16, 2):
            a(f'v_pk_mul_f32 {vr(tg + k, 2)}, {vr(tg + k, 2)}, {vr(tu + k, 2)}')
        for k in range(8):
            a(f'v_cvt_pk_bf16_f32 {vr(tu + k)}, {vr(tg + 2 * k)}, {vr(tg + 2 * k + 1)}')
        for k in range(8):
            a(f'v_accvgpr_write_b32 {ar(HP + c * 8 + k)}, {vr(tu + k)}')
    assert not mfmas

def Sreg(buf, c, kb=0): return S + buf * 32 + c * 8 + kb * 4
def Qreg(c, s): return Q + c * 16 + s * 4
def Preg(c, par): return (PA + par * 8 + c * 4) if c < 2 else PB + (c - 2) * 4
def Oreg(c, db): return O + c * 32 + db * 4
def LMreg(hf): return LM + hf * 4
def LOLD(hf): return LM + 8 + hf
SELA = 24; HL = 33; SL = 66
def qk_mfma(buf, c, kb, s, c0=None):
    d = vr(Sreg(buf, c, kb), 4)
    cc = d if s else (c0 if c0 is not None else vr(NM + 4 * c, 4))
    return mf(d, ar(KF + 4 * (kb * 4 + s), 4), vr(Qreg(c, s), 4), cc)
def pv_mfma(c, par, db, c0=None):
    d = ar(Oreg(c, db), 4)
    return mf(d, ar(VF + db * 4, 4), vr(Preg(c, par), 4), d if c0 is None else c0)
def sum_mfma(hf, par):
    return f'v_smfmac_f32_16x16x64_bf16 {vr(LMreg(hf), 4)}, {vr(SELA, 4)}, {vr(Preg(2 * hf, par), 8)}, {vr(SIDX)}'
def k_read(slot, kb, s, base=None):
    if base is not None:
        return f'ds_read_b128 {ar(KF + 4 * (kb * 4 + s), 4)}, {vr(base + s)} offset:{slot * STAGE + kb * 8192}'
    return f'ds_read_b128 {ar(KF + 4 * (kb * 4 + s), 4)}, {vr(KA + 4 * (slot >> 2) + s)} offset:{(slot & 3) * STAGE + kb * 8192}'
def v_read(slot, db, u):
    return f'ds_read_b64_tr_b16 {ar(VF + db * 4 + 2 * u, 2)}, {vr((VAB if slot >= 4 else VAA) + db)} offset:{(slot & 3) * STAGE + u * 8192 + 2048}'
def dma_k(i):
    return f'buffer_load_dwordx4 {vr(DK0 + i)}, {sr(SRD_K, 4)}, {sr(sOK)} offen offset:{1024 * i}{OPT.get("kvsc", "")} lds'
def dma_v(i):
    return f'buffer_load_dwordx4 {vr(DV0 + i)}, {sr(SRD_V, 4)}, {sr(sOK)} offen offset:{2048 + 1024 * i}{OPT.get("kvsc", "")} lds'
def stage_dma(slot, k=True, v=True):
    ops = ([dma_k(0), dma_k(1)] if k else []) + ([dma_v(0), dma_v(1)] if v else [])
    ops[0] = (f's_add_u32 m0, {sr(sW4K)}, {slot * STAGE}', f's_add_u32 {sr(sOK)}, {sr(sOK)}, 8192', ops[0])
    return ops

def b_setup_dma_addr(a):
    a(f'''
    s_lshl_b32 s3, {sr(sW)}, 3
    v_add_u32 v5, s3, v3          ; row = 8w + (l>>4)
    v_and_b32 v7, 15, v5
    v_xor_b32 v7, v7, v2
    v_lshlrev_b32 v7, 4, v7
    v_lshl_add_u32 {vr(DK0)}, v5, 8, v7
    v_xor_b32 {vr(DK1)}, 64, {vr(DK0)}
    v_lshlrev_b32 v7, 1, v3
    v_xor_b32 v7, v7, v2
    v_lshlrev_b32 v7, 4, v7
    v_lshl_add_u32 {vr(DV0)}, v5, 8, v7
    v_xor_b32 {vr(DV1)}, 128, {vr(DV0)}
    s_mov_b32 {sr(sOK)}, {-8192 & 0xffffffff}
    ''')

def b_prologue_dma():
    ops = stage_dma(8, v=False) + stage_dma(9, v=False)
    for sl in range(5):
        ops += stage_dma(sl)
    return ops

def b_prologue_dma2():
    return stage_dma(5)

def b_setup_read_addr(a):
    a(f'''
    v_lshrrev_b32 v4, 3, v2
    v_lshlrev_b32 v4, 12, v4      ; (r>>3)*4096
    v_and_b32 v5, 7, v2
    v_lshl_add_u32 v4, v5, 8, v4  ; + (r&7)*256
    v_xor_b32 v5, v2, v3
    v_lshl_add_u32 v4, v5, 4, v4  ; + (r^g)*16
    ''')
    for s in range(4):
        a(f'v_xor_b32 {vr(KA + s)}, {s * 64}, v4')
        a(f'v_add_u32 {vr(KA + 4 + s)}, 65536, {vr(KA + s)}')
        a(f'v_add_u32 {vr(ST + 8 + s)}, 131072, {vr(KA + s)}')
    a(f'''
    v_bfe_u32 v4, v1, 2, 3        ; row&7
    v_lshlrev_b32 v5, 8, v4
    v_lshl_add_u32 v5, v4, 5, v5
    v_lshrrev_b32 v6, 5, v1
    v_lshl_add_u32 v5, v6, 12, v5
    v_and_b32 v6, 3, v1
    v_lshl_add_u32 v5, v6, 3, v5
    ''')
    for db in range(8):
        a(f'v_xor_b32 {vr(VAA + db)}, {db * 32}, v5')
        a(f'v_add_u32 {vr(VAB + db)}, 65536, {vr(VAA + db)}')
    a(f'''
    v_mov_b32 {vr(THR)}, 0x4e800000      ; 2^30
    v_mov_b32 {vr(SIDX)}, {vr(IDX)}
    v_lshrrev_b32 v4, 3, v2
    v_lshrrev_b32 v5, 5, v1
    v_and_b32 v6, 3, v1
    v_lshl_add_u32 v4, v6, 1, v4
    v_cmp_eq_u32 vcc, v4, v5
    v_mov_b32 v4, 0x3f803f80
    s_nop 0
    v_cndmask_b32 v5, 0, v4, vcc
    ''')
    for i in range(4):
        a(f'v_mov_b32 {vr(SELA + i)}, v5')
    a(f'v_lshlrev_b32 {vr(CL16)}, 4, v1')

def xlane(a, op, dst, t2):
    for sw in ('v_permlane32_swap_b32', 'v_permlane16_swap_b32'):
        a(f'v_mov_b32 {vr(t2)}, {vr(dst)}')
        a('s_nop 1')
        a(f'{sw} {vr(dst)}, {vr(t2)}')
        a(f'{op} {vr(dst)}, {vr(dst)}, {vr(t2)}')

def rowmax(a, base, dst, t2):
    a(f'v_max3_f32 {vr(dst)}, {vr(base)}, {vr(base + 1)}, {vr(base + 2)}')
    a(f'v_max3_f32 {vr(dst)}, {vr(dst)}, {vr(base + 3)}, {vr(base + 4)}')
    a(f'v_max3_f32 {vr(dst)}, {vr(dst)}, {vr(base + 5)}, {vr(base + 6)}')
    a(f'v_max_f32 {vr(dst)}, {vr(dst)}, {vr(base + 7)}')
    xlane(a, 'v_max_f32', dst, t2)

def softmax_c(a, sbase, pbase, tb):
    for r in range(4):
        a(f'v_exp_f32 {vr(tb)}, {vr(sbase + 2 * r)}')
        a(f'v_exp_f32 {vr(tb + 1)}, {vr(sbase + 2 * r + 1)}')
        a('s_nop 0')
        a(f'v_cvt_pk_bf16_f32 {vr(pbase + r)}, {vr(tb)}, {vr(tb + 1)}')

def b_prologue(a, opt):
    b_setup_read_addr(a)
    a('s_waitcnt vmcnt(0) lgkmcnt(0)')
    stamp(a, opt, 'e_h')
    a('s_barrier')
    for kb in range(2):
        for s in range(4):
            a(k_read(0, kb, s, base=ST + 8))
    a(f'''
    s_lshl_b32 s3, {sr(sQB)}, 4
    s_lshl_b32 s7, {sr(sW)}, 2
    s_add_u32 s3, s3, s7
    s_mul_i32 s3, s3, {HST()}
    {FB('s7', 's63')}
    s_lshl_b32 s7, s7, 11
    s_add_u32 s3, s3, s7
    s_add_u32 {sr(sHO)}, s3, {WS_H}
    s_mov_b32 s{SRD_WG}, s{SRD_WS}
    s_mov_b32 s{SRD_WG + 1}, s{SRD_WS + 1}
    {FBOK('s7')}
    s_cselect_b32 s{SRD_WG + 2}, 0x10000000, 0
    s_mov_b32 s{SRD_WU}, s{SRD_DBG}
    s_mov_b32 s{SRD_WU + 1}, s{SRD_DBG + 1}
    s_mov_b32 s{SRD_WU + 2}, 0
    s_cmp_eq_u32 {sr(sW)}, 0
    s_cselect_b32 {sr(sXO)}, 4, 64
    v_mov_b32 {vr(ONEV)}, 1
    {TW('s54')}
    s_lshl_b32 s3, s54, 2
    s_bfe_u32 s7, s2, 0x20001
    s_add_u32 s3, s3, s7
    s_mul_i32 s3, s3, 12288
    s_add_u32 s92, s3, {WS_XF}
    s_add_u32 s93, s92, 4096
    s_add_u32 s62, s92, 8192
    s_waitcnt lgkmcnt(0)
    ''')
    h_epilogue(a, [qk_mfma(0, c, kb, s, c0='0') for c in range(4) for kb in range(2) for s in range(4)], b_prologue_dma2())
    stamp(a, opt, 'e_h2')
    for kb in range(2):
        for s in range(4):
            a(k_read(1, kb, s, base=ST + 8))
    for i in range(10):
        a(f'v_mov_b32 {vr(LM + i)}, 0')
    zm = [f'v_mfma_f32_32x32x16_bf16 {ar(O + 16 * i, 16)}, {vr(ZQ, 4)}, {vr(ZQ, 4)}, 0' for i in range(8)]
    m = [ST + c for c in range(4)]; t2 = [ST + 4 + c for c in range(4)]
    for k in range(4):
        a(zm.pop())
        for c in range(4):
            b = Sreg(0, c)
            a([f'v_max3_f32 {vr(m[c])}, {vr(b)}, {vr(b + 1)}, {vr(b + 2)}', f'v_max3_f32 {vr(m[c])}, {vr(m[c])}, {vr(b + 3)}, {vr(b + 4)}',
               f'v_max3_f32 {vr(m[c])}, {vr(m[c])}, {vr(b + 5)}, {vr(b + 6)}', f'v_max_f32 {vr(m[c])}, {vr(m[c])}, {vr(b + 7)}'][k])
    for sw in ('v_permlane32_swap_b32', 'v_permlane16_swap_b32'):
        for c in range(4): a(f'v_mov_b32 {vr(t2[c])}, {vr(m[c])}')
        a(zm.pop())
        for c in range(4): a(f'{sw} {vr(m[c])}, {vr(t2[c])}')
        a(zm.pop())
        for c in range(4): a(f'v_max_f32 {vr(m[c])}, {vr(m[c])}, {vr(t2[c])}')
    for c in range(4):
        for i in range(8):
            a(f'v_sub_f32 {vr(Sreg(0, c) + i)}, {vr(Sreg(0, c) + i)}, {vr(m[c])}')
        for i in range(4):
            a(f'v_sub_f32 {vr(NM + 4 * c + i)}, 0, {vr(m[c])}')
    for e in range(16):
        a(f'v_exp_f32 {vr(128 + e)}, {vr(Sreg(0, 0) + e)}')
    for r in range(8):
        a(f'v_cvt_pk_bf16_f32 {vr(Preg(0, 0) + r)}, {vr(128 + 2 * r)}, {vr(129 + 2 * r)}')
    a('s_waitcnt lgkmcnt(0)')

BIG = [25, 29, 32, 38, 46, 50, 54, 58, 62]
def step_gaps(slot, tag, opt, dma=True, final=False, extra=None, vm=0, nobar=False):
    p = slot & 1
    qk = [qk_mfma(1 - p, c, kb, s) for c in range(4) for kb in range(2) for s in range(4)]
    pv = [pv_mfma(c, p, db) for c in range(4) for db in range(8)]
    mfs = qk[:4] + [sum_mfma(0, p)] + qk[4:] + pv[:4] + [sum_mfma(1, p)] + pv[4:]
    G = [Gap(m) for m in mfs]
    for hf, g0 in ((1, 0), (0, HL)):
        if final and hf == 0:
            continue
        for e in range(16):
            c = 2 * hf + (e >> 3)
            src = (Sreg(p, 2) if hf else Sreg(1 - p, 0)) + e
            G[g0 + 2 * e].valu.append(f'v_exp_f32 {vr(TMP + (e & 3))}, {vr(src)}')
            if e & 1:
                G[g0 + 2 * e + 1].valu.append(f'v_cvt_pk_bf16_f32 {vr(Preg(c, 1 - p) + ((e & 7) >> 1))}, {vr(TMP + ((e - 1) & 3))}, {vr(TMP + (e & 3))}')
    for hf, g0 in ((0, 0), (1, HL)):
        late = final and hf == 1
        G[g0 + (13 if late else 9)].valu.append(f'v_cmp_nle_f32 vcc, {vr(LMreg(hf))}, {vr(THR)}')
        G[g0 + (16 if late else 15)].post += [f's_cbranch_vccnz L_slow{hf}_{tag}', f'L_back{hf}_{tag}:']
        if not final:
            G[g0 + 27].valu.append(f'v_mov_b32 {vr(LOLD(hf))}, {vr(LMreg(hf))}')
    vplace = OPT.get('vplace', [1, 1, 3, 5, 5, 7, 9, 11, 13, 13, 17, 17, 19, 21, 21, 23])
    kplace = [HL + x for x in OPT.get('kplace', (1, 1, 3, 7, 9, 11, 19, 23))]
    for g, x in zip(vplace, [v_read(slot, db, u) for db in range(8) for u in range(2)]):
        G[g].mem.append(x)
    if not final:
        for g, x in zip(kplace, [k_read(slot, kb, s) for kb in range(2) for s in range(4)]):
            G[g].mem.append(x)
    G[HL - 1].pre.append('s_waitcnt lgkmcnt(0)')
    ops = []
    if dma:
        ops = [None] * 4 + stage_dma((slot + 6) & 7, k=dma != 'v')
        if OPT.get('spl', 1):
            G[BIG[4] - 3].pre.append(ops[4][1]); ops[4] = (ops[4][0], ops[4][2])
    if extra:
        ops = extra
    for g, x in zip(BIG if not final else ([25, 29, 33, 38, 42, 47, 52, 56, 60, 64] if len(ops) <= 10 else [3, 7, 11, 15, 19, 23, 27, 30, 34, 38, 42, 47, 51, 55, 59, 63]), ops):
        if x is not None:
            place(G, [x], g, g, cap=9 if final else 2)
    if final and len(ops) > 10:
        G[HL - 1].pre.append('s_barrier')
    if slot & 1 and not nobar:
        G[SL - 1].pre += [f's_waitcnt vmcnt({vm}) lgkmcnt(0)', 's_barrier'] if not final else []
    else:
        G[SL - 1].pre.append('s_waitcnt lgkmcnt(0)')
    if tag[0] == 's':
        for g in G:
            if OPT.get('b_nobar'): g.pre = [x for x in g.pre if x != 's_barrier']
            if OPT.get('b_nodma'): g.mem = [x for x in g.mem if not x.startswith('buffer')]
            if OPT.get('b_nochk'): g.valu = [x for x in g.valu if not x.startswith(('v_cmp', 'v_mov'))]; g.post = [x for x in g.post if x.endswith(':')]
            if OPT.get('b_nowait'): g.pre = [x for x in g.pre if not x.startswith('s_waitcnt')]
    if final:
        for g in G:
            if g.m in qk:
                g.m = 's_nop 0'
    return G

def gapops(G):
    return [[x for x in g.ops() if x is not None] for g in G]

def slow_path(a, p, hf, final=False):
    a.label(f'L_slowfn{hf}_{p}_{int(final)}')
    a('s_nop 15')
    a(f'v_mov_b32 {vr(ST + 8)}, {vr(LOLD(hf))}\nv_mov_b32 {vr(ST + 9)}, {vr(LOLD(hf))}\ns_nop 1\nv_permlane16_swap_b32 {vr(ST + 8)}, {vr(ST + 9)}\nv_add_f32 {vr(ST + 8)}, {vr(ST + 8)}, {vr(ST + 9)}')
    for c in (2 * hf, 2 * hf + 1):
        cur = Sreg(p, c); nxt = Sreg(1 - p, c)
        d = ST + 4 + (c & 1); al = ST + 6 + (c & 1)
        rowmax(a, cur, d, ST + 1)
        a(f'v_max_f32 {vr(d)}, 0, {vr(d)}')
        a(f'v_mov_b32 {vr(ST)}, {vr(ST + 8)}')
        a(f'v_mov_b32 {vr(ST + 1)}, {vr(ST + 8)}')
        a('s_nop 1')
        a(f'v_permlane32_swap_b32 {vr(ST)}, {vr(ST + 1)}')
        a(f'v_log_f32 {vr(ST)}, {vr(ST + (c & 1))}')
        a('s_nop 0')
        a(f'v_max_f32 {vr(d)}, {vr(d)}, {vr(ST)}')
        a(f'v_sub_f32 {vr(al)}, 0, {vr(d)}')
        a(f'v_exp_f32 {vr(al)}, {vr(al)}')
        for i in range(8):
            a(f'v_sub_f32 {vr(cur + i)}, {vr(cur + i)}, {vr(d)}')
        if not final:
            for i in range(8):
                a(f'v_sub_f32 {vr(nxt + i)}, {vr(nxt + i)}, {vr(d)}')
        for i in range(4):
            a(f'v_sub_f32 {vr(NM + 4 * c + i)}, {vr(NM + 4 * c + i)}, {vr(d)}')
        for i in range(32):
            a(f'v_accvgpr_read_b32 {vr(ST + 2)}, {ar(Oreg(c, 0) + i)}')
            a(f'v_mul_f32 {vr(ST + 2)}, {vr(ST + 2)}, {vr(al)}')
            a(f'v_accvgpr_write_b32 {ar(Oreg(c, 0) + i)}, {vr(ST + 2)}')
        softmax_c(a, cur, Preg(c, p), ST + 2)
    a(f'v_cmp_gt_u32 vcc, 32, {vr(LANE)}')
    a('s_nop 1')
    a(f'v_cndmask_b32 {vr(ST)}, {vr(ST + 7)}, {vr(ST + 6)}, vcc')
    a(f'v_mul_f32 {vr(LMreg(hf))}, {vr(LOLD(hf))}, {vr(ST)}')
    a('s_nop 1')
    a(sum_mfma(hf, p))
    a('s_nop 7')
    a('s_setpc_b64 s[98:99]')

SLOW = []; PFX = []
def is_vm(x): return x.startswith(('buffer_', 'global_'))
def vm_between(G, g0, g1):
    return sum(1 for g in G[g0:g1] for x in g.mem if is_vm(x))

def trace_ops(G, lane, n=8):
    for sl in range(n):
        G[sl * SL + 0].pre += ['s_memtime s[100:101]'] + lane(sl)
        G[sl * SL + 56].valu += ['v_cmp_eq_u32 vcc, s95, v1']
        G[sl * SL + 60].valu += ['v_mov_b32 v222, s100']
        G[sl * SL + 64].valu += ['v_cndmask_b32 v221, v221, v222, vcc']

def ALIGN(): return OPT.get('align', False)
def first_pass(a, opt):
    G = []
    for st in range(16):
        G += step_gaps(st & 7, f'f{st}', opt, vm='VM'); SLOW.append((st & 1, f'f{st}', False))
    def at(st, g, x): place(G, [x], st * SL + g, st * SL + g)
    hs = OPT.get('hs', [(0, 62), (1, 62), (6, 62), (7, 62), (8, 62), (9, 62), (14, 65), (15, 65)])
    for k in range(8):
        x = f'buffer_store_dwordx4 {ar(HP + 4 * k, 4)}, {vr(CL16)}, {sr(SRD_WG, 4)}, {sr(sHO)} offen offset:{1024 * (k & 1)} sc1'
        if k in (2, 4, 6): x = (f's_add_u32 {sr(sHO)}, {sr(sHO)}, {HST()}', x)
        if not opt.get('nohst'): at(hs[k][0], hs[k][1], x)
    place(G, wp_addr0(), SL + 25, SL + 45, kind='valu')
    dpos = OPT.get('dpos', [(2, 32), (2, 38), (3, 32), (3, 38), (4, 32), (4, 38), (5, 32), (5, 38)])
    for (st, g), x in zip(dpos, wp_dma()): at(st, g, x)
    place(G, wp_addr1(), 7 * SL + 25, 8 * SL + 45, kind='valu')
    r0 = OPT.get('r0', 10)
    assert r0 % 2 == 0 and dpos[-1][0] <= r0 - 5
    rd = wp_reads()
    sc, stv = wp_stores()
    G[9 * SL + 2].pre += sc[:2]; G[9 * SL + 4].pre += sc[2:6]; G[9 * SL + 6].pre += sc[6:]
    spos = OPT.get('spos', [(10, 62), (10, 65), (11, 62), (12, 62), (12, 65), (13, 62), (14, 62), (15, 62)])
    for k in range(4):
        place(G, rd[4 * k:4 * k + 4], (r0 + k) * SL + 25, (r0 + k) * SL + 29)
    for k, (st, g) in enumerate(spos):
        assert st >= r0 + k // 2
        at(st, g, stv[k])
    for j in range(1, 16, 2):
        n = vm_between(G, 0 if j < 4 else (j - 4) * SL + 59, j * SL + SL - 1)
        G[j * SL + SL - 1].pre = [x.replace('VM', str(min(n, 63))) for x in G[j * SL + SL - 1].pre]
    if opt.get('trace'): trace_ops(G, lambda st: [f's_mov_b32 s95, {63 - st}'], 16)
    a.raw('.p2align 3')
    emit_gaps(a, gapops(G), align=ALIGN())

def phase_b(a, opt):
    b_prologue(a, opt)
    stamp(a, opt, 'B0')
    a(f's_mov_b32 {sr(sCNT)}, 5')
    first_pass(a, opt)
    stamp(a, opt, 'B1')
    a.raw('.p2align 6')
    a.label('L_attn')
    G = []
    for sl in range(8):
        G += step_gaps(sl, f's{sl}', opt, vm=16); SLOW.append((sl & 1, f's{sl}', False))
    G[2 * SL + 23].pre += [f's_cmp_eq_u32 {sr(sCNT)}, {sr(sXO)}', f's_cselect_b32 s{SRD_WU + 2}, 4, 0']
    place(G, [f'buffer_atomic_add {vr(ONEV)}, {vr(CL16)}, {sr(SRD_WU, 4)}, 0 offen sc1'], 2 * SL + 25, 2 * SL + 25)
    if opt.get('trace'): trace_ops(G, lambda sl: [f's_lshl_b32 s95, {sr(sCNT)}, 3', f's_add_u32 s95, s95, {7 - sl}'])
    G[-6].pre.append(f's_sub_u32 {sr(sCNT)}, {sr(sCNT)}, 1')
    G[-4].pre.append(f's_cmp_lg_u32 {sr(sCNT)}, 0')
    G[-1].post.append('s_cbranch_scc1 L_attn')
    emit_gaps(a, gapops(G), align=ALIGN())
    a.raw('.p2align 3')
    G = []
    NPF = OPT.get('npfs', 8)
    pf = [x for t in range(NPF) for x in c_dma(t)]
    extra = {4: pf[:8], 5: pf[8:16], 6: pf[16:24], 7: pf[24:]}
    for sl in range(8):
        g = step_gaps(sl, f't{sl}', opt, dma='v' if sl < 2 else False, final=sl == 7, extra=extra.get(sl), vm={1: 12, 3: 0, 5: 63}.get(sl, 0)); SLOW.append((sl & 1, f't{sl}', sl == 7))
        if sl == 0 and OPT.get('npf', 1):
            g[2].pre += ['s_lshr_b32 s3, s2, 3', 's_lshl_b32 s3, s3, 2', f's_add_u32 s3, s3, {sr(sW)}']
            g[4].pre += ['s_lshr_b32 s7, s3, 4', f's_mul_i32 s7, s7, {WFS}', 's_and_b32 s3, s3, 15']
            g[6].pre += ['s_lshl_b32 s3, s3, 13', 's_add_u32 s3, s3, s7', 's_bfe_u32 s7, s2, 0x20001']
            g[8].pre += ['s_lshl_b32 s7, s7, 17', 's_add_u32 s3, s3, s7', f's_add_u32 s58, s3, {WS_WF + 56 * 4096}']
            g[25].valu.append('v_lshlrev_b32 v4, 7, v1')
        if sl == 4 and OPT.get('npf', 1):
            PFX.append(f'buffer_load_dword v5, v4, {sr(SRD_WS, 4)}, s58 offen sc1')
            g[62].mem.append(PFX[-1])
        if sl == 2:
            su = c_setup_scalar()
            for k in range(0, len(su), 2):
                g[2 + k].pre += su[k:k + 2]
            g[25].mem.append(f'buffer_load_dword {vr(POLLV)}, off, {sr(SRD_DBG, 4)}, 0 sc1')
        if sl == 4:
            g[17].valu.append(f'v_cmp_gt_u32 vcc, 0x100, {vr(POLLV)}')
            g[23].post += ['s_cbranch_vccnz L_pollall', 'L_pollall_ok:']
        G += g
    if opt.get('trace'): trace_ops(G, lambda sl: [f's_mov_b32 s95, {7 - sl}'])
    emit_gaps(a, gapops(G), align=ALIGN())
    stamp(a, opt, 'Bend')
    if opt.get('trace'): a('v_mov_b32 v63, v221')

def finalize_pre(a):
    a(f'''
    s_lshl_b32 s3, {sr(sQB)}, 4
    s_lshl_b32 s7, {sr(sW)}, 2
    s_add_u32 s3, s3, s7
    s_mul_i32 s3, s3, {OST()}
    s_lshl_b32 s7, {sr(sH)}, 12
    s_add_u32 {sr(sOK)}, s3, s7
    ''')
    for hf in range(2):
        a(f'v_mov_b32 {vr(ST + hf)}, {vr(LMreg(hf))}')
    a('s_nop 0')
    for hf in range(2):
        a(f'v_permlane16_swap_b32 {vr(LMreg(hf))}, {vr(ST + hf)}')
    for hf in range(2):
        a(f'v_add_f32 {vr(ST + 2 + 2 * hf)}, {vr(LMreg(hf))}, {vr(ST + hf)}')
        a(f'v_add_f32 {vr(ST + 3 + 2 * hf)}, {vr(LMreg(hf))}, {vr(ST + hf)}')
    a('s_nop 0')
    for hf in range(2):
        a(f'v_permlane32_swap_b32 {vr(ST + 2 + 2 * hf)}, {vr(ST + 3 + 2 * hf)}')
    for c in range(4):
        a(f'v_rcp_f32 {vr(RL + 2 * c)}, {vr(ST + 2 + c)}')
        a(f'v_rcp_f32 {vr(RL + 2 * c + 1)}, {vr(ST + 2 + c)}')

NF = 14; NS = 32
BLK = [0, 1, 2, 3, 8, 9, 4, 5, 6, 7]
sB0 = 56; sB1 = 57
BAD = 8; AAD = 20; CA2 = 192; CB2 = 224
def c_stream(kind):
    st, base, k0, nk, ka = (HST(), WS_H, 0, NF, 0) if kind[0] == 'f' else (OST(), WS_O, 0, NS, 56)
    ops = []
    if 'b' in kind:
        ops += [f's_lshl_b32 s3, {sr(sRB)}, 2', f's_add_u32 s3, s3, {sr(sW)}', f's_mul_i32 s3, s3, {2 * st}', 's_bfe_u32 s7, s2, 0x20001', f's_mul_i32 s7, s7, {nk * 1024}',
                's_add_u32 s3, s3, s7', f's_add_u32 {sr(sB0)}, s3, {(base - 1024) & 0xffffffff}', f's_add_u32 {sr(sB1)}, {sr(sB0)}, {st - 1024}']
    if 'a' in kind:
        ops += [f's_lshl_b32 s3, {sr(sCB)}, 1', f's_lshr_b32 s7, {sr(sW)}, 1', 's_add_u32 s3, s3, s7', f's_mul_i32 s3, s3, {WFS}', 's_bfe_u32 s7, s2, 0x20001', f's_mul_i32 s7, s7, {nk * 4096}',
                's_add_u32 s3, s3, s7', f's_and_b32 s7, {sr(sW)}, 1', 's_lshl_b32 s7, s7, 11', 's_add_u32 s3, s3, s7', f's_add_u32 {sr(sAO)}, s3, {WS_WF + ka * 4096 - 2048 - 4096}']
    return ops
def c_setup_scalar(): return c_stream('fab')
def c_dma(t, what='ab'):
    ops = []
    pre = (f's_add_u32 m0, {sr(sW4K)}, {BLK[t % 10] * STAGE}',)
    if 'b' in what:
        ops += [pre + (f's_add_u32 {sr(sB0)}, {sr(sB0)}, 1024', f'buffer_load_dwordx4 {vr(CL16)}, {sr(SRD_WS, 4)}, {sr(sB0)} offen sc1 lds'),
                (f's_add_u32 {sr(sB1)}, {sr(sB1)}, 1024', f'buffer_load_dwordx4 {vr(CL16)}, {sr(SRD_WS, 4)}, {sr(sB1)} offen offset:1024 sc1 lds')]
        pre = ()
    if 'a' in what:
        ops += [pre + (f's_add_u32 {sr(sAO)}, {sr(sAO)}, 4096', f'buffer_load_dwordx4 {vr(CL16)}, {sr(SRD_WS, 4)}, {sr(sAO)} offen offset:2048 sc1 lds'),
                f'buffer_load_dwordx4 {vr(CL16)}, {sr(SRD_WS, 4)}, {sr(sAO)} offen offset:3072 sc1 lds']
    return ops
def c_reads(t):
    b = BLK[t % 10]; off = (b & 3) * STAGE; st = b >> 2
    out = []
    for k in range(4):
        out.append(f'ds_read_b128 {ar(CA2 + (t & 1) * 16 + 4 * k, 4)}, {vr(AAD + st)} offset:{off + (k >> 1) * 4096 + (k & 1) * 1024}')
        out.append(f'ds_read_b128 {ar(CB2 + (t & 1) * 16 + 4 * k, 4)}, {vr(BAD + 4 * st + k)} offset:{off}')
    return out

def spin(a, name, sleep, body):
    a.label(name)
    a('s_mov_b32 s63, 0x20000')
    a.label(name + '_l')
    a(f's_sub_u32 s63, s63, 1\ns_cbranch_scc1 {name}_ok')
    if sleep: a(f's_sleep {sleep}')
    body(name + '_l')
    a(f's_branch {name}_ok')

def hooks(a):
    def flag(srd_):
        def body(l):
            a(f'buffer_load_dword v5, v4, {sr(srd_, 4)}, 0 offen sc1\ns_waitcnt vmcnt(0)\nv_cmp_ne_u32 vcc, v5, v6\ns_cbranch_vccnz {l}')
        return body
    def cnt(l):
        a(f'buffer_load_dword {vr(POLLV)}, off, {sr(SRD_DBG, 4)}, 0 sc1\ns_waitcnt vmcnt(0)\nv_cmp_gt_u32 vcc, 0x100, {vr(POLLV)}\ns_cbranch_vccnz {l}')
    spin(a, 'L_pollall', 8, cnt)
    spin(a, 'L_po', OPT.get('posleep', 8), flag(SRD_WG))
    spin(a, 'L_pf', 8, flag(SRD_WD))
    spin(a, 'L_ps', OPT.get('pssleep', 12), flag(SRD_WD))

class VM:
    def __init__(self, init): self.ops = list(init); self.done = 0
    def issue(self, tag): self.ops.append(tag); assert len(self.ops) - self.done <= 63, (tag, len(self.ops) - self.done)
    def wait(self, *tags):
        last = max(i for i, t in enumerate(self.ops) if t in tags)
        n = len(self.ops) - 1 - last
        self.done = max(self.done, last + 1)
        return f's_waitcnt vmcnt({n})'

def x_pack(acc, j, tb=160, pb=176):
    rd = [f'v_accvgpr_read_b32 {vr(tb + 4 * nb + i)}, {ar(acc + (nb * 4 + j) * 4 + i)}' for nb in range(4) for i in range(4)]
    cv = [f'v_cvt_pk_bf16_f32 {vr(pb + k)}, {vr(tb + 2 * k)}, {vr(tb + 2 * k + 1)}' for k in range(8)]
    return rd, cv
def x_dest(j, base, r):
    return ['s_bfe_u32 s7, s2, 0x20001', f's_add_u32 s7, s7, {j}', 's_and_b32 s7, s7, 3', 's_lshl_b32 s3, s54, 2', 's_add_u32 s3, s3, s7', 's_mul_i32 s3, s3, 12288',
            f's_add_u32 {r}, s3, {base + (j - 1) * 2048}']
def x_loads(part, reg):
    return [f'buffer_load_dwordx4 {vr(reg + 4 * k, 4)}, {vr(CL16)}, {sr(SRD_WS, 4)}, {XIN[(6 * part + k) >> 2]} offen offset:{1024 * ((6 * part + k) & 3)} sc1' for k in range(6)]
def x_check(a, reg, retry):
    a(f'''
    v_max3_u32 v14, {vr(reg)}, {vr(reg + 4)}, {vr(reg + 8)}
    v_max3_u32 v14, v14, {vr(reg + 12)}, {vr(reg + 16)}
    v_max_u32 v14, v14, {vr(reg + 20)}
    v_cmp_eq_u32 vcc, -1, v14
    s_cbranch_vccnz {retry}
    ''')
def x_add(a, dst, reg):
    for r in range(3):
        for k in range(8):
            a(f'v_lshlrev_b32 {vr(96 + 2 * k)}, 16, {vr(reg + 8 * r + k)}')
            a(f'v_and_b32 {vr(97 + 2 * k)}, 0xffff0000, {vr(reg + 8 * r + k)}')
        for k in range(0, 16, 2):
            a(f'v_pk_add_f32 {vr(dst + k, 2)}, {vr(dst + k, 2)}, {vr(96 + k, 2)}')
def x_accum(dst, src):
    ops = []
    for k in range(8):
        ops += [f'v_lshlrev_b32 v200, 16, {vr(src + k)}', f'v_and_b32 v201, 0xffff0000, {vr(src + k)}',
                f'v_add_f32 {vr(dst + 2 * k)}, {vr(dst + 2 * k)}, v200', f'v_add_f32 {vr(dst + 2 * k + 1)}, {vr(dst + 2 * k + 1)}, v201']
    return ops

def phase_c(a, opt):
    T = NF + NS
    COUT = 23; CXR = 24; GV = 240; XR = 32; SV = 224
    finalize_pre(a)
    NPRE = OPT.get('npre', 4)
    for c in range(NPRE):
        for i in range(32): a(f'v_accvgpr_read_b32 {vr(160 + i)}, {ar(Oreg(c, 0) + i)}')
        for f in range(4):
            for i in range(0, 8, 2): a(f'v_pk_mul_f32 {vr(160 + 8 * f + i, 2)}, {vr(160 + 8 * f + i, 2)}, {vr(RL + 2 * c, 2)}')
            for i in range(4): a(f'v_cvt_pk_bf16_f32 {vr(192 + 4 * f + i)}, {vr(160 + 8 * f + 2 * i)}, {vr(161 + 8 * f + 2 * i)}')
            a(f'buffer_store_dwordx4 {vr(192 + 4 * f, 4)}, {vr(CL16)}, {sr(SRD_WS, 4)}, {sr(sOK)} offen offset:{1024 * f} sc1')
        a(f's_add_u32 {sr(sOK)}, {sr(sOK)}, {OST()}')
    a(f'''
    s_lshr_b32 s7, {sr(sW)}, 1
    s_lshl_b32 s58, s7, 13               ; mh*8192
    s_and_b32 s7, {sr(sW)}, 1
    s_lshl_b32 s7, s7, 13
    s_add_u32 s7, s7, 2048
    v_add_u32 {vr(AAD)}, s7, {vr(CL16)}
    v_add_u32 {vr(AAD + 1)}, 65536, {vr(AAD)}
    v_add_u32 {vr(AAD + 2)}, 131072, {vr(AAD)}
    ''')
    for j in range(4):
        a(f'''
        s_bfe_u32 s3, s2, 0x20001
        s_add_u32 s3, s3, {j}
        s_and_b32 s7, s3, 1
        s_and_b32 s3, s3, 2
        s_lshl_b32 s3, s3, 11
        s_lshl_b32 s7, s7, 10
        s_add_u32 s3, s3, s7
        s_add_u32 s3, s3, s58
        v_add_u32 {vr(BAD + j)}, s3, {vr(CL16)}
        v_add_u32 {vr(BAD + 4 + j)}, 65536, {vr(BAD + j)}
        v_add_u32 {vr(BAD + 8 + j)}, 131072, {vr(BAD + j)}
        ''')
    vm = VM([0] * 4 + [1] * 4 + ['pf'] * len(PFX[-1:]) + [t for t in range(2, OPT.get('npfs', 8)) for _ in range(4)] + ['o'] * (4 * NPRE))
    a(vm.wait(2))
    a('s_barrier')
    for x in c_reads(0): a(x)
    a(f'''
    s_mov_b32 s{SRD_X}, s96
    s_mov_b32 s{SRD_X + 1}, s97
    s_mov_b32 s{SRD_X + 2}, 2097152
    s_mov_b32 s{SRD_X + 3}, 0x20000
    v_lshlrev_b32 v5, 5, v3
    v_lshl_add_u32 {vr(COUT)}, v2, 10, v5
    s_lshl_b32 s3, {sr(sRB)}, 17
    s_lshl_b32 s7, s58, 3
    s_add_u32 s3, s3, s7
    s_bfe_u32 s7, s2, 0x20001
    s_lshl_b32 s7, s7, 14
    s_add_u32 s3, s3, s7
    s_lshl_b32 s7, {sr(sCB)}, 8
    s_add_u32 s3, s3, s7
    s_and_b32 s7, {sr(sW)}, 1
    s_lshl_b32 s7, s7, 7
    s_add_u32 {sr(sOV)}, s3, s7
    s_add_u32 s{SRD_WU}, s{SRD_WS}, s94
    s_addc_u32 s{SRD_WU + 1}, s{SRD_WS + 1}, 0
    s_mov_b32 s{SRD_WU + 2}, 4
    s_lshl_b32 s3, {sr(sRB)}, 10
    s_lshr_b32 s7, s58, 4
    s_add_u32 s3, s3, s7                 ; flag lines of row block 2*RB + mh
    s_bfe_u32 s7, s2, 0x20001
    s_lshl_b32 s7, s7, 7
    s_add_u32 s3, s3, s7
    s_add_u32 s3, s3, {WS_FLAG}
    s_add_u32 s{SRD_WG}, s{SRD_WS}, s3
    s_addc_u32 s{SRD_WG + 1}, s{SRD_WS + 1}, 0
    s_mov_b32 s{SRD_WG + 2}, 32
    s_lshl_b32 s3, s54, 8
    s_add_u32 s3, s3, {WS_FF}
    s_add_u32 s{SRD_WD}, s{SRD_WS}, s3
    s_addc_u32 s{SRD_WD + 1}, s{SRD_WS + 1}, 0
    s_mov_b32 s{SRD_WD + 2}, 16
    s_bfe_u32 s7, s2, 0x20001
    s_lshl_b32 s7, s7, 2
    s_add_u32 s{SRD_WO}, s{SRD_WD}, s7
    s_addc_u32 s{SRD_WO + 1}, s{SRD_WD + 1}, 0
    s_mov_b32 s{SRD_WO + 2}, 4
    v_lshlrev_b32 v4, 2, v1
    v_cmp_gt_u32 vcc, 8, v1
    v_mov_b32 v0, 1
    s_nop 0
    v_cndmask_b32 v6, 0, 1, vcc
    s_waitcnt lgkmcnt(0)
    '''.replace('v_mov_b32 v0, 1', f'v_mov_b32 {vr(ONEV)}, 1'))
    a.raw('.p2align 3')
    NFS = OPT.get('nfs', 4)
    PT = OPT.get('pt', 10)
    flag_t = OPT.get('flag_t', 0)
    U0 = OPT.get('u0', 20)
    cont = OPT.get('cont', 1) and PT <= 10
    if cont: OPT.setdefault('fxlate', 1); OPT.setdefault('fflag', 6 * OPT.get('fsp', 1) + 6)
    for t in range(T):
        acc = ACF if t < NF else ACS_
        first = t in (0, NF)
        u = t - NF
        G = []
        for nb, j in ([(nb, j) for nb in range(4) for j in range(4)] if t < T - 1 else [(nb, j) for j in (1, 2, 3, 0) for nb in range(4)]):
            if True:
                d = ar(acc + (nb * 4 + j) * 4, 4)
                G.append(Gap(mf(d, ar(CA2 + (t & 1) * 16 + 4 * nb, 4), ar(CB2 + (t & 1) * 16 + 4 * j, 4), '0' if first else d)))
        def vmem(g, x, tag):
            place(G, [x], g, None, cap=9); vm.issue(tag)
        if t == PT:
            if PT == NF:
                a(f'buffer_load_dword v5, v4, {sr(SRD_WG, 4)}, 0 offen sc1'); vm.issue('fl')
                for j in range(1, 4):
                    rd, cv = x_pack(ACF, j, 160, 176 + 8 * (j - 1))
                    for x in (['s_nop 4'] if j == 1 else []) + rd + cv: a(x)
            for x in c_stream('sb'): a(x)
            a(vm.wait('fl'))
            a('v_cmp_ne_u32 vcc, v5, v6\ns_cbranch_vccnz L_po\nL_po_ok:')
            stamp(a, opt, 'poll1')
            for tt in range(NF, PT + 8):
                emit_plain(a, c_dma(tt, 'b'))
                for k in range(2): vm.issue(tt)
            a('v_cmp_gt_u32 vcc, 4, v1\ns_nop 1\nv_cndmask_b32 v6, 0, 1, vcc')
            a.raw('.p2align 3')
        if t == NF and cont:
            stamp(a, opt, 's0')
        if t == NF and not cont:
            stamp(a, opt, 'fend')
            fxl = OPT.get('fxlate', 0)
            for j in range(1, 4) if not fxl else []:
                if PT != NF:
                    rd, cv = x_pack(ACF, j, 160, 176 + 8 * (j - 1))
                    for x in (['s_nop 6'] if j == 1 else []) + rd + cv: a(x)
                for x in x_dest(j, WS_XF, 's58'): a(x)
                for k in range(2):
                    a(f'buffer_store_dwordx4 {vr(176 + 8 * (j - 1) + 4 * k, 4)}, {vr(CL16)}, {sr(SRD_WS, 4)}, s58 offen offset:{1024 * k} sc1'); vm.issue('fx')
            a(vm.wait(NF, NF + 1, NF + 2))
            a('s_barrier')
            for x in c_reads(NF): a(x)
            a('s_waitcnt lgkmcnt(0)')
            stamp(a, opt, 's0')
            a.raw('.p2align 3')
        if t + 1 < T and (t + 1 != NF or cont):
            for k, x in zip([0, 1, 3, 4, 5, 7, 8, 9], c_reads(t + 1)): G[k].mem.append(x)
        stores = []
        nf = OPT.get('nf', 4)
        if t < (16 - 4 * NPRE) // nf:
            c = (t * nf + 4 * NPRE) >> 2; f0 = (t * nf) & 3
            for i in range(8 * nf):
                G[i // nf].valu.append(f'v_accvgpr_read_b32 {vr(160 + i)}, {ar(Oreg(c, 2 * f0) + i)}')
            for i in range(0, 8 * nf, 2):
                G[8].valu.append(f'v_pk_mul_f32 {vr(160 + i, 2)}, {vr(160 + i, 2)}, {vr(RL + 2 * c, 2)}')
            G[8].post.append('s_nop 1')
            for f in range(nf):
                for i in range(4):
                    G[9 + f].valu.append(f'v_cvt_pk_bf16_f32 {vr(192 + 4 * f + i)}, {vr(160 + 8 * f + 2 * i)}, {vr(161 + 8 * f + 2 * i)}')
                stores.append((10 + f if nf == 4 else 11 + 4 * f, f'buffer_store_dwordx4 {vr(192 + 4 * f, 4)}, {vr(CL16)}, {sr(SRD_WS, 4)}, {sr(sOK)} offen offset:{1024 * (f0 + f)} sc1', 'o'))
            if f0 + nf == 4: G[15].post.append(f's_add_u32 {sr(sOK)}, {sr(sOK)}, {OST()}')
        todo = []
        ds = {int(k): v for k, v in OPT.get('dsched', {}).items()}
        d = []
        for tn in ds.get(t, [t + 8] if t + 8 < T else []):
            dd = c_dma(tn, 'a' if NF <= tn and t < PT else 'ab')
            if tn == NF:
                dd[0] = tuple(c_stream('sa')) + dd[0]
            d += [(x, tn) for x in dd]
        dp = [2, 6, 10, 14] if len(d) <= 4 else [k * 16 // len(d) for k in range(len(d))]
        if t in ds and t < 8: dp = [0, 2, 4, 6, 8, 9, 10, 12][:len(d)]
        todo += [(g, x, tn) for g, (x, tn) in zip(dp, d)]
        if t == PT - OPT.get('pback', 2) and PT != NF:
            stores += [(0, f'buffer_load_dword v5, v4, {sr(SRD_WG, 4)}, 0 offen sc1', 'fl')]
        fx0 = OPT.get('fxlate', 0)
        fsp = OPT.get('fsp', 1)
        if fx0 and fx0 <= u < fx0 + 6 * fsp and (u - fx0) % (2 * fsp) == 0:
            j = (u - fx0) // (2 * fsp) + 1
            rd, cv = x_pack(ACF, j)
            for k, x in enumerate(rd): G[k // 2].valu.append(x)
            for k, x in enumerate(cv): G[8 + k // 2].valu.append(x)
            G[11].pre += x_dest(j, WS_XF, 's58')
            stores += [(15, f'buffer_store_dwordx4 {vr(176, 4)}, {vr(CL16)}, {sr(SRD_WS, 4)}, s58 offen offset:0 sc1', 'fx')]
        if fx0 and fx0 <= u < fx0 + 6 * fsp and (u - fx0) % (2 * fsp) == fsp:
            stores += [(15, f'buffer_store_dwordx4 {vr(180, 4)}, {vr(CL16)}, {sr(SRD_WS, 4)}, s58 offen offset:1024 sc1', 'fx')]
        if u == U0:
            stores += [(15, f'buffer_load_dword v5, v4, {sr(SRD_WD, 4)}, 0 offen sc1', 'ff')]
        if u == 26:
            stores += [(4 + 6 * k, f'buffer_load_dwordx4 {vr(CXR + 4 * k, 4)}, {vr(COUT)}, {sr(SRD_X, 4)}, {sr(sOV)} offen offset:{16 * k}', 'x') for k in range(2)]
        if u == U0 + 3 + (U0 < 23):
            stores += [(2 * k + (U0 < 21), x, 'fx2') for k, x in enumerate(x_loads(0, XR))]
        for g, x, tag in sorted(todo + stores, key=lambda z: z[0]):
            vmem(g, x, tag)
        if u == 30:
            for j in range(1, 4): G[4 * j].pre += x_dest(j, WS_XF + 6144, f's{55 + j}')
        if t == flag_t:
            G[15].post += [vm.wait('o'), f'buffer_store_dword {vr(ONEV)}, {vr(CL16)}, {sr(SRD_WU, 4)}, 0 offen sc1'] + stamp_op('Oflag'); vm.issue('flag')
        if u == OPT.get('fflag', 8):
            G[15].post += [vm.wait('fx'), f'buffer_store_dword {vr(ONEV)}, {vr(CL16)}, {sr(SRD_WO, 4)}, 0 offen sc1']; vm.issue('flag2')
        if u == 28:
            G[4].pre += [f's_add_u32 s{SRD_WO}, s{SRD_WO}, 128', f's_addc_u32 s{SRD_WO + 1}, s{SRD_WO + 1}, 0']
        if u == 22:
            for k in range(16): G[k].valu.append(f'v_accvgpr_read_b32 {vr(GV + k)}, {ar(ACF + (k >> 2) * 16 + (k & 3))}')
        if u == U0 + 2 + (U0 < 23):
            G[15].post += [vm.wait('ff'), 'v_cmp_ne_u32 vcc, v5, v6', 's_cbranch_vccnz L_pf', 'L_pf_ok:']
        if u == 27:
            G[4].pre += [f's_add_u32 s{SRD_WD}, s{SRD_WD}, 128', f's_addc_u32 s{SRD_WD + 1}, s{SRD_WD + 1}, 0']
        if u == 28:
            G[15].post.append(vm.wait('fx2'))
        if 29 <= u <= 31:
            for k, x in enumerate(x_accum(GV, XR + 8 * (u - 29))): G[k // 2].valu.append(x)
        if t + 1 < T and (t + 1 != NF or cont):
            if (t + 1) % 2 == 0:
                need = [x for x in (t + 2, t + 3) if x < T and (cont or not (t + 1 < NF <= x))]
                assert all(x in vm.ops for x in need), (t, need)
                w = vm.wait(*need) + ' lgkmcnt(0)' if need else 's_waitcnt lgkmcnt(0)'
                G[15].post += [w, 's_barrier']
            else:
                G[15].post.append('s_waitcnt lgkmcnt(0)')
        if opt.get('ctrace'):
            G[0].pre.append(f's_memtime s[100:101]')
            G[14].valu.append(f'v_writelane_b32 v222, s100, {63 - t}')
        emit_gaps(a, gapops(G), align=False)
    stamp(a, opt, 'send')
    for j in range(1, 4):
        rd, cv = x_pack(ACS_, j, 160, 176 + 8 * (j - 1))
        for x in rd + cv: a(x)
        for k in range(2):
            a(f'buffer_store_dwordx4 {vr(176 + 8 * (j - 1) + 4 * k, 4)}, {vr(CL16)}, {sr(SRD_WS, 4)}, s{55 + j} offen offset:{1024 * k} sc1')
    stamp(a, opt, 'xst')
    for k in range(16):
        a(f'v_accvgpr_read_b32 {vr(SV + k)}, {ar(ACS_ + (k >> 2) * 16 + (k & 3))}')
    a('s_waitcnt vmcnt(6)')
    for k in range(8):
        a(f'v_lshlrev_b32 {vr(64 + 2 * k)}, 16, {vr(CXR + k)}')
        a(f'v_and_b32 {vr(65 + 2 * k)}, 0xffff0000, {vr(CXR + k)}')
    for k in range(16): a(f'v_mul_f32 {vr(144 + k)}, {f2u(-math.log2(math.e))}, {vr(GV + k)}')
    for k in range(16): a(f'v_exp_f32 {vr(144 + k)}, {vr(144 + k)}')
    for k in range(16): a(f'v_add_f32 {vr(112 + k)}, 1.0, {vr(144 + k)}')
    for k in range(16): a(f'v_rcp_f32 {vr(112 + k)}, {vr(112 + k)}')
    for k in range(0, 16, 2): a(f'v_pk_mul_f32 {vr(GV + k, 2)}, {vr(GV + k, 2)}, {vr(112 + k, 2)}')
    a(f'''
    s_waitcnt vmcnt(0)
    buffer_store_dword {vr(ONEV)}, {vr(CL16)}, {sr(SRD_WO, 4)}, 0 offen sc1
    {''.join(stamp_op('xack'))}
    s_branch L_ps
    L_ps_ok:
    ''')
    stamp(a, opt, 'xf')
    XS = 32
    for x in x_loads(1, XS): a(x)
    for r in range(3):
        a(f's_waitcnt vmcnt({4 - 2 * r})')
        if r == 2: stamp(a, opt, 'xld')
        for k in range(8):
            a(f'v_lshlrev_b32 {vr(96 + 2 * k)}, 16, {vr(XS + 8 * r + k)}')
            a(f'v_and_b32 {vr(97 + 2 * k)}, 0xffff0000, {vr(XS + 8 * r + k)}')
        for k in range(0, 16, 2):
            a(f'v_pk_add_f32 {vr(SV + k, 2)}, {vr(SV + k, 2)}, {vr(96 + k, 2)}')
    for k in range(0, 16, 2):
        a(f'v_pk_fma_f32 {vr(SV + k, 2)}, {vr(SV + k, 2)}, {vr(GV + k, 2)}, {vr(64 + k, 2)}')
    for k in range(8):
        a(f'v_cvt_pk_bf16_f32 {vr(CXR + k)}, {vr(SV + 2 * k)}, {vr(SV + 1 + 2 * k)}')
    for k in range(2):
        a(f'buffer_store_dwordx4 {vr(CXR + 4 * k, 4)}, {vr(COUT)}, {sr(SRD_OUT, 4)}, {sr(sOV)} offen offset:{16 * k}{OPT.get("outsc", "")}')

OPT = {}
def add_pads(a, period, nchain):
    out = []; addr = 0; nxt = None; pads = []
    lines = a.lines
    for k, l in enumerate(lines):
        t = l.strip()
        if t.startswith('.p2align'):
            al = 1 << int(t.split()[1]); addr = (addr + al - 1) // al * al
        if t == 'L_warmdone:': addr = 0; nxt = period - OPT.get('padoff', 0)
        if t == 'L_end:': nxt = None
        if nxt is not None and addr >= nxt and t.startswith(('v_', 'ds_read', 's_add', 's_mov', 's_lshl', 'buffer_load')) and not lines[k - 1].strip().startswith(('.')):
            out.append(f'L_pad{len(pads)}:'); out.append(f'    PAD{len(pads)}'); pads.append(addr)
            addr += 4; nxt += period
            if ALIGN():
                out.append('    s_nop 0'); addr += 4
        out.append(l); addr += isize(l)
    n = len(pads)
    for k, l in enumerate(out):
        if l.startswith('    PAD'):
            i = int(l[7:])
            out[k] = f'    s_cbranch_execz ' + (f'L_pad{i + nchain}' if i + nchain < n else 'L_warmret')
    a.lines = out
    return n

def gen(opt):
    OPT.clear(); OPT.update(opt)
    SLOW.clear(); STAMPS.clear(); PFX.clear()
    a = A()
    setup(a, opt)
    phase_a(a, opt)
    phase_b(a, opt)
    phase_c(a, opt)
    if opt.get('stamp'):
        a('s_waitcnt vmcnt(0)')
        stamp(a, opt, 'end')
        a(f'''
        s_waitcnt lgkmcnt(0)
        s_lshl_b32 s3, s2, 2
        s_add_u32 s3, s3, {sr(sW)}
        s_lshl_b32 s3, s3, 6
        s_add_u32 s3, s3, {WS_STAMP}
        v_mov_b32 v1, 0
        v_mov_b32 v4, v0
        ''')
        if opt.get('ctrace'): a('v_mov_b32 v63, v222\n; v_cndmask_b32 v221')
        if opt.get('trace') or opt.get('ctrace'):
            a(f's_lshl_b32 s7, s2, 2\ns_add_u32 s7, s7, {sr(sW)}\ns_lshl_b32 s7, s7, 8\ns_add_u32 s7, s7, {WS_STAMP + (1 << 20)}\nv_lshrrev_b32 v20, 2, v7')
            a(f'buffer_store_dword v63, v20, {sr(SRD_WS, 4)}, s7 offen')
        if opt.get('dbgstamp'):
            a(f's_cmp_lg_u32 {sr(sW)}, 0\ns_cbranch_scc1 L_nodbg')
            a('v_not_b32 v20, v0\ns_mov_b64 exec, 1')
            a(f'v_mov_b32 v21, s{sST + 2 * (len(STAMPS) - 1)}')
            a(f'buffer_atomic_umax v20, off, {sr(SRD_DBG, 4)}, 0 offset:56 sc1')
            a(f'buffer_atomic_umax v21, off, {sr(SRD_DBG, 4)}, 0 offset:60 sc1')
            a(f's_cmp_lg_u32 s2, {opt["dbgstamp"]}\ns_cbranch_scc1 L_nodbg')
            for i in range(len(STAMPS)):
                a(f'v_sub_u32 v{22 + i}, s{sST + 2 * i}, v0')
                a(f'buffer_store_dword v{22 + i}, off, {sr(SRD_DBG, 4)}, 0 offset:{4 + 4 * i} sc1')
            a('L_nodbg:\ns_mov_b64 exec, -1')
        for i in range(12): a(f'v_mov_b32 v{5 + i}, s{sST + 2 * i}')
        for i in range(4):
            a(f'buffer_store_dwordx4 v[{4 + 4 * i}:{7 + 4 * i}], v1, {sr(SRD_WS, 4)}, s3 offen offset:{16 * i}')
    a.label('L_end')
    a('s_endpgm')
    hooks(a)
    for p, tag, final in SLOW:
        for hf in range(2):
            a.label(f'L_slow{hf}_{tag}')
            a(f's_call_b64 s[98:99], L_slowfn{hf}_{p}_{int(final)}')
            a(f's_branch L_back{hf}_{tag}')
    for p, final in sorted({(p, f) for p, _, f in SLOW}):
        for hf in range(2):
            slow_path(a, p, hf, final)
    if OPT.get('pad', 4096):
        npad = add_pads(a, OPT.get('pad', 4096), OPT.get('nchain', 4))
        print('pads', npad, file=sys.stderr)
    a.label('L_codeend')
    a('s_endpgm')
    return kernel_file(f'; ost {OST()} hst {HST()}\n; stamps entry ' + ' '.join(STAMPS) + '\n' + a.text(), 'grid=(256,1,1) block=(256,1,1) lds=163840')

if __name__ == '__main__':
    opt = json.loads(sys.argv[2]) if len(sys.argv) > 2 else {}
    open(sys.argv[1], 'w').write(gen(opt))
```

```python
import sys, json, math, struct
sys.path.insert(0, 'gen')
from asmlib import *

def f2u(x): return '0x%08x' % struct.unpack('<I', struct.pack('<f', x))[0]

WS_O = 0; WS_H = 17 << 20; WS_FLAG = 25 << 20; WS_WF = (25 << 20) + 65536; WS_STAMP = 32 << 20; WS_XF = 34 << 20; WS_XS = 41 << 20; WS_FF = 47 << 20
WFS = 184 * 4096
sH = 4; sQB = 5; sW = 6
SRD_K = 8; SRD_V = 12; SRD_WS = 16; SRD_X = 20; SRD_WQ = 24; SRD_WG = 28; SRD_WU = 32; SRD_WO = 36; SRD_WD = 40; SRD_OUT = 44; SRD_DBG = 48
sOK = 52; sOV = 53; sM = 54; sCNT = 55; sT0 = 56; sT1 = 57; sT2 = 58; sT3 = 59
sXO = 60; sQO = 61; sGO = 62; sWB = 63
sW4K = 88; sRB = 89; sCB = 90; sBO = 56; sHO = 91; sWQB = 92; sWGB = 93
sDL = 95
sST = 64
KA = 8; VAA = 16; DK0 = 28; DK1 = 29; DV0 = 30; DV1 = 31; VAB = 244
Q = 32; S = 96; NM = 160; PA = 176; PB = 192; TMP = 208; ST = 212; THR = 234; LANE = 1; LM = 224; RL = 240
O = 0; KF = 128; VF = 160; SIDX = 235; WPR = 224
STAGE = 16384
AQ = 8; AG = 12; AC = 16; AX = 20; DQ = 22; DG = 23; DX = 24
XF = 32; ACQ = 96; SX = 224; CSD = 228; STT = 232; SXX = 240; IDX = 27
AGU = 0; AR = 128; AK = 160
XBUF = 0; WBUF = 65536; CSBUF = 81920
CB = 32
def CAop(sl, nb):
    return ar(192 + sl * 16 + 4 * nb, 4) if sl < 4 else vr(96 + 32 * (sl - 4) + 4 * nb, 4) if sl < 6 else vr(208 + 4 * nb, 4) if sl == 6 else ar(4 * nb, 4)
def CBop(sl, j):
    return vr(32 + sl * 16 + 4 * j, 4) if sl < 4 else vr(112 + 32 * (sl - 4) + 4 * j, 4) if sl < 6 else vr(224 + 4 * j, 4) if sl == 6 else ar(16 + 4 * j, 4)
ACF = 128; ACS_ = 64
CL16 = 7
CRW = 8; CRR = 11; COUT = 12; CXR = 16
sAO = 61; POLLV = 6; ONEV = 223

def OST(): return OPT.get('ost', 136192)
def HST(): return OPT.get('hst', 58368)
XIN = ['s92', 's93', 's62']
def FB(r, t):
    if OPT.get('fbspread', 1): return f's_lshr_b32 {t}, {sr(sH)}, 3\ns_sub_u32 {r}, {sr(sH)}, {t}'
    return f's_mov_b32 {r}, {sr(sH)}'
def FBOK(t):
    if OPT.get('fbspread', 1): return f's_and_b32 {t}, {sr(sH)}, 7\ns_cmp_lg_u32 {t}, 7'
    return f's_cmp_lt_u32 {sr(sH)}, 28'
def TW(r):
    return f's_lshl_b32 {r}, {sr(sRB)}, 2\ns_add_u32 {r}, {r}, {sr(sCB)}\ns_lshl_b32 {r}, {r}, 2\ns_add_u32 {r}, {r}, {sr(sW)}'
def mf(d, a_, b_, c):
    return f'v_mfma_f32_16x16x32_bf16 {d}, {a_}, {b_}, {c}'

class Gap:
    def __init__(self, m):
        self.m = m; self.pre = []; self.mem = []; self.valu = []; self.post = []
    def ops(self):
        return [self.m] + self.pre + self.mem + self.valu + self.post
    def units(self):
        u = 0
        for x in self.mem: u += 2 if x.startswith('buffer') else 0 if x.startswith('s_') else 1
        for x in self.valu: u += 2 if x.startswith(('v_exp', 'v_rcp', 'v_log', 'v_rsq', 'v_permlane')) else 1
        return u

def place(G, ops, lo, hi=None, kind='mem', cap=2):
    g = lo
    for x in ops:
        pre = []
        if isinstance(x, tuple):
            pre, x = list(x[:-1]), x[-1]
        need = 2 if x.startswith(('buffer', 'v_exp', 'v_rcp', 'v_rsq', 'v_log', 'v_permlane')) else 1
        need = min(need, cap)
        while G[g].units() + need > cap:
            g += 1
        if hi is not None:
            assert g <= hi, (x, g, hi)
        if pre:
            if g > 0 and not any(y.startswith('buffer') for y in G[g - 1].mem):
                G[g - 1].pre += pre
            else:
                if ' m0,' in pre[-1]:
                    pre.append('s_nop 0')
                G[g].pre += pre
        getattr(G[g], kind).append(x)
    return g

STAMPS = []
def place_some(G, ops, lo, hi):
    g = lo
    for k, x in enumerate(ops):
        need = 2 if x.startswith(('v_exp', 'v_rcp', 'v_rsq', 'v_log', 'v_permlane')) else 1
        while g <= hi and G[g].units() + need > 2: g += 1
        if g > hi: return list(ops[k:])
        G[g].valu.append(x)
    return []

def stamp_op(name):
    if not OPT.get('stamp') or (OPT.get('only') and name not in OPT['only']):
        return []
    k = len(STAMPS); STAMPS.append(name)
    assert k < 12
    return [f'{"s_memtime" if OPT.get("cyc") else "s_memrealtime"} s[{sST + 2 * k}:{sST + 2 * k + 1}]']
def stamp(a, opt, name):
    for x in stamp_op(name): a(x)

def srd(a, base, lo, hi, nrec, add=None, sub=None):
    if add is not None:
        a(f's_add_u32 s{base}, s{lo}, {add}')
        a(f's_addc_u32 s{base + 1}, s{hi}, 0')
    else:
        a(f's_mov_b32 s{base}, s{lo}')
        a(f's_mov_b32 s{base + 1}, s{hi}')
    if sub is not None:
        a(f's_sub_u32 s{base}, s{base}, {sub}')
        a(f's_subb_u32 s{base + 1}, s{base + 1}, 0')
    a(f's_mov_b32 s{base + 2}, {nrec}')
    a(f's_mov_b32 s{base + 3}, 0x20000')

def HOP(k):
    if not OPT.get('hop'): return ''
    if k == 0:
        return ('s_mov_b64 exec, 0\ns_nop 1\n' + ''.join(f's_cmp_eq_u32 s6, {w}\ns_cbranch_scc1 L_hop{w + 1}\n' for w in range(3)) +
                's_branch L_hop4\nL_hopret:\ns_mov_b64 exec, -1')
    return f'L_hop{k}:\ns_cbranch_execz L_hopret'

def setup(a, opt):
    a(f'''
    s_cmp_ge_u32 s2, 256
    s_cbranch_scc1 L_end
    {("s_memtime" if opt.get("cyc") else "s_memrealtime") + " s[98:99]" if opt.get("stamp") else ""}
    s_load_dwordx16 s[64:79], s[0:1], 0
    s_load_dwordx8 s[80:87], s[0:1], 64
    v_lshrrev_b32 v4, 6, v0
    v_and_b32 v1, 63, v0
    v_readfirstlane_b32 {sr(sW)}, v4
    {HOP(0)}
    s_and_b32 s3, s2, 7
    s_bfe_u32 s7, s2, 0x20003
    s_lshl_b32 s3, s3, 2
    s_add_u32 {sr(sH)}, s3, s7
    s_lshr_b32 {sr(sQB)}, s2, 5
    s_lshl_b32 {sr(sW4K)}, {sr(sW)}, 12
    s_and_b32 s3, s2, 1
    s_lshl_b32 s3, s3, 3
    s_add_u32 {sr(sRB)}, s3, {sr(sQB)}
    s_bfe_u32 {sr(sCB)}, s2, 0x20003
    {"s_mov_b32 s89, 0" if opt.get("x_rb") else ""}
    {"s_mov_b32 s90, 0" if opt.get("x_cb") else ""}
    v_and_b32 v2, 15, v1                ; r = l&15
    v_lshrrev_b32 v3, 4, v1             ; g = l>>4
    ''')
    if OPT.get('ipf', 1):
        a(f'''
        s_getpc_b64 s[100:101]
        L_pc:
        s_lshr_b32 s3, s2, 3
        s_lshl_b32 s3, s3, 2
        s_add_u32 s3, s3, {sr(sW)}
        s_and_b32 s3, s3, 15
        s_lshl_b32 s3, s3, 13
        s_min_u32 s3, s3, L_codeend-L_pc-8192
        v_lshlrev_b32 v4, 7, v1
        v_add_u32 v4, s3, v4
        global_load_dword v26, v4, s[100:101]
        ''')

def setup_x(a, opt):
    a(f's_lshl_b32 s3, {sr(sQB)}, 18\ns_lshl_b32 s7, {sr(sW)}, 16\ns_add_u32 s3, s3, s7')
    a('s_waitcnt lgkmcnt(0)')
    if opt.get('stamp'): a('v_mov_b32 v0, s98')
    if opt.get('early'): a('s_memrealtime vcc')
    if OPT.get('tlb'):
        lst = OPT['tlb']
        a('s_lshr_b32 s7, s2, 3\ns_and_b32 s7, s7, 7\ns_mov_b64 s[100:101], s[64:65]\nv_mov_b32 v4, 0')
        for k, (r, off) in enumerate(lst):
            a(f's_cmp_eq_u32 s7, {k + 1}\ns_cselect_b64 s[100:101], s[{r}:{r + 1}], s[100:101]')
            if off: a(f's_cselect_b32 s8, {off}, 0\nv_max_u32 v4, s8, v4')
        a('global_load_dword v26, v4, s[100:101]')
    srd(a, SRD_X, 64, 65, 65536, add='s3')

def setup_w(a):
    a(f's_lshl_b32 s3, {sr(sH)}, 8')
    srd(a, SRD_WQ, 70, 71, 511 * 8192 + 256, add='s3')
    a(FB('s3', 's7') + f'\ns_lshl_b32 s3, s3, 7\n' + FBOK('s7') + f'\ns_cselect_b32 s3, s3, 0\ns_cselect_b32 s7, {511 * 3584 + 128}, 0')
    srd(a, SRD_WG, 76, 77, 's7', add='s3')
    srd(a, SRD_WU, 78, 79, 's7', add='s3')

def setup_wp(a):
    a('s_cmp_lt_u32 s2, 128\ns_cselect_b32 s72, s72, s80\ns_cselect_b32 s73, s73, s81\ns_and_b32 s3, s2, 127\ns_lshl_b32 s3, s3, 15')
    a('s_cmp_lt_u32 s2, 184\ns_cselect_b32 s3, s3, 0')
    a('s_cselect_b32 s7, 32768, 0\ns_cselect_b32 s74, 0x10000000, 0')
    srd(a, SRD_WO, 72, 73, 's7', add='s3')
    srd(a, SRD_WD, 86, 87, 's74')

def setup2(a, opt):
    a(f's_lshl_b32 s3, {sr(sH)}, 19')
    srd(a, SRD_K, 66, 67, 524288, add='s3')
    srd(a, SRD_V, 68, 69, 524288 + 2048 + 16384, add='s3', sub=2048 + 16384)
    srd(a, SRD_WS, 86, 87, 0x10000000)
    srd(a, SRD_OUT, 82, 83, 2097152)
    srd(a, SRD_DBG, 84, 85, 256)
    a('s_mov_b32 s96, s64\ns_mov_b32 s97, s65')

def a_setup_dma_addr(a):
    a(f'''
    s_lshl_b32 s3, {sr(sW)}, 3
    v_add_u32 v4, s3, v3                 ; row = 8w + (l>>4)
    v_lshlrev_b32 v5, 2, v3
    v_xor_b32 v5, v5, v2
    v_lshlrev_b32 v5, 4, v5
    v_lshl_add_u32 {vr(DQ)}, v4, 13, v5
    v_lshrrev_b32 v4, 3, v1              ; rho = l>>3
    v_and_b32 v5, 3, v4
    v_lshrrev_b32 v6, 5, v1
    v_lshl_add_u32 v5, v6, 3, v5
    s_lshr_b32 s3, {sr(sW)}, 1
    s_lshl_b32 s3, s3, 4
    s_and_b32 s7, {sr(sW)}, 1
    s_lshl_b32 s7, s7, 2
    s_add_u32 s3, s3, s7
    v_add_u32 v5, s3, v5                 ; W row
    v_mul_u32_u24 v5, 3584, v5
    v_lshlrev_b32 v6, 1, v3
    v_and_b32 v7, 7, v1
    v_xor_b32 v6, v6, v7
    v_lshl_add_u32 {vr(DG)}, v6, 4, v5
    v_xor_b32 v6, v3, v7
    v_lshlrev_b32 v6, 4, v6
    v_lshl_add_u32 {vr(DX)}, v4, 10, v6
    v_xor_b32 {vr(DX + 1)}, 64, {vr(DX)}
    ''')

def a_dma_x(j_par):
    ops = []
    for i in range(8):
        pre = []
        if i % 4 == 0:
            pre.append(f's_add_u32 m0, {sr(sT3)}, {XBUF + j_par * 32768 + (i // 4) * 4096}')
        pre.append(f's_add_u32 {sr(sT0 + (i & 1))}, {sr(sXO)}, {i * 8192 - 1024 * (i & 3)}')
        ops.append(tuple(pre) + (f'buffer_load_dwordx4 {vr(DX + (i & 1))}, {sr(SRD_X, 4)}, {sr(sT0 + (i & 1))} offen offset:{1024 * (i & 3)} lds',))
    return ops, [f's_add_u32 {sr(sXO)}, {sr(sXO)}, 128', f's_and_b32 {sr(sXO)}, {sr(sXO)}, 1023']

def a_dma_w():
    ops = []
    for ks in range(2):
        ops.append((f's_add_u32 m0, {sr(sWQB)}, {ks * 16384}', f's_add_u32 {sr(sT0)}, {sr(sQO)}, {ks * 32 * 8192}',
                    f'buffer_load_dwordx4 {vr(DQ)}, {sr(SRD_WQ, 4)}, {sr(sT0)} offen lds'))
        ops.append((f's_add_u32 {sr(sT1)}, {sr(sQO)}, {ks * 32 * 8192 + 4 * 8192 - 1024}',
                    f'buffer_load_dwordx4 {vr(DQ)}, {sr(SRD_WQ, 4)}, {sr(sT1)} offen offset:1024 lds'))
        ops.append((f's_add_u32 m0, {sr(sWGB)}, {ks * 16384}', f's_add_u32 {sr(sT0)}, {sr(sGO)}, {ks * 32 * 3584}',
                    f'buffer_load_dwordx4 {vr(DG)}, {sr(SRD_WG, 4)}, {sr(sT0)} offen lds'))
        ops.append((f's_add_u32 m0, m0, 4096',
                    f'buffer_load_dwordx4 {vr(DG)}, {sr(SRD_WU, 4)}, {sr(sT0)} offen lds'))
    adv = [f's_add_u32 {sr(sQO)}, {sr(sQO)}, {64 * 8192}', f's_and_b32 {sr(sQO)}, {sr(sQO)}, 0x3fffff', f's_lshr_b32 {sr(sGO)}, {sr(sQO)}, 13', f's_mul_i32 {sr(sGO)}, {sr(sGO)}, 3584',
           f's_add_u32 {sr(sWB)}, {sr(sWB)}, 1', f's_cmp_eq_u32 {sr(sWB)}, 3', f's_cselect_b32 {sr(sT2)}, -2, 1', f's_cselect_b32 {sr(sWB)}, 0, {sr(sWB)}',
           f's_lshl_b32 {sr(sT2)}, {sr(sT2)}, 15', f's_add_u32 {sr(sWQB)}, {sr(sWQB)}, {sr(sT2)}', f's_add_u32 {sr(sWGB)}, {sr(sWGB)}, {sr(sT2)}']
    return ops, adv

def emit_plain(a, ops):
    for x in ops:
        if isinstance(x, tuple):
            for y in x[:-1]: a(y)
            if ' m0,' in x[-2]: a('s_nop 0')
            a(x[-1])
        else:
            a(x)

def a_setup_read_addr(a):
    a(f'''
    v_bfe_u32 v4, v1, 2, 2               ; r'
    v_and_b32 v5, 3, v1                  ; c'
    v_lshl_add_u32 v6, v3, 3, v4         ; 8g + r'
    v_lshlrev_b32 v6, 8, v6
    v_lshl_add_u32 v6, v4, 6, v6         ; + (r'<<2)*16
    v_lshl_add_u32 v6, v5, {3 if OPT.get('a_noconf') else 4}, v6         ; + c'*16
    {"v_and_b32 v7, 16, v1" if OPT.get('a_noconf') else ""}
    {"v_lshl_add_u32 v6, v7, 1, v6" if OPT.get('a_noconf') else ""}
    v_add_u32 v6, {WBUF}, v6
    ''')
    for sp in range(4):
        a(f'v_xor_b32 {vr(AQ + sp)}, {sp * 64}, v6')
    a(f'''
    v_bfe_u32 v6, v1, 2, 3               ; rho = 4(g&1) + r'
    v_lshrrev_b32 v7, 1, v6              ; key2
    v_lshlrev_b32 v6, 7, v6
    v_lshl_add_u32 v6, v7, 5, v6
    v_lshl_add_u32 v6, v5, 3, v6
    v_lshrrev_b32 v7, 5, v1
    v_lshl_add_u32 v6, v7, 11, v6
    v_add_u32 v6, {WBUF + 8192}, v6
    ''')
    for nb in range(4):
        a(f'v_xor_b32 {vr(AG + nb)}, {nb * 32}, v6')
    a(f's_cmp_eq_u32 {sr(sW)}, 0\ns_cselect_b64 s[98:99], -1, 0\ns_cmp_lt_u32 {sr(sW)}, 2\ns_cselect_b64 s[100:101], -1, 0')
    a(f's_and_b32 s3, {sr(sW)}, 1\ns_lshl_b32 s3, s3, 12')
    for k in range(4):
        a(f'v_cndmask_b32 v4, {vr(AQ + 2 + (k >> 1))}, {vr(AQ + (k >> 1))}, s[98:99]')
        if k & 1:
            a('v_add_u32 v4, 8, v4')
        a(f'v_add_u32 v5, s3, {vr(AG + k)}')
        a(f'v_cndmask_b32 {vr(AC + k)}, v5, v4, s[100:101]')
    a(f'''
    v_lshrrev_b32 v4, 1, v2
    v_xor_b32 v4, v4, v3
    v_lshlrev_b32 v4, 4, v4
    v_lshl_add_u32 v4, v2, 7, v4
    v_add_u32 {vr(AX)}, {sr(sT3)}, v4
    v_xor_b32 {vr(AX + 1)}, 64, {vr(AX)}
    v_mov_b32 v4, 0x3f803f80
    v_and_b32 v5, 3, v1
    v_mov_b32 v6, 0xeeee
    v_and_b32 v7, 4, v1
    v_cmp_eq_u32 vcc, 0, v7
    v_mov_b32 v7, 0x4444
    v_cmp_eq_u32 s[98:99], 0, v5
    v_cndmask_b32 {vr(IDX)}, v6, v7, vcc
    s_nop 0
    ''')
    for k in range(4):
        a(f'v_cndmask_b32 v6, 0, v4, s[98:99]')
        if k < 3: a(f'v_cmp_eq_u32 s[98:99], {k + 1}, v5')
        for i in range(4):
            a(f'v_accvgpr_write_b32 {ar(AK + 4 * k + i)}, v6')

def Xreg(par, c, ks): return XF + par * 32 + c * 8 + ks * 4
def accA(nb, c):
    return vr(ACQ + (nb * 4 + c) * 4, 4) if nb < 8 else ar(AGU + ((nb - 8) * 4 + c) * 4, 4)
ORDER = [16, 17, 18, 19] + list(range(16))
def a_reads(pos):
    grp = ORDER[pos]
    out = []
    for ks in range(2):
        for u in range(2):
            off = ks * 16384 + u * 1024
            if grp < 8:
                ad = AQ + (grp >> 1); off += 8 * (grp & 1)
            elif grp < 16:
                ad = AG + (grp & 3); off += 4096 * ((grp - 8) >> 2)
            else:
                ad = AC + grp - 16
            out.append(f'ds_read_b64_tr_b16 {ar(AR + (pos & 3) * 8 + ks * 4 + 2 * u, 2)}, {vr(ad)} offset:{off}')
    return out
def x_reads(par):
    return [f'ds_read_b128 {vr(Xreg(par, c, ks), 4)}, {vr(AX + ks)} offset:{XBUF + par * 32768 + c * 2048}' for c in range(4) for ks in range(2)]

def a_superstep(par, first, tail, kv_ops=None, name=None, pre_ops=None, pre_adv=None):
    G = []; start = []
    small = OPT.get('small', 1)
    if small:
        cs = [f'v_smfmac_f32_16x16x64_bf16 {vr(CSD, 4)}, {ar(AK + 4 * k, 4)}, {ar(AR + k * 8, 8)}, {vr(IDX)}' for k in range(4)]
        xs = [f'v_smfmac_f32_16x16x64_bf16 {vr(SX, 4)}, {ar(AK + 4 * k, 4)}, {vr(Xreg(par, k, 0), 8)}, {vr(IDX)}' for k in range(4)]
        sm = [f'v_mfma_f32_4x4x4_16b_bf16 {vr(SXX + 4 * c, 4)}, {vr(Xreg(par, c, 0) + 2 * i, 2)}, {vr(Xreg(par, c, 0) + 2 * i, 2)}, {vr(SXX + 4 * c, 4)}' for i in range(4) for c in range(4)]
        G = [Gap(m) for m in xs[:2] + cs[:2] + sm + xs[2:] + cs[2:]]
        start = [0, 4, 20, 22]
    for pos in range(4 if small else 0, 20):
        grp = ORDER[pos]
        start.append(len(G))
        sl = AR + (pos & 3) * 8
        if grp < 16:
            for c in range(4):
                for ks in range(2):
                    d = accA(grp, c)
                    G.append(Gap(mf(d, ar(sl + 4 * ks, 4), vr(Xreg(par, c, ks), 4), '0' if first and ks == 0 else d)))
        else:
            k = grp - 16
            G.append(Gap(f'v_smfmac_f32_16x16x64_bf16 {vr(CSD, 4)}, {ar(AK + 4 * k, 4)}, {ar(sl, 8)}, {vr(IDX)}'))
            G.append(Gap(f'v_smfmac_f32_16x16x64_bf16 {vr(SX, 4)}, {ar(AK + 4 * k, 4)}, {vr(Xreg(par, k, 0), 8)}, {vr(IDX)}'))
            for ks in range(2):
                d = vr(SXX + 4 * k, 4)
                G.append(Gap(mf(d, vr(Xreg(par, k, ks), 4), vr(Xreg(par, k, ks), 4), '0' if first and ks == 0 else d)))
    start.append(len(G))
    def at(g, x, kind='mem'):
        place(G, [x], g, g, kind=kind)
    rp = OPT.get('a_rp', [0, 1, 2, 3])
    if small:
        for k, x in enumerate(a_reads(2) + a_reads(3) + a_reads(4) + a_reads(5)): at(4 + k, x)
    for grp in range(4 if small else 0, 18):
        for k, x in zip(rp if grp >= 4 else [0, 0, 1, 2], a_reads(grp + 2)):
            at(start[grp] + k, x)
    dm = []
    if tail == 0:
        wops, wadv = a_dma_w(); xops, xadv = a_dma_x(par)
        if OPT.get('a_now'): wops = []
        if OPT.get('a_nox'): xops = []
        dm = wops + xops
        if pre_ops:
            dm = pre_ops + dm
    if kv_ops:
        dm = kv_ops
    free = [start[p] + (5 if p >= 4 else 3) for p in range(18)]
    if small: free = [0, 20] + free[4:]
    if len(dm) > len(free):
        free = [g for p in range(18) for g in ((start[p] + 4, start[p] + 6) if p >= 4 else (start[p] + 3,))]
    pos = free[:len(dm)]
    for g, x in zip(pos, dm):
        if x is not None: at(g, x)
    if tail == 0:
        npre = len(pre_ops) if pre_ops else 0
        if pre_ops:
            for g, adv in pre_adv:
                G[pos[g] + 1].pre += adv
        if wops:
            g = pos[npre + len(wops) - 1]
            G[g + 1].pre += wadv[:4]; G[g + 2].pre += wadv[4:8]; G[g + 3].pre += wadv[8:]
        if xops:
            G[pos[-1] + 1].pre += xadv
    xg = OPT.get('a_xg', 14)
    if tail < 2:
        wg = start[xg] + 3
        npre = len(pre_ops) if pre_ops else 0
        younger = sum(1 for k, g in enumerate(pos) if g < wg and k >= npre and dm[k] is not None)
        assert all(g < wg for g in pos[:npre])
        G[wg].pre.append(f's_waitcnt vmcnt({younger})')
        xr = x_reads(1 - par)
        for k, x in enumerate(xr):
            at(start[xg + k // 4] + 3 + (k % 4) + (1 if G[start[xg + k // 4] + 3 + (k % 4)].units() >= 2 else 0), x) if False else None
        g = wg
        xpos = []
        for x in xr:
            while G[g].units() >= 2 or any(y.startswith('ds_read_b128') for y in G[g].mem): g += 1
            G[g].mem.append(x); xpos.append(g)
        assert xpos[-1] < start[18] - 2, xpos
    if tail == 2:
        w, st, rd = a_stats_ops()
        g = place(G, w[0], start[4] + 5, start[9] + 4, kind='valu')
        place(G, w[1], start[9] + 5, start[10] + 7, cap=1)
        G[start[12] - 1].post += ['s_waitcnt lgkmcnt(4)', 's_barrier']
        place(G, rd, start[14] + 4, start[17] + 7, cap=1)
        rest = place_some(G, st, g, start[20] - 1)
        G[-1].post += ['s_nop 1'] + rest
    seq = [(g, x) for g in range(len(G)) for x in G[g].mem if x.startswith('ds_')]
    if small:
        G[1].pre.append('s_waitcnt lgkmcnt(0)'); G[21].pre.append('s_waitcnt lgkmcnt(8)'); G[23].pre.append('s_waitcnt lgkmcnt(4)')
        G[start[5] - 1].pre.append('s_waitcnt lgkmcnt(4)')
    for grp in range(6 if small else 2, 20):
        if grp == 18:
            continue
        last = max(k for k, (g, x) in enumerate(seq) if x in a_reads(grp) and start[grp - 2] <= g < start[grp - 1])
        n = sum(1 for k, (g, x) in enumerate(seq) if k > last and g < start[grp] - 1)
        G[start[grp] - 1].pre.append(f's_waitcnt lgkmcnt({min(n, 14)})')
    if not small: G[start[1] - 1].pre.append('s_waitcnt lgkmcnt(4)')
    if tail < 2:
        G[start[18] - 1].pre += ['s_waitcnt lgkmcnt(0)', 's_barrier']
        vu = [f'v_add_u32 {vr(AQ + i)}, {sr(sDL)}, {vr(AQ + i)}' for i in range(12)]
        place(G, vu[:4] + vu[8:], start[14], start[17] + 5, kind='valu')
        for k, x in enumerate(a_reads(0)): at(start[18] + k, x)
        for k, x in enumerate(a_reads(1)): at(start[19] + k, x)
        place(G, vu[4:8], start[18], start[19] + 5, kind='valu')
        if not small: G[start[20] - 1].pre.append('s_waitcnt lgkmcnt(4)')
        G[start[13] + 1].pre += [f's_add_u32 {sr(sM)}, {sr(sM)}, 1', f's_cmp_eq_u32 {sr(sM)}, 3', f's_cselect_b32 {sr(sDL)}, -2, 1', f's_cselect_b32 {sr(sM)}, 0, {sr(sM)}']
        G[start[13] + 2].pre += [f's_lshl_b32 {sr(sDL)}, {sr(sDL)}, 15']
    else:
        G[start[18] - 1].pre += ['s_waitcnt lgkmcnt(0)']
    if OPT.get('a_nobar'):
        for g in G: g.pre = [x for x in g.pre if x != 's_barrier']
    if OPT.get('a_nowait'):
        for g in G: g.pre = [x for x in g.pre if not x.startswith('s_waitcnt lgkmcnt')]
    if OPT.get('a_novm'):
        for g in G: g.pre = [x for x in g.pre if not x.startswith('s_waitcnt vmcnt')]
    if OPT.get('a_nords'):
        for g in G: g.mem = [x for x in g.mem if not x.startswith('ds_read_b64')]
    if name:
        so = stamp_op(name)
        if so:
            G[start[18] - 1].post += so
            G[start[19] - 1].pre.append('s_waitcnt lgkmcnt(0)')
    return G

WPA = [240, 241, 242, 243, 252, 253, 254, 255]
def wp_addr0():
    return ['v_lshlrev_b32 v4, 1, v3', 'v_xor_b32 v4, v4, v2', 'v_lshlrev_b32 v4, 4, v4', 'v_lshl_add_u32 v4, v3, 10, v4', 'v_xor_b32 v5, 128, v4']
def wp_dma():
    ops = []
    for i in range(8):
        pre = []
        if i == 0: pre += [f's_lshl_b32 {sr(sT2)}, {sr(sW)}, 8']
        pre += [f's_add_u32 m0, {sr(sT3)}, {131072 + i * 1024}', f's_add_u32 {sr(sT0)}, {sr(sT2)}, {i * 4096}']
        ops.append(tuple(pre) + (f'buffer_load_dwordx4 v{4 + (i & 1)}, {sr(SRD_WO, 4)}, {sr(sT0)} offen lds',))
    return ops
def wp_addr1():
    t0, t1 = WPA[0], WPA[1]
    ops = [f'v_lshrrev_b32 {vr(t0)}, 2, v1', f'v_and_b32 {vr(t1)}, 7, {vr(t0)}', f'v_lshlrev_b32 {vr(t0)}, 8, {vr(t0)}', f'v_lshl_add_u32 {vr(t0)}, {vr(t1)}, 5, {vr(t0)}',
           f'v_and_b32 {vr(t1)}, 3, v1', f'v_lshlrev_b32 {vr(t1)}, 5, {vr(t1)}', f'v_xor_b32 {vr(t0)}, {vr(t1)}, {vr(t0)}', f'v_add_u32 {vr(t0)}, {sr(sT3)}, {vr(t0)}', f'v_add_u32 {vr(t0)}, 131072, {vr(t0)}']
    ops += [f'v_xor_b32 {vr(WPA[db])}, {(db >> 2) * 128 + (db & 3) * 8}, {vr(t0)}' for db in range(1, 8)]
    return ops
def wp_reads():
    return [f'ds_read_b64_tr_b16 {ar(WPR + db * 4 + 2 * u, 2)}, {vr(WPA[db])} offset:{u * 4096}' for db in range(8) for u in range(2)]
def wp_stores():
    st = []
    for db in range(8):
        st.append(f'buffer_store_dwordx4 {ar(WPR + db * 4, 4)}, {vr(CL16)}, {sr(SRD_WD, 4)}, {"s3" if db < 4 else "s7"} offen offset:{1024 * (db & 3)} sc1')
    sc = ['s_sub_u32 s3, s2, 128', 's_add_u32 s7, s2, 56', 's_cmp_lt_u32 s2, 128', 's_cselect_b32 s3, s7, s3', 's_lshl_b32 s3, s3, 12',
          f's_mul_i32 s7, {sr(sW)}, {2 * WFS}', 's_add_u32 s3, s3, s7', f's_add_u32 s3, s3, {WS_WF}', f's_add_u32 s7, s3, {WFS}']
    return sc, st

def wp_store_ops():
    sc, st = wp_stores()
    out = []
    for k, x in enumerate(st):
        out += [tuple(sc) + (x,) if k == 0 else x, None]
    return out

def warmup(a):
    if OPT.get('pad', 4096):
        nch = OPT.get('nchain', 4)
        a('s_mov_b64 exec, 0')
        for w in range(nch - 1):
            a(f's_cmp_eq_u32 {sr(sW)}, {w}\ns_cbranch_scc1 L_pad{w}')
        a(f's_branch L_pad{nch - 1}')
        a.raw('.p2align 12')
        a.label('L_warmdone')
        a.label('L_warmret')
        a('s_mov_b64 exec, -1')

def phase_a(a, opt):
    a(f's_lshl_b32 {sr(sT3)}, {sr(sW)}, 13')
    a_setup_dma_addr(a)
    a(f's_and_b32 s3, s2, {7 if OPT.get("arot", 0) else 0}\ns_lshl_b32 {sr(sXO)}, s3, 7\ns_lshl_b32 {sr(sQO)}, s3, 19\ns_mul_i32 {sr(sGO)}, s3, {64 * 3584}\ns_mov_b32 {sr(sWB)}, 0\ns_mov_b32 {sr(sM)}, 0')
    a(f's_lshl_b32 {sr(sWQB)}, {sr(sW)}, 11\ns_add_u32 {sr(sWQB)}, {sr(sWQB)}, {WBUF}\ns_lshl_b32 {sr(sWGB)}, {sr(sW)}, 10\ns_add_u32 {sr(sWGB)}, {sr(sWGB)}, {WBUF + 8192}')
    xops, xadv = a_dma_x(0); wops, wadv = a_dma_w()
    setup_x(a, opt)
    if OPT.get('b1', 0):
        emit_plain(a, xops[:1])
        setup_w(a)
        w0 = [wops[0], wops[2], wops[3]]
        emit_plain(a, w0)
        emit_plain(a, [(xops[0][0],) + xops[1]] + xops[2:]); emit_plain(a, xadv)
        emit_plain(a, [(wops[0][0],) + wops[1]] + wops[4:]); emit_plain(a, wadv)
    else:
        emit_plain(a, xops); emit_plain(a, xadv)
        setup_w(a)
        emit_plain(a, wops); emit_plain(a, wadv)
    if opt.get('early') and not opt.get('early2'): a('s_memrealtime s[98:99]')
    wm = OPT.get('warmpos', 1)
    if wm == 1: warmup(a)
    xops, xadv = a_dma_x(1); wops, wadv = a_dma_w()
    b = A()
    for i in range(ACQ, ACQ + 4): b(f'v_mov_b32 {vr(i)}, 0')
    setup2(b, opt); setup_wp(b)
    if opt.get('early'):
        b('s_waitcnt lgkmcnt(0)')
        for nm, r in (('karg', 'vcc_lo'), ('i16', 's98')):
            b(f's_mov_b32 s{sST + 2 * len(STAMPS)}, {r}'); STAMPS.append(nm)
    a_setup_read_addr(b); b_setup_dma_addr(b)
    for i in range(ACQ + 4, 256):
        b(f'v_mov_b32 {vr(i)}, 0')
        if (i - ACQ) % 16 == 8 and (i - ACQ) // 16 < 8:
            b(f'v_mfma_f32_32x32x16_bf16 {ar(AGU + 16 * ((i - ACQ) // 16), 16)}, {vr(ACQ, 4)}, {vr(ACQ, 4)}, 0')
    fill = [l.strip() for l in b.lines]
    per = len(fill) // 15 + 1
    k0 = 0
    for k, x in enumerate(xops + wops):
        emit_plain(a, [x])
        if k == 7: emit_plain(a, xadv)
        k1 = min(len(fill), k0 + per)
        while k1 < len(fill) and fill[k1].startswith(('s_addc', 's_subb', 's_cselect')): k1 += 1
        for y in fill[k0:k1]: a(y)
        k0 = k1
    assert k0 == len(fill)
    emit_plain(a, wadv)
    ntouch = 0
    stamp(a, opt, 'issued')
    a(f'''
    s_lshl_b32 s3, {sr(sQB)}, 2
    s_add_u32 s3, s3, {sr(sW)}
    s_lshl_b32 s3, s3, 2
    s_lshr_b32 s7, {sr(sH)}, 3
    s_add_u32 s3, s3, s7
    s_lshl_b32 s3, s3, 5
    s_and_b32 s7, {sr(sH)}, 7
    s_add_u32 s3, s3, s7
    s_lshl_b32 s3, s3, 2
    s_add_u32 s94, s3, {WS_FLAG}
    v_mov_b32 v4, 0
    s_mov_b64 exec, 1
    buffer_store_dword v4, v4, {sr(SRD_WS, 4)}, s94 offen sc1
    {TW('s3')}
    s_lshl_b32 s3, s3, 6
    s_bfe_u32 s7, s2, 0x20001
    s_add_u32 s3, s3, s7
    s_lshl_b32 s3, s3, 2
    s_add_u32 s3, s3, {WS_FF}
    buffer_store_dword v4, v4, {sr(SRD_WS, 4)}, s3 offen sc1
    buffer_store_dword v4, v4, {sr(SRD_WS, 4)}, s3 offen offset:128 sc1
    s_mov_b64 exec, -1
    ''')
    if wm == 2: warmup(a)
    a(f's_waitcnt vmcnt({19 + ntouch})')
    for x in x_reads(0): a(x)
    a('s_waitcnt lgkmcnt(0)\ns_barrier')
    for x in a_reads(0) + a_reads(1): a(x)
    stamp(a, opt, 'A0')
    a('s_waitcnt lgkmcnt(0)' if opt.get('stamp') else 's_waitcnt lgkmcnt(4)')
    a.raw('.p2align 3')
    a(f's_mov_b32 {sr(sCNT)}, 3')
    a.raw('.p2align 3')
    a.label('L_a')
    G = a_superstep(0, False, 0, name='a4') + a_superstep(1, False, 0, name='a5')
    G[-4].pre.append(f's_sub_u32 {sr(sCNT)}, {sr(sCNT)}, 1')
    G[-2].pre.append(f's_cmp_lg_u32 {sr(sCNT)}, 0')
    G[-1].post.append('s_cbranch_scc1 L_a')
    emit_gaps(a, [g.ops() for g in G])
    a.raw('.p2align 3')
    emit_gaps(a, [g.ops() for g in a_superstep(0, False, 1, name='a6', kv_ops=b_prologue_dma()[:12]) + a_superstep(1, False, 2, kv_ops=b_prologue_dma()[12:])])
    stamp(a, opt, 'Aend')
    a_epilogue(a, opt)

def NMEAN(c): return SX + c
def ALPHA(c): return STT + c
def RS2(c): return STT + 4 + c
CSQ = 32; CSG = 160; HP = 224
def a_stats_ops():
    w0 = ['v_lshlrev_b32 v4, 4, v3', f'v_add_u32 v4, {CSBUF}, v4', 'v_lshlrev_b32 v5, 2, v2', f'v_lshl_add_u32 v5, {sr(sW)}, 8, v5', f'v_add_u32 v5, {CSBUF}, v5']
    w0 += [f'v_mov_b32 {vr(STT + k)}, {vr(CSD + k)}' for k in range(4)]
    w0 += [f'v_permlane16_swap_b32 {vr(CSD + k)}, {vr(STT + k)}' for k in range(4)]
    w0 += [f'v_add_f32 {vr(CSD + k)}, {vr(CSD + k)}, {vr(STT + k)}' for k in range(4)]
    w1 = [f'ds_write_b32 v5, {vr(CSD + k)} offset:{64 * k}' for k in range(4)]
    st = ['v_and_b32 v6, 3, v1', 'v_cmp_eq_u32 s[98:99], 1, v6', 'v_cmp_eq_u32 s[100:101], 2, v6', 'v_cmp_eq_u32 vcc, 3, v6',
          ] + (['v_lshrrev_b32 v6, 2, v2', 'v_cmp_eq_u32 s[92:93], v6, v3'] if not OPT.get('small', 1) else [])
    st += [f'v_mov_b32 {vr(STT + 4 + k)}, {vr(SX + k)}' for k in range(4)]
    st += [f'v_permlane16_swap_b32 {vr(SX + k)}, {vr(STT + 4 + k)}' for k in range(4)]
    st += [f'v_add_f32 {vr(SX + k)}, {vr(SX + k)}, {vr(STT + 4 + k)}' for k in range(4)]
    for c in range(4):
        st.append(f'v_mul_f32 {vr(NMEAN(c))}, {f2u(-1 / 512)}, {vr(SX + c)}')
    for k, m in ((1, 's[98:99]'), (2, 's[100:101]'), (3, 'vcc')):
        for c in range(4):
            b = SXX + 4 * c
            st.append(f'v_cndmask_b32 {vr(b)}, {vr(b)}, {vr(b + k)}, {m}')
    for c in range(4 if not OPT.get('small', 1) else 0):
        st.append(f'v_cndmask_b32 {vr(SXX + 4 * c)}, 0, {vr(SXX + 4 * c)}, s[92:93]')
    for sw in ('v_permlane32_swap_b32', 'v_permlane16_swap_b32'):
        for c in range(4): st.append(f'v_mov_b32 {vr(SXX + 4 * c + 1)}, {vr(SXX + 4 * c)}')
        for c in range(4): st.append(f'{sw} {vr(SXX + 4 * c)}, {vr(SXX + 4 * c + 1)}')
        for c in range(4): st.append(f'v_add_f32 {vr(SXX + 4 * c)}, {vr(SXX + 4 * c)}, {vr(SXX + 4 * c + 1)}')
    sc = (128 ** -0.5) * math.log2(math.e)
    for c in range(4): st.append(f'v_mul_f32 {vr(SXX + 4 * c)}, {f2u(1 / 512)}, {vr(SXX + 4 * c)}')
    for c in range(4): st.append(f'v_fma_f32 {vr(SXX + 4 * c)}, -{vr(NMEAN(c))}, {vr(NMEAN(c))}, {vr(SXX + 4 * c)}')
    for c in range(4): st.append(f'v_max_f32 {vr(SXX + 4 * c)}, 0, {vr(SXX + 4 * c)}')
    for c in range(4): st.append(f'v_add_f32 {vr(SXX + 4 * c)}, {f2u(1e-5)}, {vr(SXX + 4 * c)}')
    for c in range(4): st.append(f'v_rsq_f32 {vr(ALPHA(c))}, {vr(SXX + 4 * c)}')
    for c in range(4): st.append(f'v_rcp_f32 {vr(RS2(c))}, {vr(SXX + 4 * c)}')
    for c in range(4): st.append(f'v_mul_f32 {vr(ALPHA(c))}, {f2u(sc)}, {vr(ALPHA(c))}')
    rd = [f'ds_read_b128 {vr(CSQ + 4 * nb, 4)}, v4 offset:{64 * nb}' for nb in range(8)]
    return (w0, w1), st, rd

def bc(r):
    return vr(r & ~1, 2), (r & 1)

def a_epilogue(a, opt):
    for c in range(4):
        nm, nh = bc(NMEAN(c))
        for nb in range(8):
            b = ACQ + (nb * 4 + c) * 4
            for i in (0, 2):
                a(f'v_pk_fma_f32 {vr(b + i, 2)}, {vr(CSQ + 4 * nb + i, 2)}, {nm}, {vr(b + i, 2)} op_sel:[0,{nh},0] op_sel_hi:[1,{nh},1]')
    for c in range(4):
        al, ah = bc(ALPHA(c))
        for nb in range(8):
            b = ACQ + (nb * 4 + c) * 4
            for i in (0, 2):
                a(f'v_pk_mul_f32 {vr(b + i, 2)}, {vr(b + i, 2)}, {al} op_sel:[0,{ah}] op_sel_hi:[1,{ah}]')
            for i in (0, 2):
                a(f'v_cvt_pk_bf16_f32 {vr(Q + 16 * c + 2 * nb + (i >> 1))}, {vr(b + i)}, {vr(b + i + 1)}')
    stamp(a, opt, 'e_q')
    for nb in range(8):
        a(f'ds_read_b128 {vr(CSG + 4 * nb, 4)}, v4 offset:{64 * (8 + nb)}')

def h_epilogue(a, mfmas, vmem):
    mfmas = list(mfmas)
    if OPT.get('x_noh'):
        emit_plain(a, vmem)
        for m in mfmas: a(m)
        a('s_nop 7')
        return
    for c in range(4):
        nm, nh = bc(NMEAN(c)); rs, rh = bc(RS2(c))
        tg = 128; tu = 144
        emit_plain(a, vmem[c:c + 1])
        for k in range(16):
            if k % 2 == 0: a(mfmas.pop(0))
            a(f'v_accvgpr_read_b32 {vr(tg + k)}, {ar(AGU + ((k >> 2) * 4 + c) * 4 + (k & 3))}')
            a(f'v_accvgpr_read_b32 {vr(tu + k)}, {ar(AGU + (((k >> 2) + 4) * 4 + c) * 4 + (k & 3))}')
        for k in range(0, 16, 2):
            a(f'v_pk_fma_f32 {vr(tg + k, 2)}, {vr(CSG + k, 2)}, {nm}, {vr(tg + k, 2)} op_sel:[0,{nh},0] op_sel_hi:[1,{nh},1]')
        for k in range(0, 16, 2):
            a(f'v_pk_fma_f32 {vr(tu + k, 2)}, {vr(CSG + 16 + k, 2)}, {nm}, {vr(tu + k, 2)} op_sel:[0,{nh},0] op_sel_hi:[1,{nh},1]')
        for k in range(0, 16, 2):
            a(f'v_pk_mul_f32 {vr(tg + k, 2)}, {vr(tg + k, 2)}, {rs} op_sel:[0,{rh}] op_sel_hi:[1,{rh}]')
        for k in range(0, 16, 2):
            a(f'v_pk_mul_f32 {vr(tg + k, 2)}, {vr(tg + k, 2)}, {vr(tu + k, 2)}')
        for k in range(8):
            a(f'v_cvt_pk_bf16_f32 {vr(tu + k)}, {vr(tg + 2 * k)}, {vr(tg + 2 * k + 1)}')
        for k in range(8):
            a(f'v_accvgpr_write_b32 {ar(HP + c * 8 + k)}, {vr(tu + k)}')
    assert not mfmas

def Sreg(buf, c, kb=0): return S + buf * 32 + c * 8 + kb * 4
def Qreg(c, s): return Q + c * 16 + s * 4
def Preg(c, par): return (PA if c < 2 else PB) + par * 8 + (c & 1) * 4
def Oreg(c, db): return O + c * 32 + db * 4
def LMreg(hf): return LM + hf * 4
def LOLD(hf): return LM + 8 + hf
SELA = 24; HL = 33; SL = 66
def qk_mfma(buf, c, kb, s, c0=None):
    d = vr(Sreg(buf, c, kb), 4)
    cc = d if s else (c0 if c0 is not None else vr(NM + 4 * c, 4))
    return mf(d, ar(KF + 4 * (kb * 4 + s), 4), vr(Qreg(c, s), 4), cc)
def pv_mfma(c, par, db, c0=None):
    d = ar(Oreg(c, db), 4)
    return mf(d, ar(VF + par * 32 + db * 4, 4), vr(Preg(c, par), 4), d if c0 is None else c0)
def sum_mfma(hf, par):
    return f'v_smfmac_f32_16x16x64_bf16 {vr(LMreg(hf), 4)}, {vr(SELA, 4)}, {vr(Preg(2 * hf, par), 8)}, {vr(SIDX)}'
def k_read(slot, kb, s, base=None):
    if base is not None:
        return f'ds_read_b128 {ar(KF + 4 * (kb * 4 + s), 4)}, {vr(base + s)} offset:{slot * STAGE + kb * 8192}'
    return f'ds_read_b128 {ar(KF + 4 * (kb * 4 + s), 4)}, {vr(KA + 4 * (slot >> 2) + s)} offset:{(slot & 3) * STAGE + kb * 8192}'
def v_read(slot, db, u):
    return f'ds_read_b64_tr_b16 {ar(VF + (slot & 1) * 32 + db * 4 + 2 * u, 2)}, {vr((VAB if slot >= 4 else VAA) + db)} offset:{(slot & 3) * STAGE + u * 8192 + 2048}'
def dma_k(i):
    return f'buffer_load_dwordx4 {vr(DK0 + i)}, {sr(SRD_K, 4)}, {sr(sOK)} offen offset:{1024 * i}{OPT.get("kvsc", "")} lds'
def dma_v(i):
    return f'buffer_load_dwordx4 {vr(DV0 + i)}, {sr(SRD_V, 4)}, {sr(sOK)} offen offset:{2048 + 1024 * i}{OPT.get("kvsc", "")} lds'
def stage_dma(slot, k=True, v=True):
    ops = ([dma_k(0), dma_k(1)] if k else []) + ([dma_v(0), dma_v(1)] if v else [])
    ops[0] = (f's_add_u32 m0, {sr(sW4K)}, {slot * STAGE}', f's_add_u32 {sr(sOK)}, {sr(sOK)}, 8192', ops[0])
    return ops

def b_setup_dma_addr(a):
    a(f'''
    s_lshl_b32 s3, {sr(sW)}, 3
    v_add_u32 v5, s3, v3          ; row = 8w + (l>>4)
    v_and_b32 v7, 15, v5
    v_xor_b32 v7, v7, v2
    v_lshlrev_b32 v7, 4, v7
    v_lshl_add_u32 {vr(DK0)}, v5, 8, v7
    v_xor_b32 {vr(DK1)}, 64, {vr(DK0)}
    v_lshlrev_b32 v7, 1, v3
    v_xor_b32 v7, v7, v2
    v_lshlrev_b32 v7, 4, v7
    v_lshl_add_u32 {vr(DV0)}, v5, 8, v7
    v_xor_b32 {vr(DV1)}, 128, {vr(DV0)}
    s_mov_b32 {sr(sOK)}, {-8192 & 0xffffffff}
    ''')

def b_prologue_dma():
    ops = stage_dma(8, v=False) + stage_dma(9, v=False)
    for sl in range(5):
        ops += stage_dma(sl)
    return ops

def b_prologue_dma2():
    return stage_dma(5)

def b_setup_read_addr(a):
    a(f'''
    v_lshrrev_b32 v4, 3, v2
    v_lshlrev_b32 v4, 12, v4      ; (r>>3)*4096
    v_and_b32 v5, 7, v2
    v_lshl_add_u32 v4, v5, 8, v4  ; + (r&7)*256
    v_xor_b32 v5, v2, v3
    v_lshl_add_u32 v4, v5, 4, v4  ; + (r^g)*16
    ''')
    for s in range(4):
        a(f'v_xor_b32 {vr(KA + s)}, {s * 64}, v4')
        a(f'v_add_u32 {vr(KA + 4 + s)}, 65536, {vr(KA + s)}')
        a(f'v_add_u32 {vr(ST + 8 + s)}, 131072, {vr(KA + s)}')
    a(f'''
    v_bfe_u32 v4, v1, 2, 3        ; row&7
    v_lshlrev_b32 v5, 8, v4
    v_lshl_add_u32 v5, v4, 5, v5
    v_lshrrev_b32 v6, 5, v1
    v_lshl_add_u32 v5, v6, 12, v5
    v_and_b32 v6, 3, v1
    v_lshl_add_u32 v5, v6, 3, v5
    ''')
    for db in range(8):
        a(f'v_xor_b32 {vr(VAA + db)}, {db * 32}, v5')
        a(f'v_add_u32 {vr(VAB + db)}, 65536, {vr(VAA + db)}')
    a(f'''
    v_mov_b32 {vr(THR)}, 0x4e800000      ; 2^30
    v_mov_b32 {vr(SIDX)}, {vr(IDX)}
    v_lshrrev_b32 v4, 3, v2
    v_lshrrev_b32 v5, 5, v1
    v_and_b32 v6, 3, v1
    v_lshl_add_u32 v4, v6, 1, v4
    v_cmp_eq_u32 vcc, v4, v5
    v_mov_b32 v4, 0x3f803f80
    s_nop 0
    v_cndmask_b32 v5, 0, v4, vcc
    ''')
    for i in range(4):
        a(f'v_mov_b32 {vr(SELA + i)}, v5')
    a(f'v_lshlrev_b32 {vr(CL16)}, 4, v1')

def xlane(a, op, dst, t2):
    for sw in ('v_permlane32_swap_b32', 'v_permlane16_swap_b32'):
        a(f'v_mov_b32 {vr(t2)}, {vr(dst)}')
        a('s_nop 1')
        a(f'{sw} {vr(dst)}, {vr(t2)}')
        a(f'{op} {vr(dst)}, {vr(dst)}, {vr(t2)}')

def rowmax(a, base, dst, t2):
    a(f'v_max3_f32 {vr(dst)}, {vr(base)}, {vr(base + 1)}, {vr(base + 2)}')
    a(f'v_max3_f32 {vr(dst)}, {vr(dst)}, {vr(base + 3)}, {vr(base + 4)}')
    a(f'v_max3_f32 {vr(dst)}, {vr(dst)}, {vr(base + 5)}, {vr(base + 6)}')
    a(f'v_max_f32 {vr(dst)}, {vr(dst)}, {vr(base + 7)}')
    xlane(a, 'v_max_f32', dst, t2)

def softmax_c(a, sbase, pbase, tb, n=4):
    for r in range(n):
        a(f'v_exp_f32 {vr(tb)}, {vr(sbase + 2 * r)}')
        a(f'v_exp_f32 {vr(tb + 1)}, {vr(sbase + 2 * r + 1)}')
        a('s_nop 0')
        a(f'v_cvt_pk_bf16_f32 {vr(pbase + r)}, {vr(tb)}, {vr(tb + 1)}')

def b_prologue(a, opt):
    b_setup_read_addr(a)
    a('s_waitcnt vmcnt(0) lgkmcnt(0)')
    stamp(a, opt, 'e_h')
    a('s_barrier')
    for kb in range(2):
        for s in range(4):
            a(k_read(0, kb, s, base=ST + 8))
    a(f'''
    s_lshl_b32 s3, {sr(sQB)}, 4
    s_lshl_b32 s7, {sr(sW)}, 2
    s_add_u32 s3, s3, s7
    s_mul_i32 s3, s3, {HST()}
    {FB('s7', 's63')}
    s_lshl_b32 s7, s7, 11
    s_add_u32 s3, s3, s7
    s_add_u32 {sr(sHO)}, s3, {WS_H}
    s_mov_b32 s{SRD_WG}, s{SRD_WS}
    s_mov_b32 s{SRD_WG + 1}, s{SRD_WS + 1}
    {FBOK('s7')}
    s_cselect_b32 s{SRD_WG + 2}, 0x10000000, 0
    s_mov_b32 s{SRD_WU}, s{SRD_DBG}
    s_mov_b32 s{SRD_WU + 1}, s{SRD_DBG + 1}
    s_mov_b32 s{SRD_WU + 2}, 4
    s_cmp_eq_u32 {sr(sW)}, 0
    s_cselect_b32 {sr(sXO)}, 4, 64
    {TW('s54')}
    s_lshl_b32 s3, s54, 2
    s_bfe_u32 s7, s2, 0x20001
    s_add_u32 s3, s3, s7
    s_mul_i32 s3, s3, 12288
    s_add_u32 s92, s3, {WS_XF}
    s_add_u32 s93, s92, 4096
    s_add_u32 s62, s92, 8192
    s_waitcnt lgkmcnt(0)
    ''')
    h_epilogue(a, [qk_mfma(0, c, kb, s, c0='0') for c in range(4) for kb in range(2) for s in range(4)], b_prologue_dma2())
    stamp(a, opt, 'e_h2')
    for kb in range(2):
        for s in range(4):
            a(k_read(1, kb, s, base=ST + 8))
    for i in range(10):
        a(f'v_mov_b32 {vr(LM + i)}, 0')
    m = [ST + c for c in range(4)]; t2 = [ST + 4 + c for c in range(4)]
    for k in range(4):
        for c in range(4):
            b = Sreg(0, c)
            a([f'v_max3_f32 {vr(m[c])}, {vr(b)}, {vr(b + 1)}, {vr(b + 2)}', f'v_max3_f32 {vr(m[c])}, {vr(m[c])}, {vr(b + 3)}, {vr(b + 4)}',
               f'v_max3_f32 {vr(m[c])}, {vr(m[c])}, {vr(b + 5)}, {vr(b + 6)}', f'v_max_f32 {vr(m[c])}, {vr(m[c])}, {vr(b + 7)}'][k])
    for sw in ('v_permlane32_swap_b32', 'v_permlane16_swap_b32'):
        for c in range(4): a(f'v_mov_b32 {vr(t2[c])}, {vr(m[c])}')
        a('s_nop 0')
        for c in range(4): a(f'{sw} {vr(m[c])}, {vr(t2[c])}')
        for c in range(4): a(f'v_max_f32 {vr(m[c])}, {vr(m[c])}, {vr(t2[c])}')
    for c in range(4):
        for i in range(8):
            a(f'v_sub_f32 {vr(Sreg(0, c) + i)}, {vr(Sreg(0, c) + i)}, {vr(m[c])}')
        for i in range(4):
            a(f'v_sub_f32 {vr(NM + 4 * c + i)}, 0, {vr(m[c])}')
    for e in range(6):
        a(f'v_exp_f32 {vr(128 + e)}, {vr(Sreg(0, 2) + e)}')
    a(f'v_mov_b32 {vr(ONEV)}, 1')
    for r in range(3):
        a(f'v_cvt_pk_bf16_f32 {vr(Preg(2, 0) + r)}, {vr(128 + 2 * r)}, {vr(129 + 2 * r)}')
    a('s_waitcnt lgkmcnt(0)')

BIG = [22, 26, 30, HL + 9, HL + 13, HL + 17, HL + 22, HL + 26, HL + 30]
def step_gaps(slot, tag, opt, dma=True, final=False, extra=None, vm=0, first=None):
    p = slot & 1
    H = 1 - p
    qk = [qk_mfma(1 - p, c, kb, s) for c in (2 * p, 2 * p + 1, 2 * H, 2 * H + 1) for kb in range(2) for s in range(4)]
    pv = []
    for c in (2 * H, 2 * H + 1):
        for db in (range(8) if c & 1 == 0 else range(7, -1, -1)):
            pv += ['s_nop 0' if first == 0 else pv_mfma(c, 1 - p, db, c0='0' if first == 1 else None), pv_mfma(c, p, db, c0='0' if first == 0 else None)]
    mfs = qk[:24] + [sum_mfma(H, p)] + qk[24:] + pv[:24] + [sum_mfma(p, p)] + pv[24:]
    G = [Gap(m) for m in mfs]
    def unit(hf, buf, e0, e1, g0):
        for e in range(e0, e1):
            g = g0 + 2 * (e - e0)
            G[g].valu.append(f'v_exp_f32 {vr(TMP + (e & 3))}, {vr(Sreg(buf, 2 * hf) + e)}')
            if e & 1:
                G[g + 1].valu.append(f'v_cvt_pk_bf16_f32 {vr(Preg(2 * hf, buf) + (e >> 1))}, {vr(TMP + ((e - 1) & 3))}, {vr(TMP + (e & 3))}')
    unit(H, p, 6, 16, 0); unit(p, p, 0, 6, 21); unit(p, p, 6, 16, HL)
    if not final: unit(p, 1 - p, 0, 6, HL + 21)
    for u, (hf, g0) in enumerate(((H, 0), (p, HL))):
        late = final and u == 1
        G[g0 + (31 if late else 28)].valu.append(f'v_cmp_nle_f32 vcc, {vr(LMreg(hf))}, {vr(THR)}')
        G[g0 + 32].post += [f's_cbranch_vccnz L_slow{u}_{tag}', f'L_back{u}_{tag}:']
    G[20].valu.append(f'v_mov_b32 {vr(LOLD(H))}, {vr(LMreg(H))}')
    G[HL + 20].valu.append(f'v_mov_b32 {vr(LOLD(p))}, {vr(LMreg(p))}')
    vplace = [1, 1, 3, 5, 5, 7, 9, 9, 11, 13, 13, 15, 17, 17, 19, 20]
    kplace = [HL + x for x in (1, 1, 3, 5, 5, 7, 11, 15)]
    for g, x in zip(vplace, [v_read(slot, db, u) for db in range(8) for u in range(2)]):
        G[g].mem.append(x)
    if not final:
        for g, x in zip(kplace, [k_read(slot, kb, s) for kb in range(2) for s in range(4)]):
            G[g].mem.append(x)
    G[HL - 1].pre.append('s_waitcnt lgkmcnt(0)')
    ops = []
    if dma:
        ops = [None] * 3 + stage_dma((slot + 6) & 7, k=dma != 'v')
        G[BIG[3] - 3].pre.append(ops[3][1]); ops[3] = (ops[3][0], ops[3][2])
    if extra:
        ops = extra
    for g, x in zip(BIG, ops):
        if x is not None:
            place(G, [x], g, g)
    if slot & 1:
        G[SL - 1].pre += [f's_waitcnt vmcnt({vm}) lgkmcnt(0)', 's_barrier'] if not final else []
    else:
        G[SL - 1].pre.append('s_waitcnt lgkmcnt(0)')
    if final:
        for g in G:
            if g.m in qk:
                g.m = 's_nop 0'
        G[25].pre.append('s_nop 1')
        G[HL + 30].pre.append('s_nop 1')
    return G

def gapops(G):
    return [[x for x in g.ops() if x is not None] for g in G]

def slow_path(a, p, u, final=False):
    hf = (1 - p) if u == 0 else p
    a.label(f'L_slowfn{u}_{p}_{int(final)}')
    a('s_nop 15')
    a(f'v_mov_b32 {vr(ST + 8)}, {vr(LOLD(hf))}\nv_mov_b32 {vr(ST + 9)}, {vr(LOLD(hf))}\ns_nop 1\nv_permlane16_swap_b32 {vr(ST + 8)}, {vr(ST + 9)}\nv_add_f32 {vr(ST + 8)}, {vr(ST + 8)}, {vr(ST + 9)}')
    for c in (2 * hf, 2 * hf + 1):
        cur = Sreg(p, c); nxt = Sreg(1 - p, c)
        d = ST + 4 + (c & 1); al = ST + 6 + (c & 1)
        rowmax(a, cur, d, ST + 1)
        a(f'v_max_f32 {vr(d)}, 0, {vr(d)}')
        a(f'v_mov_b32 {vr(ST)}, {vr(ST + 8)}')
        a(f'v_mov_b32 {vr(ST + 1)}, {vr(ST + 8)}')
        a('s_nop 1')
        a(f'v_permlane32_swap_b32 {vr(ST)}, {vr(ST + 1)}')
        a(f'v_log_f32 {vr(ST)}, {vr(ST + (c & 1))}')
        a('s_nop 0')
        a(f'v_max_f32 {vr(d)}, {vr(d)}, {vr(ST)}')
        a(f'v_sub_f32 {vr(al)}, 0, {vr(d)}')
        a(f'v_exp_f32 {vr(al)}, {vr(al)}')
        for i in range(8):
            a(f'v_sub_f32 {vr(cur + i)}, {vr(cur + i)}, {vr(d)}')
        if not final:
            for i in range(8):
                a(f'v_sub_f32 {vr(nxt + i)}, {vr(nxt + i)}, {vr(d)}')
        for i in range(4):
            a(f'v_sub_f32 {vr(NM + 4 * c + i)}, {vr(NM + 4 * c + i)}, {vr(d)}')
        for i in range(32):
            a(f'v_accvgpr_read_b32 {vr(ST + 2)}, {ar(Oreg(c, 0) + i)}')
            a(f'v_mul_f32 {vr(ST + 2)}, {vr(ST + 2)}, {vr(al)}')
            a(f'v_accvgpr_write_b32 {ar(Oreg(c, 0) + i)}, {vr(ST + 2)}')
        softmax_c(a, cur, Preg(c, p), ST + 2)
        if u == 0:
            for r in range(4):
                x = Preg(c, 1 - p) + r
                a(f'v_lshlrev_b32 {vr(ST + 2)}, 16, {vr(x)}\nv_and_b32 {vr(ST + 3)}, 0xffff0000, {vr(x)}')
                a(f'v_mul_f32 {vr(ST + 2)}, {vr(ST + 2)}, {vr(al)}\nv_mul_f32 {vr(ST + 3)}, {vr(ST + 3)}, {vr(al)}')
                a(f'v_cvt_pk_bf16_f32 {vr(x)}, {vr(ST + 2)}, {vr(ST + 3)}')
        elif not final and c & 1 == 0:
            softmax_c(a, nxt, Preg(c, 1 - p), ST + 2, n=3)
    a(f'v_cmp_gt_u32 vcc, 32, {vr(LANE)}')
    a('s_nop 1')
    a(f'v_cndmask_b32 {vr(ST)}, {vr(ST + 7)}, {vr(ST + 6)}, vcc')
    a(f'v_mul_f32 {vr(LMreg(hf))}, {vr(LOLD(hf))}, {vr(ST)}')
    a('s_nop 1')
    a(sum_mfma(hf, p))
    a('s_nop 7')
    a('s_setpc_b64 s[98:99]')

SLOW = []; PFX = []
def is_vm(x): return x.startswith(('buffer_', 'global_'))
def vm_between(G, g0, g1):
    return sum(1 for g in G[g0:g1] for x in g.mem if is_vm(x))

def trace_ops(G, lane, n=8):
    for sl in range(n):
        G[sl * SL + 0].pre += ['s_memtime s[100:101]'] + lane(sl)
        G[sl * SL + 44].valu += ['v_cmp_eq_u32 vcc, s95, v1']
        G[sl * SL + 48].valu += ['v_mov_b32 v222, s100']
        G[sl * SL + 52].valu += ['v_cndmask_b32 v221, v221, v222, vcc']

def ALIGN(): return OPT.get('align', False)
def first_pass(a, opt):
    G = []
    for st in range(16):
        G += step_gaps(st & 7, f'f{st}', opt, vm='VM', first=st if st < 2 else None); SLOW.append((st & 1, f'f{st}', False))
    def at(st, g, x): place(G, [x], st * SL + g, st * SL + g)
    hs = OPT.get('hs', [(0, 63), (1, 63), (5, 63), (6, 59), (6, 63), (7, 63), (8, 63), (9, 63)])
    for k in range(8):
        x = f'buffer_store_dwordx4 {ar(HP + 4 * k, 4)}, {vr(CL16)}, {sr(SRD_WG, 4)}, {sr(sHO)} offen offset:{1024 * (k & 1)} sc1'
        if k in (2, 4, 6): x = (f's_add_u32 {sr(sHO)}, {sr(sHO)}, {HST()}', x)
        if not opt.get('nohst'): at(hs[k][0], hs[k][1], x)
    place(G, wp_addr0(), SL + 22, SL + 45, kind='valu')
    dpos = OPT.get('dpos', [(2, 26), (2, 30), (3, 26), (3, 30), (4, 26), (4, 30), (5, 26), (5, 30)])
    for (st, g), x in zip(dpos, wp_dma()): at(st, g, x)
    place(G, wp_addr1(), 7 * SL + 22, 9 * SL + 30, kind='valu')
    r0 = OPT.get('r0', 10)
    assert r0 % 2 == 0 and dpos[-1][0] <= r0 - 5
    rd = wp_reads()
    sc, stv = wp_stores()
    G[9 * SL + 2].pre += sc[:2]; G[9 * SL + 4].pre += sc[2:6]; G[9 * SL + 6].pre += sc[6:]
    spos = OPT.get('spos', [(10, 63), (11, 59), (11, 63), (12, 63), (13, 63), (14, 59), (14, 63), (15, 63)])
    for k in range(4):
        place(G, rd[4 * k:4 * k + 4], (r0 + k) * SL + 22, (r0 + k) * SL + 26)
    for k, (st, g) in enumerate(spos):
        assert st >= r0 + k // 2
        at(st, g, stv[k])
    for j in range(1, 16, 2):
        n = vm_between(G, 0 if j < 4 else (j - 4) * SL + BIG[6] + 1, j * SL + SL - 1)
        G[j * SL + SL - 1].pre = [x.replace('VM', str(min(n, 63))) for x in G[j * SL + SL - 1].pre]
    if opt.get('trace'): trace_ops(G, lambda st: [f's_mov_b32 s95, {63 - st}'], 16)
    a.raw('.p2align 3')
    emit_gaps(a, gapops(G), align=ALIGN())

def phase_b(a, opt):
    b_prologue(a, opt)
    stamp(a, opt, 'B0')
    a(f's_mov_b32 {sr(sCNT)}, 5')
    first_pass(a, opt)
    stamp(a, opt, 'B1')
    a.raw('.p2align 6')
    a.label('L_attn')
    G = []
    for sl in range(8):
        G += step_gaps(sl, f's{sl}', opt, vm=16); SLOW.append((sl & 1, f's{sl}', False))
    G[2 * SL + 21].pre += [f's_cmp_eq_u32 {sr(sCNT)}, {sr(sXO)}']
    G[2 * SL + 22].post += ['s_cbranch_scc1 L_cnt', 'L_cnt_ok:']
    if opt.get('trace'): trace_ops(G, lambda sl: [f's_lshl_b32 s95, {sr(sCNT)}, 3', f's_add_u32 s95, s95, {7 - sl}'])
    G[-6].pre.append(f's_sub_u32 {sr(sCNT)}, {sr(sCNT)}, 1')
    G[-4].pre.append(f's_cmp_lg_u32 {sr(sCNT)}, 0')
    G[-1].post.append('s_cbranch_scc1 L_attn')
    emit_gaps(a, gapops(G), align=ALIGN())
    a.raw('.p2align 3')
    G = []
    NPF = OPT.get('npfs', 8)
    pf = [x for t in range(NPF) for x in c_dma(t)]
    extra = {4: pf[:8], 5: pf[8:16], 6: pf[16:24], 7: pf[24:]}
    for sl in range(8):
        g = step_gaps(sl, f't{sl}', opt, dma='v' if sl < 2 else False, final=sl == 7, extra=extra.get(sl), vm={1: 12, 3: 0, 5: 63}.get(sl, 0)); SLOW.append((sl & 1, f't{sl}', sl == 7))
        if sl == 0 and OPT.get('npf', 1):
            g[2].pre += ['s_lshr_b32 s3, s2, 3', 's_lshl_b32 s3, s3, 2', f's_add_u32 s3, s3, {sr(sW)}']
            g[4].pre += ['s_lshr_b32 s7, s3, 4', f's_mul_i32 s7, s7, {WFS}', 's_and_b32 s3, s3, 15']
            g[6].pre += ['s_lshl_b32 s3, s3, 13', 's_add_u32 s3, s3, s7', 's_bfe_u32 s7, s2, 0x20001']
            g[8].pre += ['s_lshl_b32 s7, s7, 17', 's_add_u32 s3, s3, s7', f's_add_u32 s58, s3, {WS_WF + 56 * 4096}']
            g[22].valu.append('v_lshlrev_b32 v4, 7, v1')
        if sl == 4 and OPT.get('npf', 1):
            PFX.append(f'buffer_load_dword v5, v4, {sr(SRD_WS, 4)}, s58 offen sc1')
            g[BIG[8]].mem.append(PFX[-1])
        if sl == 2:
            su = c_setup_scalar()
            for k in range(0, len(su), 2):
                g[2 + k].pre += su[k:k + 2]
            g[22].mem.append(f'buffer_load_dword {vr(POLLV)}, off, {sr(SRD_DBG, 4)}, 0 sc1')
        if sl == 4:
            g[15].valu.append(f'v_cmp_gt_u32 vcc, 0x100, {vr(POLLV)}')
            g[19].post += ['s_cbranch_vccnz L_pollall', 'L_pollall_ok:']
        G += g
    if opt.get('trace'): trace_ops(G, lambda sl: [f's_mov_b32 s95, {7 - sl}'])
    emit_gaps(a, gapops(G), align=ALIGN())
    stamp(a, opt, 'Bend')
    if opt.get('trace'): a('v_mov_b32 v63, v221')

def finalize_pre(a):
    a(f'''
    s_lshl_b32 s3, {sr(sQB)}, 4
    s_lshl_b32 s7, {sr(sW)}, 2
    s_add_u32 s3, s3, s7
    s_mul_i32 s3, s3, {OST()}
    s_lshl_b32 s7, {sr(sH)}, 12
    s_add_u32 {sr(sOK)}, s3, s7
    ''')
    for hf in range(2):
        a(f'v_mov_b32 {vr(ST + hf)}, {vr(LMreg(hf))}')
    a('s_nop 0')
    for hf in range(2):
        a(f'v_permlane16_swap_b32 {vr(LMreg(hf))}, {vr(ST + hf)}')
    for hf in range(2):
        a(f'v_add_f32 {vr(ST + 2 + 2 * hf)}, {vr(LMreg(hf))}, {vr(ST + hf)}')
        a(f'v_add_f32 {vr(ST + 3 + 2 * hf)}, {vr(LMreg(hf))}, {vr(ST + hf)}')
    a('s_nop 0')
    for hf in range(2):
        a(f'v_permlane32_swap_b32 {vr(ST + 2 + 2 * hf)}, {vr(ST + 3 + 2 * hf)}')
    for c in range(4):
        a(f'v_rcp_f32 {vr(RL + 2 * c)}, {vr(ST + 2 + c)}')
        a(f'v_rcp_f32 {vr(RL + 2 * c + 1)}, {vr(ST + 2 + c)}')

NF = 14; NS = 32
BLK = [0, 1, 2, 3, 8, 9, 4, 5, 6, 7]
sB0 = 56; sB1 = 57
BAD = 8; AAD = 20; CA2 = 192; CB2 = 224
def c_stream(kind):
    st, base, k0, nk, ka = (HST(), WS_H, 0, NF, 0) if kind[0] == 'f' else (OST(), WS_O, 0, NS, 56)
    ops = []
    if 'b' in kind:
        ops += [f's_lshl_b32 s3, {sr(sRB)}, 2', f's_add_u32 s3, s3, {sr(sW)}', f's_mul_i32 s3, s3, {2 * st}', 's_bfe_u32 s7, s2, 0x20001', f's_mul_i32 s7, s7, {nk * 1024}',
                's_add_u32 s3, s3, s7', f's_add_u32 {sr(sB0)}, s3, {(base - 1024) & 0xffffffff}', f's_add_u32 {sr(sB1)}, {sr(sB0)}, {st - 1024}']
    if 'a' in kind:
        ops += [f's_lshl_b32 s3, {sr(sCB)}, 1', f's_lshr_b32 s7, {sr(sW)}, 1', 's_add_u32 s3, s3, s7', f's_mul_i32 s3, s3, {WFS}', 's_bfe_u32 s7, s2, 0x20001', f's_mul_i32 s7, s7, {nk * 4096}',
                's_add_u32 s3, s3, s7', f's_and_b32 s7, {sr(sW)}, 1', 's_lshl_b32 s7, s7, 11', 's_add_u32 s3, s3, s7', f's_add_u32 {sr(sAO)}, s3, {WS_WF + ka * 4096 - 2048 - 4096}']
    return ops
def c_setup_scalar(): return c_stream('fab')
def c_dma(t, what='ab'):
    ops = []
    pre = (f's_add_u32 m0, {sr(sW4K)}, {BLK[t % 10] * STAGE}',)
    if 'b' in what:
        ops += [pre + (f's_add_u32 {sr(sB0)}, {sr(sB0)}, 1024', f'buffer_load_dwordx4 {vr(CL16)}, {sr(SRD_WS, 4)}, {sr(sB0)} offen sc1 lds'),
                (f's_add_u32 {sr(sB1)}, {sr(sB1)}, 1024', f'buffer_load_dwordx4 {vr(CL16)}, {sr(SRD_WS, 4)}, {sr(sB1)} offen offset:1024 sc1 lds')]
        pre = ()
    if 'a' in what:
        ops += [pre + (f's_add_u32 {sr(sAO)}, {sr(sAO)}, 4096', f'buffer_load_dwordx4 {vr(CL16)}, {sr(SRD_WS, 4)}, {sr(sAO)} offen offset:2048 sc1 lds'),
                f'buffer_load_dwordx4 {vr(CL16)}, {sr(SRD_WS, 4)}, {sr(sAO)} offen offset:3072 sc1 lds']
    return ops
def c_reads(t):
    b = BLK[t % 10]; off = (b & 3) * STAGE; st = b >> 2
    out = []
    for k in range(4):
        out.append(f'ds_read_b128 {ar(CA2 + (t & 1) * 16 + 4 * k, 4)}, {vr(AAD + st)} offset:{off + (k >> 1) * 4096 + (k & 1) * 1024}')
        out.append(f'ds_read_b128 {ar(CB2 + (t & 1) * 16 + 4 * k, 4)}, {vr(BAD + 4 * st + k)} offset:{off}')
    return out

def spin(a, name, sleep, body):
    a.label(name)
    a('s_mov_b32 s63, 0x20000')
    a.label(name + '_l')
    a(f's_sub_u32 s63, s63, 1\ns_cbranch_scc1 {name}_ok')
    if sleep: a(f's_sleep {sleep}')
    body(name + '_l')
    a(f's_branch {name}_ok')

def hooks(a):
    def flag(srd_):
        def body(l):
            a(f'buffer_load_dword v5, v4, {sr(srd_, 4)}, 0 offen sc1\ns_waitcnt vmcnt(0)\nv_cmp_ne_u32 vcc, v5, v6\ns_cbranch_vccnz {l}')
        return body
    def cnt(l):
        a(f'buffer_load_dword {vr(POLLV)}, off, {sr(SRD_DBG, 4)}, 0 sc1\ns_waitcnt vmcnt(0)\nv_cmp_gt_u32 vcc, 0x100, {vr(POLLV)}\ns_cbranch_vccnz {l}')
    a(f'L_cnt:\nbuffer_atomic_add {vr(ONEV)}, {vr(CL16)}, {sr(SRD_WU, 4)}, 0 offen sc1\ns_branch L_cnt_ok')
    spin(a, 'L_pollall', 8, cnt)
    spin(a, 'L_po', OPT.get('posleep', 8), flag(SRD_WG))
    spin(a, 'L_pf', 8, flag(SRD_WD))
    spin(a, 'L_ps', OPT.get('pssleep', 12), flag(SRD_WD))

class VM:
    def __init__(self, init): self.ops = list(init); self.done = 0
    def issue(self, tag): self.ops.append(tag); assert len(self.ops) - self.done <= 63, (tag, len(self.ops) - self.done)
    def wait(self, *tags):
        last = max(i for i, t in enumerate(self.ops) if t in tags)
        n = len(self.ops) - 1 - last
        self.done = max(self.done, last + 1)
        return f's_waitcnt vmcnt({n})'

def x_pack(acc, j, tb=160, pb=176):
    rd = [f'v_accvgpr_read_b32 {vr(tb + 4 * nb + i)}, {ar(acc + (nb * 4 + j) * 4 + i)}' for nb in range(4) for i in range(4)]
    cv = [f'v_cvt_pk_bf16_f32 {vr(pb + k)}, {vr(tb + 2 * k)}, {vr(tb + 2 * k + 1)}' for k in range(8)]
    return rd, cv
def x_dest(j, base, r):
    return ['s_bfe_u32 s7, s2, 0x20001', f's_add_u32 s7, s7, {j}', 's_and_b32 s7, s7, 3', 's_lshl_b32 s3, s54, 2', 's_add_u32 s3, s3, s7', 's_mul_i32 s3, s3, 12288',
            f's_add_u32 {r}, s3, {base + (j - 1) * 2048}']
def x_loads(part, reg):
    return [f'buffer_load_dwordx4 {vr(reg + 4 * k, 4)}, {vr(CL16)}, {sr(SRD_WS, 4)}, {XIN[(6 * part + k) >> 2]} offen offset:{1024 * ((6 * part + k) & 3)} sc1' for k in range(6)]
def x_check(a, reg, retry):
    a(f'''
    v_max3_u32 v14, {vr(reg)}, {vr(reg + 4)}, {vr(reg + 8)}
    v_max3_u32 v14, v14, {vr(reg + 12)}, {vr(reg + 16)}
    v_max_u32 v14, v14, {vr(reg + 20)}
    v_cmp_eq_u32 vcc, -1, v14
    s_cbranch_vccnz {retry}
    ''')
def x_add(a, dst, reg):
    for r in range(3):
        for k in range(8):
            a(f'v_lshlrev_b32 {vr(96 + 2 * k)}, 16, {vr(reg + 8 * r + k)}')
            a(f'v_and_b32 {vr(97 + 2 * k)}, 0xffff0000, {vr(reg + 8 * r + k)}')
        for k in range(0, 16, 2):
            a(f'v_pk_add_f32 {vr(dst + k, 2)}, {vr(dst + k, 2)}, {vr(96 + k, 2)}')
def x_accum(dst, src):
    ops = []
    for k in range(8):
        ops += [f'v_lshlrev_b32 v200, 16, {vr(src + k)}', f'v_and_b32 v201, 0xffff0000, {vr(src + k)}',
                f'v_add_f32 {vr(dst + 2 * k)}, {vr(dst + 2 * k)}, v200', f'v_add_f32 {vr(dst + 2 * k + 1)}, {vr(dst + 2 * k + 1)}, v201']
    return ops

def phase_c(a, opt):
    T = NF + NS
    COUT = 23; CXR = 24; GV = 240; XR = 32; SV = 224
    finalize_pre(a)
    NPRE = OPT.get('npre', 4)
    lastpv = [pv_mfma(c, 1, db) for c in (2, 3) for db in range(8)]
    assert NPRE == 4
    for c in range(NPRE):
        for i in range(32):
            if c < 2 and i % 4 == 0: a(lastpv.pop(0))
            a(f'v_accvgpr_read_b32 {vr(128 + i)}, {ar(Oreg(c, 0) + i)}')
        for f in range(4):
            for i in range(0, 8, 2): a(f'v_pk_mul_f32 {vr(128 + 8 * f + i, 2)}, {vr(128 + 8 * f + i, 2)}, {vr(RL + 2 * c, 2)}')
            for i in range(4): a(f'v_cvt_pk_bf16_f32 {vr(160 + 4 * f + i)}, {vr(128 + 8 * f + 2 * i)}, {vr(129 + 8 * f + 2 * i)}')
            a(f'buffer_store_dwordx4 {vr(160 + 4 * f, 4)}, {vr(CL16)}, {sr(SRD_WS, 4)}, {sr(sOK)} offen offset:{1024 * f} sc1')
        a(f's_add_u32 {sr(sOK)}, {sr(sOK)}, {OST()}')
    a(f'''
    s_lshr_b32 s7, {sr(sW)}, 1
    s_lshl_b32 s58, s7, 13               ; mh*8192
    s_and_b32 s7, {sr(sW)}, 1
    s_lshl_b32 s7, s7, 13
    s_add_u32 s7, s7, 2048
    v_add_u32 {vr(AAD)}, s7, {vr(CL16)}
    v_add_u32 {vr(AAD + 1)}, 65536, {vr(AAD)}
    v_add_u32 {vr(AAD + 2)}, 131072, {vr(AAD)}
    ''')
    for j in range(4):
        a(f'''
        s_bfe_u32 s3, s2, 0x20001
        s_add_u32 s3, s3, {j}
        s_and_b32 s7, s3, 1
        s_and_b32 s3, s3, 2
        s_lshl_b32 s3, s3, 11
        s_lshl_b32 s7, s7, 10
        s_add_u32 s3, s3, s7
        s_add_u32 s3, s3, s58
        v_add_u32 {vr(BAD + j)}, s3, {vr(CL16)}
        v_add_u32 {vr(BAD + 4 + j)}, 65536, {vr(BAD + j)}
        v_add_u32 {vr(BAD + 8 + j)}, 131072, {vr(BAD + j)}
        ''')
    vm = VM([0] * 4 + [1] * 4 + ['pf'] * len(PFX[-1:]) + [t for t in range(2, OPT.get('npfs', 8)) for _ in range(4)] + ['o'] * (4 * NPRE))
    a(vm.wait(2))
    a('s_barrier')
    for x in c_reads(0): a(x)
    a(f'''
    s_mov_b32 s{SRD_X}, s96
    s_mov_b32 s{SRD_X + 1}, s97
    s_mov_b32 s{SRD_X + 2}, 2097152
    s_mov_b32 s{SRD_X + 3}, 0x20000
    v_lshlrev_b32 v5, 5, v3
    v_lshl_add_u32 {vr(COUT)}, v2, 10, v5
    s_lshl_b32 s3, {sr(sRB)}, 17
    s_lshl_b32 s7, s58, 3
    s_add_u32 s3, s3, s7
    s_bfe_u32 s7, s2, 0x20001
    s_lshl_b32 s7, s7, 14
    s_add_u32 s3, s3, s7
    s_lshl_b32 s7, {sr(sCB)}, 8
    s_add_u32 s3, s3, s7
    s_and_b32 s7, {sr(sW)}, 1
    s_lshl_b32 s7, s7, 7
    s_add_u32 {sr(sOV)}, s3, s7
    s_add_u32 s{SRD_WU}, s{SRD_WS}, s94
    s_addc_u32 s{SRD_WU + 1}, s{SRD_WS + 1}, 0
    s_mov_b32 s{SRD_WU + 2}, 4
    s_lshl_b32 s3, {sr(sRB)}, 10
    s_lshr_b32 s7, s58, 4
    s_add_u32 s3, s3, s7                 ; flag lines of row block 2*RB + mh
    s_bfe_u32 s7, s2, 0x20001
    s_lshl_b32 s7, s7, 7
    s_add_u32 s3, s3, s7
    s_add_u32 s3, s3, {WS_FLAG}
    s_add_u32 s{SRD_WG}, s{SRD_WS}, s3
    s_addc_u32 s{SRD_WG + 1}, s{SRD_WS + 1}, 0
    s_mov_b32 s{SRD_WG + 2}, 32
    s_lshl_b32 s3, s54, 8
    s_add_u32 s3, s3, {WS_FF}
    s_add_u32 s{SRD_WD}, s{SRD_WS}, s3
    s_addc_u32 s{SRD_WD + 1}, s{SRD_WS + 1}, 0
    s_mov_b32 s{SRD_WD + 2}, 16
    s_bfe_u32 s7, s2, 0x20001
    s_lshl_b32 s7, s7, 2
    s_add_u32 s{SRD_WO}, s{SRD_WD}, s7
    s_addc_u32 s{SRD_WO + 1}, s{SRD_WD + 1}, 0
    s_mov_b32 s{SRD_WO + 2}, 4
    v_lshlrev_b32 v4, 2, v1
    v_cmp_gt_u32 vcc, 8, v1
    v_mov_b32 v0, 1
    s_nop 0
    v_cndmask_b32 v6, 0, 1, vcc
    s_waitcnt lgkmcnt(0)
    '''.replace('v_mov_b32 v0, 1', f'v_mov_b32 {vr(ONEV)}, 1'))
    a.raw('.p2align 3')
    NFS = OPT.get('nfs', 4)
    PT = OPT.get('pt', 10)
    flag_t = OPT.get('flag_t', 0)
    U0 = OPT.get('u0', 20)
    cont = OPT.get('cont', 1) and PT <= 10
    if cont: OPT.setdefault('fxlate', 1); OPT.setdefault('fflag', 6 * OPT.get('fsp', 1) + 6)
    for t in range(T):
        acc = ACF if t < NF else ACS_
        first = t in (0, NF)
        u = t - NF
        G = []
        for nb, j in ([(nb, j) for nb in range(4) for j in range(4)] if t < T - 1 else [(nb, j) for j in (1, 2, 3, 0) for nb in range(4)]):
            if True:
                d = ar(acc + (nb * 4 + j) * 4, 4)
                G.append(Gap(mf(d, ar(CA2 + (t & 1) * 16 + 4 * nb, 4), ar(CB2 + (t & 1) * 16 + 4 * j, 4), '0' if first else d)))
        def vmem(g, x, tag):
            place(G, [x], g, None, cap=9); vm.issue(tag)
        if t == PT:
            if PT == NF:
                a(f'buffer_load_dword v5, v4, {sr(SRD_WG, 4)}, 0 offen sc1'); vm.issue('fl')
                for j in range(1, 4):
                    rd, cv = x_pack(ACF, j, 160, 176 + 8 * (j - 1))
                    for x in (['s_nop 4'] if j == 1 else []) + rd + cv: a(x)
            for x in c_stream('sb'): a(x)
            a(vm.wait('fl'))
            a('v_cmp_ne_u32 vcc, v5, v6\ns_cbranch_vccnz L_po\nL_po_ok:')
            stamp(a, opt, 'poll1')
            for tt in range(NF, PT + 8):
                emit_plain(a, c_dma(tt, 'b'))
                for k in range(2): vm.issue(tt)
            a('v_cmp_gt_u32 vcc, 4, v1\ns_nop 1\nv_cndmask_b32 v6, 0, 1, vcc')
            a.raw('.p2align 3')
        if t == NF and cont:
            stamp(a, opt, 's0')
        if t == NF and not cont:
            stamp(a, opt, 'fend')
            fxl = OPT.get('fxlate', 0)
            for j in range(1, 4) if not fxl else []:
                if PT != NF:
                    rd, cv = x_pack(ACF, j, 160, 176 + 8 * (j - 1))
                    for x in (['s_nop 6'] if j == 1 else []) + rd + cv: a(x)
                for x in x_dest(j, WS_XF, 's58'): a(x)
                for k in range(2):
                    a(f'buffer_store_dwordx4 {vr(176 + 8 * (j - 1) + 4 * k, 4)}, {vr(CL16)}, {sr(SRD_WS, 4)}, s58 offen offset:{1024 * k} sc1'); vm.issue('fx')
            a(vm.wait(NF, NF + 1, NF + 2))
            a('s_barrier')
            for x in c_reads(NF): a(x)
            a('s_waitcnt lgkmcnt(0)')
            stamp(a, opt, 's0')
            a.raw('.p2align 3')
        if t + 1 < T and (t + 1 != NF or cont):
            for k, x in zip([0, 1, 3, 4, 5, 7, 8, 9], c_reads(t + 1)): G[k].mem.append(x)
        stores = []
        nf = OPT.get('nf', 4)
        if t < (16 - 4 * NPRE) // nf:
            c = (t * nf + 4 * NPRE) >> 2; f0 = (t * nf) & 3
            for i in range(8 * nf):
                G[i // nf].valu.append(f'v_accvgpr_read_b32 {vr(160 + i)}, {ar(Oreg(c, 2 * f0) + i)}')
            for i in range(0, 8 * nf, 2):
                G[8].valu.append(f'v_pk_mul_f32 {vr(160 + i, 2)}, {vr(160 + i, 2)}, {vr(RL + 2 * c, 2)}')
            G[8].post.append('s_nop 1')
            for f in range(nf):
                for i in range(4):
                    G[9 + f].valu.append(f'v_cvt_pk_bf16_f32 {vr(192 + 4 * f + i)}, {vr(160 + 8 * f + 2 * i)}, {vr(161 + 8 * f + 2 * i)}')
                stores.append((10 + f if nf == 4 else 11 + 4 * f, f'buffer_store_dwordx4 {vr(192 + 4 * f, 4)}, {vr(CL16)}, {sr(SRD_WS, 4)}, {sr(sOK)} offen offset:{1024 * (f0 + f)} sc1', 'o'))
            if f0 + nf == 4: G[15].post.append(f's_add_u32 {sr(sOK)}, {sr(sOK)}, {OST()}')
        todo = []
        ds = {int(k): v for k, v in OPT.get('dsched', {}).items()}
        d = []
        for tn in ds.get(t, [t + 8] if t + 8 < T else []):
            dd = c_dma(tn, 'a' if NF <= tn and t < PT else 'ab')
            if tn == NF:
                dd[0] = tuple(c_stream('sa')) + dd[0]
            d += [(x, tn) for x in dd]
        dp = [2, 6, 10, 14] if len(d) <= 4 else [k * 16 // len(d) for k in range(len(d))]
        if t in ds and t < 8: dp = [0, 2, 4, 6, 8, 9, 10, 12][:len(d)]
        todo += [(g, x, tn) for g, (x, tn) in zip(dp, d)]
        if t == PT - OPT.get('pback', 2) and PT != NF:
            stores += [(0, f'buffer_load_dword v5, v4, {sr(SRD_WG, 4)}, 0 offen sc1', 'fl')]
        fx0 = OPT.get('fxlate', 0)
        fsp = OPT.get('fsp', 1)
        if fx0 and fx0 <= u < fx0 + 6 * fsp and (u - fx0) % (2 * fsp) == 0:
            j = (u - fx0) // (2 * fsp) + 1
            rd, cv = x_pack(ACF, j)
            for k, x in enumerate(rd): G[k // 2].valu.append(x)
            for k, x in enumerate(cv): G[8 + k // 2].valu.append(x)
            G[11].pre += x_dest(j, WS_XF, 's58')
            stores += [(15, f'buffer_store_dwordx4 {vr(176, 4)}, {vr(CL16)}, {sr(SRD_WS, 4)}, s58 offen offset:0 sc1', 'fx')]
        if fx0 and fx0 <= u < fx0 + 6 * fsp and (u - fx0) % (2 * fsp) == fsp:
            stores += [(15, f'buffer_store_dwordx4 {vr(180, 4)}, {vr(CL16)}, {sr(SRD_WS, 4)}, s58 offen offset:1024 sc1', 'fx')]
        if u == U0:
            stores += [(15, f'buffer_load_dword v5, v4, {sr(SRD_WD, 4)}, 0 offen sc1', 'ff')]
        if u == 26:
            stores += [(4 + 6 * k, f'buffer_load_dwordx4 {vr(CXR + 4 * k, 4)}, {vr(COUT)}, {sr(SRD_X, 4)}, {sr(sOV)} offen offset:{16 * k}', 'x') for k in range(2)]
        if u == U0 + 3 + (U0 < 23):
            stores += [(2 * k + (U0 < 21), x, 'fx2') for k, x in enumerate(x_loads(0, XR))]
        for g, x, tag in sorted(todo + stores, key=lambda z: z[0]):
            vmem(g, x, tag)
        if u == 30:
            for j in range(1, 4): G[4 * j].pre += x_dest(j, WS_XF + 6144, f's{55 + j}')
        if t == flag_t:
            G[15].post += [vm.wait('o'), f'buffer_store_dword {vr(ONEV)}, {vr(CL16)}, {sr(SRD_WU, 4)}, 0 offen sc1'] + stamp_op('Oflag'); vm.issue('flag')
        if u == OPT.get('fflag', 8):
            G[15].post += [vm.wait('fx'), f'buffer_store_dword {vr(ONEV)}, {vr(CL16)}, {sr(SRD_WO, 4)}, 0 offen sc1']; vm.issue('flag2')
        if u == 28:
            G[4].pre += [f's_add_u32 s{SRD_WO}, s{SRD_WO}, 128', f's_addc_u32 s{SRD_WO + 1}, s{SRD_WO + 1}, 0']
        if u == 22:
            for k in range(16): G[k].valu.append(f'v_accvgpr_read_b32 {vr(GV + k)}, {ar(ACF + (k >> 2) * 16 + (k & 3))}')
        if u == U0 + 2 + (U0 < 23):
            G[15].post += [vm.wait('ff'), 'v_cmp_ne_u32 vcc, v5, v6', 's_cbranch_vccnz L_pf', 'L_pf_ok:']
        if u == 27:
            G[4].pre += [f's_add_u32 s{SRD_WD}, s{SRD_WD}, 128', f's_addc_u32 s{SRD_WD + 1}, s{SRD_WD + 1}, 0']
        if u == 28:
            G[15].post.append(vm.wait('fx2'))
        if 29 <= u <= 31:
            for k, x in enumerate(x_accum(GV, XR + 8 * (u - 29))): G[k // 2].valu.append(x)
        if t + 1 < T and (t + 1 != NF or cont):
            if (t + 1) % 2 == 0:
                need = [x for x in (t + 2, t + 3) if x < T and (cont or not (t + 1 < NF <= x))]
                assert all(x in vm.ops for x in need), (t, need)
                w = vm.wait(*need) + ' lgkmcnt(0)' if need else 's_waitcnt lgkmcnt(0)'
                G[15].post += [w, 's_barrier']
            else:
                G[15].post.append('s_waitcnt lgkmcnt(0)')
        if opt.get('ctrace'):
            G[0].pre.append(f's_memtime s[100:101]')
            G[14].valu.append(f'v_writelane_b32 v222, s100, {63 - t}')
        emit_gaps(a, gapops(G), align=False)
    stamp(a, opt, 'send')
    for j in range(1, 4):
        rd, cv = x_pack(ACS_, j, 160, 176 + 8 * (j - 1))
        for x in rd + cv: a(x)
        for k in range(2):
            a(f'buffer_store_dwordx4 {vr(176 + 8 * (j - 1) + 4 * k, 4)}, {vr(CL16)}, {sr(SRD_WS, 4)}, s{55 + j} offen offset:{1024 * k} sc1')
    stamp(a, opt, 'xst')
    for k in range(16):
        a(f'v_accvgpr_read_b32 {vr(SV + k)}, {ar(ACS_ + (k >> 2) * 16 + (k & 3))}')
    a('s_waitcnt vmcnt(6)')
    for k in range(8):
        a(f'v_lshlrev_b32 {vr(64 + 2 * k)}, 16, {vr(CXR + k)}')
        a(f'v_and_b32 {vr(65 + 2 * k)}, 0xffff0000, {vr(CXR + k)}')
    for k in range(16): a(f'v_mul_f32 {vr(144 + k)}, {f2u(-math.log2(math.e))}, {vr(GV + k)}')
    for k in range(16): a(f'v_exp_f32 {vr(144 + k)}, {vr(144 + k)}')
    for k in range(16): a(f'v_add_f32 {vr(112 + k)}, 1.0, {vr(144 + k)}')
    for k in range(16): a(f'v_rcp_f32 {vr(112 + k)}, {vr(112 + k)}')
    for k in range(0, 16, 2): a(f'v_pk_mul_f32 {vr(GV + k, 2)}, {vr(GV + k, 2)}, {vr(112 + k, 2)}')
    a(f'''
    s_waitcnt vmcnt(0)
    buffer_store_dword {vr(ONEV)}, {vr(CL16)}, {sr(SRD_WO, 4)}, 0 offen sc1
    {''.join(stamp_op('xack'))}
    s_branch L_ps
    L_ps_ok:
    ''')
    stamp(a, opt, 'xf')
    XS = 32
    for x in x_loads(1, XS): a(x)
    for r in range(3):
        a(f's_waitcnt vmcnt({4 - 2 * r})')
        if r == 2: stamp(a, opt, 'xld')
        for k in range(8):
            a(f'v_lshlrev_b32 {vr(96 + 2 * k)}, 16, {vr(XS + 8 * r + k)}')
            a(f'v_and_b32 {vr(97 + 2 * k)}, 0xffff0000, {vr(XS + 8 * r + k)}')
        for k in range(0, 16, 2):
            a(f'v_pk_add_f32 {vr(SV + k, 2)}, {vr(SV + k, 2)}, {vr(96 + k, 2)}')
    for k in range(0, 16, 2):
        a(f'v_pk_fma_f32 {vr(SV + k, 2)}, {vr(SV + k, 2)}, {vr(GV + k, 2)}, {vr(64 + k, 2)}')
    for k in range(8):
        a(f'v_cvt_pk_bf16_f32 {vr(CXR + k)}, {vr(SV + 2 * k)}, {vr(SV + 1 + 2 * k)}')
    for k in range(2):
        a(f'buffer_store_dwordx4 {vr(CXR + 4 * k, 4)}, {vr(COUT)}, {sr(SRD_OUT, 4)}, {sr(sOV)} offen offset:{16 * k}{OPT.get("outsc", "")}')

OPT = {}
def add_pads(a, period, nchain):
    out = []; addr = 0; nxt = None; pads = []
    lines = a.lines
    for k, l in enumerate(lines):
        t = l.strip()
        if t.startswith('.p2align'):
            al = 1 << int(t.split()[1]); addr = (addr + al - 1) // al * al
        if t == 'L_warmdone:': addr = 0; nxt = period - OPT.get('padoff', 0)
        if t == 'L_end:': nxt = None
        if nxt is not None and addr >= nxt and t.startswith(('v_', 'ds_read', 's_add', 's_mov', 's_lshl', 'buffer_load')) and not lines[k - 1].strip().startswith(('.')):
            out.append(f'L_pad{len(pads)}:'); out.append(f'    PAD{len(pads)}'); pads.append(addr)
            addr += 4; nxt += period
            if ALIGN():
                out.append('    s_nop 0'); addr += 4
        out.append(l); addr += isize(l)
    n = len(pads)
    for k, l in enumerate(out):
        if l.startswith('    PAD'):
            i = int(l[7:])
            out[k] = f'    s_cbranch_execz ' + (f'L_pad{i + nchain}' if i + nchain < n else 'L_warmret')
    a.lines = out
    return n

def gen(opt):
    OPT.clear(); OPT.update(opt)
    SLOW.clear(); STAMPS.clear(); PFX.clear()
    a = A()
    setup(a, opt)
    phase_a(a, opt)
    phase_b(a, opt)
    phase_c(a, opt)
    if opt.get('stamp'):
        a('s_waitcnt vmcnt(0)')
        stamp(a, opt, 'end')
        a(f'''
        s_waitcnt lgkmcnt(0)
        s_lshl_b32 s3, s2, 2
        s_add_u32 s3, s3, {sr(sW)}
        s_lshl_b32 s3, s3, 6
        s_add_u32 s3, s3, {WS_STAMP}
        v_mov_b32 v1, 0
        v_mov_b32 v4, v0
        ''')
        if opt.get('ctrace'): a('v_mov_b32 v63, v222\n; v_cndmask_b32 v221')
        if opt.get('trace') or opt.get('ctrace'):
            a(f's_lshl_b32 s7, s2, 2\ns_add_u32 s7, s7, {sr(sW)}\ns_lshl_b32 s7, s7, 8\ns_add_u32 s7, s7, {WS_STAMP + (1 << 20)}\nv_lshrrev_b32 v20, 2, v7')
            a(f'buffer_store_dword v63, v20, {sr(SRD_WS, 4)}, s7 offen')
        if opt.get('dbgstamp'):
            a(f's_cmp_lg_u32 {sr(sW)}, 0\ns_cbranch_scc1 L_nodbg')
            a('v_not_b32 v20, v0\ns_mov_b64 exec, 1')
            a(f'v_mov_b32 v21, s{sST + 2 * (len(STAMPS) - 1)}')
            a(f'buffer_atomic_umax v20, off, {sr(SRD_DBG, 4)}, 0 offset:56 sc1')
            a(f'buffer_atomic_umax v21, off, {sr(SRD_DBG, 4)}, 0 offset:60 sc1')
            a(f's_cmp_lg_u32 s2, {opt["dbgstamp"]}\ns_cbranch_scc1 L_nodbg')
            for i in range(len(STAMPS)):
                a(f'v_sub_u32 v{22 + i}, s{sST + 2 * i}, v0')
                a(f'buffer_store_dword v{22 + i}, off, {sr(SRD_DBG, 4)}, 0 offset:{4 + 4 * i} sc1')
            a('L_nodbg:\ns_mov_b64 exec, -1')
        for i in range(12): a(f'v_mov_b32 v{5 + i}, s{sST + 2 * i}')
        for i in range(4):
            a(f'buffer_store_dwordx4 v[{4 + 4 * i}:{7 + 4 * i}], v1, {sr(SRD_WS, 4)}, s3 offen offset:{16 * i}')
    a.label('L_end')
    a('s_endpgm')
    hooks(a)
    for p, tag, final in SLOW:
        for hf in range(2):
            a.label(f'L_slow{hf}_{tag}')
            a(f's_call_b64 s[98:99], L_slowfn{hf}_{p}_{int(final)}')
            a(f's_branch L_back{hf}_{tag}')
    for p, final in sorted({(p, f) for p, _, f in SLOW}):
        for hf in range(2):
            slow_path(a, p, hf, final)
    if OPT.get('pad', 4096):
        npad = add_pads(a, OPT.get('pad', 4096), OPT.get('nchain', 4))
        print('pads', npad, file=sys.stderr)
    a.label('L_codeend')
    a('s_endpgm')
    return kernel_file(f'; ost {OST()} hst {HST()}\n; stamps entry ' + ' '.join(STAMPS) + '\n' + a.text(), 'grid=(256,1,1) block=(256,1,1) lds=163840')

if __name__ == '__main__':
    opt = json.loads(sys.argv[2]) if len(sys.argv) > 2 else {}
    open(sys.argv[1], 'w').write(gen(opt))
```

```python
import sys, json, math, struct
sys.path.insert(0, 'gen')
from asmlib import *

def f2u(x): return '0x%08x' % struct.unpack('<I', struct.pack('<f', x))[0]

WS_O = 0; WS_H = 17 << 20; WS_FLAG = 25 << 20; WS_WF = (25 << 20) + 65536; WS_STAMP = 32 << 20; WS_XF = 34 << 20; WS_XS = 41 << 20; WS_FF = 47 << 20
WFS = 184 * 4096
sH = 4; sQB = 5; sW = 6
SRD_K = 8; SRD_V = 12; SRD_WS = 16; SRD_X = 20; SRD_WQ = 24; SRD_WG = 28; SRD_WU = 32; SRD_WO = 36; SRD_WD = 40; SRD_OUT = 44; SRD_DBG = 48
sOK = 52; sOV = 53; sM = 54; sCNT = 55; sT0 = 56; sT1 = 57; sT2 = 58; sT3 = 59
sXO = 60; sQO = 61; sGO = 62; sWB = 63
sW4K = 88; sRB = 89; sCB = 90; sBO = 56; sHO = 91; sWQB = 92; sWGB = 93
sDL = 95
sST = 64
KA = 8; VAA = 16; DK0 = 28; DK1 = 29; DV0 = 30; DV1 = 31; VAB = 244
Q = 32; S = 96; NM = 160; PA = 176; PB = 192; TMP = 208; ST = 212; THR = 234; LANE = 1; LM = 224; RL = 240
O = 0; KF = 128; VF = 160; SIDX = 235; WPR = 224
STAGE = 16384
AQ = 8; AG = 12; AC = 16; AX = 20; DQ = 22; DG = 23; DX = 24
XF = 32; ACQ = 96; SX = 224; CSD = 228; STT = 232; SXX = 240; IDX = 27
AGU = 0; AR = 128; AK = 160
XBUF = 0; WBUF = 65536; CSBUF = 81920
CB = 32
def CAop(sl, nb):
    return ar(192 + sl * 16 + 4 * nb, 4) if sl < 4 else vr(96 + 32 * (sl - 4) + 4 * nb, 4) if sl < 6 else vr(208 + 4 * nb, 4) if sl == 6 else ar(4 * nb, 4)
def CBop(sl, j):
    return vr(32 + sl * 16 + 4 * j, 4) if sl < 4 else vr(112 + 32 * (sl - 4) + 4 * j, 4) if sl < 6 else vr(224 + 4 * j, 4) if sl == 6 else ar(16 + 4 * j, 4)
ACF = 128; ACS_ = 64
CL16 = 7
CRW = 8; CRR = 11; COUT = 12; CXR = 16
sAO = 61; POLLV = 6; ONEV = 223

def OST(): return OPT.get('ost', 136192)
def HST(): return OPT.get('hst', 58368)
XIN = ['s92', 's93', 's62']
def FB(r, t):
    if OPT.get('fbspread', 1): return f's_lshr_b32 {t}, {sr(sH)}, 3\ns_sub_u32 {r}, {sr(sH)}, {t}'
    return f's_mov_b32 {r}, {sr(sH)}'
def FBOK(t):
    if OPT.get('fbspread', 1): return f's_and_b32 {t}, {sr(sH)}, 7\ns_cmp_lg_u32 {t}, 7'
    return f's_cmp_lt_u32 {sr(sH)}, 28'
def TW(r):
    return f's_lshl_b32 {r}, {sr(sRB)}, 2\ns_add_u32 {r}, {r}, {sr(sCB)}\ns_lshl_b32 {r}, {r}, 2\ns_add_u32 {r}, {r}, {sr(sW)}'
def mf(d, a_, b_, c):
    return f'v_mfma_f32_16x16x32_bf16 {d}, {a_}, {b_}, {c}'

class Gap:
    def __init__(self, m):
        self.m = m; self.pre = []; self.mem = []; self.valu = []; self.post = []
    def ops(self):
        return [self.m] + self.pre + self.mem + self.valu + self.post
    def units(self):
        u = 0
        for x in self.mem: u += 2 if x.startswith('buffer') else 0 if x.startswith('s_') else 1
        for x in self.valu: u += 2 if x.startswith(('v_exp', 'v_rcp', 'v_log', 'v_rsq', 'v_permlane')) else 1
        return u

def place(G, ops, lo, hi=None, kind='mem', cap=2):
    g = lo
    for x in ops:
        pre = []
        if isinstance(x, tuple):
            pre, x = list(x[:-1]), x[-1]
        need = 2 if x.startswith(('buffer', 'v_exp', 'v_rcp', 'v_rsq', 'v_log', 'v_permlane')) else 1
        need = min(need, cap)
        while G[g].units() + need > cap:
            g += 1
        if hi is not None:
            assert g <= hi, (x, g, hi)
        if pre:
            if g > 0 and not any(y.startswith('buffer') for y in G[g - 1].mem):
                G[g - 1].pre += pre
            else:
                if ' m0,' in pre[-1]:
                    pre.append('s_nop 0')
                G[g].pre += pre
        getattr(G[g], kind).append(x)
    return g

STAMPS = []
def place_some(G, ops, lo, hi):
    g = lo
    for k, x in enumerate(ops):
        need = 2 if x.startswith(('v_exp', 'v_rcp', 'v_rsq', 'v_log', 'v_permlane')) else 1
        while g <= hi and G[g].units() + need > 2: g += 1
        if g > hi: return list(ops[k:])
        G[g].valu.append(x)
    return []

def stamp_op(name):
    if not OPT.get('stamp') or (OPT.get('only') and name not in OPT['only']):
        return []
    k = len(STAMPS); STAMPS.append(name)
    assert k < 12
    return [f'{"s_memtime" if OPT.get("cyc") else "s_memrealtime"} s[{sST + 2 * k}:{sST + 2 * k + 1}]']
def stamp(a, opt, name):
    for x in stamp_op(name): a(x)

def srd(a, base, lo, hi, nrec, add=None, sub=None):
    if add is not None:
        a(f's_add_u32 s{base}, s{lo}, {add}')
        a(f's_addc_u32 s{base + 1}, s{hi}, 0')
    else:
        a(f's_mov_b32 s{base}, s{lo}')
        a(f's_mov_b32 s{base + 1}, s{hi}')
    if sub is not None:
        a(f's_sub_u32 s{base}, s{base}, {sub}')
        a(f's_subb_u32 s{base + 1}, s{base + 1}, 0')
    a(f's_mov_b32 s{base + 2}, {nrec}')
    a(f's_mov_b32 s{base + 3}, 0x20000')

def HOP(k):
    if not OPT.get('hop'): return ''
    if k == 0:
        return ('s_mov_b64 exec, 0\ns_nop 1\n' + ''.join(f's_cmp_eq_u32 s6, {w}\ns_cbranch_scc1 L_hop{w + 1}\n' for w in range(3)) +
                's_branch L_hop4\nL_hopret:\ns_mov_b64 exec, -1')
    return f'L_hop{k}:\ns_cbranch_execz L_hopret'

def setup(a, opt):
    a(f'''
    s_cmp_ge_u32 s2, 256
    s_cbranch_scc1 L_end
    {("s_memtime" if opt.get("cyc") else "s_memrealtime") + " s[98:99]" if opt.get("stamp") else ""}
    s_load_dwordx16 s[64:79], s[0:1], 0
    s_load_dwordx8 s[80:87], s[0:1], 64
    v_lshrrev_b32 v4, 6, v0
    v_and_b32 v1, 63, v0
    v_readfirstlane_b32 {sr(sW)}, v4
    {HOP(0)}
    s_and_b32 s3, s2, 7
    s_bfe_u32 s7, s2, 0x20003
    s_lshl_b32 s3, s3, 2
    s_add_u32 {sr(sH)}, s3, s7
    s_lshr_b32 {sr(sQB)}, s2, 5
    s_lshl_b32 {sr(sW4K)}, {sr(sW)}, 12
    s_and_b32 s3, s2, 1
    s_lshl_b32 s3, s3, 3
    s_add_u32 {sr(sRB)}, s3, {sr(sQB)}
    s_bfe_u32 {sr(sCB)}, s2, 0x20003
    {"s_mov_b32 s89, 0" if opt.get("x_rb") else ""}
    {"s_mov_b32 s90, 0" if opt.get("x_cb") else ""}
    v_and_b32 v2, 15, v1                ; r = l&15
    v_lshrrev_b32 v3, 4, v1             ; g = l>>4
    ''')
    if OPT.get('ipf', 1):
        a(f'''
        s_getpc_b64 s[100:101]
        L_pc:
        s_lshr_b32 s3, s2, 3
        s_lshl_b32 s3, s3, 2
        s_add_u32 s3, s3, {sr(sW)}
        s_and_b32 s3, s3, 15
        s_lshl_b32 s3, s3, 13
        s_min_u32 s3, s3, L_codeend-L_pc-8192
        v_lshlrev_b32 v4, 7, v1
        v_add_u32 v4, s3, v4
        global_load_dword v26, v4, s[100:101]
        ''')

def setup_x(a, opt):
    a(f's_lshl_b32 s3, {sr(sQB)}, 18\ns_lshl_b32 s7, {sr(sW)}, 16\ns_add_u32 s3, s3, s7')
    a('s_waitcnt lgkmcnt(0)')
    if opt.get('stamp'): a('v_mov_b32 v0, s98')
    if opt.get('early'): a('s_memrealtime vcc')
    if OPT.get('tlb'):
        lst = OPT['tlb']
        a('s_lshr_b32 s7, s2, 3\ns_and_b32 s7, s7, 7\ns_mov_b64 s[100:101], s[64:65]\nv_mov_b32 v4, 0')
        for k, (r, off) in enumerate(lst):
            a(f's_cmp_eq_u32 s7, {k + 1}\ns_cselect_b64 s[100:101], s[{r}:{r + 1}], s[100:101]')
            if off: a(f's_cselect_b32 s8, {off}, 0\nv_max_u32 v4, s8, v4')
        a('global_load_dword v26, v4, s[100:101]')
    srd(a, SRD_X, 64, 65, 65536, add='s3')

def setup_w(a):
    a(f's_lshl_b32 s3, {sr(sH)}, 8')
    srd(a, SRD_WQ, 70, 71, 511 * 8192 + 256, add='s3')
    a(FB('s3', 's7') + f'\ns_lshl_b32 s3, s3, 7\n' + FBOK('s7') + f'\ns_cselect_b32 s3, s3, 0\ns_cselect_b32 s7, {511 * 3584 + 128}, 0')
    srd(a, SRD_WG, 76, 77, 's7', add='s3')
    srd(a, SRD_WU, 78, 79, 's7', add='s3')

def setup_wp(a):
    a('s_cmp_lt_u32 s2, 128\ns_cselect_b32 s72, s72, s80\ns_cselect_b32 s73, s73, s81\ns_and_b32 s3, s2, 127\ns_lshl_b32 s3, s3, 15')
    a('s_cmp_lt_u32 s2, 184\ns_cselect_b32 s3, s3, 0')
    a('s_cselect_b32 s7, 32768, 0\ns_cselect_b32 s74, 0x10000000, 0')
    srd(a, SRD_WO, 72, 73, 's7', add='s3')
    srd(a, SRD_WD, 86, 87, 's74')

def setup2(a, opt):
    a(f's_lshl_b32 s3, {sr(sH)}, 19')
    srd(a, SRD_K, 66, 67, 524288, add='s3')
    srd(a, SRD_V, 68, 69, 524288 + 2048 + 16384, add='s3', sub=2048 + 16384)
    srd(a, SRD_WS, 86, 87, 0x10000000)
    srd(a, SRD_OUT, 82, 83, 2097152)
    srd(a, SRD_DBG, 84, 85, 256)
    a('s_mov_b32 s96, s64\ns_mov_b32 s97, s65')

def a_setup_dma_addr(a):
    a(f'''
    s_lshl_b32 s3, {sr(sW)}, 3
    v_add_u32 v4, s3, v3                 ; row = 8w + (l>>4)
    v_lshlrev_b32 v5, 2, v3
    v_xor_b32 v5, v5, v2
    v_lshlrev_b32 v5, 4, v5
    v_lshl_add_u32 {vr(DQ)}, v4, 13, v5
    v_lshrrev_b32 v4, 3, v1              ; rho = l>>3
    v_and_b32 v5, 3, v4
    v_lshrrev_b32 v6, 5, v1
    v_lshl_add_u32 v5, v6, 3, v5
    s_lshr_b32 s3, {sr(sW)}, 1
    s_lshl_b32 s3, s3, 4
    s_and_b32 s7, {sr(sW)}, 1
    s_lshl_b32 s7, s7, 2
    s_add_u32 s3, s3, s7
    v_add_u32 v5, s3, v5                 ; W row
    v_mul_u32_u24 v5, 3584, v5
    v_lshlrev_b32 v6, 1, v3
    v_and_b32 v7, 7, v1
    v_xor_b32 v6, v6, v7
    v_lshl_add_u32 {vr(DG)}, v6, 4, v5
    v_xor_b32 v6, v3, v7
    v_lshlrev_b32 v6, 4, v6
    v_lshl_add_u32 {vr(DX)}, v4, 10, v6
    v_xor_b32 {vr(DX + 1)}, 64, {vr(DX)}
    ''')

def a_dma_x(j_par):
    ops = []
    for i in range(8):
        pre = []
        if i % 4 == 0:
            pre.append(f's_add_u32 m0, {sr(sT3)}, {XBUF + j_par * 32768 + (i // 4) * 4096}')
        pre.append(f's_add_u32 {sr(sT0 + (i & 1))}, {sr(sXO)}, {i * 8192 - 1024 * (i & 3)}')
        ops.append(tuple(pre) + (f'buffer_load_dwordx4 {vr(DX + (i & 1))}, {sr(SRD_X, 4)}, {sr(sT0 + (i & 1))} offen offset:{1024 * (i & 3)} lds',))
    return ops, [f's_add_u32 {sr(sXO)}, {sr(sXO)}, 128', f's_and_b32 {sr(sXO)}, {sr(sXO)}, 1023']

def a_dma_w():
    ops = []
    for ks in range(2):
        ops.append((f's_add_u32 m0, {sr(sWQB)}, {ks * 16384}', f's_add_u32 {sr(sT0)}, {sr(sQO)}, {ks * 32 * 8192}',
                    f'buffer_load_dwordx4 {vr(DQ)}, {sr(SRD_WQ, 4)}, {sr(sT0)} offen lds'))
        ops.append((f's_add_u32 {sr(sT1)}, {sr(sQO)}, {ks * 32 * 8192 + 4 * 8192 - 1024}',
                    f'buffer_load_dwordx4 {vr(DQ)}, {sr(SRD_WQ, 4)}, {sr(sT1)} offen offset:1024 lds'))
        ops.append((f's_add_u32 m0, {sr(sWGB)}, {ks * 16384}', f's_add_u32 {sr(sT0)}, {sr(sGO)}, {ks * 32 * 3584}',
                    f'buffer_load_dwordx4 {vr(DG)}, {sr(SRD_WG, 4)}, {sr(sT0)} offen lds'))
        ops.append((f's_add_u32 m0, m0, 4096',
                    f'buffer_load_dwordx4 {vr(DG)}, {sr(SRD_WU, 4)}, {sr(sT0)} offen lds'))
    adv = [f's_add_u32 {sr(sQO)}, {sr(sQO)}, {64 * 8192}', f's_and_b32 {sr(sQO)}, {sr(sQO)}, 0x3fffff', f's_lshr_b32 {sr(sGO)}, {sr(sQO)}, 13', f's_mul_i32 {sr(sGO)}, {sr(sGO)}, 3584',
           f's_add_u32 {sr(sWB)}, {sr(sWB)}, 1', f's_cmp_eq_u32 {sr(sWB)}, 3', f's_cselect_b32 {sr(sT2)}, -2, 1', f's_cselect_b32 {sr(sWB)}, 0, {sr(sWB)}',
           f's_lshl_b32 {sr(sT2)}, {sr(sT2)}, 15', f's_add_u32 {sr(sWQB)}, {sr(sWQB)}, {sr(sT2)}', f's_add_u32 {sr(sWGB)}, {sr(sWGB)}, {sr(sT2)}']
    return ops, adv

def emit_plain(a, ops):
    for x in ops:
        if isinstance(x, tuple):
            for y in x[:-1]: a(y)
            if ' m0,' in x[-2]: a('s_nop 0')
            a(x[-1])
        else:
            a(x)

def a_setup_read_addr(a):
    a(f'''
    v_bfe_u32 v4, v1, 2, 2               ; r'
    v_and_b32 v5, 3, v1                  ; c'
    v_lshl_add_u32 v6, v3, 3, v4         ; 8g + r'
    v_lshlrev_b32 v6, 8, v6
    v_lshl_add_u32 v6, v4, 6, v6         ; + (r'<<2)*16
    v_lshl_add_u32 v6, v5, {3 if OPT.get('a_noconf') else 4}, v6         ; + c'*16
    {"v_and_b32 v7, 16, v1" if OPT.get('a_noconf') else ""}
    {"v_lshl_add_u32 v6, v7, 1, v6" if OPT.get('a_noconf') else ""}
    v_add_u32 v6, {WBUF}, v6
    ''')
    for sp in range(4):
        a(f'v_xor_b32 {vr(AQ + sp)}, {sp * 64}, v6')
    a(f'''
    v_bfe_u32 v6, v1, 2, 3               ; rho = 4(g&1) + r'
    v_lshrrev_b32 v7, 1, v6              ; key2
    v_lshlrev_b32 v6, 7, v6
    v_lshl_add_u32 v6, v7, 5, v6
    v_lshl_add_u32 v6, v5, 3, v6
    v_lshrrev_b32 v7, 5, v1
    v_lshl_add_u32 v6, v7, 11, v6
    v_add_u32 v6, {WBUF + 8192}, v6
    ''')
    for nb in range(4):
        a(f'v_xor_b32 {vr(AG + nb)}, {nb * 32}, v6')
    a(f's_cmp_eq_u32 {sr(sW)}, 0\ns_cselect_b64 s[98:99], -1, 0\ns_cmp_lt_u32 {sr(sW)}, 2\ns_cselect_b64 s[100:101], -1, 0')
    a(f's_and_b32 s3, {sr(sW)}, 1\ns_lshl_b32 s3, s3, 12')
    for k in range(4):
        a(f'v_cndmask_b32 v4, {vr(AQ + 2 + (k >> 1))}, {vr(AQ + (k >> 1))}, s[98:99]')
        if k & 1:
            a('v_add_u32 v4, 8, v4')
        a(f'v_add_u32 v5, s3, {vr(AG + k)}')
        a(f'v_cndmask_b32 {vr(AC + k)}, v5, v4, s[100:101]')
    a(f'''
    v_lshrrev_b32 v4, 1, v2
    v_xor_b32 v4, v4, v3
    v_lshlrev_b32 v4, 4, v4
    v_lshl_add_u32 v4, v2, 7, v4
    v_add_u32 {vr(AX)}, {sr(sT3)}, v4
    v_xor_b32 {vr(AX + 1)}, 64, {vr(AX)}
    v_mov_b32 v4, 0x3f803f80
    v_and_b32 v5, 3, v1
    v_mov_b32 v6, 0xeeee
    v_and_b32 v7, 4, v1
    v_cmp_eq_u32 vcc, 0, v7
    v_mov_b32 v7, 0x4444
    v_cmp_eq_u32 s[98:99], 0, v5
    v_cndmask_b32 {vr(IDX)}, v6, v7, vcc
    s_nop 0
    ''')
    for k in range(4):
        a(f'v_cndmask_b32 v6, 0, v4, s[98:99]')
        if k < 3: a(f'v_cmp_eq_u32 s[98:99], {k + 1}, v5')
        for i in range(4):
            a(f'v_accvgpr_write_b32 {ar(AK + 4 * k + i)}, v6')

def Xreg(par, c, ks): return XF + par * 32 + c * 8 + ks * 4
def accA(nb, c):
    return vr(ACQ + (nb * 4 + c) * 4, 4) if nb < 8 else ar(AGU + ((nb - 8) * 4 + c) * 4, 4)
ORDER = [16, 17, 18, 19] + list(range(16))
def a_reads(pos):
    grp = ORDER[pos]
    out = []
    for ks in range(2):
        for u in range(2):
            off = ks * 16384 + u * 1024
            if grp < 8:
                ad = AQ + (grp >> 1); off += 8 * (grp & 1)
            elif grp < 16:
                ad = AG + (grp & 3); off += 4096 * ((grp - 8) >> 2)
            else:
                ad = AC + grp - 16
            out.append(f'ds_read_b64_tr_b16 {ar(AR + (pos & 3) * 8 + ks * 4 + 2 * u, 2)}, {vr(ad)} offset:{off}')
    return out
def x_reads(par):
    return [f'ds_read_b128 {vr(Xreg(par, c, ks), 4)}, {vr(AX + ks)} offset:{XBUF + par * 32768 + c * 2048}' for c in range(4) for ks in range(2)]

def a_superstep(par, first, tail, kv_ops=None, name=None, pre_ops=None, pre_adv=None):
    G = []; start = []
    small = OPT.get('small', 1)
    if small:
        cs = [f'v_smfmac_f32_16x16x64_bf16 {vr(CSD, 4)}, {ar(AK + 4 * k, 4)}, {ar(AR + k * 8, 8)}, {vr(IDX)}' for k in range(4)]
        xs = [f'v_smfmac_f32_16x16x64_bf16 {vr(SX, 4)}, {ar(AK + 4 * k, 4)}, {vr(Xreg(par, k, 0), 8)}, {vr(IDX)}' for k in range(4)]
        sm = [f'v_mfma_f32_4x4x4_16b_bf16 {vr(SXX + 4 * c, 4)}, {vr(Xreg(par, c, 0) + 2 * i, 2)}, {vr(Xreg(par, c, 0) + 2 * i, 2)}, {vr(SXX + 4 * c, 4)}' for i in range(4) for c in range(4)]
        G = [Gap(m) for m in xs[:2] + cs[:2] + sm + xs[2:] + cs[2:]]
        start = [0, 4, 20, 22]
    for pos in range(4 if small else 0, 20):
        grp = ORDER[pos]
        start.append(len(G))
        sl = AR + (pos & 3) * 8
        if grp < 16:
            sa = 'a' in OPT.get('snk', 'qpac')
            for i, c in enumerate(range(4) if not (sa and pos & 1) else range(3, -1, -1)):
                for ks in (range(2) if not (sa and i & 1) else (1, 0)):
                    d = accA(grp, c)
                    G.append(Gap(mf(d, ar(sl + 4 * ks, 4), vr(Xreg(par, c, ks), 4), '0' if first and ks == 0 else d)))
        else:
            k = grp - 16
            G.append(Gap(f'v_smfmac_f32_16x16x64_bf16 {vr(CSD, 4)}, {ar(AK + 4 * k, 4)}, {ar(sl, 8)}, {vr(IDX)}'))
            G.append(Gap(f'v_smfmac_f32_16x16x64_bf16 {vr(SX, 4)}, {ar(AK + 4 * k, 4)}, {vr(Xreg(par, k, 0), 8)}, {vr(IDX)}'))
            for ks in range(2):
                d = vr(SXX + 4 * k, 4)
                G.append(Gap(mf(d, vr(Xreg(par, k, ks), 4), vr(Xreg(par, k, ks), 4), '0' if first and ks == 0 else d)))
    start.append(len(G))
    def at(g, x, kind='mem'):
        place(G, [x], g, g, kind=kind)
    rp = OPT.get('a_rp', [0, 1, 2, 3])
    if small:
        for k, x in enumerate(a_reads(2) + a_reads(3) + a_reads(4) + a_reads(5)): at(4 + k, x)
    for grp in range(4 if small else 0, 18):
        for k, x in zip(rp if grp >= 4 else [0, 0, 1, 2], a_reads(grp + 2)):
            at(start[grp] + k, x)
    dm = []
    if tail == 0:
        wops, wadv = a_dma_w(); xops, xadv = a_dma_x(par)
        if OPT.get('a_now'): wops = []
        if OPT.get('a_nox'): xops = []
        dm = wops + xops
        if pre_ops:
            dm = pre_ops + dm
    if kv_ops:
        dm = kv_ops
    free = [start[p] + (5 if p >= 4 else 3) for p in range(18)]
    if small: free = [0, 20] + free[4:]
    if len(dm) > len(free):
        free = [g for p in range(18) for g in ((start[p] + 4, start[p] + 6) if p >= 4 else (start[p] + 3,))]
    pos = free[:len(dm)]
    for g, x in zip(pos, dm):
        if x is not None: at(g, x)
    if tail == 0:
        npre = len(pre_ops) if pre_ops else 0
        if pre_ops:
            for g, adv in pre_adv:
                G[pos[g] + 1].pre += adv
        if wops:
            g = pos[npre + len(wops) - 1]
            G[g + 1].pre += wadv[:4]; G[g + 2].pre += wadv[4:8]; G[g + 3].pre += wadv[8:]
        if xops:
            G[pos[-1] + 1].pre += xadv
    xg = OPT.get('a_xg', 14)
    if tail < 2:
        wg = start[xg] + 3
        npre = len(pre_ops) if pre_ops else 0
        younger = sum(1 for k, g in enumerate(pos) if g < wg and k >= npre and dm[k] is not None)
        assert all(g < wg for g in pos[:npre])
        G[wg].pre.append(f's_waitcnt vmcnt({younger})')
        xr = x_reads(1 - par)
        for k, x in enumerate(xr):
            at(start[xg + k // 4] + 3 + (k % 4) + (1 if G[start[xg + k // 4] + 3 + (k % 4)].units() >= 2 else 0), x) if False else None
        g = wg
        xpos = []
        for x in xr:
            while G[g].units() >= 2 or any(y.startswith('ds_read_b128') for y in G[g].mem): g += 1
            G[g].mem.append(x); xpos.append(g)
        assert xpos[-1] < start[18] - 2, xpos
    if tail == 2:
        w, st, rd = a_stats_ops()
        g = place(G, w[0], start[4] + 5, start[9] + 4, kind='valu')
        place(G, w[1], start[9] + 5, start[10] + 7, cap=1)
        G[start[12] - 1].post += ['s_waitcnt lgkmcnt(4)', 's_barrier']
        place(G, rd, start[14] + 4, start[17] + 7, cap=1)
        rest = place_some(G, st, g, start[20] - 1)
        G[-1].post += ['s_nop 1'] + rest
    seq = [(g, x) for g in range(len(G)) for x in G[g].mem if x.startswith('ds_')]
    if small:
        G[1].pre.append('s_waitcnt lgkmcnt(0)'); G[21].pre.append('s_waitcnt lgkmcnt(8)'); G[23].pre.append('s_waitcnt lgkmcnt(4)')
        G[start[5] - 1].pre.append('s_waitcnt lgkmcnt(4)')
    for grp in range(6 if small else 2, 20):
        if grp == 18:
            continue
        last = max(k for k, (g, x) in enumerate(seq) if x in a_reads(grp) and start[grp - 2] <= g < start[grp - 1])
        n = sum(1 for k, (g, x) in enumerate(seq) if k > last and g < start[grp] - 1)
        G[start[grp] - 1].pre.append(f's_waitcnt lgkmcnt({min(n, 14)})')
    if not small: G[start[1] - 1].pre.append('s_waitcnt lgkmcnt(4)')
    if tail < 2:
        G[start[18] - 1].pre += ['s_waitcnt lgkmcnt(0)', 's_barrier']
        vu = [f'v_add_u32 {vr(AQ + i)}, {sr(sDL)}, {vr(AQ + i)}' for i in range(12)]
        place(G, vu[:4] + vu[8:], start[14], start[17] + 5, kind='valu')
        for k, x in enumerate(a_reads(0)): at(start[18] + k, x)
        for k, x in enumerate(a_reads(1)): at(start[19] + k, x)
        place(G, vu[4:8], start[18], start[19] + 5, kind='valu')
        if not small: G[start[20] - 1].pre.append('s_waitcnt lgkmcnt(4)')
        G[start[13] + 1].pre += [f's_add_u32 {sr(sM)}, {sr(sM)}, 1', f's_cmp_eq_u32 {sr(sM)}, 3', f's_cselect_b32 {sr(sDL)}, -2, 1', f's_cselect_b32 {sr(sM)}, 0, {sr(sM)}']
        G[start[13] + 2].pre += [f's_lshl_b32 {sr(sDL)}, {sr(sDL)}, 15']
    else:
        G[start[18] - 1].pre += ['s_waitcnt lgkmcnt(0)']
    if OPT.get('a_nobar'):
        for g in G: g.pre = [x for x in g.pre if x != 's_barrier']
    if OPT.get('a_nowait'):
        for g in G: g.pre = [x for x in g.pre if not x.startswith('s_waitcnt lgkmcnt')]
    if OPT.get('a_novm'):
        for g in G: g.pre = [x for x in g.pre if not x.startswith('s_waitcnt vmcnt')]
    if OPT.get('a_nords'):
        for g in G: g.mem = [x for x in g.mem if not x.startswith('ds_read_b64')]
    if name:
        so = stamp_op(name)
        if so:
            G[start[18] - 1].post += so
            G[start[19] - 1].pre.append('s_waitcnt lgkmcnt(0)')
    return G

WPA = [240, 241, 242, 243, 252, 253, 254, 255]
def wp_addr0():
    return ['v_lshlrev_b32 v4, 1, v3', 'v_xor_b32 v4, v4, v2', 'v_lshlrev_b32 v4, 4, v4', 'v_lshl_add_u32 v4, v3, 10, v4', 'v_xor_b32 v5, 128, v4']
def wp_dma():
    ops = []
    for i in range(8):
        pre = []
        if i == 0: pre += [f's_lshl_b32 {sr(sT2)}, {sr(sW)}, 8']
        pre += [f's_add_u32 m0, {sr(sT3)}, {131072 + i * 1024}', f's_add_u32 {sr(sT0)}, {sr(sT2)}, {i * 4096}']
        ops.append(tuple(pre) + (f'buffer_load_dwordx4 v{4 + (i & 1)}, {sr(SRD_WO, 4)}, {sr(sT0)} offen lds',))
    return ops
def wp_addr1():
    t0, t1 = WPA[0], WPA[1]
    ops = [f'v_lshrrev_b32 {vr(t0)}, 2, v1', f'v_and_b32 {vr(t1)}, 7, {vr(t0)}', f'v_lshlrev_b32 {vr(t0)}, 8, {vr(t0)}', f'v_lshl_add_u32 {vr(t0)}, {vr(t1)}, 5, {vr(t0)}',
           f'v_and_b32 {vr(t1)}, 3, v1', f'v_lshlrev_b32 {vr(t1)}, 5, {vr(t1)}', f'v_xor_b32 {vr(t0)}, {vr(t1)}, {vr(t0)}', f'v_add_u32 {vr(t0)}, {sr(sT3)}, {vr(t0)}', f'v_add_u32 {vr(t0)}, 131072, {vr(t0)}']
    ops += [f'v_xor_b32 {vr(WPA[db])}, {(db >> 2) * 128 + (db & 3) * 8}, {vr(t0)}' for db in range(1, 8)]
    return ops
def wp_reads():
    return [f'ds_read_b64_tr_b16 {ar(WPR + db * 4 + 2 * u, 2)}, {vr(WPA[db])} offset:{u * 4096}' for db in range(8) for u in range(2)]
def wp_stores():
    st = []
    for db in range(8):
        st.append(f'buffer_store_dwordx4 {ar(WPR + db * 4, 4)}, {vr(CL16)}, {sr(SRD_WD, 4)}, {"s3" if db < 4 else "s7"} offen offset:{1024 * (db & 3)} sc1')
    sc = ['s_sub_u32 s3, s2, 128', 's_add_u32 s7, s2, 56', 's_cmp_lt_u32 s2, 128', 's_cselect_b32 s3, s7, s3', 's_lshl_b32 s3, s3, 12',
          f's_mul_i32 s7, {sr(sW)}, {2 * WFS}', 's_add_u32 s3, s3, s7', f's_add_u32 s3, s3, {WS_WF}', f's_add_u32 s7, s3, {WFS}']
    return sc, st

def wp_store_ops():
    sc, st = wp_stores()
    out = []
    for k, x in enumerate(st):
        out += [tuple(sc) + (x,) if k == 0 else x, None]
    return out

def warmup(a):
    if OPT.get('pad', 4096):
        nch = OPT.get('nchain', 4)
        a('s_mov_b64 exec, 0')
        for w in range(nch - 1):
            a(f's_cmp_eq_u32 {sr(sW)}, {w}\ns_cbranch_scc1 L_pad{w}')
        a(f's_branch L_pad{nch - 1}')
        a.raw('.p2align 12')
        a.label('L_warmdone')
        a.label('L_warmret')
        a('s_mov_b64 exec, -1')

def phase_a(a, opt):
    a(f's_lshl_b32 {sr(sT3)}, {sr(sW)}, 13')
    a_setup_dma_addr(a)
    a(f's_and_b32 s3, s2, {7 if OPT.get("arot", 0) else 0}\ns_lshl_b32 {sr(sXO)}, s3, 7\ns_lshl_b32 {sr(sQO)}, s3, 19\ns_mul_i32 {sr(sGO)}, s3, {64 * 3584}\ns_mov_b32 {sr(sWB)}, 0\ns_mov_b32 {sr(sM)}, 0')
    a(f's_lshl_b32 {sr(sWQB)}, {sr(sW)}, 11\ns_add_u32 {sr(sWQB)}, {sr(sWQB)}, {WBUF}\ns_lshl_b32 {sr(sWGB)}, {sr(sW)}, 10\ns_add_u32 {sr(sWGB)}, {sr(sWGB)}, {WBUF + 8192}')
    xops, xadv = a_dma_x(0); wops, wadv = a_dma_w()
    setup_x(a, opt)
    if OPT.get('b1', 0):
        emit_plain(a, xops[:1])
        setup_w(a)
        w0 = [wops[0], wops[2], wops[3]]
        emit_plain(a, w0)
        emit_plain(a, [(xops[0][0],) + xops[1]] + xops[2:]); emit_plain(a, xadv)
        emit_plain(a, [(wops[0][0],) + wops[1]] + wops[4:]); emit_plain(a, wadv)
    else:
        emit_plain(a, xops); emit_plain(a, xadv)
        setup_w(a)
        emit_plain(a, wops); emit_plain(a, wadv)
    if opt.get('early') and not opt.get('early2'): a('s_memrealtime s[98:99]')
    wm = OPT.get('warmpos', 1)
    if wm == 1: warmup(a)
    xops, xadv = a_dma_x(1); wops, wadv = a_dma_w()
    b = A()
    for i in range(ACQ, ACQ + 4): b(f'v_mov_b32 {vr(i)}, 0')
    setup2(b, opt); setup_wp(b)
    if opt.get('early'):
        b('s_waitcnt lgkmcnt(0)')
        for nm, r in (('karg', 'vcc_lo'), ('i16', 's98')):
            b(f's_mov_b32 s{sST + 2 * len(STAMPS)}, {r}'); STAMPS.append(nm)
    a_setup_read_addr(b); b_setup_dma_addr(b)
    for i in range(ACQ + 4, 256):
        b(f'v_mov_b32 {vr(i)}, 0')
        if (i - ACQ) % 16 == 8 and (i - ACQ) // 16 < 8:
            b(f'v_mfma_f32_32x32x16_bf16 {ar(AGU + 16 * ((i - ACQ) // 16), 16)}, {vr(ACQ, 4)}, {vr(ACQ, 4)}, 0')
    fill = [l.strip() for l in b.lines]
    per = len(fill) // 15 + 1
    k0 = 0
    for k, x in enumerate(xops + wops):
        emit_plain(a, [x])
        if k == 7: emit_plain(a, xadv)
        k1 = min(len(fill), k0 + per)
        while k1 < len(fill) and fill[k1].startswith(('s_addc', 's_subb', 's_cselect')): k1 += 1
        for y in fill[k0:k1]: a(y)
        k0 = k1
    assert k0 == len(fill)
    emit_plain(a, wadv)
    ntouch = 0
    stamp(a, opt, 'issued')
    a(f'''
    s_lshl_b32 s3, {sr(sQB)}, 2
    s_add_u32 s3, s3, {sr(sW)}
    s_lshl_b32 s3, s3, 2
    s_lshr_b32 s7, {sr(sH)}, 3
    s_add_u32 s3, s3, s7
    s_lshl_b32 s3, s3, 5
    s_and_b32 s7, {sr(sH)}, 7
    s_add_u32 s3, s3, s7
    s_lshl_b32 s3, s3, 2
    s_add_u32 s94, s3, {WS_FLAG}
    v_mov_b32 v4, 0
    s_mov_b64 exec, 1
    buffer_store_dword v4, v4, {sr(SRD_WS, 4)}, s94 offen sc1
    {TW('s3')}
    s_lshl_b32 s3, s3, 6
    s_bfe_u32 s7, s2, 0x20001
    s_add_u32 s3, s3, s7
    s_lshl_b32 s3, s3, 2
    s_add_u32 s3, s3, {WS_FF}
    buffer_store_dword v4, v4, {sr(SRD_WS, 4)}, s3 offen sc1
    buffer_store_dword v4, v4, {sr(SRD_WS, 4)}, s3 offen offset:128 sc1
    s_mov_b64 exec, -1
    ''')
    if wm == 2: warmup(a)
    a(f's_waitcnt vmcnt({19 + ntouch})')
    for x in x_reads(0): a(x)
    a('s_waitcnt lgkmcnt(0)\ns_barrier')
    for x in a_reads(0) + a_reads(1): a(x)
    stamp(a, opt, 'A0')
    a('s_waitcnt lgkmcnt(0)' if opt.get('stamp') else 's_waitcnt lgkmcnt(4)')
    a.raw('.p2align 3')
    a(f's_mov_b32 {sr(sCNT)}, 3')
    a.raw('.p2align 3')
    a.label('L_a')
    G = a_superstep(0, False, 0, name='a4') + a_superstep(1, False, 0, name='a5')
    G[-4].pre.append(f's_sub_u32 {sr(sCNT)}, {sr(sCNT)}, 1')
    G[-2].pre.append(f's_cmp_lg_u32 {sr(sCNT)}, 0')
    G[-1].post.append('s_cbranch_scc1 L_a')
    emit_gaps(a, [g.ops() for g in G])
    a.raw('.p2align 3')
    emit_gaps(a, [g.ops() for g in a_superstep(0, False, 1, name='a6', kv_ops=b_prologue_dma()[:12]) + a_superstep(1, False, 2, kv_ops=b_prologue_dma()[12:])])
    stamp(a, opt, 'Aend')
    a_epilogue(a, opt)

def NMEAN(c): return SX + c
def ALPHA(c): return STT + c
def RS2(c): return STT + 4 + c
CSQ = 32; CSG = 160; HP = 224
def a_stats_ops():
    w0 = ['v_lshlrev_b32 v4, 4, v3', f'v_add_u32 v4, {CSBUF}, v4', 'v_lshlrev_b32 v5, 2, v2', f'v_lshl_add_u32 v5, {sr(sW)}, 8, v5', f'v_add_u32 v5, {CSBUF}, v5']
    w0 += [f'v_mov_b32 {vr(STT + k)}, {vr(CSD + k)}' for k in range(4)]
    w0 += [f'v_permlane16_swap_b32 {vr(CSD + k)}, {vr(STT + k)}' for k in range(4)]
    w0 += [f'v_add_f32 {vr(CSD + k)}, {vr(CSD + k)}, {vr(STT + k)}' for k in range(4)]
    w1 = [f'ds_write_b32 v5, {vr(CSD + k)} offset:{64 * k}' for k in range(4)]
    st = ['v_and_b32 v6, 3, v1', 'v_cmp_eq_u32 s[98:99], 1, v6', 'v_cmp_eq_u32 s[100:101], 2, v6', 'v_cmp_eq_u32 vcc, 3, v6',
          ] + (['v_lshrrev_b32 v6, 2, v2', 'v_cmp_eq_u32 s[92:93], v6, v3'] if not OPT.get('small', 1) else [])
    st += [f'v_mov_b32 {vr(STT + 4 + k)}, {vr(SX + k)}' for k in range(4)]
    st += [f'v_permlane16_swap_b32 {vr(SX + k)}, {vr(STT + 4 + k)}' for k in range(4)]
    st += [f'v_add_f32 {vr(SX + k)}, {vr(SX + k)}, {vr(STT + 4 + k)}' for k in range(4)]
    for c in range(4):
        st.append(f'v_mul_f32 {vr(NMEAN(c))}, {f2u(-1 / 512)}, {vr(SX + c)}')
    for k, m in ((1, 's[98:99]'), (2, 's[100:101]'), (3, 'vcc')):
        for c in range(4):
            b = SXX + 4 * c
            st.append(f'v_cndmask_b32 {vr(b)}, {vr(b)}, {vr(b + k)}, {m}')
    for c in range(4 if not OPT.get('small', 1) else 0):
        st.append(f'v_cndmask_b32 {vr(SXX + 4 * c)}, 0, {vr(SXX + 4 * c)}, s[92:93]')
    for sw in ('v_permlane32_swap_b32', 'v_permlane16_swap_b32'):
        for c in range(4): st.append(f'v_mov_b32 {vr(SXX + 4 * c + 1)}, {vr(SXX + 4 * c)}')
        for c in range(4): st.append(f'{sw} {vr(SXX + 4 * c)}, {vr(SXX + 4 * c + 1)}')
        for c in range(4): st.append(f'v_add_f32 {vr(SXX + 4 * c)}, {vr(SXX + 4 * c)}, {vr(SXX + 4 * c + 1)}')
    sc = (128 ** -0.5) * math.log2(math.e)
    for c in range(4): st.append(f'v_mul_f32 {vr(SXX + 4 * c)}, {f2u(1 / 512)}, {vr(SXX + 4 * c)}')
    for c in range(4): st.append(f'v_fma_f32 {vr(SXX + 4 * c)}, -{vr(NMEAN(c))}, {vr(NMEAN(c))}, {vr(SXX + 4 * c)}')
    for c in range(4): st.append(f'v_max_f32 {vr(SXX + 4 * c)}, 0, {vr(SXX + 4 * c)}')
    for c in range(4): st.append(f'v_add_f32 {vr(SXX + 4 * c)}, {f2u(1e-5)}, {vr(SXX + 4 * c)}')
    for c in range(4): st.append(f'v_rsq_f32 {vr(ALPHA(c))}, {vr(SXX + 4 * c)}')
    for c in range(4): st.append(f'v_rcp_f32 {vr(RS2(c))}, {vr(SXX + 4 * c)}')
    for c in range(4): st.append(f'v_mul_f32 {vr(ALPHA(c))}, {f2u(sc)}, {vr(ALPHA(c))}')
    rd = [f'ds_read_b128 {vr(CSQ + 4 * nb, 4)}, v4 offset:{64 * nb}' for nb in range(8)]
    return (w0, w1), st, rd

def bc(r):
    return vr(r & ~1, 2), (r & 1)

def a_epilogue(a, opt):
    for c in range(4):
        nm, nh = bc(NMEAN(c))
        for nb in range(8):
            b = ACQ + (nb * 4 + c) * 4
            for i in (0, 2):
                a(f'v_pk_fma_f32 {vr(b + i, 2)}, {vr(CSQ + 4 * nb + i, 2)}, {nm}, {vr(b + i, 2)} op_sel:[0,{nh},0] op_sel_hi:[1,{nh},1]')
    for c in range(4):
        al, ah = bc(ALPHA(c))
        for nb in range(8):
            b = ACQ + (nb * 4 + c) * 4
            for i in (0, 2):
                a(f'v_pk_mul_f32 {vr(b + i, 2)}, {vr(b + i, 2)}, {al} op_sel:[0,{ah}] op_sel_hi:[1,{ah}]')
            for i in (0, 2):
                a(f'v_cvt_pk_bf16_f32 {vr(Q + 16 * c + 2 * nb + (i >> 1))}, {vr(b + i)}, {vr(b + i + 1)}')
    stamp(a, opt, 'e_q')
    for nb in range(8):
        a(f'ds_read_b128 {vr(CSG + 4 * nb, 4)}, v4 offset:{64 * (8 + nb)}')

def h_epilogue(a, mfmas, vmem):
    mfmas = list(mfmas)
    if OPT.get('x_noh'):
        emit_plain(a, vmem)
        for m in mfmas: a(m)
        a('s_nop 7')
        return
    for c in range(4):
        nm, nh = bc(NMEAN(c)); rs, rh = bc(RS2(c))
        tg = 128; tu = 144
        emit_plain(a, vmem[c:c + 1])
        for k in range(16):
            if k % 2 == 0: a(mfmas.pop(0))
            a(f'v_accvgpr_read_b32 {vr(tg + k)}, {ar(AGU + ((k >> 2) * 4 + c) * 4 + (k & 3))}')
            a(f'v_accvgpr_read_b32 {vr(tu + k)}, {ar(AGU + (((k >> 2) + 4) * 4 + c) * 4 + (k & 3))}')
        for k in range(0, 16, 2):
            a(f'v_pk_fma_f32 {vr(tg + k, 2)}, {vr(CSG + k, 2)}, {nm}, {vr(tg + k, 2)} op_sel:[0,{nh},0] op_sel_hi:[1,{nh},1]')
        for k in range(0, 16, 2):
            a(f'v_pk_fma_f32 {vr(tu + k, 2)}, {vr(CSG + 16 + k, 2)}, {nm}, {vr(tu + k, 2)} op_sel:[0,{nh},0] op_sel_hi:[1,{nh},1]')
        for k in range(0, 16, 2):
            a(f'v_pk_mul_f32 {vr(tg + k, 2)}, {vr(tg + k, 2)}, {rs} op_sel:[0,{rh}] op_sel_hi:[1,{rh}]')
        for k in range(0, 16, 2):
            a(f'v_pk_mul_f32 {vr(tg + k, 2)}, {vr(tg + k, 2)}, {vr(tu + k, 2)}')
        for k in range(8):
            a(f'v_cvt_pk_bf16_f32 {vr(tu + k)}, {vr(tg + 2 * k)}, {vr(tg + 2 * k + 1)}')
        for k in range(8):
            a(f'v_accvgpr_write_b32 {ar(HP + c * 8 + k)}, {vr(tu + k)}')
    assert not mfmas

def Sreg(buf, c, kb=0): return S + buf * 32 + c * 8 + kb * 4
def Qreg(c, s): return Q + c * 16 + s * 4
def Preg(c, par): return (PA if c < 2 else PB) + par * 8 + (c & 1) * 4
def Oreg(c, db): return O + c * 32 + db * 4
def LMreg(hf): return LM + hf * 4
def LOLD(hf): return LM + 8 + hf
SELA = 24; HL = 33; SL = 66
def qk_mfma(buf, c, kb, s, c0=None, head=None):
    d = vr(Sreg(buf, c, kb), 4)
    cc = d if not (s == 0 if head is None else head) else (c0 if c0 is not None else vr(NM + 4 * c, 4))
    return mf(d, ar(KF + 4 * (kb * 4 + s), 4), vr(Qreg(c, s), 4), cc)
def pv_mfma(c, par, db, c0=None):
    d = ar(Oreg(c, db), 4)
    return mf(d, ar(VF + par * 32 + db * 4, 4), vr(Preg(c, par), 4), d if c0 is None else c0)
def sum_mfma(hf, par):
    return f'v_smfmac_f32_16x16x64_bf16 {vr(LMreg(hf), 4)}, {vr(SELA, 4)}, {vr(Preg(2 * hf, par), 8)}, {vr(SIDX)}'
def k_read(slot, kb, s, base=None):
    if base is not None:
        return f'ds_read_b128 {ar(KF + 4 * (kb * 4 + s), 4)}, {vr(base + s)} offset:{slot * STAGE + kb * 8192}'
    return f'ds_read_b128 {ar(KF + 4 * (kb * 4 + s), 4)}, {vr(KA + 4 * (slot >> 2) + s)} offset:{(slot & 3) * STAGE + kb * 8192}'
def v_read(slot, db, u):
    return f'ds_read_b64_tr_b16 {ar(VF + (slot & 1) * 32 + db * 4 + 2 * u, 2)}, {vr((VAB if slot >= 4 else VAA) + db)} offset:{(slot & 3) * STAGE + u * 8192 + 2048}'
def dma_k(i):
    return f'buffer_load_dwordx4 {vr(DK0 + i)}, {sr(SRD_K, 4)}, {sr(sOK)} offen offset:{1024 * i}{OPT.get("kvsc", "")} lds'
def dma_v(i):
    return f'buffer_load_dwordx4 {vr(DV0 + i)}, {sr(SRD_V, 4)}, {sr(sOK)} offen offset:{2048 + 1024 * i}{OPT.get("kvsc", "")} lds'
def stage_dma(slot, k=True, v=True):
    ops = ([dma_k(0), dma_k(1)] if k else []) + ([dma_v(0), dma_v(1)] if v else [])
    ops[0] = (f's_add_u32 m0, {sr(sW4K)}, {slot * STAGE}', f's_add_u32 {sr(sOK)}, {sr(sOK)}, 8192', ops[0])
    return ops

def b_setup_dma_addr(a):
    a(f'''
    s_lshl_b32 s3, {sr(sW)}, 3
    v_add_u32 v5, s3, v3          ; row = 8w + (l>>4)
    v_and_b32 v7, 15, v5
    v_xor_b32 v7, v7, v2
    v_lshlrev_b32 v7, 4, v7
    v_lshl_add_u32 {vr(DK0)}, v5, 8, v7
    v_xor_b32 {vr(DK1)}, 64, {vr(DK0)}
    v_lshlrev_b32 v7, 1, v3
    v_xor_b32 v7, v7, v2
    v_lshlrev_b32 v7, 4, v7
    v_lshl_add_u32 {vr(DV0)}, v5, 8, v7
    v_xor_b32 {vr(DV1)}, 128, {vr(DV0)}
    s_mov_b32 {sr(sOK)}, {-8192 & 0xffffffff}
    ''')

def b_prologue_dma():
    ops = stage_dma(8, v=False) + stage_dma(9, v=False)
    for sl in range(5):
        ops += stage_dma(sl)
    return ops

def b_prologue_dma2():
    return stage_dma(5)

def b_setup_read_addr(a):
    a(f'''
    v_lshrrev_b32 v4, 3, v2
    v_lshlrev_b32 v4, 12, v4      ; (r>>3)*4096
    v_and_b32 v5, 7, v2
    v_lshl_add_u32 v4, v5, 8, v4  ; + (r&7)*256
    v_xor_b32 v5, v2, v3
    v_lshl_add_u32 v4, v5, 4, v4  ; + (r^g)*16
    ''')
    for s in range(4):
        a(f'v_xor_b32 {vr(KA + s)}, {s * 64}, v4')
        a(f'v_add_u32 {vr(KA + 4 + s)}, 65536, {vr(KA + s)}')
        a(f'v_add_u32 {vr(ST + 8 + s)}, 131072, {vr(KA + s)}')
    a(f'''
    v_bfe_u32 v4, v1, 2, 3        ; row&7
    v_lshlrev_b32 v5, 8, v4
    v_lshl_add_u32 v5, v4, 5, v5
    v_lshrrev_b32 v6, 5, v1
    v_lshl_add_u32 v5, v6, 12, v5
    v_and_b32 v6, 3, v1
    v_lshl_add_u32 v5, v6, 3, v5
    ''')
    for db in range(8):
        a(f'v_xor_b32 {vr(VAA + db)}, {db * 32}, v5')
        a(f'v_add_u32 {vr(VAB + db)}, 65536, {vr(VAA + db)}')
    a(f'''
    v_mov_b32 {vr(THR)}, 0x4e800000      ; 2^30
    v_mov_b32 {vr(SIDX)}, {vr(IDX)}
    v_lshrrev_b32 v4, 3, v2
    v_lshrrev_b32 v5, 5, v1
    v_and_b32 v6, 3, v1
    v_lshl_add_u32 v4, v6, 1, v4
    v_cmp_eq_u32 vcc, v4, v5
    v_mov_b32 v4, 0x3f803f80
    s_nop 0
    v_cndmask_b32 v5, 0, v4, vcc
    ''')
    for i in range(4):
        a(f'v_mov_b32 {vr(SELA + i)}, v5')
    a(f'v_lshlrev_b32 {vr(CL16)}, 4, v1')

def xlane(a, op, dst, t2):
    for sw in ('v_permlane32_swap_b32', 'v_permlane16_swap_b32'):
        a(f'v_mov_b32 {vr(t2)}, {vr(dst)}')
        a('s_nop 1')
        a(f'{sw} {vr(dst)}, {vr(t2)}')
        a(f'{op} {vr(dst)}, {vr(dst)}, {vr(t2)}')

def rowmax(a, base, dst, t2):
    a(f'v_max3_f32 {vr(dst)}, {vr(base)}, {vr(base + 1)}, {vr(base + 2)}')
    a(f'v_max3_f32 {vr(dst)}, {vr(dst)}, {vr(base + 3)}, {vr(base + 4)}')
    a(f'v_max3_f32 {vr(dst)}, {vr(dst)}, {vr(base + 5)}, {vr(base + 6)}')
    a(f'v_max_f32 {vr(dst)}, {vr(dst)}, {vr(base + 7)}')
    xlane(a, 'v_max_f32', dst, t2)

def softmax_c(a, sbase, pbase, tb, n=4):
    for r in range(n):
        a(f'v_exp_f32 {vr(tb)}, {vr(sbase + 2 * r)}')
        a(f'v_exp_f32 {vr(tb + 1)}, {vr(sbase + 2 * r + 1)}')
        a('s_nop 0')
        a(f'v_cvt_pk_bf16_f32 {vr(pbase + r)}, {vr(tb)}, {vr(tb + 1)}')

def b_prologue(a, opt):
    b_setup_read_addr(a)
    a('s_waitcnt vmcnt(0) lgkmcnt(0)')
    stamp(a, opt, 'e_h')
    a('s_barrier')
    for kb in range(2):
        for s in range(4):
            a(k_read(0, kb, s, base=ST + 8))
    a(f'''
    s_lshl_b32 s3, {sr(sQB)}, 4
    s_lshl_b32 s7, {sr(sW)}, 2
    s_add_u32 s3, s3, s7
    s_mul_i32 s3, s3, {HST()}
    {FB('s7', 's63')}
    s_lshl_b32 s7, s7, 11
    s_add_u32 s3, s3, s7
    s_add_u32 {sr(sHO)}, s3, {WS_H}
    s_mov_b32 s{SRD_WG}, s{SRD_WS}
    s_mov_b32 s{SRD_WG + 1}, s{SRD_WS + 1}
    {FBOK('s7')}
    s_cselect_b32 s{SRD_WG + 2}, 0x10000000, 0
    s_mov_b32 s{SRD_WU}, s{SRD_DBG}
    s_mov_b32 s{SRD_WU + 1}, s{SRD_DBG + 1}
    s_mov_b32 s{SRD_WU + 2}, 4
    s_cmp_eq_u32 {sr(sW)}, 0
    s_cselect_b32 {sr(sXO)}, 4, 64
    {TW('s54')}
    s_lshl_b32 s3, s54, 2
    s_bfe_u32 s7, s2, 0x20001
    s_add_u32 s3, s3, s7
    s_mul_i32 s3, s3, 12288
    s_add_u32 s92, s3, {WS_XF}
    s_add_u32 s93, s92, 4096
    s_add_u32 s62, s92, 8192
    s_waitcnt lgkmcnt(0)
    ''')
    h_epilogue(a, [qk_mfma(0, c, kb, s, c0='0') for c in range(4) for kb in range(2) for s in range(4)], b_prologue_dma2())
    stamp(a, opt, 'e_h2')
    for kb in range(2):
        for s in range(4):
            a(k_read(1, kb, s, base=ST + 8))
    for i in range(10):
        a(f'v_mov_b32 {vr(LM + i)}, 0')
    m = [ST + c for c in range(4)]; t2 = [ST + 4 + c for c in range(4)]
    for k in range(4):
        for c in range(4):
            b = Sreg(0, c)
            a([f'v_max3_f32 {vr(m[c])}, {vr(b)}, {vr(b + 1)}, {vr(b + 2)}', f'v_max3_f32 {vr(m[c])}, {vr(m[c])}, {vr(b + 3)}, {vr(b + 4)}',
               f'v_max3_f32 {vr(m[c])}, {vr(m[c])}, {vr(b + 5)}, {vr(b + 6)}', f'v_max_f32 {vr(m[c])}, {vr(m[c])}, {vr(b + 7)}'][k])
    for sw in ('v_permlane32_swap_b32', 'v_permlane16_swap_b32'):
        for c in range(4): a(f'v_mov_b32 {vr(t2[c])}, {vr(m[c])}')
        a('s_nop 0')
        for c in range(4): a(f'{sw} {vr(m[c])}, {vr(t2[c])}')
        for c in range(4): a(f'v_max_f32 {vr(m[c])}, {vr(m[c])}, {vr(t2[c])}')
    for c in range(4):
        for i in range(8):
            a(f'v_sub_f32 {vr(Sreg(0, c) + i)}, {vr(Sreg(0, c) + i)}, {vr(m[c])}')
        for i in range(4):
            a(f'v_sub_f32 {vr(NM + 4 * c + i)}, 0, {vr(m[c])}')
    for e in range(6):
        a(f'v_exp_f32 {vr(128 + e)}, {vr(Sreg(0, 2) + e)}')
    a(f'v_mov_b32 {vr(ONEV)}, 1')
    for r in range(3):
        a(f'v_cvt_pk_bf16_f32 {vr(Preg(2, 0) + r)}, {vr(128 + 2 * r)}, {vr(129 + 2 * r)}')
    a('s_waitcnt lgkmcnt(0)')

BIG = [22, 26, 30, HL + 9, HL + 13, HL + 17, HL + 22, HL + 26, HL + 30]
def step_gaps(slot, tag, opt, dma=True, final=False, extra=None, vm=0, first=None):
    p = slot & 1
    H = 1 - p
    sn = OPT.get('snk', 'qpac')
    qk = []
    for c in (2 * p, 2 * p + 1, 2 * H, 2 * H + 1):
        for i in range(2):
            kb = i ^ (c & 1) if 'q' in sn else i
            ss = range(4) if i == 0 or 'q' not in sn else range(3, -1, -1)
            qk += [qk_mfma(1 - p, c, kb, s, head=k == 0) for k, s in enumerate(ss)]
    pv = []
    for c in (2 * H, 2 * H + 1):
        for i, db in enumerate(range(8) if c & 1 == 0 else range(7, -1, -1)):
            if first == 0:
                pv += ['s_nop 0', pv_mfma(c, p, db, c0='0')]
            else:
                o = (1 - p, p) if i & 1 == 0 or 'p' not in sn else (p, 1 - p)
                pv += [pv_mfma(c, o[0], db, c0='0' if first == 1 else None), pv_mfma(c, o[1], db)]
    mfs = qk[:24] + [sum_mfma(H, p)] + qk[24:] + pv[:24] + [sum_mfma(p, p)] + pv[24:]
    G = [Gap(m) for m in mfs]
    def unit(hf, buf, e0, e1, g0):
        for e in range(e0, e1):
            g = g0 + 2 * (e - e0)
            G[g].valu.append(f'v_exp_f32 {vr(TMP + (e & 3))}, {vr(Sreg(buf, 2 * hf) + e)}')
            if e & 1:
                G[g + 1].valu.append(f'v_cvt_pk_bf16_f32 {vr(Preg(2 * hf, buf) + (e >> 1))}, {vr(TMP + ((e - 1) & 3))}, {vr(TMP + (e & 3))}')
    unit(H, p, 6, 16, 0); unit(p, p, 0, 6, 21); unit(p, p, 6, 16, HL)
    if not final: unit(p, 1 - p, 0, 6, HL + 21)
    for u, (hf, g0) in enumerate(((H, 0), (p, HL))):
        late = final and u == 1
        G[g0 + (31 if late else 28)].valu.append(f'v_cmp_nle_f32 vcc, {vr(LMreg(hf))}, {vr(THR)}')
        G[g0 + 32].post += [f's_cbranch_vccnz L_slow{u}_{tag}', f'L_back{u}_{tag}:']
    G[20].valu.append(f'v_mov_b32 {vr(LOLD(H))}, {vr(LMreg(H))}')
    G[HL + 20].valu.append(f'v_mov_b32 {vr(LOLD(p))}, {vr(LMreg(p))}')
    vplace = [1, 1, 3, 5, 5, 7, 9, 9, 11, 13, 13, 15, 17, 17, 19, 20]
    kplace = [HL + x for x in (1, 1, 3, 5, 5, 7, 11, 15)]
    for g, x in zip(vplace, [v_read(slot, db, u) for db in range(8) for u in range(2)]):
        G[g].mem.append(x)
    if not final:
        for g, x in zip(kplace, [k_read(slot, kb, s) for kb in range(2) for s in range(4)]):
            G[g].mem.append(x)
    G[HL - 1].pre.append('s_waitcnt lgkmcnt(0)')
    ops = []
    if dma:
        ops = [None] * 3 + stage_dma((slot + 6) & 7, k=dma != 'v')
        G[BIG[3] - 3].pre.append(ops[3][1]); ops[3] = (ops[3][0], ops[3][2])
    if extra:
        ops = extra
    for g, x in zip(BIG, ops):
        if x is not None:
            place(G, [x], g, g)
    if slot & 1:
        G[SL - 1].pre += [f's_waitcnt vmcnt({vm}) lgkmcnt(0)', 's_barrier'] if not final else []
    else:
        G[SL - 1].pre.append('s_waitcnt lgkmcnt(0)')
    if final:
        for g in G:
            if g.m in qk:
                g.m = 's_nop 0'
        if OPT.get('fin2', 1):
            old = [g for g in G[HL:] if g.m.startswith('v_mfma') and f', {ar(VF + (1 - p) * 32)[0]}[' in g.m and any(g.m == pv_mfma(c, 1 - p, db) for c in range(4) for db in range(8))]
            for g, h in zip(old, [G[k] for k in range(0, 32, 2) if k != 24] + [G[31]]):
                h.m, g.m = g.m, 's_nop 0'
        G[25].pre.append('s_nop 3')
        G[HL + 30].pre.append('s_nop 6')
    if first == 0: G[HL + 26].pre.append('s_nop 2')
    if final or first == 0:
        for k, g in enumerate(G):
            if g.m == 's_nop 0' and not (k and G[k - 1].valu and G[k - 1].valu[-1].startswith('v_exp') and not g.mem and not g.pre and g.valu):
                g.m = None
    return G

def gapops(G):
    return [[x for x in g.ops() if x is not None] for g in G]

def slow_path(a, p, u, final=False):
    hf = (1 - p) if u == 0 else p
    a.label(f'L_slowfn{u}_{p}_{int(final)}')
    a('s_nop 15')
    a(f'v_mov_b32 {vr(ST + 8)}, {vr(LOLD(hf))}\nv_mov_b32 {vr(ST + 9)}, {vr(LOLD(hf))}\ns_nop 1\nv_permlane16_swap_b32 {vr(ST + 8)}, {vr(ST + 9)}\nv_add_f32 {vr(ST + 8)}, {vr(ST + 8)}, {vr(ST + 9)}')
    for c in (2 * hf, 2 * hf + 1):
        cur = Sreg(p, c); nxt = Sreg(1 - p, c)
        d = ST + 4 + (c & 1); al = ST + 6 + (c & 1)
        rowmax(a, cur, d, ST + 1)
        a(f'v_max_f32 {vr(d)}, 0, {vr(d)}')
        a(f'v_mov_b32 {vr(ST)}, {vr(ST + 8)}')
        a(f'v_mov_b32 {vr(ST + 1)}, {vr(ST + 8)}')
        a('s_nop 1')
        a(f'v_permlane32_swap_b32 {vr(ST)}, {vr(ST + 1)}')
        a(f'v_log_f32 {vr(ST)}, {vr(ST + (c & 1))}')
        a('s_nop 0')
        a(f'v_max_f32 {vr(d)}, {vr(d)}, {vr(ST)}')
        a(f'v_sub_f32 {vr(al)}, 0, {vr(d)}')
        a(f'v_exp_f32 {vr(al)}, {vr(al)}')
        for i in range(8):
            a(f'v_sub_f32 {vr(cur + i)}, {vr(cur + i)}, {vr(d)}')
        if not final:
            for i in range(8):
                a(f'v_sub_f32 {vr(nxt + i)}, {vr(nxt + i)}, {vr(d)}')
        for i in range(4):
            a(f'v_sub_f32 {vr(NM + 4 * c + i)}, {vr(NM + 4 * c + i)}, {vr(d)}')
        for i in range(32):
            a(f'v_accvgpr_read_b32 {vr(ST + 2)}, {ar(Oreg(c, 0) + i)}')
            a(f'v_mul_f32 {vr(ST + 2)}, {vr(ST + 2)}, {vr(al)}')
            a(f'v_accvgpr_write_b32 {ar(Oreg(c, 0) + i)}, {vr(ST + 2)}')
        softmax_c(a, cur, Preg(c, p), ST + 2)
        if u == 0 and not (final and OPT.get('fin2', 1)):
            for r in range(4):
                x = Preg(c, 1 - p) + r
                a(f'v_lshlrev_b32 {vr(ST + 2)}, 16, {vr(x)}\nv_and_b32 {vr(ST + 3)}, 0xffff0000, {vr(x)}')
                a(f'v_mul_f32 {vr(ST + 2)}, {vr(ST + 2)}, {vr(al)}\nv_mul_f32 {vr(ST + 3)}, {vr(ST + 3)}, {vr(al)}')
                a(f'v_cvt_pk_bf16_f32 {vr(x)}, {vr(ST + 2)}, {vr(ST + 3)}')
        elif not final and c & 1 == 0:
            softmax_c(a, nxt, Preg(c, 1 - p), ST + 2, n=3)
    a(f'v_cmp_gt_u32 vcc, 32, {vr(LANE)}')
    a('s_nop 1')
    a(f'v_cndmask_b32 {vr(ST)}, {vr(ST + 7)}, {vr(ST + 6)}, vcc')
    a(f'v_mul_f32 {vr(LMreg(hf))}, {vr(LOLD(hf))}, {vr(ST)}')
    a('s_nop 1')
    a(sum_mfma(hf, p))
    a('s_nop 7')
    a('s_setpc_b64 s[98:99]')

SLOW = []; PFX = []
def is_vm(x): return x.startswith(('buffer_', 'global_'))
def vm_between(G, g0, g1):
    return sum(1 for g in G[g0:g1] for x in g.mem if is_vm(x))

def trace_ops(G, lane, n=8):
    for sl in range(n):
        G[sl * SL + 0].pre += ['s_memtime s[100:101]'] + lane(sl)
        G[sl * SL + 44].valu += ['v_cmp_eq_u32 vcc, s95, v1']
        G[sl * SL + 48].valu += ['v_mov_b32 v222, s100']
        G[sl * SL + 52].valu += ['v_cndmask_b32 v221, v221, v222, vcc']

def ALIGN(): return OPT.get('align', False)
def first_pass(a, opt):
    G = []
    for st in range(16):
        G += step_gaps(st & 7, f'f{st}', opt, vm='VM', first=st if st < 2 else None); SLOW.append((st & 1, f'f{st}', False))
    def at(st, g, x): place(G, [x], st * SL + g, st * SL + g)
    hs = OPT.get('hs', [(0, 63), (1, 63), (5, 63), (6, 59), (6, 63), (7, 63), (8, 63), (9, 63)])
    for k in range(8):
        x = f'buffer_store_dwordx4 {ar(HP + 4 * k, 4)}, {vr(CL16)}, {sr(SRD_WG, 4)}, {sr(sHO)} offen offset:{1024 * (k & 1)} sc1'
        if k in (2, 4, 6): x = (f's_add_u32 {sr(sHO)}, {sr(sHO)}, {HST()}', x)
        if not opt.get('nohst'): at(hs[k][0], hs[k][1], x)
    place(G, wp_addr0(), SL + 22, SL + 45, kind='valu')
    dpos = OPT.get('dpos', [(2, 26), (2, 30), (3, 26), (3, 30), (4, 26), (4, 30), (5, 26), (5, 30)])
    for (st, g), x in zip(dpos, wp_dma()): at(st, g, x)
    place(G, wp_addr1(), 7 * SL + 22, 9 * SL + 30, kind='valu')
    r0 = OPT.get('r0', 10)
    assert r0 % 2 == 0 and dpos[-1][0] <= r0 - 5
    rd = wp_reads()
    sc, stv = wp_stores()
    G[9 * SL + 2].pre += sc[:2]; G[9 * SL + 4].pre += sc[2:6]; G[9 * SL + 6].pre += sc[6:]
    spos = OPT.get('spos', [(10, 63), (11, 59), (11, 63), (12, 63), (13, 63), (14, 59), (14, 63), (15, 63)])
    for k in range(4):
        place(G, rd[4 * k:4 * k + 4], (r0 + k) * SL + 22, (r0 + k) * SL + 26)
    for k, (st, g) in enumerate(spos):
        assert st >= r0 + k // 2
        at(st, g, stv[k])
    for j in range(1, 16, 2):
        n = vm_between(G, 0 if j < 4 else (j - 4) * SL + BIG[6] + 1, j * SL + SL - 1)
        G[j * SL + SL - 1].pre = [x.replace('VM', str(min(n, 63))) for x in G[j * SL + SL - 1].pre]
    if opt.get('trace'): trace_ops(G, lambda st: [f's_mov_b32 s95, {63 - st}'], 16)
    a.raw('.p2align 3')
    emit_gaps(a, gapops(G), align=ALIGN())

def phase_b(a, opt):
    b_prologue(a, opt)
    stamp(a, opt, 'B0')
    a(f's_mov_b32 {sr(sCNT)}, 5')
    first_pass(a, opt)
    stamp(a, opt, 'B1')
    a.raw('.p2align 6')
    a.label('L_attn')
    G = []
    for sl in range(8):
        G += step_gaps(sl, f's{sl}', opt, vm=16); SLOW.append((sl & 1, f's{sl}', False))
    G[2 * SL + 21].pre += [f's_cmp_eq_u32 {sr(sCNT)}, {sr(sXO)}']
    G[2 * SL + 22].post += ['s_cbranch_scc1 L_cnt', 'L_cnt_ok:']
    if opt.get('trace'): trace_ops(G, lambda sl: [f's_lshl_b32 s95, {sr(sCNT)}, 3', f's_add_u32 s95, s95, {7 - sl}'])
    G[-6].pre.append(f's_sub_u32 {sr(sCNT)}, {sr(sCNT)}, 1')
    G[-4].pre.append(f's_cmp_lg_u32 {sr(sCNT)}, 0')
    G[-1].post.append('s_cbranch_scc1 L_attn')
    emit_gaps(a, gapops(G), align=ALIGN())
    a.raw('.p2align 3')
    G = []
    NPF = OPT.get('npfs', 8)
    pf = [x for t in range(NPF) for x in c_dma(t)]
    extra = {4: pf[:8], 5: pf[8:16], 6: pf[16:24], 7: pf[24:]}
    for sl in range(8):
        g = step_gaps(sl, f't{sl}', opt, dma='v' if sl < 2 else False, final=sl == 7, extra=extra.get(sl), vm={1: 12, 3: 0, 5: 63}.get(sl, 0)); SLOW.append((sl & 1, f't{sl}', sl == 7))
        if sl == 0 and OPT.get('npf', 1):
            g[2].pre += ['s_lshr_b32 s3, s2, 3', 's_lshl_b32 s3, s3, 2', f's_add_u32 s3, s3, {sr(sW)}']
            g[4].pre += ['s_lshr_b32 s7, s3, 4', f's_mul_i32 s7, s7, {WFS}', 's_and_b32 s3, s3, 15']
            g[6].pre += ['s_lshl_b32 s3, s3, 13', 's_add_u32 s3, s3, s7', 's_bfe_u32 s7, s2, 0x20001']
            g[8].pre += ['s_lshl_b32 s7, s7, 17', 's_add_u32 s3, s3, s7', f's_add_u32 s58, s3, {WS_WF + 56 * 4096}']
            g[22].valu.append('v_lshlrev_b32 v4, 7, v1')
        if sl == 4 and OPT.get('npf', 1):
            PFX.append(f'buffer_load_dword v5, v4, {sr(SRD_WS, 4)}, s58 offen sc1')
            g[BIG[8]].mem.append(PFX[-1])
        if sl == 2:
            su = c_setup_scalar()
            for k in range(0, len(su), 2):
                g[2 + k].pre += su[k:k + 2]
            g[22].mem.append(f'buffer_load_dword {vr(POLLV)}, off, {sr(SRD_DBG, 4)}, 0 sc1')
        if sl == 4:
            g[15].valu.append(f'v_cmp_gt_u32 vcc, 0x100, {vr(POLLV)}')
            g[19].post += ['s_cbranch_vccnz L_pollall', 'L_pollall_ok:']
        G += g
    if opt.get('trace'): trace_ops(G, lambda sl: [f's_mov_b32 s95, {7 - sl}'])
    emit_gaps(a, gapops(G), align=ALIGN())
    stamp(a, opt, 'Bend')
    if opt.get('trace'): a('v_mov_b32 v63, v221')

def finalize_pre(a):
    a(f'''
    s_lshl_b32 s3, {sr(sQB)}, 4
    s_lshl_b32 s7, {sr(sW)}, 2
    s_add_u32 s3, s3, s7
    s_mul_i32 s3, s3, {OST()}
    s_lshl_b32 s7, {sr(sH)}, 12
    s_add_u32 {sr(sOK)}, s3, s7
    ''')
    for hf in range(2):
        a(f'v_mov_b32 {vr(ST + hf)}, {vr(LMreg(hf))}')
    a('s_nop 0')
    for hf in range(2):
        a(f'v_permlane16_swap_b32 {vr(LMreg(hf))}, {vr(ST + hf)}')
    for hf in range(2):
        a(f'v_add_f32 {vr(ST + 2 + 2 * hf)}, {vr(LMreg(hf))}, {vr(ST + hf)}')
        a(f'v_add_f32 {vr(ST + 3 + 2 * hf)}, {vr(LMreg(hf))}, {vr(ST + hf)}')
    a('s_nop 0')
    for hf in range(2):
        a(f'v_permlane32_swap_b32 {vr(ST + 2 + 2 * hf)}, {vr(ST + 3 + 2 * hf)}')
    for c in range(4):
        a(f'v_rcp_f32 {vr(RL + 2 * c)}, {vr(ST + 2 + c)}')
        a(f'v_rcp_f32 {vr(RL + 2 * c + 1)}, {vr(ST + 2 + c)}')

NF = 14; NS = 32
BLK = [0, 1, 2, 3, 8, 9, 4, 5, 6, 7]
sB0 = 56; sB1 = 57
BAD = 8; AAD = 20; CA2 = 192; CB2 = 224
def c_stream(kind):
    st, base, k0, nk, ka = (HST(), WS_H, 0, NF, 0) if kind[0] == 'f' else (OST(), WS_O, 0, NS, 56)
    ops = []
    if 'b' in kind:
        ops += [f's_lshl_b32 s3, {sr(sRB)}, 2', f's_add_u32 s3, s3, {sr(sW)}', f's_mul_i32 s3, s3, {2 * st}', 's_bfe_u32 s7, s2, 0x20001', f's_mul_i32 s7, s7, {nk * 1024}',
                's_add_u32 s3, s3, s7', f's_add_u32 {sr(sB0)}, s3, {(base - 1024) & 0xffffffff}', f's_add_u32 {sr(sB1)}, {sr(sB0)}, {st - 1024}']
    if 'a' in kind:
        ops += [f's_lshl_b32 s3, {sr(sCB)}, 1', f's_lshr_b32 s7, {sr(sW)}, 1', 's_add_u32 s3, s3, s7', f's_mul_i32 s3, s3, {WFS}', 's_bfe_u32 s7, s2, 0x20001', f's_mul_i32 s7, s7, {nk * 4096}',
                's_add_u32 s3, s3, s7', f's_and_b32 s7, {sr(sW)}, 1', 's_lshl_b32 s7, s7, 11', 's_add_u32 s3, s3, s7', f's_add_u32 {sr(sAO)}, s3, {WS_WF + ka * 4096 - 2048 - 4096}']
    return ops
def c_setup_scalar(): return c_stream('fab')
def c_dma(t, what='ab'):
    ops = []
    pre = (f's_add_u32 m0, {sr(sW4K)}, {BLK[t % 10] * STAGE}',)
    if 'b' in what:
        ops += [pre + (f's_add_u32 {sr(sB0)}, {sr(sB0)}, 1024', f'buffer_load_dwordx4 {vr(CL16)}, {sr(SRD_WS, 4)}, {sr(sB0)} offen sc1 lds'),
                (f's_add_u32 {sr(sB1)}, {sr(sB1)}, 1024', f'buffer_load_dwordx4 {vr(CL16)}, {sr(SRD_WS, 4)}, {sr(sB1)} offen offset:1024 sc1 lds')]
        pre = ()
    if 'a' in what:
        ops += [pre + (f's_add_u32 {sr(sAO)}, {sr(sAO)}, 4096', f'buffer_load_dwordx4 {vr(CL16)}, {sr(SRD_WS, 4)}, {sr(sAO)} offen offset:2048 sc1 lds'),
                f'buffer_load_dwordx4 {vr(CL16)}, {sr(SRD_WS, 4)}, {sr(sAO)} offen offset:3072 sc1 lds']
    return ops
def CCH(): return OPT.get('cch', 0)
def cA(t, k): return vr(64 + (t & 1) * 16 + 4 * k, 4) if CCH() and t & 2 else ar(CA2 + (t & 1) * 16 + 4 * k, 4)
def cB(t, k): return vr(96 + (t & 1) * 16 + 4 * k, 4) if CCH() and t & 2 else ar(CB2 + (t & 1) * 16 + 4 * k, 4)
def c_reads(t):
    b = BLK[t % 10]; off = (b & 3) * STAGE; st = b >> 2
    out = []
    for k in range(4):
        out.append(f'ds_read_b128 {cA(t, k)}, {vr(AAD + st)} offset:{off + (k >> 1) * 4096 + (k & 1) * 1024}')
        out.append(f'ds_read_b128 {cB(t, k)}, {vr(BAD + 4 * st + k)} offset:{off}')
    return out

def spin(a, name, sleep, body):
    a.label(name)
    a('s_mov_b32 s63, 0x20000')
    a.label(name + '_l')
    a(f's_sub_u32 s63, s63, 1\ns_cbranch_scc1 {name}_ok')
    if sleep: a(f's_sleep {sleep}')
    body(name + '_l')
    a(f's_branch {name}_ok')

def hooks(a):
    def flag(srd_):
        def body(l):
            a(f'buffer_load_dword v5, v4, {sr(srd_, 4)}, 0 offen sc1\ns_waitcnt vmcnt(0)\nv_cmp_ne_u32 vcc, v5, v6\ns_cbranch_vccnz {l}')
        return body
    def cnt(l):
        a(f'buffer_load_dword {vr(POLLV)}, off, {sr(SRD_DBG, 4)}, 0 sc1\ns_waitcnt vmcnt(0)\nv_cmp_gt_u32 vcc, 0x100, {vr(POLLV)}\ns_cbranch_vccnz {l}')
    a(f'L_cnt:\nbuffer_atomic_add {vr(ONEV)}, {vr(CL16)}, {sr(SRD_WU, 4)}, 0 offen sc1\ns_branch L_cnt_ok')
    spin(a, 'L_pollall', 8, cnt)
    spin(a, 'L_po', OPT.get('posleep', 8), flag(SRD_WG))
    spin(a, 'L_pf', 8, flag(SRD_WD))
    spin(a, 'L_ps', OPT.get('pssleep', 12), flag(SRD_WD))

class VM:
    def __init__(self, init): self.ops = list(init); self.done = 0
    def issue(self, tag): self.ops.append(tag); assert len(self.ops) - self.done <= 63, (tag, len(self.ops) - self.done)
    def wait(self, *tags):
        last = max(i for i, t in enumerate(self.ops) if t in tags)
        n = len(self.ops) - 1 - last
        self.done = max(self.done, last + 1)
        return f's_waitcnt vmcnt({n})'

def x_pack(acc, j, tb=160, pb=176):
    rd = [f'v_accvgpr_read_b32 {vr(tb + 4 * nb + i)}, {ar(acc + (nb * 4 + j) * 4 + i)}' for nb in range(4) for i in range(4)]
    cv = [f'v_cvt_pk_bf16_f32 {vr(pb + k)}, {vr(tb + 2 * k)}, {vr(tb + 2 * k + 1)}' for k in range(8)]
    return rd, cv
def x_dest(j, base, r):
    return ['s_bfe_u32 s7, s2, 0x20001', f's_add_u32 s7, s7, {j}', 's_and_b32 s7, s7, 3', 's_lshl_b32 s3, s54, 2', 's_add_u32 s3, s3, s7', 's_mul_i32 s3, s3, 12288',
            f's_add_u32 {r}, s3, {base + (j - 1) * 2048}']
def x_loads(part, reg):
    return [f'buffer_load_dwordx4 {vr(reg + 4 * k, 4)}, {vr(CL16)}, {sr(SRD_WS, 4)}, {XIN[(6 * part + k) >> 2]} offen offset:{1024 * ((6 * part + k) & 3)} sc1' for k in range(6)]
def x_check(a, reg, retry):
    a(f'''
    v_max3_u32 v14, {vr(reg)}, {vr(reg + 4)}, {vr(reg + 8)}
    v_max3_u32 v14, v14, {vr(reg + 12)}, {vr(reg + 16)}
    v_max_u32 v14, v14, {vr(reg + 20)}
    v_cmp_eq_u32 vcc, -1, v14
    s_cbranch_vccnz {retry}
    ''')
def x_add(a, dst, reg):
    for r in range(3):
        for k in range(8):
            a(f'v_lshlrev_b32 {vr(96 + 2 * k)}, 16, {vr(reg + 8 * r + k)}')
            a(f'v_and_b32 {vr(97 + 2 * k)}, 0xffff0000, {vr(reg + 8 * r + k)}')
        for k in range(0, 16, 2):
            a(f'v_pk_add_f32 {vr(dst + k, 2)}, {vr(dst + k, 2)}, {vr(96 + k, 2)}')
def x_accum(dst, src):
    ops = []
    for k in range(8):
        ops += [f'v_lshlrev_b32 v200, 16, {vr(src + k)}', f'v_and_b32 v201, 0xffff0000, {vr(src + k)}',
                f'v_add_f32 {vr(dst + 2 * k)}, {vr(dst + 2 * k)}, v200', f'v_add_f32 {vr(dst + 2 * k + 1)}, {vr(dst + 2 * k + 1)}, v201']
    return ops

def phase_c(a, opt):
    T = NF + NS
    COUT = 23; CXR = 24; GV = 240; XR = 32; SV = 224
    finalize_pre(a)
    NPRE = OPT.get('npre', 4)
    lastpv = [pv_mfma(c, 1, db) for c in (2, 3) for db in range(8)]
    assert NPRE == 4
    for c in range(NPRE):
        for i in range(32):
            if c < 2 and i % 4 == 0: a(lastpv.pop(0))
            a(f'v_accvgpr_read_b32 {vr(128 + i)}, {ar(Oreg(c, 0) + i)}')
        for f in range(4):
            for i in range(0, 8, 2): a(f'v_pk_mul_f32 {vr(128 + 8 * f + i, 2)}, {vr(128 + 8 * f + i, 2)}, {vr(RL + 2 * c, 2)}')
            for i in range(4): a(f'v_cvt_pk_bf16_f32 {vr(160 + 4 * f + i)}, {vr(128 + 8 * f + 2 * i)}, {vr(129 + 8 * f + 2 * i)}')
            a(f'buffer_store_dwordx4 {vr(160 + 4 * f, 4)}, {vr(CL16)}, {sr(SRD_WS, 4)}, {sr(sOK)} offen offset:{1024 * f} sc1')
        a(f's_add_u32 {sr(sOK)}, {sr(sOK)}, {OST()}')
    a(f'''
    s_lshr_b32 s7, {sr(sW)}, 1
    s_lshl_b32 s58, s7, 13               ; mh*8192
    s_and_b32 s7, {sr(sW)}, 1
    s_lshl_b32 s7, s7, 13
    s_add_u32 s7, s7, 2048
    v_add_u32 {vr(AAD)}, s7, {vr(CL16)}
    v_add_u32 {vr(AAD + 1)}, 65536, {vr(AAD)}
    v_add_u32 {vr(AAD + 2)}, 131072, {vr(AAD)}
    ''')
    for j in range(4):
        a(f'''
        s_bfe_u32 s3, s2, 0x20001
        s_add_u32 s3, s3, {j}
        s_and_b32 s7, s3, 1
        s_and_b32 s3, s3, 2
        s_lshl_b32 s3, s3, 11
        s_lshl_b32 s7, s7, 10
        s_add_u32 s3, s3, s7
        s_add_u32 s3, s3, s58
        v_add_u32 {vr(BAD + j)}, s3, {vr(CL16)}
        v_add_u32 {vr(BAD + 4 + j)}, 65536, {vr(BAD + j)}
        v_add_u32 {vr(BAD + 8 + j)}, 131072, {vr(BAD + j)}
        ''')
    vm = VM([0] * 4 + [1] * 4 + ['pf'] * len(PFX[-1:]) + [t for t in range(2, OPT.get('npfs', 8)) for _ in range(4)] + ['o'] * (4 * NPRE))
    a(vm.wait(3 if CCH() else 2))
    a('s_barrier')
    for x in c_reads(0) + (c_reads(1) if CCH() else []): a(x)
    a(f'''
    s_mov_b32 s{SRD_X}, s96
    s_mov_b32 s{SRD_X + 1}, s97
    s_mov_b32 s{SRD_X + 2}, 2097152
    s_mov_b32 s{SRD_X + 3}, 0x20000
    v_lshlrev_b32 v5, 5, v3
    v_lshl_add_u32 {vr(COUT)}, v2, 10, v5
    s_lshl_b32 s3, {sr(sRB)}, 17
    s_lshl_b32 s7, s58, 3
    s_add_u32 s3, s3, s7
    s_bfe_u32 s7, s2, 0x20001
    s_lshl_b32 s7, s7, 14
    s_add_u32 s3, s3, s7
    s_lshl_b32 s7, {sr(sCB)}, 8
    s_add_u32 s3, s3, s7
    s_and_b32 s7, {sr(sW)}, 1
    s_lshl_b32 s7, s7, 7
    s_add_u32 {sr(sOV)}, s3, s7
    s_add_u32 s{SRD_WU}, s{SRD_WS}, s94
    s_addc_u32 s{SRD_WU + 1}, s{SRD_WS + 1}, 0
    s_mov_b32 s{SRD_WU + 2}, 4
    s_lshl_b32 s3, {sr(sRB)}, 10
    s_lshr_b32 s7, s58, 4
    s_add_u32 s3, s3, s7                 ; flag lines of row block 2*RB + mh
    s_bfe_u32 s7, s2, 0x20001
    s_lshl_b32 s7, s7, 7
    s_add_u32 s3, s3, s7
    s_add_u32 s3, s3, {WS_FLAG}
    s_add_u32 s{SRD_WG}, s{SRD_WS}, s3
    s_addc_u32 s{SRD_WG + 1}, s{SRD_WS + 1}, 0
    s_mov_b32 s{SRD_WG + 2}, 32
    s_lshl_b32 s3, s54, 8
    s_add_u32 s3, s3, {WS_FF}
    s_add_u32 s{SRD_WD}, s{SRD_WS}, s3
    s_addc_u32 s{SRD_WD + 1}, s{SRD_WS + 1}, 0
    s_mov_b32 s{SRD_WD + 2}, 16
    s_bfe_u32 s7, s2, 0x20001
    s_lshl_b32 s7, s7, 2
    s_add_u32 s{SRD_WO}, s{SRD_WD}, s7
    s_addc_u32 s{SRD_WO + 1}, s{SRD_WD + 1}, 0
    s_mov_b32 s{SRD_WO + 2}, 4
    v_lshlrev_b32 v4, 2, v1
    v_cmp_gt_u32 vcc, 8, v1
    v_mov_b32 v0, 1
    s_nop 0
    v_cndmask_b32 v6, 0, 1, vcc
    s_waitcnt lgkmcnt(0)
    '''.replace('v_mov_b32 v0, 1', f'v_mov_b32 {vr(ONEV)}, 1'))
    if CCH(): a('s_barrier')
    a.raw('.p2align 3')
    NFS = OPT.get('nfs', 4)
    PT = OPT.get('pt', 10)
    flag_t = OPT.get('flag_t', 0)
    U0 = OPT.get('u0', 20)
    DD = OPT.get('dd', 9 if CCH() else 8)
    cont = OPT.get('cont', 1) and PT <= 10
    if cont: OPT.setdefault('fxlate', 1); OPT.setdefault('fflag', 6 * OPT.get('fsp', 1) + 6)
    if flag_t < 0:
        a(vm.wait('o'))
        a(f'buffer_store_dword {vr(ONEV)}, {vr(CL16)}, {sr(SRD_WU, 4)}, 0 offen sc1'); vm.issue('flag')
        stamp(a, opt, 'Oflag')
    for t in range(T):
        acc = ACF if t < NF else ACS_
        first = t in (0, NF)
        u = t - NF
        G = []
        order = [(nb, j if not ('c' in OPT.get('snk', 'qpac') and nb & 1) else 3 - j) for nb in range(4) for j in range(4)] if t < T - (2 if CCH() else 1) else [(nb, j) for j in (1, 2, 3, 0) for nb in range(4)]
        if CCH():
            t0 = t & ~1
            for nb, j in order[8 * (t & 1):8 * (t & 1) + 8]:
                d = ar(acc + (nb * 4 + j) * 4, 4)
                G += [Gap(mf(d, cA(t0, nb), cB(t0, j), '0' if t0 in (0, NF) else d)), Gap(mf(d, cA(t0 + 1, nb), cB(t0 + 1, j), d))]
        else:
            for nb, j in order:
                d = ar(acc + (nb * 4 + j) * 4, 4)
                G.append(Gap(mf(d, cA(t, nb), cB(t, j), '0' if first else d)))
        def vmem(g, x, tag):
            place(G, [x], g, None, cap=9); vm.issue(tag)
        if t == PT:
            if PT == NF:
                a(f'buffer_load_dword v5, v4, {sr(SRD_WG, 4)}, 0 offen sc1'); vm.issue('fl')
                for j in range(1, 4):
                    rd, cv = x_pack(ACF, j, 160, 176 + 8 * (j - 1))
                    for x in (['s_nop 4'] if j == 1 else []) + rd + cv: a(x)
            for x in c_stream('sb'): a(x)
            a(vm.wait('fl'))
            a('v_cmp_ne_u32 vcc, v5, v6\ns_cbranch_vccnz L_po\nL_po_ok:')
            stamp(a, opt, 'poll1')
            for tt in range(NF, PT + DD):
                emit_plain(a, c_dma(tt, 'b'))
                for k in range(2): vm.issue(tt)
            a('v_cmp_gt_u32 vcc, 4, v1\ns_nop 1\nv_cndmask_b32 v6, 0, 1, vcc')
            a.raw('.p2align 3')
        if t == NF and cont:
            stamp(a, opt, 's0')
        if t == NF and not cont:
            stamp(a, opt, 'fend')
            fxl = OPT.get('fxlate', 0)
            for j in range(1, 4) if not fxl else []:
                if PT != NF:
                    rd, cv = x_pack(ACF, j, 160, 176 + 8 * (j - 1))
                    for x in (['s_nop 6'] if j == 1 else []) + rd + cv: a(x)
                for x in x_dest(j, WS_XF, 's58'): a(x)
                for k in range(2):
                    a(f'buffer_store_dwordx4 {vr(176 + 8 * (j - 1) + 4 * k, 4)}, {vr(CL16)}, {sr(SRD_WS, 4)}, s58 offen offset:{1024 * k} sc1'); vm.issue('fx')
            a(vm.wait(NF, NF + 1, NF + 2))
            a('s_barrier')
            for x in c_reads(NF): a(x)
            a('s_waitcnt lgkmcnt(0)')
            stamp(a, opt, 's0')
            a.raw('.p2align 3')
        tr = t + (2 if CCH() else 1)
        if tr < T and (tr != NF or cont):
            for k, x in zip([0, 1, 3, 4, 5, 7, 8, 9], c_reads(tr)): G[k].mem.append(x)
        stores = []
        nf = OPT.get('nf', 4)
        if t < (16 - 4 * NPRE) // nf:
            c = (t * nf + 4 * NPRE) >> 2; f0 = (t * nf) & 3
            for i in range(8 * nf):
                G[i // nf].valu.append(f'v_accvgpr_read_b32 {vr(160 + i)}, {ar(Oreg(c, 2 * f0) + i)}')
            for i in range(0, 8 * nf, 2):
                G[8].valu.append(f'v_pk_mul_f32 {vr(160 + i, 2)}, {vr(160 + i, 2)}, {vr(RL + 2 * c, 2)}')
            G[8].post.append('s_nop 1')
            for f in range(nf):
                for i in range(4):
                    G[9 + f].valu.append(f'v_cvt_pk_bf16_f32 {vr(192 + 4 * f + i)}, {vr(160 + 8 * f + 2 * i)}, {vr(161 + 8 * f + 2 * i)}')
                stores.append((10 + f if nf == 4 else 11 + 4 * f, f'buffer_store_dwordx4 {vr(192 + 4 * f, 4)}, {vr(CL16)}, {sr(SRD_WS, 4)}, {sr(sOK)} offen offset:{1024 * (f0 + f)} sc1', 'o'))
            if f0 + nf == 4: G[15].post.append(f's_add_u32 {sr(sOK)}, {sr(sOK)}, {OST()}')
        todo = []
        ds = {int(k): v for k, v in OPT.get('dsched', {}).items()}
        d = []
        if DD > 8: ds.setdefault(0, list(range(8, DD + 1)))
        for tn in ds.get(t, [t + DD] if t + DD < T else []):
            dd = c_dma(tn, 'a' if NF <= tn and t < PT else 'ab')
            if tn == NF:
                dd[0] = tuple(c_stream('sa')) + dd[0]
            d += [(x, tn) for x in dd]
        dp = [2, 6, 10, 14] if len(d) <= 4 else [k * 16 // len(d) for k in range(len(d))]
        todo += [(g, x, tn) for g, (x, tn) in zip(dp, d)]
        if t == PT - OPT.get('pback', 2) and PT != NF:
            stores += [(0, f'buffer_load_dword v5, v4, {sr(SRD_WG, 4)}, 0 offen sc1', 'fl')]
        fx0 = OPT.get('fxlate', 0)
        fsp = OPT.get('fsp', 1)
        if fx0 and fx0 <= u < fx0 + 6 * fsp and (u - fx0) % (2 * fsp) == 0:
            j = (u - fx0) // (2 * fsp) + 1
            rd, cv = x_pack(ACF, j)
            for k, x in enumerate(rd): G[k // 2].valu.append(x)
            for k, x in enumerate(cv): G[8 + k // 2].valu.append(x)
            G[11].pre += x_dest(j, WS_XF, 's58')
            stores += [(15, f'buffer_store_dwordx4 {vr(176, 4)}, {vr(CL16)}, {sr(SRD_WS, 4)}, s58 offen offset:0 sc1', 'fx')]
        if fx0 and fx0 <= u < fx0 + 6 * fsp and (u - fx0) % (2 * fsp) == fsp:
            stores += [(15, f'buffer_store_dwordx4 {vr(180, 4)}, {vr(CL16)}, {sr(SRD_WS, 4)}, s58 offen offset:1024 sc1', 'fx')]
        if u == U0:
            stores += [(15, f'buffer_load_dword v5, v4, {sr(SRD_WD, 4)}, 0 offen sc1', 'ff')]
        if u == 26:
            stores += [(4 + 6 * k, f'buffer_load_dwordx4 {vr(CXR + 4 * k, 4)}, {vr(COUT)}, {sr(SRD_X, 4)}, {sr(sOV)} offen offset:{16 * k}', 'x') for k in range(2)]
        if u == U0 + 3 + (U0 < 23):
            stores += [(2 * k + (U0 < 21), x, 'fx2') for k, x in enumerate(x_loads(0, XR))]
        for g, x, tag in sorted(todo + stores, key=lambda z: z[0]):
            vmem(g, x, tag)
        if u == 30:
            for j in range(1, 4): G[4 * j].pre += x_dest(j, WS_XF + 6144, f's{55 + j}')
        if t == flag_t:
            G[15].post += [vm.wait('o'), f'buffer_store_dword {vr(ONEV)}, {vr(CL16)}, {sr(SRD_WU, 4)}, 0 offen sc1'] + stamp_op('Oflag'); vm.issue('flag')
        if u == OPT.get('fflag', 8):
            G[15].post += [vm.wait('fx'), f'buffer_store_dword {vr(ONEV)}, {vr(CL16)}, {sr(SRD_WO, 4)}, 0 offen sc1']; vm.issue('flag2')
        if u == 28:
            G[4].pre += [f's_add_u32 s{SRD_WO}, s{SRD_WO}, 128', f's_addc_u32 s{SRD_WO + 1}, s{SRD_WO + 1}, 0']
        if u == 22:
            for k in range(16): G[k].valu.append(f'v_accvgpr_read_b32 {vr(GV + k)}, {ar(ACF + (k >> 2) * 16 + (k & 3))}')
        if u == U0 + 2 + (U0 < 23):
            G[15].post += [vm.wait('ff'), 'v_cmp_ne_u32 vcc, v5, v6', 's_cbranch_vccnz L_pf', 'L_pf_ok:']
        if u == 27:
            G[4].pre += [f's_add_u32 s{SRD_WD}, s{SRD_WD}, 128', f's_addc_u32 s{SRD_WD + 1}, s{SRD_WD + 1}, 0']
        if u == 28:
            G[15].post.append(vm.wait('fx2'))
        if 29 <= u <= 31:
            for k, x in enumerate(x_accum(GV, XR + 8 * (u - 29))): G[k // 2].valu.append(x)
        if t + 1 < T and (t + 1 != NF or cont):
            if (t + 1) % 2 == 0:
                need = [x for x in ((t + 3, t + 4) if CCH() else (t + 2, t + 3)) if x < T and (cont or not (t + 1 < NF <= x))]
                assert all(x in vm.ops for x in need), (t, need)
                w = vm.wait(*need) + ' lgkmcnt(0)' if need else 's_waitcnt lgkmcnt(0)'
                G[15].post += [w, 's_barrier']
            elif not CCH():
                G[15].post.append('s_waitcnt lgkmcnt(0)')
        if opt.get('ctrace'):
            G[0].pre.append(f's_memtime s[100:101]')
            G[14].valu.append(f'v_writelane_b32 v222, s100, {63 - t}')
        emit_gaps(a, gapops(G), align=False)
    stamp(a, opt, 'send')
    for j in range(1, 4):
        rd, cv = x_pack(ACS_, j, 160, 176 + 8 * (j - 1))
        for x in rd + cv: a(x)
        for k in range(2):
            a(f'buffer_store_dwordx4 {vr(176 + 8 * (j - 1) + 4 * k, 4)}, {vr(CL16)}, {sr(SRD_WS, 4)}, s{55 + j} offen offset:{1024 * k} sc1')
    stamp(a, opt, 'xst')
    for k in range(16):
        a(f'v_accvgpr_read_b32 {vr(SV + k)}, {ar(ACS_ + (k >> 2) * 16 + (k & 3))}')
    a('s_waitcnt vmcnt(6)')
    for k in range(8):
        a(f'v_lshlrev_b32 {vr(64 + 2 * k)}, 16, {vr(CXR + k)}')
        a(f'v_and_b32 {vr(65 + 2 * k)}, 0xffff0000, {vr(CXR + k)}')
    for k in range(16): a(f'v_mul_f32 {vr(144 + k)}, {f2u(-math.log2(math.e))}, {vr(GV + k)}')
    for k in range(16): a(f'v_exp_f32 {vr(144 + k)}, {vr(144 + k)}')
    for k in range(16): a(f'v_add_f32 {vr(112 + k)}, 1.0, {vr(144 + k)}')
    for k in range(16): a(f'v_rcp_f32 {vr(112 + k)}, {vr(112 + k)}')
    for k in range(0, 16, 2): a(f'v_pk_mul_f32 {vr(GV + k, 2)}, {vr(GV + k, 2)}, {vr(112 + k, 2)}')
    a(f'''
    s_waitcnt vmcnt(0)
    buffer_store_dword {vr(ONEV)}, {vr(CL16)}, {sr(SRD_WO, 4)}, 0 offen sc1
    {''.join(stamp_op('xack'))}
    s_branch L_ps
    L_ps_ok:
    ''')
    stamp(a, opt, 'xf')
    XS = 32
    for x in x_loads(1, XS): a(x)
    for r in range(3):
        a(f's_waitcnt vmcnt({4 - 2 * r})')
        if r == 2: stamp(a, opt, 'xld')
        for k in range(8):
            a(f'v_lshlrev_b32 {vr(96 + 2 * k)}, 16, {vr(XS + 8 * r + k)}')
            a(f'v_and_b32 {vr(97 + 2 * k)}, 0xffff0000, {vr(XS + 8 * r + k)}')
        for k in range(0, 16, 2):
            a(f'v_pk_add_f32 {vr(SV + k, 2)}, {vr(SV + k, 2)}, {vr(96 + k, 2)}')
    for k in range(0, 16, 2):
        a(f'v_pk_fma_f32 {vr(SV + k, 2)}, {vr(SV + k, 2)}, {vr(GV + k, 2)}, {vr(64 + k, 2)}')
    for k in range(8):
        a(f'v_cvt_pk_bf16_f32 {vr(CXR + k)}, {vr(SV + 2 * k)}, {vr(SV + 1 + 2 * k)}')
    for k in range(2):
        a(f'buffer_store_dwordx4 {vr(CXR + 4 * k, 4)}, {vr(COUT)}, {sr(SRD_OUT, 4)}, {sr(sOV)} offen offset:{16 * k}{OPT.get("outsc", "")}')

OPT = {}
def add_pads(a, period, nchain):
    out = []; addr = 0; nxt = None; pads = []
    lines = a.lines
    for k, l in enumerate(lines):
        t = l.strip()
        if t.startswith('.p2align'):
            al = 1 << int(t.split()[1]); addr = (addr + al - 1) // al * al
        if t == 'L_warmdone:': addr = 0; nxt = period - OPT.get('padoff', 0)
        if t == 'L_end:': nxt = None
        if nxt is not None and addr >= nxt and t.startswith(('v_', 'ds_read', 's_add', 's_mov', 's_lshl', 'buffer_load')) and not lines[k - 1].strip().startswith(('.')):
            out.append(f'L_pad{len(pads)}:'); out.append(f'    PAD{len(pads)}'); pads.append(addr)
            addr += 4; nxt += period
            if ALIGN():
                out.append('    s_nop 0'); addr += 4
        out.append(l); addr += isize(l)
    n = len(pads)
    for k, l in enumerate(out):
        if l.startswith('    PAD'):
            i = int(l[7:])
            out[k] = f'    s_cbranch_execz ' + (f'L_pad{i + nchain}' if i + nchain < n else 'L_warmret')
    a.lines = out
    return n

def gen(opt):
    OPT.clear(); OPT.update(opt)
    SLOW.clear(); STAMPS.clear(); PFX.clear()
    a = A()
    setup(a, opt)
    phase_a(a, opt)
    phase_b(a, opt)
    phase_c(a, opt)
    if opt.get('stamp'):
        a('s_waitcnt vmcnt(0)')
        stamp(a, opt, 'end')
        a(f'''
        s_waitcnt lgkmcnt(0)
        s_lshl_b32 s3, s2, 2
        s_add_u32 s3, s3, {sr(sW)}
        s_lshl_b32 s3, s3, 6
        s_add_u32 s3, s3, {WS_STAMP}
        v_mov_b32 v1, 0
        v_mov_b32 v4, v0
        ''')
        if opt.get('ctrace'): a('v_mov_b32 v63, v222\n; v_cndmask_b32 v221')
        if opt.get('trace') or opt.get('ctrace'):
            a(f's_lshl_b32 s7, s2, 2\ns_add_u32 s7, s7, {sr(sW)}\ns_lshl_b32 s7, s7, 8\ns_add_u32 s7, s7, {WS_STAMP + (1 << 20)}\nv_lshrrev_b32 v20, 2, v7')
            a(f'buffer_store_dword v63, v20, {sr(SRD_WS, 4)}, s7 offen')
        if opt.get('dbgstamp'):
            a(f's_cmp_lg_u32 {sr(sW)}, 0\ns_cbranch_scc1 L_nodbg')
            a('v_not_b32 v20, v0\ns_mov_b64 exec, 1')
            a(f'v_mov_b32 v21, s{sST + 2 * (len(STAMPS) - 1)}')
            a(f'buffer_atomic_umax v20, off, {sr(SRD_DBG, 4)}, 0 offset:56 sc1')
            a(f'buffer_atomic_umax v21, off, {sr(SRD_DBG, 4)}, 0 offset:60 sc1')
            a(f's_cmp_lg_u32 s2, {opt["dbgstamp"]}\ns_cbranch_scc1 L_nodbg')
            for i in range(len(STAMPS)):
                a(f'v_sub_u32 v{22 + i}, s{sST + 2 * i}, v0')
                a(f'buffer_store_dword v{22 + i}, off, {sr(SRD_DBG, 4)}, 0 offset:{4 + 4 * i} sc1')
            a('L_nodbg:\ns_mov_b64 exec, -1')
        for i in range(12): a(f'v_mov_b32 v{5 + i}, s{sST + 2 * i}')
        for i in range(4):
            a(f'buffer_store_dwordx4 v[{4 + 4 * i}:{7 + 4 * i}], v1, {sr(SRD_WS, 4)}, s3 offen offset:{16 * i}')
    a.label('L_end')
    a('s_endpgm')
    hooks(a)
    for p, tag, final in SLOW:
        for hf in range(2):
            a.label(f'L_slow{hf}_{tag}')
            a(f's_call_b64 s[98:99], L_slowfn{hf}_{p}_{int(final)}')
            a(f's_branch L_back{hf}_{tag}')
    for p, final in sorted({(p, f) for p, _, f in SLOW}):
        for hf in range(2):
            slow_path(a, p, hf, final)
    if OPT.get('pad', 4096):
        npad = add_pads(a, OPT.get('pad', 4096), OPT.get('nchain', 4))
        print('pads', npad, file=sys.stderr)
    a.label('L_codeend')
    a('s_endpgm')
    return kernel_file(f'; ost {OST()} hst {HST()}\n; stamps entry ' + ' '.join(STAMPS) + '\n' + a.text(), 'grid=(256,1,1) block=(256,1,1) lds=163840')

if __name__ == '__main__':
    opt = json.loads(sys.argv[2]) if len(sys.argv) > 2 else {}
    open(sys.argv[1], 'w').write(gen(opt))
```

```python
import sys, json, math, struct
sys.path.insert(0, 'gen')
from asmlib import *

def f2u(x): return '0x%08x' % struct.unpack('<I', struct.pack('<f', x))[0]

WS_O = 0; WS_H = 17 << 20; WS_FLAG = 25 << 20; WS_WF = (25 << 20) + 65536; WS_STAMP = 32 << 20; WS_XF = 34 << 20; WS_XS = 41 << 20; WS_FF = 47 << 20
WFS = 184 * 4096
sH = 4; sQB = 5; sW = 6
SRD_K = 8; SRD_V = 12; SRD_WS = 16; SRD_X = 20; SRD_WQ = 24; SRD_WG = 28; SRD_WU = 32; SRD_WO = 36; SRD_WD = 40; SRD_OUT = 44; SRD_DBG = 48
sOK = 52; sOV = 53; sM = 54; sCNT = 55; sT0 = 56; sT1 = 57; sT2 = 58; sT3 = 59
sXO = 60; sQO = 61; sGO = 62; sWB = 63
sW4K = 88; sRB = 89; sCB = 90; sBO = 56; sHO = 91; sWQB = 92; sWGB = 93
sDL = 95
sST = 64
KA = 8; VAA = 16; DK0 = 28; DK1 = 29; DV0 = 30; DV1 = 31; VAB = 244
Q = 32; S = 96; NM = 160; PA = 176; PB = 192; TMP = 208; ST = 212; THR = 234; LANE = 1; LM = 224; RL = 240
O = 0; KF = 128; VF = 160; SIDX = 235; WPR = 224
STAGE = 16384
AQ = 8; AG = 12; AC = 16; AX = 20; DQ = 22; DG = 23; DX = 24
XF = 32; ACQ = 96; SX = 224; CSD = 228; STT = 232; SXX = 240; IDX = 27
AGU = 0; AR = 128; AK = 160
XBUF = 0; WBUF = 65536; CSBUF = 81920
CB = 32
def CAop(sl, nb):
    return ar(192 + sl * 16 + 4 * nb, 4) if sl < 4 else vr(96 + 32 * (sl - 4) + 4 * nb, 4) if sl < 6 else vr(208 + 4 * nb, 4) if sl == 6 else ar(4 * nb, 4)
def CBop(sl, j):
    return vr(32 + sl * 16 + 4 * j, 4) if sl < 4 else vr(112 + 32 * (sl - 4) + 4 * j, 4) if sl < 6 else vr(224 + 4 * j, 4) if sl == 6 else ar(16 + 4 * j, 4)
ACF = 128; ACS_ = 64
CL16 = 7
CRW = 8; CRR = 11; COUT = 12; CXR = 16
sAO = 61; POLLV = 6; ONEV = 223

def OST(): return OPT.get('ost', 136192)
def HST(): return OPT.get('hst', 58368)
XIN = ['s92', 's93', 's62']
def FB(r, t):
    if OPT.get('fbspread', 1): return f's_lshr_b32 {t}, {sr(sH)}, 3\ns_sub_u32 {r}, {sr(sH)}, {t}'
    return f's_mov_b32 {r}, {sr(sH)}'
def FBOK(t):
    if OPT.get('fbspread', 1): return f's_and_b32 {t}, {sr(sH)}, 7\ns_cmp_lg_u32 {t}, 7'
    return f's_cmp_lt_u32 {sr(sH)}, 28'
def TW(r):
    return f's_lshl_b32 {r}, {sr(sRB)}, 2\ns_add_u32 {r}, {r}, {sr(sCB)}\ns_lshl_b32 {r}, {r}, 2\ns_add_u32 {r}, {r}, {sr(sW)}'
def mf(d, a_, b_, c):
    return f'v_mfma_f32_16x16x32_bf16 {d}, {a_}, {b_}, {c}'

class Gap:
    def __init__(self, m):
        self.m = m; self.pre = []; self.mem = []; self.valu = []; self.post = []
    def ops(self):
        return [self.m] + self.pre + self.mem + self.valu + self.post
    def units(self):
        u = 0
        for x in self.mem: u += 2 if x.startswith('buffer') else 0 if x.startswith('s_') else 1
        for x in self.valu: u += 2 if x.startswith(('v_exp', 'v_rcp', 'v_log', 'v_rsq', 'v_permlane')) else 1
        return u

def place(G, ops, lo, hi=None, kind='mem', cap=2):
    g = lo
    for x in ops:
        pre = []
        if isinstance(x, tuple):
            pre, x = list(x[:-1]), x[-1]
        need = 2 if x.startswith(('buffer', 'v_exp', 'v_rcp', 'v_rsq', 'v_log', 'v_permlane')) else 1
        need = min(need, cap)
        while G[g].units() + need > cap:
            g += 1
        if hi is not None:
            assert g <= hi, (x, g, hi)
        if pre:
            if g > 0 and not any(y.startswith('buffer') for y in G[g - 1].mem):
                G[g - 1].pre += pre
            else:
                if ' m0,' in pre[-1]:
                    pre.append('s_nop 0')
                G[g].pre += pre
        getattr(G[g], kind).append(x)
    return g

STAMPS = []
def place_some(G, ops, lo, hi):
    g = lo
    for k, x in enumerate(ops):
        need = 2 if x.startswith(('v_exp', 'v_rcp', 'v_rsq', 'v_log', 'v_permlane')) else 1
        while g <= hi and G[g].units() + need > 2: g += 1
        if g > hi: return list(ops[k:])
        G[g].valu.append(x)
    return []

def stamp_op(name):
    if not OPT.get('stamp') or (OPT.get('only') and name not in OPT['only']):
        return []
    k = len(STAMPS); STAMPS.append(name)
    assert k < 12
    return [f'{"s_memtime" if OPT.get("cyc") else "s_memrealtime"} s[{sST + 2 * k}:{sST + 2 * k + 1}]']
def stamp(a, opt, name):
    for x in stamp_op(name): a(x)

def srd(a, base, lo, hi, nrec, add=None, sub=None):
    if add is not None:
        a(f's_add_u32 s{base}, s{lo}, {add}')
        a(f's_addc_u32 s{base + 1}, s{hi}, 0')
    else:
        a(f's_mov_b32 s{base}, s{lo}')
        a(f's_mov_b32 s{base + 1}, s{hi}')
    if sub is not None:
        a(f's_sub_u32 s{base}, s{base}, {sub}')
        a(f's_subb_u32 s{base + 1}, s{base + 1}, 0')
    a(f's_mov_b32 s{base + 2}, {nrec}')
    a(f's_mov_b32 s{base + 3}, 0x20000')

def HOP(k):
    if not OPT.get('hop'): return ''
    if k == 0:
        return ('s_mov_b64 exec, 0\ns_nop 1\n' + ''.join(f's_cmp_eq_u32 s6, {w}\ns_cbranch_scc1 L_hop{w + 1}\n' for w in range(3)) +
                's_branch L_hop4\nL_hopret:\ns_mov_b64 exec, -1')
    return f'L_hop{k}:\ns_cbranch_execz L_hopret'

def setup(a, opt):
    a(f'''
    s_cmp_ge_u32 s2, 256
    s_cbranch_scc1 L_end
    {("s_memtime" if opt.get("cyc") else "s_memrealtime") + " s[98:99]" if opt.get("stamp") else ""}
    s_load_dwordx16 s[64:79], s[0:1], 0
    s_load_dwordx8 s[80:87], s[0:1], 64
    v_lshrrev_b32 v4, 6, v0
    v_and_b32 v1, 63, v0
    v_readfirstlane_b32 {sr(sW)}, v4
    {HOP(0)}
    s_and_b32 s3, s2, 7
    s_bfe_u32 s7, s2, 0x20003
    s_lshl_b32 s3, s3, 2
    s_add_u32 {sr(sH)}, s3, s7
    s_lshr_b32 {sr(sQB)}, s2, 5
    s_lshl_b32 {sr(sW4K)}, {sr(sW)}, 12
    s_and_b32 s3, s2, 1
    s_lshl_b32 s3, s3, 3
    s_add_u32 {sr(sRB)}, s3, {sr(sQB)}
    s_bfe_u32 {sr(sCB)}, s2, 0x20003
    {"s_mov_b32 s89, 0" if opt.get("x_rb") else ""}
    {"s_mov_b32 s90, 0" if opt.get("x_cb") else ""}
    v_and_b32 v2, 15, v1                ; r = l&15
    v_lshrrev_b32 v3, 4, v1             ; g = l>>4
    ''')
    if OPT.get('ipf', 1):
        a(f'''
        s_getpc_b64 s[100:101]
        L_pc:
        s_lshr_b32 s3, s2, 3
        s_lshl_b32 s3, s3, 2
        s_add_u32 s3, s3, {sr(sW)}
        s_and_b32 s3, s3, 15
        s_lshl_b32 s3, s3, 13
        s_min_u32 s3, s3, L_codeend-L_pc-8192
        v_lshlrev_b32 v4, 7, v1
        v_add_u32 v4, s3, v4
        global_load_dword v26, v4, s[100:101]
        ''')

def setup_x(a, opt):
    a(f's_lshl_b32 s3, {sr(sQB)}, 18\ns_lshl_b32 s7, {sr(sW)}, 16\ns_add_u32 s3, s3, s7')
    a('s_waitcnt lgkmcnt(0)')
    if opt.get('stamp'): a('v_mov_b32 v0, s98')
    if opt.get('early'): a('s_memrealtime vcc')
    if OPT.get('tlb'):
        lst = OPT['tlb']
        a('s_lshr_b32 s7, s2, 3\ns_and_b32 s7, s7, 7\ns_mov_b64 s[100:101], s[64:65]\nv_mov_b32 v4, 0')
        for k, (r, off) in enumerate(lst):
            a(f's_cmp_eq_u32 s7, {k + 1}\ns_cselect_b64 s[100:101], s[{r}:{r + 1}], s[100:101]')
            if off: a(f's_cselect_b32 s8, {off}, 0\nv_max_u32 v4, s8, v4')
        a('global_load_dword v26, v4, s[100:101]')
    srd(a, SRD_X, 64, 65, 65536, add='s3')

def setup_w(a):
    a(f's_lshl_b32 s3, {sr(sH)}, 8')
    srd(a, SRD_WQ, 70, 71, 511 * 8192 + 256, add='s3')
    a(FB('s3', 's7') + f'\ns_lshl_b32 s3, s3, 7\n' + FBOK('s7') + f'\ns_cselect_b32 s3, s3, 0\ns_cselect_b32 s7, {511 * 3584 + 128}, 0')
    srd(a, SRD_WG, 76, 77, 's7', add='s3')
    srd(a, SRD_WU, 78, 79, 's7', add='s3')

def setup_wp(a):
    a('s_cmp_lt_u32 s2, 128\ns_cselect_b32 s72, s72, s80\ns_cselect_b32 s73, s73, s81\ns_and_b32 s3, s2, 127\ns_lshl_b32 s3, s3, 15')
    a('s_cmp_lt_u32 s2, 184\ns_cselect_b32 s3, s3, 0')
    a('s_cselect_b32 s7, 32768, 0\ns_cselect_b32 s74, 0x10000000, 0')
    srd(a, SRD_WO, 72, 73, 's7', add='s3')
    srd(a, SRD_WD, 86, 87, 's74')

def setup2(a, opt):
    a(f's_lshl_b32 s3, {sr(sH)}, 19')
    srd(a, SRD_K, 66, 67, 524288, add='s3')
    srd(a, SRD_V, 68, 69, 524288 + 2048 + 16384, add='s3', sub=2048 + 16384)
    srd(a, SRD_WS, 86, 87, 0x10000000)
    srd(a, SRD_OUT, 82, 83, 2097152)
    srd(a, SRD_DBG, 84, 85, 256)
    a('s_mov_b32 s96, s64\ns_mov_b32 s97, s65')

def a_setup_dma_addr(a):
    a(f'''
    s_lshl_b32 s3, {sr(sW)}, 3
    v_add_u32 v4, s3, v3                 ; row = 8w + (l>>4)
    v_lshlrev_b32 v5, 2, v3
    v_xor_b32 v5, v5, v2
    v_lshlrev_b32 v5, 4, v5
    v_lshl_add_u32 {vr(DQ)}, v4, 13, v5
    v_lshrrev_b32 v4, 3, v1              ; rho = l>>3
    v_and_b32 v5, 3, v4
    v_lshrrev_b32 v6, 5, v1
    v_lshl_add_u32 v5, v6, 3, v5
    s_lshr_b32 s3, {sr(sW)}, 1
    s_lshl_b32 s3, s3, 4
    s_and_b32 s7, {sr(sW)}, 1
    s_lshl_b32 s7, s7, 2
    s_add_u32 s3, s3, s7
    v_add_u32 v5, s3, v5                 ; W row
    v_mul_u32_u24 v5, 3584, v5
    v_lshlrev_b32 v6, 1, v3
    v_and_b32 v7, 7, v1
    v_xor_b32 v6, v6, v7
    v_lshl_add_u32 {vr(DG)}, v6, 4, v5
    v_xor_b32 v6, v3, v7
    v_lshlrev_b32 v6, 4, v6
    v_lshl_add_u32 {vr(DX)}, v4, 10, v6
    v_xor_b32 {vr(DX + 1)}, 64, {vr(DX)}
    ''')

def a_dma_x(j_par):
    ops = []
    for i in range(8):
        pre = []
        if i % 4 == 0:
            pre.append(f's_add_u32 m0, {sr(sT3)}, {XBUF + j_par * 32768 + (i // 4) * 4096}')
        pre.append(f's_add_u32 {sr(sT0 + (i & 1))}, {sr(sXO)}, {i * 8192 - 1024 * (i & 3)}')
        ops.append(tuple(pre) + (f'buffer_load_dwordx4 {vr(DX + (i & 1))}, {sr(SRD_X, 4)}, {sr(sT0 + (i & 1))} offen offset:{1024 * (i & 3)} lds',))
    return ops, [f's_add_u32 {sr(sXO)}, {sr(sXO)}, 128', f's_and_b32 {sr(sXO)}, {sr(sXO)}, 1023']

def a_dma_w():
    ops = []
    for ks in range(2):
        ops.append((f's_add_u32 m0, {sr(sWQB)}, {ks * 16384}', f's_add_u32 {sr(sT0)}, {sr(sQO)}, {ks * 32 * 8192}',
                    f'buffer_load_dwordx4 {vr(DQ)}, {sr(SRD_WQ, 4)}, {sr(sT0)} offen lds'))
        ops.append((f's_add_u32 {sr(sT1)}, {sr(sQO)}, {ks * 32 * 8192 + 4 * 8192 - 1024}',
                    f'buffer_load_dwordx4 {vr(DQ)}, {sr(SRD_WQ, 4)}, {sr(sT1)} offen offset:1024 lds'))
        ops.append((f's_add_u32 m0, {sr(sWGB)}, {ks * 16384}', f's_add_u32 {sr(sT0)}, {sr(sGO)}, {ks * 32 * 3584}',
                    f'buffer_load_dwordx4 {vr(DG)}, {sr(SRD_WG, 4)}, {sr(sT0)} offen lds'))
        ops.append((f's_add_u32 m0, m0, 4096',
                    f'buffer_load_dwordx4 {vr(DG)}, {sr(SRD_WU, 4)}, {sr(sT0)} offen lds'))
    adv = [f's_add_u32 {sr(sQO)}, {sr(sQO)}, {64 * 8192}', f's_and_b32 {sr(sQO)}, {sr(sQO)}, 0x3fffff', f's_lshr_b32 {sr(sGO)}, {sr(sQO)}, 13', f's_mul_i32 {sr(sGO)}, {sr(sGO)}, 3584',
           f's_add_u32 {sr(sWB)}, {sr(sWB)}, 1', f's_cmp_eq_u32 {sr(sWB)}, 3', f's_cselect_b32 {sr(sT2)}, -2, 1', f's_cselect_b32 {sr(sWB)}, 0, {sr(sWB)}',
           f's_lshl_b32 {sr(sT2)}, {sr(sT2)}, 15', f's_add_u32 {sr(sWQB)}, {sr(sWQB)}, {sr(sT2)}', f's_add_u32 {sr(sWGB)}, {sr(sWGB)}, {sr(sT2)}']
    return ops, adv

def emit_plain(a, ops):
    for x in ops:
        if isinstance(x, tuple):
            for y in x[:-1]: a(y)
            if ' m0,' in x[-2]: a('s_nop 0')
            a(x[-1])
        else:
            a(x)

def a_setup_read_addr(a):
    a(f'''
    v_bfe_u32 v4, v1, 2, 2               ; r'
    v_and_b32 v5, 3, v1                  ; c'
    v_lshl_add_u32 v6, v3, 3, v4         ; 8g + r'
    v_lshlrev_b32 v6, 8, v6
    v_lshl_add_u32 v6, v4, 6, v6         ; + (r'<<2)*16
    v_lshl_add_u32 v6, v5, {3 if OPT.get('a_noconf') else 4}, v6         ; + c'*16
    {"v_and_b32 v7, 16, v1" if OPT.get('a_noconf') else ""}
    {"v_lshl_add_u32 v6, v7, 1, v6" if OPT.get('a_noconf') else ""}
    v_add_u32 v6, {WBUF}, v6
    ''')
    for sp in range(4):
        a(f'v_xor_b32 {vr(AQ + sp)}, {sp * 64}, v6')
    a(f'''
    v_bfe_u32 v6, v1, 2, 3               ; rho = 4(g&1) + r'
    v_lshrrev_b32 v7, 1, v6              ; key2
    v_lshlrev_b32 v6, 7, v6
    v_lshl_add_u32 v6, v7, 5, v6
    v_lshl_add_u32 v6, v5, 3, v6
    v_lshrrev_b32 v7, 5, v1
    v_lshl_add_u32 v6, v7, 11, v6
    v_add_u32 v6, {WBUF + 8192}, v6
    ''')
    for nb in range(4):
        a(f'v_xor_b32 {vr(AG + nb)}, {nb * 32}, v6')
    a(f's_cmp_eq_u32 {sr(sW)}, 0\ns_cselect_b64 s[98:99], -1, 0\ns_cmp_lt_u32 {sr(sW)}, 2\ns_cselect_b64 s[100:101], -1, 0')
    a(f's_and_b32 s3, {sr(sW)}, 1\ns_lshl_b32 s3, s3, 12')
    for k in range(4):
        a(f'v_cndmask_b32 v4, {vr(AQ + 2 + (k >> 1))}, {vr(AQ + (k >> 1))}, s[98:99]')
        if k & 1:
            a('v_add_u32 v4, 8, v4')
        a(f'v_add_u32 v5, s3, {vr(AG + k)}')
        a(f'v_cndmask_b32 {vr(AC + k)}, v5, v4, s[100:101]')
    a(f'''
    v_lshrrev_b32 v4, 1, v2
    v_xor_b32 v4, v4, v3
    v_lshlrev_b32 v4, 4, v4
    v_lshl_add_u32 v4, v2, 7, v4
    v_add_u32 {vr(AX)}, {sr(sT3)}, v4
    v_xor_b32 {vr(AX + 1)}, 64, {vr(AX)}
    v_mov_b32 v4, 0x3f803f80
    v_and_b32 v5, 3, v1
    v_mov_b32 v6, 0xeeee
    v_and_b32 v7, 4, v1
    v_cmp_eq_u32 vcc, 0, v7
    v_mov_b32 v7, 0x4444
    v_cmp_eq_u32 s[98:99], 0, v5
    v_cndmask_b32 {vr(IDX)}, v6, v7, vcc
    s_nop 0
    ''')
    for k in range(4):
        a(f'v_cndmask_b32 v6, 0, v4, s[98:99]')
        if k < 3: a(f'v_cmp_eq_u32 s[98:99], {k + 1}, v5')
        for i in range(4):
            a(f'v_accvgpr_write_b32 {ar(AK + 4 * k + i)}, v6')

def Xreg(par, c, ks): return XF + par * 32 + c * 8 + ks * 4
def accA(nb, c):
    return vr(ACQ + (nb * 4 + c) * 4, 4) if nb < 8 else ar(AGU + ((nb - 8) * 4 + c) * 4, 4)
ORDER = [16, 17, 18, 19] + list(range(16))
def a_reads(pos):
    grp = ORDER[pos]
    out = []
    for ks in range(2):
        for u in range(2):
            off = ks * 16384 + u * 1024
            if grp < 8:
                ad = AQ + (grp >> 1); off += 8 * (grp & 1)
            elif grp < 16:
                ad = AG + (grp & 3); off += 4096 * ((grp - 8) >> 2)
            else:
                ad = AC + grp - 16
            out.append(f'ds_read_b64_tr_b16 {ar(AR + (pos & 3) * 8 + ks * 4 + 2 * u, 2)}, {vr(ad)} offset:{off}')
    return out
def x_reads(par):
    return [f'ds_read_b128 {vr(Xreg(par, c, ks), 4)}, {vr(AX + ks)} offset:{XBUF + par * 32768 + c * 2048}' for c in range(4) for ks in range(2)]

def a_superstep(par, first, tail, kv_ops=None, name=None, pre_ops=None, pre_adv=None):
    G = []; start = []
    small = OPT.get('small', 1)
    if small:
        cs = [f'v_smfmac_f32_16x16x64_bf16 {vr(CSD, 4)}, {ar(AK + 4 * k, 4)}, {ar(AR + k * 8, 8)}, {vr(IDX)}' for k in range(4)]
        xs = [f'v_smfmac_f32_16x16x64_bf16 {vr(SX, 4)}, {ar(AK + 4 * k, 4)}, {vr(Xreg(par, k, 0), 8)}, {vr(IDX)}' for k in range(4)]
        sm = [f'v_mfma_f32_4x4x4_16b_bf16 {vr(SXX + 4 * c, 4)}, {vr(Xreg(par, c, 0) + 2 * i, 2)}, {vr(Xreg(par, c, 0) + 2 * i, 2)}, {vr(SXX + 4 * c, 4)}' for i in range(4) for c in range(4)]
        G = [Gap(m) for m in xs[:2] + cs[:2] + sm + xs[2:] + cs[2:]]
        start = [0, 4, 20, 22]
    for pos in range(4 if small else 0, 20):
        grp = ORDER[pos]
        start.append(len(G))
        sl = AR + (pos & 3) * 8
        if grp < 16:
            sa = 'a' in OPT.get('snk', 'qpac')
            for i, c in enumerate(range(4) if not (sa and pos & 1) else range(3, -1, -1)):
                for ks in (range(2) if not (sa and i & 1) else (1, 0)):
                    d = accA(grp, c)
                    G.append(Gap(mf(d, ar(sl + 4 * ks, 4), vr(Xreg(par, c, ks), 4), '0' if first and ks == 0 else d)))
        else:
            k = grp - 16
            G.append(Gap(f'v_smfmac_f32_16x16x64_bf16 {vr(CSD, 4)}, {ar(AK + 4 * k, 4)}, {ar(sl, 8)}, {vr(IDX)}'))
            G.append(Gap(f'v_smfmac_f32_16x16x64_bf16 {vr(SX, 4)}, {ar(AK + 4 * k, 4)}, {vr(Xreg(par, k, 0), 8)}, {vr(IDX)}'))
            for ks in range(2):
                d = vr(SXX + 4 * k, 4)
                G.append(Gap(mf(d, vr(Xreg(par, k, ks), 4), vr(Xreg(par, k, ks), 4), '0' if first and ks == 0 else d)))
    start.append(len(G))
    def at(g, x, kind='mem'):
        place(G, [x], g, g, kind=kind)
    rp = OPT.get('a_rp', [0, 1, 2, 3])
    if small:
        for k, x in enumerate(a_reads(2) + a_reads(3) + a_reads(4) + a_reads(5)): at(4 + k, x)
    for grp in range(4 if small else 0, 18):
        for k, x in zip(rp if grp >= 4 else [0, 0, 1, 2], a_reads(grp + 2)):
            at(start[grp] + k, x)
    dm = []
    if tail == 0:
        wops, wadv = a_dma_w(); xops, xadv = a_dma_x(par)
        if OPT.get('a_now'): wops = []
        if OPT.get('a_nox'): xops = []
        dm = wops + xops
        if pre_ops:
            dm = pre_ops + dm
    if kv_ops:
        dm = kv_ops
    free = [start[p] + (5 if p >= 4 else 3) for p in range(18)]
    if small: free = [0, 20] + free[4:]
    if len(dm) > len(free):
        free = [g for p in range(18) for g in ((start[p] + 4, start[p] + 6) if p >= 4 else (start[p] + 3,))]
    pos = free[:len(dm)]
    for g, x in zip(pos, dm):
        if x is not None: at(g, x)
    if tail == 0:
        npre = len(pre_ops) if pre_ops else 0
        if pre_ops:
            for g, adv in pre_adv:
                G[pos[g] + 1].pre += adv
        if wops:
            g = pos[npre + len(wops) - 1]
            G[g + 1].pre += wadv[:4]; G[g + 2].pre += wadv[4:8]; G[g + 3].pre += wadv[8:]
        if xops:
            G[pos[-1] + 1].pre += xadv
    xg = OPT.get('a_xg', 14)
    if tail < 2:
        wg = start[xg] + 3
        npre = len(pre_ops) if pre_ops else 0
        younger = sum(1 for k, g in enumerate(pos) if g < wg and k >= npre and dm[k] is not None)
        assert all(g < wg for g in pos[:npre])
        G[wg].pre.append(f's_waitcnt vmcnt({younger})')
        xr = x_reads(1 - par)
        for k, x in enumerate(xr):
            at(start[xg + k // 4] + 3 + (k % 4) + (1 if G[start[xg + k // 4] + 3 + (k % 4)].units() >= 2 else 0), x) if False else None
        g = wg
        xpos = []
        for x in xr:
            while G[g].units() >= 2 or any(y.startswith('ds_read_b128') for y in G[g].mem): g += 1
            G[g].mem.append(x); xpos.append(g)
        assert xpos[-1] < start[18] - 2, xpos
    if tail == 2:
        w, st, rd = a_stats_ops()
        g = place(G, w[0], start[4] + 5, start[9] + 4, kind='valu')
        place(G, w[1], start[9] + 5, start[10] + 7, cap=1)
        G[start[12] - 1].post += ['s_waitcnt lgkmcnt(4)', 's_barrier']
        place(G, rd, start[14] + 4, start[17] + 7, cap=1)
        rest = place_some(G, st, g, start[20] - 1)
        G[-1].post += ['s_nop 1'] + rest
    seq = [(g, x) for g in range(len(G)) for x in G[g].mem if x.startswith('ds_')]
    if small:
        G[1].pre.append('s_waitcnt lgkmcnt(0)'); G[21].pre.append('s_waitcnt lgkmcnt(8)'); G[23].pre.append('s_waitcnt lgkmcnt(4)')
        G[start[5] - 1].pre.append('s_waitcnt lgkmcnt(4)')
    for grp in range(6 if small else 2, 20):
        if grp == 18:
            continue
        last = max(k for k, (g, x) in enumerate(seq) if x in a_reads(grp) and start[grp - 2] <= g < start[grp - 1])
        n = sum(1 for k, (g, x) in enumerate(seq) if k > last and g < start[grp] - 1)
        G[start[grp] - 1].pre.append(f's_waitcnt lgkmcnt({min(n, 14)})')
    if not small: G[start[1] - 1].pre.append('s_waitcnt lgkmcnt(4)')
    if tail < 2:
        G[start[18] - 1].pre += ['s_waitcnt lgkmcnt(0)', 's_barrier']
        vu = [f'v_add_u32 {vr(AQ + i)}, {sr(sDL)}, {vr(AQ + i)}' for i in range(12)]
        place(G, vu[:4] + vu[8:], start[14], start[17] + 5, kind='valu')
        for k, x in enumerate(a_reads(0)): at(start[18] + k, x)
        for k, x in enumerate(a_reads(1)): at(start[19] + k, x)
        place(G, vu[4:8], start[18], start[19] + 5, kind='valu')
        if not small: G[start[20] - 1].pre.append('s_waitcnt lgkmcnt(4)')
        G[start[13] + 1].pre += [f's_add_u32 {sr(sM)}, {sr(sM)}, 1', f's_cmp_eq_u32 {sr(sM)}, 3', f's_cselect_b32 {sr(sDL)}, -2, 1', f's_cselect_b32 {sr(sM)}, 0, {sr(sM)}']
        G[start[13] + 2].pre += [f's_lshl_b32 {sr(sDL)}, {sr(sDL)}, 15']
    else:
        G[start[18] - 1].pre += ['s_waitcnt lgkmcnt(0)']
    if OPT.get('a_nobar'):
        for g in G: g.pre = [x for x in g.pre if x != 's_barrier']
    if OPT.get('a_nowait'):
        for g in G: g.pre = [x for x in g.pre if not x.startswith('s_waitcnt lgkmcnt')]
    if OPT.get('a_novm'):
        for g in G: g.pre = [x for x in g.pre if not x.startswith('s_waitcnt vmcnt')]
    if OPT.get('a_nords'):
        for g in G: g.mem = [x for x in g.mem if not x.startswith('ds_read_b64')]
    if name:
        so = stamp_op(name)
        if so:
            G[start[18] - 1].post += so
            G[start[19] - 1].pre.append('s_waitcnt lgkmcnt(0)')
    return G

WPA = [240, 241, 242, 243, 252, 253, 254, 255]
def wp_addr0():
    return ['v_lshlrev_b32 v4, 1, v3', 'v_xor_b32 v4, v4, v2', 'v_lshlrev_b32 v4, 4, v4', 'v_lshl_add_u32 v4, v3, 10, v4', 'v_xor_b32 v5, 128, v4']
def wp_dma():
    ops = []
    for i in range(8):
        pre = []
        if i == 0: pre += [f's_lshl_b32 {sr(sT2)}, {sr(sW)}, 8']
        pre += [f's_add_u32 m0, {sr(sT3)}, {131072 + i * 1024}', f's_add_u32 {sr(sT0)}, {sr(sT2)}, {i * 4096}']
        ops.append(tuple(pre) + (f'buffer_load_dwordx4 v{4 + (i & 1)}, {sr(SRD_WO, 4)}, {sr(sT0)} offen lds',))
    return ops
def wp_addr1():
    t0, t1 = WPA[0], WPA[1]
    ops = [f'v_lshrrev_b32 {vr(t0)}, 2, v1', f'v_and_b32 {vr(t1)}, 7, {vr(t0)}', f'v_lshlrev_b32 {vr(t0)}, 8, {vr(t0)}', f'v_lshl_add_u32 {vr(t0)}, {vr(t1)}, 5, {vr(t0)}',
           f'v_and_b32 {vr(t1)}, 3, v1', f'v_lshlrev_b32 {vr(t1)}, 5, {vr(t1)}', f'v_xor_b32 {vr(t0)}, {vr(t1)}, {vr(t0)}', f'v_add_u32 {vr(t0)}, {sr(sT3)}, {vr(t0)}', f'v_add_u32 {vr(t0)}, 131072, {vr(t0)}']
    ops += [f'v_xor_b32 {vr(WPA[db])}, {(db >> 2) * 128 + (db & 3) * 8}, {vr(t0)}' for db in range(1, 8)]
    return ops
def wp_reads():
    return [f'ds_read_b64_tr_b16 {ar(WPR + db * 4 + 2 * u, 2)}, {vr(WPA[db])} offset:{u * 4096}' for db in range(8) for u in range(2)]
def wp_stores():
    st = []
    for db in range(8):
        st.append(f'buffer_store_dwordx4 {ar(WPR + db * 4, 4)}, {vr(CL16)}, {sr(SRD_WD, 4)}, {"s3" if db < 4 else "s7"} offen offset:{1024 * (db & 3)} sc1')
    sc = ['s_sub_u32 s3, s2, 128', 's_add_u32 s7, s2, 56', 's_cmp_lt_u32 s2, 128', 's_cselect_b32 s3, s7, s3', 's_lshl_b32 s3, s3, 12',
          f's_mul_i32 s7, {sr(sW)}, {2 * WFS}', 's_add_u32 s3, s3, s7', f's_add_u32 s3, s3, {WS_WF}', f's_add_u32 s7, s3, {WFS}']
    return sc, st

def wp_store_ops():
    sc, st = wp_stores()
    out = []
    for k, x in enumerate(st):
        out += [tuple(sc) + (x,) if k == 0 else x, None]
    return out

def warmup(a):
    if OPT.get('pad', 4096):
        nch = OPT.get('nchain', 4)
        a('s_mov_b64 exec, 0')
        for w in range(nch - 1):
            a(f's_cmp_eq_u32 {sr(sW)}, {w}\ns_cbranch_scc1 L_pad{w}')
        a(f's_branch L_pad{nch - 1}')
        a.raw('.p2align 12')
        a.label('L_warmdone')
        a.label('L_warmret')
        a('s_mov_b64 exec, -1')

def phase_a(a, opt):
    a(f's_lshl_b32 {sr(sT3)}, {sr(sW)}, 13')
    a_setup_dma_addr(a)
    a(f's_and_b32 s3, s2, {7 if OPT.get("arot", 0) else 0}\ns_lshl_b32 {sr(sXO)}, s3, 7\ns_lshl_b32 {sr(sQO)}, s3, 19\ns_mul_i32 {sr(sGO)}, s3, {64 * 3584}\ns_mov_b32 {sr(sWB)}, 0\ns_mov_b32 {sr(sM)}, 0')
    a(f's_lshl_b32 {sr(sWQB)}, {sr(sW)}, 11\ns_add_u32 {sr(sWQB)}, {sr(sWQB)}, {WBUF}\ns_lshl_b32 {sr(sWGB)}, {sr(sW)}, 10\ns_add_u32 {sr(sWGB)}, {sr(sWGB)}, {WBUF + 8192}')
    xops, xadv = a_dma_x(0); wops, wadv = a_dma_w()
    setup_x(a, opt)
    if OPT.get('b1', 0):
        emit_plain(a, xops[:1])
        setup_w(a)
        w0 = [wops[0], wops[2], wops[3]]
        emit_plain(a, w0)
        emit_plain(a, [(xops[0][0],) + xops[1]] + xops[2:]); emit_plain(a, xadv)
        emit_plain(a, [(wops[0][0],) + wops[1]] + wops[4:]); emit_plain(a, wadv)
    else:
        emit_plain(a, xops); emit_plain(a, xadv)
        setup_w(a)
        emit_plain(a, wops); emit_plain(a, wadv)
    if opt.get('early') and not opt.get('early2'): a('s_memrealtime s[98:99]')
    wm = OPT.get('warmpos', 1)
    if wm == 1: warmup(a)
    xops, xadv = a_dma_x(1); wops, wadv = a_dma_w()
    b = A()
    for i in range(ACQ, ACQ + 4): b(f'v_mov_b32 {vr(i)}, 0')
    setup2(b, opt); setup_wp(b)
    if opt.get('early'):
        b('s_waitcnt lgkmcnt(0)')
        for nm, r in (('karg', 'vcc_lo'), ('i16', 's98')):
            b(f's_mov_b32 s{sST + 2 * len(STAMPS)}, {r}'); STAMPS.append(nm)
    a_setup_read_addr(b); b_setup_dma_addr(b)
    for i in range(ACQ + 4, 256):
        b(f'v_mov_b32 {vr(i)}, 0')
        if (i - ACQ) % 16 == 8 and (i - ACQ) // 16 < 8:
            b(f'v_mfma_f32_32x32x16_bf16 {ar(AGU + 16 * ((i - ACQ) // 16), 16)}, {vr(ACQ, 4)}, {vr(ACQ, 4)}, 0')
    fill = [l.strip() for l in b.lines]
    per = len(fill) // 15 + 1
    k0 = 0
    for k, x in enumerate(xops + wops):
        emit_plain(a, [x])
        if k == 7: emit_plain(a, xadv)
        k1 = min(len(fill), k0 + per)
        while k1 < len(fill) and fill[k1].startswith(('s_addc', 's_subb', 's_cselect')): k1 += 1
        for y in fill[k0:k1]: a(y)
        k0 = k1
    assert k0 == len(fill)
    emit_plain(a, wadv)
    ntouch = 0
    stamp(a, opt, 'issued')
    a(f'''
    s_lshl_b32 s3, {sr(sQB)}, 2
    s_add_u32 s3, s3, {sr(sW)}
    s_lshl_b32 s3, s3, 2
    s_lshr_b32 s7, {sr(sH)}, 3
    s_add_u32 s3, s3, s7
    s_lshl_b32 s3, s3, 5
    s_and_b32 s7, {sr(sH)}, 7
    s_add_u32 s3, s3, s7
    s_lshl_b32 s3, s3, 2
    s_add_u32 s94, s3, {WS_FLAG}
    v_mov_b32 v4, 0
    s_mov_b64 exec, 1
    buffer_store_dword v4, v4, {sr(SRD_WS, 4)}, s94 offen sc1
    {TW('s3')}
    s_lshl_b32 s3, s3, 3
    s_bfe_u32 s7, s2, 0x20001
    s_add_u32 s3, s3, s7
    s_lshl_b32 s3, s3, 7
    s_add_u32 s3, s3, {WS_FF}
    buffer_store_dword v4, v4, {sr(SRD_WS, 4)}, s3 offen sc1
    buffer_store_dword v4, v4, {sr(SRD_WS, 4)}, s3 offen offset:512 sc1
    s_mov_b64 exec, -1
    ''')
    if wm == 2: warmup(a)
    a(f's_waitcnt vmcnt({19 + ntouch})')
    for x in x_reads(0): a(x)
    a('s_waitcnt lgkmcnt(0)\ns_barrier')
    for x in a_reads(0) + a_reads(1): a(x)
    stamp(a, opt, 'A0')
    a('s_waitcnt lgkmcnt(0)' if opt.get('stamp') else 's_waitcnt lgkmcnt(4)')
    a.raw('.p2align 3')
    a(f's_mov_b32 {sr(sCNT)}, 3')
    a.raw('.p2align 3')
    a.label('L_a')
    G = a_superstep(0, False, 0, name='a4') + a_superstep(1, False, 0, name='a5')
    G[-4].pre.append(f's_sub_u32 {sr(sCNT)}, {sr(sCNT)}, 1')
    G[-2].pre.append(f's_cmp_lg_u32 {sr(sCNT)}, 0')
    G[-1].post.append('s_cbranch_scc1 L_a')
    emit_gaps(a, [g.ops() for g in G])
    a.raw('.p2align 3')
    emit_gaps(a, [g.ops() for g in a_superstep(0, False, 1, name='a6', kv_ops=b_prologue_dma()[:12]) + a_superstep(1, False, 2, kv_ops=b_prologue_dma()[12:])])
    stamp(a, opt, 'Aend')
    a_epilogue(a, opt)

def NMEAN(c): return SX + c
def ALPHA(c): return STT + c
def RS2(c): return STT + 4 + c
CSQ = 32; CSG = 160; HP = 224
def a_stats_ops():
    w0 = ['v_lshlrev_b32 v4, 4, v3', f'v_add_u32 v4, {CSBUF}, v4', 'v_lshlrev_b32 v5, 2, v2', f'v_lshl_add_u32 v5, {sr(sW)}, 8, v5', f'v_add_u32 v5, {CSBUF}, v5']
    w0 += [f'v_mov_b32 {vr(STT + k)}, {vr(CSD + k)}' for k in range(4)]
    w0 += [f'v_permlane16_swap_b32 {vr(CSD + k)}, {vr(STT + k)}' for k in range(4)]
    w0 += [f'v_add_f32 {vr(CSD + k)}, {vr(CSD + k)}, {vr(STT + k)}' for k in range(4)]
    w1 = [f'ds_write_b32 v5, {vr(CSD + k)} offset:{64 * k}' for k in range(4)]
    st = ['v_and_b32 v6, 3, v1', 'v_cmp_eq_u32 s[98:99], 1, v6', 'v_cmp_eq_u32 s[100:101], 2, v6', 'v_cmp_eq_u32 vcc, 3, v6',
          ] + (['v_lshrrev_b32 v6, 2, v2', 'v_cmp_eq_u32 s[92:93], v6, v3'] if not OPT.get('small', 1) else [])
    st += [f'v_mov_b32 {vr(STT + 4 + k)}, {vr(SX + k)}' for k in range(4)]
    st += [f'v_permlane16_swap_b32 {vr(SX + k)}, {vr(STT + 4 + k)}' for k in range(4)]
    st += [f'v_add_f32 {vr(SX + k)}, {vr(SX + k)}, {vr(STT + 4 + k)}' for k in range(4)]
    for c in range(4):
        st.append(f'v_mul_f32 {vr(NMEAN(c))}, {f2u(-1 / 512)}, {vr(SX + c)}')
    for k, m in ((1, 's[98:99]'), (2, 's[100:101]'), (3, 'vcc')):
        for c in range(4):
            b = SXX + 4 * c
            st.append(f'v_cndmask_b32 {vr(b)}, {vr(b)}, {vr(b + k)}, {m}')
    for c in range(4 if not OPT.get('small', 1) else 0):
        st.append(f'v_cndmask_b32 {vr(SXX + 4 * c)}, 0, {vr(SXX + 4 * c)}, s[92:93]')
    for sw in ('v_permlane32_swap_b32', 'v_permlane16_swap_b32'):
        for c in range(4): st.append(f'v_mov_b32 {vr(SXX + 4 * c + 1)}, {vr(SXX + 4 * c)}')
        for c in range(4): st.append(f'{sw} {vr(SXX + 4 * c)}, {vr(SXX + 4 * c + 1)}')
        for c in range(4): st.append(f'v_add_f32 {vr(SXX + 4 * c)}, {vr(SXX + 4 * c)}, {vr(SXX + 4 * c + 1)}')
    sc = (128 ** -0.5) * math.log2(math.e)
    for c in range(4): st.append(f'v_mul_f32 {vr(SXX + 4 * c)}, {f2u(1 / 512)}, {vr(SXX + 4 * c)}')
    for c in range(4): st.append(f'v_fma_f32 {vr(SXX + 4 * c)}, -{vr(NMEAN(c))}, {vr(NMEAN(c))}, {vr(SXX + 4 * c)}')
    for c in range(4): st.append(f'v_max_f32 {vr(SXX + 4 * c)}, 0, {vr(SXX + 4 * c)}')
    for c in range(4): st.append(f'v_add_f32 {vr(SXX + 4 * c)}, {f2u(1e-5)}, {vr(SXX + 4 * c)}')
    for c in range(4): st.append(f'v_rsq_f32 {vr(ALPHA(c))}, {vr(SXX + 4 * c)}')
    for c in range(4): st.append(f'v_rcp_f32 {vr(RS2(c))}, {vr(SXX + 4 * c)}')
    for c in range(4): st.append(f'v_mul_f32 {vr(ALPHA(c))}, {f2u(sc)}, {vr(ALPHA(c))}')
    rd = [f'ds_read_b128 {vr(CSQ + 4 * nb, 4)}, v4 offset:{64 * nb}' for nb in range(8)]
    return (w0, w1), st, rd

def bc(r):
    return vr(r & ~1, 2), (r & 1)

def a_epilogue(a, opt):
    for c in range(4):
        nm, nh = bc(NMEAN(c))
        for nb in range(8):
            b = ACQ + (nb * 4 + c) * 4
            for i in (0, 2):
                a(f'v_pk_fma_f32 {vr(b + i, 2)}, {vr(CSQ + 4 * nb + i, 2)}, {nm}, {vr(b + i, 2)} op_sel:[0,{nh},0] op_sel_hi:[1,{nh},1]')
    for c in range(4):
        al, ah = bc(ALPHA(c))
        for nb in range(8):
            b = ACQ + (nb * 4 + c) * 4
            for i in (0, 2):
                a(f'v_pk_mul_f32 {vr(b + i, 2)}, {vr(b + i, 2)}, {al} op_sel:[0,{ah}] op_sel_hi:[1,{ah}]')
            for i in (0, 2):
                a(f'v_cvt_pk_bf16_f32 {vr(Q + 16 * c + 2 * nb + (i >> 1))}, {vr(b + i)}, {vr(b + i + 1)}')
    stamp(a, opt, 'e_q')
    for nb in range(8):
        a(f'ds_read_b128 {vr(CSG + 4 * nb, 4)}, v4 offset:{64 * (8 + nb)}')

def h_epilogue(a, mfmas, vmem):
    mfmas = list(mfmas)
    if OPT.get('x_noh'):
        emit_plain(a, vmem)
        for m in mfmas: a(m)
        a('s_nop 7')
        return
    for c in range(4):
        nm, nh = bc(NMEAN(c)); rs, rh = bc(RS2(c))
        tg = 128; tu = 144
        emit_plain(a, vmem[c:c + 1])
        for k in range(16):
            if k % 2 == 0: a(mfmas.pop(0))
            a(f'v_accvgpr_read_b32 {vr(tg + k)}, {ar(AGU + ((k >> 2) * 4 + c) * 4 + (k & 3))}')
            a(f'v_accvgpr_read_b32 {vr(tu + k)}, {ar(AGU + (((k >> 2) + 4) * 4 + c) * 4 + (k & 3))}')
        for k in range(0, 16, 2):
            a(f'v_pk_fma_f32 {vr(tg + k, 2)}, {vr(CSG + k, 2)}, {nm}, {vr(tg + k, 2)} op_sel:[0,{nh},0] op_sel_hi:[1,{nh},1]')
        for k in range(0, 16, 2):
            a(f'v_pk_fma_f32 {vr(tu + k, 2)}, {vr(CSG + 16 + k, 2)}, {nm}, {vr(tu + k, 2)} op_sel:[0,{nh},0] op_sel_hi:[1,{nh},1]')
        for k in range(0, 16, 2):
            a(f'v_pk_mul_f32 {vr(tg + k, 2)}, {vr(tg + k, 2)}, {rs} op_sel:[0,{rh}] op_sel_hi:[1,{rh}]')
        for k in range(0, 16, 2):
            a(f'v_pk_mul_f32 {vr(tg + k, 2)}, {vr(tg + k, 2)}, {vr(tu + k, 2)}')
        for k in range(8):
            a(f'v_cvt_pk_bf16_f32 {vr(tu + k)}, {vr(tg + 2 * k)}, {vr(tg + 2 * k + 1)}')
        for k in range(8):
            a(f'v_accvgpr_write_b32 {ar(HP + c * 8 + k)}, {vr(tu + k)}')
    assert not mfmas

def Sreg(buf, c, kb=0): return S + buf * 32 + c * 8 + kb * 4
def Qreg(c, s): return Q + c * 16 + s * 4
def Preg(c, par): return (PA if c < 2 else PB) + par * 8 + (c & 1) * 4
def Oreg(c, db): return O + c * 32 + db * 4
def LMreg(hf): return LM + hf * 4
def LOLD(hf): return LM + 8 + hf
SELA = 24; HL = 33; SL = 66
def qk_mfma(buf, c, kb, s, c0=None, head=None):
    d = vr(Sreg(buf, c, kb), 4)
    cc = d if not (s == 0 if head is None else head) else (c0 if c0 is not None else vr(NM + 4 * c, 4))
    return mf(d, ar(KF + 4 * (kb * 4 + s), 4), vr(Qreg(c, s), 4), cc)
def pv_mfma(c, par, db, c0=None):
    d = ar(Oreg(c, db), 4)
    return mf(d, ar(VF + par * 32 + db * 4, 4), vr(Preg(c, par), 4), d if c0 is None else c0)
def sum_mfma(hf, par):
    return f'v_smfmac_f32_16x16x64_bf16 {vr(LMreg(hf), 4)}, {vr(SELA, 4)}, {vr(Preg(2 * hf, par), 8)}, {vr(SIDX)}'
def k_read(slot, kb, s, base=None):
    if base is not None:
        return f'ds_read_b128 {ar(KF + 4 * (kb * 4 + s), 4)}, {vr(base + s)} offset:{slot * STAGE + kb * 8192}'
    return f'ds_read_b128 {ar(KF + 4 * (kb * 4 + s), 4)}, {vr(KA + 4 * (slot >> 2) + s)} offset:{(slot & 3) * STAGE + kb * 8192}'
def v_read(slot, db, u):
    return f'ds_read_b64_tr_b16 {ar(VF + (slot & 1) * 32 + db * 4 + 2 * u, 2)}, {vr((VAB if slot >= 4 else VAA) + db)} offset:{(slot & 3) * STAGE + u * 8192 + 2048}'
def dma_k(i):
    return f'buffer_load_dwordx4 {vr(DK0 + i)}, {sr(SRD_K, 4)}, {sr(sOK)} offen offset:{1024 * i}{OPT.get("kvsc", "")} lds'
def dma_v(i):
    return f'buffer_load_dwordx4 {vr(DV0 + i)}, {sr(SRD_V, 4)}, {sr(sOK)} offen offset:{2048 + 1024 * i}{OPT.get("kvsc", "")} lds'
def stage_dma(slot, k=True, v=True):
    ops = ([dma_k(0), dma_k(1)] if k else []) + ([dma_v(0), dma_v(1)] if v else [])
    ops[0] = (f's_add_u32 m0, {sr(sW4K)}, {slot * STAGE}', f's_add_u32 {sr(sOK)}, {sr(sOK)}, 8192', ops[0])
    return ops

def b_setup_dma_addr(a):
    a(f'''
    s_lshl_b32 s3, {sr(sW)}, 3
    v_add_u32 v5, s3, v3          ; row = 8w + (l>>4)
    v_and_b32 v7, 15, v5
    v_xor_b32 v7, v7, v2
    v_lshlrev_b32 v7, 4, v7
    v_lshl_add_u32 {vr(DK0)}, v5, 8, v7
    v_xor_b32 {vr(DK1)}, 64, {vr(DK0)}
    v_lshlrev_b32 v7, 1, v3
    v_xor_b32 v7, v7, v2
    v_lshlrev_b32 v7, 4, v7
    v_lshl_add_u32 {vr(DV0)}, v5, 8, v7
    v_xor_b32 {vr(DV1)}, 128, {vr(DV0)}
    s_mov_b32 {sr(sOK)}, {-8192 & 0xffffffff}
    ''')

def b_prologue_dma():
    ops = stage_dma(8, v=False) + stage_dma(9, v=False)
    for sl in range(5):
        ops += stage_dma(sl)
    return ops

def b_prologue_dma2():
    return stage_dma(5)

def b_setup_read_addr(a):
    a(f'''
    v_lshrrev_b32 v4, 3, v2
    v_lshlrev_b32 v4, 12, v4      ; (r>>3)*4096
    v_and_b32 v5, 7, v2
    v_lshl_add_u32 v4, v5, 8, v4  ; + (r&7)*256
    v_xor_b32 v5, v2, v3
    v_lshl_add_u32 v4, v5, 4, v4  ; + (r^g)*16
    ''')
    for s in range(4):
        a(f'v_xor_b32 {vr(KA + s)}, {s * 64}, v4')
        a(f'v_add_u32 {vr(KA + 4 + s)}, 65536, {vr(KA + s)}')
        a(f'v_add_u32 {vr(ST + 8 + s)}, 131072, {vr(KA + s)}')
    a(f'''
    v_bfe_u32 v4, v1, 2, 3        ; row&7
    v_lshlrev_b32 v5, 8, v4
    v_lshl_add_u32 v5, v4, 5, v5
    v_lshrrev_b32 v6, 5, v1
    v_lshl_add_u32 v5, v6, 12, v5
    v_and_b32 v6, 3, v1
    v_lshl_add_u32 v5, v6, 3, v5
    ''')
    for db in range(8):
        a(f'v_xor_b32 {vr(VAA + db)}, {db * 32}, v5')
        a(f'v_add_u32 {vr(VAB + db)}, 65536, {vr(VAA + db)}')
    a(f'''
    v_mov_b32 {vr(THR)}, 0x4e800000      ; 2^30
    v_mov_b32 {vr(SIDX)}, {vr(IDX)}
    v_lshrrev_b32 v4, 3, v2
    v_lshrrev_b32 v5, 5, v1
    v_and_b32 v6, 3, v1
    v_lshl_add_u32 v4, v6, 1, v4
    v_cmp_eq_u32 vcc, v4, v5
    v_mov_b32 v4, 0x3f803f80
    s_nop 0
    v_cndmask_b32 v5, 0, v4, vcc
    ''')
    for i in range(4):
        a(f'v_mov_b32 {vr(SELA + i)}, v5')
    a(f'v_lshlrev_b32 {vr(CL16)}, 4, v1')

def xlane(a, op, dst, t2):
    for sw in ('v_permlane32_swap_b32', 'v_permlane16_swap_b32'):
        a(f'v_mov_b32 {vr(t2)}, {vr(dst)}')
        a('s_nop 1')
        a(f'{sw} {vr(dst)}, {vr(t2)}')
        a(f'{op} {vr(dst)}, {vr(dst)}, {vr(t2)}')

def rowmax(a, base, dst, t2):
    a(f'v_max3_f32 {vr(dst)}, {vr(base)}, {vr(base + 1)}, {vr(base + 2)}')
    a(f'v_max3_f32 {vr(dst)}, {vr(dst)}, {vr(base + 3)}, {vr(base + 4)}')
    a(f'v_max3_f32 {vr(dst)}, {vr(dst)}, {vr(base + 5)}, {vr(base + 6)}')
    a(f'v_max_f32 {vr(dst)}, {vr(dst)}, {vr(base + 7)}')
    xlane(a, 'v_max_f32', dst, t2)

def softmax_c(a, sbase, pbase, tb, n=4):
    for r in range(n):
        a(f'v_exp_f32 {vr(tb)}, {vr(sbase + 2 * r)}')
        a(f'v_exp_f32 {vr(tb + 1)}, {vr(sbase + 2 * r + 1)}')
        a('s_nop 0')
        a(f'v_cvt_pk_bf16_f32 {vr(pbase + r)}, {vr(tb)}, {vr(tb + 1)}')

def b_prologue(a, opt):
    b_setup_read_addr(a)
    a('s_waitcnt vmcnt(0) lgkmcnt(0)')
    stamp(a, opt, 'e_h')
    a('s_barrier')
    for kb in range(2):
        for s in range(4):
            a(k_read(0, kb, s, base=ST + 8))
    a(f'''
    s_lshl_b32 s3, {sr(sQB)}, 4
    s_lshl_b32 s7, {sr(sW)}, 2
    s_add_u32 s3, s3, s7
    s_mul_i32 s3, s3, {HST()}
    {FB('s7', 's63')}
    s_lshl_b32 s7, s7, 11
    s_add_u32 s3, s3, s7
    s_add_u32 {sr(sHO)}, s3, {WS_H}
    s_mov_b32 s{SRD_WG}, s{SRD_WS}
    s_mov_b32 s{SRD_WG + 1}, s{SRD_WS + 1}
    {FBOK('s7')}
    s_cselect_b32 s{SRD_WG + 2}, 0x10000000, 0
    s_mov_b32 s{SRD_WU}, s{SRD_DBG}
    s_mov_b32 s{SRD_WU + 1}, s{SRD_DBG + 1}
    s_mov_b32 s{SRD_WU + 2}, 4
    s_cmp_eq_u32 {sr(sW)}, 0
    s_cselect_b32 {sr(sXO)}, 4, 64
    {TW('s54')}
    s_lshl_b32 s3, s54, 2
    s_bfe_u32 s7, s2, 0x20001
    s_add_u32 s3, s3, s7
    s_mul_i32 s3, s3, 12288
    s_add_u32 s92, s3, {WS_XF}
    s_add_u32 s93, s92, 4096
    s_add_u32 s62, s92, 8192
    s_waitcnt lgkmcnt(0)
    ''')
    h_epilogue(a, [qk_mfma(0, c, kb, s, c0='0') for c in range(4) for kb in range(2) for s in range(4)], b_prologue_dma2())
    stamp(a, opt, 'e_h2')
    for kb in range(2):
        for s in range(4):
            a(k_read(1, kb, s, base=ST + 8))
    for i in range(10):
        a(f'v_mov_b32 {vr(LM + i)}, 0')
    m = [ST + c for c in range(4)]; t2 = [ST + 4 + c for c in range(4)]
    for k in range(4):
        for c in range(4):
            b = Sreg(0, c)
            a([f'v_max3_f32 {vr(m[c])}, {vr(b)}, {vr(b + 1)}, {vr(b + 2)}', f'v_max3_f32 {vr(m[c])}, {vr(m[c])}, {vr(b + 3)}, {vr(b + 4)}',
               f'v_max3_f32 {vr(m[c])}, {vr(m[c])}, {vr(b + 5)}, {vr(b + 6)}', f'v_max_f32 {vr(m[c])}, {vr(m[c])}, {vr(b + 7)}'][k])
    for sw in ('v_permlane32_swap_b32', 'v_permlane16_swap_b32'):
        for c in range(4): a(f'v_mov_b32 {vr(t2[c])}, {vr(m[c])}')
        a('s_nop 0')
        for c in range(4): a(f'{sw} {vr(m[c])}, {vr(t2[c])}')
        for c in range(4): a(f'v_max_f32 {vr(m[c])}, {vr(m[c])}, {vr(t2[c])}')
    for c in range(4):
        for i in range(8):
            a(f'v_sub_f32 {vr(Sreg(0, c) + i)}, {vr(Sreg(0, c) + i)}, {vr(m[c])}')
        for i in range(4):
            a(f'v_sub_f32 {vr(NM + 4 * c + i)}, 0, {vr(m[c])}')
    for e in range(6):
        a(f'v_exp_f32 {vr(128 + e)}, {vr(Sreg(0, 2) + e)}')
    a(f'v_mov_b32 {vr(ONEV)}, 1')
    for r in range(3):
        a(f'v_cvt_pk_bf16_f32 {vr(Preg(2, 0) + r)}, {vr(128 + 2 * r)}, {vr(129 + 2 * r)}')
    a('s_waitcnt lgkmcnt(0)')

BIG = [22, 26, 30, HL + 9, HL + 13, HL + 17, HL + 22, HL + 26, HL + 30]
def step_gaps(slot, tag, opt, dma=True, final=False, extra=None, vm=0, first=None):
    p = slot & 1
    H = 1 - p
    sn = OPT.get('snk', 'qpac')
    qk = []
    for c in (2 * p, 2 * p + 1, 2 * H, 2 * H + 1):
        for i in range(2):
            kb = i ^ (c & 1) if 'q' in sn else i
            ss = range(4) if i == 0 or 'q' not in sn else range(3, -1, -1)
            qk += [qk_mfma(1 - p, c, kb, s, head=k == 0) for k, s in enumerate(ss)]
    pv = []
    for c in (2 * H, 2 * H + 1):
        for i, db in enumerate(range(8) if c & 1 == 0 else range(7, -1, -1)):
            if first == 0:
                pv += ['s_nop 0', pv_mfma(c, p, db, c0='0')]
            else:
                o = (1 - p, p) if i & 1 == 0 or 'p' not in sn else (p, 1 - p)
                pv += [pv_mfma(c, o[0], db, c0='0' if first == 1 else None), pv_mfma(c, o[1], db)]
    mfs = qk[:24] + [sum_mfma(H, p)] + qk[24:] + pv[:24] + [sum_mfma(p, p)] + pv[24:]
    G = [Gap(m) for m in mfs]
    def unit(hf, buf, e0, e1, g0):
        for e in range(e0, e1):
            g = g0 + 2 * (e - e0)
            G[g].valu.append(f'v_exp_f32 {vr(TMP + (e & 3))}, {vr(Sreg(buf, 2 * hf) + e)}')
            if e & 1:
                G[g + 1].valu.append(f'v_cvt_pk_bf16_f32 {vr(Preg(2 * hf, buf) + (e >> 1))}, {vr(TMP + ((e - 1) & 3))}, {vr(TMP + (e & 3))}')
    unit(H, p, 6, 16, 0); unit(p, p, 0, 6, 21); unit(p, p, 6, 16, HL)
    if not final: unit(p, 1 - p, 0, 6, HL + 21)
    for u, (hf, g0) in enumerate(((H, 0), (p, HL))):
        late = final and u == 1
        G[g0 + (31 if late else 28)].valu.append(f'v_cmp_nle_f32 vcc, {vr(LMreg(hf))}, {vr(THR)}')
        G[g0 + 32].post += [f's_cbranch_vccnz L_slow{u}_{tag}', f'L_back{u}_{tag}:']
    G[20].valu.append(f'v_mov_b32 {vr(LOLD(H))}, {vr(LMreg(H))}')
    G[HL + 20].valu.append(f'v_mov_b32 {vr(LOLD(p))}, {vr(LMreg(p))}')
    vplace = [1, 1, 3, 5, 5, 7, 9, 9, 11, 13, 13, 15, 17, 17, 19, 20]
    kplace = [HL + x for x in (1, 1, 3, 5, 5, 7, 11, 15)]
    for g, x in zip(vplace, [v_read(slot, db, u) for db in range(8) for u in range(2)]):
        G[g].mem.append(x)
    if not final:
        for g, x in zip(kplace, [k_read(slot, kb, s) for kb in range(2) for s in range(4)]):
            G[g].mem.append(x)
    G[HL - 1].pre.append('s_waitcnt lgkmcnt(0)')
    ops = []
    if dma:
        ops = [None] * 3 + stage_dma((slot + 6) & 7, k=dma != 'v')
        G[BIG[3] - 3].pre.append(ops[3][1]); ops[3] = (ops[3][0], ops[3][2])
    if extra:
        ops = extra
    for g, x in zip(BIG, ops):
        if x is not None:
            place(G, [x], g, g)
    if slot & 1:
        G[SL - 1].pre += [f's_waitcnt vmcnt({vm}) lgkmcnt(0)', 's_barrier'] if not final else []
    else:
        G[SL - 1].pre.append('s_waitcnt lgkmcnt(0)')
    if final:
        for g in G:
            if g.m in qk:
                g.m = 's_nop 0'
        if OPT.get('fin2', 1):
            old = [g for g in G[HL:] if g.m.startswith('v_mfma') and f', {ar(VF + (1 - p) * 32)[0]}[' in g.m and any(g.m == pv_mfma(c, 1 - p, db) for c in range(4) for db in range(8))]
            for g, h in zip(old, [G[k] for k in range(0, 32, 2) if k != 24] + [G[31]]):
                h.m, g.m = g.m, 's_nop 0'
        G[25].pre.append('s_nop 3')
        G[HL + 30].pre.append('s_nop 6')
    if first == 0: G[HL + 26].pre.append('s_nop 2')
    if final or first == 0:
        for k, g in enumerate(G):
            if g.m == 's_nop 0' and not (k and G[k - 1].valu and G[k - 1].valu[-1].startswith('v_exp') and not g.mem and not g.pre and g.valu):
                g.m = None
    return G

def gapops(G):
    return [[x for x in g.ops() if x is not None] for g in G]

def slow_path(a, p, u, final=False):
    hf = (1 - p) if u == 0 else p
    a.label(f'L_slowfn{u}_{p}_{int(final)}')
    a('s_nop 15')
    a(f'v_mov_b32 {vr(ST + 8)}, {vr(LOLD(hf))}\nv_mov_b32 {vr(ST + 9)}, {vr(LOLD(hf))}\ns_nop 1\nv_permlane16_swap_b32 {vr(ST + 8)}, {vr(ST + 9)}\nv_add_f32 {vr(ST + 8)}, {vr(ST + 8)}, {vr(ST + 9)}')
    for c in (2 * hf, 2 * hf + 1):
        cur = Sreg(p, c); nxt = Sreg(1 - p, c)
        d = ST + 4 + (c & 1); al = ST + 6 + (c & 1)
        rowmax(a, cur, d, ST + 1)
        a(f'v_max_f32 {vr(d)}, 0, {vr(d)}')
        a(f'v_mov_b32 {vr(ST)}, {vr(ST + 8)}')
        a(f'v_mov_b32 {vr(ST + 1)}, {vr(ST + 8)}')
        a('s_nop 1')
        a(f'v_permlane32_swap_b32 {vr(ST)}, {vr(ST + 1)}')
        a(f'v_log_f32 {vr(ST)}, {vr(ST + (c & 1))}')
        a('s_nop 0')
        a(f'v_max_f32 {vr(d)}, {vr(d)}, {vr(ST)}')
        a(f'v_sub_f32 {vr(al)}, 0, {vr(d)}')
        a(f'v_exp_f32 {vr(al)}, {vr(al)}')
        for i in range(8):
            a(f'v_sub_f32 {vr(cur + i)}, {vr(cur + i)}, {vr(d)}')
        if not final:
            for i in range(8):
                a(f'v_sub_f32 {vr(nxt + i)}, {vr(nxt + i)}, {vr(d)}')
        for i in range(4):
            a(f'v_sub_f32 {vr(NM + 4 * c + i)}, {vr(NM + 4 * c + i)}, {vr(d)}')
        for i in range(32):
            a(f'v_accvgpr_read_b32 {vr(ST + 2)}, {ar(Oreg(c, 0) + i)}')
            a(f'v_mul_f32 {vr(ST + 2)}, {vr(ST + 2)}, {vr(al)}')
            a(f'v_accvgpr_write_b32 {ar(Oreg(c, 0) + i)}, {vr(ST + 2)}')
        softmax_c(a, cur, Preg(c, p), ST + 2)
        if u == 0 and not (final and OPT.get('fin2', 1)):
            for r in range(4):
                x = Preg(c, 1 - p) + r
                a(f'v_lshlrev_b32 {vr(ST + 2)}, 16, {vr(x)}\nv_and_b32 {vr(ST + 3)}, 0xffff0000, {vr(x)}')
                a(f'v_mul_f32 {vr(ST + 2)}, {vr(ST + 2)}, {vr(al)}\nv_mul_f32 {vr(ST + 3)}, {vr(ST + 3)}, {vr(al)}')
                a(f'v_cvt_pk_bf16_f32 {vr(x)}, {vr(ST + 2)}, {vr(ST + 3)}')
        elif not final and c & 1 == 0:
            softmax_c(a, nxt, Preg(c, 1 - p), ST + 2, n=3)
    a(f'v_cmp_gt_u32 vcc, 32, {vr(LANE)}')
    a('s_nop 1')
    a(f'v_cndmask_b32 {vr(ST)}, {vr(ST + 7)}, {vr(ST + 6)}, vcc')
    a(f'v_mul_f32 {vr(LMreg(hf))}, {vr(LOLD(hf))}, {vr(ST)}')
    a('s_nop 1')
    a(sum_mfma(hf, p))
    a('s_nop 7')
    a('s_setpc_b64 s[98:99]')

SLOW = []; PFX = []
def is_vm(x): return x.startswith(('buffer_', 'global_'))
def vm_between(G, g0, g1):
    return sum(1 for g in G[g0:g1] for x in g.mem if is_vm(x))

def trace_ops(G, lane, n=8):
    for sl in range(n):
        G[sl * SL + 0].pre += ['s_memtime s[100:101]'] + lane(sl)
        G[sl * SL + 44].valu += ['v_cmp_eq_u32 vcc, s95, v1']
        G[sl * SL + 48].valu += ['v_mov_b32 v222, s100']
        G[sl * SL + 52].valu += ['v_cndmask_b32 v221, v221, v222, vcc']

def ALIGN(): return OPT.get('align', False)
def first_pass(a, opt):
    G = []
    for st in range(16):
        G += step_gaps(st & 7, f'f{st}', opt, vm='VM', first=st if st < 2 else None); SLOW.append((st & 1, f'f{st}', False))
    def at(st, g, x): place(G, [x], st * SL + g, st * SL + g)
    hs = OPT.get('hs', [(0, 63), (1, 63), (5, 63), (6, 59), (6, 63), (7, 63), (8, 63), (9, 63)])
    for k in range(8):
        x = f'buffer_store_dwordx4 {ar(HP + 4 * k, 4)}, {vr(CL16)}, {sr(SRD_WG, 4)}, {sr(sHO)} offen offset:{1024 * (k & 1)} sc1'
        if k in (2, 4, 6): x = (f's_add_u32 {sr(sHO)}, {sr(sHO)}, {HST()}', x)
        if not opt.get('nohst'): at(hs[k][0], hs[k][1], x)
    place(G, wp_addr0(), SL + 22, SL + 45, kind='valu')
    dpos = OPT.get('dpos', [(2, 26), (2, 30), (3, 26), (3, 30), (4, 26), (4, 30), (5, 26), (5, 30)])
    for (st, g), x in zip(dpos, wp_dma()): at(st, g, x)
    place(G, wp_addr1(), 7 * SL + 22, 9 * SL + 30, kind='valu')
    r0 = OPT.get('r0', 10)
    assert r0 % 2 == 0 and dpos[-1][0] <= r0 - 5
    rd = wp_reads()
    sc, stv = wp_stores()
    G[9 * SL + 2].pre += sc[:2]; G[9 * SL + 4].pre += sc[2:6]; G[9 * SL + 6].pre += sc[6:]
    spos = OPT.get('spos', [(10, 63), (11, 59), (11, 63), (12, 63), (13, 63), (14, 59), (14, 63), (15, 63)])
    for k in range(4):
        place(G, rd[4 * k:4 * k + 4], (r0 + k) * SL + 22, (r0 + k) * SL + 26)
    for k, (st, g) in enumerate(spos):
        assert st >= r0 + k // 2
        at(st, g, stv[k])
    for j in range(1, 16, 2):
        n = vm_between(G, 0 if j < 4 else (j - 4) * SL + BIG[6] + 1, j * SL + SL - 1)
        G[j * SL + SL - 1].pre = [x.replace('VM', str(min(n, 63))) for x in G[j * SL + SL - 1].pre]
    if opt.get('trace'): trace_ops(G, lambda st: [f's_mov_b32 s95, {63 - st}'], 16)
    a.raw('.p2align 3')
    emit_gaps(a, gapops(G), align=ALIGN())

def phase_b(a, opt):
    b_prologue(a, opt)
    stamp(a, opt, 'B0')
    a(f's_mov_b32 {sr(sCNT)}, 5')
    first_pass(a, opt)
    stamp(a, opt, 'B1')
    a.raw('.p2align 6')
    a.label('L_attn')
    G = []
    for sl in range(8):
        G += step_gaps(sl, f's{sl}', opt, vm=16); SLOW.append((sl & 1, f's{sl}', False))
    G[2 * SL + 21].pre += [f's_cmp_eq_u32 {sr(sCNT)}, {sr(sXO)}']
    G[2 * SL + 22].post += ['s_cbranch_scc1 L_cnt', 'L_cnt_ok:']
    if opt.get('trace'): trace_ops(G, lambda sl: [f's_lshl_b32 s95, {sr(sCNT)}, 3', f's_add_u32 s95, s95, {7 - sl}'])
    G[-6].pre.append(f's_sub_u32 {sr(sCNT)}, {sr(sCNT)}, 1')
    G[-4].pre.append(f's_cmp_lg_u32 {sr(sCNT)}, 0')
    G[-1].post.append('s_cbranch_scc1 L_attn')
    emit_gaps(a, gapops(G), align=ALIGN())
    a.raw('.p2align 3')
    G = []
    NPF = OPT.get('npfs', 8)
    pf = [x for t in range(NPF) for x in c_dma(t)]
    extra = {4: pf[:8], 5: pf[8:16], 6: pf[16:24], 7: pf[24:]}
    for sl in range(8):
        g = step_gaps(sl, f't{sl}', opt, dma='v' if sl < 2 else False, final=sl == 7, extra=extra.get(sl), vm={1: 12, 3: 0, 5: 63}.get(sl, 0)); SLOW.append((sl & 1, f't{sl}', sl == 7))
        if sl == 0 and OPT.get('npf', 1):
            g[2].pre += ['s_lshr_b32 s3, s2, 3', 's_lshl_b32 s3, s3, 2', f's_add_u32 s3, s3, {sr(sW)}']
            g[4].pre += ['s_lshr_b32 s7, s3, 4', f's_mul_i32 s7, s7, {WFS}', 's_and_b32 s3, s3, 15']
            g[6].pre += ['s_lshl_b32 s3, s3, 13', 's_add_u32 s3, s3, s7', 's_bfe_u32 s7, s2, 0x20001']
            g[8].pre += ['s_lshl_b32 s7, s7, 17', 's_add_u32 s3, s3, s7', f's_add_u32 s58, s3, {WS_WF + 56 * 4096}']
            g[22].valu.append('v_lshlrev_b32 v4, 7, v1')
        if sl == 4 and OPT.get('npf', 1):
            PFX.append(f'buffer_load_dword v5, v4, {sr(SRD_WS, 4)}, s58 offen sc1')
            g[BIG[8]].mem.append(PFX[-1])
        if sl == 2:
            su = c_setup_scalar()
            for k in range(0, len(su), 2):
                g[2 + k].pre += su[k:k + 2]
            g[22].mem.append(f'buffer_load_dword {vr(POLLV)}, off, {sr(SRD_DBG, 4)}, 0 sc1')
        if sl == 4:
            g[15].valu.append(f'v_cmp_gt_u32 vcc, 0x100, {vr(POLLV)}')
            g[19].post += ['s_cbranch_vccnz L_pollall', 'L_pollall_ok:']
        G += g
    if opt.get('trace'): trace_ops(G, lambda sl: [f's_mov_b32 s95, {7 - sl}'])
    emit_gaps(a, gapops(G), align=ALIGN())
    stamp(a, opt, 'Bend')
    if opt.get('trace'): a('v_mov_b32 v63, v221')

def finalize_pre(a):
    a(f'''
    s_lshl_b32 s3, {sr(sQB)}, 4
    s_lshl_b32 s7, {sr(sW)}, 2
    s_add_u32 s3, s3, s7
    s_mul_i32 s3, s3, {OST()}
    s_lshl_b32 s7, {sr(sH)}, 12
    s_add_u32 {sr(sOK)}, s3, s7
    ''')
    for hf in range(2):
        a(f'v_mov_b32 {vr(ST + hf)}, {vr(LMreg(hf))}')
    a('s_nop 0')
    for hf in range(2):
        a(f'v_permlane16_swap_b32 {vr(LMreg(hf))}, {vr(ST + hf)}')
    for hf in range(2):
        a(f'v_add_f32 {vr(ST + 2 + 2 * hf)}, {vr(LMreg(hf))}, {vr(ST + hf)}')
        a(f'v_add_f32 {vr(ST + 3 + 2 * hf)}, {vr(LMreg(hf))}, {vr(ST + hf)}')
    a('s_nop 0')
    for hf in range(2):
        a(f'v_permlane32_swap_b32 {vr(ST + 2 + 2 * hf)}, {vr(ST + 3 + 2 * hf)}')
    for c in range(4):
        a(f'v_rcp_f32 {vr(RL + 2 * c)}, {vr(ST + 2 + c)}')
        a(f'v_rcp_f32 {vr(RL + 2 * c + 1)}, {vr(ST + 2 + c)}')

NF = 14; NS = 32
BLK = [0, 1, 2, 3, 8, 9, 4, 5, 6, 7]
sB0 = 56; sB1 = 57
BAD = 8; AAD = 20; CA2 = 192; CB2 = 224
def c_stream(kind):
    st, base, k0, nk, ka = (HST(), WS_H, 0, NF, 0) if kind[0] == 'f' else (OST(), WS_O, 0, NS, 56)
    ops = []
    if 'b' in kind:
        ops += [f's_lshl_b32 s3, {sr(sRB)}, 2', f's_add_u32 s3, s3, {sr(sW)}', f's_mul_i32 s3, s3, {2 * st}', 's_bfe_u32 s7, s2, 0x20001', f's_mul_i32 s7, s7, {nk * 1024}',
                's_add_u32 s3, s3, s7', f's_add_u32 {sr(sB0)}, s3, {(base - 1024) & 0xffffffff}', f's_add_u32 {sr(sB1)}, {sr(sB0)}, {st - 1024}']
    if 'a' in kind:
        ops += [f's_lshl_b32 s3, {sr(sCB)}, 1', f's_lshr_b32 s7, {sr(sW)}, 1', 's_add_u32 s3, s3, s7', f's_mul_i32 s3, s3, {WFS}', 's_bfe_u32 s7, s2, 0x20001', f's_mul_i32 s7, s7, {nk * 4096}',
                's_add_u32 s3, s3, s7', f's_and_b32 s7, {sr(sW)}, 1', 's_lshl_b32 s7, s7, 11', 's_add_u32 s3, s3, s7', f's_add_u32 {sr(sAO)}, s3, {WS_WF + ka * 4096 - 2048 - 4096}']
    return ops
def c_setup_scalar(): return c_stream('fab')
def c_dma(t, what='ab'):
    ops = []
    pre = (f's_add_u32 m0, {sr(sW4K)}, {BLK[t % 10] * STAGE}',)
    if 'b' in what:
        ops += [pre + (f's_add_u32 {sr(sB0)}, {sr(sB0)}, 1024', f'buffer_load_dwordx4 {vr(CL16)}, {sr(SRD_WS, 4)}, {sr(sB0)} offen sc1 lds'),
                (f's_add_u32 {sr(sB1)}, {sr(sB1)}, 1024', f'buffer_load_dwordx4 {vr(CL16)}, {sr(SRD_WS, 4)}, {sr(sB1)} offen offset:1024 sc1 lds')]
        pre = ()
    if 'a' in what:
        ops += [pre + (f's_add_u32 {sr(sAO)}, {sr(sAO)}, 4096', f'buffer_load_dwordx4 {vr(CL16)}, {sr(SRD_WS, 4)}, {sr(sAO)} offen offset:2048 sc1 lds'),
                f'buffer_load_dwordx4 {vr(CL16)}, {sr(SRD_WS, 4)}, {sr(sAO)} offen offset:3072 sc1 lds']
    return ops
def CCH(): return OPT.get('cch', 0)
def cA(t, k): return vr(64 + (t & 1) * 16 + 4 * k, 4) if CCH() and t & 2 else ar(CA2 + (t & 1) * 16 + 4 * k, 4)
def cB(t, k): return vr(96 + (t & 1) * 16 + 4 * k, 4) if CCH() and t & 2 else ar(CB2 + (t & 1) * 16 + 4 * k, 4)
def c_reads(t):
    b = BLK[t % 10]; off = (b & 3) * STAGE; st = b >> 2
    out = []
    for k in range(4):
        out.append(f'ds_read_b128 {cA(t, k)}, {vr(AAD + st)} offset:{off + (k >> 1) * 4096 + (k & 1) * 1024}')
        out.append(f'ds_read_b128 {cB(t, k)}, {vr(BAD + 4 * st + k)} offset:{off}')
    return out

def spin(a, name, sleep, body):
    a.label(name)
    a('s_mov_b32 s63, 0x20000')
    a.label(name + '_l')
    a(f's_sub_u32 s63, s63, 1\ns_cbranch_scc1 {name}_ok')
    if sleep: a(f's_sleep {sleep}')
    body(name + '_l')
    a(f's_branch {name}_ok')

def hooks(a):
    def flag(srd_):
        def body(l):
            a(f'buffer_load_dword v5, v4, {sr(srd_, 4)}, 0 offen {OPT.get("psc", "sc1")}\ns_waitcnt vmcnt(0)')
            a(f'v_cmp_ne_u32 vcc, v5, v6\ns_cbranch_vccnz {l}')
        return body
    def cnt(l):
        a(f'buffer_load_dword {vr(POLLV)}, off, {sr(SRD_DBG, 4)}, 0 sc1\ns_waitcnt vmcnt(0)\nv_cmp_gt_u32 vcc, 0x100, {vr(POLLV)}\ns_cbranch_vccnz {l}')
    a(f'L_cnt:\nbuffer_atomic_add {vr(ONEV)}, {vr(CL16)}, {sr(SRD_WU, 4)}, 0 offen sc1\ns_branch L_cnt_ok')
    spin(a, 'L_pollall', 8, cnt)
    spin(a, 'L_po', OPT.get('posleep', 8), flag(SRD_WG))
    spin(a, 'L_pf', 8, flag(SRD_WD))
    spin(a, 'L_ps', OPT.get('pssleep', 2), flag(SRD_WD))

class VM:
    def __init__(self, init): self.ops = list(init); self.done = 0
    def issue(self, tag): self.ops.append(tag); assert len(self.ops) - self.done <= 63, (tag, len(self.ops) - self.done)
    def wait(self, *tags):
        last = max(i for i, t in enumerate(self.ops) if t in tags)
        n = len(self.ops) - 1 - last
        self.done = max(self.done, last + 1)
        return f's_waitcnt vmcnt({n})'

def x_pack(acc, j, tb=160, pb=176):
    rd = [f'v_accvgpr_read_b32 {vr(tb + 4 * nb + i)}, {ar(acc + (nb * 4 + j) * 4 + i)}' for nb in range(4) for i in range(4)]
    cv = [f'v_cvt_pk_bf16_f32 {vr(pb + k)}, {vr(tb + 2 * k)}, {vr(tb + 2 * k + 1)}' for k in range(8)]
    return rd, cv
def x_dest(j, base, r):
    return ['s_bfe_u32 s7, s2, 0x20001', f's_add_u32 s7, s7, {j}', 's_and_b32 s7, s7, 3', 's_lshl_b32 s3, s54, 2', 's_add_u32 s3, s3, s7', 's_mul_i32 s3, s3, 12288',
            f's_add_u32 {r}, s3, {base + (j - 1) * 2048}']
def x_loads(part, reg):
    return [f'buffer_load_dwordx4 {vr(reg + 4 * k, 4)}, {vr(CL16)}, {sr(SRD_WS, 4)}, {XIN[(6 * part + k) >> 2]} offen offset:{1024 * ((6 * part + k) & 3)} sc1' for k in range(6)]
def x_check(a, reg, retry):
    a(f'''
    v_max3_u32 v14, {vr(reg)}, {vr(reg + 4)}, {vr(reg + 8)}
    v_max3_u32 v14, v14, {vr(reg + 12)}, {vr(reg + 16)}
    v_max_u32 v14, v14, {vr(reg + 20)}
    v_cmp_eq_u32 vcc, -1, v14
    s_cbranch_vccnz {retry}
    ''')
def x_add(a, dst, reg):
    for r in range(3):
        for k in range(8):
            a(f'v_lshlrev_b32 {vr(96 + 2 * k)}, 16, {vr(reg + 8 * r + k)}')
            a(f'v_and_b32 {vr(97 + 2 * k)}, 0xffff0000, {vr(reg + 8 * r + k)}')
        for k in range(0, 16, 2):
            a(f'v_pk_add_f32 {vr(dst + k, 2)}, {vr(dst + k, 2)}, {vr(96 + k, 2)}')
def x_accum(dst, src):
    ops = []
    for k in range(8):
        ops += [f'v_lshlrev_b32 v200, 16, {vr(src + k)}', f'v_and_b32 v201, 0xffff0000, {vr(src + k)}',
                f'v_add_f32 {vr(dst + 2 * k)}, {vr(dst + 2 * k)}, v200', f'v_add_f32 {vr(dst + 2 * k + 1)}, {vr(dst + 2 * k + 1)}, v201']
    return ops

def phase_c(a, opt):
    T = NF + NS
    COUT = 23; CXR = 24; GV = 240; XR = 32; SV = 224
    finalize_pre(a)
    NPRE = OPT.get('npre', 4)
    lastpv = [pv_mfma(c, 1, db) for c in (2, 3) for db in range(8)]
    assert NPRE == 4
    for c in range(NPRE):
        for i in range(32):
            if c < 2 and i % 4 == 0: a(lastpv.pop(0))
            a(f'v_accvgpr_read_b32 {vr(128 + i)}, {ar(Oreg(c, 0) + i)}')
        for f in range(4):
            for i in range(0, 8, 2): a(f'v_pk_mul_f32 {vr(128 + 8 * f + i, 2)}, {vr(128 + 8 * f + i, 2)}, {vr(RL + 2 * c, 2)}')
            for i in range(4): a(f'v_cvt_pk_bf16_f32 {vr(160 + 4 * f + i)}, {vr(128 + 8 * f + 2 * i)}, {vr(129 + 8 * f + 2 * i)}')
            a(f'buffer_store_dwordx4 {vr(160 + 4 * f, 4)}, {vr(CL16)}, {sr(SRD_WS, 4)}, {sr(sOK)} offen offset:{1024 * f} sc1')
        a(f's_add_u32 {sr(sOK)}, {sr(sOK)}, {OST()}')
    a(f'''
    s_lshr_b32 s7, {sr(sW)}, 1
    s_lshl_b32 s58, s7, 13               ; mh*8192
    s_and_b32 s7, {sr(sW)}, 1
    s_lshl_b32 s7, s7, 13
    s_add_u32 s7, s7, 2048
    v_add_u32 {vr(AAD)}, s7, {vr(CL16)}
    v_add_u32 {vr(AAD + 1)}, 65536, {vr(AAD)}
    v_add_u32 {vr(AAD + 2)}, 131072, {vr(AAD)}
    ''')
    for j in range(4):
        a(f'''
        s_bfe_u32 s3, s2, 0x20001
        s_add_u32 s3, s3, {j}
        s_and_b32 s7, s3, 1
        s_and_b32 s3, s3, 2
        s_lshl_b32 s3, s3, 11
        s_lshl_b32 s7, s7, 10
        s_add_u32 s3, s3, s7
        s_add_u32 s3, s3, s58
        v_add_u32 {vr(BAD + j)}, s3, {vr(CL16)}
        v_add_u32 {vr(BAD + 4 + j)}, 65536, {vr(BAD + j)}
        v_add_u32 {vr(BAD + 8 + j)}, 131072, {vr(BAD + j)}
        ''')
    vm = VM([0] * 4 + [1] * 4 + ['pf'] * len(PFX[-1:]) + [t for t in range(2, OPT.get('npfs', 8)) for _ in range(4)] + ['o'] * (4 * NPRE))
    a(vm.wait(3 if CCH() else 2))
    a('s_barrier')
    for x in c_reads(0) + (c_reads(1) if CCH() else []): a(x)
    a(f'''
    s_mov_b32 s{SRD_X}, s96
    s_mov_b32 s{SRD_X + 1}, s97
    s_mov_b32 s{SRD_X + 2}, 2097152
    s_mov_b32 s{SRD_X + 3}, 0x20000
    v_lshlrev_b32 v5, 5, v3
    v_lshl_add_u32 {vr(COUT)}, v2, 10, v5
    s_lshl_b32 s3, {sr(sRB)}, 17
    s_lshl_b32 s7, s58, 3
    s_add_u32 s3, s3, s7
    s_bfe_u32 s7, s2, 0x20001
    s_lshl_b32 s7, s7, 14
    s_add_u32 s3, s3, s7
    s_lshl_b32 s7, {sr(sCB)}, 8
    s_add_u32 s3, s3, s7
    s_and_b32 s7, {sr(sW)}, 1
    s_lshl_b32 s7, s7, 7
    s_add_u32 {sr(sOV)}, s3, s7
    s_add_u32 s{SRD_WU}, s{SRD_WS}, s94
    s_addc_u32 s{SRD_WU + 1}, s{SRD_WS + 1}, 0
    s_mov_b32 s{SRD_WU + 2}, 4
    s_lshl_b32 s3, {sr(sRB)}, 10
    s_lshr_b32 s7, s58, 4
    s_add_u32 s3, s3, s7                 ; flag lines of row block 2*RB + mh
    s_bfe_u32 s7, s2, 0x20001
    s_lshl_b32 s7, s7, 7
    s_add_u32 s3, s3, s7
    s_add_u32 s3, s3, {WS_FLAG}
    s_add_u32 s{SRD_WG}, s{SRD_WS}, s3
    s_addc_u32 s{SRD_WG + 1}, s{SRD_WS + 1}, 0
    s_mov_b32 s{SRD_WG + 2}, 32
    s_lshl_b32 s3, s54, 10
    s_add_u32 s3, s3, {WS_FF}
    s_add_u32 s{SRD_WD}, s{SRD_WS}, s3
    s_addc_u32 s{SRD_WD + 1}, s{SRD_WS + 1}, 0
    s_mov_b32 s{SRD_WD + 2}, 512
    s_bfe_u32 s7, s2, 0x20001
    s_lshl_b32 s7, s7, 7
    s_add_u32 s{SRD_WO}, s{SRD_WD}, s7
    s_addc_u32 s{SRD_WO + 1}, s{SRD_WD + 1}, 0
    s_mov_b32 s{SRD_WO + 2}, 4
    v_lshlrev_b32 v4, 2, v1
    v_cmp_gt_u32 vcc, 8, v1
    v_mov_b32 v0, 1
    s_nop 0
    v_cndmask_b32 v6, 0, 1, vcc
    s_waitcnt lgkmcnt(0)
    '''.replace('v_mov_b32 v0, 1', f'v_mov_b32 {vr(ONEV)}, 1'))
    if CCH(): a('s_barrier')
    a.raw('.p2align 3')
    NFS = OPT.get('nfs', 4)
    PT = OPT.get('pt', 10)
    flag_t = OPT.get('flag_t', 0)
    U0 = OPT.get('u0', 20)
    DD = OPT.get('dd', 9 if CCH() else 8)
    cont = OPT.get('cont', 1) and PT <= 10
    if cont: OPT.setdefault('fxlate', 1); OPT.setdefault('fflag', 6 * OPT.get('fsp', 1) + 6)
    if flag_t < 0:
        a(vm.wait('o'))
        a(f'buffer_store_dword {vr(ONEV)}, {vr(CL16)}, {sr(SRD_WU, 4)}, 0 offen sc1'); vm.issue('flag')
        stamp(a, opt, 'Oflag')
    for t in range(T):
        acc = ACF if t < NF else ACS_
        first = t in (0, NF)
        u = t - NF
        G = []
        order = [(nb, j if not ('c' in OPT.get('snk', 'qpac') and nb & 1) else 3 - j) for nb in range(4) for j in range(4)] if t < T - (2 if CCH() else 1) else [(nb, j) for j in (1, 2, 3, 0) for nb in range(4)]
        if CCH():
            t0 = t & ~1
            for i, (nb, j) in enumerate(order[8 * (t & 1):8 * (t & 1) + 8]):
                d = ar(acc + (nb * 4 + j) * 4, 4)
                k0, k1 = (t0, t0 + 1) if i & 1 == 0 else (t0 + 1, t0)
                G += [Gap(mf(d, cA(k0, nb), cB(k0, j), '0' if t0 in (0, NF) else d)), Gap(mf(d, cA(k1, nb), cB(k1, j), d))]
        else:
            for nb, j in order:
                d = ar(acc + (nb * 4 + j) * 4, 4)
                G.append(Gap(mf(d, cA(t, nb), cB(t, j), '0' if first else d)))
        def vmem(g, x, tag):
            place(G, [x], g, None, cap=9); vm.issue(tag)
        if t == PT:
            if PT == NF:
                a(f'buffer_load_dword v5, v4, {sr(SRD_WG, 4)}, 0 offen sc1'); vm.issue('fl')
                for j in range(1, 4):
                    rd, cv = x_pack(ACF, j, 160, 176 + 8 * (j - 1))
                    for x in (['s_nop 4'] if j == 1 else []) + rd + cv: a(x)
            for x in c_stream('sb'): a(x)
            a(vm.wait('fl'))
            a('v_cmp_ne_u32 vcc, v5, v6\ns_cbranch_vccnz L_po\nL_po_ok:')
            stamp(a, opt, 'poll1')
            for tt in range(NF, PT + DD):
                emit_plain(a, c_dma(tt, 'b'))
                for k in range(2): vm.issue(tt)
            a('v_cmp_gt_u32 vcc, 4, v1\ns_bfe_u32 s7, s2, 0x20001\nv_cmp_eq_u32 s[98:99], s7, v1\nv_cndmask_b32 v6, 0, 1, vcc\nv_lshlrev_b32 v4, 7, v1')
            a('v_mov_b32 v59, 0x10000\nv_cndmask_b32 v6, v6, 0, s[98:99]\nv_cndmask_b32 v4, v4, v59, s[98:99]')
            a.raw('.p2align 3')
        if t == NF and cont:
            stamp(a, opt, 's0')
        if t == NF and not cont:
            stamp(a, opt, 'fend')
            fxl = OPT.get('fxlate', 0)
            for j in range(1, 4) if not fxl else []:
                if PT != NF:
                    rd, cv = x_pack(ACF, j, 160, 176 + 8 * (j - 1))
                    for x in (['s_nop 6'] if j == 1 else []) + rd + cv: a(x)
                for x in x_dest(j, WS_XF, 's58'): a(x)
                for k in range(2):
                    a(f'buffer_store_dwordx4 {vr(176 + 8 * (j - 1) + 4 * k, 4)}, {vr(CL16)}, {sr(SRD_WS, 4)}, s58 offen offset:{1024 * k} sc1'); vm.issue('fx')
            a(vm.wait(NF, NF + 1, NF + 2))
            a('s_barrier')
            for x in c_reads(NF): a(x)
            a('s_waitcnt lgkmcnt(0)')
            stamp(a, opt, 's0')
            a.raw('.p2align 3')
        tr = t + (2 if CCH() else 1)
        if tr < T and (tr != NF or cont):
            for k, x in zip([0, 1, 3, 4, 5, 7, 8, 9], c_reads(tr)): G[k].mem.append(x)
        stores = []
        nf = OPT.get('nf', 4)
        if t < (16 - 4 * NPRE) // nf:
            c = (t * nf + 4 * NPRE) >> 2; f0 = (t * nf) & 3
            for i in range(8 * nf):
                G[i // nf].valu.append(f'v_accvgpr_read_b32 {vr(160 + i)}, {ar(Oreg(c, 2 * f0) + i)}')
            for i in range(0, 8 * nf, 2):
                G[8].valu.append(f'v_pk_mul_f32 {vr(160 + i, 2)}, {vr(160 + i, 2)}, {vr(RL + 2 * c, 2)}')
            G[8].post.append('s_nop 1')
            for f in range(nf):
                for i in range(4):
                    G[9 + f].valu.append(f'v_cvt_pk_bf16_f32 {vr(192 + 4 * f + i)}, {vr(160 + 8 * f + 2 * i)}, {vr(161 + 8 * f + 2 * i)}')
                stores.append((10 + f if nf == 4 else 11 + 4 * f, f'buffer_store_dwordx4 {vr(192 + 4 * f, 4)}, {vr(CL16)}, {sr(SRD_WS, 4)}, {sr(sOK)} offen offset:{1024 * (f0 + f)} sc1', 'o'))
            if f0 + nf == 4: G[15].post.append(f's_add_u32 {sr(sOK)}, {sr(sOK)}, {OST()}')
        todo = []
        ds = {int(k): v for k, v in OPT.get('dsched', {}).items()}
        d = []
        if DD > 8: ds.setdefault(0, list(range(8, DD + 1)))
        for tn in ds.get(t, [t + DD] if t + DD < T else []):
            dd = c_dma(tn, 'a' if NF <= tn and t < PT else 'ab')
            if tn == NF:
                dd[0] = tuple(c_stream('sa')) + dd[0]
            d += [(x, tn) for x in dd]
        dp = [2, 6, 10, 14] if len(d) <= 4 else [k * 16 // len(d) for k in range(len(d))]
        todo += [(g, x, tn) for g, (x, tn) in zip(dp, d)]
        if t == PT - OPT.get('pback', 2) and PT != NF:
            stores += [(0, f'buffer_load_dword v5, v4, {sr(SRD_WG, 4)}, 0 offen sc1', 'fl')]
        fx0 = OPT.get('fxlate', 0)
        fsp = OPT.get('fsp', 1)
        if fx0 and fx0 <= u < fx0 + 6 * fsp and (u - fx0) % (2 * fsp) == 0:
            j = (u - fx0) // (2 * fsp) + 1
            rd, cv = x_pack(ACF, j)
            for k, x in enumerate(rd): G[k // 2].valu.append(x)
            for k, x in enumerate(cv): G[8 + k // 2].valu.append(x)
            G[11].pre += x_dest(j, WS_XF, 's58')
            stores += [(15, f'buffer_store_dwordx4 {vr(176, 4)}, {vr(CL16)}, {sr(SRD_WS, 4)}, s58 offen offset:0 sc1', 'fx')]
        if fx0 and fx0 <= u < fx0 + 6 * fsp and (u - fx0) % (2 * fsp) == fsp:
            stores += [(15, f'buffer_store_dwordx4 {vr(180, 4)}, {vr(CL16)}, {sr(SRD_WS, 4)}, s58 offen offset:1024 sc1', 'fx')]
        if u == U0:
            stores += [(15, f'buffer_load_dword v5, v4, {sr(SRD_WD, 4)}, 0 offen sc1', 'ff')]
        if u == 26:
            stores += [(4 + 6 * k, f'buffer_load_dwordx4 {vr(CXR + 4 * k, 4)}, {vr(COUT)}, {sr(SRD_X, 4)}, {sr(sOV)} offen offset:{16 * k}', 'x') for k in range(2)]
        if u == U0 + 3 + (U0 < 23):
            stores += [(2 * k + (U0 < 21), x, 'fx2') for k, x in enumerate(x_loads(0, XR))]
        for g, x, tag in sorted(todo + stores, key=lambda z: z[0]):
            vmem(g, x, tag)
        if u == 30:
            for j in range(1, 4): G[4 * j].pre += x_dest(j, WS_XF + 6144, f's{55 + j}')
        if t == flag_t:
            G[15].post += [vm.wait('o'), f'buffer_store_dword {vr(ONEV)}, {vr(CL16)}, {sr(SRD_WU, 4)}, 0 offen sc1'] + stamp_op('Oflag'); vm.issue('flag')
        if u == OPT.get('fflag', 8):
            G[15].post += [vm.wait('fx'), f'buffer_store_dword {vr(ONEV)}, {vr(CL16)}, {sr(SRD_WO, 4)}, 0 offen sc1']; vm.issue('flag2')
        if u == 28:
            G[4].pre += [f's_add_u32 s{SRD_WO}, s{SRD_WO}, 512', f's_addc_u32 s{SRD_WO + 1}, s{SRD_WO + 1}, 0']
        if u == 22:
            for k in range(16): G[k].valu.append(f'v_accvgpr_read_b32 {vr(GV + k)}, {ar(ACF + (k >> 2) * 16 + (k & 3))}')
        if u == U0 + 2 + (U0 < 23):
            G[15].post += [vm.wait('ff'), 'v_cmp_ne_u32 vcc, v5, v6', 's_cbranch_vccnz L_pf', 'L_pf_ok:']
        if u == 27:
            G[4].pre += [f's_add_u32 s{SRD_WD}, s{SRD_WD}, 512', f's_addc_u32 s{SRD_WD + 1}, s{SRD_WD + 1}, 0']
        if u == 28:
            G[15].post.append(vm.wait('fx2'))
        if 29 <= u <= 31:
            for k, x in enumerate(x_accum(GV, XR + 8 * (u - 29))): G[k // 2].valu.append(x)
        if t + 1 < T and (t + 1 != NF or cont):
            if (t + 1) % 2 == 0:
                need = [x for x in ((t + 3, t + 4) if CCH() else (t + 2, t + 3)) if x < T and (cont or not (t + 1 < NF <= x))]
                assert all(x in vm.ops for x in need), (t, need)
                w = vm.wait(*need) + ' lgkmcnt(0)' if need else 's_waitcnt lgkmcnt(0)'
                G[15].post += [w, 's_barrier']
            elif not CCH():
                G[15].post.append('s_waitcnt lgkmcnt(0)')
        if opt.get('ctrace'):
            G[0].pre.append(f's_memtime s[100:101]')
            G[14].valu.append(f'v_writelane_b32 v222, s100, {63 - t}')
        emit_gaps(a, gapops(G), align=False)
    stamp(a, opt, 'send')
    for j in range(1, 4):
        rd, cv = x_pack(ACS_, j, 160, 176 + 8 * (j - 1))
        for x in rd + cv: a(x)
        for k in range(2):
            a(f'buffer_store_dwordx4 {vr(176 + 8 * (j - 1) + 4 * k, 4)}, {vr(CL16)}, {sr(SRD_WS, 4)}, s{55 + j} offen offset:{1024 * k} sc1')
    stamp(a, opt, 'xst')
    for k in range(16):
        a(f'v_accvgpr_read_b32 {vr(SV + k)}, {ar(ACS_ + (k >> 2) * 16 + (k & 3))}')
    a('s_waitcnt vmcnt(6)')
    for k in range(8):
        a(f'v_lshlrev_b32 {vr(64 + 2 * k)}, 16, {vr(CXR + k)}')
        a(f'v_and_b32 {vr(65 + 2 * k)}, 0xffff0000, {vr(CXR + k)}')
    for k in range(16): a(f'v_mul_f32 {vr(144 + k)}, {f2u(-math.log2(math.e))}, {vr(GV + k)}')
    for k in range(16): a(f'v_exp_f32 {vr(144 + k)}, {vr(144 + k)}')
    for k in range(16): a(f'v_add_f32 {vr(112 + k)}, 1.0, {vr(144 + k)}')
    for k in range(16): a(f'v_rcp_f32 {vr(112 + k)}, {vr(112 + k)}')
    for k in range(0, 16, 2): a(f'v_pk_mul_f32 {vr(GV + k, 2)}, {vr(GV + k, 2)}, {vr(112 + k, 2)}')
    a(f'''
    s_waitcnt vmcnt(0)
    {OPT.get('fop', 'buffer_store_dword')} {vr(ONEV)}, {vr(CL16)}, {sr(SRD_WO, 4)}, 0 offen {OPT.get('fsc', 'sc1')}
    {''.join(stamp_op('xack'))}
    buffer_load_dword v5, v4, {sr(SRD_WD, 4)}, 0 offen sc1
    s_waitcnt vmcnt(0)
    v_cmp_ne_u32 vcc, v5, v6
    s_cbranch_vccnz L_ps
    L_ps_ok:
    ''')
    stamp(a, opt, 'xf')
    XS = 32
    for x in x_loads(1, XS): a(x)
    for r in range(3):
        a(f's_waitcnt vmcnt({4 - 2 * r})')
        if r == 2: stamp(a, opt, 'xld')
        for k in range(8):
            a(f'v_lshlrev_b32 {vr(96 + 2 * k)}, 16, {vr(XS + 8 * r + k)}')
            a(f'v_and_b32 {vr(97 + 2 * k)}, 0xffff0000, {vr(XS + 8 * r + k)}')
        for k in range(0, 16, 2):
            a(f'v_pk_add_f32 {vr(SV + k, 2)}, {vr(SV + k, 2)}, {vr(96 + k, 2)}')
    for k in range(0, 16, 2):
        a(f'v_pk_fma_f32 {vr(SV + k, 2)}, {vr(SV + k, 2)}, {vr(GV + k, 2)}, {vr(64 + k, 2)}')
    for k in range(8):
        a(f'v_cvt_pk_bf16_f32 {vr(CXR + k)}, {vr(SV + 2 * k)}, {vr(SV + 1 + 2 * k)}')
    for k in range(2):
        a(f'buffer_store_dwordx4 {vr(CXR + 4 * k, 4)}, {vr(COUT)}, {sr(SRD_OUT, 4)}, {sr(sOV)} offen offset:{16 * k}{OPT.get("outsc", "")}')

OPT = {}
def add_pads(a, period, nchain):
    out = []; addr = 0; nxt = None; pads = []
    lines = a.lines
    for k, l in enumerate(lines):
        t = l.strip()
        if t.startswith('.p2align'):
            al = 1 << int(t.split()[1]); addr = (addr + al - 1) // al * al
        if t == 'L_warmdone:': addr = 0; nxt = period - OPT.get('padoff', 0)
        if t == 'L_end:': nxt = None
        if nxt is not None and addr >= nxt and t.startswith(('v_', 'ds_read', 's_add', 's_mov', 's_lshl', 'buffer_load')) and not lines[k - 1].strip().startswith(('.')):
            out.append(f'L_pad{len(pads)}:'); out.append(f'    PAD{len(pads)}'); pads.append(addr)
            addr += 4; nxt += period
            if ALIGN():
                out.append('    s_nop 0'); addr += 4
        out.append(l); addr += isize(l)
    n = len(pads)
    for k, l in enumerate(out):
        if l.startswith('    PAD'):
            i = int(l[7:])
            out[k] = f'    s_cbranch_execz ' + (f'L_pad{i + nchain}' if i + nchain < n else 'L_warmret')
    a.lines = out
    return n

def gen(opt):
    OPT.clear(); OPT.update(opt)
    SLOW.clear(); STAMPS.clear(); PFX.clear()
    a = A()
    setup(a, opt)
    phase_a(a, opt)
    phase_b(a, opt)
    phase_c(a, opt)
    if opt.get('stamp'):
        a('s_waitcnt vmcnt(0)')
        stamp(a, opt, 'end')
        a(f'''
        s_waitcnt lgkmcnt(0)
        s_lshl_b32 s3, s2, 2
        s_add_u32 s3, s3, {sr(sW)}
        s_lshl_b32 s3, s3, 6
        s_add_u32 s3, s3, {WS_STAMP}
        v_mov_b32 v1, 0
        v_mov_b32 v4, v0
        ''')
        if opt.get('ctrace'): a('v_mov_b32 v63, v222\n; v_cndmask_b32 v221')
        if opt.get('trace') or opt.get('ctrace'):
            a(f's_lshl_b32 s7, s2, 2\ns_add_u32 s7, s7, {sr(sW)}\ns_lshl_b32 s7, s7, 8\ns_add_u32 s7, s7, {WS_STAMP + (1 << 20)}\nv_lshrrev_b32 v20, 2, v7')
            a(f'buffer_store_dword v63, v20, {sr(SRD_WS, 4)}, s7 offen')
        if opt.get('dbgstamp'):
            a(f's_cmp_lg_u32 {sr(sW)}, 0\ns_cbranch_scc1 L_nodbg')
            a('v_not_b32 v20, v0\ns_mov_b64 exec, 1')
            a(f'v_mov_b32 v21, s{sST + 2 * (len(STAMPS) - 1)}')
            a(f'buffer_atomic_umax v20, off, {sr(SRD_DBG, 4)}, 0 offset:56 sc1')
            a(f'buffer_atomic_umax v21, off, {sr(SRD_DBG, 4)}, 0 offset:60 sc1')
            a(f's_cmp_lg_u32 s2, {opt["dbgstamp"]}\ns_cbranch_scc1 L_nodbg')
            for i in range(len(STAMPS)):
                a(f'v_sub_u32 v{22 + i}, s{sST + 2 * i}, v0')
                a(f'buffer_store_dword v{22 + i}, off, {sr(SRD_DBG, 4)}, 0 offset:{4 + 4 * i} sc1')
            a('L_nodbg:\ns_mov_b64 exec, -1')
        for i in range(12): a(f'v_mov_b32 v{5 + i}, s{sST + 2 * i}')
        for i in range(4):
            a(f'buffer_store_dwordx4 v[{4 + 4 * i}:{7 + 4 * i}], v1, {sr(SRD_WS, 4)}, s3 offen offset:{16 * i}')
    a.label('L_end')
    a('s_endpgm')
    hooks(a)
    for p, tag, final in SLOW:
        for hf in range(2):
            a.label(f'L_slow{hf}_{tag}')
            a(f's_call_b64 s[98:99], L_slowfn{hf}_{p}_{int(final)}')
            a(f's_branch L_back{hf}_{tag}')
    for p, final in sorted({(p, f) for p, _, f in SLOW}):
        for hf in range(2):
            slow_path(a, p, hf, final)
    if OPT.get('pad', 4096):
        npad = add_pads(a, OPT.get('pad', 4096), OPT.get('nchain', 4))
        print('pads', npad, file=sys.stderr)
    a.label('L_codeend')
    a('s_endpgm')
    return kernel_file(f'; ost {OST()} hst {HST()}\n; stamps entry ' + ' '.join(STAMPS) + '\n' + a.text(), 'grid=(256,1,1) block=(256,1,1) lds=163840')

if __name__ == '__main__':
    opt = json.loads(sys.argv[2]) if len(sys.argv) > 2 else {}
    open(sys.argv[1], 'w').write(gen(opt))
```

```python
import sys, json, math, struct
sys.path.insert(0, 'gen')
from asmlib import *

def f2u(x): return '0x%08x' % struct.unpack('<I', struct.pack('<f', x))[0]

WS_O = 0; WS_H = 17 << 20; WS_FLAG = 25 << 20; WS_WF = (25 << 20) + 65536; WS_STAMP = 32 << 20; WS_XF = 34 << 20; WS_XS = 41 << 20; WS_FF = 47 << 20
WFS = 184 * 4096
sH = 4; sQB = 5; sW = 6
SRD_K = 8; SRD_V = 12; SRD_WS = 16; SRD_X = 20; SRD_WQ = 24; SRD_WG = 28; SRD_WU = 32; SRD_WO = 36; SRD_WD = 40; SRD_OUT = 44; SRD_DBG = 48
sOK = 52; sOV = 53; sM = 54; sCNT = 55; sT0 = 56; sT1 = 57; sT2 = 58; sT3 = 59
sXO = 60; sQO = 61; sGO = 62; sWB = 63
sW4K = 88; sRB = 89; sCB = 90; sBO = 56; sHO = 91; sWQB = 92; sWGB = 93
sDL = 95
sST = 64
KA = 8; VAA = 16; DK0 = 28; DK1 = 29; DV0 = 30; DV1 = 31; VAB = 244
Q = 32; S = 96; NM = 160; PA = 176; PB = 192; TMP = 208; ST = 212; THR = 234; LANE = 1; LM = 224; RL = 240
O = 0; KF = 128; VF = 160; SIDX = 235; WPR = 224
STAGE = 16384
AQ = 8; AG = 12; AC = 16; AX = 20; DQ = 22; DG = 23; DX = 24
XF = 32; ACQ = 96; SX = 224; CSD = 228; STT = 232; SXX = 240; IDX = 27
AGU = 0; AR = 128; AK = 160
XBUF = 0; WBUF = 65536; CSBUF = 81920
CB = 32
def CAop(sl, nb):
    return ar(192 + sl * 16 + 4 * nb, 4) if sl < 4 else vr(96 + 32 * (sl - 4) + 4 * nb, 4) if sl < 6 else vr(208 + 4 * nb, 4) if sl == 6 else ar(4 * nb, 4)
def CBop(sl, j):
    return vr(32 + sl * 16 + 4 * j, 4) if sl < 4 else vr(112 + 32 * (sl - 4) + 4 * j, 4) if sl < 6 else vr(224 + 4 * j, 4) if sl == 6 else ar(16 + 4 * j, 4)
ACF = 128; ACS_ = 64
CL16 = 7
CRW = 8; CRR = 11; COUT = 12; CXR = 16
sAO = 61; POLLV = 6; ONEV = 223

def OST(): return OPT.get('ost', 136192)
def HST(): return OPT.get('hst', 58368)
XIN = ['s92', 's93', 's62']
def FB(r, t):
    if OPT.get('fbspread', 1): return f's_lshr_b32 {t}, {sr(sH)}, 3\ns_sub_u32 {r}, {sr(sH)}, {t}'
    return f's_mov_b32 {r}, {sr(sH)}'
def FBOK(t):
    if OPT.get('fbspread', 1): return f's_and_b32 {t}, {sr(sH)}, 7\ns_cmp_lg_u32 {t}, 7'
    return f's_cmp_lt_u32 {sr(sH)}, 28'
def TW(r):
    return f's_lshl_b32 {r}, {sr(sRB)}, 2\ns_add_u32 {r}, {r}, {sr(sCB)}\ns_lshl_b32 {r}, {r}, 2\ns_add_u32 {r}, {r}, {sr(sW)}'
def mf(d, a_, b_, c):
    return f'v_mfma_f32_16x16x32_bf16 {d}, {a_}, {b_}, {c}'

class Gap:
    def __init__(self, m):
        self.m = m; self.pre = []; self.mem = []; self.valu = []; self.post = []
    def ops(self):
        return [self.m] + self.pre + self.mem + self.valu + self.post
    def units(self):
        u = 0
        for x in self.mem: u += 2 if x.startswith('buffer') else 0 if x.startswith('s_') else 1
        for x in self.valu: u += 2 if x.startswith(('v_exp', 'v_rcp', 'v_log', 'v_rsq', 'v_permlane')) else 1
        return u

def place(G, ops, lo, hi=None, kind='mem', cap=2):
    g = lo
    for x in ops:
        pre = []
        if isinstance(x, tuple):
            pre, x = list(x[:-1]), x[-1]
        need = 2 if x.startswith(('buffer', 'v_exp', 'v_rcp', 'v_rsq', 'v_log', 'v_permlane')) else 1
        need = min(need, cap)
        while G[g].units() + need > cap:
            g += 1
        if hi is not None:
            assert g <= hi, (x, g, hi)
        if pre:
            if g > 0 and not any(y.startswith('buffer') for y in G[g - 1].mem):
                G[g - 1].pre += pre
            else:
                if ' m0,' in pre[-1]:
                    pre.append('s_nop 0')
                G[g].pre += pre
        getattr(G[g], kind).append(x)
    return g

STAMPS = []
def place_some(G, ops, lo, hi):
    g = lo
    for k, x in enumerate(ops):
        need = 2 if x.startswith(('v_exp', 'v_rcp', 'v_rsq', 'v_log', 'v_permlane')) else 1
        while g <= hi and G[g].units() + need > 2: g += 1
        if g > hi: return list(ops[k:])
        G[g].valu.append(x)
    return []

def stamp_op(name):
    if not OPT.get('stamp') or (OPT.get('only') and name not in OPT['only']):
        return []
    k = len(STAMPS); STAMPS.append(name)
    assert k < 12
    return [f'{"s_memtime" if OPT.get("cyc") else "s_memrealtime"} s[{sST + 2 * k}:{sST + 2 * k + 1}]']
def stamp(a, opt, name):
    for x in stamp_op(name): a(x)

def srd(a, base, lo, hi, nrec, add=None, sub=None):
    if add is not None:
        a(f's_add_u32 s{base}, s{lo}, {add}')
        a(f's_addc_u32 s{base + 1}, s{hi}, 0')
    else:
        a(f's_mov_b32 s{base}, s{lo}')
        a(f's_mov_b32 s{base + 1}, s{hi}')
    if sub is not None:
        a(f's_sub_u32 s{base}, s{base}, {sub}')
        a(f's_subb_u32 s{base + 1}, s{base + 1}, 0')
    a(f's_mov_b32 s{base + 2}, {nrec}')
    a(f's_mov_b32 s{base + 3}, 0x20000')

def HOP(k):
    if not OPT.get('hop'): return ''
    if k == 0:
        return ('s_mov_b64 exec, 0\ns_nop 1\n' + ''.join(f's_cmp_eq_u32 s6, {w}\ns_cbranch_scc1 L_hop{w + 1}\n' for w in range(3)) +
                's_branch L_hop4\nL_hopret:\ns_mov_b64 exec, -1')
    return f'L_hop{k}:\ns_cbranch_execz L_hopret'

def setup(a, opt):
    a(f'''
    s_cmp_ge_u32 s2, 256
    s_cbranch_scc1 L_end
    {("s_memtime" if opt.get("cyc") else "s_memrealtime") + " s[98:99]" if opt.get("stamp") else ""}
    s_load_dwordx16 s[64:79], s[0:1], 0
    s_load_dwordx8 s[80:87], s[0:1], 64
    v_lshrrev_b32 v4, 6, v0
    v_and_b32 v1, 63, v0
    v_readfirstlane_b32 {sr(sW)}, v4
    {HOP(0)}
    s_and_b32 s3, s2, 7
    s_bfe_u32 s7, s2, 0x20003
    s_lshl_b32 s3, s3, 2
    s_add_u32 {sr(sH)}, s3, s7
    s_lshr_b32 {sr(sQB)}, s2, 5
    s_lshl_b32 {sr(sW4K)}, {sr(sW)}, 12
    s_and_b32 s3, s2, 1
    s_lshl_b32 s3, s3, 3
    s_add_u32 {sr(sRB)}, s3, {sr(sQB)}
    s_bfe_u32 {sr(sCB)}, s2, 0x20003
    {"s_mov_b32 s89, 0" if opt.get("x_rb") else ""}
    {"s_mov_b32 s90, 0" if opt.get("x_cb") else ""}
    v_and_b32 v2, 15, v1                ; r = l&15
    v_lshrrev_b32 v3, 4, v1             ; g = l>>4
    ''')
    if OPT.get('ipf', 1):
        a(f'''
        s_getpc_b64 s[100:101]
        L_pc:
        s_lshr_b32 s3, s2, 3
        s_lshl_b32 s3, s3, 2
        s_add_u32 s3, s3, {sr(sW)}
        s_and_b32 s3, s3, 15
        s_lshl_b32 s3, s3, 13
        s_min_u32 s3, s3, L_codeend-L_pc-8192
        v_lshlrev_b32 v4, 7, v1
        v_add_u32 v4, s3, v4
        global_load_dword v26, v4, s[100:101]
        ''')

def setup_x(a, opt):
    a(f's_lshl_b32 s3, {sr(sQB)}, 18\ns_lshl_b32 s7, {sr(sW)}, 16\ns_add_u32 s3, s3, s7')
    a('s_waitcnt lgkmcnt(0)')
    if opt.get('stamp'): a('v_mov_b32 v0, s98')
    if opt.get('early'): a('s_memrealtime vcc')
    if OPT.get('tlb'):
        lst = OPT['tlb']
        a('s_lshr_b32 s7, s2, 3\ns_and_b32 s7, s7, 7\ns_mov_b64 s[100:101], s[64:65]\nv_mov_b32 v4, 0')
        for k, (r, off) in enumerate(lst):
            a(f's_cmp_eq_u32 s7, {k + 1}\ns_cselect_b64 s[100:101], s[{r}:{r + 1}], s[100:101]')
            if off: a(f's_cselect_b32 s8, {off}, 0\nv_max_u32 v4, s8, v4')
        a('global_load_dword v26, v4, s[100:101]')
    srd(a, SRD_X, 64, 65, 65536, add='s3')

def setup_w(a):
    a(f's_lshl_b32 s3, {sr(sH)}, 8')
    srd(a, SRD_WQ, 70, 71, 511 * 8192 + 256, add='s3')
    a(FB('s3', 's7') + f'\ns_lshl_b32 s3, s3, 7\n' + FBOK('s7') + f'\ns_cselect_b32 s3, s3, 0\ns_cselect_b32 s7, {511 * 3584 + 128}, 0')
    srd(a, SRD_WG, 76, 77, 's7', add='s3')
    srd(a, SRD_WU, 78, 79, 's7', add='s3')

def setup_wp(a):
    a('s_cmp_lt_u32 s2, 128\ns_cselect_b32 s72, s72, s80\ns_cselect_b32 s73, s73, s81\ns_and_b32 s3, s2, 127\ns_lshl_b32 s3, s3, 15')
    a('s_cmp_lt_u32 s2, 184\ns_cselect_b32 s3, s3, 0')
    a('s_cselect_b32 s7, 32768, 0\ns_cselect_b32 s74, 0x10000000, 0')
    srd(a, SRD_WO, 72, 73, 's7', add='s3')
    srd(a, SRD_WD, 86, 87, 's74')

def setup2(a, opt):
    a(f's_lshl_b32 s3, {sr(sH)}, 19')
    srd(a, SRD_K, 66, 67, 524288, add='s3')
    srd(a, SRD_V, 68, 69, 524288 + 2048 + 16384, add='s3', sub=2048 + 16384)
    srd(a, SRD_WS, 86, 87, 0x10000000)
    srd(a, SRD_OUT, 82, 83, 2097152)
    srd(a, SRD_DBG, 84, 85, 256)
    a('s_mov_b32 s96, s64\ns_mov_b32 s97, s65')

def a_setup_dma_addr(a):
    a(f'''
    s_lshl_b32 s3, {sr(sW)}, 3
    v_add_u32 v4, s3, v3                 ; row = 8w + (l>>4)
    v_lshlrev_b32 v5, 2, v3
    v_xor_b32 v5, v5, v2
    v_lshlrev_b32 v5, 4, v5
    v_lshl_add_u32 {vr(DQ)}, v4, 13, v5
    v_lshrrev_b32 v4, 3, v1              ; rho = l>>3
    v_and_b32 v5, 3, v4
    v_lshrrev_b32 v6, 5, v1
    v_lshl_add_u32 v5, v6, 3, v5
    s_lshr_b32 s3, {sr(sW)}, 1
    s_lshl_b32 s3, s3, 4
    s_and_b32 s7, {sr(sW)}, 1
    s_lshl_b32 s7, s7, 2
    s_add_u32 s3, s3, s7
    v_add_u32 v5, s3, v5                 ; W row
    v_mul_u32_u24 v5, 3584, v5
    v_lshlrev_b32 v6, 1, v3
    v_and_b32 v7, 7, v1
    v_xor_b32 v6, v6, v7
    v_lshl_add_u32 {vr(DG)}, v6, 4, v5
    v_xor_b32 v6, v3, v7
    v_lshlrev_b32 v6, 4, v6
    v_lshl_add_u32 {vr(DX)}, v4, 10, v6
    v_xor_b32 {vr(DX + 1)}, 64, {vr(DX)}
    ''')

def a_dma_x(j_par):
    ops = []
    for i in range(8):
        pre = []
        if i % 4 == 0:
            pre.append(f's_add_u32 m0, {sr(sT3)}, {XBUF + j_par * 32768 + (i // 4) * 4096}')
        pre.append(f's_add_u32 {sr(sT0 + (i & 1))}, {sr(sXO)}, {i * 8192 - 1024 * (i & 3)}')
        ops.append(tuple(pre) + (f'buffer_load_dwordx4 {vr(DX + (i & 1))}, {sr(SRD_X, 4)}, {sr(sT0 + (i & 1))} offen offset:{1024 * (i & 3)} lds',))
    return ops, [f's_add_u32 {sr(sXO)}, {sr(sXO)}, 128', f's_and_b32 {sr(sXO)}, {sr(sXO)}, 1023']

def a_dma_w():
    ops = []
    for ks in range(2):
        ops.append((f's_add_u32 m0, {sr(sWQB)}, {ks * 16384}', f's_add_u32 {sr(sT0)}, {sr(sQO)}, {ks * 32 * 8192}',
                    f'buffer_load_dwordx4 {vr(DQ)}, {sr(SRD_WQ, 4)}, {sr(sT0)} offen lds'))
        ops.append((f's_add_u32 {sr(sT1)}, {sr(sQO)}, {ks * 32 * 8192 + 4 * 8192 - 1024}',
                    f'buffer_load_dwordx4 {vr(DQ)}, {sr(SRD_WQ, 4)}, {sr(sT1)} offen offset:1024 lds'))
        ops.append((f's_add_u32 m0, {sr(sWGB)}, {ks * 16384}', f's_add_u32 {sr(sT0)}, {sr(sGO)}, {ks * 32 * 3584}',
                    f'buffer_load_dwordx4 {vr(DG)}, {sr(SRD_WG, 4)}, {sr(sT0)} offen lds'))
        ops.append((f's_add_u32 m0, m0, 4096',
                    f'buffer_load_dwordx4 {vr(DG)}, {sr(SRD_WU, 4)}, {sr(sT0)} offen lds'))
    adv = [f's_add_u32 {sr(sQO)}, {sr(sQO)}, {64 * 8192}', f's_and_b32 {sr(sQO)}, {sr(sQO)}, 0x3fffff', f's_lshr_b32 {sr(sGO)}, {sr(sQO)}, 13', f's_mul_i32 {sr(sGO)}, {sr(sGO)}, 3584',
           f's_add_u32 {sr(sWB)}, {sr(sWB)}, 1', f's_cmp_eq_u32 {sr(sWB)}, 3', f's_cselect_b32 {sr(sT2)}, -2, 1', f's_cselect_b32 {sr(sWB)}, 0, {sr(sWB)}',
           f's_lshl_b32 {sr(sT2)}, {sr(sT2)}, 15', f's_add_u32 {sr(sWQB)}, {sr(sWQB)}, {sr(sT2)}', f's_add_u32 {sr(sWGB)}, {sr(sWGB)}, {sr(sT2)}']
    return ops, adv

def emit_plain(a, ops):
    for x in ops:
        if isinstance(x, tuple):
            for y in x[:-1]: a(y)
            if ' m0,' in x[-2]: a('s_nop 0')
            a(x[-1])
        else:
            a(x)

def a_setup_read_addr(a):
    a(f'''
    v_bfe_u32 v4, v1, 2, 2               ; r'
    v_and_b32 v5, 3, v1                  ; c'
    v_lshl_add_u32 v6, v3, 3, v4         ; 8g + r'
    v_lshlrev_b32 v6, 8, v6
    v_lshl_add_u32 v6, v4, 6, v6         ; + (r'<<2)*16
    v_lshl_add_u32 v6, v5, {3 if OPT.get('a_noconf') else 4}, v6         ; + c'*16
    {"v_and_b32 v7, 16, v1" if OPT.get('a_noconf') else ""}
    {"v_lshl_add_u32 v6, v7, 1, v6" if OPT.get('a_noconf') else ""}
    v_add_u32 v6, {WBUF}, v6
    ''')
    for sp in range(4):
        a(f'v_xor_b32 {vr(AQ + sp)}, {sp * 64}, v6')
    a(f'''
    v_bfe_u32 v6, v1, 2, 3               ; rho = 4(g&1) + r'
    v_lshrrev_b32 v7, 1, v6              ; key2
    v_lshlrev_b32 v6, 7, v6
    v_lshl_add_u32 v6, v7, 5, v6
    v_lshl_add_u32 v6, v5, 3, v6
    v_lshrrev_b32 v7, 5, v1
    v_lshl_add_u32 v6, v7, 11, v6
    v_add_u32 v6, {WBUF + 8192}, v6
    ''')
    for nb in range(4):
        a(f'v_xor_b32 {vr(AG + nb)}, {nb * 32}, v6')
    a(f's_cmp_eq_u32 {sr(sW)}, 0\ns_cselect_b64 s[98:99], -1, 0\ns_cmp_lt_u32 {sr(sW)}, 2\ns_cselect_b64 s[100:101], -1, 0')
    a(f's_and_b32 s3, {sr(sW)}, 1\ns_lshl_b32 s3, s3, 12')
    for k in range(4):
        a(f'v_cndmask_b32 v4, {vr(AQ + 2 + (k >> 1))}, {vr(AQ + (k >> 1))}, s[98:99]')
        if k & 1:
            a('v_add_u32 v4, 8, v4')
        a(f'v_add_u32 v5, s3, {vr(AG + k)}')
        a(f'v_cndmask_b32 {vr(AC + k)}, v5, v4, s[100:101]')
    a(f'''
    v_lshrrev_b32 v4, 1, v2
    v_xor_b32 v4, v4, v3
    v_lshlrev_b32 v4, 4, v4
    v_lshl_add_u32 v4, v2, 7, v4
    v_add_u32 {vr(AX)}, {sr(sT3)}, v4
    v_xor_b32 {vr(AX + 1)}, 64, {vr(AX)}
    v_mov_b32 v4, 0x3f803f80
    v_and_b32 v5, 3, v1
    v_mov_b32 v6, 0xeeee
    v_and_b32 v7, 4, v1
    v_cmp_eq_u32 vcc, 0, v7
    v_mov_b32 v7, 0x4444
    v_cmp_eq_u32 s[98:99], 0, v5
    v_cndmask_b32 {vr(IDX)}, v6, v7, vcc
    s_nop 0
    ''')
    for k in range(4):
        a(f'v_cndmask_b32 v6, 0, v4, s[98:99]')
        if k < 3: a(f'v_cmp_eq_u32 s[98:99], {k + 1}, v5')
        for i in range(4):
            a(f'v_accvgpr_write_b32 {ar(AK + 4 * k + i)}, v6')

def Xreg(par, c, ks): return XF + par * 32 + c * 8 + ks * 4
def accA(nb, c):
    return vr(ACQ + (nb * 4 + c) * 4, 4) if nb < 8 else ar(AGU + ((nb - 8) * 4 + c) * 4, 4)
ORDER = [16, 17, 18, 19] + list(range(16))
def a_reads(pos):
    grp = ORDER[pos]
    out = []
    for ks in range(2):
        for u in range(2):
            off = ks * 16384 + u * 1024
            if grp < 8:
                ad = AQ + (grp >> 1); off += 8 * (grp & 1)
            elif grp < 16:
                ad = AG + (grp & 3); off += 4096 * ((grp - 8) >> 2)
            else:
                ad = AC + grp - 16
            out.append(f'ds_read_b64_tr_b16 {ar(AR + (pos & 3) * 8 + ks * 4 + 2 * u, 2)}, {vr(ad)} offset:{off}')
    return out
def x_reads(par):
    return [f'ds_read_b128 {vr(Xreg(par, c, ks), 4)}, {vr(AX + ks)} offset:{XBUF + par * 32768 + c * 2048}' for c in range(4) for ks in range(2)]

def a_superstep(par, first, tail, kv_ops=None, name=None, pre_ops=None, pre_adv=None):
    G = []; start = []
    small = OPT.get('small', 1)
    if small:
        cs = [f'v_smfmac_f32_16x16x64_bf16 {vr(CSD, 4)}, {ar(AK + 4 * k, 4)}, {ar(AR + k * 8, 8)}, {vr(IDX)}' for k in range(4)]
        xs = [f'v_smfmac_f32_16x16x64_bf16 {vr(SX, 4)}, {ar(AK + 4 * k, 4)}, {vr(Xreg(par, k, 0), 8)}, {vr(IDX)}' for k in range(4)]
        sm = [f'v_mfma_f32_4x4x4_16b_bf16 {vr(SXX + 4 * c, 4)}, {vr(Xreg(par, c, 0) + 2 * i, 2)}, {vr(Xreg(par, c, 0) + 2 * i, 2)}, {vr(SXX + 4 * c, 4)}' for i in range(4) for c in range(4)]
        G = [Gap(m) for m in xs[:2] + cs[:2] + sm + xs[2:] + cs[2:]]
        start = [0, 4, 20, 22]
    for pos in range(4 if small else 0, 20):
        grp = ORDER[pos]
        start.append(len(G))
        sl = AR + (pos & 3) * 8
        if grp < 16:
            sa = 'a' in OPT.get('snk', 'qpac')
            for i, c in enumerate(range(4) if not (sa and pos & 1) else range(3, -1, -1)):
                for ks in (range(2) if not (sa and i & 1) else (1, 0)):
                    d = accA(grp, c)
                    G.append(Gap(mf(d, ar(sl + 4 * ks, 4), vr(Xreg(par, c, ks), 4), '0' if first and ks == 0 else d)))
        else:
            k = grp - 16
            G.append(Gap(f'v_smfmac_f32_16x16x64_bf16 {vr(CSD, 4)}, {ar(AK + 4 * k, 4)}, {ar(sl, 8)}, {vr(IDX)}'))
            G.append(Gap(f'v_smfmac_f32_16x16x64_bf16 {vr(SX, 4)}, {ar(AK + 4 * k, 4)}, {vr(Xreg(par, k, 0), 8)}, {vr(IDX)}'))
            for ks in range(2):
                d = vr(SXX + 4 * k, 4)
                G.append(Gap(mf(d, vr(Xreg(par, k, ks), 4), vr(Xreg(par, k, ks), 4), '0' if first and ks == 0 else d)))
    start.append(len(G))
    def at(g, x, kind='mem'):
        place(G, [x], g, g, kind=kind)
    rp = OPT.get('a_rp', [0, 1, 2, 3])
    if small:
        for k, x in enumerate(a_reads(2) + a_reads(3) + a_reads(4) + a_reads(5)): at(4 + k, x)
    for grp in range(4 if small else 0, 18):
        for k, x in zip(rp if grp >= 4 else [0, 0, 1, 2], a_reads(grp + 2)):
            at(start[grp] + k, x)
    dm = []
    if tail == 0:
        wops, wadv = a_dma_w(); xops, xadv = a_dma_x(par)
        if OPT.get('a_now'): wops = []
        if OPT.get('a_nox'): xops = []
        dm = wops + xops
        if pre_ops:
            dm = pre_ops + dm
    if kv_ops:
        dm = kv_ops
    free = [start[p] + (5 if p >= 4 else 3) for p in range(18)]
    if small: free = [0, 20] + free[4:]
    if len(dm) > len(free):
        free = [g for p in range(18) for g in ((start[p] + 4, start[p] + 6) if p >= 4 else (start[p] + 3,))]
    pos = free[:len(dm)]
    for g, x in zip(pos, dm):
        if x is not None: at(g, x)
    if tail == 0:
        npre = len(pre_ops) if pre_ops else 0
        if pre_ops:
            for g, adv in pre_adv:
                G[pos[g] + 1].pre += adv
        if wops:
            g = pos[npre + len(wops) - 1]
            G[g + 1].pre += wadv[:4]; G[g + 2].pre += wadv[4:8]; G[g + 3].pre += wadv[8:]
        if xops:
            G[pos[-1] + 1].pre += xadv
    xg = OPT.get('a_xg', 14)
    if tail < 2:
        wg = start[xg] + 3
        npre = len(pre_ops) if pre_ops else 0
        younger = sum(1 for k, g in enumerate(pos) if g < wg and k >= npre and dm[k] is not None)
        assert all(g < wg for g in pos[:npre])
        G[wg].pre.append(f's_waitcnt vmcnt({younger})')
        xr = x_reads(1 - par)
        for k, x in enumerate(xr):
            at(start[xg + k // 4] + 3 + (k % 4) + (1 if G[start[xg + k // 4] + 3 + (k % 4)].units() >= 2 else 0), x) if False else None
        g = wg
        xpos = []
        for x in xr:
            while G[g].units() >= 2 or any(y.startswith('ds_read_b128') for y in G[g].mem): g += 1
            G[g].mem.append(x); xpos.append(g)
        assert xpos[-1] < start[18] - 2, xpos
    if tail == 2:
        w, st, rd = a_stats_ops()
        g = place(G, w[0], start[4] + 5, start[9] + 4, kind='valu')
        place(G, w[1], start[9] + 5, start[10] + 7, cap=1)
        G[start[12] - 1].post += ['s_waitcnt lgkmcnt(4)', 's_barrier']
        place(G, rd, start[14] + 4, start[17] + 7, cap=1)
        rest = place_some(G, st, g, start[20] - 1)
        G[-1].post += ['s_nop 1'] + rest
    seq = [(g, x) for g in range(len(G)) for x in G[g].mem if x.startswith('ds_')]
    if small:
        G[1].pre.append('s_waitcnt lgkmcnt(0)'); G[21].pre.append('s_waitcnt lgkmcnt(8)'); G[23].pre.append('s_waitcnt lgkmcnt(4)')
        G[start[5] - 1].pre.append('s_waitcnt lgkmcnt(4)')
    for grp in range(6 if small else 2, 20):
        if grp == 18:
            continue
        last = max(k for k, (g, x) in enumerate(seq) if x in a_reads(grp) and start[grp - 2] <= g < start[grp - 1])
        n = sum(1 for k, (g, x) in enumerate(seq) if k > last and g < start[grp] - 1)
        G[start[grp] - 1].pre.append(f's_waitcnt lgkmcnt({min(n, 14)})')
    if not small: G[start[1] - 1].pre.append('s_waitcnt lgkmcnt(4)')
    if tail < 2:
        G[start[18] - 1].pre += ['s_waitcnt lgkmcnt(0)', 's_barrier']
        vu = [f'v_add_u32 {vr(AQ + i)}, {sr(sDL)}, {vr(AQ + i)}' for i in range(12)]
        place(G, vu[:4] + vu[8:], start[14], start[17] + 5, kind='valu')
        for k, x in enumerate(a_reads(0)): at(start[18] + k, x)
        for k, x in enumerate(a_reads(1)): at(start[19] + k, x)
        place(G, vu[4:8], start[18], start[19] + 5, kind='valu')
        if not small: G[start[20] - 1].pre.append('s_waitcnt lgkmcnt(4)')
        G[start[13] + 1].pre += [f's_add_u32 {sr(sM)}, {sr(sM)}, 1', f's_cmp_eq_u32 {sr(sM)}, 3', f's_cselect_b32 {sr(sDL)}, -2, 1', f's_cselect_b32 {sr(sM)}, 0, {sr(sM)}']
        G[start[13] + 2].pre += [f's_lshl_b32 {sr(sDL)}, {sr(sDL)}, 15']
    else:
        G[start[18] - 1].pre += ['s_waitcnt lgkmcnt(0)']
    if OPT.get('a_nobar'):
        for g in G: g.pre = [x for x in g.pre if x != 's_barrier']
    if OPT.get('a_nowait'):
        for g in G: g.pre = [x for x in g.pre if not x.startswith('s_waitcnt lgkmcnt')]
    if OPT.get('a_novm'):
        for g in G: g.pre = [x for x in g.pre if not x.startswith('s_waitcnt vmcnt')]
    if OPT.get('a_nords'):
        for g in G: g.mem = [x for x in g.mem if not x.startswith('ds_read_b64')]
    if name:
        so = stamp_op(name)
        if so:
            G[start[18] - 1].post += so
            G[start[19] - 1].pre.append('s_waitcnt lgkmcnt(0)')
    return G

WPA = [240, 241, 242, 243, 252, 253, 254, 255]
def wp_addr0():
    return ['v_lshlrev_b32 v4, 1, v3', 'v_xor_b32 v4, v4, v2', 'v_lshlrev_b32 v4, 4, v4', 'v_lshl_add_u32 v4, v3, 10, v4', 'v_xor_b32 v5, 128, v4']
def wp_dma():
    ops = []
    for i in range(8):
        pre = []
        if i == 0: pre += [f's_lshl_b32 {sr(sT2)}, {sr(sW)}, 8']
        pre += [f's_add_u32 m0, {sr(sT3)}, {131072 + i * 1024}', f's_add_u32 {sr(sT0)}, {sr(sT2)}, {i * 4096}']
        ops.append(tuple(pre) + (f'buffer_load_dwordx4 v{4 + (i & 1)}, {sr(SRD_WO, 4)}, {sr(sT0)} offen lds',))
    return ops
def wp_addr1():
    t0, t1 = WPA[0], WPA[1]
    ops = [f'v_lshrrev_b32 {vr(t0)}, 2, v1', f'v_and_b32 {vr(t1)}, 7, {vr(t0)}', f'v_lshlrev_b32 {vr(t0)}, 8, {vr(t0)}', f'v_lshl_add_u32 {vr(t0)}, {vr(t1)}, 5, {vr(t0)}',
           f'v_and_b32 {vr(t1)}, 3, v1', f'v_lshlrev_b32 {vr(t1)}, 5, {vr(t1)}', f'v_xor_b32 {vr(t0)}, {vr(t1)}, {vr(t0)}', f'v_add_u32 {vr(t0)}, {sr(sT3)}, {vr(t0)}', f'v_add_u32 {vr(t0)}, 131072, {vr(t0)}']
    ops += [f'v_xor_b32 {vr(WPA[db])}, {(db >> 2) * 128 + (db & 3) * 8}, {vr(t0)}' for db in range(1, 8)]
    return ops
def wp_reads():
    return [f'ds_read_b64_tr_b16 {ar(WPR + db * 4 + 2 * u, 2)}, {vr(WPA[db])} offset:{u * 4096}' for db in range(8) for u in range(2)]
def wp_stores():
    st = []
    for db in range(8):
        st.append(f'buffer_store_dwordx4 {ar(WPR + db * 4, 4)}, {vr(CL16)}, {sr(SRD_WD, 4)}, {"s3" if db < 4 else "s7"} offen offset:{1024 * (db & 3)} sc1')
    sc = ['s_sub_u32 s3, s2, 128', 's_add_u32 s7, s2, 56', 's_cmp_lt_u32 s2, 128', 's_cselect_b32 s3, s7, s3', 's_lshl_b32 s3, s3, 12',
          f's_mul_i32 s7, {sr(sW)}, {2 * WFS}', 's_add_u32 s3, s3, s7', f's_add_u32 s3, s3, {WS_WF}', f's_add_u32 s7, s3, {WFS}']
    return sc, st

def wp_store_ops():
    sc, st = wp_stores()
    out = []
    for k, x in enumerate(st):
        out += [tuple(sc) + (x,) if k == 0 else x, None]
    return out

def warmup(a):
    if OPT.get('pad', 4096):
        nch = OPT.get('nchain', 4)
        a('s_mov_b64 exec, 0')
        for w in range(nch - 1):
            a(f's_cmp_eq_u32 {sr(sW)}, {w}\ns_cbranch_scc1 L_pad{w}')
        a(f's_branch L_pad{nch - 1}')
        a.raw('.p2align 12')
        a.label('L_warmdone')
        a.label('L_warmret')
        a('s_mov_b64 exec, -1')

def phase_a(a, opt):
    a(f's_lshl_b32 {sr(sT3)}, {sr(sW)}, 13')
    a_setup_dma_addr(a)
    a(f's_and_b32 s3, s2, {7 if OPT.get("arot", 0) else 0}\ns_lshl_b32 {sr(sXO)}, s3, 7\ns_lshl_b32 {sr(sQO)}, s3, 19\ns_mul_i32 {sr(sGO)}, s3, {64 * 3584}\ns_mov_b32 {sr(sWB)}, 0\ns_mov_b32 {sr(sM)}, 0')
    a(f's_lshl_b32 {sr(sWQB)}, {sr(sW)}, 11\ns_add_u32 {sr(sWQB)}, {sr(sWQB)}, {WBUF}\ns_lshl_b32 {sr(sWGB)}, {sr(sW)}, 10\ns_add_u32 {sr(sWGB)}, {sr(sWGB)}, {WBUF + 8192}')
    xops, xadv = a_dma_x(0); wops, wadv = a_dma_w()
    setup_x(a, opt)
    if OPT.get('b1', 0):
        emit_plain(a, xops[:1])
        setup_w(a)
        w0 = [wops[0], wops[2], wops[3]]
        emit_plain(a, w0)
        emit_plain(a, [(xops[0][0],) + xops[1]] + xops[2:]); emit_plain(a, xadv)
        emit_plain(a, [(wops[0][0],) + wops[1]] + wops[4:]); emit_plain(a, wadv)
    else:
        emit_plain(a, xops); emit_plain(a, xadv)
        setup_w(a)
        emit_plain(a, wops); emit_plain(a, wadv)
    if opt.get('early') and not opt.get('early2'): a('s_memrealtime s[98:99]')
    wm = OPT.get('warmpos', 1)
    if wm == 1: warmup(a)
    xops, xadv = a_dma_x(1); wops, wadv = a_dma_w()
    b = A()
    for i in range(ACQ, ACQ + 4): b(f'v_mov_b32 {vr(i)}, 0')
    setup2(b, opt); setup_wp(b)
    if opt.get('early'):
        b('s_waitcnt lgkmcnt(0)')
        for nm, r in (('karg', 'vcc_lo'), ('i16', 's98')):
            b(f's_mov_b32 s{sST + 2 * len(STAMPS)}, {r}'); STAMPS.append(nm)
    a_setup_read_addr(b); b_setup_dma_addr(b)
    for i in range(ACQ + 4, 256):
        b(f'v_mov_b32 {vr(i)}, 0')
        if (i - ACQ) % 16 == 8 and (i - ACQ) // 16 < 8:
            b(f'v_mfma_f32_32x32x16_bf16 {ar(AGU + 16 * ((i - ACQ) // 16), 16)}, {vr(ACQ, 4)}, {vr(ACQ, 4)}, 0')
    fill = [l.strip() for l in b.lines]
    per = len(fill) // 15 + 1
    k0 = 0
    for k, x in enumerate(xops + wops):
        emit_plain(a, [x])
        if k == 7: emit_plain(a, xadv)
        k1 = min(len(fill), k0 + per)
        while k1 < len(fill) and fill[k1].startswith(('s_addc', 's_subb', 's_cselect')): k1 += 1
        for y in fill[k0:k1]: a(y)
        k0 = k1
    assert k0 == len(fill)
    emit_plain(a, wadv)
    ntouch = 0
    stamp(a, opt, 'issued')
    a(f'''
    s_lshl_b32 s3, {sr(sQB)}, 2
    s_add_u32 s3, s3, {sr(sW)}
    s_lshl_b32 s3, s3, 2
    s_lshr_b32 s7, {sr(sH)}, 3
    s_add_u32 s3, s3, s7
    s_lshl_b32 s3, s3, 5
    s_and_b32 s7, {sr(sH)}, 7
    s_add_u32 s3, s3, s7
    s_lshl_b32 s3, s3, 2
    s_add_u32 s94, s3, {WS_FLAG}
    v_mov_b32 v4, 0
    s_mov_b64 exec, 1
    buffer_store_dword v4, v4, {sr(SRD_WS, 4)}, s94 offen sc1
    {TW('s3')}
    s_lshl_b32 s3, s3, 3
    s_bfe_u32 s7, s2, 0x20001
    s_add_u32 s3, s3, s7
    s_lshl_b32 s3, s3, 7
    s_add_u32 s3, s3, {WS_FF}
    buffer_store_dword v4, v4, {sr(SRD_WS, 4)}, s3 offen sc1
    buffer_store_dword v4, v4, {sr(SRD_WS, 4)}, s3 offen offset:512 sc1
    s_mov_b64 exec, -1
    ''')
    if wm == 2: warmup(a)
    a(f's_waitcnt vmcnt({19 + ntouch})')
    for x in x_reads(0): a(x)
    a('s_waitcnt lgkmcnt(0)\ns_barrier')
    for x in a_reads(0) + a_reads(1): a(x)
    stamp(a, opt, 'A0')
    a('s_waitcnt lgkmcnt(0)' if opt.get('stamp') else 's_waitcnt lgkmcnt(4)')
    a.raw('.p2align 3')
    a(f's_mov_b32 {sr(sCNT)}, 3')
    a.raw('.p2align 3')
    a.label('L_a')
    G = a_superstep(0, False, 0, name='a4') + a_superstep(1, False, 0, name='a5')
    G[-4].pre.append(f's_sub_u32 {sr(sCNT)}, {sr(sCNT)}, 1')
    G[-2].pre.append(f's_cmp_lg_u32 {sr(sCNT)}, 0')
    G[-1].post.append('s_cbranch_scc1 L_a')
    emit_gaps(a, [g.ops() for g in G], align=ALIGN())
    a.raw('.p2align 3')
    emit_gaps(a, [g.ops() for g in a_superstep(0, False, 1, name='a6', kv_ops=b_prologue_dma()[:12]) + a_superstep(1, False, 2, kv_ops=b_prologue_dma()[12:])], align=ALIGN())
    stamp(a, opt, 'Aend')
    a_epilogue(a, opt)

def NMEAN(c): return SX + c
def ALPHA(c): return STT + c
def RS2(c): return STT + 4 + c
CSQ = 32; CSG = 160; HP = 224
def a_stats_ops():
    w0 = ['v_lshlrev_b32 v4, 4, v3', f'v_add_u32 v4, {CSBUF}, v4', 'v_lshlrev_b32 v5, 2, v2', f'v_lshl_add_u32 v5, {sr(sW)}, 8, v5', f'v_add_u32 v5, {CSBUF}, v5']
    w0 += [f'v_mov_b32 {vr(STT + k)}, {vr(CSD + k)}' for k in range(4)]
    w0 += [f'v_permlane16_swap_b32 {vr(CSD + k)}, {vr(STT + k)}' for k in range(4)]
    w0 += [f'v_add_f32 {vr(CSD + k)}, {vr(CSD + k)}, {vr(STT + k)}' for k in range(4)]
    w1 = [f'ds_write_b32 v5, {vr(CSD + k)} offset:{64 * k}' for k in range(4)]
    st = ['v_and_b32 v6, 3, v1', 'v_cmp_eq_u32 s[98:99], 1, v6', 'v_cmp_eq_u32 s[100:101], 2, v6', 'v_cmp_eq_u32 vcc, 3, v6',
          ] + (['v_lshrrev_b32 v6, 2, v2', 'v_cmp_eq_u32 s[92:93], v6, v3'] if not OPT.get('small', 1) else [])
    st += [f'v_mov_b32 {vr(STT + 4 + k)}, {vr(SX + k)}' for k in range(4)]
    st += [f'v_permlane16_swap_b32 {vr(SX + k)}, {vr(STT + 4 + k)}' for k in range(4)]
    st += [f'v_add_f32 {vr(SX + k)}, {vr(SX + k)}, {vr(STT + 4 + k)}' for k in range(4)]
    for c in range(4):
        st.append(f'v_mul_f32 {vr(NMEAN(c))}, {f2u(-1 / 512)}, {vr(SX + c)}')
    for k, m in ((1, 's[98:99]'), (2, 's[100:101]'), (3, 'vcc')):
        for c in range(4):
            b = SXX + 4 * c
            st.append(f'v_cndmask_b32 {vr(b)}, {vr(b)}, {vr(b + k)}, {m}')
    for c in range(4 if not OPT.get('small', 1) else 0):
        st.append(f'v_cndmask_b32 {vr(SXX + 4 * c)}, 0, {vr(SXX + 4 * c)}, s[92:93]')
    for sw in ('v_permlane32_swap_b32', 'v_permlane16_swap_b32'):
        for c in range(4): st.append(f'v_mov_b32 {vr(SXX + 4 * c + 1)}, {vr(SXX + 4 * c)}')
        for c in range(4): st.append(f'{sw} {vr(SXX + 4 * c)}, {vr(SXX + 4 * c + 1)}')
        for c in range(4): st.append(f'v_add_f32 {vr(SXX + 4 * c)}, {vr(SXX + 4 * c)}, {vr(SXX + 4 * c + 1)}')
    sc = (128 ** -0.5) * math.log2(math.e)
    for c in range(4): st.append(f'v_mul_f32 {vr(SXX + 4 * c)}, {f2u(1 / 512)}, {vr(SXX + 4 * c)}')
    for c in range(4): st.append(f'v_fma_f32 {vr(SXX + 4 * c)}, -{vr(NMEAN(c))}, {vr(NMEAN(c))}, {vr(SXX + 4 * c)}')
    for c in range(4): st.append(f'v_max_f32 {vr(SXX + 4 * c)}, 0, {vr(SXX + 4 * c)}')
    for c in range(4): st.append(f'v_add_f32 {vr(SXX + 4 * c)}, {f2u(1e-5)}, {vr(SXX + 4 * c)}')
    for c in range(4): st.append(f'v_rsq_f32 {vr(ALPHA(c))}, {vr(SXX + 4 * c)}')
    for c in range(4): st.append(f'v_rcp_f32 {vr(RS2(c))}, {vr(SXX + 4 * c)}')
    for c in range(4): st.append(f'v_mul_f32 {vr(ALPHA(c))}, {f2u(sc)}, {vr(ALPHA(c))}')
    rd = [f'ds_read_b128 {vr(CSQ + 4 * nb, 4)}, v4 offset:{64 * nb}' for nb in range(8)]
    return (w0, w1), st, rd

def bc(r):
    return vr(r & ~1, 2), (r & 1)

def a_epilogue(a, opt):
    for c in range(4):
        nm, nh = bc(NMEAN(c))
        for nb in range(8):
            b = ACQ + (nb * 4 + c) * 4
            for i in (0, 2):
                a(f'v_pk_fma_f32 {vr(b + i, 2)}, {vr(CSQ + 4 * nb + i, 2)}, {nm}, {vr(b + i, 2)} op_sel:[0,{nh},0] op_sel_hi:[1,{nh},1]')
    for c in range(4):
        al, ah = bc(ALPHA(c))
        for nb in range(8):
            b = ACQ + (nb * 4 + c) * 4
            for i in (0, 2):
                a(f'v_pk_mul_f32 {vr(b + i, 2)}, {vr(b + i, 2)}, {al} op_sel:[0,{ah}] op_sel_hi:[1,{ah}]')
            for i in (0, 2):
                a(f'v_cvt_pk_bf16_f32 {vr(Q + 16 * c + 2 * nb + (i >> 1))}, {vr(b + i)}, {vr(b + i + 1)}')
    stamp(a, opt, 'e_q')
    for nb in range(8):
        a(f'ds_read_b128 {vr(CSG + 4 * nb, 4)}, v4 offset:{64 * (8 + nb)}')

def h_epilogue(a, mfmas, vmem):
    mfmas = list(mfmas)
    if OPT.get('x_noh'):
        emit_plain(a, vmem)
        for m in mfmas: a(m)
        a('s_nop 7')
        return
    for c in range(4):
        nm, nh = bc(NMEAN(c)); rs, rh = bc(RS2(c))
        tg = 128; tu = 144
        emit_plain(a, vmem[c:c + 1])
        for k in range(16):
            if k % 2 == 0: a(mfmas.pop(0))
            a(f'v_accvgpr_read_b32 {vr(tg + k)}, {ar(AGU + ((k >> 2) * 4 + c) * 4 + (k & 3))}')
            a(f'v_accvgpr_read_b32 {vr(tu + k)}, {ar(AGU + (((k >> 2) + 4) * 4 + c) * 4 + (k & 3))}')
        for k in range(0, 16, 2):
            a(f'v_pk_fma_f32 {vr(tg + k, 2)}, {vr(CSG + k, 2)}, {nm}, {vr(tg + k, 2)} op_sel:[0,{nh},0] op_sel_hi:[1,{nh},1]')
        for k in range(0, 16, 2):
            a(f'v_pk_fma_f32 {vr(tu + k, 2)}, {vr(CSG + 16 + k, 2)}, {nm}, {vr(tu + k, 2)} op_sel:[0,{nh},0] op_sel_hi:[1,{nh},1]')
        for k in range(0, 16, 2):
            a(f'v_pk_mul_f32 {vr(tg + k, 2)}, {vr(tg + k, 2)}, {rs} op_sel:[0,{rh}] op_sel_hi:[1,{rh}]')
        for k in range(0, 16, 2):
            a(f'v_pk_mul_f32 {vr(tg + k, 2)}, {vr(tg + k, 2)}, {vr(tu + k, 2)}')
        for k in range(8):
            a(f'v_cvt_pk_bf16_f32 {vr(tu + k)}, {vr(tg + 2 * k)}, {vr(tg + 2 * k + 1)}')
        for k in range(8):
            a(f'v_accvgpr_write_b32 {ar(HP + c * 8 + k)}, {vr(tu + k)}')
    assert not mfmas

def Sreg(buf, c, kb=0): return S + buf * 32 + c * 8 + kb * 4
def Qreg(c, s): return Q + c * 16 + s * 4
def Preg(c, par): return (PA if c < 2 else PB) + par * 8 + (c & 1) * 4
def Oreg(c, db): return O + c * 32 + db * 4
def LMreg(hf): return LM + hf * 4
def LOLD(hf): return LM + 8 + hf
SELA = 24; HL = 33; SL = 66
def qk_mfma(buf, c, kb, s, c0=None, head=None):
    d = vr(Sreg(buf, c, kb), 4)
    cc = d if not (s == 0 if head is None else head) else (c0 if c0 is not None else vr(NM + 4 * c, 4))
    return mf(d, ar(KF + 4 * (kb * 4 + s), 4), vr(Qreg(c, s), 4), cc)
def pv_mfma(c, par, db, c0=None):
    d = ar(Oreg(c, db), 4)
    return mf(d, ar(VF + par * 32 + db * 4, 4), vr(Preg(c, par), 4), d if c0 is None else c0)
def sum_mfma(hf, par):
    return f'v_smfmac_f32_16x16x64_bf16 {vr(LMreg(hf), 4)}, {vr(SELA, 4)}, {vr(Preg(2 * hf, par), 8)}, {vr(SIDX)}'
def k_read(slot, kb, s, base=None):
    if base is not None:
        return f'ds_read_b128 {ar(KF + 4 * (kb * 4 + s), 4)}, {vr(base + s)} offset:{slot * STAGE + kb * 8192}'
    return f'ds_read_b128 {ar(KF + 4 * (kb * 4 + s), 4)}, {vr(KA + 4 * (slot >> 2) + s)} offset:{(slot & 3) * STAGE + kb * 8192}'
def v_read(slot, db, u):
    return f'ds_read_b64_tr_b16 {ar(VF + (slot & 1) * 32 + db * 4 + 2 * u, 2)}, {vr((VAB if slot >= 4 else VAA) + db)} offset:{(slot & 3) * STAGE + u * 8192 + 2048}'
def dma_k(i):
    return f'buffer_load_dwordx4 {vr(DK0 + i)}, {sr(SRD_K, 4)}, {sr(sOK)} offen offset:{1024 * i}{OPT.get("kvsc", "")} lds'
def dma_v(i):
    return f'buffer_load_dwordx4 {vr(DV0 + i)}, {sr(SRD_V, 4)}, {sr(sOK)} offen offset:{2048 + 1024 * i}{OPT.get("kvsc", "")} lds'
def stage_dma(slot, k=True, v=True):
    ops = ([dma_k(0), dma_k(1)] if k else []) + ([dma_v(0), dma_v(1)] if v else [])
    ops[0] = (f's_add_u32 m0, {sr(sW4K)}, {slot * STAGE}', f's_add_u32 {sr(sOK)}, {sr(sOK)}, 8192', ops[0])
    return ops

def b_setup_dma_addr(a):
    a(f'''
    s_lshl_b32 s3, {sr(sW)}, 3
    v_add_u32 v5, s3, v3          ; row = 8w + (l>>4)
    v_and_b32 v7, 15, v5
    v_xor_b32 v7, v7, v2
    v_lshlrev_b32 v7, 4, v7
    v_lshl_add_u32 {vr(DK0)}, v5, 8, v7
    v_xor_b32 {vr(DK1)}, 64, {vr(DK0)}
    v_lshlrev_b32 v7, 1, v3
    v_xor_b32 v7, v7, v2
    v_lshlrev_b32 v7, 4, v7
    v_lshl_add_u32 {vr(DV0)}, v5, 8, v7
    v_xor_b32 {vr(DV1)}, 128, {vr(DV0)}
    s_mov_b32 {sr(sOK)}, {-8192 & 0xffffffff}
    ''')

def b_prologue_dma():
    ops = stage_dma(8, v=False) + stage_dma(9, v=False)
    for sl in range(5):
        ops += stage_dma(sl)
    return ops

def b_prologue_dma2():
    return stage_dma(5)

def b_setup_read_addr(a):
    a(f'''
    v_lshrrev_b32 v4, 3, v2
    v_lshlrev_b32 v4, 12, v4      ; (r>>3)*4096
    v_and_b32 v5, 7, v2
    v_lshl_add_u32 v4, v5, 8, v4  ; + (r&7)*256
    v_xor_b32 v5, v2, v3
    v_lshl_add_u32 v4, v5, 4, v4  ; + (r^g)*16
    ''')
    for s in range(4):
        a(f'v_xor_b32 {vr(KA + s)}, {s * 64}, v4')
        a(f'v_add_u32 {vr(KA + 4 + s)}, 65536, {vr(KA + s)}')
        a(f'v_add_u32 {vr(ST + 8 + s)}, 131072, {vr(KA + s)}')
    a(f'''
    v_bfe_u32 v4, v1, 2, 3        ; row&7
    v_lshlrev_b32 v5, 8, v4
    v_lshl_add_u32 v5, v4, 5, v5
    v_lshrrev_b32 v6, 5, v1
    v_lshl_add_u32 v5, v6, 12, v5
    v_and_b32 v6, 3, v1
    v_lshl_add_u32 v5, v6, 3, v5
    ''')
    for db in range(8):
        a(f'v_xor_b32 {vr(VAA + db)}, {db * 32}, v5')
        a(f'v_add_u32 {vr(VAB + db)}, 65536, {vr(VAA + db)}')
    a(f'''
    v_mov_b32 {vr(THR)}, 0x4e800000      ; 2^30
    v_mov_b32 {vr(SIDX)}, {vr(IDX)}
    v_lshrrev_b32 v4, 3, v2
    v_lshrrev_b32 v5, 5, v1
    v_and_b32 v6, 3, v1
    v_lshl_add_u32 v4, v6, 1, v4
    v_cmp_eq_u32 vcc, v4, v5
    v_mov_b32 v4, 0x3f803f80
    s_nop 0
    v_cndmask_b32 v5, 0, v4, vcc
    ''')
    for i in range(4):
        a(f'v_mov_b32 {vr(SELA + i)}, v5')
    a(f'v_lshlrev_b32 {vr(CL16)}, 4, v1')

def xlane(a, op, dst, t2):
    for sw in ('v_permlane32_swap_b32', 'v_permlane16_swap_b32'):
        a(f'v_mov_b32 {vr(t2)}, {vr(dst)}')
        a('s_nop 1')
        a(f'{sw} {vr(dst)}, {vr(t2)}')
        a(f'{op} {vr(dst)}, {vr(dst)}, {vr(t2)}')

def rowmax(a, base, dst, t2):
    a(f'v_max3_f32 {vr(dst)}, {vr(base)}, {vr(base + 1)}, {vr(base + 2)}')
    a(f'v_max3_f32 {vr(dst)}, {vr(dst)}, {vr(base + 3)}, {vr(base + 4)}')
    a(f'v_max3_f32 {vr(dst)}, {vr(dst)}, {vr(base + 5)}, {vr(base + 6)}')
    a(f'v_max_f32 {vr(dst)}, {vr(dst)}, {vr(base + 7)}')
    xlane(a, 'v_max_f32', dst, t2)

def softmax_c(a, sbase, pbase, tb, n=4):
    for r in range(n):
        a(f'v_exp_f32 {vr(tb)}, {vr(sbase + 2 * r)}')
        a(f'v_exp_f32 {vr(tb + 1)}, {vr(sbase + 2 * r + 1)}')
        a('s_nop 0')
        a(f'v_cvt_pk_bf16_f32 {vr(pbase + r)}, {vr(tb)}, {vr(tb + 1)}')

def b_prologue(a, opt):
    b_setup_read_addr(a)
    a('s_waitcnt vmcnt(0) lgkmcnt(0)')
    stamp(a, opt, 'e_h')
    a('s_barrier')
    for kb in range(2):
        for s in range(4):
            a(k_read(0, kb, s, base=ST + 8))
    a(f'''
    s_lshl_b32 s3, {sr(sQB)}, 4
    s_lshl_b32 s7, {sr(sW)}, 2
    s_add_u32 s3, s3, s7
    s_mul_i32 s3, s3, {HST()}
    {FB('s7', 's63')}
    s_lshl_b32 s7, s7, 11
    s_add_u32 s3, s3, s7
    s_add_u32 {sr(sHO)}, s3, {WS_H}
    s_mov_b32 s{SRD_WG}, s{SRD_WS}
    s_mov_b32 s{SRD_WG + 1}, s{SRD_WS + 1}
    {FBOK('s7')}
    s_cselect_b32 s{SRD_WG + 2}, 0x10000000, 0
    s_mov_b32 s{SRD_WU}, s{SRD_DBG}
    s_mov_b32 s{SRD_WU + 1}, s{SRD_DBG + 1}
    s_mov_b32 s{SRD_WU + 2}, 4
    s_cmp_eq_u32 {sr(sW)}, 0
    s_cselect_b32 {sr(sXO)}, 4, 64
    {TW('s54')}
    s_lshl_b32 s3, s54, 2
    s_bfe_u32 s7, s2, 0x20001
    s_add_u32 s3, s3, s7
    s_mul_i32 s3, s3, 12288
    s_add_u32 s92, s3, {WS_XF}
    s_add_u32 s93, s92, 4096
    s_add_u32 s62, s92, 8192
    s_waitcnt lgkmcnt(0)
    ''')
    h_epilogue(a, [qk_mfma(0, c, kb, s, c0='0') for c in range(4) for kb in range(2) for s in range(4)], b_prologue_dma2())
    stamp(a, opt, 'e_h2')
    for kb in range(2):
        for s in range(4):
            a(k_read(1, kb, s, base=ST + 8))
    for i in range(10):
        a(f'v_mov_b32 {vr(LM + i)}, 0')
    m = [ST + c for c in range(4)]; t2 = [ST + 4 + c for c in range(4)]
    for k in range(4):
        for c in range(4):
            b = Sreg(0, c)
            a([f'v_max3_f32 {vr(m[c])}, {vr(b)}, {vr(b + 1)}, {vr(b + 2)}', f'v_max3_f32 {vr(m[c])}, {vr(m[c])}, {vr(b + 3)}, {vr(b + 4)}',
               f'v_max3_f32 {vr(m[c])}, {vr(m[c])}, {vr(b + 5)}, {vr(b + 6)}', f'v_max_f32 {vr(m[c])}, {vr(m[c])}, {vr(b + 7)}'][k])
    for sw in ('v_permlane32_swap_b32', 'v_permlane16_swap_b32'):
        for c in range(4): a(f'v_mov_b32 {vr(t2[c])}, {vr(m[c])}')
        a('s_nop 0')
        for c in range(4): a(f'{sw} {vr(m[c])}, {vr(t2[c])}')
        for c in range(4): a(f'v_max_f32 {vr(m[c])}, {vr(m[c])}, {vr(t2[c])}')
    for c in range(4):
        for i in range(8):
            a(f'v_sub_f32 {vr(Sreg(0, c) + i)}, {vr(Sreg(0, c) + i)}, {vr(m[c])}')
        for i in range(4):
            a(f'v_sub_f32 {vr(NM + 4 * c + i)}, 0, {vr(m[c])}')
    for e in range(6):
        a(f'v_exp_f32 {vr(128 + e)}, {vr(Sreg(0, 2) + e)}')
    a(f'v_mov_b32 {vr(ONEV)}, 1')
    for r in range(3):
        a(f'v_cvt_pk_bf16_f32 {vr(Preg(2, 0) + r)}, {vr(128 + 2 * r)}, {vr(129 + 2 * r)}')
    a('s_waitcnt lgkmcnt(0)')

BIG = [22, 26, 30, HL + 9, HL + 13, HL + 17, HL + 22, HL + 26, HL + 30]
def step_gaps(slot, tag, opt, dma=True, final=False, extra=None, vm=0, first=None):
    p = slot & 1
    H = 1 - p
    sn = OPT.get('snk', 'qpac')
    qk = []
    for c in (2 * p, 2 * p + 1, 2 * H, 2 * H + 1):
        for i in range(2):
            kb = i ^ (c & 1) if 'q' in sn else i
            ss = range(4) if i == 0 or 'q' not in sn else range(3, -1, -1)
            qk += [qk_mfma(1 - p, c, kb, s, head=k == 0) for k, s in enumerate(ss)]
    pv = []
    for c in (2 * H, 2 * H + 1):
        for i, db in enumerate(range(8) if c & 1 == 0 else range(7, -1, -1)):
            if first == 0:
                pv += ['s_nop 0', pv_mfma(c, p, db, c0='0')]
            else:
                o = (1 - p, p) if i & 1 == 0 or 'p' not in sn else (p, 1 - p)
                pv += [pv_mfma(c, o[0], db, c0='0' if first == 1 else None), pv_mfma(c, o[1], db)]
    mfs = qk[:24] + [sum_mfma(H, p)] + qk[24:] + pv[:24] + [sum_mfma(p, p)] + pv[24:]
    G = [Gap(m) for m in mfs]
    def unit(hf, buf, e0, e1, g0):
        for e in range(e0, e1):
            g = g0 + 2 * (e - e0)
            G[g].valu.append(f'v_exp_f32 {vr(TMP + (e & 3))}, {vr(Sreg(buf, 2 * hf) + e)}')
            if e & 1:
                G[g + 1].valu.append(f'v_cvt_pk_bf16_f32 {vr(Preg(2 * hf, buf) + (e >> 1))}, {vr(TMP + ((e - 1) & 3))}, {vr(TMP + (e & 3))}')
    unit(H, p, 6, 16, 0); unit(p, p, 0, 6, 21); unit(p, p, 6, 16, HL)
    if not final: unit(p, 1 - p, 0, 6, HL + 21)
    for u, (hf, g0) in enumerate(((H, 0), (p, HL))):
        late = final and u == 1
        G[g0 + (31 if late else 28)].valu.append(f'v_cmp_nle_f32 vcc, {vr(LMreg(hf))}, {vr(THR)}')
        G[g0 + 32].post += [f's_cbranch_vccnz L_slow{u}_{tag}', f'L_back{u}_{tag}:']
    G[20].valu.append(f'v_mov_b32 {vr(LOLD(H))}, {vr(LMreg(H))}')
    G[HL + 20].valu.append(f'v_mov_b32 {vr(LOLD(p))}, {vr(LMreg(p))}')
    vplace = [1, 1, 3, 5, 5, 7, 9, 9, 11, 13, 13, 15, 17, 17, 19, 20]
    kplace = [HL + x for x in (1, 1, 3, 5, 5, 7, 11, 15)]
    for g, x in zip(vplace, [v_read(slot, db, u) for db in range(8) for u in range(2)]):
        G[g].mem.append(x)
    if not final:
        for g, x in zip(kplace, [k_read(slot, kb, s) for kb in range(2) for s in range(4)]):
            G[g].mem.append(x)
    G[HL - 1].pre.append('s_waitcnt lgkmcnt(0)')
    ops = []
    if dma:
        ops = [None] * 3 + stage_dma((slot + 6) & 7, k=dma != 'v')
        G[BIG[3] - 3].pre.append(ops[3][1]); ops[3] = (ops[3][0], ops[3][2])
    if extra:
        ops = extra
    for g, x in zip(BIG, ops):
        if x is not None:
            place(G, [x], g, g)
    if slot & 1:
        G[SL - 1].pre += [f's_waitcnt vmcnt({vm}) lgkmcnt(0)', 's_barrier'] if not final else []
    else:
        G[SL - 1].pre.append('s_waitcnt lgkmcnt(0)')
    if final:
        for g in G:
            if g.m in qk:
                g.m = 's_nop 0'
        if OPT.get('fin2', 1):
            old = [g for g in G[HL:] if g.m.startswith('v_mfma') and f', {ar(VF + (1 - p) * 32)[0]}[' in g.m and any(g.m == pv_mfma(c, 1 - p, db) for c in range(4) for db in range(8))]
            for g, h in zip(old, [G[k] for k in range(0, 32, 2) if k != 24] + [G[31]]):
                h.m, g.m = g.m, 's_nop 0'
        G[25].pre.append('s_nop 3')
        G[HL + 30].pre.append('s_nop 6')
    if first == 0: G[HL + 26].pre.append('s_nop 2')
    if final or first == 0:
        for k, g in enumerate(G):
            if g.m == 's_nop 0' and not (k and G[k - 1].valu and G[k - 1].valu[-1].startswith('v_exp') and not g.mem and not g.pre and g.valu):
                g.m = None
    return G

def gapops(G):
    return [[x for x in g.ops() if x is not None] for g in G]

def slow_path(a, p, u, final=False):
    hf = (1 - p) if u == 0 else p
    a.label(f'L_slowfn{u}_{p}_{int(final)}')
    a('s_nop 15')
    a(f'v_mov_b32 {vr(ST + 8)}, {vr(LOLD(hf))}\nv_mov_b32 {vr(ST + 9)}, {vr(LOLD(hf))}\ns_nop 1\nv_permlane16_swap_b32 {vr(ST + 8)}, {vr(ST + 9)}\nv_add_f32 {vr(ST + 8)}, {vr(ST + 8)}, {vr(ST + 9)}')
    for c in (2 * hf, 2 * hf + 1):
        cur = Sreg(p, c); nxt = Sreg(1 - p, c)
        d = ST + 4 + (c & 1); al = ST + 6 + (c & 1)
        rowmax(a, cur, d, ST + 1)
        a(f'v_max_f32 {vr(d)}, 0, {vr(d)}')
        a(f'v_mov_b32 {vr(ST)}, {vr(ST + 8)}')
        a(f'v_mov_b32 {vr(ST + 1)}, {vr(ST + 8)}')
        a('s_nop 1')
        a(f'v_permlane32_swap_b32 {vr(ST)}, {vr(ST + 1)}')
        a(f'v_log_f32 {vr(ST)}, {vr(ST + (c & 1))}')
        a('s_nop 0')
        a(f'v_max_f32 {vr(d)}, {vr(d)}, {vr(ST)}')
        a(f'v_sub_f32 {vr(al)}, 0, {vr(d)}')
        a(f'v_exp_f32 {vr(al)}, {vr(al)}')
        for i in range(8):
            a(f'v_sub_f32 {vr(cur + i)}, {vr(cur + i)}, {vr(d)}')
        if not final:
            for i in range(8):
                a(f'v_sub_f32 {vr(nxt + i)}, {vr(nxt + i)}, {vr(d)}')
        for i in range(4):
            a(f'v_sub_f32 {vr(NM + 4 * c + i)}, {vr(NM + 4 * c + i)}, {vr(d)}')
        for i in range(32):
            a(f'v_accvgpr_read_b32 {vr(ST + 2)}, {ar(Oreg(c, 0) + i)}')
            a(f'v_mul_f32 {vr(ST + 2)}, {vr(ST + 2)}, {vr(al)}')
            a(f'v_accvgpr_write_b32 {ar(Oreg(c, 0) + i)}, {vr(ST + 2)}')
        softmax_c(a, cur, Preg(c, p), ST + 2)
        if u == 0 and not (final and OPT.get('fin2', 1)):
            for r in range(4):
                x = Preg(c, 1 - p) + r
                a(f'v_lshlrev_b32 {vr(ST + 2)}, 16, {vr(x)}\nv_and_b32 {vr(ST + 3)}, 0xffff0000, {vr(x)}')
                a(f'v_mul_f32 {vr(ST + 2)}, {vr(ST + 2)}, {vr(al)}\nv_mul_f32 {vr(ST + 3)}, {vr(ST + 3)}, {vr(al)}')
                a(f'v_cvt_pk_bf16_f32 {vr(x)}, {vr(ST + 2)}, {vr(ST + 3)}')
        elif not final and c & 1 == 0:
            softmax_c(a, nxt, Preg(c, 1 - p), ST + 2, n=3)
    a(f'v_cmp_gt_u32 vcc, 32, {vr(LANE)}')
    a('s_nop 1')
    a(f'v_cndmask_b32 {vr(ST)}, {vr(ST + 7)}, {vr(ST + 6)}, vcc')
    a(f'v_mul_f32 {vr(LMreg(hf))}, {vr(LOLD(hf))}, {vr(ST)}')
    a('s_nop 1')
    a(sum_mfma(hf, p))
    a('s_nop 7')
    a('s_setpc_b64 s[98:99]')

SLOW = []; PFX = []
def is_vm(x): return x.startswith(('buffer_', 'global_'))
def vm_between(G, g0, g1):
    return sum(1 for g in G[g0:g1] for x in g.mem if is_vm(x))

def trace_ops(G, lane, n=8):
    for sl in range(n):
        G[sl * SL + 0].pre += ['s_memtime s[100:101]'] + lane(sl)
        G[sl * SL + 44].valu += ['v_cmp_eq_u32 vcc, s95, v1']
        G[sl * SL + 48].valu += ['v_mov_b32 v222, s100']
        G[sl * SL + 52].valu += ['v_cndmask_b32 v221, v221, v222, vcc']

def ALIGN(): return OPT.get('align', False)
def first_pass(a, opt):
    G = []
    for st in range(16):
        G += step_gaps(st & 7, f'f{st}', opt, vm='VM', first=st if st < 2 else None); SLOW.append((st & 1, f'f{st}', False))
    def at(st, g, x): place(G, [x], st * SL + g, st * SL + g)
    hs = OPT.get('hs', [(0, 63), (1, 63), (5, 63), (6, 59), (6, 63), (7, 63), (8, 63), (9, 63)])
    for k in range(8):
        x = f'buffer_store_dwordx4 {ar(HP + 4 * k, 4)}, {vr(CL16)}, {sr(SRD_WG, 4)}, {sr(sHO)} offen offset:{1024 * (k & 1)} sc1'
        if k in (2, 4, 6): x = (f's_add_u32 {sr(sHO)}, {sr(sHO)}, {HST()}', x)
        if not opt.get('nohst'): at(hs[k][0], hs[k][1], x)
    place(G, wp_addr0(), SL + 22, SL + 45, kind='valu')
    dpos = OPT.get('dpos', [(2, 26), (2, 30), (3, 26), (3, 30), (4, 26), (4, 30), (5, 26), (5, 30)])
    for (st, g), x in zip(dpos, wp_dma()): at(st, g, x)
    place(G, wp_addr1(), 7 * SL + 22, 9 * SL + 30, kind='valu')
    r0 = OPT.get('r0', 10)
    assert r0 % 2 == 0 and dpos[-1][0] <= r0 - 5
    rd = wp_reads()
    sc, stv = wp_stores()
    G[9 * SL + 2].pre += sc[:2]; G[9 * SL + 4].pre += sc[2:6]; G[9 * SL + 6].pre += sc[6:]
    spos = OPT.get('spos', [(10, 63), (11, 59), (11, 63), (12, 63), (13, 63), (14, 59), (14, 63), (15, 63)])
    for k in range(4):
        place(G, rd[4 * k:4 * k + 4], (r0 + k) * SL + 22, (r0 + k) * SL + 26)
    for k, (st, g) in enumerate(spos):
        assert st >= r0 + k // 2
        at(st, g, stv[k])
    for j in range(1, 16, 2):
        n = vm_between(G, 0 if j < 4 else (j - 4) * SL + BIG[6] + 1, j * SL + SL - 1)
        G[j * SL + SL - 1].pre = [x.replace('VM', str(min(n, 63))) for x in G[j * SL + SL - 1].pre]
    if opt.get('trace'): trace_ops(G, lambda st: [f's_mov_b32 s95, {63 - st}'], 16)
    a.raw('.p2align 3')
    emit_gaps(a, gapops(G), align=ALIGN())

def phase_b(a, opt):
    b_prologue(a, opt)
    stamp(a, opt, 'B0')
    a(f's_mov_b32 {sr(sCNT)}, 5')
    first_pass(a, opt)
    stamp(a, opt, 'B1')
    a.raw('.p2align 6')
    a.label('L_attn')
    G = []
    for sl in range(8):
        G += step_gaps(sl, f's{sl}', opt, vm=16); SLOW.append((sl & 1, f's{sl}', False))
    G[2 * SL + 21].pre += [f's_cmp_eq_u32 {sr(sCNT)}, {sr(sXO)}']
    G[2 * SL + 22].post += ['s_cbranch_scc1 L_cnt', 'L_cnt_ok:']
    if opt.get('trace'): trace_ops(G, lambda sl: [f's_lshl_b32 s95, {sr(sCNT)}, 3', f's_add_u32 s95, s95, {7 - sl}'])
    G[-6].pre.append(f's_sub_u32 {sr(sCNT)}, {sr(sCNT)}, 1')
    G[-4].pre.append(f's_cmp_lg_u32 {sr(sCNT)}, 0')
    G[-1].post.append('s_cbranch_scc1 L_attn')
    emit_gaps(a, gapops(G), align=ALIGN())
    a.raw('.p2align 3')
    G = []
    NPF = OPT.get('npfs', 8)
    pf = [x for t in range(NPF) for x in c_dma(t)]
    extra = {4: pf[:8], 5: pf[8:16], 6: pf[16:24], 7: pf[24:]}
    for sl in range(8):
        g = step_gaps(sl, f't{sl}', opt, dma='v' if sl < 2 else False, final=sl == 7, extra=extra.get(sl), vm={1: 12, 3: 0, 5: 63}.get(sl, 0)); SLOW.append((sl & 1, f't{sl}', sl == 7))
        if sl == 0 and OPT.get('npf', 1):
            g[2].pre += ['s_lshr_b32 s3, s2, 3', 's_lshl_b32 s3, s3, 2', f's_add_u32 s3, s3, {sr(sW)}']
            g[4].pre += ['s_lshr_b32 s7, s3, 4', f's_mul_i32 s7, s7, {WFS}', 's_and_b32 s3, s3, 15']
            g[6].pre += ['s_lshl_b32 s3, s3, 13', 's_add_u32 s3, s3, s7', 's_bfe_u32 s7, s2, 0x20001']
            g[8].pre += ['s_lshl_b32 s7, s7, 17', 's_add_u32 s3, s3, s7', f's_add_u32 s58, s3, {WS_WF + 56 * 4096}']
            g[22].valu.append('v_lshlrev_b32 v4, 7, v1')
        if sl == 4 and OPT.get('npf', 1):
            PFX.append(f'buffer_load_dword v5, v4, {sr(SRD_WS, 4)}, s58 offen sc1')
            g[BIG[8]].mem.append(PFX[-1])
        if sl == 2:
            su = c_setup_scalar()
            for k in range(0, len(su), 2):
                g[2 + k].pre += su[k:k + 2]
            g[22].mem.append(f'buffer_load_dword {vr(POLLV)}, off, {sr(SRD_DBG, 4)}, 0 sc1')
        if sl == 4:
            g[15].valu.append(f'v_cmp_gt_u32 vcc, 0x100, {vr(POLLV)}')
            g[19].post += ['s_cbranch_vccnz L_pollall', 'L_pollall_ok:']
        G += g
    if opt.get('trace'): trace_ops(G, lambda sl: [f's_mov_b32 s95, {7 - sl}'])
    emit_gaps(a, gapops(G), align=ALIGN())
    stamp(a, opt, 'Bend')
    if opt.get('trace'): a('v_mov_b32 v63, v221')

def finalize_pre(a):
    a(f'''
    s_lshl_b32 s3, {sr(sQB)}, 4
    s_lshl_b32 s7, {sr(sW)}, 2
    s_add_u32 s3, s3, s7
    s_mul_i32 s3, s3, {OST()}
    s_lshl_b32 s7, {sr(sH)}, 12
    s_add_u32 {sr(sOK)}, s3, s7
    ''')
    for hf in range(2):
        a(f'v_mov_b32 {vr(ST + hf)}, {vr(LMreg(hf))}')
    a('s_nop 0')
    for hf in range(2):
        a(f'v_permlane16_swap_b32 {vr(LMreg(hf))}, {vr(ST + hf)}')
    for hf in range(2):
        a(f'v_add_f32 {vr(ST + 2 + 2 * hf)}, {vr(LMreg(hf))}, {vr(ST + hf)}')
        a(f'v_add_f32 {vr(ST + 3 + 2 * hf)}, {vr(LMreg(hf))}, {vr(ST + hf)}')
    a('s_nop 0')
    for hf in range(2):
        a(f'v_permlane32_swap_b32 {vr(ST + 2 + 2 * hf)}, {vr(ST + 3 + 2 * hf)}')
    for c in range(4):
        a(f'v_rcp_f32 {vr(RL + 2 * c)}, {vr(ST + 2 + c)}')
        a(f'v_rcp_f32 {vr(RL + 2 * c + 1)}, {vr(ST + 2 + c)}')

NF = 14; NS = 32
BLK = [0, 1, 2, 3, 8, 9, 4, 5, 6, 7]
sB0 = 56; sB1 = 57
BAD = 8; AAD = 20; CA2 = 192; CB2 = 224
def c_stream(kind):
    st, base, k0, nk, ka = (HST(), WS_H, 0, NF, 0) if kind[0] == 'f' else (OST(), WS_O, 0, NS, 56)
    ops = []
    if 'b' in kind:
        ops += [f's_lshl_b32 s3, {sr(sRB)}, 2', f's_add_u32 s3, s3, {sr(sW)}', f's_mul_i32 s3, s3, {2 * st}', 's_bfe_u32 s7, s2, 0x20001', f's_mul_i32 s7, s7, {nk * 1024}',
                's_add_u32 s3, s3, s7', f's_add_u32 {sr(sB0)}, s3, {(base - 1024) & 0xffffffff}', f's_add_u32 {sr(sB1)}, {sr(sB0)}, {st - 1024}']
    if 'a' in kind:
        ops += [f's_lshl_b32 s3, {sr(sCB)}, 1', f's_lshr_b32 s7, {sr(sW)}, 1', 's_add_u32 s3, s3, s7', f's_mul_i32 s3, s3, {WFS}', 's_bfe_u32 s7, s2, 0x20001', f's_mul_i32 s7, s7, {nk * 4096}',
                's_add_u32 s3, s3, s7', f's_and_b32 s7, {sr(sW)}, 1', 's_lshl_b32 s7, s7, 11', 's_add_u32 s3, s3, s7', f's_add_u32 {sr(sAO)}, s3, {WS_WF + ka * 4096 - 2048 - 4096}']
    return ops
def c_setup_scalar(): return c_stream('fab')
def c_dma(t, what='ab'):
    ops = []
    pre = (f's_add_u32 m0, {sr(sW4K)}, {BLK[t % 10] * STAGE}',)
    if 'b' in what:
        ops += [pre + (f's_add_u32 {sr(sB0)}, {sr(sB0)}, 1024', f'buffer_load_dwordx4 {vr(CL16)}, {sr(SRD_WS, 4)}, {sr(sB0)} offen sc1 lds'),
                (f's_add_u32 {sr(sB1)}, {sr(sB1)}, 1024', f'buffer_load_dwordx4 {vr(CL16)}, {sr(SRD_WS, 4)}, {sr(sB1)} offen offset:1024 sc1 lds')]
        pre = ()
    if 'a' in what:
        ops += [pre + (f's_add_u32 {sr(sAO)}, {sr(sAO)}, 4096', f'buffer_load_dwordx4 {vr(CL16)}, {sr(SRD_WS, 4)}, {sr(sAO)} offen offset:2048 sc1 lds'),
                f'buffer_load_dwordx4 {vr(CL16)}, {sr(SRD_WS, 4)}, {sr(sAO)} offen offset:3072 sc1 lds']
    return ops
def CCH(): return OPT.get('cch', 0)
def cA(t, k): return vr(64 + (t & 1) * 16 + 4 * k, 4) if CCH() and t & 2 else ar(CA2 + (t & 1) * 16 + 4 * k, 4)
def cB(t, k): return vr(96 + (t & 1) * 16 + 4 * k, 4) if CCH() and t & 2 else ar(CB2 + (t & 1) * 16 + 4 * k, 4)
def c_reads(t):
    b = BLK[t % 10]; off = (b & 3) * STAGE; st = b >> 2
    out = []
    for k in range(4):
        out.append(f'ds_read_b128 {cA(t, k)}, {vr(AAD + st)} offset:{off + (k >> 1) * 4096 + (k & 1) * 1024}')
        out.append(f'ds_read_b128 {cB(t, k)}, {vr(BAD + 4 * st + k)} offset:{off}')
    return out

def spin(a, name, sleep, body):
    a.label(name)
    a('s_mov_b32 s63, 0x20000')
    a.label(name + '_l')
    a(f's_sub_u32 s63, s63, 1\ns_cbranch_scc1 {name}_ok')
    if sleep: a(f's_sleep {sleep}')
    body(name + '_l')
    a(f's_branch {name}_ok')

def hooks(a):
    def flag(srd_):
        def body(l):
            a(f'buffer_load_dword v5, v4, {sr(srd_, 4)}, 0 offen {OPT.get("psc", "sc1")}\ns_waitcnt vmcnt(0)')
            a(f'v_cmp_ne_u32 vcc, v5, v6\ns_cbranch_vccnz {l}')
        return body
    def cnt(l):
        a(f'buffer_load_dword {vr(POLLV)}, off, {sr(SRD_DBG, 4)}, 0 sc1\ns_waitcnt vmcnt(0)\nv_cmp_gt_u32 vcc, 0x100, {vr(POLLV)}\ns_cbranch_vccnz {l}')
    a(f'L_cnt:\nbuffer_atomic_add {vr(ONEV)}, {vr(CL16)}, {sr(SRD_WU, 4)}, 0 offen sc1\ns_branch L_cnt_ok')
    spin(a, 'L_pollall', 8, cnt)
    spin(a, 'L_po', OPT.get('posleep', 8), flag(SRD_WG))
    spin(a, 'L_pf', 8, flag(SRD_WD))
    spin(a, 'L_ps', OPT.get('pssleep', 2), flag(SRD_WD))

class VM:
    def __init__(self, init): self.ops = list(init); self.done = 0
    def issue(self, tag): self.ops.append(tag); assert len(self.ops) - self.done <= 63, (tag, len(self.ops) - self.done)
    def wait(self, *tags):
        last = max(i for i, t in enumerate(self.ops) if t in tags)
        n = len(self.ops) - 1 - last
        self.done = max(self.done, last + 1)
        return f's_waitcnt vmcnt({n})'

def x_pack(acc, j, tb=160, pb=176):
    rd = [f'v_accvgpr_read_b32 {vr(tb + 4 * nb + i)}, {ar(acc + (nb * 4 + j) * 4 + i)}' for nb in range(4) for i in range(4)]
    cv = [f'v_cvt_pk_bf16_f32 {vr(pb + k)}, {vr(tb + 2 * k)}, {vr(tb + 2 * k + 1)}' for k in range(8)]
    return rd, cv
def x_dest(j, base, r):
    return ['s_bfe_u32 s7, s2, 0x20001', f's_add_u32 s7, s7, {j}', 's_and_b32 s7, s7, 3', 's_lshl_b32 s3, s54, 2', 's_add_u32 s3, s3, s7', 's_mul_i32 s3, s3, 12288',
            f's_add_u32 {r}, s3, {base + (j - 1) * 2048}']
def x_loads(part, reg):
    return [f'buffer_load_dwordx4 {vr(reg + 4 * k, 4)}, {vr(CL16)}, {sr(SRD_WS, 4)}, {XIN[(6 * part + k) >> 2]} offen offset:{1024 * ((6 * part + k) & 3)} sc1' for k in range(6)]
def x_check(a, reg, retry):
    a(f'''
    v_max3_u32 v14, {vr(reg)}, {vr(reg + 4)}, {vr(reg + 8)}
    v_max3_u32 v14, v14, {vr(reg + 12)}, {vr(reg + 16)}
    v_max_u32 v14, v14, {vr(reg + 20)}
    v_cmp_eq_u32 vcc, -1, v14
    s_cbranch_vccnz {retry}
    ''')
def x_add(a, dst, reg):
    for r in range(3):
        for k in range(8):
            a(f'v_lshlrev_b32 {vr(96 + 2 * k)}, 16, {vr(reg + 8 * r + k)}')
            a(f'v_and_b32 {vr(97 + 2 * k)}, 0xffff0000, {vr(reg + 8 * r + k)}')
        for k in range(0, 16, 2):
            a(f'v_pk_add_f32 {vr(dst + k, 2)}, {vr(dst + k, 2)}, {vr(96 + k, 2)}')
XSEL = 80
def x_sel_setup():
    return ['v_lshrrev_b32 v86, 2, v2', 'v_cmp_eq_u32 vcc, v86, v3', 'v_and_b32 v86, 1, v1', 'v_lshlrev_b32 v86, 4, v86', 'v_mov_b32 v87, 0x3f80', 'v_lshlrev_b32 v86, v86, v87',
            'v_cndmask_b32 v86, 0, v86, vcc', 'v_and_b32 v87, 2, v1', 'v_cmp_eq_u32 vcc, 0, v87', f'v_mov_b32 {vr(XSEL)}, 0', f'v_mov_b32 {vr(XSEL + 1)}, 0',
            f'v_cndmask_b32 {vr(XSEL + 2)}, 0, v86, vcc', f'v_xor_b32 {vr(XSEL + 3)}, {vr(XSEL + 2)}, v86', f'v_mov_b32 {vr(XSEL + 4)}, 0', f'v_mov_b32 {vr(XSEL + 5)}, 0']
def x_mfma(acc, reg, r):
    return [mf(ar(acc + nb * 16, 4), vr(XSEL + 2 - 2 * (nb & 1), 4), vr(reg + 8 * r + 4 * (nb >> 1), 4), ar(acc + nb * 16, 4)) for nb in range(4)]
def x_accum(dst, src):
    ops = []
    for k in range(8):
        ops += [f'v_lshlrev_b32 v200, 16, {vr(src + k)}', f'v_and_b32 v201, 0xffff0000, {vr(src + k)}',
                f'v_add_f32 {vr(dst + 2 * k)}, {vr(dst + 2 * k)}, v200', f'v_add_f32 {vr(dst + 2 * k + 1)}, {vr(dst + 2 * k + 1)}, v201']
    return ops

def phase_c(a, opt):
    T = NF + NS
    COUT = 23; CXR = 24; GV = 240; XR = 32; SV = 224
    finalize_pre(a)
    NPRE = OPT.get('npre', 4)
    lastpv = [pv_mfma(c, 1, db) for c in (2, 3) for db in range(8)]
    assert NPRE == 4
    for c in range(NPRE):
        for i in range(32):
            if c < 2 and i % 4 == 0: a(lastpv.pop(0))
            a(f'v_accvgpr_read_b32 {vr(128 + i)}, {ar(Oreg(c, 0) + i)}')
        for f in range(4):
            for i in range(0, 8, 2): a(f'v_pk_mul_f32 {vr(128 + 8 * f + i, 2)}, {vr(128 + 8 * f + i, 2)}, {vr(RL + 2 * c, 2)}')
            for i in range(4): a(f'v_cvt_pk_bf16_f32 {vr(160 + 4 * f + i)}, {vr(128 + 8 * f + 2 * i)}, {vr(129 + 8 * f + 2 * i)}')
            a(f'buffer_store_dwordx4 {vr(160 + 4 * f, 4)}, {vr(CL16)}, {sr(SRD_WS, 4)}, {sr(sOK)} offen offset:{1024 * f} sc1')
        a(f's_add_u32 {sr(sOK)}, {sr(sOK)}, {OST()}')
    a(f'''
    s_lshr_b32 s7, {sr(sW)}, 1
    s_lshl_b32 s58, s7, 13               ; mh*8192
    s_and_b32 s7, {sr(sW)}, 1
    s_lshl_b32 s7, s7, 13
    s_add_u32 s7, s7, 2048
    v_add_u32 {vr(AAD)}, s7, {vr(CL16)}
    v_add_u32 {vr(AAD + 1)}, 65536, {vr(AAD)}
    v_add_u32 {vr(AAD + 2)}, 131072, {vr(AAD)}
    ''')
    for j in range(4):
        a(f'''
        s_bfe_u32 s3, s2, 0x20001
        s_add_u32 s3, s3, {j}
        s_and_b32 s7, s3, 1
        s_and_b32 s3, s3, 2
        s_lshl_b32 s3, s3, 11
        s_lshl_b32 s7, s7, 10
        s_add_u32 s3, s3, s7
        s_add_u32 s3, s3, s58
        v_add_u32 {vr(BAD + j)}, s3, {vr(CL16)}
        v_add_u32 {vr(BAD + 4 + j)}, 65536, {vr(BAD + j)}
        v_add_u32 {vr(BAD + 8 + j)}, 131072, {vr(BAD + j)}
        ''')
    vm = VM([0] * 4 + [1] * 4 + ['pf'] * len(PFX[-1:]) + [t for t in range(2, OPT.get('npfs', 8)) for _ in range(4)] + ['o'] * (4 * NPRE))
    a(vm.wait(3 if CCH() else 2))
    a('s_barrier')
    for x in c_reads(0) + (c_reads(1) if CCH() else []): a(x)
    a(f'''
    s_mov_b32 s{SRD_X}, s96
    s_mov_b32 s{SRD_X + 1}, s97
    s_mov_b32 s{SRD_X + 2}, 2097152
    s_mov_b32 s{SRD_X + 3}, 0x20000
    v_lshlrev_b32 v5, 5, v3
    v_lshl_add_u32 {vr(COUT)}, v2, 10, v5
    s_lshl_b32 s3, {sr(sRB)}, 17
    s_lshl_b32 s7, s58, 3
    s_add_u32 s3, s3, s7
    s_bfe_u32 s7, s2, 0x20001
    s_lshl_b32 s7, s7, 14
    s_add_u32 s3, s3, s7
    s_lshl_b32 s7, {sr(sCB)}, 8
    s_add_u32 s3, s3, s7
    s_and_b32 s7, {sr(sW)}, 1
    s_lshl_b32 s7, s7, 7
    s_add_u32 {sr(sOV)}, s3, s7
    s_add_u32 s{SRD_WU}, s{SRD_WS}, s94
    s_addc_u32 s{SRD_WU + 1}, s{SRD_WS + 1}, 0
    s_mov_b32 s{SRD_WU + 2}, 4
    s_lshl_b32 s3, {sr(sRB)}, 10
    s_lshr_b32 s7, s58, 4
    s_add_u32 s3, s3, s7                 ; flag lines of row block 2*RB + mh
    s_bfe_u32 s7, s2, 0x20001
    s_lshl_b32 s7, s7, 7
    s_add_u32 s3, s3, s7
    s_add_u32 s3, s3, {WS_FLAG}
    s_add_u32 s{SRD_WG}, s{SRD_WS}, s3
    s_addc_u32 s{SRD_WG + 1}, s{SRD_WS + 1}, 0
    s_mov_b32 s{SRD_WG + 2}, 32
    s_lshl_b32 s3, s54, 10
    s_add_u32 s3, s3, {WS_FF}
    s_add_u32 s{SRD_WD}, s{SRD_WS}, s3
    s_addc_u32 s{SRD_WD + 1}, s{SRD_WS + 1}, 0
    s_mov_b32 s{SRD_WD + 2}, 512
    s_bfe_u32 s7, s2, 0x20001
    s_lshl_b32 s7, s7, 7
    s_add_u32 s{SRD_WO}, s{SRD_WD}, s7
    s_addc_u32 s{SRD_WO + 1}, s{SRD_WD + 1}, 0
    s_mov_b32 s{SRD_WO + 2}, 4
    v_lshlrev_b32 v4, 2, v1
    v_cmp_gt_u32 vcc, 8, v1
    v_mov_b32 v0, 1
    s_nop 0
    v_cndmask_b32 v6, 0, 1, vcc
    s_waitcnt lgkmcnt(0)
    '''.replace('v_mov_b32 v0, 1', f'v_mov_b32 {vr(ONEV)}, 1'))
    if CCH(): a('s_barrier')
    a.raw('.p2align 3')
    NFS = OPT.get('nfs', 4)
    PT = OPT.get('pt', 10)
    flag_t = OPT.get('flag_t', 0)
    U0 = OPT.get('u0', 20)
    DD = OPT.get('dd', 9 if CCH() else 8)
    cont = OPT.get('cont', 1) and PT <= 10
    if cont: OPT.setdefault('fxlate', 1); OPT.setdefault('fflag', 6 * OPT.get('fsp', 1) + 6)
    if flag_t < 0:
        a(vm.wait('o'))
        a(f'buffer_store_dword {vr(ONEV)}, {vr(CL16)}, {sr(SRD_WU, 4)}, 0 offen sc1'); vm.issue('flag')
        stamp(a, opt, 'Oflag')
    for t in range(T):
        acc = ACF if t < NF else ACS_
        first = t in (0, NF)
        u = t - NF
        G = []
        order = [(nb, j if not ('c' in OPT.get('snk', 'qpac') and nb & 1) else 3 - j) for nb in range(4) for j in range(4)] if t < T - (2 if CCH() else 1) else [(nb, j) for j in (1, 2, 3, 0) for nb in range(4)]
        if CCH():
            t0 = t & ~1
            for i, (nb, j) in enumerate(order[8 * (t & 1):8 * (t & 1) + 8]):
                d = ar(acc + (nb * 4 + j) * 4, 4)
                k0, k1 = (t0, t0 + 1) if i & 1 == 0 else (t0 + 1, t0)
                G += [Gap(mf(d, cA(k0, nb), cB(k0, j), '0' if t0 in (0, NF) else d)), Gap(mf(d, cA(k1, nb), cB(k1, j), d))]
        else:
            for nb, j in order:
                d = ar(acc + (nb * 4 + j) * 4, 4)
                G.append(Gap(mf(d, cA(t, nb), cB(t, j), '0' if first else d)))
        def vmem(g, x, tag):
            place(G, [x], g, None, cap=9); vm.issue(tag)
        if t == PT:
            if PT == NF:
                a(f'buffer_load_dword v5, v4, {sr(SRD_WG, 4)}, 0 offen sc1'); vm.issue('fl')
                for j in range(1, 4):
                    rd, cv = x_pack(ACF, j, 160, 176 + 8 * (j - 1))
                    for x in (['s_nop 4'] if j == 1 else []) + rd + cv: a(x)
            for x in c_stream('sb'): a(x)
            a(vm.wait('fl'))
            a('v_cmp_ne_u32 vcc, v5, v6\ns_cbranch_vccnz L_po\nL_po_ok:')
            stamp(a, opt, 'poll1')
            for tt in range(NF, PT + DD):
                emit_plain(a, c_dma(tt, 'b'))
                for k in range(2): vm.issue(tt)
            a('v_cmp_gt_u32 vcc, 4, v1\ns_bfe_u32 s7, s2, 0x20001\nv_cmp_eq_u32 s[98:99], s7, v1\nv_cndmask_b32 v6, 0, 1, vcc\nv_lshlrev_b32 v4, 7, v1')
            a('v_mov_b32 v59, 0x10000\nv_cndmask_b32 v6, v6, 0, s[98:99]\nv_cndmask_b32 v4, v4, v59, s[98:99]')
            a.raw('.p2align 3')
        if t == NF and cont:
            stamp(a, opt, 's0')
        if t == NF and not cont:
            stamp(a, opt, 'fend')
            fxl = OPT.get('fxlate', 0)
            for j in range(1, 4) if not fxl else []:
                if PT != NF:
                    rd, cv = x_pack(ACF, j, 160, 176 + 8 * (j - 1))
                    for x in (['s_nop 6'] if j == 1 else []) + rd + cv: a(x)
                for x in x_dest(j, WS_XF, 's58'): a(x)
                for k in range(2):
                    a(f'buffer_store_dwordx4 {vr(176 + 8 * (j - 1) + 4 * k, 4)}, {vr(CL16)}, {sr(SRD_WS, 4)}, s58 offen offset:{1024 * k} sc1'); vm.issue('fx')
            a(vm.wait(NF, NF + 1, NF + 2))
            a('s_barrier')
            for x in c_reads(NF): a(x)
            a('s_waitcnt lgkmcnt(0)')
            stamp(a, opt, 's0')
            a.raw('.p2align 3')
        tr = t + (2 if CCH() else 1)
        if tr < T and (tr != NF or cont):
            for k, x in zip([0, 1, 3, 4, 5, 7, 8, 9], c_reads(tr)): G[k].mem.append(x)
        stores = []
        nf = OPT.get('nf', 4)
        if t < (16 - 4 * NPRE) // nf:
            c = (t * nf + 4 * NPRE) >> 2; f0 = (t * nf) & 3
            for i in range(8 * nf):
                G[i // nf].valu.append(f'v_accvgpr_read_b32 {vr(160 + i)}, {ar(Oreg(c, 2 * f0) + i)}')
            for i in range(0, 8 * nf, 2):
                G[8].valu.append(f'v_pk_mul_f32 {vr(160 + i, 2)}, {vr(160 + i, 2)}, {vr(RL + 2 * c, 2)}')
            G[8].post.append('s_nop 1')
            for f in range(nf):
                for i in range(4):
                    G[9 + f].valu.append(f'v_cvt_pk_bf16_f32 {vr(192 + 4 * f + i)}, {vr(160 + 8 * f + 2 * i)}, {vr(161 + 8 * f + 2 * i)}')
                stores.append((10 + f if nf == 4 else 11 + 4 * f, f'buffer_store_dwordx4 {vr(192 + 4 * f, 4)}, {vr(CL16)}, {sr(SRD_WS, 4)}, {sr(sOK)} offen offset:{1024 * (f0 + f)} sc1', 'o'))
            if f0 + nf == 4: G[15].post.append(f's_add_u32 {sr(sOK)}, {sr(sOK)}, {OST()}')
        todo = []
        ds = {int(k): v for k, v in OPT.get('dsched', {}).items()}
        d = []
        if DD > 8: ds.setdefault(0, list(range(8, DD + 1)))
        for tn in ds.get(t, [t + DD] if t + DD < T else []):
            dd = c_dma(tn, 'a' if NF <= tn and t < PT else 'ab')
            if tn == NF:
                dd[0] = tuple(c_stream('sa')) + dd[0]
            d += [(x, tn) for x in dd]
        dp = [2, 6, 10, 14] if len(d) <= 4 else [k * 16 // len(d) for k in range(len(d))]
        todo += [(g, x, tn) for g, (x, tn) in zip(dp, d)]
        if t == PT - OPT.get('pback', 2) and PT != NF:
            stores += [(0, f'buffer_load_dword v5, v4, {sr(SRD_WG, 4)}, 0 offen sc1', 'fl')]
        fx0 = OPT.get('fxlate', 0)
        fsp = OPT.get('fsp', 1)
        if fx0 and fx0 <= u < fx0 + 6 * fsp and (u - fx0) % (2 * fsp) == 0:
            j = (u - fx0) // (2 * fsp) + 1
            rd, cv = x_pack(ACF, j)
            for k, x in enumerate(rd): G[k // 2].valu.append(x)
            for k, x in enumerate(cv): G[8 + k // 2].valu.append(x)
            G[11].pre += x_dest(j, WS_XF, 's58')
            stores += [(15, f'buffer_store_dwordx4 {vr(176, 4)}, {vr(CL16)}, {sr(SRD_WS, 4)}, s58 offen offset:0 sc1', 'fx')]
        if fx0 and fx0 <= u < fx0 + 6 * fsp and (u - fx0) % (2 * fsp) == fsp:
            stores += [(15, f'buffer_store_dwordx4 {vr(180, 4)}, {vr(CL16)}, {sr(SRD_WS, 4)}, s58 offen offset:1024 sc1', 'fx')]
        if u == U0:
            stores += [(15, f'buffer_load_dword v5, v4, {sr(SRD_WD, 4)}, 0 offen sc1', 'ff')]
        if u == 26:
            stores += [(4 + 6 * k, f'buffer_load_dwordx4 {vr(CXR + 4 * k, 4)}, {vr(COUT)}, {sr(SRD_X, 4)}, {sr(sOV)} offen offset:{16 * k}', 'x') for k in range(2)]
        if u == U0 + 3 + (U0 < 23):
            stores += [(2 * k + (U0 < 21), x, 'fx2') for k, x in enumerate(x_loads(0, XR))]
        for g, x, tag in sorted(todo + stores, key=lambda z: z[0]):
            vmem(g, x, tag)
        if u == 30:
            for j in range(1, 4): G[4 * j].pre += x_dest(j, WS_XF + 6144, f's{55 + j}')
        if t == flag_t:
            G[15].post += [vm.wait('o'), f'buffer_store_dword {vr(ONEV)}, {vr(CL16)}, {sr(SRD_WU, 4)}, 0 offen sc1'] + stamp_op('Oflag'); vm.issue('flag')
        if u == OPT.get('fflag', 8):
            G[15].post += [vm.wait('fx'), f'buffer_store_dword {vr(ONEV)}, {vr(CL16)}, {sr(SRD_WO, 4)}, 0 offen sc1']; vm.issue('flag2')
        if u == 28:
            G[4].pre += [f's_add_u32 s{SRD_WO}, s{SRD_WO}, 512', f's_addc_u32 s{SRD_WO + 1}, s{SRD_WO + 1}, 0']
        xm = OPT.get('xm', 1)
        if t == 4 and xm:
            for k, x in enumerate(x_sel_setup()): G[k].valu.append(x)
        if u == (30 if xm else 22):
            for k in range(16): G[k].valu.append(f'v_accvgpr_read_b32 {vr(GV + k)}, {ar(ACF + (k >> 2) * 16 + (k & 3))}')
        if u == 29 and xm:
            G = [Gap(m) for r in range(3) for m in x_mfma(ACF, XR, r)] + G
        if u == U0 + 2 + (U0 < 23):
            G[15].post += [vm.wait('ff'), 'v_cmp_ne_u32 vcc, v5, v6', 's_cbranch_vccnz L_pf', 'L_pf_ok:']
        if u == 27:
            G[4].pre += [f's_add_u32 s{SRD_WD}, s{SRD_WD}, 512', f's_addc_u32 s{SRD_WD + 1}, s{SRD_WD + 1}, 0']
        if u == 28:
            G[15].post.append(vm.wait('fx2'))
        if 29 <= u <= 31 and not xm:
            for k, x in enumerate(x_accum(GV, XR + 8 * (u - 29))): G[k // 2].valu.append(x)
        if t + 1 < T and (t + 1 != NF or cont):
            if (t + 1) % 2 == 0:
                need = [x for x in ((t + 3, t + 4) if CCH() else (t + 2, t + 3)) if x < T and (cont or not (t + 1 < NF <= x))]
                assert all(x in vm.ops for x in need), (t, need)
                w = vm.wait(*need) + ' lgkmcnt(0)' if need else 's_waitcnt lgkmcnt(0)'
                G[-1].post += [w, 's_barrier']
            elif not CCH():
                G[-1].post.append('s_waitcnt lgkmcnt(0)')
        if opt.get('ctrace'):
            G[0].pre.append(f's_memtime s[100:101]')
            G[14].valu.append(f'v_writelane_b32 v222, s100, {63 - t}')
        emit_gaps(a, gapops(G), align=False)
    stamp(a, opt, 'send')
    for j in range(1, 4):
        rd, cv = x_pack(ACS_, j, 160, 176 + 8 * (j - 1))
        for x in rd + cv: a(x)
        for k in range(2):
            a(f'buffer_store_dwordx4 {vr(176 + 8 * (j - 1) + 4 * k, 4)}, {vr(CL16)}, {sr(SRD_WS, 4)}, s{55 + j} offen offset:{1024 * k} sc1')
    stamp(a, opt, 'xst')
    for k in range(16 if not xm else 0):
        a(f'v_accvgpr_read_b32 {vr(SV + k)}, {ar(ACS_ + (k >> 2) * 16 + (k & 3))}')
    a('s_waitcnt vmcnt(6)')
    for k in range(8):
        a(f'v_lshlrev_b32 {vr(64 + 2 * k)}, 16, {vr(CXR + k)}')
        a(f'v_and_b32 {vr(65 + 2 * k)}, 0xffff0000, {vr(CXR + k)}')
    for k in range(16): a(f'v_mul_f32 {vr(144 + k)}, {f2u(-math.log2(math.e))}, {vr(GV + k)}')
    for k in range(16): a(f'v_exp_f32 {vr(144 + k)}, {vr(144 + k)}')
    for k in range(16): a(f'v_add_f32 {vr(112 + k)}, 1.0, {vr(144 + k)}')
    for k in range(16): a(f'v_rcp_f32 {vr(112 + k)}, {vr(112 + k)}')
    for k in range(0, 16, 2): a(f'v_pk_mul_f32 {vr(GV + k, 2)}, {vr(GV + k, 2)}, {vr(112 + k, 2)}')
    a(f'''
    s_waitcnt vmcnt(0)
    {OPT.get('fop', 'buffer_store_dword')} {vr(ONEV)}, {vr(CL16)}, {sr(SRD_WO, 4)}, 0 offen {OPT.get('fsc', 'sc1')}
    {''.join(stamp_op('xack'))}
    buffer_load_dword v5, v4, {sr(SRD_WD, 4)}, 0 offen sc1
    s_waitcnt vmcnt(0)
    v_cmp_ne_u32 vcc, v5, v6
    s_cbranch_vccnz L_ps
    L_ps_ok:
    ''')
    stamp(a, opt, 'xf')
    XS = 32
    for x in x_loads(1, XS): a(x)
    for r in range(3):
        a(f's_waitcnt vmcnt({4 - 2 * r})')
        if r == 2: stamp(a, opt, 'xld')
        if xm:
            for m in x_mfma(ACS_, XS, r): a(m)
            if r == 2:
                a('s_nop 4')
                for k in range(16): a(f'v_accvgpr_read_b32 {vr(SV + k)}, {ar(ACS_ + (k >> 2) * 16 + (k & 3))}')
            continue
        for k in range(8):
            a(f'v_lshlrev_b32 {vr(96 + 2 * k)}, 16, {vr(XS + 8 * r + k)}')
            a(f'v_and_b32 {vr(97 + 2 * k)}, 0xffff0000, {vr(XS + 8 * r + k)}')
        for k in range(0, 16, 2):
            a(f'v_pk_add_f32 {vr(SV + k, 2)}, {vr(SV + k, 2)}, {vr(96 + k, 2)}')
    for k in range(0, 16, 2):
        a(f'v_pk_fma_f32 {vr(SV + k, 2)}, {vr(SV + k, 2)}, {vr(GV + k, 2)}, {vr(64 + k, 2)}')
    for k in range(8):
        a(f'v_cvt_pk_bf16_f32 {vr(CXR + k)}, {vr(SV + 2 * k)}, {vr(SV + 1 + 2 * k)}')
    for k in range(2):
        a(f'buffer_store_dwordx4 {vr(CXR + 4 * k, 4)}, {vr(COUT)}, {sr(SRD_OUT, 4)}, {sr(sOV)} offen offset:{16 * k}{OPT.get("outsc", "")}')

OPT = {}
def add_pads(a, period, nchain):
    out = []; addr = 0; nxt = None; pads = []
    lines = a.lines
    for k, l in enumerate(lines):
        t = l.strip()
        if t.startswith('.p2align'):
            al = 1 << int(t.split()[1]); addr = (addr + al - 1) // al * al
        if t == 'L_warmdone:': addr = 0; nxt = period - OPT.get('padoff', 0)
        if t == 'L_end:': nxt = None
        if nxt is not None and addr >= nxt and t.startswith(('v_', 'ds_read', 's_add', 's_mov', 's_lshl', 'buffer_load')) and not lines[k - 1].strip().startswith(('.')):
            out.append(f'L_pad{len(pads)}:'); out.append(f'    PAD{len(pads)}'); pads.append(addr)
            addr += 4; nxt += period
            if ALIGN():
                out.append('    s_nop 0'); addr += 4
        out.append(l); addr += isize(l)
    n = len(pads)
    for k, l in enumerate(out):
        if l.startswith('    PAD'):
            i = int(l[7:])
            out[k] = f'    s_cbranch_execz ' + (f'L_pad{i + nchain}' if i + nchain < n else 'L_warmret')
    a.lines = out
    return n

def gen(opt):
    OPT.clear(); OPT.update(opt)
    SLOW.clear(); STAMPS.clear(); PFX.clear()
    a = A()
    setup(a, opt)
    phase_a(a, opt)
    phase_b(a, opt)
    phase_c(a, opt)
    if opt.get('stamp'):
        a('s_waitcnt vmcnt(0)')
        stamp(a, opt, 'end')
        a(f'''
        s_waitcnt lgkmcnt(0)
        s_lshl_b32 s3, s2, 2
        s_add_u32 s3, s3, {sr(sW)}
        s_lshl_b32 s3, s3, 6
        s_add_u32 s3, s3, {WS_STAMP}
        v_mov_b32 v1, 0
        v_mov_b32 v4, v0
        ''')
        if opt.get('ctrace'): a('v_mov_b32 v63, v222\n; v_cndmask_b32 v221')
        if opt.get('trace') or opt.get('ctrace'):
            a(f's_lshl_b32 s7, s2, 2\ns_add_u32 s7, s7, {sr(sW)}\ns_lshl_b32 s7, s7, 8\ns_add_u32 s7, s7, {WS_STAMP + (1 << 20)}\nv_lshrrev_b32 v20, 2, v7')
            a(f'buffer_store_dword v63, v20, {sr(SRD_WS, 4)}, s7 offen')
        if opt.get('dbgstamp'):
            a(f's_cmp_lg_u32 {sr(sW)}, 0\ns_cbranch_scc1 L_nodbg')
            a('v_not_b32 v20, v0\ns_mov_b64 exec, 1')
            a(f'v_mov_b32 v21, s{sST + 2 * (len(STAMPS) - 1)}')
            a(f'buffer_atomic_umax v20, off, {sr(SRD_DBG, 4)}, 0 offset:56 sc1')
            a(f'buffer_atomic_umax v21, off, {sr(SRD_DBG, 4)}, 0 offset:60 sc1')
            a(f's_cmp_lg_u32 s2, {opt["dbgstamp"]}\ns_cbranch_scc1 L_nodbg')
            for i in range(len(STAMPS)):
                a(f'v_sub_u32 v{22 + i}, s{sST + 2 * i}, v0')
                a(f'buffer_store_dword v{22 + i}, off, {sr(SRD_DBG, 4)}, 0 offset:{4 + 4 * i} sc1')
            a('L_nodbg:\ns_mov_b64 exec, -1')
        for i in range(12): a(f'v_mov_b32 v{5 + i}, s{sST + 2 * i}')
        for i in range(4):
            a(f'buffer_store_dwordx4 v[{4 + 4 * i}:{7 + 4 * i}], v1, {sr(SRD_WS, 4)}, s3 offen offset:{16 * i}')
    a.label('L_end')
    a('s_endpgm')
    hooks(a)
    for p, tag, final in SLOW:
        for hf in range(2):
            a.label(f'L_slow{hf}_{tag}')
            a(f's_call_b64 s[98:99], L_slowfn{hf}_{p}_{int(final)}')
            a(f's_branch L_back{hf}_{tag}')
    for p, final in sorted({(p, f) for p, _, f in SLOW}):
        for hf in range(2):
            slow_path(a, p, hf, final)
    if OPT.get('pad', 4096):
        npad = add_pads(a, OPT.get('pad', 4096), OPT.get('nchain', 4))
        print('pads', npad, file=sys.stderr)
    a.label('L_codeend')
    a('s_endpgm')
    return kernel_file(f'; ost {OST()} hst {HST()}\n; stamps entry ' + ' '.join(STAMPS) + '\n' + a.text(), 'grid=(256,1,1) block=(256,1,1) lds=163840')

if __name__ == '__main__':
    opt = json.loads(sys.argv[2]) if len(sys.argv) > 2 else {}
    open(sys.argv[1], 'w').write(gen(opt))
```
